```python
import torch

def _softmax(x, axis=-1):
    return torch.softmax(x, dim=axis)
def _gelu(x):
    return torch.nn.functional.gelu(x, approximate="tanh")
def _silu(x):
    return torch.nn.functional.silu(x)
def _sigmoid(x):
    return torch.sigmoid(x)
def _layernorm(x, axis=-1, eps=1e-5):
    m = x.mean(dim=axis, keepdim=True)
    v = x.var(dim=axis, keepdim=True, unbiased=False)
    return (x - m) / torch.sqrt(v + eps)
def _scatter_add(tgt, idx, src, axis=0):
    return tgt.clone().index_add_(axis, idx, src)
def _segment_sum(src, seg, n):
    out = torch.zeros((n,) + src.shape[1:], dtype=src.dtype)
    return out.index_add_(0, seg, src)
def _pad(x, pw):
    flat = tuple(v for pair in reversed(pw) for v in pair)
    return torch.nn.functional.pad(x, flat)

kernel_name = 'recurrent_scan__compressed_kv_cla__dense_activation_relu__decode'

def setup_inputs():

    _w = (lambda a: (lambda t: t.to(torch.bfloat16) if t.is_floating_point() else t)(torch.as_tensor(a)))
    def _A_setup():
        B, H, Sq, Sk, D, M = 1, 32, 1, 16384, 128, 640
        Dc = 4 * D
        return {
            "x": _w((lambda *s: torch.randn(*s, dtype=torch.bfloat16) * 0.05)(B, Sq, M)),
            "c_kv": _w((lambda *s: torch.randn(*s, dtype=torch.bfloat16) * 0.8)(B, Sk, Dc)),
            "w_q": _w((lambda *s: torch.randn(*s, dtype=torch.bfloat16) * 1.6)(M, H, D) * (M ** -0.5)),
            "w_uk": _w((lambda *s: torch.randn(*s, dtype=torch.bfloat16) * 1.6)(Dc, H, D) * (Dc ** -0.5)),
            "w_uv": _w((lambda *s: torch.randn(*s, dtype=torch.bfloat16) * 0.8)(Dc, H, D) * (Dc ** -0.5)),
            "w_o": _w((lambda *s: torch.randn(*s, dtype=torch.bfloat16) * 0.8)(H, D, M) * ((H * D) ** -0.5)),
        }
    _A_in = _A_setup()

    def _B_setup():
        B, S, D, Dff = 1, 1, 640, 1728
        return {
            "x": _w((lambda *s: torch.randn(*s, dtype=torch.bfloat16) * 0.05)(B, S, D)),
            "w1": _w((lambda *s: torch.randn(*s, dtype=torch.bfloat16) * 0.2)(D, Dff)),
            "w2": _w((lambda *s: torch.randn(*s, dtype=torch.bfloat16) * 0.2)(Dff, D)),
        }
    _B_in = _B_setup()

    return {
        "A_x": _A_in["x"],
        "A_c_kv": _A_in["c_kv"],
        "A_w_q": _A_in["w_q"],
        "A_w_uk": _A_in["w_uk"],
        "A_w_uv": _A_in["w_uv"],
        "A_w_o": _A_in["w_o"],
        "B_x": _B_in["x"],
        "B_w1": _B_in["w1"],
        "B_w2": _B_in["w2"],
    }

def reference(A_x, A_c_kv, A_w_q, A_w_uk, A_w_uv, A_w_o, B_x, B_w1, B_w2):
    def _A_ref(x, c_kv, w_q, w_uk, w_uv, w_o):
        B, Sq, M = x.shape[0], x.shape[1], x.shape[2]
        Sk = c_kv.shape[1]
        H, D = w_q.shape[1], w_q.shape[2]
        q = torch.einsum("bqm,mhd->bhqd", x, w_q)
        k = torch.einsum("bkc,chd->bhkd", c_kv, w_uk)
        v = torch.einsum("bkc,chd->bhkd", c_kv, w_uv)
        scores = torch.einsum("bhqd,bhkd->bhqk", q, k) * (D ** -0.5)
        off = Sk - Sq
        qi = torch.arange(Sq)[:, None]
        kj = torch.arange(Sk)[None, :]
        cmask = kj <= (qi + off)
        scores = torch.where(cmask[None, None], scores, -1e9)
        p = _softmax(scores, axis=-1)
        ctx = torch.einsum("bhqk,bhkd->bhqd", p, v)
        return torch.einsum("bhqd,hdm->bqm", ctx, w_o)

    def _B_ref(x, w1, w2):
        h = torch.einsum("bsd,df->bsf", x, w1)
        zero = torch.zeros_like(h)
        h = torch.maximum(h, zero)
        return torch.einsum("bsf,fd->bsd", h, w2)

    x = A_x
    xn = _layernorm(x, axis=-1)
    s = _A_ref(xn, A_c_kv, A_w_q, A_w_uk, A_w_uv, A_w_o)
    g = _silu(_B_ref(xn, B_w1, B_w2))
    return x + s * g
```

```python
NAME = "recurrent_scan__compressed_kv_cla__dense_activation_relu__decode"
HDR_COMMENT = open("cdna_kernels/%s.s.ref" % NAME).read().split("; Override launch")[0]

def kernel_desc(label, vgpr, sgpr, accum=None):
    if accum is None:
        accum = (vgpr + 3) // 4 * 4
        if accum > 256: accum = 256
    return f""".section .rodata,"a"
.p2align 6
.amdhsa_kernel {label}
  .amdhsa_next_free_vgpr {vgpr}
  .amdhsa_next_free_sgpr {sgpr}
  .amdhsa_accum_offset {accum}
  .amdhsa_group_segment_fixed_size 0
  .amdhsa_kernarg_size 96
  .amdhsa_user_sgpr_count 2
  .amdhsa_user_sgpr_kernarg_segment_ptr 1
  .amdhsa_system_sgpr_workgroup_id_x 1
.end_amdhsa_kernel
"""

def kernel_head(label):
    return f""".text
.globl {label}
.p2align 8
.type {label},@function
{label}:
"""

def file_head(launch_lines):
    return HDR_COMMENT + "".join(l + "\n" for l in launch_lines) + '.amdgcn_target "amdgcn-amd-amdhsa--gfx950"\n'
```

```python
import sys, math, struct
from asmlib import *

OPT = dict(ts=0, stop=99, inflight=48)
for a in sys.argv[2:]:
    k, v = a.split("=")
    OPT[k] = int(v)
OUT = sys.argv[1] if len(sys.argv) > 1 else "k.s"

def f32(x): return struct.unpack("<I", struct.pack("<f", x))[0]

EPOCH = 0
QM   = 0x1000
QAM  = QM + 0x10000
CXM  = QAM + 0x10000
HM   = CXM + 0x20000
YM   = HM + 0x10000
SM   = YM + 80 * 2048
IB   = SM + 80 * 8192
WS_END = IB + 256 * 8 * 3072
TSOFF = 0x1000000
WS_REC = 0x2000000 if OPT["ts"] else WS_END

F_Q, F_QA, F_LAND, F_ISS, F_H2I, F_STG, F_MAX, F_P, F_IB, F_TAG = [4 * i for i in range(10)]
RMAX = 0x40
RL   = 0x80
REDQ = 0x100
REDQA = 0x600
RML  = 0xE00
PL   = 0x1000
RIB  = 0x2000
QL   = 0x3000
KV   = 0x7000
LDS_BYTES = KV + 0x20000

SCALE = (128 ** -0.5) * math.log2(math.e)
LIM_LDS = 1 << 16
LIM_MEM = 1 << 13

class G:
    def __init__(s): s.l = []; s.n = 0
    def __call__(s, x):
        for ln in x.strip("\n").split("\n"):
            s.l.append("  " + ln.strip())
    def label(s, x): s.l.append(x + ":")
    def nl(s, p): s.n += 1; return f"L_{p}_{s.n}"
    def text(s): return "\n".join(s.l) + "\n"
g = G()

def vr(a, n): return f"v[{a}:{a+n-1}]"
def sr(a, n): return f"s[{a}:{a+n-1}]"

LANE = 0
VZ = 1
VONE = 2
VT = 3
VTS = 167
sWG, sWV = 2, 3
WS = 4
SR = 8
sXCD, sSLOT, sHF, sJ = 12, 13, 14, 15
P_X, P_KV, P_WQ, P_WUK, P_WUV, P_WO, P_BX, P_W1, P_W2, P_OUT, P_DBG, P_WS = [16 + 2 * i for i in range(12)]
sTAG = 28
sCNT = 29
sPLO, sPHI = 100, 101

def srd(base, ptr, nbytes):
    g(f"""s_mov_b32 s{base}, s{ptr}
          s_mov_b32 s{base+1}, s{ptr+1}
          s_mov_b32 s{base+2}, {nbytes}
          s_mov_b32 s{base+3}, 0x20000""")

def stamp(k, sa=None):
    if not OPT["ts"]: return
    g(f"""s_memrealtime vcc
          s_waitcnt lgkmcnt(0)
          v_writelane_b32 v{VTS}, vcc_lo, {k}""")

def ts_flush():
    if not OPT["ts"]: return
    g(f"""s_mul_i32 s{sCNT}, s{sWG}, 12
          s_add_u32 s{sCNT}, s{sCNT}, s{sWV}
          s_lshl_b32 s{sCNT}, s{sCNT}, 7
          s_add_u32 s{sCNT}, s{sCNT}, {TSOFF}
          s_mov_b32 exec_hi, 0
          v_lshlrev_b32 v{VT}, 2, v{LANE}
          buffer_store_dword v{VTS}, v{VT}, {sr(WS,4)}, s{sCNT} offen""")

def lds_wait(off, target, st, extra=""):
    L, Lo = g.nl("w"), g.nl("wo")
    g(f"s_mov_b32 s{sCNT}, {LIM_LDS}")
    g.label(L)
    g(f"ds_read_b32 v{VT}, v{VZ} offset:{off}")
    if extra: g(extra)
    g(f"""s_waitcnt lgkmcnt(0)
          v_readfirstlane_b32 s{st}, v{VT}
          s_sub_u32 s{sCNT}, s{sCNT}, 1
          s_cbranch_scc1 {Lo}
          s_cmp_ge_u32 s{st}, {target}
          s_cbranch_scc0 {L}""")
    g.label(Lo)

def lds_inc(off):
    g(f"""s_mov_b64 exec, 1
          ds_add_u32 v{VZ}, v{VONE} offset:{off}
          s_mov_b64 exec, -1""")

def get_tag():
    g(f"""ds_read_b32 v{VT}, v{VZ} offset:{F_TAG}
          s_waitcnt lgkmcnt(0)
          v_readfirstlane_b32 s{sTAG}, v{VT}""")

def wave_sum(v, t, sdst):
    for mod in ("quad_perm:[1,0,3,2]", "quad_perm:[2,3,0,1]", "row_half_mirror", "row_mirror"):
        g(f"s_nop 1\nv_add_f32_dpp v{v}, v{v}, v{v} {mod} row_mask:0xf bank_mask:0xf")
    g(f"s_nop 1\nv_add_f32_dpp v{v}, v{v}, v{v} row_bcast:15 row_mask:0xa bank_mask:0xf")
    g(f"s_nop 1\nv_add_f32_dpp v{v}, v{v}, v{v} row_bcast:31 row_mask:0xc bank_mask:0xf")
    g(f"s_nop 1\nv_readlane_b32 s{sdst}, v{v}, 63")

def rne(v, t=None):
    g(f"v_cvt_pk_bf16_f32 v{v}, v{v}, v{v}\nv_and_b32 v{v}, 0xffff0000, v{v}")

def ln_stats(x5, tmp, sA, sB, vM, vR):
    u = tmp
    for k in range(5):
        g(f"v_lshlrev_b32 v{u+2*k}, 16, v{x5+k}\nv_and_b32 v{u+2*k+1}, 0xffff0000, v{x5+k}")
    a = u + 10
    g(f"v_add_f32 v{a}, v{u}, v{u+1}")
    for k in range(2, 10): g(f"v_add_f32 v{a}, v{a}, v{u+k}")
    wave_sum(a, None, sA)
    g(f"s_nop 1\nv_mov_b32 v{vM}, s{sA}\nv_mul_f32 v{vM}, {hex(f32(1.0/640))}, v{vM}")
    for k in range(10): g(f"v_sub_f32 v{u+k}, v{u+k}, v{vM}")
    g(f"v_mul_f32 v{a}, v{u}, v{u}")
    for k in range(1, 10): g(f"v_fmac_f32 v{a}, v{u+k}, v{u+k}")
    wave_sum(a, None, sB)
    g(f"s_nop 1\nv_mov_b32 v{vR}, s{sB}\nv_mul_f32 v{vR}, {hex(f32(1.0/640))}, v{vR}")
    rne(vR)
    g(f"v_add_f32 v{vR}, {hex(f32(1e-5))}, v{vR}")
    rne(vR)
    g(f"v_sqrt_f32 v{vR}, v{vR}\ns_nop 0")
    rne(vR)
    g(f"v_rcp_f32 v{vR}, v{vR}")
    rne(vM)

def ln_frag(src, dst, t0, vM, vR):
    for k in range(4):
        g(f"""v_lshlrev_b32 v{t0}, 16, v{src+k}
              v_and_b32 v{t0+1}, 0xffff0000, v{src+k}
              v_sub_f32 v{t0}, v{t0}, v{vM}
              v_sub_f32 v{t0+1}, v{t0+1}, v{vM}
              v_cvt_pk_bf16_f32 v{t0+1}, v{t0}, v{t0+1}
              v_lshlrev_b32 v{t0}, 16, v{t0+1}
              v_and_b32 v{t0+1}, 0xffff0000, v{t0+1}
              v_mul_f32 v{t0}, v{t0}, v{vR}
              v_mul_f32 v{t0+1}, v{t0+1}, v{vR}
              v_cvt_pk_bf16_f32 v{dst+k}, v{t0}, v{t0+1}""")

def perm_block(raw, out, order=(0, 1, 2, 3)):
    for p in range(4):
        e = 2 * order[p]
        for d in range(2):
            g(f"v_perm_b32 v{out+4*(2*d)+p}, v{raw+2*(e+1)+d}, v{raw+2*e+d}, s{sPLO}")
            g(f"v_perm_b32 v{out+4*(2*d+1)+p}, v{raw+2*(e+1)+d}, v{raw+2*e+d}, s{sPHI}")

def load_block(raw, voff, srdb, sbase, stmp, rowbytes, pol="nt"):
    per = max(1, 4096 // rowbytes) if rowbytes <= 4095 else 1
    per = min(per, 4095 // rowbytes + 1)
    cur = None
    for e in range(8):
        grp, rem = divmod(e, per)
        if grp != cur:
            if grp == 0: so = sbase
            else:
                g(f"s_add_u32 s{stmp}, s{sbase}, {grp*per*rowbytes}"); so = stmp
            cur = grp
        off = f" offset:{rem*rowbytes}" if rem else ""
        g(f"buffer_load_dwordx2 {vr(raw+2*e,2)}, v{voff}, {sr(srdb,4)}, s{so} offen{off} {pol}")

def tagcheck(regs, acc):
    g(f"v_xor_b32 v{acc}, s{sTAG}, v{regs[0]}")
    for r in regs[1:]:
        g(f"v_bitop3_b32 v{acc}, v{r}, s{sTAG}, v{acc} bitop3:0xbe")
    g(f"v_cmp_ne_u32 vcc, 0, v{acc}")

def fswz(dst, i, t):
    g(f"""v_lshrrev_b32 v{t}, 1, v{i}
          v_xor_b32 v{dst}, v{t}, v{i}
          v_and_b32 v{dst}, 4, v{dst}
          v_and_or_b32 v{dst}, v{i}, 2, v{dst}
          v_bfe_u32 v{t}, v{i}, 3, 1
          v_or_b32 v{dst}, v{dst}, v{t}""")

K = NAME + "_kernel"
g(f"""s_cmp_ge_u32 s{sWG}, 256
      s_cbranch_scc1 L_END
      s_load_dwordx16 s[16:31], s[0:1], 0
      s_load_dwordx8 s[32:39], s[0:1], 64
      v_lshrrev_b32 v{VT}, 6, v0
      v_and_b32 v{LANE}, 63, v0
      v_readfirstlane_b32 s{sWV}, v{VT}
      v_mov_b32 v{VZ}, 0
      v_mov_b32 v{VONE}, 1
      s_and_b32 s{sXCD}, s{sWG}, 7
      s_lshr_b32 s{sSLOT}, s{sWG}, 3
      s_lshr_b32 s{sHF}, s{sSLOT}, 3
      s_lshl_b32 s{sJ}, s{sXCD}, 2
      s_add_u32 s{sHF}, s{sHF}, s{sJ}
      s_and_b32 s{sJ}, s{sSLOT}, 7
      s_mov_b32 s{sPLO}, 0x05040100
      s_mov_b32 s{sPHI}, 0x07060302""")
if OPT["ts"]:
    g(f"v_mov_b32 v{VTS}, 0")
    stamp(0)
g(f"""s_cmp_ge_u32 s{sWV}, 8
      s_cbranch_scc1 L_G""")

vN, vKG = 4, 5
g(f"""v_and_b32 v{vN}, 15, v{LANE}
      v_lshrrev_b32 v{vKG}, 4, v{LANE}
      v_lshlrev_b32 v6, 2, v{LANE}
      v_lshlrev_b32 v7, 4, v{vKG}
      v_lshlrev_b32 v24, 16, v{vKG}
      v_lshl_add_u32 v24, v{vN}, 3, v24       ; + n*8
      s_lshr_b32 s40, s{sJ}, 1                ; mq
      s_mul_i32 s40, s40, 160
      s_lshl_b32 s41, s{sWV}, 5
      s_add_u32 s40, s40, s41
      s_lshl_b32 s41, s40, 13                 ; row0*8192
      s_lshl_b32 s42, s{sHF}, 8
      s_add_u32 s41, s41, s42
      s_and_b32 s42, s{sJ}, 1
      s_lshl_b32 s42, s42, 7
      s_add_u32 s41, s41, s42                 ; w_q soffset
      s_lshl_b32 s40, s40, 1
      s_waitcnt lgkmcnt(0)""")
srd(WS, P_WS, WS_REC)
g(f"s_cmp_ge_u32 s{sWV}, 5\ns_cbranch_scc1 L_A_noq")
srd(SR, P_X, 1280)
for k in range(5):
    g(f"buffer_load_dword v{8+k}, v6, {sr(SR,4)}, 0 offen offset:{256*k}")
g(f"buffer_load_dwordx4 v[16:19], v7, {sr(SR,4)}, s40 offen")
srd(44, P_WQ, 5242880)
load_block(32, 24, 44, 41, 42, 8192)
g("s_waitcnt vmcnt(9)")
ln_stats(8, 64, 40, 42, 14, 15)
g("s_waitcnt vmcnt(8)")
ln_frag(16, 20, 26, 14, 15)
g("s_barrier")
stamp(1)
g("s_waitcnt vmcnt(0)")
perm_block(32, 48)
g("s_nop 1")
for t in range(4):
    g(f"v_mfma_f32_16x16x32_bf16 {vr(64+4*t,4)}, v[20:23], {vr(48+4*t,4)}, 0")
g(f"""v_lshlrev_b32 v26, 4, v{vN}
      s_lshl_b32 s40, s{sWV}, 8
      v_add_u32 v26, s40, v26
      s_nop 4
      v_mov_b32 v65, v68
      v_mov_b32 v66, v72
      s_nop 1
      v_mov_b32 v67, v76
      s_mov_b64 exec, 0xffff
      ds_write_b128 v26, v[64:67] offset:{REDQ}
      s_mov_b64 exec, 1
      ds_add_u32 v{VZ}, v{VONE} offset:{F_Q}
      s_mov_b64 exec, -1
      s_branch L_A_q""")
g.label("L_A_noq")
g("s_barrier")
g.label("L_A_q")
stamp(2)
get_tag()
W = 80
g(f"""s_and_b32 s40, s{sWV}, 1
      s_lshl_b32 s40, s40, 3                  ; 8*dhalf'
      v_xor_b32 v6, s40, v{vN}
      v_lshlrev_b32 v6, 4, v6
      v_lshl_add_u32 v6, v{LANE}, 8, v6       ; row*256 + ...
      s_lshl_b32 s40, s{sHF}, 3
      s_add_u32 s40, s40, s{sWV}
      s_lshl_b32 s40, s40, 8
      s_add_u32 s40, s40, {QM}
      s_add_u32 s16, s{WS}, s40
      s_addc_u32 s17, s{WS+1}, 0
      s_lshl_b32 s18, s{sTAG}, 5              ; 32*TAG""")
lds_wait(F_LAND, 1, 40)
for e in range(8):
    if e: g(f"v_xor_b32 v7, {e*16}, v6")
    g(f"ds_read_b128 {vr(W+4*e,4)}, v{6 if e == 0 else 7} offset:{QL}")
g("v_mov_b32 v8, 0\nv_mov_b32 v9, 0")
stamp(3)
L, Lo = g.nl("h1"), g.nl("h1o")
g(f"s_mov_b32 s{sCNT}, {LIM_MEM}")
g.label(L)
for k in range(4):
    g(f"s_load_dwordx16 {sr(36+16*k,16)}, s[16:17], {64*k} glc")
g(f"""s_sub_u32 s{sCNT}, s{sCNT}, 1
      s_cbranch_scc1 {Lo}
      s_waitcnt lgkmcnt(0)
      s_cmp_eq_u32 s99, s{sTAG}
      s_cbranch_scc0 {L}
      s_add_u32 s19, s37, s39""")
for k in range(2, 32):
    g(f"s_add_u32 s19, s19, s{37+2*k}")
g(f"s_cmp_eq_u32 s19, s18\ns_cbranch_scc0 {L}")
g.label(Lo)
g("s_waitcnt lgkmcnt(0)")
for k in range(32):
    g(f"v_dot2c_f32_bf16 v{8+(k&1)}, s{36+2*k}, v{W+k}")
g(f"""v_lshlrev_b32 v6, 2, v{LANE}
      s_lshl_b32 s40, s{sWV}, 8
      v_add_u32 v6, s40, v6
      s_nop 0
      v_add_f32 v8, v8, v9
      ds_write_b32 v6, v8 offset:{REDQA}""")
lds_inc(F_QA)
stamp(4)
if OPT["stop"] <= 1:
    g("s_branch L_A_end")
g(f"""s_and_b32 s40, s{sSLOT}, 1              ; g
      s_lshl_b32 s40, s40, 4
      s_lshl_b32 s41, s{sWV}, 1
      s_add_u32 s40, s40, s41                 ; 16g+2w
      s_lshl_b32 s40, s40, 11
      s_add_u32 s40, s40, {QAM}
      s_lshr_b32 s41, s{sSLOT}, 1             ; mi 0..15
      s_lshl_b32 s42, s41, 8
      s_add_u32 s42, s42, s40
      s_add_u32 s16, s{WS}, s42
      s_addc_u32 s17, s{WS+1}, 0
      v_lshlrev_b32 v6, 4, v{LANE}""")
L, Lo = g.nl("h2"), g.nl("h2o")
g(f"s_mov_b32 s{sCNT}, {LIM_MEM}")
g.label(L)
g(f"""s_load_dwordx2 s[18:19], s[16:17], 248 glc
      s_sub_u32 s{sCNT}, s{sCNT}, 1
      s_cbranch_scc1 {Lo}
      s_waitcnt lgkmcnt(0)
      s_cmp_eq_u32 s19, s{sTAG}
      s_cbranch_scc0 {L}""")
g.label(Lo)
g("s_waitcnt lgkmcnt(0)")
def h2_loads():
    for n in range(4):
        g(f"buffer_load_dwordx4 {vr(8+4*n,4)}, v6, {sr(WS,4)}, s40 offen offset:{1024*n} sc1")
h2_loads()
lds_inc(F_H2I)
stamp(5)
QKA, PVA = 32, 96
fswz(24, vN, 25)
g(f"""v_xor_b32 v24, v24, v{vKG}
      v_lshlrev_b32 v24, 4, v24
      v_and_b32 v25, 7, v{vN}
      v_lshl_add_u32 v24, v25, 7, v24         ; + (i&7)*128
      v_lshrrev_b32 v25, 3, v{vN}
      v_lshl_add_u32 v24, v25, 10, v24        ; + (i>>3)*1024
      s_lshl_b32 s42, s{sWV}, 11
      s_add_u32 s42, s42, {KV}
      v_add_u32 v160, s42, v24
      v_xor_b32 v161, 64, v160
      v_add_u32 v162, 0x10000, v160
      v_add_u32 v163, 0x10000, v161
      v_lshrrev_b32 v26, 2, v{LANE}           ; i16""")
fswz(24, 26, 25)
g(f"""s_and_b32 s42, s{sWV}, 3
      s_lshl_b32 s42, s42, 1
      v_bfe_u32 v25, v{LANE}, 1, 1
      v_or_b32 v25, s42, v25                  ; xi = 2(w&3) + (c'>>1)
      v_xor_b32 v24, v24, v25
      v_lshlrev_b32 v24, 4, v24
      v_and_b32 v25, 1, v{LANE}
      v_lshl_add_u32 v24, v25, 3, v24
      v_and_b32 v25, 7, v26
      v_lshl_add_u32 v24, v25, 7, v24
      v_lshrrev_b32 v25, 3, v26
      v_lshl_add_u32 v24, v25, 10, v24
      s_lshr_b32 s42, s{sWV}, 2
      s_lshl_b32 s42, s42, 14
      s_add_u32 s42, s42, {KV}
      v_add_u32 v164, s42, v24
      v_add_u32 v165, 0x10000, v164""")
g(f"""v_lshrrev_b32 v24, 1, v{vN}             ; xi
      v_and_b32 v25, 4, v24
      v_lshl_or_b32 v25, v25, 1, v24          ; sigma
      s_lshl_b32 s42, s{sWV}, 1
      v_xor_b32 v25, s42, v25
      v_lshlrev_b32 v25, 4, v25
      v_lshl_add_u32 v25, v24, 8, v25
      v_lshl_add_u32 v25, v{vKG}, 11, v25     ; + (l>>4)*2048
      v_and_b32 v24, 1, v{LANE}
      v_lshl_add_u32 v28, v24, 3, v25
      v_xor_b32 v29, 16, v28
      v_xor_b32 v30, v{vN}, v{vKG}
      v_lshlrev_b32 v30, 4, v30
      v_lshl_add_u32 v30, v{vKG}, 8, v30
      v_xor_b32 v31, {12*16}, v30""")
lds_wait(F_LAND, 9, 42)
stamp(6)
for s in range(16):
    cb = s >> 1
    a = 160 + (s & 1) + (2 if cb >= 4 else 0)
    g(f"ds_read_b128 {vr(QKA+4*s,4)}, v{a} offset:{(cb&3)*16384}")
for i in range(4):
    for u in range(4):
        for hh in range(2):
            T = 2 * u + hh
            g(f"ds_read_b64_tr_b16 {vr(PVA+16*i+4*u+2*hh,2)}, v{164+(i>>1)} offset:{(i&1)*32768+T*2048}")
L, Lo = g.nl("h2c"), g.nl("h2co")
g(f"s_mov_b32 s43, {LIM_MEM}")
g.label(L)
g("s_waitcnt vmcnt(0)")
tagcheck([9, 11, 13, 15, 17, 19, 21, 23], 24)
g(f"""s_cbranch_vccz {Lo}
      s_sub_u32 s43, s43, 1
      s_cbranch_scc1 {Lo}""")
h2_loads()
g(f"s_branch {L}")
g.label(Lo)
stamp(7)
lds_wait(F_QA, 8, 42)
for n in range(4):
    g(f"v_mov_b32 v{9+4*n}, v{10+4*n}")
for n in range(4):
    g(f"ds_write_b64 v{28+(n>>1)}, {vr(8+4*n,2)} offset:{QL+(n&1)*8192}")
lds_inc(F_STG)
def bread(s): return f"ds_read_b128 {vr(8+4*(s&3),4)}, v{30+(s&1)} offset:{QL+s*1024}"
lds_wait(F_STG, 8, 42, extra="\n".join(bread(s) for s in range(4)))
stamp(8)
SA = 24
for s in range(16):
    if s >= 4:
        g(f"s_waitcnt lgkmcnt({min(3, 15-s)})")
    g(f"v_mfma_f32_16x16x32_bf16 {vr(SA,4)}, {vr(QKA+4*s,4)}, {vr(8+4*(s&3),4)}, {'0' if s == 0 else vr(SA,4)}")
    if s + 4 < 16:
        g(bread(s + 4))
g(f"""v_lshlrev_b32 v6, 2, v{vN}              ; n*4
      v_lshlrev_b32 v7, 4, v{LANE}            ; lane*16
      s_lshr_b32 s42, s{sWV}, 1
      s_lshl_b32 s42, s42, 10
      s_and_b32 s43, s{sWV}, 1
      s_lshl_b32 s43, s43, 3
      s_add_u32 s42, s42, s43
      v_add_u32 v8, s42, v7
      s_nop 1
      v_max3_f32 v9, v{SA}, v{SA+1}, v{SA+2}
      v_max_f32 v9, v9, v{SA+3}
      ds_max_f32 v6, v9 offset:{RMAX}""")
lds_inc(F_MAX)
VM = 10
lds_wait(F_MAX, 8, 42, extra=f"ds_read_b32 v{VM}, v6 offset:{RMAX}")
for r in range(4): g(f"v_sub_f32 v{SA+r}, v{SA+r}, v{VM}")
for r in range(4): g(f"v_exp_f32 v{SA+r}, v{SA+r}")
g(f"""v_mov_b32 v11, 0
      s_mov_b32 s43, 0x3f803f80
      v_cvt_pk_bf16_f32 v12, v{SA}, v{SA+1}
      v_cvt_pk_bf16_f32 v13, v{SA+2}, v{SA+3}
      ds_write_b64 v8, v[12:13] offset:{PL}
      v_dot2c_f32_bf16 v11, s43, v12
      v_dot2c_f32_bf16 v11, s43, v13
      s_nop 2
      ds_add_f32 v6, v11 offset:{RL}""")
lds_inc(F_P)
PF = 32; VL = 11
lds_wait(F_P, 8, 42, extra="\n".join([f"ds_read_b128 {vr(PF+4*u,4)}, v7 offset:{PL+1024*u}" for u in range(4)] + [f"ds_read_b32 v{VL}, v6 offset:{RL}"]))
stamp(9)
OA = 48
for u in range(4):
    for i in range(4):
        g(f"v_mfma_f32_16x16x32_bf16 {vr(OA+4*i,4)}, {vr(PVA+16*i+4*u,4)}, {vr(PF+4*u,4)}, {'0' if u == 0 else vr(OA+4*i,4)}")
GR = 64
g(f"""v_mul_u32_u24 v12, {8*8*3072}, v{vN}
      v_lshl_add_u32 v12, v{vKG}, 4, v12
      s_and_b32 s42, s{sSLOT}, 1
      s_lshl_b32 s42, s42, 7                  ; 16g*8
      s_add_u32 s42, s42, s{sWV}
      s_lshl_b32 s42, s42, 3
      s_add_u32 s42, s42, s{sXCD}
      s_mul_i32 s42, s42, 3072
      s_lshl_b32 s43, s41, 6                  ; mi*64
      s_add_u32 s42, s42, s43
      s_add_u32 s42, s42, {IB}
      v_and_b32 v13, 1, v{vKG}
      v_cmp_eq_u32 vcc, 1, v13
      v_mov_b32 v{GR+3}, s{sTAG}
      v_mov_b32 v{GR+7}, s{sTAG}
      v_mov_b32 v{GR+11}, s{sTAG}
      v_cndmask_b32 v{GR+10}, v{VM}, v{VL}, vcc""")
slots = [GR+0, GR+1, GR+2, GR+4, GR+5, GR+6, GR+8, GR+9]
for i in range(4):
    g(f"v_cvt_pk_bf16_f32 v{slots[2*i]}, v{OA+4*i}, v{OA+4*i+1}")
    g(f"v_cvt_pk_bf16_f32 v{slots[2*i+1]}, v{OA+4*i+2}, v{OA+4*i+3}")
for t in range(3):
    g(f"buffer_store_dwordx4 {vr(GR+4*t,4)}, v12, {sr(WS,4)}, s42 offen offset:{1024*t} sc1")
stamp(10)
if OPT["stop"] <= 2:
    g("s_branch L_A_end")
g(f"""s_lshl_b32 s42, s{sHF}, 3
      s_add_u32 s42, s42, s{sJ}
      s_lshl_b32 s42, s42, 3
      s_add_u32 s42, s42, s{sWV}
      s_mul_i32 s42, s42, 3072
      s_add_u32 s42, s42, {IB}
      s_add_u32 s43, s43, s42
      s_add_u32 s16, s{WS}, s43
      s_addc_u32 s17, s{WS+1}, 0""")
L, Lo = g.nl("h3"), g.nl("h3o")
g(f"s_mov_b32 s{sCNT}, {LIM_MEM}")
g.label(L)
g(f"""s_load_dword s18, s[16:17], {2048+60} glc
      s_sub_u32 s{sCNT}, s{sCNT}, 1
      s_cbranch_scc1 {Lo}
      s_waitcnt lgkmcnt(0)
      s_cmp_eq_u32 s18, s{sTAG}
      s_cbranch_scc0 {L}""")
g.label(Lo)
g("s_waitcnt lgkmcnt(0)")
stamp(11)
IR = 80
L, Lo = g.nl("h3c"), g.nl("h3co")
g(f"s_mov_b32 s43, {LIM_MEM}")
g.label(L)
for t in range(3):
    g(f"buffer_load_dwordx4 {vr(IR+4*t,4)}, v7, {sr(WS,4)}, s42 offen offset:{1024*t} sc1")
g("s_waitcnt vmcnt(0)")
tagcheck([IR+3, IR+7, IR+11], 24)
g(f"""s_cbranch_vccz {Lo}
      s_sub_u32 s43, s43, 1
      s_cbranch_scc0 {L}""")
g.label(Lo)
stamp(12)
g(f"""v_mov_b32_dpp v8, v{IR+10} quad_perm:[0,0,0,0] row_mask:0xf bank_mask:0xf
      v_mov_b32_dpp v9, v{IR+10} quad_perm:[1,1,1,1] row_mask:0xf bank_mask:0xf
      s_nop 0
      v_max_f32_dpp v10, v8, v8 row_ror:4 row_mask:0xf bank_mask:0xf""")
VV = 96
islots = [IR+0, IR+1, IR+2, IR+4, IR+5, IR+6, IR+8, IR+9]
def unpack(k): g(f"v_lshlrev_b32 v{VV+2*k}, 16, v{islots[k]}\nv_and_b32 v{VV+2*k+1}, 0xffff0000, v{islots[k]}")
unpack(0)
g("v_max_f32_dpp v10, v10, v10 row_ror:8 row_mask:0xf bank_mask:0xf")
unpack(1)
g("v_mov_b32 v11, v10")
unpack(2)
g("v_permlane16_swap_b32 v10, v11")
unpack(3)
g("v_max_f32 v10, v10, v11\nv_mov_b32 v11, v10")
unpack(4)
g("v_permlane32_swap_b32 v10, v11")
unpack(5)
g("v_max_f32 v10, v10, v11")
g("v_sub_f32 v8, v8, v10\nv_exp_f32 v8, v8")
unpack(6); unpack(7)
for k in range(16): g(f"v_mul_f32 v{VV+k}, v{VV+k}, v8")
g("v_mul_f32 v11, v9, v8              ; w*l")
for k in range(8): g(f"v_permlane32_swap_b32 v{VV+k}, v{VV+8+k}")
g("v_add_f32_dpp v11, v11, v11 row_ror:4 row_mask:0xf bank_mask:0xf")
for k in range(8): g(f"v_add_f32 v{VV+k}, v{VV+k}, v{VV+8+k}")
g("v_add_f32_dpp v11, v11, v11 row_ror:8 row_mask:0xf bank_mask:0xf")
g("s_nop 0")
for k in range(4): g(f"v_permlane16_swap_b32 v{VV+k}, v{VV+4+k}")
g("v_mov_b32 v12, v11")
for k in range(4): g(f"v_add_f32 v{VV+k}, v{VV+k}, v{VV+4+k}")
g("v_permlane16_swap_b32 v11, v12")
for k in range(4): g(f"v_add_f32_dpp v{VV+k}, v{VV+k}, v{VV+k} row_ror:4 row_mask:0xf bank_mask:0xf")
g("v_add_f32 v11, v11, v12\nv_mov_b32 v12, v11")
for k in range(4): g(f"v_add_f32_dpp v{VV+k}, v{VV+k}, v{VV+k} row_ror:8 row_mask:0xf bank_mask:0xf")
g("v_permlane32_swap_b32 v11, v12")
g(f"""v_and_b32 v13, 3, v{LANE}
      v_lshlrev_b32 v13, 3, v13
      v_lshl_add_u32 v13, v{vKG}, 5, v13      ; tile*32 + q*8
      s_mul_i32 s42, s{sWV}, 144
      v_add_u32 v13, s42, v13
      v_add_f32 v11, v11, v12                 ; L_w
      v_cvt_pk_bf16_f32 v{VV}, v{VV}, v{VV+1}
      v_cvt_pk_bf16_f32 v{VV+1}, v{VV+2}, v{VV+3}
      s_lshl_b32 s42, s{sWV}, 3
      v_mov_b32 v14, s42
      ds_write_b64 v13, {vr(VV,2)} offset:{RIB}
      s_mov_b64 exec, 1
      ds_write_b64 v14, v[10:11] offset:{RML}
      ds_add_u32 v{VZ}, v{VONE} offset:{F_IB}
      s_mov_b64 exec, -1""")
stamp(13)
g.label("L_A_end")
ts_flush()
g("s_endpgm")

g.label("L_G")
g(f"""v_and_b32 v{vN}, 15, v{LANE}
      v_lshrrev_b32 v{vKG}, 4, v{LANE}
      s_cmp_eq_u32 s{sWV}, 8
      s_cbranch_scc0 L_G9""")
g(f"""v_xor_b32 v8, v{vN}, v{vKG}
      v_lshlrev_b32 v8, 4, v8
      v_lshl_add_u32 v8, v{vKG}, 13, v8
      v_xor_b32 v9, 64, v8
      v_xor_b32 v10, 128, v8
      v_xor_b32 v11, 192, v8
      v_lshrrev_b32 v12, 3, v{LANE}""")
fswz(13, 12, 14)
g(f"""v_and_b32 v14, 7, v{LANE}
      v_xor_b32 v13, v13, v14
      v_lshlrev_b32 v13, 4, v13
      v_lshl_add_u32 v16, v12, 10, v13
      v_xor_b32 v17, {5*16}, v16
      s_lshl_b32 s40, s{sJ}, 19               ; 64*j rows * 8192
      s_lshl_b32 s41, s{sHF}, 8
      s_add_u32 s40, s40, s41                 ; w_uk soffset
      s_lshr_b32 s41, s{sSLOT}, 1
      s_lshl_b32 s41, s41, 3
      s_add_u32 s41, s41, s{sXCD}             ; ks
      s_lshl_b32 s41, s41, 17                 ; ks*128KB
      s_waitcnt lgkmcnt(0)""")
srd(WS, P_WS, WS_REC)
srd(SR, P_WUK, 4194304)
srd(44, P_KV, 16777216)
NI = OPT["inflight"]
dma = []
for u in range(16):
    dma.append(("uk", u))
for cb in range(8):
    for kgp in range(16):
        dma.append(("kv", cb, kgp))
signaled = 0
def signal(val):
    g(f"v_mov_b32 v18, {val}\nds_write_b32 v{VZ}, v18 offset:{F_LAND}")
BARRIER_AT = 36
for k, d in enumerate(dma):
    if k == BARRIER_AT:
        g("s_barrier")
    if k >= NI:
        g(f"s_waitcnt vmcnt({NI-1})")
        landed = k - NI + 1
        lv = landed // 16
        if lv > signaled:
            signaled = lv; signal(lv)
    if d[0] == "uk":
        u = d[1]
        g(f"s_mov_b32 m0, {QL + u*1024}")
        if u: g(f"s_add_u32 s40, s40, {4*8192}")
        else: g("s_nop 0")
        g(f"buffer_load_dwordx4 v{8+(u&3)}, {sr(SR,4)}, s40 offen nt lds")
    else:
        _, cb, kgp = d
        g(f"s_mov_b32 m0, {KV + (cb*16+kgp)*1024}")
        g(f"s_add_u32 s42, s41, {kgp*8192 + cb*128}")
        g(f"buffer_load_dwordx4 v{16+(kgp&1)}, {sr(44,4)}, s42 offen nt lds")
g(f"ds_write_b32 v{VZ}, v{VONE} offset:{F_ISS}")
stamp(1)
for lv in range(signaled + 1, 10):
    g(f"s_waitcnt vmcnt({144 - 16*lv})")
    signal(lv)
stamp(2)
g("s_branch L_Gw")

g.label("L_G9")
g(f"""s_cmp_eq_u32 s{sWV}, 9
      s_cbranch_scc0 L_G10
      s_waitcnt lgkmcnt(0)
      s_load_dword s40, s[{P_WS}:{P_WS+1}], {EPOCH}""")
srd(WS, P_WS, WS_REC)
g(f"""v_lshlrev_b32 v8, 2, v{LANE}
      v_cmp_eq_u32 vcc, 1, v{vKG}
      v_mov_b32 v10, 0xff800000
      s_nop 0
      v_cndmask_b32 v9, v{VZ}, v10, vcc
      ds_write_b32 v8, v9
      s_waitcnt lgkmcnt(0)
      s_mul_i32 s{sTAG}, s40, 1664525
      s_add_u32 s{sTAG}, s{sTAG}, 1013904223
      v_mov_b32 v9, s{sTAG}
      ds_write_b32 v{VZ}, v9 offset:{F_TAG}
      s_waitcnt lgkmcnt(0)
      s_barrier
      v_lshlrev_b32 v8, 4, v{vN}              ; n*16
      v_mov_b32 v13, s{sTAG}
      v_mov_b32 v15, s{sTAG}
      s_lshl_b32 s41, s{sHF}, 3
      s_add_u32 s41, s41, s{sJ}
      s_lshl_b32 s41, s41, 8
      s_add_u32 s42, s41, {QM}
      s_add_u32 s43, s41, {QAM}""")
stamp(1)
lds_wait(F_Q, 5, 40, extra="\n".join(f"ds_read_b128 {vr(32+4*b,4)}, v8 offset:{REDQ+256*b}" for b in range(5)))
def sum_groups(base, n):
    step = 1
    while step < n:
        for a in range(0, n - step, 2 * step):
            g(f"v_pk_add_f32 {vr(base+4*a,2)}, {vr(base+4*a,2)}, {vr(base+4*(a+step),2)}")
            g(f"v_pk_add_f32 {vr(base+4*a+2,2)}, {vr(base+4*a+2,2)}, {vr(base+4*(a+step)+2,2)}")
        step *= 2
sum_groups(32, 5)
g(f"""v_cvt_pk_bf16_f32 v12, v32, v33
      v_cvt_pk_bf16_f32 v14, v34, v35
      s_mov_b64 exec, 0xffff
      buffer_store_dwordx4 v[12:15], v8, {sr(WS,4)}, s42 offen sc1
      s_mov_b64 exec, -1""")
stamp(2)
lds_wait(F_QA, 8, 40, extra="\n".join(f"ds_read_b128 {vr(32+4*b,4)}, v8 offset:{REDQA+256*b}" for b in range(8)))
sum_groups(32, 8)
for r in range(4): g(f"v_mul_f32 v{32+r}, {hex(f32(SCALE))}, v{32+r}")
g(f"""v_cvt_pk_bf16_f32 v12, v32, v33
      v_cvt_pk_bf16_f32 v14, v34, v35
      s_mov_b64 exec, 0xffff
      buffer_store_dwordx4 v[12:15], v8, {sr(WS,4)}, s43 offen sc1
      s_mov_b64 exec, -1""")
stamp(3)
g("s_branch L_Gw")

g.label("L_G10")
g(f"""s_waitcnt lgkmcnt(0)""")
srd(WS, P_WS, WS_REC)
g(f"""s_cmp_eq_u32 s{sWV}, 10
      s_cbranch_scc0 L_G11""")
g(f"""s_getpc_b64 s[40:41]""")
g.label("L_pc")
g(f"""s_sub_u32 s40, s40, L_pc-{K}
      s_subb_u32 s41, s41, 0
      v_lshlrev_b32 v8, 6, v{LANE}
      s_mov_b32 s42, 0""")
g.label("L_pf")
g(f"""global_load_dword v9, v8, s[40:41]
      s_add_u32 s40, s40, 4096
      s_addc_u32 s41, s41, 0
      s_add_u32 s42, s42, 4096
      s_cmp_lt_u32 s42, L_CODE_END-{K}
      s_cbranch_scc1 L_pf
      s_barrier
      s_branch L_Gw""")

g.label("L_G11")
XF = 8
g(f"""s_lshr_b32 s40, s{sSLOT}, 3             ; hq
      s_lshl_b32 s40, s40, 1
      s_and_b32 s41, s{sJ}, 1
      s_add_u32 s40, s40, s41
      s_lshl_b32 s40, s40, 3
      s_add_u32 s62, s40, s{sXCD}             ; u in 0..63
      s_lshr_b32 s63, s{sJ}, 1                ; mq
      s_cmp_lt_u32 s62, 27
      s_cbranch_scc0 L_G11b""")
srd(SR, P_X, 1280)
g(f"""v_lshlrev_b32 v6, 2, v{LANE}
      v_lshlrev_b32 v7, 4, v{vKG}
      s_mul_i32 s40, s63, 320""")
for k in range(5):
    g(f"buffer_load_dword v{32+k}, v6, {sr(SR,4)}, 0 offen offset:{256*k}")
for b in range(5):
    g(f"buffer_load_dwordx4 {vr(40+4*b,4)}, v7, {sr(SR,4)}, s40 offen offset:{64*b}")
g("s_barrier\ns_waitcnt vmcnt(5)")
ln_stats(32, 64, 40, 42, 28, 29)
g("s_waitcnt vmcnt(0)")
for b in range(5):
    ln_frag(40 + 4 * b, XF + 4 * b, 30, 28, 29)
g("s_branch L_Gw")
g.label("L_G11b")
g("s_barrier")

g.label("L_Gw")
if OPT["stop"] <= 2:
    g("s_branch L_G_end")
get_tag()
lds_wait(F_ISS, 1, 40)
lds_wait(F_H2I, 8, 40)
stamp(4)
g(f"""s_cmp_eq_u32 s{sWV}, 11
      s_cbranch_scc1 L_FFN""")
def wo_setup():
    g(f"""v_mul_u32_u24 v6, {8*1280}, v{vKG}
          v_lshl_add_u32 v6, v{vN}, 3, v6
          s_lshl_b32 s40, s{sHF}, 7
          s_lshr_b32 s41, s{sJ}, 1
          s_lshl_b32 s41, s41, 5
          s_add_u32 s40, s40, s41
          s_mul_i32 s40, s40, 1280
          s_and_b32 s41, s{sJ}, 1
          s_mul_i32 s41, s41, 640
          s_add_u32 s48, s40, s41""")
    srd(44, P_WO, 5242880)

def h4_wait(A):
    g(f"""v_and_b32 v7, 7, v{vN}
          v_lshlrev_b32 v7, 7, v7
          v_lshl_add_u32 v7, v{vKG}, 5, v7
          s_lshl_b32 s40, s{sHF}, 2
          s_lshr_b32 s41, s{sJ}, 1
          s_add_u32 s49, s40, s41                 ; p = h*4+dq
          s_lshl_b32 s40, s49, 10
          s_add_u32 s40, s40, {CXM}""")
    L, Lo = g.nl("h4"), g.nl("h4o")
    g(f"s_mov_b32 s43, {LIM_MEM}")
    g.label(L)
    g(f"""buffer_load_dwordx4 {vr(A,4)}, v7, {sr(WS,4)}, s40 offen sc1
          buffer_load_dwordx4 {vr(A+4,4)}, v7, {sr(WS,4)}, s40 offen offset:16 sc1
          s_waitcnt vmcnt(0)""")
    tagcheck([A+1, A+3, A+5, A+7], VT)
    g(f"""s_cbranch_vccz {Lo}
          s_sub_u32 s43, s43, 1
          s_cbranch_scc0 {L}""")
    g.label(Lo)
    g(f"v_mov_b32 v{A+1}, v{A+4}\nv_mov_b32 v{A+3}, v{A+6}\ns_nop 1")

def wo_store_setup():
    g(f"""v_lshrrev_b32 v30, 1, v{vN}
          v_lshlrev_b32 v30, 13, v30
          v_and_b32 v31, 1, v{vN}
          v_lshl_add_u32 v30, v31, 5, v30
          v_and_b32 v31, 1, v{vKG}
          v_lshl_add_u32 v30, v31, 4, v30
          s_and_b32 s41, s{sJ}, 1
          s_mul_i32 s41, s41, {40*8192}
          s_lshl_b32 s50, s{sHF}, 2
          s_lshr_b32 s51, s{sJ}, 1
          s_add_u32 s50, s50, s51
          s_lshl_b32 s50, s50, 6
          s_add_u32 s50, s50, s41
          s_add_u32 s50, s50, {SM}""")

def wo_compute(A, frags, cbks, D):
    for bi, fr in enumerate(frags):
        for t in range(4):
            g(f"v_mfma_f32_16x16x32_bf16 {vr(D+16*bi+4*t,4)}, {vr(A,4)}, {vr(fr+4*t,4)}, 0")
    g("s_nop 4" if len(frags) == 1 else "s_nop 0")
    for bi, cbk in enumerate(cbks):
        d = D + 16 * bi
        for t in range(4):
            g(f"v_add_f32 v{d+4*t}, v{d+4*t}, v{d+4*t+1}\nv_add_f32 v{d+4*t+2}, v{d+4*t+2}, v{d+4*t+3}")
        for t in range(4):
            g(f"v_add_f32 v{d+4*t}, v{d+4*t}, v{d+4*t+2}")
        g(f"""v_mov_b32 v{d+1}, s{sTAG}
              v_mov_b32 v{d+3}, s{sTAG}
              v_permlane16_swap_b32 v{d}, v{d+8}
              v_permlane16_swap_b32 v{d+4}, v{d+12}
              s_add_u32 s51, s50, {cbk*8*8192}
              v_add_f32 v{d}, v{d}, v{d+8}
              v_add_f32 v{d+2}, v{d+4}, v{d+12}
              s_mov_b32 exec_hi, 0
              buffer_store_dwordx4 {vr(d,4)}, v30, {sr(WS,4)}, s51 offen sc1
              s_mov_b64 exec, -1""")

KORD = (0, 2, 1, 3)
wo_setup()
g(f"""s_cmp_eq_u32 s{sWV}, 8
      s_cbranch_scc0 L_G_uv""")
load_block(32, 6, 44, 48, 42, 1280)
g("s_add_u32 s49, s48, 128")
load_block(48, 6, 44, 49, 42, 1280)
wo_store_setup()
g("s_waitcnt vmcnt(8)")
perm_block(32, 64, KORD)
g("s_waitcnt vmcnt(0)")
perm_block(48, 80, KORD)
stamp(5)
lds_wait(F_IB, 8, 40)
h4_wait(8)
stamp(6)
wo_compute(8, [64, 80], [0, 1], 96)
stamp(7)
g("s_branch L_G_end")

g.label("L_G_uv")
g(f"""v_lshrrev_b32 v7, 1, v{vKG}
      v_lshlrev_b32 v7, 20, v7
      v_and_b32 v8, 1, v{vKG}
      v_lshl_add_u32 v7, v8, 16, v7
      v_lshl_add_u32 v7, v{vN}, 3, v7
      s_lshl_b32 s40, s{sJ}, 17               ; 16j rows
      s_lshl_b32 s41, s{sHF}, 8
      s_add_u32 s40, s40, s41
      s_sub_u32 s52, s{sWV}, 9                ; colhalf
      s_lshl_b32 s41, s52, 7
      s_add_u32 s40, s40, s41
      s_add_u32 s41, s40, {256*8192}""")
srd(SR, P_WUV, 4194304)
load_block(32, 7, SR, 40, 42, 8192)
load_block(48, 7, SR, 41, 42, 8192)
g(f"""s_add_u32 s49, s52, 2
      s_lshl_b32 s49, s49, 7
      s_add_u32 s49, s49, s48""")
load_block(64, 6, 44, 49, 42, 1280)
wo_store_setup()
g(f"""s_add_u32 s53, s52, 2
      s_mul_i32 s53, s53, {8*8192}
      s_add_u32 s50, s50, s53""")
g("s_waitcnt vmcnt(16)")
perm_block(32, 80)
g("s_waitcnt vmcnt(8)")
perm_block(48, 96)
g("s_waitcnt vmcnt(0)")
perm_block(64, 112, KORD)
g(f"""v_and_b32 v7, 7, v{vN}
      v_mul_u32_u24 v8, 144, v7
      v_lshl_add_u32 v8, v{vKG}, 4, v8
      v_and_b32 v9, 1, v{vKG}
      v_lshlrev_b32 v9, 5, v9
      v_xor_b32 v10, 32, v9
      v_lshrrev_b32 v11, 3, v{vN}
      v_lshlrev_b32 v11, 10, v11
      v_lshl_add_u32 v11, v7, 4, v11          ; (n>>3)*1024 + (n&7)*16
      s_lshl_b32 s40, s{sHF}, 2
      s_lshl_b32 s41, s52, 1
      s_add_u32 s40, s40, s41
      s_lshl_b32 s40, s40, 3
      s_add_u32 s40, s40, s{sJ}
      s_lshl_b32 s40, s40, 7
      s_add_u32 s54, s40, {CXM}""")
stamp(5)
lds_wait(F_IB, 8, 40, extra=f"""ds_read_b128 v[32:35], v8 offset:{RIB}
      ds_read_b128 v[36:39], v8 offset:{RIB+64}
      ds_read_b128 v[40:43], v9 offset:{RML}
      ds_read_b128 v[44:47], v9 offset:{RML+16}
      ds_read_b128 v[48:51], v10 offset:{RML}
      ds_read_b128 v[52:55], v10 offset:{RML+16}""")
stamp(6)
D = 128
for blk in range(2):
    for t in range(4):
        g(f"v_mfma_f32_16x16x32_bf16 {vr(D+4*t,4)}, {vr(32+4*blk,4)}, {vr(80+16*blk+4*t,4)}, {'0' if blk == 0 else vr(D+4*t,4)}")
g("""v_max3_f32 v56, v40, v42, v44
     v_max3_f32 v56, v56, v46, v48
     v_max3_f32 v56, v56, v50, v52
     v_max_f32 v56, v56, v54""")
for k in range(8): g(f"v_sub_f32 v{40+2*k}, v{40+2*k}, v56")
for k in range(8): g(f"v_exp_f32 v{40+2*k}, v{40+2*k}")
g("s_nop 0\nv_mul_f32 v57, v40, v41")
for k in range(1, 8): g(f"v_fmac_f32 v57, v{40+2*k}, v{41+2*k}")
g("v_rcp_f32 v57, v57")
for t in range(4):
    g(f"v_mul_f32 v{D+4*t}, v{D+4*t}, v40")
for r in range(1, 4):
    for t in range(4):
        g(f"v_fmac_f32 v{D+4*t}, v{D+4*t+r}, v{40+2*r}")
for t in range(4): g(f"v_mov_b32 v{D+4*t+1}, v{D+4*t}")
g("s_nop 0")
for t in range(4): g(f"v_permlane16_swap_b32 v{D+4*t}, v{D+4*t+1}")
for t in range(4): g(f"v_add_f32 v{D+4*t}, v{D+4*t}, v{D+4*t+1}")
for t in range(4): g(f"v_mul_f32 v{D+4*t}, v{D+4*t}, v57")
g(f"""v_mov_b32 v61, s{sTAG}
      v_mov_b32 v63, s{sTAG}
      v_cvt_pk_bf16_f32 v60, v{D}, v{D+4}
      v_cvt_pk_bf16_f32 v62, v{D+8}, v{D+12}
      s_mov_b64 exec, 0xffff
      buffer_store_dwordx4 v[60:63], v11, {sr(WS,4)}, s54 offen sc1
      s_mov_b64 exec, -1""")
stamp(7)
h4_wait(8)
stamp(8)
wo_compute(8, [112], [0], 128)
stamp(9)
g(f"""s_cmp_eq_u32 s{sWV}, 9
      s_cbranch_scc0 L_G_end
      s_cmp_lt_u32 s{sWG}, 80
      s_cbranch_scc0 L_G_end""")
def red16(regs):
    for mod in ("row_ror:4", "row_ror:8"):
        g("s_nop 1")
        for r in regs: g(f"v_add_f32_dpp v{r}, v{r}, v{r} {mod} row_mask:0xf bank_mask:0xf")
    for sw in ("v_permlane16_swap_b32", "v_permlane32_swap_b32"):
        for r in regs: g(f"v_mov_b32 v{r+1}, v{r}")
        g("s_nop 1")
        for r in regs: g(f"{sw} v{r}, v{r+1}")
        for r in regs: g(f"v_add_f32 v{r}, v{r}, v{r+1}")
srd(SR, P_X, 1280)
srd(44, P_OUT, 1280)
g(f"""v_lshlrev_b32 v6, 4, v{LANE}
      v_and_b32 v7, 3, v{LANE}
      v_lshlrev_b32 v7, 2, v7
      s_lshl_b32 s55, s{sWG}, 4
      buffer_load_dword v16, v7, {sr(SR,4)}, s55 offen
      s_lshl_b32 s40, s{sWG}, 11
      s_add_u32 s40, s40, {YM}
      s_lshl_b32 s41, s{sWG}, 13
      s_add_u32 s41, s41, {SM}
      s_add_u32 s42, s41, 4096
      v_mov_b32 v12, 0
      v_mov_b32 v13, s{sTAG}
      v_mov_b32 v14, 0
      v_mov_b32 v15, s{sTAG}""")
L, Lo = g.nl("h7"), g.nl("h7o")
g(f"s_mov_b32 s43, {LIM_MEM}")
g.label(L)
g(f"""buffer_load_dwordx4 v[8:11], v6, {sr(WS,4)}, s40 offen sc1
      s_mov_b64 exec, {hex((1 << 44) - 1)}
      buffer_load_dwordx4 v[12:15], v6, {sr(WS,4)}, s40 offen offset:1024 sc1
      s_mov_b64 exec, -1
      s_waitcnt vmcnt(0)""".replace(f"s_mov_b64 exec, {hex((1 << 44) - 1)}", "s_mov_b32 exec_hi, 0xfff"))
tagcheck([9, 11, 13, 15], VT)
g(f"""s_cbranch_vccz {Lo}
      s_sub_u32 s43, s43, 1
      s_cbranch_scc0 {L}""")
g.label(Lo)
g("v_add_f32 v8, v8, v12\nv_add_f32 v10, v10, v14")
red16([8, 10])
for r in (8, 10):
    rne(r)
    g(f"""v_mul_f32 v{r+1}, {hex(f32(-math.log2(math.e)))}, v{r}
          v_exp_f32 v{r+1}, v{r+1}
          s_nop 0
          v_add_f32 v{r+1}, 1.0, v{r+1}
          v_rcp_f32 v{r+1}, v{r+1}
          s_nop 0
          v_mul_f32 v{r}, v{r}, v{r+1}""")
    rne(r)
g("v_lshlrev_b32 v17, 16, v16\nv_and_b32 v18, 0xffff0000, v16")
stamp(10)
L, Lo = g.nl("h5"), g.nl("h5o")
g(f"s_mov_b32 s43, {LIM_MEM}")
g.label(L)
for k in range(8):
    g(f"buffer_load_dwordx4 {vr(32+4*k,4)}, v6, {sr(WS,4)}, s{41 + (k >> 2)} offen offset:{1024*(k&3)} sc1")
g("s_waitcnt vmcnt(0)")
tagcheck([33 + 2 * k for k in range(16)], VT)
g(f"""s_cbranch_vccz {Lo}
      s_sub_u32 s43, s43, 1
      s_cbranch_scc0 {L}""")
g.label(Lo)
stamp(11)
for step in (1, 2, 4):
    for a in range(0, 8, 2 * step):
        g(f"v_add_f32 v{32+4*a}, v{32+4*a}, v{32+4*(a+step)}\nv_add_f32 v{34+4*a}, v{34+4*a}, v{34+4*(a+step)}")
red16([32, 34])
rne(32); rne(34)
g("v_mul_f32 v32, v32, v8\nv_mul_f32 v34, v34, v10")
rne(32); rne(34)
g(f"""v_add_f32 v32, v32, v17
      v_add_f32 v34, v34, v18
      v_cvt_pk_bf16_f32 v32, v32, v34
      s_mov_b64 exec, 0xf
      buffer_store_dword v32, v7, {sr(44,4)}, s55 offen
      s_cmp_eq_u32 s{sWG}, 0
      s_cbranch_scc0 L_noep
      s_mov_b64 exec, 1
      v_mov_b32 v13, s{sTAG}
      buffer_store_dword v13, v{VZ}, {sr(WS,4)}, 0 offen offset:{EPOCH}""")
g.label("L_noep")
g("s_mov_b64 exec, -1")
stamp(12)
g("s_branch L_G_end")

g.label("L_FFN")
g(f"""v_and_b32 v31, 1, v{vKG}
      v_cmp_eq_u32 s[56:57], 1, v31
      s_cmp_lt_u32 s62, 27
      s_cbranch_scc0 L_FFN2""")
g(f"""v_mul_u32_u24 v28, {8*3456}, v{vKG}
      v_lshl_add_u32 v28, v{vN}, 3, v28
      s_mul_i32 s40, s63, {160*3456}
      s_lshl_b32 s41, s62, 7
      s_add_u32 s40, s40, s41""")
srd(SR, P_W1, 2211840)
for b in range(5):
    if b: g(f"s_add_u32 s40, s40, {32*3456}")
    load_block(48 + 16 * b, 28, SR, 40, 42, 3456)
wo_setup()
g("s_add_u32 s49, s48, 512")
load_block(128, 6, 44, 49, 42, 1280)
D = 144
for b in range(5):
    g(f"s_waitcnt vmcnt({8*(5-b)})")
    perm_block(48 + 16 * b, 32 + 16 * b)
    g("s_nop 1")
    for t in range(4):
        g(f"v_mfma_f32_16x16x32_bf16 {vr(D+4*t,4)}, {vr(XF+4*b,4)}, {vr(32+16*b+4*t,4)}, {'0' if b == 0 else vr(D+4*t,4)}")
g(f"""v_lshlrev_b32 v28, 5, v{vN}
      v_lshl_add_u32 v28, v31, 4, v28         ; (4n+2qb)*8
      s_lshl_b32 s40, s62, 2
      s_add_u32 s40, s40, s63
      s_lshl_b32 s40, s40, 9
      s_add_u32 s40, s40, {HM}
      v_mov_b32 v9, s{sTAG}
      v_mov_b32 v11, s{sTAG}
      s_nop 1
      v_cndmask_b32 v8, v{D}, v{D+8}, s[56:57]
      v_cndmask_b32 v10, v{D+4}, v{D+12}, s[56:57]
      s_mov_b32 exec_hi, 0
      buffer_store_dwordx4 v[8:11], v28, {sr(WS,4)}, s40 offen sc1
      s_mov_b64 exec, -1
      s_branch L_FFNe""")
g.label("L_FFN2")
g(f"""s_mul_i32 s40, s63, 37
      s_add_u32 s40, s40, s62
      s_sub_u32 s58, s40, 27
      s_cmp_lt_u32 s58, 135
      s_cbranch_scc1 L_FFN2a""")
wo_setup()
g("s_add_u32 s49, s48, 512")
load_block(128, 6, 44, 49, 42, 1280)
g("s_branch L_FFNe")
g.label("L_FFN2a")
g(f"""s_mul_i32 s59, s58, 205
      s_lshr_b32 s59, s59, 10                 ; fb = v/5
      s_mul_i32 s60, s59, 5
      s_sub_u32 s60, s58, s60                 ; mb
      v_mul_u32_u24 v28, {8*1280}, v{vKG}
      v_lshl_add_u32 v28, v{vN}, 3, v28
      s_mul_i32 s40, s59, {64*1280}
      s_lshl_b32 s41, s60, 8
      s_add_u32 s40, s40, s41""")
srd(SR, P_W2, 2211840)
for ch in range(2):
    for blk in range(2):
        g(f"s_add_u32 s41, s40, {blk*32*1280 + ch*128}")
        load_block(48 + 16 * (2 * ch + blk), 28, SR, 41, 42, 1280)
wo_setup()
g("s_add_u32 s49, s48, 512")
load_block(128, 6, 44, 49, 42, 1280)
for b in range(4):
    g(f"s_waitcnt vmcnt({8*(4-b)})")
    perm_block(48 + 16 * b, 32 + 16 * b)
g(f"""v_lshrrev_b32 v28, 2, v{vN}
      v_lshlrev_b32 v28, 9, v28
      v_lshl_add_u32 v28, v{vKG}, 6, v28
      v_and_b32 v29, 3, v{vN}
      v_lshl_add_u32 v28, v29, 4, v28
      s_lshl_b32 s40, s59, 11
      s_add_u32 s40, s40, {HM}""")
L, Lo = g.nl("h6"), g.nl("h6o")
g(f"s_mov_b32 s43, {LIM_MEM}")
g.label(L)
g(f"""buffer_load_dwordx4 v[8:11], v28, {sr(WS,4)}, s40 offen sc1
      buffer_load_dwordx4 v[12:15], v28, {sr(WS,4)}, s40 offen offset:256 sc1
      s_waitcnt vmcnt(0)""")
tagcheck([9, 11, 13, 15], VT)
g(f"""s_cbranch_vccz {Lo}
      s_sub_u32 s43, s43, 1
      s_cbranch_scc0 {L}""")
g.label(Lo)
for mod in ("row_ror:4", "row_ror:8"):
    for r in (8, 10, 12, 14): g(f"v_add_f32_dpp v{r}, v{r}, v{r} {mod} row_mask:0xf bank_mask:0xf")
for r in (8, 10, 12, 14): g(f"v_max_f32 v{r}, 0, v{r}")
g("v_cvt_pk_bf16_f32 v8, v8, v10\nv_cvt_pk_bf16_f32 v12, v12, v14\ns_nop 1")
for blk in range(2):
    for p in range(4):
        g(f"v_mov_b32_dpp v{16+4*blk+p}, v{8+4*blk} quad_perm:[{p},{p},{p},{p}] row_mask:0xf bank_mask:0xf")
g("s_nop 1")
D = 96
for ch in range(2):
    for blk in range(2):
        for t in range(4):
            g(f"v_mfma_f32_16x16x32_bf16 {vr(D+16*ch+4*t,4)}, {vr(16+4*blk,4)}, {vr(32+16*(2*ch+blk)+4*t,4)}, {'0' if blk == 0 else vr(D+16*ch+4*t,4)}")
g(f"""v_lshrrev_b32 v28, 1, v{vN}
      v_lshlrev_b32 v28, 11, v28
      v_and_b32 v29, 1, v{vN}
      v_lshl_add_u32 v28, v29, 5, v28
      v_lshl_add_u32 v28, v31, 4, v28
      s_lshl_b32 s40, s60, 15
      s_lshl_b32 s41, s59, 6
      s_add_u32 s40, s40, s41
      s_add_u32 s40, s40, {YM}
      s_add_u32 s41, s40, {8*2048}
      v_mov_b32 v9, s{sTAG}
      v_mov_b32 v11, s{sTAG}
      v_mov_b32 v13, s{sTAG}
      v_mov_b32 v15, s{sTAG}
      v_cndmask_b32 v8, v{D}, v{D+8}, s[56:57]
      v_cndmask_b32 v10, v{D+4}, v{D+12}, s[56:57]
      v_cndmask_b32 v12, v{D+16}, v{D+24}, s[56:57]
      v_cndmask_b32 v14, v{D+20}, v{D+28}, s[56:57]
      s_mov_b32 exec_hi, 0
      buffer_store_dwordx4 v[8:11], v28, {sr(WS,4)}, s40 offen sc1
      buffer_store_dwordx4 v[12:15], v28, {sr(WS,4)}, s41 offen sc1
      s_mov_b64 exec, -1""")
g.label("L_FFNe")
stamp(5)
wo_store_setup()
g("s_waitcnt vmcnt(0)")
perm_block(128, 32, KORD)
lds_wait(F_IB, 8, 40)
h4_wait(8)
stamp(6)
wo_compute(8, [32], [4], 48)
stamp(7)
g.label("L_G_end")
ts_flush()
g.label("L_END")
g("s_endpgm")
g.l.append(".p2align 12")
g.label("L_CODE_END")

s = file_head([f"; @launch grid=(256,1,1) block=(768,1,1) lds={LDS_BYTES}"])
s += f""".text
.globl {K}
.p2align 12
.type {K},@function
{K}:
"""
s += g.text()
s += kernel_desc(K, 168, 102)
open(OUT, "w").write(s)
print(OUT, "lines", len(g.l), "ws_end", hex(WS_END))
```

```python
import sys, math, struct
from asmlib import *

OPT = dict(ts=0, stop=99, inflight=16, gate=2, ksmap=1, gthr=24, wogate=1, b1gate=0, pol=1, h2iss=3, amax=0, bk2=4, bk3=2)
for a in sys.argv[2:]:
    k, v = a.split("=")
    assert k in OPT, k
    OPT[k] = int(v)
OUT = sys.argv[1] if len(sys.argv) > 1 else "k.s"
NT = "nt" if OPT["pol"] else ""

def f32(x): return struct.unpack("<I", struct.pack("<f", x))[0]

EPOCH = 0
QM   = 0x1000
HD   = QM + 0x80000
QAM  = HD + 0x10000
CXM  = QAM + 0x10000
HM   = CXM + 0x20000
YM   = HM + 0x10000
SM   = YM + 80 * 2048
IB   = SM + 80 * 8192
WS_END = IB + 256 * 8 * 2048
TSOFF = 0x1000000
WS_REC = 0x2000000 if OPT["ts"] else WS_END

(F_Q, F_QA, F_LAND, F_ISS, F_H2I, F_STG, F_MAX, F_P, F_IB, F_UK, F_TAG, F_TAGV, F_QP, F_QI, F_SD, F_FIN) = [4 * i for i in range(16)]
RMAX = 0x40
RL   = 0x80
F_H3, F_ML, F_QAP = 0xC0, 0xC4, 0xC8
REDQ = 0x100
REDQA = 0x600
XNL  = 0xE40
PL   = 0x1000
RIB  = 0x2000
RFIN = 0x2900
MLT  = 0x2A00
RMX  = 0x2E00
RLP  = REDQ
QL   = 0x3000
KV   = 0x7000
LDS_BYTES = KV + 0x20000

SCALE = (128 ** -0.5) * math.log2(math.e)
LIM_LDS = 1 << 16
LIM_MEM = 1 << 13

class G:
    def __init__(s): s.l = []; s.n = 0
    def __call__(s, x):
        for ln in x.strip("\n").split("\n"):
            if ln.strip(): s.l.append("  " + ln.strip())
    def label(s, x): s.l.append(x + ":")
    def nl(s, p): s.n += 1; return f"L_{p}_{s.n}"
    def text(s): return "\n".join(s.l) + "\n"
g = G()

def vr(a, n): return f"v[{a}:{a+n-1}]"
def sr(a, n): return f"s[{a}:{a+n-1}]"

LANE, VZ, VONE, VT, vN, vKG = 0, 1, 2, 3, 4, 5
VTS = 167
sWG, sWV = 2, 3
WS = 4
SR = 8
sXCD, sSLOT, sHF, sJ = 12, 13, 14, 15
P_X, P_KV, P_WQ, P_WUK, P_WUV, P_WO, P_BX, P_W1, P_W2, P_OUT, P_DBG, P_WS = [16 + 2 * i for i in range(12)]
sTAG, sCNT = 28, 29
sPLO, sPHI = 100, 101
DPPM = "row_mask:0xf bank_mask:0xf"

def srd(base, ptr, nbytes):
    g(f"""s_mov_b32 s{base}, s{ptr}
          s_mov_b32 s{base+1}, s{ptr+1}
          s_mov_b32 s{base+2}, {nbytes}
          s_mov_b32 s{base+3}, 0x20000""")

def stamp(k):
    if not OPT["ts"]: return
    g(f"""s_memrealtime vcc
          s_waitcnt lgkmcnt(0)
          v_writelane_b32 v{VTS}, vcc_lo, {k}""")

def ts_flush():
    if not OPT["ts"]: return
    g(f"""s_mul_i32 s{sCNT}, s{sWG}, 12
          s_add_u32 s{sCNT}, s{sCNT}, s{sWV}
          s_lshl_b32 s{sCNT}, s{sCNT}, 7
          s_add_u32 s{sCNT}, s{sCNT}, {TSOFF}
          s_mov_b64 exec, -1
          s_mov_b32 exec_hi, 0
          v_lshlrev_b32 v{VT}, 2, v{LANE}
          buffer_store_dword v{VTS}, v{VT}, {sr(WS,4)}, s{sCNT} offen""")

def lds_wait(off, target, st, extra="", sleep=0):
    L, Lo = g.nl("w"), g.nl("wo")
    g(f"s_mov_b32 s{sCNT}, {LIM_LDS}")
    if sleep:
        Lf = g.nl("wf")
        g(f"s_branch {Lf}")
    g.label(L)
    if sleep:
        g(f"s_sleep {sleep}")
        g.label(Lf)
    g(f"ds_read_b32 v{VT}, v{VZ} offset:{off}")
    if extra: g(extra)
    g(f"""s_waitcnt lgkmcnt(0)
          v_readfirstlane_b32 s{st}, v{VT}
          s_sub_u32 s{sCNT}, s{sCNT}, 1
          s_cbranch_scc1 {Lo}
          s_cmp_ge_u32 s{st}, {target}
          s_cbranch_scc0 {L}""")
    g.label(Lo)

def lds_inc(off):
    g(f"""s_mov_b64 exec, 1
          ds_add_u32 v{VZ}, v{VONE} offset:{off}
          s_mov_b64 exec, -1""")

def get_tag(vtmp):
    lds_wait(F_TAGV, 1, sTAG, extra=f"ds_read_b32 v{vtmp}, v{VZ} offset:{F_TAG}")
    g(f"v_readfirstlane_b32 s{sTAG}, v{vtmp}")

def wave_sum(v, sdst):
    for mod in ("quad_perm:[1,0,3,2]", "quad_perm:[2,3,0,1]", "row_half_mirror", "row_mirror"):
        g(f"s_nop 1\nv_add_f32_dpp v{v}, v{v}, v{v} {mod} {DPPM}")
    g(f"s_nop 1\nv_add_f32_dpp v{v}, v{v}, v{v} row_bcast:15 row_mask:0xa bank_mask:0xf")
    g(f"s_nop 1\nv_add_f32_dpp v{v}, v{v}, v{v} row_bcast:31 row_mask:0xc bank_mask:0xf")
    g(f"s_nop 1\nv_readlane_b32 s{sdst}, v{v}, 63")

def rne(v):
    g(f"v_cvt_pk_bf16_f32 v{v}, v{v}, v{v}\nv_and_b32 v{v}, 0xffff0000, v{v}")

def ln_stats(x5, tmp, sA, sB, vM, vR):
    u = tmp
    for k in range(5):
        g(f"v_lshlrev_b32 v{u+2*k}, 16, v{x5+k}\nv_and_b32 v{u+2*k+1}, 0xffff0000, v{x5+k}")
    a = u + 10
    g(f"v_add_f32 v{a}, v{u}, v{u+1}")
    for k in range(2, 10): g(f"v_add_f32 v{a}, v{a}, v{u+k}")
    wave_sum(a, sA)
    g(f"s_nop 1\nv_mov_b32 v{vM}, s{sA}\nv_mul_f32 v{vM}, {hex(f32(1.0/640))}, v{vM}")
    for k in range(10): g(f"v_sub_f32 v{u+k}, v{u+k}, v{vM}")
    g(f"v_mul_f32 v{a}, v{u}, v{u}")
    for k in range(1, 10): g(f"v_fmac_f32 v{a}, v{u+k}, v{u+k}")
    wave_sum(a, sB)
    g(f"s_nop 1\nv_mov_b32 v{vR}, s{sB}\nv_mul_f32 v{vR}, {hex(f32(1.0/640))}, v{vR}")
    rne(vR)
    g(f"v_add_f32 v{vR}, {hex(f32(1e-5))}, v{vR}")
    rne(vR)
    g(f"v_sqrt_f32 v{vR}, v{vR}\ns_nop 0")
    rne(vR)
    g(f"v_rcp_f32 v{vR}, v{vR}")
    rne(vM)

def ln_frag(src, dst, t0, vM, vR):
    for k in range(4):
        g(f"""v_lshlrev_b32 v{t0}, 16, v{src+k}
              v_and_b32 v{t0+1}, 0xffff0000, v{src+k}
              v_sub_f32 v{t0}, v{t0}, v{vM}
              v_sub_f32 v{t0+1}, v{t0+1}, v{vM}
              v_cvt_pk_bf16_f32 v{t0+1}, v{t0}, v{t0+1}
              v_lshlrev_b32 v{t0}, 16, v{t0+1}
              v_and_b32 v{t0+1}, 0xffff0000, v{t0+1}
              v_mul_f32 v{t0}, v{t0}, v{vR}
              v_mul_f32 v{t0+1}, v{t0+1}, v{vR}
              v_cvt_pk_bf16_f32 v{dst+k}, v{t0}, v{t0+1}""")

def perm_block(raw, out, order=(0, 1, 2, 3)):
    for p in range(4):
        e = 2 * order[p]
        for d in range(2):
            g(f"v_perm_b32 v{out+4*(2*d)+p}, v{raw+2*(e+1)+d}, v{raw+2*e+d}, s{sPLO}")
            g(f"v_perm_b32 v{out+4*(2*d+1)+p}, v{raw+2*(e+1)+d}, v{raw+2*e+d}, s{sPHI}")

class Landing:
    pending = False
    n = 0
LD = Landing()

def load_block(raw, voff, srdb, sbase, stmp, rowbytes, thr=0, rows=None):
    per = 4095 // rowbytes + 1
    cur = None
    for e in range(8):
        grp, rem = divmod(e, per)
        if grp != cur:
            if grp == 0: so = sbase
            else:
                g(f"s_add_u32 s{stmp}, s{sbase}, {(rows[e] if rows else grp*per)*rowbytes}"); so = stmp
            cur = grp
        if thr:
            g(f"s_waitcnt vmcnt({thr-1})")
            if LD.pending and LD.n >= thr - 1:
                land_now()
        off = f" offset:{rem*rowbytes}" if rem else ""
        g(f"buffer_load_dwordx2 {vr(raw+2*e,2)}, v{voff}, {sr(srdb,4)}, s{so} offen{off} {NT}")
        LD.n += 1

def land_now():
    lds_inc(F_LAND)
    stamp(2)
    LD.pending = False

def land_flush():
    if LD.pending:
        g(f"s_waitcnt vmcnt({LD.n})")
        land_now()

def tagcheck(regs, acc):
    g(f"v_xor_b32 v{acc}, s{sTAG}, v{regs[0]}")
    for r in regs[1:]:
        g(f"v_bitop3_b32 v{acc}, v{r}, s{sTAG}, v{acc} bitop3:0xbe")
    g(f"v_cmp_ne_u32 vcc, 0, v{acc}")

def poll_loads(nm, loads, tags, scnt, acc=VT):
    L, Lo = g.nl(nm), g.nl(nm + "o")
    g(f"s_mov_b32 s{scnt}, {LIM_MEM}")
    g.label(L)
    g(loads)
    g("s_waitcnt vmcnt(0)")
    tagcheck(tags, acc)
    g(f"""s_cbranch_vccz {Lo}
          s_sub_u32 s{scnt}, s{scnt}, 1
          s_cbranch_scc0 {L}""")
    g.label(Lo)

def flag16_wait(nm, ap):
    L, Lo = g.nl(nm), g.nl(nm + "o")
    g(f"s_mov_b32 s{sCNT}, {LIM_MEM}\ns_lshl_b32 s18, s{sTAG}, 4")
    g.label(L)
    g(f"""s_load_dwordx16 s[48:63], s[{ap}:{ap+1}], 0 glc
          s_sub_u32 s{sCNT}, s{sCNT}, 1
          s_cbranch_scc1 {Lo}
          s_waitcnt lgkmcnt(0)
          s_add_u32 s19, s48, s49""")
    for k in range(2, 16): g(f"s_add_u32 s19, s19, s{48+k}")
    g(f"s_cmp_eq_u32 s19, s18\ns_cbranch_scc0 {L}")
    g.label(Lo)
    g("s_waitcnt lgkmcnt(0)")

def fswz(dst, i, t):
    g(f"""v_lshrrev_b32 v{t}, 1, v{i}
          v_xor_b32 v{dst}, v{t}, v{i}
          v_and_b32 v{dst}, 4, v{dst}
          v_and_or_b32 v{dst}, v{i}, 2, v{dst}
          v_bfe_u32 v{t}, v{i}, 3, 1
          v_or_b32 v{dst}, v{dst}, v{t}""")

def sum_groups(base, n):
    step = 1
    while step < n:
        for a in range(0, n - step, 2 * step):
            g(f"v_pk_add_f32 {vr(base+4*a,2)}, {vr(base+4*a,2)}, {vr(base+4*(a+step),2)}")
            g(f"v_pk_add_f32 {vr(base+4*a+2,2)}, {vr(base+4*a+2,2)}, {vr(base+4*(a+step)+2,2)}")
        step *= 2

def red16(regs, full=True):
    for mod in ("row_ror:4", "row_ror:8"):
        g("s_nop 1")
        for r in regs: g(f"v_add_f32_dpp v{r}, v{r}, v{r} {mod} {DPPM}")
    for sw in (("v_permlane16_swap_b32", "v_permlane32_swap_b32") if full else ("v_permlane16_swap_b32",)):
        for r in regs: g(f"v_mov_b32 v{r+1}, v{r}")
        g("s_nop 1")
        for r in regs: g(f"{sw} v{r}, v{r+1}")
        for r in regs: g(f"v_add_f32 v{r}, v{r}, v{r+1}")

def mfma(d, a, b, first):
    g(f"v_mfma_f32_16x16x32_bf16 {vr(d,4)}, {vr(a,4)}, {vr(b,4)}, {'0' if first else vr(d,4)}")

K = NAME + "_kernel"
g(f"""s_cmp_ge_u32 s{sWG}, 256
      s_cbranch_scc1 L_END
      v_lshrrev_b32 v{VT}, 6, v0
      v_and_b32 v{LANE}, 63, v0
      v_readfirstlane_b32 s{sWV}, v{VT}
      v_mov_b32 v{VZ}, 0
      v_lshrrev_b32 v{vKG}, 4, v{LANE}
      s_cmp_eq_u32 s{sWV}, 9
      s_cbranch_scc0 L_noinit
      v_lshlrev_b32 v8, 2, v{LANE}
      v_cmp_eq_u32 vcc, 1, v{vKG}
      v_mov_b32 v10, 0xff800000
      s_nop 0
      v_cndmask_b32 v9, v{VZ}, v10, vcc
      ds_write_b32 v8, v9
      s_waitcnt lgkmcnt(0)""")
g.label("L_noinit")
g(f"""s_load_dwordx16 s[16:31], s[0:1], 0
      s_load_dwordx8 s[32:39], s[0:1], 64
      s_barrier
      v_mov_b32 v{VONE}, 1
      v_and_b32 v{vN}, 15, v{LANE}
      s_and_b32 s{sXCD}, s{sWG}, 7
      s_lshr_b32 s{sSLOT}, s{sWG}, 3
      s_lshr_b32 s{sHF}, s{sSLOT}, 3
      s_lshl_b32 s{sJ}, s{sXCD}, 2
      s_add_u32 s{sHF}, s{sHF}, s{sJ}
      s_and_b32 s{sJ}, s{sSLOT}, 7
      s_mov_b32 s{sPLO}, 0x05040100
      s_mov_b32 s{sPHI}, 0x07060302""")
if OPT["ts"]:
    g(f"v_mov_b32 v{VTS}, 0")
    stamp(0)
g(f"""s_cmp_lt_u32 s{sWV}, 5
      s_cbranch_scc1 L_A
      s_cmp_lt_u32 s{sWV}, 8
      s_cbranch_scc1 L_A5
      s_cmp_eq_u32 s{sWV}, 9
      s_cbranch_scc1 L_G9""")
g(f"v_lshrrev_b32 v32, 3, v{LANE}")
fswz(33, 32, 34)
g(f"""v_and_b32 v34, 7, v{LANE}
      v_xor_b32 v33, v33, v34
      v_lshlrev_b32 v33, 4, v33
      v_lshl_add_u32 v36, v32, 10, v33
      s_sub_u32 s43, s{sWV}, 9
      s_max_i32 s43, s43, 0
      s_and_b32 s40, s43, 1
      s_mul_i32 s40, s40, 80
      v_xor_b32 v36, s40, v36
      s_lshr_b32 s41, s{sSLOT}, 1""")
if OPT["ksmap"] == 0:
    g(f"s_lshl_b32 s41, s41, 3\ns_add_u32 s41, s41, s{sXCD}             ; ks")
else:
    g(f"s_lshl_b32 s42, s{sXCD}, 4\ns_add_u32 s41, s41, s42             ; ks")
g(f"""s_lshl_b32 s41, s41, 17                 ; ks*128KB
      s_lshl_b32 s42, s43, 13
      s_add_u32 s41, s41, s42                 ; + kgp*8192
      s_lshl_b32 s42, s43, 10
      s_add_u32 s42, s42, {KV}
      s_waitcnt lgkmcnt(0)""")
srd(44, P_KV, 16777216)
srd(WS, P_WS, WS_REC)
if OPT["gate"]:
    lds_wait(F_Q, OPT["gate"], 40, sleep=1)
stamp(8)
g.label("L_ld")
for cb in range(8):
    g(f"s_add_u32 m0, s42, {cb*(16384-128)}")
    g(f"s_waitcnt vmcnt({OPT['inflight']-1})")
    g(f"buffer_load_dwordx4 v36, {sr(44,4)}, s41 offen offset:{cb*128} {NT} lds")
g(f"""v_xor_b32 v36, 80, v36
      s_add_u32 s41, s41, {3*8192}
      s_add_u32 s42, s42, {3*1024}
      s_add_u32 s43, s43, 3
      s_cmp_lt_u32 s43, 16
      s_cbranch_scc1 L_ld""")
lds_inc(F_ISS)
stamp(1)
g("s_branch L_G")
g.label("L_A5")
g(f"""v_xor_b32 v8, v{vN}, v{vKG}
      v_lshlrev_b32 v8, 4, v8
      v_lshl_add_u32 v8, v{vKG}, 13, v8
      s_sub_u32 s43, s{sWV}, 5                ; u = r, r+3, ...
      s_lshl_b32 s40, s{sJ}, 19               ; 64*j rows * 8192
      s_lshl_b32 s41, s{sHF}, 8
      s_add_u32 s40, s40, s41
      s_waitcnt lgkmcnt(0)""")
srd(SR, P_WUK, 4194304)
srd(WS, P_WS, WS_REC)
lds_wait(F_QI, 5, 41)
g(f"""s_cmp_eq_u32 s{sWV}, 7
      s_cbranch_scc0 L_uk
      s_getpc_b64 s[44:45]""")
g.label("L_pc")
g(f"""s_sub_u32 s44, s44, L_pc-{K}
      s_subb_u32 s45, s45, 0
      v_lshlrev_b32 v10, 6, v{LANE}
      s_mov_b32 s42, 4096""")
g.label("L_pf")
g(f"""s_add_u32 s44, s44, 4096
      s_addc_u32 s45, s45, 0
      global_load_dword v11, v10, s[44:45]
      s_add_u32 s42, s42, 4096
      s_cmp_lt_u32 s42, L_CODE_END-{K}
      s_cbranch_scc1 L_pf""")
g.label("L_uk")
g(f"""s_and_b32 s41, s43, 3
      s_lshl_b32 s41, s41, 6
      v_xor_b32 v9, s41, v8
      s_lshl_b32 s41, s43, 10
      s_add_u32 m0, s41, {QL}
      s_lshl_b32 s41, s43, 15
      s_add_u32 s41, s41, s40
      buffer_load_dwordx4 v9, {sr(SR,4)}, s41 offen {NT} lds
      s_add_u32 s43, s43, 3
      s_cmp_lt_u32 s43, 16
      s_cbranch_scc1 L_uk
      s_waitcnt vmcnt(0)""")
lds_inc(F_UK)
g("s_branch L_A_q")
g.label("L_G9")
g(f"""s_setprio 3
      s_waitcnt lgkmcnt(0)
      s_load_dword s40, s[{P_WS}:{P_WS+1}], {EPOCH}""")
srd(WS, P_WS, WS_REC)
g(f"""v_lshlrev_b32 v8, 4, v{vN}              ; n*16
      s_lshl_b32 s41, s{sHF}, 3
      s_add_u32 s41, s41, s{sJ}
      s_lshl_b32 s41, s41, 8
      s_add_u32 s43, s41, {QAM}
      s_lshl_b32 s42, s{sHF}, 14
      s_lshl_b32 s41, s{sJ}, 8
      s_add_u32 s42, s42, s41
      s_add_u32 s42, s42, {QM}
      s_add_u32 s45, s42, 8192
      v_lshl_add_u32 v7, v{vKG}, 11, v8
      v_mov_b32 v11, 1
      s_waitcnt lgkmcnt(0)
      s_mul_i32 s{sTAG}, s40, 1664525
      s_add_u32 s{sTAG}, s{sTAG}, 1013904223
      v_mov_b32 v10, s{sTAG}
      v_mov_b32 v13, s{sTAG}
      v_mov_b32 v15, s{sTAG}
      ds_write_b64 v{VZ}, v[10:11] offset:{F_TAG}""")
stamp(1)
lds_wait(F_Q, 5, 40)
g("\n".join(f"ds_read_b128 {vr(32+4*b,4)}, v8 offset:{REDQ+256*b}" for b in range(5)))
g("s_waitcnt lgkmcnt(0)")
sum_groups(32, 5)
g(f"""v_cvt_pk_bf16_f32 v12, v32, v33
      v_cvt_pk_bf16_f32 v14, v34, v35
      buffer_store_dwordx4 v[12:15], v7, {sr(WS,4)}, s42 offen sc1
      buffer_store_dwordx4 v[12:15], v7, {sr(WS,4)}, s45 offen sc1
      ds_write_b32 v{VZ}, v{VONE} offset:{F_QP}
      s_mov_b64 exec, 0xffff""")
stamp(2)
lds_wait(F_QA, 8, 40)
g("\n".join(f"ds_read_b128 {vr(32+4*b,4)}, v8 offset:{REDQA+256*b}" for b in range(8)))
g("s_waitcnt lgkmcnt(0)")
sum_groups(32, 8)
for r in range(4): g(f"v_mul_f32 v{32+r}, {hex(f32(SCALE))}, v{32+r}")
g(f"""v_cvt_pk_bf16_f32 v12, v32, v33
      v_cvt_pk_bf16_f32 v14, v34, v35
      buffer_store_dwordx4 v[12:15], v8, {sr(WS,4)}, s43 offen sc1
      ds_write_b32 v{VZ}, v{VONE} offset:{F_QAP}
      s_mov_b64 exec, -1
      s_setprio 0""")
stamp(3)
lds_wait(F_ISS, 3, 40, sleep=2)
g("s_branch L_G_uv9")

g.label("L_A")
g(f"""s_setprio 3
      v_mul_u32_u24 v6, 20, v{LANE}
      v_lshlrev_b32 v7, 4, v{vKG}
      v_lshlrev_b32 v24, 16, v{vKG}
      v_lshl_add_u32 v24, v{vN}, 3, v24       ; + n*8
      s_lshr_b32 s40, s{sJ}, 1                ; mq
      s_mul_i32 s40, s40, 160
      s_lshl_b32 s41, s{sWV}, 5
      s_add_u32 s40, s40, s41
      s_lshl_b32 s41, s40, 13                 ; row0*8192
      s_lshl_b32 s42, s{sHF}, 8
      s_add_u32 s41, s41, s42
      s_and_b32 s42, s{sJ}, 1
      s_lshl_b32 s42, s42, 7
      s_add_u32 s41, s41, s42                 ; w_q soffset
      s_lshl_b32 s40, s40, 1
      s_mov_b32 s{SR+2}, 1280
      s_mov_b32 s{SR+3}, 0x20000
      s_mov_b32 s46, 5242880
      s_mov_b32 s47, 0x20000
      s_waitcnt lgkmcnt(0)
      s_mov_b32 s{SR}, s{P_X}
      s_mov_b32 s{SR+1}, s{P_X+1}
      s_mov_b32 s44, s{P_WQ}
      s_mov_b32 s45, s{P_WQ+1}
      buffer_load_dwordx4 v[8:11], v6, {sr(SR,4)}, 0 offen
      buffer_load_dword v12, v6, {sr(SR,4)}, 0 offen offset:16
      buffer_load_dwordx4 v[16:19], v7, {sr(SR,4)}, s40 offen""")
load_block(32, 24, 44, 41, 42, 8192)
lds_inc(F_QI)
srd(WS, P_WS, WS_REC)
g("s_waitcnt vmcnt(9)")
stamp(16)
ln_stats(8, 64, 40, 42, 14, 15)
g("s_waitcnt vmcnt(8)")
ln_frag(16, 20, 26, 14, 15)
g(f"""s_lshl_b32 s40, s{sWV}, 6
      v_add_u32 v27, s40, v7
      ds_write_b128 v27, v[20:23] offset:{XNL}
      v_lshlrev_b32 v26, 4, v{vN}
      s_lshl_b32 s40, s{sWV}, 8
      v_add_u32 v26, s40, v26""")
stamp(17)
for p in range(4):
    g(f"s_waitcnt vmcnt({6-2*p})")
    e = 2 * p
    for d in range(2):
        g(f"v_perm_b32 v{48+8*d+p}, v{32+2*(e+1)+d}, v{32+2*e+d}, s{sPLO}")
        g(f"v_perm_b32 v{48+8*d+4+p}, v{32+2*(e+1)+d}, v{32+2*e+d}, s{sPHI}")
stamp(18)
g("s_nop 1")
for t in range(4): mfma(64 + 4 * t, 20, 48 + 4 * t, True)
g(f"""s_nop 6
      v_mov_b32 v65, v68
      v_mov_b32 v66, v72
      v_mov_b32 v67, v76
      s_mov_b64 exec, 0xffff
      ds_write_b128 v26, v[64:67] offset:{REDQ}
      s_mov_b64 exec, 1
      ds_add_u32 v{VZ}, v{VONE} offset:{F_Q}
      s_mov_b64 exec, -1""")
g.label("L_A_q")
g("s_setprio 2")
stamp(2)
get_tag(6)
QKA, PVA = 32, 96
fswz(24, vN, 25)
g(f"""v_xor_b32 v24, v24, v{vKG}
      v_lshlrev_b32 v24, 4, v24
      v_and_b32 v25, 7, v{vN}
      v_lshl_add_u32 v24, v25, 7, v24         ; + (i&7)*128
      v_lshrrev_b32 v25, 3, v{vN}
      v_lshl_add_u32 v24, v25, 10, v24        ; + (i>>3)*1024
      s_lshl_b32 s42, s{sWV}, 11
      s_add_u32 s42, s42, {KV}
      v_add_u32 v160, s42, v24
      v_xor_b32 v161, 64, v160
      v_add_u32 v162, 0x10000, v160
      v_add_u32 v163, 0x10000, v161
      v_lshrrev_b32 v26, 2, v{LANE}           ; i16""")
fswz(24, 26, 25)
g(f"""s_and_b32 s42, s{sWV}, 3
      s_lshl_b32 s42, s42, 1
      v_bfe_u32 v25, v{LANE}, 1, 1
      v_or_b32 v25, s42, v25                  ; xi = 2(w&3) + (c'>>1)
      v_xor_b32 v24, v24, v25
      v_lshlrev_b32 v24, 4, v24
      v_and_b32 v25, 1, v{LANE}
      v_lshl_add_u32 v24, v25, 3, v24
      v_and_b32 v25, 7, v26
      v_lshl_add_u32 v24, v25, 7, v24
      v_lshrrev_b32 v25, 3, v26
      v_lshl_add_u32 v24, v25, 10, v24
      s_lshr_b32 s42, s{sWV}, 2
      s_lshl_b32 s42, s42, 14
      s_add_u32 s42, s42, {KV}
      v_add_u32 v164, s42, v24
      v_add_u32 v165, 0x10000, v164
      v_lshrrev_b32 v24, 1, v{vN}             ; xi
      v_and_b32 v25, 4, v24
      v_lshl_or_b32 v25, v25, 1, v24          ; sigma
      s_lshl_b32 s42, s{sWV}, 1
      v_xor_b32 v25, s42, v25
      v_lshlrev_b32 v25, 4, v25
      v_lshl_add_u32 v25, v24, 8, v25         ; + xi*256
      v_lshl_add_u32 v25, v{vKG}, 11, v25     ; + (l>>4)*2048
      v_and_b32 v24, 1, v{LANE}
      v_lshl_add_u32 v28, v24, 3, v25
      v_xor_b32 v29, 16, v28
      v_xor_b32 v30, v{vN}, v{vKG}
      v_lshlrev_b32 v30, 4, v30
      v_lshl_add_u32 v30, v{vKG}, 8, v30
      v_xor_b32 v31, {12*16}, v30             ; odd s
      v_lshlrev_b32 v166, 4, v{LANE}          ; lane*16""")
VL16 = 166
g(f"""s_and_b32 s40, s{sSLOT}, 1              ; g
      s_lshl_b32 s41, s40, 4
      s_lshl_b32 s42, s{sWV}, 1
      s_add_u32 s41, s41, s42                 ; 16g+2w
      s_lshl_b32 s41, s41, 11
      s_add_u32 s20, s41, {QAM}
      s_lshr_b32 s21, s{sSLOT}, 1             ; mi 0..15
      s_lshl_b32 s42, s40, 7                  ; 16g*8
      s_add_u32 s42, s42, s{sWV}
      s_lshl_b32 s42, s42, 3
      s_add_u32 s42, s42, s{sXCD}
      s_lshl_b32 s42, s42, 4
      s_add_u32 s42, s42, s21
      s_lshl_b32 s42, s42, 7
      s_add_u32 s26, s42, {IB}
      s_add_u32 s22, s26, {2*8*8*2048}
      s_lshl_b32 s42, s40, 3
      s_add_u32 s42, s42, s{sXCD}
      s_lshl_b32 s42, s42, 4
      s_add_u32 s42, s42, s21
      s_lshl_b32 s42, s42, 8
      s_add_u32 s27, s42, {HD}
      s_lshr_b32 s42, s{sHF}, 4
      s_lshl_b32 s42, s42, 3
      s_add_u32 s42, s42, s{sWV}
      s_lshl_b32 s42, s42, 12
      s_and_b32 s43, s{sHF}, 15
      s_lshl_b32 s43, s43, 4
      s_add_u32 s42, s42, s43
      s_add_u32 s31, s42, {HD}
      s_lshl_b32 s42, s{sHF}, 3
      s_add_u32 s42, s42, s{sJ}
      s_lshl_b32 s42, s42, 3
      s_add_u32 s42, s42, s{sWV}              ; (h*8+j)*8+w
      s_lshl_b32 s30, s42, 11
      s_add_u32 s30, s30, {IB}
      s_lshl_b32 s42, s42, 8
      s_add_u32 s42, s42, {QM}
      s_add_u32 s32, s{WS}, s42
      s_addc_u32 s33, s{WS+1}, 0
      s_lshl_b32 s18, s{sTAG}, 5              ; 32*TAG
      s_and_b32 s40, s{sWV}, 1
      s_lshl_b32 s40, s40, 3                  ; 8*dhalf'
      v_xor_b32 v6, s40, v{vN}
      v_lshlrev_b32 v6, 4, v6
      v_lshl_add_u32 v6, v{LANE}, 8, v6       ; row*256 + ...
      v_lshlrev_b32 v10, 2, v{LANE}
      s_lshl_b32 s40, s{sWV}, 8
      v_add_u32 v10, s40, v10
      v_mov_b32 v8, 0
      v_mov_b32 v9, 0""")
W = 80
lds_wait(F_UK, 3, 40, sleep=1)
for e in range(8):
    if e: g(f"v_xor_b32 v7, {e*16}, v6")
    g(f"ds_read_b128 {vr(W+4*e,4)}, v{6 if e == 0 else 7} offset:{QL}")
lds_wait(F_QP, 1, 40, sleep=1)
stamp(3)
L, Lo = g.nl("h1"), g.nl("h1o")
g(f"s_mov_b32 s{sCNT}, {LIM_MEM}")
g.label(L)
for k in range(4):
    g(f"s_load_dwordx16 {sr(36+16*k,16)}, s[32:33], {64*k} glc")
g(f"""s_sub_u32 s{sCNT}, s{sCNT}, 1
      s_cbranch_scc1 {Lo}
      s_waitcnt lgkmcnt(0)
      s_cmp_eq_u32 s99, s{sTAG}
      s_cbranch_scc0 {L}
      s_add_u32 s19, s37, s39""")
for k in range(2, 32):
    g(f"s_add_u32 s19, s19, s{37+2*k}")
g(f"s_cmp_eq_u32 s19, s18\ns_cbranch_scc0 {L}")
g.label(Lo)
g("s_waitcnt lgkmcnt(0)")
for k in range(32):
    g(f"v_dot2c_f32_bf16 v{8+(k&1)}, s{36+2*k}, v{W+k}")
g(f"""s_nop 2
      v_add_f32 v8, v8, v9
      ds_write_b32 v10, v8 offset:{REDQA}""")
lds_inc(F_QA)
stamp(4)
lds_wait(F_QAP, 1, 42, sleep=1)
lds_wait(F_ISS, OPT["h2iss"], 42, sleep=1)
h2_loads = "\n".join(f"buffer_load_dwordx4 {vr(8+4*n,4)}, v{VL16}, {sr(WS,4)}, s20 offen offset:{1024*n} sc1" for n in range(4))
g(h2_loads)
if OPT["b1gate"]: lds_inc(F_H2I)
stamp(5)
lds_wait(F_LAND, 3, 42)
stamp(6)
for s in range(16):
    cb = s >> 1
    a = 160 + (s & 1) + (2 if cb >= 4 else 0)
    g(f"ds_read_b128 {vr(QKA+4*s,4)}, v{a} offset:{(cb&3)*16384}")
L, Lo = g.nl("h2c"), g.nl("h2co")
g(f"s_mov_b32 s43, {LIM_MEM}")
g.label(L)
g("s_waitcnt vmcnt(0)")
tagcheck([9, 11, 13, 15, 17, 19, 21, 23], 24)
g(f"""s_cbranch_vccz {Lo}
      s_sub_u32 s43, s43, 1
      s_cbranch_scc1 {Lo}
      s_sleep {OPT["bk2"]}
      s_mov_b64 exec, vcc""")
g(h2_loads)
g(f"s_mov_b64 exec, -1\ns_branch {L}")
g.label(Lo)
stamp(7)
for n in range(4):
    g(f"v_mov_b32 v{9+4*n}, v{10+4*n}")
lds_wait(F_QA, 8, 42)
for n in range(4):
    g(f"ds_write_b64 v{28+(n>>1)}, {vr(8+4*n,2)} offset:{QL+(n&1)*8192}")
lds_inc(F_STG)
for i in range(4):
    for u in range(4):
        for hh in range(2):
            T = 2 * u + hh
            g(f"ds_read_b64_tr_b16 {vr(PVA+16*i+4*u+2*hh,2)}, v{164+(i>>1)} offset:{(i&1)*32768+T*2048}")
g(f"""s_lshr_b32 s42, s{sWV}, 1
      s_lshl_b32 s42, s42, 10
      s_and_b32 s43, s{sWV}, 1
      s_lshl_b32 s43, s43, 3
      s_add_u32 s42, s42, s43
      v_add_u32 v7, s42, v{VL16}
      v_lshlrev_b32 v6, 5, v{vN}
      s_lshl_b32 s42, s{sWV}, 2
      v_add_u32 v29, s42, v6
      v_lshrrev_b32 v24, 3, v{vN}
      v_lshl_add_u32 v24, v{vKG}, 2, v24      ; head = 4q + (j>>3)
      v_lshlrev_b32 v28, 17, v24              ; * 8*8*2048
      v_and_b32 v24, 7, v{vN}
      v_lshl_add_u32 v28, v24, 4, v28
      s_mov_b32 s43, 0x3f803f80""")
def bread(s): return f"ds_read_b128 {vr(8+4*(s&3),4)}, v{30+(s&1)} offset:{QL+s*1024}"
lds_wait(F_STG, 8, 42)
stamp(8)
g("\n".join(bread(s) for s in range(4)))
SA = 24
for s in range(16):
    g(f"s_waitcnt lgkmcnt({min(3, 15-s)})")
    mfma(SA, QKA + 4 * s, 8 + 4 * (s & 3), s == 0)
    if s + 4 < 16: g(bread(s + 4))
VM = 10
if OPT["amax"]:
    g(f"""v_lshlrev_b32 v8, 2, v{vN}
          v_mov_b32 v11, 0
          s_nop 5
          v_max3_f32 v9, v{SA}, v{SA+1}, v{SA+2}
          v_max_f32 v9, v9, v{SA+3}
          ds_max_f32 v8, v9 offset:{RMAX}""")
    lds_inc(F_MAX)
    stamp(14)
    lds_wait(F_MAX, 8, 42, extra=f"ds_read_b32 v{VM}, v8 offset:{RMAX}")
else:
    g(f"""v_mov_b32 v11, 0
          s_nop 6
          v_max3_f32 v9, v{SA}, v{SA+1}, v{SA+2}
          v_max_f32 v9, v9, v{SA+3}
          v_mov_b32 v8, v9
          s_nop 1
          v_permlane16_swap_b32 v9, v8
          v_max_f32 v9, v9, v8
          v_mov_b32 v8, v9
          s_nop 1
          v_permlane32_swap_b32 v9, v8
          v_max_f32 v9, v9, v8
          s_mov_b64 exec, 0xffff
          ds_write_b32 v29, v9 offset:{RMX}
          s_mov_b64 exec, 1
          ds_add_u32 v{VZ}, v{VONE} offset:{F_MAX}
          s_mov_b64 exec, -1""")
    stamp(14)
    lds_wait(F_MAX, 8, 42, extra=f"ds_read_b128 v[12:15], v6 offset:{RMX}\nds_read_b128 v[16:19], v6 offset:{RMX+16}")
    g(f"""v_max3_f32 v{VM}, v12, v13, v14
          v_max3_f32 v16, v15, v16, v17
          v_max3_f32 v{VM}, v{VM}, v18, v19
          v_max_f32 v{VM}, v{VM}, v16""")
for r in range(4): g(f"v_sub_f32 v{SA+r}, v{SA+r}, v{VM}")
for r in range(4): g(f"v_exp_f32 v{SA+r}, v{SA+r}")
g(f"""s_nop 0
      v_cvt_pk_bf16_f32 v12, v{SA}, v{SA+1}
      v_cvt_pk_bf16_f32 v13, v{SA+2}, v{SA+3}
      ds_write_b64 v7, v[12:13] offset:{PL}""")
lds_inc(F_P)
g(f"""v_dot2c_f32_bf16 v11, s43, v12
      v_dot2c_f32_bf16 v11, s43, v13
      v_lshlrev_b32 v14, 2, v29               ; n*128 + T*16
      v_lshl_add_u32 v14, v{vKG}, 2, v14      ; + q*4
      s_nop 0
      ds_write_b32 v14, v11 offset:{RLP}""")
stamp(15)
PF = 32
lds_wait(F_P, 8, 42)
stamp(9)
g("\n".join(f"ds_read_b128 {vr(PF+4*u,4)}, v{VL16} offset:{PL+1024*u}" for u in range(4)))
OA = 48
for u in range(4):
    g(f"s_waitcnt lgkmcnt({3-u})")
    for i in range(4): mfma(OA + 4 * i, PF + 4 * u, PVA + 16 * i + 4 * u, u == 0)
GR = 64
g("s_nop 6")
for a in range(2):
    A0, B0, T0 = GR + 4 * a, GR + 4 * a + 2, 72
    for d in range(2):
        g(f"v_cvt_pk_bf16_f32 v{A0+d}, v{OA+8*d+2*a}, v{OA+8*d+4+2*a}")
        g(f"v_cvt_pk_bf16_f32 v{B0+d}, v{OA+8*d+2*a+1}, v{OA+8*d+4+2*a+1}")
    g("s_nop 0")
    for d in range(2): g(f"v_mov_b32_dpp v{T0+d}, v{A0+d} row_ror:8 {DPPM}")
    for d in range(2): g(f"v_mov_b32_dpp v{A0+d}, v{B0+d} row_ror:8 row_mask:0xf bank_mask:0xc")
    for d in range(2): g(f"v_mov_b32_dpp v{B0+d}, v{T0+d} quad_perm:[0,1,2,3] row_mask:0xf bank_mask:0x3")
    g(f"buffer_store_dwordx4 {vr(A0,4)}, v28, {sr(WS,4)}, s{26 if a == 0 else 22} offen sc1")
stamp(10)
MK = 76
g(f"""v_and_b32 v12, 1, v{LANE}
      v_lshlrev_b32 v12, 4, v12
      v_mov_b32 v13, 0xffff
      v_lshlrev_b32 v13, v12, v13
      v_bfe_u32 v12, v{LANE}, 1, 2""")
for p in range(4):
    g(f"v_cmp_eq_u32 vcc, {p}, v12\ns_nop 1\nv_cndmask_b32 v{MK+p}, v{VZ}, v13, vcc")
g(f"""v_lshlrev_b32 v15, 8, v{vN}
      v_lshlrev_b32 v16, 3, v{vN}
      s_lshl_b32 s42, s{sWV}, 7
      v_add_u32 v16, s42, v16
      v_add_u32 v16, {MLT}, v16
      v_lshrrev_b32 v17, 3, v{LANE}
      v_lshlrev_b32 v17, 3, v17
      v_add_u32 v17, s42, v17
      v_lshrrev_b32 v18, 3, v{vN}             ; a = j>>3
      s_lshl_b32 s42, s{sWV}, 1
      v_add_u32 v19, s42, v18
      v_mul_u32_u24 v19, 144, v19
      v_and_b32 v20, 7, v{vN}
      v_lshl_add_u32 v19, v20, 4, v19
      v_and_b32 v20, 1, v{vKG}
      v_lshl_add_u32 v19, v20, 3, v19
      v_lshrrev_b32 v20, 1, v{vKG}
      v_cmp_eq_u32 s[46:47], v18, v20
      v_lshlrev_b32 v21, 7, v{vN}
      s_waitcnt vmcnt(0)
      s_mov_b64 exec, 1
      ds_add_rtn_u32 v{VT}, v{VZ}, v{VONE} offset:{F_H3}
      s_mov_b64 exec, -1
      s_waitcnt lgkmcnt(0)
      v_readfirstlane_b32 s42, v{VT}
      s_nop 0
      s_cmp_eq_u32 s42, 7
      s_cbranch_scc0 L_nohdr""")
for k in range(8): g(f"ds_read_b128 {vr(80+4*k,4)}, v21 offset:{RLP+16*k}")
g(f"v_mov_b32 v11, s{sTAG}\nv_mov_b32 v13, s{sTAG}\ns_waitcnt lgkmcnt(0)")
sum_groups(80, 8)
g(f"""v_add_f32 v80, v80, v81
      v_add_f32 v82, v82, v83
      v_add_f32 v12, v80, v82
      s_mov_b64 exec, 0xffff
      buffer_store_dwordx4 v[10:13], v{VL16}, {sr(WS,4)}, s27 offen sc1
      s_mov_b64 exec, -1""")
g.label("L_nohdr")
stamp(22)
L, Lo = g.nl("h3"), g.nl("h3o")
g(f"s_mov_b32 s43, {LIM_MEM}\ns_mov_b64 exec, 0xffff")
g.label(L)
g(f"""buffer_load_dwordx4 v[24:27], v15, {sr(WS,4)}, s31 offen sc1
      s_waitcnt vmcnt(0)
      v_xor_b32 v{VT}, s{sTAG}, v25
      v_bitop3_b32 v{VT}, v27, s{sTAG}, v{VT} bitop3:0xbe
      v_cmp_ne_u32 vcc, 0, v{VT}
      s_sub_u32 s43, s43, 1
      s_cbranch_scc1 {Lo}
      s_cbranch_vccz {Lo}
      s_mov_b64 exec, vcc
      s_sleep {OPT["bk3"]}
      s_branch {L}""")
g.label(Lo)
IR = 80
g(f"""s_mov_b64 exec, -1
      buffer_load_dwordx4 {vr(IR,4)}, v{VL16}, {sr(WS,4)}, s30 offen sc1
      buffer_load_dwordx4 {vr(IR+4,4)}, v{VL16}, {sr(WS,4)}, s30 offen offset:1024 sc1
      s_mov_b64 exec, 0xffff
      ds_write2_b32 v16, v24, v26 offset0:0 offset1:1
      s_mov_b64 exec, 1
      ds_add_u32 v{VZ}, v{VONE} offset:{F_ML}
      s_mov_b64 exec, -1""")
stamp(11)
def global_max(dst, t0):
    g(f"""v_max_f32 v{dst}, v{t0}, v{t0+2}""")
    for mod in ("quad_perm:[1,0,3,2]", "quad_perm:[2,3,0,1]", "row_half_mirror", "row_mirror"):
        g(f"s_nop 1\nv_max_f32_dpp v{dst}, v{dst}, v{dst} {mod} {DPPM}")
    for sw in ("v_permlane16_swap_b32", "v_permlane32_swap_b32"):
        g(f"v_mov_b32 v{dst+1}, v{dst}\ns_nop 1\n{sw} v{dst}, v{dst+1}\nv_max_f32 v{dst}, v{dst}, v{dst+1}")
lds_wait(F_ML, 8, 42)
g(f"""ds_read_b128 v[24:27], v{VL16} offset:{MLT}
      ds_read_b32 v8, v17 offset:{MLT}
      ds_read_b32 v9, v17 offset:{MLT+64}
      s_waitcnt lgkmcnt(0)""")
global_max(22, 24)
g(f"""v_sub_f32 v8, v8, v22
      v_sub_f32 v9, v9, v22
      v_exp_f32 v8, v8
      v_exp_f32 v9, v9
      s_nop 0
      v_cvt_pk_bf16_f32 v8, v8, v8
      v_cvt_pk_bf16_f32 v9, v9, v9""")
for n in range(2):
    for p in range(4): g(f"v_and_b32 v{88+4*n+p}, v{8+n}, v{MK+p}")
g("s_waitcnt vmcnt(1)")
mfma(96, 88, IR, True)
g("s_waitcnt vmcnt(0)")
stamp(12)
mfma(96, 92, IR + 4, False)
g(f"""s_nop 7
      v_cvt_pk_bf16_f32 v100, v96, v97
      v_cvt_pk_bf16_f32 v101, v98, v99
      s_mov_b64 exec, s[46:47]
      ds_write_b64 v19, v[100:101] offset:{RIB}
      s_mov_b64 exec, 1
      ds_add_u32 v{VZ}, v{VONE} offset:{F_IB}
      s_mov_b64 exec, -1""")
stamp(13)
g(f"""s_cmp_lt_u32 s{sWG}, 80
      s_cbranch_scc0 L_A_end
      s_lshl_b32 s41, s{sWG}, 13
      s_lshl_b32 s42, s{sWV}, 10
      s_add_u32 s41, s41, s42
      s_add_u32 s41, s41, {SM}
      v_and_b32 v7, 3, v{LANE}
      v_lshlrev_b32 v6, 3, v7
      s_lshl_b32 s42, s{sWV}, 5
      v_add_u32 v6, s42, v6
      s_cmp_eq_u32 s{sWV}, 0
      s_cbranch_scc0 L_fin_s""")
srd(SR, P_X, 1280)
g(f"""v_lshlrev_b32 v7, 3, v7
      s_lshr_b32 s55, s{sWG}, 3
      s_lshl_b32 s55, s55, 7
      s_and_b32 s40, s{sWG}, 3
      s_lshl_b32 s40, s40, 5
      s_add_u32 s55, s55, s40
      s_and_b32 s40, s{sWG}, 4
      s_add_u32 s55, s55, s40
      buffer_load_dword v16, v7, {sr(SR,4)}, s55 offen
      s_lshl_b32 s40, s{sWG}, 11
      s_add_u32 s40, s40, {YM}
      v_mov_b32 v24, 0
      v_mov_b32 v25, s{sTAG}
      v_mov_b32 v26, 0
      v_mov_b32 v27, s{sTAG}
      v_and_b32 v19, 31, v{LANE}
      v_lshlrev_b32 v19, 3, v19""")
poll_loads("h7", f"""buffer_load_dwordx4 v[20:23], v{VL16}, {sr(WS,4)}, s40 offen sc1
      s_mov_b32 exec_hi, 0xfff
      buffer_load_dwordx4 v[24:27], v{VL16}, {sr(WS,4)}, s40 offen offset:1024 sc1
      s_mov_b64 exec, -1""", [21, 23, 25, 27], 43)
g("v_add_f32 v20, v20, v24\nv_add_f32 v22, v22, v26")
red16([20, 22])
for r in (20, 22):
    rne(r)
    g(f"""v_mul_f32 v{r+1}, {hex(f32(-math.log2(math.e)))}, v{r}
          v_exp_f32 v{r+1}, v{r+1}
          s_nop 0
          v_add_f32 v{r+1}, 1.0, v{r+1}
          v_rcp_f32 v{r+1}, v{r+1}
          s_nop 0
          v_mul_f32 v{r}, v{r}, v{r+1}""")
    rne(r)
g("v_lshlrev_b32 v17, 16, v16\nv_and_b32 v18, 0xffff0000, v16")
stamp(19)
g.label("L_fin_s")
lds_wait(F_SD, 4, 42, sleep=1)
poll_loads("h5", f"buffer_load_dwordx4 v[32:35], v{VL16}, {sr(WS,4)}, s41 offen sc1", [33, 35], 43)
stamp(20)
red16([32, 34])
g(f"""v_mov_b32 v33, v34
      s_mov_b64 exec, 0xf
      ds_write_b64 v6, v[32:33] offset:{RFIN}
      s_mov_b64 exec, 1
      ds_add_u32 v{VZ}, v{VONE} offset:{F_FIN}
      s_mov_b64 exec, -1
      s_cmp_eq_u32 s{sWV}, 0
      s_cbranch_scc0 L_A_end""")
srd(44, P_OUT, 1280)
lds_wait(F_FIN, 8, 42, extra=f"ds_read_b64 v[32:33], v19 offset:{RFIN}")
g("v_mov_b32 v34, v33")
red16([32, 34], full=False)
rne(32); rne(34)
g("v_mul_f32 v32, v32, v20\nv_mul_f32 v34, v34, v22")
rne(32); rne(34)
g(f"""v_add_f32 v32, v32, v17
      v_add_f32 v34, v34, v18
      v_cvt_pk_bf16_f32 v32, v32, v34
      s_mov_b64 exec, 0xf
      buffer_store_dword v32, v7, {sr(44,4)}, s55 offen
      s_cmp_eq_u32 s{sWG}, 0
      s_cbranch_scc0 L_noep
      s_mov_b64 exec, 1
      v_mov_b32 v13, s{sTAG}
      buffer_store_dword v13, v{VZ}, {sr(WS,4)}, 0 offen offset:{EPOCH}""")
g.label("L_noep")
stamp(21)
g.label("L_A_end")
ts_flush()
g("s_endpgm")

KORD = (0, 2, 1, 3)
TH = OPT["gthr"]
def wo_setup():
    g(f"""v_mul_u32_u24 v6, {8*1280}, v{vKG}
          v_lshl_add_u32 v6, v{vN}, 3, v6
          s_lshl_b32 s40, s{sHF}, 7
          s_lshr_b32 s41, s{sJ}, 1
          s_lshl_b32 s41, s41, 5
          s_add_u32 s40, s40, s41
          s_mul_i32 s40, s40, 1280
          s_and_b32 s41, s{sJ}, 1
          s_mul_i32 s41, s41, 640
          s_add_u32 s48, s40, s41""")
    srd(44, P_WO, 5242880)

def wo_gate():
    if OPT["wogate"] == 1: lds_wait(F_H3, 8, 40, sleep=2)
    elif OPT["wogate"] == 2: lds_wait(F_IB, 1, 40, sleep=2)

def h4_setup():
    g(f"""v_and_b32 v29, 7, v{vN}
          v_lshlrev_b32 v29, 7, v29
          v_lshl_add_u32 v29, v{vKG}, 5, v29
          s_lshl_b32 s50, s{sHF}, 2
          s_lshr_b32 s51, s{sJ}, 1
          s_add_u32 s50, s50, s51                 ; p = h*4+dq
          s_lshl_b32 s61, s50, 10
          s_add_u32 s61, s61, {CXM}
          v_bfe_u32 v30, v{LANE}, 2, 3
          v_lshlrev_b32 v30, 13, v30
          v_and_b32 v31, 3, v{LANE}
          v_lshl_add_u32 v30, v31, 4, v30
          s_and_b32 s41, s{sJ}, 1
          s_mul_i32 s41, s41, {40*8192}
          s_lshl_b32 s50, s50, 6
          s_add_u32 s50, s50, s41
          s_add_u32 s50, s50, {SM}""")

def h4_wait(A):
    poll_loads("h4", f"""buffer_load_dwordx4 {vr(A,4)}, v29, {sr(WS,4)}, s61 offen sc1
          buffer_load_dwordx4 {vr(A+4,4)}, v29, {sr(WS,4)}, s61 offen offset:16 sc1""", [A+1, A+3, A+5, A+7], 43)
    g(f"v_mov_b32 v{A+1}, v{A+4}\nv_mov_b32 v{A+3}, v{A+6}\ns_nop 1")

def wo_compute(A, frags, cbks, D):
    for bi, fr in enumerate(frags):
        for t in range(4): mfma(D + 16 * bi + 4 * t, A, fr + 4 * t, True)
    g("s_nop 4" if len(frags) == 1 else "s_nop 0")
    for bi, cbk in enumerate(cbks):
        d = D + 16 * bi
        for t in range(4):
            g(f"v_add_f32 v{d+4*t}, v{d+4*t}, v{d+4*t+1}\nv_add_f32 v{d+4*t+2}, v{d+4*t+2}, v{d+4*t+3}")
        for t in range(4):
            g(f"v_add_f32 v{d+4*t}, v{d+4*t}, v{d+4*t+2}")
        g(f"""v_mov_b32 v{d+1}, s{sTAG}
              v_mov_b32 v{d+3}, s{sTAG}
              v_permlane16_swap_b32 v{d}, v{d+8}
              v_permlane16_swap_b32 v{d+4}, v{d+12}
              s_add_u32 s51, s50, {cbk*8*8192}
              v_add_f32 v{d}, v{d}, v{d+8}
              v_add_f32 v{d+2}, v{d+4}, v{d+12}
              s_mov_b32 exec_hi, 0
              buffer_store_dwordx4 {vr(d,4)}, v30, {sr(WS,4)}, s51 offen sc1
              s_mov_b64 exec, -1""")
    lds_inc(F_SD)

def b1_gate():
    if OPT["b1gate"]:
        land_flush()
        lds_wait(F_H2I, 8, 40, sleep=2)

g.label("L_G")
get_tag(6)
g(f"""s_cmp_eq_u32 s{sWV}, 11
      s_cbranch_scc1 L_FFN
      s_cmp_eq_u32 s{sWV}, 10
      s_cbranch_scc1 L_G_uv10""")
LD.pending = True; LD.n = 0
wo_setup(); h4_setup()
if OPT["wogate"]: land_flush()
wo_gate()
stamp(4)
load_block(32, 6, 44, 48, 42, 1280, TH)
g("s_add_u32 s49, s48, 128")
load_block(48, 6, 44, 49, 42, 1280, TH)
land_flush()
g("s_waitcnt vmcnt(8)")
perm_block(32, 64, KORD)
g("s_waitcnt vmcnt(0)")
perm_block(48, 80, KORD)
stamp(5)
lds_wait(F_IB, 8, 40, sleep=2)
g("s_setprio 2")
h4_wait(8)
stamp(6)
wo_compute(8, [64, 80], [0, 1], 96)
stamp(7)
g("s_branch L_G_end")

def uv_loads():
    g(f"""v_lshlrev_b32 v7, 13, v{vKG}
          v_lshl_add_u32 v7, v{vN}, 3, v7
          s_lshl_b32 s56, s{sJ}, 17               ; 16j rows
          s_lshl_b32 s41, s{sHF}, 8
          s_add_u32 s56, s56, s41
          s_sub_u32 s52, s{sWV}, 9                ; colhalf
          s_lshl_b32 s41, s52, 7
          s_add_u32 s56, s56, s41
          s_add_u32 s57, s56, {4*8192}""")
    srd(SR, P_WUV, 4194304)
    b1_gate()
    stamp(4)
    rows = [128 * (e & 3) + 8 * (e >> 2) for e in range(8)]
    load_block(32, 7, SR, 56, 42, 8192, TH, rows)
    load_block(48, 7, SR, 57, 42, 8192, TH, rows)
    land_flush()
g.label("L_G_uv10")
LD.pending = True; LD.n = 0
uv_loads()
g("s_branch L_G_uv")
g.label("L_G_uv9")
LD.pending = False
uv_loads()
g.label("L_G_uv")
wo_setup(); h4_setup()
g(f"""s_add_u32 s49, s52, 2
      s_mul_i32 s53, s49, {8*8192}
      s_add_u32 s50, s50, s53
      s_lshl_b32 s49, s49, 7
      s_add_u32 s49, s49, s48
      v_and_b32 v7, 7, v{vN}
      v_mul_u32_u24 v8, 144, v{vN}
      v_lshl_add_u32 v8, v{vKG}, 4, v8
      v_lshlrev_b32 v9, 4, v{LANE}
      v_lshrrev_b32 v11, 3, v{vN}
      v_lshlrev_b32 v11, 10, v11
      v_lshl_add_u32 v11, v7, 4, v11          ; (n>>3)*1024 + (n&7)*16
      s_lshl_b32 s40, s{sHF}, 2
      s_lshl_b32 s41, s52, 1
      s_add_u32 s40, s40, s41
      s_lshl_b32 s40, s40, 3
      s_add_u32 s40, s40, s{sJ}
      s_lshl_b32 s40, s40, 7
      s_add_u32 s54, s40, {CXM}
      s_waitcnt vmcnt(8)""")
perm_block(32, 80)
g("s_waitcnt vmcnt(0)")
perm_block(48, 96)
wo_gate()
load_block(64, 6, 44, 49, 42, 1280, TH)
g(f"v_mov_b32 v61, s{sTAG}\nv_mov_b32 v63, s{sTAG}")
stamp(5)
lds_wait(F_ML, 8, 40, sleep=1)
g(f"""s_setprio 3
      ds_read_b128 v[40:43], v9 offset:{MLT}
      s_waitcnt lgkmcnt(0)""")
global_max(44, 40)
g(f"""v_sub_f32 v40, v40, v44
      v_sub_f32 v42, v42, v44
      v_exp_f32 v40, v40
      v_exp_f32 v42, v42
      s_nop 0""")
rne(40); rne(42)
g("v_mul_f32 v57, v40, v41\nv_fmac_f32 v57, v42, v43")
wave_sum(57, 40)
g("s_nop 1\nv_rcp_f32 v57, s40")
lds_wait(F_IB, 8, 40)
g(f"""ds_read_b128 v[32:35], v8 offset:{RIB}
      ds_read_b128 v[36:39], v8 offset:{RIB+64}""")
stamp(6)
D = 128
for blk in range(2):
    g(f"s_waitcnt lgkmcnt({1-blk})")
    for t in range(4): mfma(D + 4 * t, 32 + 4 * blk, 80 + 16 * blk + 4 * t, blk == 0)
g("s_nop 4")
for t in range(4): g(f"v_add_f32 v{D+4*t}, v{D+4*t}, v{D+4*t+1}\nv_add_f32 v{D+4*t+2}, v{D+4*t+2}, v{D+4*t+3}")
for t in range(4): g(f"v_add_f32 v{D+4*t}, v{D+4*t}, v{D+4*t+2}")
for sw in ("v_permlane16_swap_b32", "v_permlane32_swap_b32"):
    for t in range(4): g(f"v_mov_b32 v{D+4*t+1}, v{D+4*t}")
    g("s_nop 0")
    for t in range(4): g(f"{sw} v{D+4*t}, v{D+4*t+1}")
    for t in range(4): g(f"v_add_f32 v{D+4*t}, v{D+4*t}, v{D+4*t+1}")
for t in range(4): g(f"v_mul_f32 v{D+4*t}, v{D+4*t}, v57")
g(f"""v_cvt_pk_bf16_f32 v60, v{D}, v{D+4}
      v_cvt_pk_bf16_f32 v62, v{D+8}, v{D+12}
      s_mov_b64 exec, 0xffff
      buffer_store_dwordx4 v[60:63], v11, {sr(WS,4)}, s54 offen sc1
      s_mov_b64 exec, -1""")
stamp(7)
g("s_waitcnt vmcnt(1)")
perm_block(64, 112, KORD)
h4_wait(8)
stamp(8)
wo_compute(8, [112], [0], 128)
stamp(9)
g("s_branch L_G_end")

g.label("L_FFN")
XF = 8
g(f"""s_lshr_b32 s40, s{sSLOT}, 3             ; hq
      s_lshl_b32 s40, s40, 1
      s_and_b32 s41, s{sJ}, 1
      s_add_u32 s40, s40, s41
      s_lshl_b32 s40, s40, 3
      s_add_u32 s62, s40, s{sXCD}             ; u in 0..63
      s_lshr_b32 s63, s{sJ}, 1                ; mq
      v_and_b32 v31, 1, v{vKG}
      v_cmp_eq_u32 s[56:57], 1, v31
      s_cmp_lt_u32 s62, 27
      s_cbranch_scc0 L_FFN2""")
LD.pending = True; LD.n = 0
g(f"""v_mul_u32_u24 v28, {8*3456}, v{vKG}
      v_lshl_add_u32 v28, v{vN}, 3, v28
      v_lshlrev_b32 v7, 4, v{vKG}
      s_mul_i32 s58, s63, {160*3456}
      s_lshl_b32 s41, s62, 7
      s_add_u32 s58, s58, s41""")
srd(SR, P_W1, 2211840)
lds_wait(F_Q, 5, 40)
for b in range(5): g(f"ds_read_b128 {vr(XF+4*b,4)}, v7 offset:{XNL+64*b}")
b1_gate()
stamp(4)
for b in range(5):
    if b: g(f"s_add_u32 s58, s58, {32*3456}")
    load_block(48 + 16 * b, 28, SR, 58, 42, 3456, TH)
land_flush()
D = 144
g("s_waitcnt lgkmcnt(0)")
for b in range(5):
    g(f"s_waitcnt vmcnt({8*(4-b)})")
    perm_block(48 + 16 * b, 32 + 16 * b)
    g("s_nop 1")
    for t in range(4): mfma(D + 4 * t, XF + 4 * b, 32 + 16 * b + 4 * t, b == 0)
g(f"""v_lshlrev_b32 v28, 4, v{LANE}
      s_nop 0
      s_lshl_b32 s40, s62, 2
      s_add_u32 s40, s40, s63
      s_lshl_b32 s40, s40, 9
      s_add_u32 s40, s40, {HM}
      v_mov_b32 v9, s{sTAG}
      v_mov_b32 v11, s{sTAG}
      s_nop 1
      v_cndmask_b32 v8, v{D}, v{D+8}, s[56:57]
      v_cndmask_b32 v10, v{D+4}, v{D+12}, s[56:57]
      s_mov_b32 exec_hi, 0
      buffer_store_dwordx4 v[8:11], v28, {sr(WS,4)}, s40 offen sc1
      s_mov_b64 exec, -1
      s_branch L_FFNe""")
g.label("L_FFN2")
g(f"""s_mul_i32 s40, s63, 37
      s_add_u32 s40, s40, s62
      s_sub_u32 s58, s40, 27
      s_cmp_lt_u32 s58, 135
      s_cbranch_scc1 L_FFN2a""")
LD.pending = True; LD.n = 0
land_flush()
g("s_branch L_FFNe")
g.label("L_FFN2a")
LD.pending = True; LD.n = 0
g(f"""s_mul_i32 s59, s58, 205
      s_lshr_b32 s59, s59, 10                 ; fb = v/5
      s_mul_i32 s60, s59, 5
      s_sub_u32 s60, s58, s60                 ; mb
      v_mul_u32_u24 v28, {8*1280}, v{vKG}
      v_lshl_add_u32 v28, v{vN}, 3, v28
      s_mul_i32 s58, s59, {64*1280}
      s_lshl_b32 s41, s60, 8
      s_add_u32 s58, s58, s41""")
srd(SR, P_W2, 2211840)
b1_gate()
stamp(4)
for ch in range(2):
    for blk in range(2):
        g(f"s_add_u32 s41, s58, {blk*32*1280 + ch*128}")
        load_block(48 + 16 * (2 * ch + blk), 28, SR, 41, 42, 1280, TH)
land_flush()
for b in range(4):
    g(f"s_waitcnt vmcnt({8*(3-b)})")
    perm_block(48 + 16 * b, 32 + 16 * b)
g(f"""v_lshrrev_b32 v28, 2, v{vN}
      v_lshlrev_b32 v28, 9, v28
      v_lshl_add_u32 v28, v{vKG}, 5, v28
      v_bfe_u32 v29, v{vN}, 1, 1
      v_lshl_add_u32 v28, v29, 4, v28
      v_and_b32 v29, 1, v{vN}
      v_lshl_add_u32 v28, v29, 8, v28
      s_lshl_b32 s40, s59, 11
      s_add_u32 s40, s40, {HM}""")
poll_loads("h6", f"""s_sleep 4
      buffer_load_dwordx4 v[8:11], v28, {sr(WS,4)}, s40 offen sc1
      buffer_load_dwordx4 v[12:15], v28, {sr(WS,4)}, s40 offen offset:128 sc1""", [9, 11, 13, 15], 43)
for mod in ("row_ror:4", "row_ror:8"):
    for r in (8, 10, 12, 14): g(f"v_add_f32_dpp v{r}, v{r}, v{r} {mod} {DPPM}")
for r in (8, 10, 12, 14): g(f"v_max_f32 v{r}, 0, v{r}")
g("v_cvt_pk_bf16_f32 v8, v8, v10\nv_cvt_pk_bf16_f32 v12, v12, v14\ns_nop 1")
for blk in range(2):
    for p in range(4):
        g(f"v_mov_b32_dpp v{16+4*blk+p}, v{8+4*blk} quad_perm:[{p},{p},{p},{p}] {DPPM}")
g("s_nop 1")
D = 96
for ch in range(2):
    for blk in range(2):
        for t in range(4): mfma(D + 16 * ch + 4 * t, 16 + 4 * blk, 32 + 16 * (2 * ch + blk) + 4 * t, blk == 0)
g(f"""v_bfe_u32 v28, v{LANE}, 2, 3
      v_lshlrev_b32 v28, 11, v28
      v_and_b32 v29, 3, v{LANE}
      v_lshl_add_u32 v28, v29, 4, v28
      s_nop 0
      s_lshl_b32 s40, s60, 15
      s_lshl_b32 s41, s59, 6
      s_add_u32 s40, s40, s41
      s_add_u32 s40, s40, {YM}
      s_add_u32 s41, s40, {8*2048}
      v_mov_b32 v9, s{sTAG}
      v_mov_b32 v11, s{sTAG}
      v_mov_b32 v13, s{sTAG}
      v_mov_b32 v15, s{sTAG}
      v_cndmask_b32 v8, v{D}, v{D+8}, s[56:57]
      v_cndmask_b32 v10, v{D+4}, v{D+12}, s[56:57]
      v_cndmask_b32 v12, v{D+16}, v{D+24}, s[56:57]
      v_cndmask_b32 v14, v{D+20}, v{D+28}, s[56:57]
      s_mov_b32 exec_hi, 0
      buffer_store_dwordx4 v[8:11], v28, {sr(WS,4)}, s40 offen sc1
      buffer_store_dwordx4 v[12:15], v28, {sr(WS,4)}, s41 offen sc1
      s_mov_b64 exec, -1""")
g.label("L_FFNe")
stamp(5)
wo_setup(); h4_setup()
g("s_add_u32 s49, s48, 512")
wo_gate()
load_block(128, 6, 44, 49, 42, 1280, TH)
g("s_waitcnt vmcnt(0)")
perm_block(128, 32, KORD)
lds_wait(F_IB, 8, 40, sleep=2)
g("s_setprio 2")
h4_wait(8)
stamp(6)
wo_compute(8, [32], [4], 48)
stamp(7)
g.label("L_G_end")
ts_flush()
g.label("L_END")
g("s_endpgm")
g.l.append(".p2align 12")
g.label("L_CODE_END")

s = file_head([f"; @launch grid=(256,1,1) block=(768,1,1) lds={LDS_BYTES}"])
s += f""".text
.globl {K}
.p2align 12
.type {K},@function
{K}:
"""
s += g.text()
s += kernel_desc(K, 168, 102)
open(OUT, "w").write(s)
print(OUT, "lines", len(g.l), "ws_end", hex(WS_END))
```

```python
import sys, math, struct
from asmlib import *

OPT = dict(ts=0, stop=99, inflight=16, gate=2, ksmap=1, gthr=24, wogate=1, b1gate=0, pol=1, h2iss=3, amax=0, bk2=4, bk3=2, dbg=0)
for a in sys.argv[2:]:
    k, v = a.split("=")
    assert k in OPT, k
    OPT[k] = int(v)
OUT = sys.argv[1] if len(sys.argv) > 1 else "k.s"
NT = "nt" if OPT["pol"] else ""

def f32(x): return struct.unpack("<I", struct.pack("<f", x))[0]

EPOCH = 0
QM   = 0x1000
HD   = QM + 0x80000
QAM  = HD + 0x10000
CXM  = QAM + 0x10000
HM   = CXM + 0x20000
YM   = HM + 0x10000
SM   = YM + 80 * 2048
IB   = SM + 80 * 8192
WS_END = IB + 256 * 8 * 2048
TSOFF = 0x1000000
WS_REC = 0x2000000 if (OPT["ts"] and not OPT["dbg"]) else WS_END

(F_Q, F_QA, F_LAND, F_ISS, F_H2I, F_STG, F_MAX, F_P, F_IB, F_UK, F_TAG, F_TAGV, F_QP, F_QI, F_SD, F_FIN) = [4 * i for i in range(16)]
RMAX = 0x40
RL   = 0x80
F_H3, F_ML, F_QAP = 0xC0, 0xC4, 0xC8
REDQ = 0x100
REDQA = 0x600
XNL  = 0xE40
PL   = 0x1000
RIB  = 0x2000
RFIN = 0x2900
MLT  = 0x2A00
RMX  = 0x2E00
RLP  = REDQ
QL   = 0x3000
KV   = 0x7000
LDS_BYTES = KV + 0x20000

SCALE = (128 ** -0.5) * math.log2(math.e)
LIM_LDS = 1 << 16
LIM_MEM = 1 << 13

class G:
    def __init__(s): s.l = []; s.n = 0
    def __call__(s, x):
        for ln in x.strip("\n").split("\n"):
            if ln.strip(): s.l.append("  " + ln.strip())
    def label(s, x): s.l.append(x + ":")
    def nl(s, p): s.n += 1; return f"L_{p}_{s.n}"
    def text(s): return "\n".join(s.l) + "\n"
g = G()

def vr(a, n): return f"v[{a}:{a+n-1}]"
def sr(a, n): return f"s[{a}:{a+n-1}]"

LANE, VZ, VONE, VT, vN, vKG = 0, 1, 2, 3, 4, 5
VTS = 167
sWG, sWV = 2, 3
WS = 4
SR = 8
sXCD, sSLOT, sHF, sJ = 12, 13, 14, 15
P_X, P_KV, P_WQ, P_WUK, P_WUV, P_WO, P_BX, P_W1, P_W2, P_OUT, P_DBG, P_WS = [16 + 2 * i for i in range(12)]
sTAG, sCNT = 28, 29
sPLO, sPHI = 100, 101
DPPM = "row_mask:0xf bank_mask:0xf"

def srd(base, ptr, nbytes):
    g(f"""s_mov_b32 s{base}, s{ptr}
          s_mov_b32 s{base+1}, s{ptr+1}
          s_mov_b32 s{base+2}, {nbytes}
          s_mov_b32 s{base+3}, 0x20000""")

def stamp(k):
    if not OPT["ts"]: return
    g(f"""s_memrealtime vcc
          s_waitcnt lgkmcnt(0)
          v_writelane_b32 v{VTS}, vcc_lo, {k}""")

def ts_flush(role="A"):
    if not OPT["ts"]: return
    if OPT["dbg"]:
        sel = {"A": {1: 0, 2: 16, 6: 6, 7: 8, 8: 10, 9: 22, 10: 11, 11: 13, 14: 20, 15: 21}, "G": {3: 1, 4: 2, 5: 3, 12: 7, 13: 9}}[role]
        Ls = g.nl("dbg")
        g(f"""s_cmp_eq_u32 s{sWV}, {0 if role == "A" else 9}
              s_cbranch_scc0 {Ls}
              s_load_dwordx2 s[40:41], s[0:1], 80
              s_mov_b64 exec, -1
              v_mov_b32 v8, 0
              s_mov_b32 s42, 256
              s_mov_b32 s43, 0x20000""")
        for dst, src in sel.items():
            g(f"v_readlane_b32 s44, v{VTS}, {src}\ns_nop 3\nv_writelane_b32 v8, s44, {dst}")
        if role == "A":
            g(f"v_readlane_b32 s44, v{VTS}, 0\ns_nop 3\ns_not_b32 s44, s44\nv_writelane_b32 v8, s44, 0")
        g(f"""v_lshlrev_b32 v{VT}, 2, v{LANE}
              s_mov_b64 exec, 0xffff
              s_waitcnt lgkmcnt(0)
              buffer_atomic_umax v8, v{VT}, s[40:43], 0 offen""")
        g.label(Ls)
        return
    g(f"""s_mul_i32 s{sCNT}, s{sWG}, 12
          s_add_u32 s{sCNT}, s{sCNT}, s{sWV}
          s_lshl_b32 s{sCNT}, s{sCNT}, 7
          s_add_u32 s{sCNT}, s{sCNT}, {TSOFF}
          s_mov_b64 exec, -1
          s_mov_b32 exec_hi, 0
          v_lshlrev_b32 v{VT}, 2, v{LANE}
          buffer_store_dword v{VTS}, v{VT}, {sr(WS,4)}, s{sCNT} offen""")

def lds_wait(off, target, st, extra="", sleep=0):
    L, Lo = g.nl("w"), g.nl("wo")
    g(f"s_mov_b32 s{sCNT}, {LIM_LDS}")
    if sleep:
        Lf = g.nl("wf")
        g(f"s_branch {Lf}")
    g.label(L)
    if sleep:
        g(f"s_sleep {sleep}")
        g.label(Lf)
    g(f"ds_read_b32 v{VT}, v{VZ} offset:{off}")
    if extra: g(extra)
    g(f"""s_waitcnt lgkmcnt(0)
          v_readfirstlane_b32 s{st}, v{VT}
          s_sub_u32 s{sCNT}, s{sCNT}, 1
          s_cbranch_scc1 {Lo}
          s_cmp_ge_u32 s{st}, {target}
          s_cbranch_scc0 {L}""")
    g.label(Lo)

def lds_inc(off):
    g(f"""s_mov_b64 exec, 1
          ds_add_u32 v{VZ}, v{VONE} offset:{off}
          s_mov_b64 exec, -1""")

def get_tag(vtmp):
    lds_wait(F_TAGV, 1, sTAG, extra=f"ds_read_b32 v{vtmp}, v{VZ} offset:{F_TAG}")
    g(f"v_readfirstlane_b32 s{sTAG}, v{vtmp}")

def wave_sum(v, sdst):
    for mod in ("quad_perm:[1,0,3,2]", "quad_perm:[2,3,0,1]", "row_half_mirror", "row_mirror"):
        g(f"s_nop 1\nv_add_f32_dpp v{v}, v{v}, v{v} {mod} {DPPM}")
    g(f"s_nop 1\nv_add_f32_dpp v{v}, v{v}, v{v} row_bcast:15 row_mask:0xa bank_mask:0xf")
    g(f"s_nop 1\nv_add_f32_dpp v{v}, v{v}, v{v} row_bcast:31 row_mask:0xc bank_mask:0xf")
    g(f"s_nop 1\nv_readlane_b32 s{sdst}, v{v}, 63")

def rne(v):
    g(f"v_cvt_pk_bf16_f32 v{v}, v{v}, v{v}\nv_and_b32 v{v}, 0xffff0000, v{v}")

def ln_stats(x5, tmp, sA, sB, vM, vR):
    u = tmp
    for k in range(5):
        g(f"v_lshlrev_b32 v{u+2*k}, 16, v{x5+k}\nv_and_b32 v{u+2*k+1}, 0xffff0000, v{x5+k}")
    a = u + 10
    g(f"v_add_f32 v{a}, v{u}, v{u+1}")
    for k in range(2, 10): g(f"v_add_f32 v{a}, v{a}, v{u+k}")
    wave_sum(a, sA)
    g(f"s_nop 1\nv_mov_b32 v{vM}, s{sA}\nv_mul_f32 v{vM}, {hex(f32(1.0/640))}, v{vM}")
    for k in range(10): g(f"v_sub_f32 v{u+k}, v{u+k}, v{vM}")
    g(f"v_mul_f32 v{a}, v{u}, v{u}")
    for k in range(1, 10): g(f"v_fmac_f32 v{a}, v{u+k}, v{u+k}")
    wave_sum(a, sB)
    g(f"s_nop 1\nv_mov_b32 v{vR}, s{sB}\nv_mul_f32 v{vR}, {hex(f32(1.0/640))}, v{vR}")
    rne(vR)
    g(f"v_add_f32 v{vR}, {hex(f32(1e-5))}, v{vR}")
    rne(vR)
    g(f"v_sqrt_f32 v{vR}, v{vR}\ns_nop 0")
    rne(vR)
    g(f"v_rcp_f32 v{vR}, v{vR}")
    rne(vM)

def ln_frag(src, dst, t0, vM, vR):
    for k in range(4):
        g(f"""v_lshlrev_b32 v{t0}, 16, v{src+k}
              v_and_b32 v{t0+1}, 0xffff0000, v{src+k}
              v_sub_f32 v{t0}, v{t0}, v{vM}
              v_sub_f32 v{t0+1}, v{t0+1}, v{vM}
              v_cvt_pk_bf16_f32 v{t0+1}, v{t0}, v{t0+1}
              v_lshlrev_b32 v{t0}, 16, v{t0+1}
              v_and_b32 v{t0+1}, 0xffff0000, v{t0+1}
              v_mul_f32 v{t0}, v{t0}, v{vR}
              v_mul_f32 v{t0+1}, v{t0+1}, v{vR}
              v_cvt_pk_bf16_f32 v{dst+k}, v{t0}, v{t0+1}""")

def perm_block(raw, out, order=(0, 1, 2, 3)):
    for p in range(4):
        e = 2 * order[p]
        for d in range(2):
            g(f"v_perm_b32 v{out+4*(2*d)+p}, v{raw+2*(e+1)+d}, v{raw+2*e+d}, s{sPLO}")
            g(f"v_perm_b32 v{out+4*(2*d+1)+p}, v{raw+2*(e+1)+d}, v{raw+2*e+d}, s{sPHI}")

class Landing:
    pending = False
    n = 0
LD = Landing()

def load_block(raw, voff, srdb, sbase, stmp, rowbytes, thr=0, rows=None):
    per = 4095 // rowbytes + 1
    cur = None
    for e in range(8):
        grp, rem = divmod(e, per)
        if grp != cur:
            if grp == 0: so = sbase
            else:
                g(f"s_add_u32 s{stmp}, s{sbase}, {(rows[e] if rows else grp*per)*rowbytes}"); so = stmp
            cur = grp
        if thr:
            g(f"s_waitcnt vmcnt({thr-1})")
            if LD.pending and LD.n >= thr - 1:
                land_now()
        off = f" offset:{rem*rowbytes}" if rem else ""
        g(f"buffer_load_dwordx2 {vr(raw+2*e,2)}, v{voff}, {sr(srdb,4)}, s{so} offen{off} {NT}")
        LD.n += 1

def land_now():
    lds_inc(F_LAND)
    stamp(2)
    LD.pending = False

def land_flush():
    if LD.pending:
        g(f"s_waitcnt vmcnt({LD.n})")
        land_now()

def tagcheck(regs, acc):
    g(f"v_xor_b32 v{acc}, s{sTAG}, v{regs[0]}")
    for r in regs[1:]:
        g(f"v_bitop3_b32 v{acc}, v{r}, s{sTAG}, v{acc} bitop3:0xbe")
    g(f"v_cmp_ne_u32 vcc, 0, v{acc}")

def poll_loads(nm, loads, tags, scnt, acc=VT):
    L, Lo = g.nl(nm), g.nl(nm + "o")
    g(f"s_mov_b32 s{scnt}, {LIM_MEM}")
    g.label(L)
    g(loads)
    g("s_waitcnt vmcnt(0)")
    tagcheck(tags, acc)
    g(f"""s_cbranch_vccz {Lo}
          s_sub_u32 s{scnt}, s{scnt}, 1
          s_cbranch_scc0 {L}""")
    g.label(Lo)

def flag16_wait(nm, ap):
    L, Lo = g.nl(nm), g.nl(nm + "o")
    g(f"s_mov_b32 s{sCNT}, {LIM_MEM}\ns_lshl_b32 s18, s{sTAG}, 4")
    g.label(L)
    g(f"""s_load_dwordx16 s[48:63], s[{ap}:{ap+1}], 0 glc
          s_sub_u32 s{sCNT}, s{sCNT}, 1
          s_cbranch_scc1 {Lo}
          s_waitcnt lgkmcnt(0)
          s_add_u32 s19, s48, s49""")
    for k in range(2, 16): g(f"s_add_u32 s19, s19, s{48+k}")
    g(f"s_cmp_eq_u32 s19, s18\ns_cbranch_scc0 {L}")
    g.label(Lo)
    g("s_waitcnt lgkmcnt(0)")

def fswz(dst, i, t):
    g(f"""v_lshrrev_b32 v{t}, 1, v{i}
          v_xor_b32 v{dst}, v{t}, v{i}
          v_and_b32 v{dst}, 4, v{dst}
          v_and_or_b32 v{dst}, v{i}, 2, v{dst}
          v_bfe_u32 v{t}, v{i}, 3, 1
          v_or_b32 v{dst}, v{dst}, v{t}""")

def sum_groups(base, n):
    step = 1
    while step < n:
        for a in range(0, n - step, 2 * step):
            g(f"v_pk_add_f32 {vr(base+4*a,2)}, {vr(base+4*a,2)}, {vr(base+4*(a+step),2)}")
            g(f"v_pk_add_f32 {vr(base+4*a+2,2)}, {vr(base+4*a+2,2)}, {vr(base+4*(a+step)+2,2)}")
        step *= 2

def red16(regs, full=True):
    for mod in ("row_ror:4", "row_ror:8"):
        g("s_nop 1")
        for r in regs: g(f"v_add_f32_dpp v{r}, v{r}, v{r} {mod} {DPPM}")
    for sw in (("v_permlane16_swap_b32", "v_permlane32_swap_b32") if full else ("v_permlane16_swap_b32",)):
        for r in regs: g(f"v_mov_b32 v{r+1}, v{r}")
        g("s_nop 1")
        for r in regs: g(f"{sw} v{r}, v{r+1}")
        for r in regs: g(f"v_add_f32 v{r}, v{r}, v{r+1}")

def mfma(d, a, b, first):
    g(f"v_mfma_f32_16x16x32_bf16 {vr(d,4)}, {vr(a,4)}, {vr(b,4)}, {'0' if first else vr(d,4)}")

K = NAME + "_kernel"
g(f"""s_cmp_ge_u32 s{sWG}, 256
      s_cbranch_scc1 L_END
      v_lshrrev_b32 v{VT}, 6, v0
      v_and_b32 v{LANE}, 63, v0
      v_readfirstlane_b32 s{sWV}, v{VT}
      v_mov_b32 v{VZ}, 0
      v_lshrrev_b32 v{vKG}, 4, v{LANE}
      s_cmp_eq_u32 s{sWV}, 9
      s_cbranch_scc0 L_noinit
      v_lshlrev_b32 v8, 2, v{LANE}
      v_cmp_eq_u32 vcc, 1, v{vKG}
      v_mov_b32 v10, 0xff800000
      s_nop 0
      v_cndmask_b32 v9, v{VZ}, v10, vcc
      ds_write_b32 v8, v9
      s_waitcnt lgkmcnt(0)""")
g.label("L_noinit")
g(f"""s_load_dwordx16 s[16:31], s[0:1], 0
      s_load_dwordx8 s[32:39], s[0:1], 64
      s_barrier
      v_mov_b32 v{VONE}, 1
      v_and_b32 v{vN}, 15, v{LANE}
      s_and_b32 s{sXCD}, s{sWG}, 7
      s_lshr_b32 s{sSLOT}, s{sWG}, 3
      s_lshr_b32 s{sHF}, s{sSLOT}, 3
      s_lshl_b32 s{sJ}, s{sXCD}, 2
      s_add_u32 s{sHF}, s{sHF}, s{sJ}
      s_and_b32 s{sJ}, s{sSLOT}, 7
      s_mov_b32 s{sPLO}, 0x05040100
      s_mov_b32 s{sPHI}, 0x07060302""")
if OPT["ts"]:
    g(f"v_mov_b32 v{VTS}, 0")
    stamp(0)
g(f"""s_cmp_lt_u32 s{sWV}, 5
      s_cbranch_scc1 L_A
      s_cmp_lt_u32 s{sWV}, 8
      s_cbranch_scc1 L_A5
      s_cmp_eq_u32 s{sWV}, 9
      s_cbranch_scc1 L_G9""")
g(f"v_lshrrev_b32 v32, 3, v{LANE}")
fswz(33, 32, 34)
g(f"""v_and_b32 v34, 7, v{LANE}
      v_xor_b32 v33, v33, v34
      v_lshlrev_b32 v33, 4, v33
      v_lshl_add_u32 v36, v32, 10, v33
      s_sub_u32 s43, s{sWV}, 9
      s_max_i32 s43, s43, 0
      s_and_b32 s40, s43, 1
      s_mul_i32 s40, s40, 80
      v_xor_b32 v36, s40, v36
      s_lshr_b32 s41, s{sSLOT}, 1""")
if OPT["ksmap"] == 0:
    g(f"s_lshl_b32 s41, s41, 3\ns_add_u32 s41, s41, s{sXCD}             ; ks")
else:
    g(f"s_lshl_b32 s42, s{sXCD}, 4\ns_add_u32 s41, s41, s42             ; ks")
g(f"""s_lshl_b32 s41, s41, 17                 ; ks*128KB
      s_lshl_b32 s42, s43, 13
      s_add_u32 s41, s41, s42                 ; + kgp*8192
      s_lshl_b32 s42, s43, 10
      s_add_u32 s42, s42, {KV}
      s_waitcnt lgkmcnt(0)""")
srd(44, P_KV, 16777216)
srd(WS, P_WS, WS_REC)
if OPT["gate"]:
    lds_wait(F_Q, OPT["gate"], 40, sleep=1)
stamp(8)
g.label("L_ld")
for cb in range(8):
    g(f"s_add_u32 m0, s42, {cb*(16384-128)}")
    g(f"s_waitcnt vmcnt({OPT['inflight']-1})")
    g(f"buffer_load_dwordx4 v36, {sr(44,4)}, s41 offen offset:{cb*128} {NT} lds")
g(f"""v_xor_b32 v36, 80, v36
      s_add_u32 s41, s41, {3*8192}
      s_add_u32 s42, s42, {3*1024}
      s_add_u32 s43, s43, 3
      s_cmp_lt_u32 s43, 16
      s_cbranch_scc1 L_ld""")
lds_inc(F_ISS)
stamp(1)
g("s_branch L_G")
g.label("L_A5")
g(f"""v_xor_b32 v8, v{vN}, v{vKG}
      v_lshlrev_b32 v8, 4, v8
      v_lshl_add_u32 v8, v{vKG}, 13, v8
      s_sub_u32 s43, s{sWV}, 5                ; u = r, r+3, ...
      s_lshl_b32 s40, s{sJ}, 19               ; 64*j rows * 8192
      s_lshl_b32 s41, s{sHF}, 8
      s_add_u32 s40, s40, s41
      s_waitcnt lgkmcnt(0)""")
srd(SR, P_WUK, 4194304)
srd(WS, P_WS, WS_REC)
lds_wait(F_QI, 5, 41)
g(f"""s_cmp_eq_u32 s{sWV}, 7
      s_cbranch_scc0 L_uk
      s_getpc_b64 s[44:45]""")
g.label("L_pc")
g(f"""s_sub_u32 s44, s44, L_pc-{K}
      s_subb_u32 s45, s45, 0
      v_lshlrev_b32 v10, 6, v{LANE}
      s_mov_b32 s42, 4096""")
g.label("L_pf")
g(f"""s_add_u32 s44, s44, 4096
      s_addc_u32 s45, s45, 0
      global_load_dword v11, v10, s[44:45]
      s_add_u32 s42, s42, 4096
      s_cmp_lt_u32 s42, L_CODE_END-{K}
      s_cbranch_scc1 L_pf""")
g.label("L_uk")
g(f"""s_and_b32 s41, s43, 3
      s_lshl_b32 s41, s41, 6
      v_xor_b32 v9, s41, v8
      s_lshl_b32 s41, s43, 10
      s_add_u32 m0, s41, {QL}
      s_lshl_b32 s41, s43, 15
      s_add_u32 s41, s41, s40
      buffer_load_dwordx4 v9, {sr(SR,4)}, s41 offen {NT} lds
      s_add_u32 s43, s43, 3
      s_cmp_lt_u32 s43, 16
      s_cbranch_scc1 L_uk
      s_waitcnt vmcnt(0)""")
lds_inc(F_UK)
g("s_branch L_A_q")
g.label("L_G9")
g(f"""s_setprio 3
      s_waitcnt lgkmcnt(0)
      s_load_dword s40, s[{P_WS}:{P_WS+1}], {EPOCH}""")
srd(WS, P_WS, WS_REC)
g(f"""v_lshlrev_b32 v8, 4, v{vN}              ; n*16
      s_lshl_b32 s41, s{sHF}, 3
      s_add_u32 s41, s41, s{sJ}
      s_lshl_b32 s41, s41, 8
      s_add_u32 s43, s41, {QAM}
      s_lshl_b32 s42, s{sHF}, 14
      s_lshl_b32 s41, s{sJ}, 8
      s_add_u32 s42, s42, s41
      s_add_u32 s42, s42, {QM}
      s_add_u32 s45, s42, 8192
      v_lshl_add_u32 v7, v{vKG}, 11, v8
      v_mov_b32 v11, 1
      s_waitcnt lgkmcnt(0)
      s_mul_i32 s{sTAG}, s40, 1664525
      s_add_u32 s{sTAG}, s{sTAG}, 1013904223
      v_mov_b32 v10, s{sTAG}
      v_mov_b32 v13, s{sTAG}
      v_mov_b32 v15, s{sTAG}
      ds_write_b64 v{VZ}, v[10:11] offset:{F_TAG}""")
stamp(1)
lds_wait(F_Q, 5, 40)
g("\n".join(f"ds_read_b128 {vr(32+4*b,4)}, v8 offset:{REDQ+256*b}" for b in range(5)))
g("s_waitcnt lgkmcnt(0)")
sum_groups(32, 5)
g(f"""v_cvt_pk_bf16_f32 v12, v32, v33
      v_cvt_pk_bf16_f32 v14, v34, v35
      buffer_store_dwordx4 v[12:15], v7, {sr(WS,4)}, s42 offen sc1
      buffer_store_dwordx4 v[12:15], v7, {sr(WS,4)}, s45 offen sc1
      ds_write_b32 v{VZ}, v{VONE} offset:{F_QP}
      s_mov_b64 exec, 0xffff""")
stamp(2)
lds_wait(F_QA, 8, 40)
g("\n".join(f"ds_read_b128 {vr(32+4*b,4)}, v8 offset:{REDQA+256*b}" for b in range(8)))
g("s_waitcnt lgkmcnt(0)")
sum_groups(32, 8)
for r in range(4): g(f"v_mul_f32 v{32+r}, {hex(f32(SCALE))}, v{32+r}")
g(f"""v_cvt_pk_bf16_f32 v12, v32, v33
      v_cvt_pk_bf16_f32 v14, v34, v35
      buffer_store_dwordx4 v[12:15], v8, {sr(WS,4)}, s43 offen sc1
      ds_write_b32 v{VZ}, v{VONE} offset:{F_QAP}
      s_mov_b64 exec, -1
      s_setprio 0""")
stamp(3)
lds_wait(F_ISS, 3, 40, sleep=2)
g("s_branch L_G_uv9")

g.label("L_A")
g(f"""s_setprio 3
      v_mul_u32_u24 v6, 20, v{LANE}
      v_lshlrev_b32 v7, 4, v{vKG}
      v_lshlrev_b32 v24, 16, v{vKG}
      v_lshl_add_u32 v24, v{vN}, 3, v24       ; + n*8
      s_lshr_b32 s40, s{sJ}, 1                ; mq
      s_mul_i32 s40, s40, 160
      s_lshl_b32 s41, s{sWV}, 5
      s_add_u32 s40, s40, s41
      s_lshl_b32 s41, s40, 13                 ; row0*8192
      s_lshl_b32 s42, s{sHF}, 8
      s_add_u32 s41, s41, s42
      s_and_b32 s42, s{sJ}, 1
      s_lshl_b32 s42, s42, 7
      s_add_u32 s41, s41, s42                 ; w_q soffset
      s_lshl_b32 s40, s40, 1
      s_mov_b32 s{SR+2}, 1280
      s_mov_b32 s{SR+3}, 0x20000
      s_mov_b32 s46, 5242880
      s_mov_b32 s47, 0x20000
      s_waitcnt lgkmcnt(0)
      s_mov_b32 s{SR}, s{P_X}
      s_mov_b32 s{SR+1}, s{P_X+1}
      s_mov_b32 s44, s{P_WQ}
      s_mov_b32 s45, s{P_WQ+1}
      buffer_load_dwordx4 v[8:11], v6, {sr(SR,4)}, 0 offen
      buffer_load_dword v12, v6, {sr(SR,4)}, 0 offen offset:16
      buffer_load_dwordx4 v[16:19], v7, {sr(SR,4)}, s40 offen""")
load_block(32, 24, 44, 41, 42, 8192)
lds_inc(F_QI)
srd(WS, P_WS, WS_REC)
g("s_waitcnt vmcnt(9)")
stamp(16)
ln_stats(8, 64, 40, 42, 14, 15)
g("s_waitcnt vmcnt(8)")
ln_frag(16, 20, 26, 14, 15)
g(f"""s_lshl_b32 s40, s{sWV}, 6
      v_add_u32 v27, s40, v7
      ds_write_b128 v27, v[20:23] offset:{XNL}
      v_lshlrev_b32 v26, 4, v{vN}
      s_lshl_b32 s40, s{sWV}, 8
      v_add_u32 v26, s40, v26""")
stamp(17)
for p in range(4):
    g(f"s_waitcnt vmcnt({6-2*p})")
    e = 2 * p
    for d in range(2):
        g(f"v_perm_b32 v{48+8*d+p}, v{32+2*(e+1)+d}, v{32+2*e+d}, s{sPLO}")
        g(f"v_perm_b32 v{48+8*d+4+p}, v{32+2*(e+1)+d}, v{32+2*e+d}, s{sPHI}")
stamp(18)
g("s_nop 1")
for t in range(4): mfma(64 + 4 * t, 20, 48 + 4 * t, True)
g(f"""s_nop 6
      v_mov_b32 v65, v68
      v_mov_b32 v66, v72
      v_mov_b32 v67, v76
      s_mov_b64 exec, 0xffff
      ds_write_b128 v26, v[64:67] offset:{REDQ}
      s_mov_b64 exec, 1
      ds_add_u32 v{VZ}, v{VONE} offset:{F_Q}
      s_mov_b64 exec, -1""")
g.label("L_A_q")
g("s_setprio 2")
stamp(2)
get_tag(6)
QKA, PVA = 32, 96
fswz(24, vN, 25)
g(f"""v_xor_b32 v24, v24, v{vKG}
      v_lshlrev_b32 v24, 4, v24
      v_and_b32 v25, 7, v{vN}
      v_lshl_add_u32 v24, v25, 7, v24         ; + (i&7)*128
      v_lshrrev_b32 v25, 3, v{vN}
      v_lshl_add_u32 v24, v25, 10, v24        ; + (i>>3)*1024
      s_lshl_b32 s42, s{sWV}, 11
      s_add_u32 s42, s42, {KV}
      v_add_u32 v160, s42, v24
      v_xor_b32 v161, 64, v160
      v_add_u32 v162, 0x10000, v160
      v_add_u32 v163, 0x10000, v161
      v_lshrrev_b32 v26, 2, v{LANE}           ; i16""")
fswz(24, 26, 25)
g(f"""s_and_b32 s42, s{sWV}, 3
      s_lshl_b32 s42, s42, 1
      v_bfe_u32 v25, v{LANE}, 1, 1
      v_or_b32 v25, s42, v25                  ; xi = 2(w&3) + (c'>>1)
      v_xor_b32 v24, v24, v25
      v_lshlrev_b32 v24, 4, v24
      v_and_b32 v25, 1, v{LANE}
      v_lshl_add_u32 v24, v25, 3, v24
      v_and_b32 v25, 7, v26
      v_lshl_add_u32 v24, v25, 7, v24
      v_lshrrev_b32 v25, 3, v26
      v_lshl_add_u32 v24, v25, 10, v24
      s_lshr_b32 s42, s{sWV}, 2
      s_lshl_b32 s42, s42, 14
      s_add_u32 s42, s42, {KV}
      v_add_u32 v164, s42, v24
      v_add_u32 v165, 0x10000, v164
      v_lshrrev_b32 v24, 1, v{vN}             ; xi
      v_and_b32 v25, 4, v24
      v_lshl_or_b32 v25, v25, 1, v24          ; sigma
      s_lshl_b32 s42, s{sWV}, 1
      v_xor_b32 v25, s42, v25
      v_lshlrev_b32 v25, 4, v25
      v_lshl_add_u32 v25, v24, 8, v25         ; + xi*256
      v_lshl_add_u32 v25, v{vKG}, 11, v25     ; + (l>>4)*2048
      v_and_b32 v24, 1, v{LANE}
      v_lshl_add_u32 v28, v24, 3, v25
      v_xor_b32 v29, 16, v28
      v_xor_b32 v30, v{vN}, v{vKG}
      v_lshlrev_b32 v30, 4, v30
      v_lshl_add_u32 v30, v{vKG}, 8, v30
      v_xor_b32 v31, {12*16}, v30             ; odd s
      v_lshlrev_b32 v166, 4, v{LANE}          ; lane*16""")
VL16 = 166
g(f"""s_and_b32 s40, s{sSLOT}, 1              ; g
      s_lshl_b32 s41, s40, 4
      s_lshl_b32 s42, s{sWV}, 1
      s_add_u32 s41, s41, s42                 ; 16g+2w
      s_lshl_b32 s41, s41, 11
      s_add_u32 s20, s41, {QAM}
      s_lshr_b32 s21, s{sSLOT}, 1             ; mi 0..15
      s_lshl_b32 s42, s40, 7                  ; 16g*8
      s_add_u32 s42, s42, s{sWV}
      s_lshl_b32 s42, s42, 3
      s_add_u32 s42, s42, s{sXCD}
      s_lshl_b32 s42, s42, 4
      s_add_u32 s42, s42, s21
      s_lshl_b32 s42, s42, 7
      s_add_u32 s26, s42, {IB}
      s_add_u32 s22, s26, {2*8*8*2048}
      s_lshl_b32 s42, s40, 3
      s_add_u32 s42, s42, s{sXCD}
      s_lshl_b32 s42, s42, 4
      s_add_u32 s42, s42, s21
      s_lshl_b32 s42, s42, 8
      s_add_u32 s27, s42, {HD}
      s_lshr_b32 s42, s{sHF}, 4
      s_lshl_b32 s42, s42, 3
      s_add_u32 s42, s42, s{sWV}
      s_lshl_b32 s42, s42, 12
      s_and_b32 s43, s{sHF}, 15
      s_lshl_b32 s43, s43, 4
      s_add_u32 s42, s42, s43
      s_add_u32 s31, s42, {HD}
      s_lshl_b32 s42, s{sHF}, 3
      s_add_u32 s42, s42, s{sJ}
      s_lshl_b32 s42, s42, 3
      s_add_u32 s42, s42, s{sWV}              ; (h*8+j)*8+w
      s_lshl_b32 s30, s42, 11
      s_add_u32 s30, s30, {IB}
      s_lshl_b32 s42, s42, 8
      s_add_u32 s42, s42, {QM}
      s_add_u32 s32, s{WS}, s42
      s_addc_u32 s33, s{WS+1}, 0
      s_lshl_b32 s18, s{sTAG}, 5              ; 32*TAG
      s_and_b32 s40, s{sWV}, 1
      s_lshl_b32 s40, s40, 3                  ; 8*dhalf'
      v_xor_b32 v6, s40, v{vN}
      v_lshlrev_b32 v6, 4, v6
      v_lshl_add_u32 v6, v{LANE}, 8, v6       ; row*256 + ...
      v_lshlrev_b32 v10, 2, v{LANE}
      s_lshl_b32 s40, s{sWV}, 8
      v_add_u32 v10, s40, v10
      v_mov_b32 v8, 0
      v_mov_b32 v9, 0""")
W = 80
lds_wait(F_UK, 3, 40, sleep=1)
for e in range(8):
    if e: g(f"v_xor_b32 v7, {e*16}, v6")
    g(f"ds_read_b128 {vr(W+4*e,4)}, v{6 if e == 0 else 7} offset:{QL}")
lds_wait(F_QP, 1, 40, sleep=1)
stamp(3)
L, Lo = g.nl("h1"), g.nl("h1o")
g(f"s_mov_b32 s{sCNT}, {LIM_MEM}")
g.label(L)
for k in range(4):
    g(f"s_load_dwordx16 {sr(36+16*k,16)}, s[32:33], {64*k} glc")
g(f"""s_sub_u32 s{sCNT}, s{sCNT}, 1
      s_cbranch_scc1 {Lo}
      s_waitcnt lgkmcnt(0)
      s_cmp_eq_u32 s99, s{sTAG}
      s_cbranch_scc0 {L}
      s_add_u32 s19, s37, s39""")
for k in range(2, 32):
    g(f"s_add_u32 s19, s19, s{37+2*k}")
g(f"s_cmp_eq_u32 s19, s18\ns_cbranch_scc0 {L}")
g.label(Lo)
g("s_waitcnt lgkmcnt(0)")
for k in range(32):
    g(f"v_dot2c_f32_bf16 v{8+(k&1)}, s{36+2*k}, v{W+k}")
g(f"""s_nop 2
      v_add_f32 v8, v8, v9
      ds_write_b32 v10, v8 offset:{REDQA}""")
lds_inc(F_QA)
stamp(4)
lds_wait(F_QAP, 1, 42, sleep=1)
lds_wait(F_ISS, OPT["h2iss"], 42, sleep=1)
h2_loads = "\n".join(f"buffer_load_dwordx4 {vr(8+4*n,4)}, v{VL16}, {sr(WS,4)}, s20 offen offset:{1024*n} sc1" for n in range(4))
g(h2_loads)
if OPT["b1gate"]: lds_inc(F_H2I)
stamp(5)
lds_wait(F_LAND, 3, 42)
stamp(6)
for s in range(16):
    cb = s >> 1
    a = 160 + (s & 1) + (2 if cb >= 4 else 0)
    g(f"ds_read_b128 {vr(QKA+4*s,4)}, v{a} offset:{(cb&3)*16384}")
L, Lo = g.nl("h2c"), g.nl("h2co")
g(f"s_mov_b32 s43, {LIM_MEM}")
g.label(L)
g("s_waitcnt vmcnt(0)")
tagcheck([9, 11, 13, 15, 17, 19, 21, 23], 24)
g(f"""s_cbranch_vccz {Lo}
      s_sub_u32 s43, s43, 1
      s_cbranch_scc1 {Lo}
      s_sleep {OPT["bk2"]}
      s_mov_b64 exec, vcc""")
g(h2_loads)
g(f"s_mov_b64 exec, -1\ns_branch {L}")
g.label(Lo)
stamp(7)
for n in range(4):
    g(f"v_mov_b32 v{9+4*n}, v{10+4*n}")
lds_wait(F_QA, 8, 42)
for n in range(4):
    g(f"ds_write_b64 v{28+(n>>1)}, {vr(8+4*n,2)} offset:{QL+(n&1)*8192}")
lds_inc(F_STG)
for i in range(4):
    for u in range(4):
        for hh in range(2):
            T = 2 * u + hh
            g(f"ds_read_b64_tr_b16 {vr(PVA+16*i+4*u+2*hh,2)}, v{164+(i>>1)} offset:{(i&1)*32768+T*2048}")
g(f"""s_lshr_b32 s42, s{sWV}, 1
      s_lshl_b32 s42, s42, 10
      s_and_b32 s43, s{sWV}, 1
      s_lshl_b32 s43, s43, 3
      s_add_u32 s42, s42, s43
      v_add_u32 v7, s42, v{VL16}
      v_lshlrev_b32 v6, 5, v{vN}
      s_lshl_b32 s42, s{sWV}, 2
      v_add_u32 v29, s42, v6
      v_lshrrev_b32 v24, 3, v{vN}
      v_lshl_add_u32 v24, v{vKG}, 2, v24      ; head = 4q + (j>>3)
      v_lshlrev_b32 v28, 17, v24              ; * 8*8*2048
      v_and_b32 v24, 7, v{vN}
      v_lshl_add_u32 v28, v24, 4, v28
      s_mov_b32 s43, 0x3f803f80""")
def bread(s): return f"ds_read_b128 {vr(8+4*(s&3),4)}, v{30+(s&1)} offset:{QL+s*1024}"
lds_wait(F_STG, 8, 42)
stamp(8)
g("\n".join(bread(s) for s in range(4)))
SA = 24
for s in range(16):
    g(f"s_waitcnt lgkmcnt({min(3, 15-s)})")
    mfma(SA, QKA + 4 * s, 8 + 4 * (s & 3), s == 0)
    if s + 4 < 16: g(bread(s + 4))
VM = 10
if OPT["amax"]:
    g(f"""v_lshlrev_b32 v8, 2, v{vN}
          v_mov_b32 v11, 0
          s_nop 5
          v_max3_f32 v9, v{SA}, v{SA+1}, v{SA+2}
          v_max_f32 v9, v9, v{SA+3}
          ds_max_f32 v8, v9 offset:{RMAX}""")
    lds_inc(F_MAX)
    stamp(14)
    lds_wait(F_MAX, 8, 42, extra=f"ds_read_b32 v{VM}, v8 offset:{RMAX}")
else:
    g(f"""v_mov_b32 v11, 0
          s_nop 6
          v_max3_f32 v9, v{SA}, v{SA+1}, v{SA+2}
          v_max_f32 v9, v9, v{SA+3}
          v_mov_b32 v8, v9
          s_nop 1
          v_permlane16_swap_b32 v9, v8
          v_max_f32 v9, v9, v8
          v_mov_b32 v8, v9
          s_nop 1
          v_permlane32_swap_b32 v9, v8
          v_max_f32 v9, v9, v8
          s_mov_b64 exec, 0xffff
          ds_write_b32 v29, v9 offset:{RMX}
          s_mov_b64 exec, 1
          ds_add_u32 v{VZ}, v{VONE} offset:{F_MAX}
          s_mov_b64 exec, -1""")
    stamp(14)
    lds_wait(F_MAX, 8, 42, extra=f"ds_read_b128 v[12:15], v6 offset:{RMX}\nds_read_b128 v[16:19], v6 offset:{RMX+16}")
    g(f"""v_max3_f32 v{VM}, v12, v13, v14
          v_max3_f32 v16, v15, v16, v17
          v_max3_f32 v{VM}, v{VM}, v18, v19
          v_max_f32 v{VM}, v{VM}, v16""")
for r in range(4): g(f"v_sub_f32 v{SA+r}, v{SA+r}, v{VM}")
for r in range(4): g(f"v_exp_f32 v{SA+r}, v{SA+r}")
g(f"""s_nop 0
      v_cvt_pk_bf16_f32 v12, v{SA}, v{SA+1}
      v_cvt_pk_bf16_f32 v13, v{SA+2}, v{SA+3}
      ds_write_b64 v7, v[12:13] offset:{PL}""")
lds_inc(F_P)
g(f"""v_dot2c_f32_bf16 v11, s43, v12
      v_dot2c_f32_bf16 v11, s43, v13
      v_lshlrev_b32 v14, 2, v29               ; n*128 + T*16
      v_lshl_add_u32 v14, v{vKG}, 2, v14      ; + q*4
      s_nop 0
      ds_write_b32 v14, v11 offset:{RLP}""")
stamp(15)
PF = 32
lds_wait(F_P, 8, 42)
stamp(9)
g("\n".join(f"ds_read_b128 {vr(PF+4*u,4)}, v{VL16} offset:{PL+1024*u}" for u in range(4)))
OA = 48
for u in range(4):
    g(f"s_waitcnt lgkmcnt({3-u})")
    for i in range(4): mfma(OA + 4 * i, PF + 4 * u, PVA + 16 * i + 4 * u, u == 0)
GR = 64
g("s_nop 6")
for a in range(2):
    A0, B0, T0 = GR + 4 * a, GR + 4 * a + 2, 72
    for d in range(2):
        g(f"v_cvt_pk_bf16_f32 v{A0+d}, v{OA+8*d+2*a}, v{OA+8*d+4+2*a}")
        g(f"v_cvt_pk_bf16_f32 v{B0+d}, v{OA+8*d+2*a+1}, v{OA+8*d+4+2*a+1}")
    g("s_nop 0")
    for d in range(2): g(f"v_mov_b32_dpp v{T0+d}, v{A0+d} row_ror:8 {DPPM}")
    for d in range(2): g(f"v_mov_b32_dpp v{A0+d}, v{B0+d} row_ror:8 row_mask:0xf bank_mask:0xc")
    for d in range(2): g(f"v_mov_b32_dpp v{B0+d}, v{T0+d} quad_perm:[0,1,2,3] row_mask:0xf bank_mask:0x3")
    g(f"buffer_store_dwordx4 {vr(A0,4)}, v28, {sr(WS,4)}, s{26 if a == 0 else 22} offen sc1")
stamp(10)
MK = 76
g(f"""v_and_b32 v12, 1, v{LANE}
      v_lshlrev_b32 v12, 4, v12
      v_mov_b32 v13, 0xffff
      v_lshlrev_b32 v13, v12, v13
      v_bfe_u32 v12, v{LANE}, 1, 2""")
for p in range(4):
    g(f"v_cmp_eq_u32 vcc, {p}, v12\ns_nop 1\nv_cndmask_b32 v{MK+p}, v{VZ}, v13, vcc")
g(f"""v_lshlrev_b32 v15, 8, v{vN}
      v_lshlrev_b32 v16, 3, v{vN}
      s_lshl_b32 s42, s{sWV}, 7
      v_add_u32 v16, s42, v16
      v_add_u32 v16, {MLT}, v16
      v_lshrrev_b32 v17, 3, v{LANE}
      v_lshlrev_b32 v17, 3, v17
      v_add_u32 v17, s42, v17
      v_lshrrev_b32 v18, 3, v{vN}             ; a = j>>3
      s_lshl_b32 s42, s{sWV}, 1
      v_add_u32 v19, s42, v18
      v_mul_u32_u24 v19, 144, v19
      v_and_b32 v20, 7, v{vN}
      v_lshl_add_u32 v19, v20, 4, v19
      v_and_b32 v20, 1, v{vKG}
      v_lshl_add_u32 v19, v20, 3, v19
      v_lshrrev_b32 v20, 1, v{vKG}
      v_cmp_eq_u32 s[46:47], v18, v20
      v_lshlrev_b32 v21, 7, v{vN}
      s_waitcnt vmcnt(0)
      s_mov_b64 exec, 1
      ds_add_rtn_u32 v{VT}, v{VZ}, v{VONE} offset:{F_H3}
      s_mov_b64 exec, -1
      s_waitcnt lgkmcnt(0)
      v_readfirstlane_b32 s42, v{VT}
      s_nop 0
      s_cmp_eq_u32 s42, 7
      s_cbranch_scc0 L_nohdr""")
for k in range(8): g(f"ds_read_b128 {vr(80+4*k,4)}, v21 offset:{RLP+16*k}")
g(f"v_mov_b32 v11, s{sTAG}\nv_mov_b32 v13, s{sTAG}\ns_waitcnt lgkmcnt(0)")
sum_groups(80, 8)
g(f"""v_add_f32 v80, v80, v81
      v_add_f32 v82, v82, v83
      v_add_f32 v12, v80, v82
      s_mov_b64 exec, 0xffff
      buffer_store_dwordx4 v[10:13], v{VL16}, {sr(WS,4)}, s27 offen sc1
      s_mov_b64 exec, -1""")
g.label("L_nohdr")
stamp(22)
L, Lo = g.nl("h3"), g.nl("h3o")
g(f"s_mov_b32 s43, {LIM_MEM}\ns_mov_b64 exec, 0xffff")
g.label(L)
g(f"""buffer_load_dwordx4 v[24:27], v15, {sr(WS,4)}, s31 offen sc1
      s_waitcnt vmcnt(0)
      v_xor_b32 v{VT}, s{sTAG}, v25
      v_bitop3_b32 v{VT}, v27, s{sTAG}, v{VT} bitop3:0xbe
      v_cmp_ne_u32 vcc, 0, v{VT}
      s_sub_u32 s43, s43, 1
      s_cbranch_scc1 {Lo}
      s_cbranch_vccz {Lo}
      s_mov_b64 exec, vcc
      s_sleep {OPT["bk3"]}
      s_branch {L}""")
g.label(Lo)
IR = 80
g(f"""s_mov_b64 exec, -1
      buffer_load_dwordx4 {vr(IR,4)}, v{VL16}, {sr(WS,4)}, s30 offen sc1
      buffer_load_dwordx4 {vr(IR+4,4)}, v{VL16}, {sr(WS,4)}, s30 offen offset:1024 sc1
      s_mov_b64 exec, 0xffff
      ds_write2_b32 v16, v24, v26 offset0:0 offset1:1
      s_mov_b64 exec, 1
      ds_add_u32 v{VZ}, v{VONE} offset:{F_ML}
      s_mov_b64 exec, -1""")
stamp(11)
def global_max(dst, t0):
    g(f"""v_max_f32 v{dst}, v{t0}, v{t0+2}""")
    for mod in ("quad_perm:[1,0,3,2]", "quad_perm:[2,3,0,1]", "row_half_mirror", "row_mirror"):
        g(f"s_nop 1\nv_max_f32_dpp v{dst}, v{dst}, v{dst} {mod} {DPPM}")
    for sw in ("v_permlane16_swap_b32", "v_permlane32_swap_b32"):
        g(f"v_mov_b32 v{dst+1}, v{dst}\ns_nop 1\n{sw} v{dst}, v{dst+1}\nv_max_f32 v{dst}, v{dst}, v{dst+1}")
lds_wait(F_ML, 8, 42)
g(f"""ds_read_b128 v[24:27], v{VL16} offset:{MLT}
      ds_read_b32 v8, v17 offset:{MLT}
      ds_read_b32 v9, v17 offset:{MLT+64}
      s_waitcnt lgkmcnt(0)""")
global_max(22, 24)
g(f"""v_sub_f32 v8, v8, v22
      v_sub_f32 v9, v9, v22
      v_exp_f32 v8, v8
      v_exp_f32 v9, v9
      s_nop 0
      v_cvt_pk_bf16_f32 v8, v8, v8
      v_cvt_pk_bf16_f32 v9, v9, v9""")
for n in range(2):
    for p in range(4): g(f"v_and_b32 v{88+4*n+p}, v{8+n}, v{MK+p}")
g("s_waitcnt vmcnt(1)")
mfma(96, 88, IR, True)
g("s_waitcnt vmcnt(0)")
stamp(12)
mfma(96, 92, IR + 4, False)
g(f"""s_nop 7
      v_cvt_pk_bf16_f32 v100, v96, v97
      v_cvt_pk_bf16_f32 v101, v98, v99
      s_mov_b64 exec, s[46:47]
      ds_write_b64 v19, v[100:101] offset:{RIB}
      s_mov_b64 exec, 1
      ds_add_u32 v{VZ}, v{VONE} offset:{F_IB}
      s_mov_b64 exec, -1""")
stamp(13)
g(f"""s_cmp_lt_u32 s{sWG}, 80
      s_cbranch_scc0 L_A_end
      s_lshl_b32 s41, s{sWG}, 13
      s_lshl_b32 s42, s{sWV}, 10
      s_add_u32 s41, s41, s42
      s_add_u32 s41, s41, {SM}
      v_and_b32 v7, 3, v{LANE}
      v_lshlrev_b32 v6, 3, v7
      s_lshl_b32 s42, s{sWV}, 5
      v_add_u32 v6, s42, v6
      s_cmp_eq_u32 s{sWV}, 0
      s_cbranch_scc0 L_fin_s""")
srd(SR, P_X, 1280)
g(f"""v_lshlrev_b32 v7, 3, v7
      s_lshr_b32 s55, s{sWG}, 3
      s_lshl_b32 s55, s55, 7
      s_and_b32 s40, s{sWG}, 3
      s_lshl_b32 s40, s40, 5
      s_add_u32 s55, s55, s40
      s_and_b32 s40, s{sWG}, 4
      s_add_u32 s55, s55, s40
      buffer_load_dword v16, v7, {sr(SR,4)}, s55 offen
      s_lshl_b32 s40, s{sWG}, 11
      s_add_u32 s40, s40, {YM}
      v_mov_b32 v24, 0
      v_mov_b32 v25, s{sTAG}
      v_mov_b32 v26, 0
      v_mov_b32 v27, s{sTAG}
      v_and_b32 v19, 31, v{LANE}
      v_lshlrev_b32 v19, 3, v19""")
poll_loads("h7", f"""buffer_load_dwordx4 v[20:23], v{VL16}, {sr(WS,4)}, s40 offen sc1
      s_mov_b32 exec_hi, 0xfff
      buffer_load_dwordx4 v[24:27], v{VL16}, {sr(WS,4)}, s40 offen offset:1024 sc1
      s_mov_b64 exec, -1""", [21, 23, 25, 27], 43)
g("v_add_f32 v20, v20, v24\nv_add_f32 v22, v22, v26")
red16([20, 22])
for r in (20, 22):
    rne(r)
    g(f"""v_mul_f32 v{r+1}, {hex(f32(-math.log2(math.e)))}, v{r}
          v_exp_f32 v{r+1}, v{r+1}
          s_nop 0
          v_add_f32 v{r+1}, 1.0, v{r+1}
          v_rcp_f32 v{r+1}, v{r+1}
          s_nop 0
          v_mul_f32 v{r}, v{r}, v{r+1}""")
    rne(r)
g("v_lshlrev_b32 v17, 16, v16\nv_and_b32 v18, 0xffff0000, v16")
stamp(19)
g.label("L_fin_s")
lds_wait(F_SD, 4, 42, sleep=1)
poll_loads("h5", f"buffer_load_dwordx4 v[32:35], v{VL16}, {sr(WS,4)}, s41 offen sc1", [33, 35], 43)
stamp(20)
red16([32, 34])
g(f"""v_mov_b32 v33, v34
      s_mov_b64 exec, 0xf
      ds_write_b64 v6, v[32:33] offset:{RFIN}
      s_mov_b64 exec, 1
      ds_add_u32 v{VZ}, v{VONE} offset:{F_FIN}
      s_mov_b64 exec, -1
      s_cmp_eq_u32 s{sWV}, 0
      s_cbranch_scc0 L_A_end""")
srd(44, P_OUT, 1280)
lds_wait(F_FIN, 8, 42, extra=f"ds_read_b64 v[32:33], v19 offset:{RFIN}")
g("v_mov_b32 v34, v33")
red16([32, 34], full=False)
rne(32); rne(34)
g("v_mul_f32 v32, v32, v20\nv_mul_f32 v34, v34, v22")
rne(32); rne(34)
g(f"""v_add_f32 v32, v32, v17
      v_add_f32 v34, v34, v18
      v_cvt_pk_bf16_f32 v32, v32, v34
      s_mov_b64 exec, 0xf
      buffer_store_dword v32, v7, {sr(44,4)}, s55 offen
      s_cmp_eq_u32 s{sWG}, 0
      s_cbranch_scc0 L_noep
      s_mov_b64 exec, 1
      v_mov_b32 v13, s{sTAG}
      buffer_store_dword v13, v{VZ}, {sr(WS,4)}, 0 offen offset:{EPOCH}""")
g.label("L_noep")
stamp(21)
g.label("L_A_end")
ts_flush()
g("s_endpgm")

KORD = (0, 2, 1, 3)
TH = OPT["gthr"]
def wo_setup():
    g(f"""v_mul_u32_u24 v6, {8*1280}, v{vKG}
          v_lshl_add_u32 v6, v{vN}, 3, v6
          s_lshl_b32 s40, s{sHF}, 7
          s_lshr_b32 s41, s{sJ}, 1
          s_lshl_b32 s41, s41, 5
          s_add_u32 s40, s40, s41
          s_mul_i32 s40, s40, 1280
          s_and_b32 s41, s{sJ}, 1
          s_mul_i32 s41, s41, 640
          s_add_u32 s48, s40, s41""")
    srd(44, P_WO, 5242880)

def wo_gate():
    if OPT["wogate"] == 1: lds_wait(F_H3, 8, 40, sleep=2)
    elif OPT["wogate"] == 2: lds_wait(F_IB, 1, 40, sleep=2)

def h4_setup():
    g(f"""v_and_b32 v29, 7, v{vN}
          v_lshlrev_b32 v29, 7, v29
          v_lshl_add_u32 v29, v{vKG}, 5, v29
          s_lshl_b32 s50, s{sHF}, 2
          s_lshr_b32 s51, s{sJ}, 1
          s_add_u32 s50, s50, s51                 ; p = h*4+dq
          s_lshl_b32 s61, s50, 10
          s_add_u32 s61, s61, {CXM}
          v_bfe_u32 v30, v{LANE}, 2, 3
          v_lshlrev_b32 v30, 13, v30
          v_and_b32 v31, 3, v{LANE}
          v_lshl_add_u32 v30, v31, 4, v30
          s_and_b32 s41, s{sJ}, 1
          s_mul_i32 s41, s41, {40*8192}
          s_lshl_b32 s50, s50, 6
          s_add_u32 s50, s50, s41
          s_add_u32 s50, s50, {SM}""")

def h4_wait(A):
    poll_loads("h4", f"""buffer_load_dwordx4 {vr(A,4)}, v29, {sr(WS,4)}, s61 offen sc1
          buffer_load_dwordx4 {vr(A+4,4)}, v29, {sr(WS,4)}, s61 offen offset:16 sc1""", [A+1, A+3, A+5, A+7], 43)
    g(f"v_mov_b32 v{A+1}, v{A+4}\nv_mov_b32 v{A+3}, v{A+6}\ns_nop 1")

def wo_compute(A, frags, cbks, D):
    for bi, fr in enumerate(frags):
        for t in range(4): mfma(D + 16 * bi + 4 * t, A, fr + 4 * t, True)
    g("s_nop 4" if len(frags) == 1 else "s_nop 0")
    for bi, cbk in enumerate(cbks):
        d = D + 16 * bi
        for t in range(4):
            g(f"v_add_f32 v{d+4*t}, v{d+4*t}, v{d+4*t+1}\nv_add_f32 v{d+4*t+2}, v{d+4*t+2}, v{d+4*t+3}")
        for t in range(4):
            g(f"v_add_f32 v{d+4*t}, v{d+4*t}, v{d+4*t+2}")
        g(f"""v_mov_b32 v{d+1}, s{sTAG}
              v_mov_b32 v{d+3}, s{sTAG}
              v_permlane16_swap_b32 v{d}, v{d+8}
              v_permlane16_swap_b32 v{d+4}, v{d+12}
              s_add_u32 s51, s50, {cbk*8*8192}
              v_add_f32 v{d}, v{d}, v{d+8}
              v_add_f32 v{d+2}, v{d+4}, v{d+12}
              s_mov_b32 exec_hi, 0
              buffer_store_dwordx4 {vr(d,4)}, v30, {sr(WS,4)}, s51 offen sc1
              s_mov_b64 exec, -1""")
    lds_inc(F_SD)

def b1_gate():
    if OPT["b1gate"]:
        land_flush()
        lds_wait(F_H2I, 8, 40, sleep=2)

g.label("L_G")
get_tag(6)
g(f"""s_cmp_eq_u32 s{sWV}, 11
      s_cbranch_scc1 L_FFN
      s_cmp_eq_u32 s{sWV}, 10
      s_cbranch_scc1 L_G_uv10""")
LD.pending = True; LD.n = 0
wo_setup(); h4_setup()
if OPT["wogate"]: land_flush()
wo_gate()
stamp(4)
load_block(32, 6, 44, 48, 42, 1280, TH)
g("s_add_u32 s49, s48, 128")
load_block(48, 6, 44, 49, 42, 1280, TH)
land_flush()
g("s_waitcnt vmcnt(8)")
perm_block(32, 64, KORD)
g("s_waitcnt vmcnt(0)")
perm_block(48, 80, KORD)
stamp(5)
lds_wait(F_IB, 8, 40, sleep=2)
g("s_setprio 2")
h4_wait(8)
stamp(6)
wo_compute(8, [64, 80], [0, 1], 96)
stamp(7)
g("s_branch L_G_end")

def uv_loads():
    g(f"""v_lshlrev_b32 v7, 13, v{vKG}
          v_lshl_add_u32 v7, v{vN}, 3, v7
          s_lshl_b32 s56, s{sJ}, 17               ; 16j rows
          s_lshl_b32 s41, s{sHF}, 8
          s_add_u32 s56, s56, s41
          s_sub_u32 s52, s{sWV}, 9                ; colhalf
          s_lshl_b32 s41, s52, 7
          s_add_u32 s56, s56, s41
          s_add_u32 s57, s56, {4*8192}""")
    srd(SR, P_WUV, 4194304)
    b1_gate()
    stamp(4)
    rows = [128 * (e & 3) + 8 * (e >> 2) for e in range(8)]
    load_block(32, 7, SR, 56, 42, 8192, TH, rows)
    load_block(48, 7, SR, 57, 42, 8192, TH, rows)
    land_flush()
g.label("L_G_uv10")
LD.pending = True; LD.n = 0
uv_loads()
g("s_branch L_G_uv")
g.label("L_G_uv9")
LD.pending = False
uv_loads()
g.label("L_G_uv")
wo_setup(); h4_setup()
g(f"""s_add_u32 s49, s52, 2
      s_mul_i32 s53, s49, {8*8192}
      s_add_u32 s50, s50, s53
      s_lshl_b32 s49, s49, 7
      s_add_u32 s49, s49, s48
      v_and_b32 v7, 7, v{vN}
      v_mul_u32_u24 v8, 144, v{vN}
      v_lshl_add_u32 v8, v{vKG}, 4, v8
      v_lshlrev_b32 v9, 4, v{LANE}
      v_lshrrev_b32 v11, 3, v{vN}
      v_lshlrev_b32 v11, 10, v11
      v_lshl_add_u32 v11, v7, 4, v11          ; (n>>3)*1024 + (n&7)*16
      s_lshl_b32 s40, s{sHF}, 2
      s_lshl_b32 s41, s52, 1
      s_add_u32 s40, s40, s41
      s_lshl_b32 s40, s40, 3
      s_add_u32 s40, s40, s{sJ}
      s_lshl_b32 s40, s40, 7
      s_add_u32 s54, s40, {CXM}
      s_waitcnt vmcnt(8)""")
perm_block(32, 80)
g("s_waitcnt vmcnt(0)")
perm_block(48, 96)
wo_gate()
load_block(64, 6, 44, 49, 42, 1280, TH)
g(f"v_mov_b32 v61, s{sTAG}\nv_mov_b32 v63, s{sTAG}")
stamp(5)
lds_wait(F_ML, 8, 40, sleep=1)
g(f"""s_setprio 3
      ds_read_b128 v[40:43], v9 offset:{MLT}
      s_waitcnt lgkmcnt(0)""")
global_max(44, 40)
g(f"""v_sub_f32 v40, v40, v44
      v_sub_f32 v42, v42, v44
      v_exp_f32 v40, v40
      v_exp_f32 v42, v42
      s_nop 0""")
rne(40); rne(42)
g("v_mul_f32 v57, v40, v41\nv_fmac_f32 v57, v42, v43")
wave_sum(57, 40)
g("s_nop 1\nv_rcp_f32 v57, s40")
lds_wait(F_IB, 8, 40)
g(f"""ds_read_b128 v[32:35], v8 offset:{RIB}
      ds_read_b128 v[36:39], v8 offset:{RIB+64}""")
stamp(6)
D = 128
for blk in range(2):
    g(f"s_waitcnt lgkmcnt({1-blk})")
    for t in range(4): mfma(D + 4 * t, 32 + 4 * blk, 80 + 16 * blk + 4 * t, blk == 0)
g("s_nop 4")
for t in range(4): g(f"v_add_f32 v{D+4*t}, v{D+4*t}, v{D+4*t+1}\nv_add_f32 v{D+4*t+2}, v{D+4*t+2}, v{D+4*t+3}")
for t in range(4): g(f"v_add_f32 v{D+4*t}, v{D+4*t}, v{D+4*t+2}")
for sw in ("v_permlane16_swap_b32", "v_permlane32_swap_b32"):
    for t in range(4): g(f"v_mov_b32 v{D+4*t+1}, v{D+4*t}")
    g("s_nop 0")
    for t in range(4): g(f"{sw} v{D+4*t}, v{D+4*t+1}")
    for t in range(4): g(f"v_add_f32 v{D+4*t}, v{D+4*t}, v{D+4*t+1}")
for t in range(4): g(f"v_mul_f32 v{D+4*t}, v{D+4*t}, v57")
g(f"""v_cvt_pk_bf16_f32 v60, v{D}, v{D+4}
      v_cvt_pk_bf16_f32 v62, v{D+8}, v{D+12}
      s_mov_b64 exec, 0xffff
      buffer_store_dwordx4 v[60:63], v11, {sr(WS,4)}, s54 offen sc1
      s_mov_b64 exec, -1""")
stamp(7)
g("s_waitcnt vmcnt(1)")
perm_block(64, 112, KORD)
h4_wait(8)
stamp(8)
wo_compute(8, [112], [0], 128)
stamp(9)
g("s_branch L_G_end")

g.label("L_FFN")
XF = 8
g(f"""s_lshr_b32 s40, s{sSLOT}, 3             ; hq
      s_lshl_b32 s40, s40, 1
      s_and_b32 s41, s{sJ}, 1
      s_add_u32 s40, s40, s41
      s_lshl_b32 s40, s40, 3
      s_add_u32 s62, s40, s{sXCD}             ; u in 0..63
      s_lshr_b32 s63, s{sJ}, 1                ; mq
      v_and_b32 v31, 1, v{vKG}
      v_cmp_eq_u32 s[56:57], 1, v31
      s_cmp_lt_u32 s62, 27
      s_cbranch_scc0 L_FFN2""")
LD.pending = True; LD.n = 0
g(f"""v_mul_u32_u24 v28, {8*3456}, v{vKG}
      v_lshl_add_u32 v28, v{vN}, 3, v28
      v_lshlrev_b32 v7, 4, v{vKG}
      s_mul_i32 s58, s63, {160*3456}
      s_lshl_b32 s41, s62, 7
      s_add_u32 s58, s58, s41""")
srd(SR, P_W1, 2211840)
lds_wait(F_Q, 5, 40)
for b in range(5): g(f"ds_read_b128 {vr(XF+4*b,4)}, v7 offset:{XNL+64*b}")
b1_gate()
stamp(4)
for b in range(5):
    if b: g(f"s_add_u32 s58, s58, {32*3456}")
    load_block(48 + 16 * b, 28, SR, 58, 42, 3456, TH)
land_flush()
D = 144
g("s_waitcnt lgkmcnt(0)")
for b in range(5):
    g(f"s_waitcnt vmcnt({8*(4-b)})")
    perm_block(48 + 16 * b, 32 + 16 * b)
    g("s_nop 1")
    for t in range(4): mfma(D + 4 * t, XF + 4 * b, 32 + 16 * b + 4 * t, b == 0)
g(f"""v_lshlrev_b32 v28, 4, v{LANE}
      s_nop 0
      s_lshl_b32 s40, s62, 2
      s_add_u32 s40, s40, s63
      s_lshl_b32 s40, s40, 9
      s_add_u32 s40, s40, {HM}
      v_mov_b32 v9, s{sTAG}
      v_mov_b32 v11, s{sTAG}
      s_nop 1
      v_cndmask_b32 v8, v{D}, v{D+8}, s[56:57]
      v_cndmask_b32 v10, v{D+4}, v{D+12}, s[56:57]
      s_mov_b32 exec_hi, 0
      buffer_store_dwordx4 v[8:11], v28, {sr(WS,4)}, s40 offen sc1
      s_mov_b64 exec, -1
      s_branch L_FFNe""")
g.label("L_FFN2")
g(f"""s_mul_i32 s40, s63, 37
      s_add_u32 s40, s40, s62
      s_sub_u32 s58, s40, 27
      s_cmp_lt_u32 s58, 135
      s_cbranch_scc1 L_FFN2a""")
LD.pending = True; LD.n = 0
land_flush()
g("s_branch L_FFNe")
g.label("L_FFN2a")
LD.pending = True; LD.n = 0
g(f"""s_mul_i32 s59, s58, 205
      s_lshr_b32 s59, s59, 10                 ; fb = v/5
      s_mul_i32 s60, s59, 5
      s_sub_u32 s60, s58, s60                 ; mb
      v_mul_u32_u24 v28, {8*1280}, v{vKG}
      v_lshl_add_u32 v28, v{vN}, 3, v28
      s_mul_i32 s58, s59, {64*1280}
      s_lshl_b32 s41, s60, 8
      s_add_u32 s58, s58, s41""")
srd(SR, P_W2, 2211840)
b1_gate()
stamp(4)
for ch in range(2):
    for blk in range(2):
        g(f"s_add_u32 s41, s58, {blk*32*1280 + ch*128}")
        load_block(48 + 16 * (2 * ch + blk), 28, SR, 41, 42, 1280, TH)
land_flush()
for b in range(4):
    g(f"s_waitcnt vmcnt({8*(3-b)})")
    perm_block(48 + 16 * b, 32 + 16 * b)
g(f"""v_lshrrev_b32 v28, 2, v{vN}
      v_lshlrev_b32 v28, 9, v28
      v_lshl_add_u32 v28, v{vKG}, 5, v28
      v_bfe_u32 v29, v{vN}, 1, 1
      v_lshl_add_u32 v28, v29, 4, v28
      v_and_b32 v29, 1, v{vN}
      v_lshl_add_u32 v28, v29, 8, v28
      s_lshl_b32 s40, s59, 11
      s_add_u32 s40, s40, {HM}""")
poll_loads("h6", f"""s_sleep 4
      buffer_load_dwordx4 v[8:11], v28, {sr(WS,4)}, s40 offen sc1
      buffer_load_dwordx4 v[12:15], v28, {sr(WS,4)}, s40 offen offset:128 sc1""", [9, 11, 13, 15], 43)
for mod in ("row_ror:4", "row_ror:8"):
    for r in (8, 10, 12, 14): g(f"v_add_f32_dpp v{r}, v{r}, v{r} {mod} {DPPM}")
for r in (8, 10, 12, 14): g(f"v_max_f32 v{r}, 0, v{r}")
g("v_cvt_pk_bf16_f32 v8, v8, v10\nv_cvt_pk_bf16_f32 v12, v12, v14\ns_nop 1")
for blk in range(2):
    for p in range(4):
        g(f"v_mov_b32_dpp v{16+4*blk+p}, v{8+4*blk} quad_perm:[{p},{p},{p},{p}] {DPPM}")
g("s_nop 1")
D = 96
for ch in range(2):
    for blk in range(2):
        for t in range(4): mfma(D + 16 * ch + 4 * t, 16 + 4 * blk, 32 + 16 * (2 * ch + blk) + 4 * t, blk == 0)
g(f"""v_bfe_u32 v28, v{LANE}, 2, 3
      v_lshlrev_b32 v28, 11, v28
      v_and_b32 v29, 3, v{LANE}
      v_lshl_add_u32 v28, v29, 4, v28
      s_nop 0
      s_lshl_b32 s40, s60, 15
      s_lshl_b32 s41, s59, 6
      s_add_u32 s40, s40, s41
      s_add_u32 s40, s40, {YM}
      s_add_u32 s41, s40, {8*2048}
      v_mov_b32 v9, s{sTAG}
      v_mov_b32 v11, s{sTAG}
      v_mov_b32 v13, s{sTAG}
      v_mov_b32 v15, s{sTAG}
      v_cndmask_b32 v8, v{D}, v{D+8}, s[56:57]
      v_cndmask_b32 v10, v{D+4}, v{D+12}, s[56:57]
      v_cndmask_b32 v12, v{D+16}, v{D+24}, s[56:57]
      v_cndmask_b32 v14, v{D+20}, v{D+28}, s[56:57]
      s_mov_b32 exec_hi, 0
      buffer_store_dwordx4 v[8:11], v28, {sr(WS,4)}, s40 offen sc1
      buffer_store_dwordx4 v[12:15], v28, {sr(WS,4)}, s41 offen sc1
      s_mov_b64 exec, -1""")
g.label("L_FFNe")
stamp(5)
wo_setup(); h4_setup()
g("s_add_u32 s49, s48, 512")
wo_gate()
load_block(128, 6, 44, 49, 42, 1280, TH)
g("s_waitcnt vmcnt(0)")
perm_block(128, 32, KORD)
lds_wait(F_IB, 8, 40, sleep=2)
g("s_setprio 2")
h4_wait(8)
stamp(6)
wo_compute(8, [32], [4], 48)
stamp(7)
g.label("L_G_end")
ts_flush("G")
g.label("L_END")
g("s_endpgm")
g.l.append(".p2align 12")
g.label("L_CODE_END")

s = file_head([f"; @launch grid=(256,1,1) block=(768,1,1) lds={LDS_BYTES}"])
s += f""".text
.globl {K}
.p2align 12
.type {K},@function
{K}:
"""
s += g.text()
s += kernel_desc(K, 168, 102)
open(OUT, "w").write(s)
print(OUT, "lines", len(g.l), "ws_end", hex(WS_END))
```

```python
import sys, math, struct
from asmlib import *

OPT = dict(ts=0, stop=99, inflight=24, gate=2, ksmap=1, gthr=24, wogate=0, b1gate=0, pol=1, h2iss=2, amax=0, bk2=4, bk3=2, dbg=0, bk4=0, bk5=3, d3=0, d3b=10, d1=8, d5=12, fast4=1, warm=1)
for a in sys.argv[2:]:
    k, v = a.split("=")
    assert k in OPT, k
    OPT[k] = int(v)
OUT = sys.argv[1] if len(sys.argv) > 1 else "k.s"
NT = "nt" if OPT["pol"] else ""

def f32(x): return struct.unpack("<I", struct.pack("<f", x))[0]

EPOCH = 0
QM   = 0x1000
HD   = QM + 0x80000
QAM  = HD + 0x10000
CXM  = QAM + 0x10000
CXA  = CXM + 0x20000
HM   = CXA + 0x20000
YM   = HM + 0x10000
SM   = YM + 20 * 4096
IB   = SM + 20 * 16384
WS_END = IB + 256 * 8 * 2048
TSOFF = 0x1000000
WS_REC = 0x2000000 if (OPT["ts"] and not OPT["dbg"]) else WS_END

(F_Q, F_QA, F_LAND, F_ISS, F_H2I, F_STG, F_MAX, F_P, F_IB, F_UK, F_TAG, F_TAGV, F_QP, F_QI, F_SD, F_FIN) = [4 * i for i in range(16)]
RMAX = 0x40
RL   = 0x80
F_H3, F_ML, F_QAP, F_XN, F_L, F_RLV, RLINV = 0xC0, 0xC4, 0xC8, 0xCC, 0xD0, 0xD4, 0xD8
REDQ = 0x100
REDQA = 0x600
PL   = 0x1000
RIB  = 0x2000
RFIN = PL
MLT  = 0x2A00
RMX  = 0x2E00
RLP  = REDQ
XNL  = 0x3000
QL   = 0x3800
KV   = 0x7800
LDS_BYTES = KV + 0x20000

SCALE = (128 ** -0.5) * math.log2(math.e)
LIM_LDS = 1 << 16
LIM_MEM = 1 << 13

class G:
    def __init__(s): s.l = []; s.n = 0
    def __call__(s, x):
        for ln in x.strip("\n").split("\n"):
            if ln.strip(): s.l.append("  " + ln.strip())
    def label(s, x): s.l.append(x + ":")
    def nl(s, p): s.n += 1; return f"L_{p}_{s.n}"
    def text(s): return "\n".join(s.l) + "\n"
g = G()

def vr(a, n): return f"v[{a}:{a+n-1}]"
def sr(a, n): return f"s[{a}:{a+n-1}]"

LANE, VZ, VONE, VT, vN, vKG = 0, 1, 2, 3, 4, 5
VTS = 167
VL16 = 166
sWG, sWV = 2, 3
WS = 4
SR = 8
sXCD, sSLOT, sHF, sJ = 12, 13, 14, 15
P_X, P_KV, P_WQ, P_WUK, P_WUV, P_WO, P_BX, P_W1, P_W2, P_OUT, P_DBG, P_WS = [16 + 2 * i for i in range(12)]
sTAG, sCNT = 28, 29
sPLO, sPHI = 100, 101
DPPM = "row_mask:0xf bank_mask:0xf"

def srd(base, ptr, nbytes):
    g(f"""s_mov_b32 s{base}, s{ptr}
          s_mov_b32 s{base+1}, s{ptr+1}
          s_mov_b32 s{base+2}, {nbytes}
          s_mov_b32 s{base+3}, 0x20000""")

def stamp(k):
    if not OPT["ts"]: return
    g(f"""s_memrealtime vcc
          s_waitcnt lgkmcnt(0)
          v_writelane_b32 v{VTS}, vcc_lo, {k}""")

def ts_flush(role="A"):
    if not OPT["ts"]: return
    if OPT["dbg"]:
        sel = {"A": {1: 0, 2: 16, 6: 6, 7: 8, 8: 10, 9: 22, 10: 11, 11: 13, 14: 20, 15: 21}, "G": {3: 1, 4: 2, 5: 3, 12: 7, 13: 9}}[role]
        Ls = g.nl("dbg")
        g(f"""s_cmp_eq_u32 s{sWV}, {0 if role == "A" else 9}
              s_cbranch_scc0 {Ls}
              s_load_dwordx2 s[40:41], s[0:1], 80
              s_mov_b64 exec, -1
              v_mov_b32 v8, 0
              s_mov_b32 s42, 256
              s_mov_b32 s43, 0x20000""")
        for dst, src in sel.items():
            g(f"v_readlane_b32 s44, v{VTS}, {src}\ns_nop 3\nv_writelane_b32 v8, s44, {dst}")
        if role == "A":
            g(f"v_readlane_b32 s44, v{VTS}, 0\ns_nop 3\ns_not_b32 s44, s44\nv_writelane_b32 v8, s44, 0")
        g(f"""v_lshlrev_b32 v{VT}, 2, v{LANE}
              s_mov_b64 exec, 0xffff
              s_waitcnt lgkmcnt(0)
              buffer_atomic_umax v8, v{VT}, s[40:43], 0 offen""")
        g.label(Ls)
        return
    g(f"""s_mul_i32 s{sCNT}, s{sWG}, 12
          s_add_u32 s{sCNT}, s{sCNT}, s{sWV}
          s_lshl_b32 s{sCNT}, s{sCNT}, 7
          s_add_u32 s{sCNT}, s{sCNT}, {TSOFF}
          s_mov_b64 exec, -1
          s_mov_b32 exec_hi, 0
          v_lshlrev_b32 v{VT}, 2, v{LANE}
          buffer_store_dword v{VTS}, v{VT}, {sr(WS,4)}, s{sCNT} offen""")

def lds_wait(off, target, st, extra="", sleep=0):
    L, Lo = g.nl("w"), g.nl("wo")
    g(f"s_mov_b32 s{sCNT}, {LIM_LDS}")
    if sleep:
        Lf = g.nl("wf")
        g(f"s_branch {Lf}")
    g.label(L)
    if sleep:
        g(f"s_sleep {sleep}")
        g.label(Lf)
    g(f"ds_read_b32 v{VT}, v{VZ} offset:{off}")
    if extra: g(extra)
    g(f"""s_waitcnt lgkmcnt(0)
          v_readfirstlane_b32 s{st}, v{VT}
          s_sub_u32 s{sCNT}, s{sCNT}, 1
          s_cbranch_scc1 {Lo}
          s_cmp_ge_u32 s{st}, {target}
          s_cbranch_scc0 {L}""")
    g.label(Lo)

def lds_inc(off):
    g(f"""s_mov_b64 exec, 1
          ds_add_u32 v{VZ}, v{VONE} offset:{off}
          s_mov_b64 exec, -1""")

def get_tag(vtmp):
    lds_wait(F_TAGV, 1, sTAG, extra=f"ds_read_b32 v{vtmp}, v{VZ} offset:{F_TAG}")
    g(f"v_readfirstlane_b32 s{sTAG}, v{vtmp}")

def wave_sum(v, sdst):
    for mod in ("quad_perm:[1,0,3,2]", "quad_perm:[2,3,0,1]", "row_half_mirror", "row_mirror"):
        g(f"s_nop 1\nv_add_f32_dpp v{v}, v{v}, v{v} {mod} {DPPM}")
    g(f"s_nop 1\nv_add_f32_dpp v{v}, v{v}, v{v} row_bcast:15 row_mask:0xa bank_mask:0xf")
    g(f"s_nop 1\nv_add_f32_dpp v{v}, v{v}, v{v} row_bcast:31 row_mask:0xc bank_mask:0xf")
    g(f"s_nop 1\nv_readlane_b32 s{sdst}, v{v}, 63")

def rne(v):
    g(f"v_cvt_pk_bf16_f32 v{v}, v{v}, v{v}\nv_and_b32 v{v}, 0xffff0000, v{v}")

def ln_stats(x5, tmp, sA, sB, vM, vR):
    u = tmp
    for k in range(5):
        g(f"v_lshlrev_b32 v{u+2*k}, 16, v{x5+k}\nv_and_b32 v{u+2*k+1}, 0xffff0000, v{x5+k}")
    a = u + 10
    g(f"v_add_f32 v{a}, v{u}, v{u+1}")
    for k in range(2, 10): g(f"v_add_f32 v{a}, v{a}, v{u+k}")
    wave_sum(a, sA)
    g(f"s_nop 1\nv_mov_b32 v{vM}, s{sA}\nv_mul_f32 v{vM}, {hex(f32(1.0/640))}, v{vM}")
    for k in range(10): g(f"v_sub_f32 v{u+k}, v{u+k}, v{vM}")
    g(f"v_mul_f32 v{a}, v{u}, v{u}")
    for k in range(1, 10): g(f"v_fmac_f32 v{a}, v{u+k}, v{u+k}")
    wave_sum(a, sB)
    g(f"s_nop 1\nv_mov_b32 v{vR}, s{sB}\nv_mul_f32 v{vR}, {hex(f32(1.0/640))}, v{vR}")
    rne(vR)
    g(f"v_add_f32 v{vR}, {hex(f32(1e-5))}, v{vR}")
    rne(vR)
    g(f"v_sqrt_f32 v{vR}, v{vR}\ns_nop 0")
    rne(vR)
    g(f"v_rcp_f32 v{vR}, v{vR}")
    rne(vM)

def ln_frag(src, dst, t0, vM, vR):
    for k in range(4):
        g(f"""v_lshlrev_b32 v{t0}, 16, v{src+k}
              v_and_b32 v{t0+1}, 0xffff0000, v{src+k}
              v_sub_f32 v{t0}, v{t0}, v{vM}
              v_sub_f32 v{t0+1}, v{t0+1}, v{vM}
              v_cvt_pk_bf16_f32 v{t0+1}, v{t0}, v{t0+1}
              v_lshlrev_b32 v{t0}, 16, v{t0+1}
              v_and_b32 v{t0+1}, 0xffff0000, v{t0+1}
              v_mul_f32 v{t0}, v{t0}, v{vR}
              v_mul_f32 v{t0+1}, v{t0+1}, v{vR}
              v_cvt_pk_bf16_f32 v{dst+k}, v{t0}, v{t0+1}""")

def perm_block(raw, out, order=(0, 1, 2, 3)):
    for p in range(4):
        e = 2 * order[p]
        for d in range(2):
            g(f"v_perm_b32 v{out+4*(2*d)+p}, v{raw+2*(e+1)+d}, v{raw+2*e+d}, s{sPLO}")
            g(f"v_perm_b32 v{out+4*(2*d+1)+p}, v{raw+2*(e+1)+d}, v{raw+2*e+d}, s{sPHI}")

class Landing:
    pending = False
    n = 0
LD = Landing()

def load_block(raw, voff, srdb, sbase, stmp, rowbytes, thr=0, rows=None):
    per = 4095 // rowbytes + 1
    cur = None
    for e in range(8):
        grp, rem = divmod(e, per)
        if grp != cur:
            if grp == 0: so = sbase
            else:
                g(f"s_add_u32 s{stmp}, s{sbase}, {(rows[e] if rows else grp*per)*rowbytes}"); so = stmp
            cur = grp
        if thr:
            g(f"s_waitcnt vmcnt({thr-1})")
            if LD.pending and LD.n >= thr - 1:
                land_now()
        off = f" offset:{rem*rowbytes}" if rem else ""
        g(f"buffer_load_dwordx2 {vr(raw+2*e,2)}, v{voff}, {sr(srdb,4)}, s{so} offen{off} {NT}")
        LD.n += 1

def land_now():
    lds_inc(F_LAND)
    stamp(2)
    LD.pending = False

def land_flush():
    if LD.pending:
        g(f"s_waitcnt vmcnt({LD.n})")
        land_now()

def tagcheck(regs, acc):
    g(f"v_xor_b32 v{acc}, s{sTAG}, v{regs[0]}")
    for r in regs[1:]:
        g(f"v_bitop3_b32 v{acc}, v{r}, s{sTAG}, v{acc} bitop3:0xbe")
    g(f"v_cmp_ne_u32 vcc, 0, v{acc}")

def poll_loads(nm, loads, tags, scnt, acc=VT, sleep=0, mask=True, b8=False, onfail=""):
    L, Lo = g.nl(nm), g.nl(nm + "o")
    g(f"s_mov_b32 s{scnt}, {LIM_MEM}")
    g.label(L)
    g(loads)
    g("s_waitcnt vmcnt(0)")
    (tagcheck8 if b8 else tagcheck)(tags, acc)
    g(f"s_cbranch_vccz {Lo}")
    if onfail: g(onfail)
    if mask: g("s_mov_b64 exec, vcc")
    if sleep: g(f"s_sleep {sleep}")
    g(f"""s_sub_u32 s{scnt}, s{scnt}, 1
          s_cbranch_scc0 {L}""")
    g.label(Lo)
    if mask: g("s_mov_b64 exec, -1")

def flag16_wait(nm, ap):
    L, Lo = g.nl(nm), g.nl(nm + "o")
    g(f"s_mov_b32 s{sCNT}, {LIM_MEM}\ns_lshl_b32 s18, s{sTAG}, 4")
    g.label(L)
    g(f"""s_load_dwordx16 s[48:63], s[{ap}:{ap+1}], 0 glc
          s_sub_u32 s{sCNT}, s{sCNT}, 1
          s_cbranch_scc1 {Lo}
          s_waitcnt lgkmcnt(0)
          s_add_u32 s19, s48, s49""")
    for k in range(2, 16): g(f"s_add_u32 s19, s19, s{48+k}")
    g(f"s_cmp_eq_u32 s19, s18\ns_cbranch_scc0 {L}")
    g.label(Lo)
    g("s_waitcnt lgkmcnt(0)")

sTB = 66
def tagbytes():
    g(f"""s_and_b32 s{sTB}, s{sTAG}, 1
          s_mul_i32 s{sTB}, s{sTB}, 0x01010101
          s_and_b32 s{sTB+1}, s{sTAG}, 0xfefefefe
          s_or_b32 s{sTB}, s{sTB}, s{sTB+1}
          s_lshr_b32 s{sTB+1}, s{sTB}, 8
          s_lshr_b32 s{sTB+2}, s{sTB}, 16
          s_lshr_b32 s{sTB+3}, s{sTB}, 24""")
def tagput(regs, vmask):
    for d, r in enumerate(regs): g(f"v_bfi_b32 v{r}, v{vmask}, s{sTB+d}, v{r}")
def tagcheck8(bases, acc):
    first = True
    for b in bases:
        for d in range(4):
            if first: g(f"v_xor_b32 v{acc}, s{sTB+d}, v{b+d}"); first = False
            else: g(f"v_bitop3_b32 v{acc}, v{b+d}, s{sTB+d}, v{acc} bitop3:0xbe")
    g(f"v_and_b32 v{acc}, 0xff, v{acc}\nv_cmp_ne_u32 vcc, 0, v{acc}")

def fswz(dst, i, t):
    g(f"""v_lshrrev_b32 v{t}, 1, v{i}
          v_xor_b32 v{dst}, v{t}, v{i}
          v_and_b32 v{dst}, 4, v{dst}
          v_and_or_b32 v{dst}, v{i}, 2, v{dst}
          v_bfe_u32 v{t}, v{i}, 3, 1
          v_or_b32 v{dst}, v{dst}, v{t}""")

def sum_groups(base, n):
    step = 1
    while step < n:
        for a in range(0, n - step, 2 * step):
            g(f"v_pk_add_f32 {vr(base+4*a,2)}, {vr(base+4*a,2)}, {vr(base+4*(a+step),2)}")
            g(f"v_pk_add_f32 {vr(base+4*a+2,2)}, {vr(base+4*a+2,2)}, {vr(base+4*(a+step)+2,2)}")
        step *= 2

def red16(regs, full=True):
    for mod in ("row_ror:4", "row_ror:8"):
        g("s_nop 1")
        for r in regs: g(f"v_add_f32_dpp v{r}, v{r}, v{r} {mod} {DPPM}")
    for sw in (("v_permlane16_swap_b32", "v_permlane32_swap_b32") if full else ("v_permlane16_swap_b32",)):
        for r in regs: g(f"v_mov_b32 v{r+1}, v{r}")
        g("s_nop 1")
        for r in regs: g(f"{sw} v{r}, v{r+1}")
        for r in regs: g(f"v_add_f32 v{r}, v{r}, v{r+1}")

def mfma(d, a, b, first):
    g(f"v_mfma_f32_16x16x32_bf16 {vr(d,4)}, {vr(a,4)}, {vr(b,4)}, {'0' if first else vr(d,4)}")

K = NAME + "_kernel"
g(f"""s_cmp_ge_u32 s{sWG}, 256
      s_cbranch_scc1 L_END
      v_lshrrev_b32 v{VT}, 6, v0
      v_and_b32 v{LANE}, 63, v0
      v_readfirstlane_b32 s{sWV}, v{VT}
      v_mov_b32 v{VZ}, 0
      v_lshrrev_b32 v{vKG}, 4, v{LANE}
      s_cmp_eq_u32 s{sWV}, 9
      s_cbranch_scc0 L_noinit
      v_lshlrev_b32 v8, 2, v{LANE}
      v_cmp_eq_u32 vcc, 1, v{vKG}
      v_mov_b32 v10, 0xff800000
      s_nop 0
      v_cndmask_b32 v9, v{VZ}, v10, vcc
      ds_write_b32 v8, v9
      s_waitcnt lgkmcnt(0)""")
g.label("L_noinit")
g(f"""s_load_dwordx16 s[16:31], s[0:1], 0
      s_load_dwordx8 s[32:39], s[0:1], 64
      s_barrier
      v_mov_b32 v{VONE}, 1
      v_and_b32 v{vN}, 15, v{LANE}
      s_and_b32 s{sXCD}, s{sWG}, 7
      s_lshr_b32 s{sSLOT}, s{sWG}, 3
      s_lshr_b32 s{sHF}, s{sSLOT}, 3
      s_lshl_b32 s{sJ}, s{sXCD}, 2
      s_add_u32 s{sHF}, s{sHF}, s{sJ}
      s_and_b32 s{sJ}, s{sSLOT}, 7
      s_mov_b32 s{sPLO}, 0x05040100
      s_mov_b32 s{sPHI}, 0x07060302""")
if OPT["ts"]:
    g(f"v_mov_b32 v{VTS}, 0")
    stamp(0)
g(f"""s_cmp_lt_u32 s{sWV}, 5
      s_cbranch_scc1 L_A
      s_cmp_eq_u32 s{sWV}, 5
      s_cbranch_scc1 L_LN
      s_cmp_lt_u32 s{sWV}, 8
      s_cbranch_scc1 L_A5
      s_cmp_eq_u32 s{sWV}, 9
      s_cbranch_scc1 L_G9
      s_cmp_eq_u32 s{sWV}, 11
      s_cbranch_scc1 L_FFN""")
g(f"v_lshrrev_b32 v32, 3, v{LANE}")
fswz(33, 32, 34)
g(f"""v_and_b32 v34, 7, v{LANE}
      v_xor_b32 v33, v33, v34
      v_lshlrev_b32 v33, 4, v33
      v_lshl_add_u32 v36, v32, 10, v33
      s_bfe_u32 s43, s{sWV}, 0x10001
      s_and_b32 s40, s43, 1
      s_mul_i32 s40, s40, 80
      v_xor_b32 v36, s40, v36
      s_lshr_b32 s41, s{sSLOT}, 1""")
if OPT["ksmap"] == 0:
    g(f"s_lshl_b32 s41, s41, 3\ns_add_u32 s41, s41, s{sXCD}             ; ks")
else:
    g(f"s_lshl_b32 s42, s{sXCD}, 4\ns_add_u32 s41, s41, s42             ; ks")
g(f"""s_lshl_b32 s41, s41, 17                 ; ks*128KB
      s_lshl_b32 s42, s43, 13
      s_add_u32 s41, s41, s42                 ; + kgp*8192
      s_lshl_b32 s42, s43, 10
      s_add_u32 s42, s42, {KV}
      s_waitcnt lgkmcnt(0)""")
srd(44, P_KV, 16777216)
srd(WS, P_WS, WS_REC)
if OPT["gate"]:
    lds_wait(F_Q, OPT["gate"], 40, sleep=1)
stamp(8)
g.label("L_ld")
for cb in range(8):
    g(f"s_add_u32 m0, s42, {cb*(16384-128)}")
    g(f"s_waitcnt vmcnt({OPT['inflight']-1})")
    g(f"buffer_load_dwordx4 v36, {sr(44,4)}, s41 offen offset:{cb*128} {NT} lds")
g(f"""s_add_u32 s41, s41, {2*8192}
      s_add_u32 s42, s42, {2*1024}
      s_add_u32 s43, s43, 2
      s_cmp_lt_u32 s43, 16
      s_cbranch_scc1 L_ld""")
lds_inc(F_ISS)
stamp(1)
g("s_branch L_G")
g.label("L_LN")
g(f"""s_setprio 3
      v_mul_u32_u24 v6, 20, v{LANE}
      s_mov_b32 s{SR+2}, 1280
      s_mov_b32 s{SR+3}, 0x20000
      s_waitcnt lgkmcnt(0)
      s_mov_b32 s{SR}, s{P_X}
      s_mov_b32 s{SR+1}, s{P_X+1}
      buffer_load_dwordx4 v[8:11], v6, {sr(SR,4)}, 0 offen
      buffer_load_dword v12, v6, {sr(SR,4)}, 0 offen offset:16""")
srd(WS, P_WS, WS_REC)
g(f"v_add_u32 v6, {XNL}, v6\ns_waitcnt vmcnt(0)")
stamp(16)
U, E, Dd = 32, 44, 56
for k in range(5):
    g(f"v_lshlrev_b32 v{U+2*k}, 16, v{8+k}\nv_and_b32 v{U+2*k+1}, 0xffff0000, v{8+k}")
g(f"""v_pk_add_f32 v[14:15], {vr(U,2)}, {vr(U+2,2)}
      v_pk_add_f32 v[16:17], {vr(U+4,2)}, {vr(U+6,2)}
      v_pk_add_f32 v[14:15], v[14:15], {vr(U+8,2)}
      v_pk_add_f32 v[14:15], v[14:15], v[16:17]
      v_add_f32 v14, v14, v15""")
wave_sum(14, 40)
g(f"""s_nop 1
      v_mov_b32 v18, {hex(f32(-1.0/640))}
      v_mul_f32 v18, s40, v18                 ; -mean
      v_mov_b32 v19, v18""")
for k in range(5): g(f"v_pk_add_f32 {vr(E+2*k,2)}, {vr(U+2*k,2)}, v[18:19]")
g(f"v_pk_mul_f32 v[14:15], {vr(E,2)}, {vr(E,2)}")
for k in range(1, 5): g(f"v_pk_fma_f32 v[14:15], {vr(E+2*k,2)}, {vr(E+2*k,2)}, v[14:15]")
g(f"""v_cvt_pk_bf16_f32 v20, v18, v18
      v_add_f32 v14, v14, v15
      v_and_b32 v20, 0xffff0000, v20
      v_mov_b32 v21, v20""")
fill = [f"v_pk_add_f32 {vr(E+2*k,2)}, {vr(U+2*k,2)}, v[20:21]" for k in range(5)]
fill += [f"v_cvt_pk_bf16_f32 v{8+k}, v{E+2*k}, v{E+2*k+1}" for k in range(5)]
fill += [x for k in range(5) for x in (f"v_lshlrev_b32 v{Dd+2*k}, 16, v{8+k}", f"v_and_b32 v{Dd+2*k+1}, 0xffff0000, v{8+k}")]
steps = [f"v_add_f32_dpp v14, v14, v14 {m} {DPPM}" for m in ("quad_perm:[1,0,3,2]", "quad_perm:[2,3,0,1]", "row_half_mirror", "row_mirror")]
steps += ["v_add_f32_dpp v14, v14, v14 row_bcast:15 row_mask:0xa bank_mask:0xf", "v_add_f32_dpp v14, v14, v14 row_bcast:31 row_mask:0xc bank_mask:0xf", "v_readlane_b32 s42, v14, 63"]
for st_ in steps:
    g(st_); g(fill.pop(0)); g(fill.pop(0))
g(f"""v_mov_b32 v22, {hex(f32(1.0/640))}
      v_mul_f32 v22, s42, v22""")
rne(22)
g(f"v_add_f32 v22, {hex(f32(1e-5))}, v22")
rne(22)
g("v_sqrt_f32 v22, v22"); g(fill.pop(0))
rne(22)
g("v_rcp_f32 v22, v22")
while fill: g(fill.pop(0))
g("v_mov_b32 v23, v22")
for k in range(5): g(f"v_pk_mul_f32 {vr(Dd+2*k,2)}, {vr(Dd+2*k,2)}, v[22:23]")
for k in range(5): g(f"v_cvt_pk_bf16_f32 v{8+k}, v{Dd+2*k}, v{Dd+2*k+1}")
g(f"""ds_write2_b32 v6, v8, v9 offset0:0 offset1:1
      ds_write2_b32 v6, v10, v11 offset0:2 offset1:3
      ds_write_b32 v6, v12 offset:16
      ds_write_b32 v{VZ}, v{VONE} offset:{F_XN}""")
stamp(17)
g("s_branch L_A_q")
g.label("L_A5")
g(f"""s_sub_u32 s43, s{sWV}, 6
      v_xor_b32 v8, v{vN}, v{vKG}
      v_lshlrev_b32 v8, 4, v8
      v_lshl_add_u32 v8, v{vKG}, 13, v8
      s_lshl_b32 s40, s43, 6
      v_xor_b32 v8, s40, v8                   ; u&3 = r
      v_xor_b32 v9, 128, v8                   ; u&3 = r+2
      s_lshl_b32 s48, s{sJ}, 19               ; 64*j rows * 8192
      s_lshl_b32 s49, s{sHF}, 8
      s_add_u32 s48, s48, s49
      s_lshl_b32 s49, s43, 15
      s_add_u32 s48, s48, s49
      s_lshl_b32 s50, s43, 10
      s_getpc_b64 s[44:45]""")
g.label("L_pc")
g(f"""s_sub_u32 s44, s44, L_pc-{K}
      s_subb_u32 s45, s45, 0
      s_lshl_b32 s41, s{sSLOT}, 1
      s_add_u32 s41, s41, s43
      s_lshl_b32 s41, s41, 2
      v_add_u32 v10, s41, v{LANE}
      v_lshlrev_b32 v10, 7, v10
      s_mov_b32 s41, L_CODE_END-{K}
      v_cmp_gt_u32 s[46:47], s41, v10
      s_waitcnt lgkmcnt(0)""")
srd(WS, P_WS, WS_REC)
srd(SR, P_WUK, 4194304)
lds_wait(F_QI, 5, 41)
for k in range(8):
    g(f"s_add_u32 m0, s50, {QL + k*2048}")
    g(f"s_add_u32 s49, s48, {k*8*8192}")
    g(f"buffer_load_dwordx4 v{8+(k&1)}, {sr(SR,4)}, s49 offen {NT} lds")
g(f"""s_and_b64 exec, s[46:47], 0xf
      s_cbranch_execz L_nopf
      global_load_dword v159, v10, s[44:45]""")
g.label("L_nopf")
g("s_mov_b64 exec, -1\ns_branch L_A_q")
g.label("L_G9")
g(f"""s_setprio 3
      s_waitcnt lgkmcnt(0)
      s_load_dword s40, s[{P_WS}:{P_WS+1}], {EPOCH}""")
srd(WS, P_WS, WS_REC)
g(f"""v_lshlrev_b32 v8, 4, v{vN}              ; n*16
      s_lshl_b32 s41, s{sHF}, 3
      s_add_u32 s41, s41, s{sJ}
      s_lshl_b32 s41, s41, 8
      s_add_u32 s43, s41, {QAM}
      s_lshl_b32 s42, s{sHF}, 14
      s_lshl_b32 s41, s{sJ}, 8
      s_add_u32 s42, s42, s41
      s_add_u32 s42, s42, {QM}
      s_add_u32 s45, s42, 8192
      v_lshl_add_u32 v7, v{vKG}, 11, v8
      v_mov_b32 v11, 1
      s_waitcnt lgkmcnt(0)
      s_mul_i32 s{sTAG}, s40, 1664525
      s_add_u32 s{sTAG}, s{sTAG}, 1013904223
      v_mov_b32 v10, s{sTAG}
      v_mov_b32 v13, s{sTAG}
      v_mov_b32 v15, s{sTAG}
      ds_write_b64 v{VZ}, v[10:11] offset:{F_TAG}""")
stamp(1)
if OPT["warm"]:
    g(f"""s_and_b32 s46, s{sSLOT}, 1
          s_lshl_b32 s46, s46, 7
          s_add_u32 s46, s46, s{sXCD}
          s_lshl_b32 s46, s46, 7
          s_add_u32 s46, s46, {HD}
          v_lshlrev_b32 v9, 10, v{vN}
          v_and_b32 v16, 1, v{vKG}
          v_lshl_add_u32 v9, v16, 15, v9""")
    lds_wait(F_QI, 5, 40)
    g(f"""buffer_load_dwordx4 v[16:19], v7, {sr(WS,4)}, s42 offen sc1
          buffer_load_dwordx4 v[16:19], v7, {sr(WS,4)}, s45 offen sc1
          buffer_load_dwordx4 v[16:19], v8, {sr(WS,4)}, s43 offen sc1
          buffer_load_dword v16, v9, {sr(WS,4)}, s46 offen sc1""")
lds_wait(F_Q, 5, 40)
g("\n".join(f"ds_read_b128 {vr(32+4*b,4)}, v8 offset:{REDQ+256*b}" for b in range(5)))
g("s_waitcnt lgkmcnt(0)")
sum_groups(32, 5)
g(f"""v_cvt_pk_bf16_f32 v12, v32, v33
      v_cvt_pk_bf16_f32 v14, v34, v35
      buffer_store_dwordx4 v[12:15], v7, {sr(WS,4)}, s42 offen sc1
      buffer_store_dwordx4 v[12:15], v7, {sr(WS,4)}, s45 offen sc1
      ds_write_b32 v{VZ}, v{VONE} offset:{F_QP}
      s_mov_b64 exec, 0xffff""")
stamp(2)
lds_wait(F_QA, 8, 40)
g("\n".join(f"ds_read_b128 {vr(32+4*b,4)}, v8 offset:{REDQA+256*b}" for b in range(8)))
g("s_waitcnt lgkmcnt(0)")
sum_groups(32, 8)
for r in range(4): g(f"v_mul_f32 v{32+r}, {hex(f32(SCALE))}, v{32+r}")
g(f"""v_cvt_pk_bf16_f32 v12, v32, v33
      v_cvt_pk_bf16_f32 v14, v34, v35
      buffer_store_dwordx4 v[12:15], v8, {sr(WS,4)}, s43 offen sc1
      ds_write_b32 v{VZ}, v{VONE} offset:{F_QAP}
      s_mov_b64 exec, -1
      s_setprio 0""")
stamp(3)
lds_wait(F_ISS, 2, 40, sleep=2)
g("s_branch L_G_uv9")

g.label("L_A")
g(f"""s_setprio 2
      v_lshlrev_b32 v24, 16, v{vKG}
      v_lshl_add_u32 v24, v{vN}, 3, v24       ; + n*8
      s_lshr_b32 s40, s{sJ}, 1                ; mq
      s_mul_i32 s40, s40, 160
      s_lshl_b32 s41, s{sWV}, 5
      s_add_u32 s40, s40, s41
      s_lshl_b32 s41, s40, 13                 ; row0*8192
      s_lshl_b32 s42, s{sHF}, 8
      s_add_u32 s41, s41, s42
      s_and_b32 s42, s{sJ}, 1
      s_lshl_b32 s42, s42, 7
      s_add_u32 s41, s41, s42                 ; w_q soffset
      s_lshl_b32 s40, s40, 1
      v_lshlrev_b32 v112, 4, v{vKG}
      v_add_u32 v112, s40, v112
      s_mov_b32 s46, 5242880
      s_mov_b32 s47, 0x20000
      s_waitcnt lgkmcnt(0)
      s_mov_b32 s44, s{P_WQ}
      s_mov_b32 s45, s{P_WQ+1}
      s_nop 3""")
load_block(32, 24, 44, 41, 42, 8192)
lds_inc(F_QI)
srd(WS, P_WS, WS_REC)
g(f"""v_lshlrev_b32 v113, 4, v{vN}
      s_lshl_b32 s40, s{sWV}, 8
      v_add_u32 v113, s40, v113""")
g.label("L_A_q")
g("s_setprio 2")
g(f"""s_and_b32 s40, s{sSLOT}, 1              ; g
      s_lshl_b32 s41, s40, 4
      s_lshl_b32 s42, s{sWV}, 1
      s_add_u32 s41, s41, s42                 ; 16g+2w
      s_lshl_b32 s41, s41, 11
      s_add_u32 s20, s41, {QAM}
      s_lshr_b32 s21, s{sSLOT}, 1             ; mi 0..15
      s_lshl_b32 s42, s40, 7                  ; 16g*8
      s_add_u32 s42, s42, s{sWV}
      s_lshl_b32 s42, s42, 3
      s_add_u32 s42, s42, s{sXCD}
      s_lshl_b32 s42, s42, 4
      s_add_u32 s42, s42, s21
      s_lshl_b32 s42, s42, 7
      s_add_u32 s26, s42, {IB}
      s_add_u32 s22, s26, {2*8*8*2048}
      s_lshl_b32 s42, s40, 7                  ; 16g*8
      s_add_u32 s42, s42, s{sXCD}
      s_lshl_b32 s42, s42, 4
      s_add_u32 s42, s42, s21
      s_lshl_b32 s42, s42, 3
      s_add_u32 s27, s42, {HD}
      s_add_u32 s23, s27, 0x8000
      s_lshl_b32 s42, s{sHF}, 3
      s_add_u32 s42, s42, s{sWV}
      s_lshl_b32 s42, s42, 7
      s_add_u32 s31, s42, {HD}
      s_lshl_b32 s42, s{sHF}, 3
      s_add_u32 s42, s42, s{sJ}
      s_lshl_b32 s42, s42, 3
      s_add_u32 s42, s42, s{sWV}              ; (h*8+j)*8+w
      s_lshl_b32 s30, s42, 11
      s_add_u32 s30, s30, {IB}
      s_lshl_b32 s42, s42, 8
      s_add_u32 s42, s42, {QM}
      s_add_u32 s32, s{WS}, s42
      s_addc_u32 s33, s{WS+1}, 0
      s_and_b32 s40, s{sWV}, 1
      s_lshl_b32 s40, s40, 3                  ; 8*dhalf'
      v_xor_b32 v6, s40, v{vN}
      v_lshlrev_b32 v6, 4, v6
      v_lshl_add_u32 v6, v{LANE}, 8, v6       ; row*256 + ...
      v_lshlrev_b32 v10, 2, v{LANE}
      s_lshl_b32 s40, s{sWV}, 8
      v_add_u32 v10, s40, v10
      v_mov_b32 v8, 0
      v_mov_b32 v9, 0""")
W = 80
QKA, PVA = 32, 96
fswz(24, vN, 25)
g(f"""v_xor_b32 v24, v24, v{vKG}
      v_lshlrev_b32 v24, 4, v24
      v_and_b32 v25, 7, v{vN}
      v_lshl_add_u32 v24, v25, 7, v24         ; + (i&7)*128
      v_lshrrev_b32 v25, 3, v{vN}
      v_lshl_add_u32 v24, v25, 10, v24        ; + (i>>3)*1024
      s_lshl_b32 s42, s{sWV}, 11
      s_add_u32 s42, s42, {KV}
      v_add_u32 v160, s42, v24
      v_xor_b32 v161, 64, v160
      v_add_u32 v162, 0x10000, v160
      v_add_u32 v163, 0x10000, v161
      v_lshrrev_b32 v26, 2, v{LANE}           ; i16""")
fswz(24, 26, 25)
g(f"""s_and_b32 s42, s{sWV}, 3
      s_lshl_b32 s42, s42, 1
      v_bfe_u32 v25, v{LANE}, 1, 1
      v_or_b32 v25, s42, v25                  ; xi = 2(w&3) + (c'>>1)
      v_xor_b32 v24, v24, v25
      v_lshlrev_b32 v24, 4, v24
      v_and_b32 v25, 1, v{LANE}
      v_lshl_add_u32 v24, v25, 3, v24
      v_and_b32 v25, 7, v26
      v_lshl_add_u32 v24, v25, 7, v24
      v_lshrrev_b32 v25, 3, v26
      v_lshl_add_u32 v24, v25, 10, v24
      s_lshr_b32 s42, s{sWV}, 2
      s_lshl_b32 s42, s42, 14
      s_add_u32 s42, s42, {KV}
      v_add_u32 v164, s42, v24
      v_add_u32 v165, 0x10000, v164
      v_lshrrev_b32 v24, 1, v{vN}             ; xi
      v_and_b32 v25, 4, v24
      v_lshl_or_b32 v25, v25, 1, v24          ; sigma
      s_lshl_b32 s42, s{sWV}, 1
      v_xor_b32 v25, s42, v25
      v_lshlrev_b32 v25, 4, v25
      v_lshl_add_u32 v25, v24, 8, v25         ; + xi*256
      v_lshl_add_u32 v25, v{vKG}, 11, v25     ; + (l>>4)*2048
      v_and_b32 v24, 1, v{LANE}
      v_lshl_add_u32 v28, v24, 3, v25
      v_xor_b32 v29, 16, v28
      v_xor_b32 v30, v{vN}, v{vKG}
      v_lshlrev_b32 v30, 4, v30
      v_lshl_add_u32 v30, v{vKG}, 8, v30
      v_xor_b32 v31, {12*16}, v30             ; odd s
      v_lshlrev_b32 v166, 4, v{LANE}          ; lane*16""")
g(f"s_cmp_ge_u32 s{sWV}, 5\ns_cbranch_scc1 L_A_q2")
for p in range(4):
    g(f"s_waitcnt vmcnt({6-2*p})")
    e = 2 * p
    for d in range(2):
        g(f"v_perm_b32 v{48+8*d+p}, v{32+2*(e+1)+d}, v{32+2*e+d}, s{sPLO}")
        g(f"v_perm_b32 v{48+8*d+4+p}, v{32+2*(e+1)+d}, v{32+2*e+d}, s{sPHI}")
stamp(18)
lds_wait(F_XN, 1, 19, extra=f"ds_read_b128 v[116:119], v112 offset:{XNL}")
for t in range(4): mfma(64 + 4 * t, 116, 48 + 4 * t, True)
g(f"""s_nop 6
      v_mov_b32 v65, v68
      v_mov_b32 v66, v72
      v_mov_b32 v67, v76
      s_mov_b64 exec, 0xffff
      ds_write_b128 v113, v[64:67] offset:{REDQ}
      s_mov_b64 exec, 1
      ds_add_u32 v{VZ}, v{VONE} offset:{F_Q}
      s_mov_b64 exec, -1""")
g.label("L_A_q2")
stamp(2)
get_tag(7)
g(f"s_lshl_b32 s18, s{sTAG}, 5              ; 32*TAG")
lds_wait(F_QP, 1, 19, sleep=1)
if OPT["d1"]: g(f"s_sleep {OPT['d1']}")
stamp(3)
L, Lo = g.nl("h1"), g.nl("h1o")
g(f"s_mov_b32 s{sCNT}, {LIM_MEM}")
g.label(L)
for k in range(4):
    g(f"s_load_dwordx16 {sr(36+16*k,16)}, s[32:33], {64*k} glc")
g(f"""s_sub_u32 s{sCNT}, s{sCNT}, 1
      s_cbranch_scc1 {Lo}
      s_waitcnt lgkmcnt(0)
      s_cmp_eq_u32 s99, s{sTAG}
      s_cbranch_scc0 {L}
      s_add_u32 s19, s37, s39""")
for k in range(2, 32):
    g(f"s_add_u32 s19, s19, s{37+2*k}")
g(f"s_cmp_eq_u32 s19, s18\ns_cbranch_scc0 {L}")
g.label(Lo)
stamp(1)
g(f"""s_cmp_lt_u32 s{sWV}, 6
      s_cbranch_scc1 L_nouk
      s_waitcnt vmcnt(0)""")
lds_inc(F_UK)
g.label("L_nouk")
lds_wait(F_UK, 2, 19)
for e in range(8):
    if e: g(f"v_xor_b32 v7, {e*16}, v6")
    g(f"ds_read_b128 {vr(W+4*e,4)}, v{6 if e == 0 else 7} offset:{QL}")
for k in range(32):
    if k % 4 == 0: g(f"s_waitcnt lgkmcnt({7 - k//4})")
    g(f"v_dot2c_f32_bf16 v{8+(k&1)}, s{36+2*k}, v{W+k}")
g(f"""s_nop 2
      v_add_f32 v8, v8, v9
      ds_write_b32 v10, v8 offset:{REDQA}""")
lds_inc(F_QA)
stamp(4)
lds_wait(F_QAP, 1, 42, sleep=1)
lds_wait(F_ISS, OPT["h2iss"], 42, sleep=1)
h2_loads = "\n".join(f"buffer_load_dwordx4 {vr(8+4*n,4)}, v{VL16}, {sr(WS,4)}, s20 offen offset:{1024*n} sc1" for n in range(4))
g(h2_loads)
stamp(5)
lds_wait(F_LAND, 2, 42)
stamp(6)
for s in range(16):
    cb = s >> 1
    a = 160 + (s & 1) + (2 if cb >= 4 else 0)
    g(f"ds_read_b128 {vr(QKA+4*s,4)}, v{a} offset:{(cb&3)*16384}")
L, Lo = g.nl("h2c"), g.nl("h2co")
g(f"s_mov_b32 s43, {LIM_MEM}")
g.label(L)
g("s_waitcnt vmcnt(0)")
tagcheck([9, 11, 13, 15, 17, 19, 21, 23], 24)
g(f"""s_cbranch_vccz {Lo}
      s_sub_u32 s43, s43, 1
      s_cbranch_scc1 {Lo}
      s_sleep {OPT["bk2"]}
      s_mov_b64 exec, vcc""")
g(h2_loads)
g(f"s_mov_b64 exec, -1\ns_branch {L}")
g.label(Lo)
stamp(7)
for n in range(4):
    g(f"v_mov_b32 v{9+4*n}, v{10+4*n}")
lds_wait(F_QA, 8, 42)
for n in range(4):
    g(f"ds_write_b64 v{28+(n>>1)}, {vr(8+4*n,2)} offset:{QL+(n&1)*8192}")
lds_inc(F_STG)
for i in range(4):
    for u in range(4):
        for hh in range(2):
            T = 2 * u + hh
            g(f"ds_read_b64_tr_b16 {vr(PVA+16*i+4*u+2*hh,2)}, v{164+(i>>1)} offset:{(i&1)*32768+T*2048}")
g(f"""s_lshr_b32 s42, s{sWV}, 1
      s_lshl_b32 s42, s42, 10
      s_and_b32 s43, s{sWV}, 1
      s_lshl_b32 s43, s43, 3
      s_add_u32 s42, s42, s43
      v_add_u32 v7, s42, v{VL16}
      v_lshlrev_b32 v6, 5, v{vN}
      s_lshl_b32 s42, s{sWV}, 2
      v_add_u32 v29, s42, v6
      v_lshrrev_b32 v24, 3, v{vN}
      v_lshl_add_u32 v24, v{vKG}, 2, v24      ; head = 4q + (j>>3)
      v_lshlrev_b32 v28, 17, v24              ; * 8*8*2048
      v_and_b32 v24, 7, v{vN}
      v_lshl_add_u32 v28, v24, 4, v28
      s_mov_b32 s43, 0x3f803f80
      s_and_b32 s42, s{sTAG}, 1
      s_mul_i32 s42, s42, 0x01010101
      s_and_b32 s44, s{sTAG}, 0xfefefefe
      s_or_b32 s42, s42, s44
      v_and_b32 v24, 3, v{LANE}
      v_lshlrev_b32 v24, 3, v24
      v_lshrrev_b32 v24, v24, s42
      v_lshl_or_b32 v24, v24, 15, v24
      s_mov_b32 s44, 0x00010001""")
TP = 160
g(f"v_and_b32 v25, 0xff, v24\nv_lshlrev_b32 v24, 15, v25\nv_or_b32 v24, v24, v25")
for d in range(4):
    g(f"v_lshrrev_b32 v25, {2*d}, v24\nv_and_b32 v{TP+d}, s44, v25")
def bread(s): return f"ds_read_b128 {vr(8+4*(s&3),4)}, v{30+(s&1)} offset:{QL+s*1024}"
lds_wait(F_STG, 8, 42)
stamp(8)
g("\n".join(bread(s) for s in range(4)))
SA = 24
for s in range(16):
    g(f"s_waitcnt lgkmcnt({min(3, 15-s)})")
    mfma(SA, QKA + 4 * s, 8 + 4 * (s & 3), s == 0)
    if s + 4 < 16: g(bread(s + 4))
VM = 10
if OPT["amax"]:
    g(f"""v_lshlrev_b32 v8, 2, v{vN}
          v_mov_b32 v11, 0
          s_nop 5
          v_max3_f32 v9, v{SA}, v{SA+1}, v{SA+2}
          v_max_f32 v9, v9, v{SA+3}
          ds_max_f32 v8, v9 offset:{RMAX}""")
    lds_inc(F_MAX)
    stamp(14)
    lds_wait(F_MAX, 8, 42, extra=f"ds_read_b32 v{VM}, v8 offset:{RMAX}")
else:
    g(f"""v_mov_b32 v11, 0
          s_nop 6
          v_max3_f32 v9, v{SA}, v{SA+1}, v{SA+2}
          v_max_f32 v9, v9, v{SA+3}
          v_mov_b32 v8, v9
          s_nop 1
          v_permlane16_swap_b32 v9, v8
          v_max_f32 v9, v9, v8
          v_mov_b32 v8, v9
          s_nop 1
          v_permlane32_swap_b32 v9, v8
          v_max_f32 v9, v9, v8
          s_mov_b64 exec, 0xffff
          ds_write_b32 v29, v9 offset:{RMX}
          s_mov_b64 exec, 1
          ds_add_u32 v{VZ}, v{VONE} offset:{F_MAX}
          s_mov_b64 exec, -1""")
    stamp(14)
    lds_wait(F_MAX, 8, 42, extra=f"ds_read_b128 v[12:15], v6 offset:{RMX}\nds_read_b128 v[16:19], v6 offset:{RMX+16}")
    g(f"""v_max3_f32 v{VM}, v12, v13, v14
          v_max3_f32 v16, v15, v16, v17
          v_max3_f32 v{VM}, v{VM}, v18, v19
          v_max_f32 v{VM}, v{VM}, v16""")
for r in range(4): g(f"v_sub_f32 v{SA+r}, v{SA+r}, v{VM}")
for r in range(4): g(f"v_exp_f32 v{SA+r}, v{SA+r}")
g(f"""v_lshlrev_b32 v15, 10, v{vN}
      v_cvt_pk_bf16_f32 v12, v{SA}, v{SA+1}
      v_cvt_pk_bf16_f32 v13, v{SA+2}, v{SA+3}
      ds_write_b64 v7, v[12:13] offset:{PL}""")
lds_inc(F_P)
g(f"""v_dot2c_f32_bf16 v11, s43, v12
      v_dot2c_f32_bf16 v11, s43, v13
      v_lshlrev_b32 v14, 2, v29               ; n*128 + T*16
      v_lshl_add_u32 v14, v{vKG}, 2, v14      ; + q*4
      s_cmp_eq_u32 s{sWV}, 0
      ds_write_b32 v14, v11 offset:{RLP}
      s_mov_b64 exec, 1
      ds_add_u32 v{VZ}, v{VONE} offset:{F_L}
      s_cbranch_scc0 L_nomh
      s_mov_b64 exec, 0xffff
      v_mov_b32 v11, s{sTAG}
      buffer_store_dwordx2 v[10:11], v15, {sr(WS,4)}, s27 offen sc1""")
g.label("L_nomh")
g("s_mov_b64 exec, -1")
stamp(15)
PF = 32
lds_wait(F_P, 8, 42)
stamp(9)
g("\n".join(f"ds_read_b128 {vr(PF+4*u,4)}, v{VL16} offset:{PL+1024*u}" for u in range(4)))
OA = 48
for u in range(4):
    g(f"s_waitcnt lgkmcnt({3-u})")
    for i in range(4): mfma(OA + 4 * i, PF + 4 * u, PVA + 16 * i + 4 * u, u == 0)
GR = 64
g("s_nop 6")
for a in range(2):
    A0, B0, T0 = GR + 4 * a, GR + 4 * a + 2, 72
    for d in range(2):
        g(f"v_perm_b32 v{A0+d}, v{OA+8*d+4+2*a}, v{OA+8*d+2*a}, s{sPHI}")
        g(f"v_perm_b32 v{B0+d}, v{OA+8*d+4+2*a+1}, v{OA+8*d+2*a+1}, s{sPHI}")
    g("s_nop 0")
    for d in range(2): g(f"v_mov_b32_dpp v{T0+d}, v{A0+d} row_ror:8 {DPPM}")
    for d in range(2): g(f"v_mov_b32_dpp v{A0+d}, v{B0+d} row_ror:8 row_mask:0xf bank_mask:0xc")
    for d in range(2): g(f"v_mov_b32_dpp v{B0+d}, v{T0+d} quad_perm:[0,1,2,3] row_mask:0xf bank_mask:0x3")
    for d in range(4): g(f"v_xad_u32 v{A0+d}, v{TP+d}, s44, v{A0+d}")
    for d in range(4): g(f"v_bfi_b32 v{A0+d}, s44, v{TP+d}, v{A0+d}")
    g(f"buffer_store_dwordx4 {vr(A0,4)}, v28, {sr(WS,4)}, s{26 if a == 0 else 22} offen sc1")
stamp(10)
MK = 76
g(f"""v_and_b32 v12, 1, v{LANE}
      v_lshlrev_b32 v12, 4, v12
      v_mov_b32 v13, 0xffff
      v_lshlrev_b32 v13, v12, v13
      v_bfe_u32 v12, v{LANE}, 1, 2""")
for p in range(4):
    g(f"v_cmp_eq_u32 vcc, {p}, v12\ns_nop 1\nv_cndmask_b32 v{MK+p}, v{VZ}, v13, vcc")
g(f"""v_lshlrev_b32 v16, 2, v{vN}
      s_lshl_b32 s42, s{sWV}, 6
      v_add_u32 v16, s42, v16
      v_lshrrev_b32 v17, 3, v{LANE}
      v_lshlrev_b32 v17, 2, v17
      v_add_u32 v17, s42, v17
      v_lshrrev_b32 v18, 3, v{vN}             ; a = j>>3
      s_lshl_b32 s42, s{sWV}, 1
      v_add_u32 v19, s42, v18
      v_mul_u32_u24 v19, 144, v19
      v_and_b32 v20, 7, v{vN}
      v_lshl_add_u32 v19, v20, 4, v19
      v_and_b32 v20, 1, v{vKG}
      v_lshl_add_u32 v19, v20, 3, v19
      v_lshrrev_b32 v20, 1, v{vKG}
      v_cmp_eq_u32 s[46:47], v18, v20
      v_lshlrev_b32 v21, 7, v{vN}
      v_lshlrev_b32 v14, 3, v{LANE}           ; lane*8
      s_cmp_eq_u32 s{sWV}, 1
      s_cbranch_scc0 L_nohdr""")
lds_wait(F_L, 8, 42)
for k in range(8): g(f"ds_read_b128 {vr(80+4*k,4)}, v21 offset:{RLP+16*k}")
g(f"v_mov_b32 v13, s{sTAG}\ns_waitcnt lgkmcnt(0)")
sum_groups(80, 8)
g(f"""v_add_f32 v80, v80, v81
      v_add_f32 v82, v82, v83
      v_add_f32 v12, v80, v82
      s_mov_b64 exec, 0xffff
      buffer_store_dwordx2 v[12:13], v15, {sr(WS,4)}, s23 offen sc1
      s_mov_b64 exec, -1""")
g.label("L_nohdr")
if OPT["d3"]: g(f"s_sleep {OPT['d3']}")
stamp(22)
IR = 80
ib_loads = f"""buffer_load_dwordx4 {vr(IR,4)}, v{VL16}, {sr(WS,4)}, s30 offen sc1
      buffer_load_dwordx4 {vr(IR+4,4)}, v{VL16}, {sr(WS,4)}, s30 offen offset:1024 sc1"""
L, Lo = g.nl("h3"), g.nl("h3o")
g(f"s_mov_b32 s43, {LIM_MEM}\ns_mov_b64 exec, 0xffff")
g.label(L)
g(f"""buffer_load_dwordx2 v[24:25], v14, {sr(WS,4)}, s31 offen sc1
      s_waitcnt vmcnt(0)
      v_cmp_ne_u32 vcc, s{sTAG}, v25
      s_sub_u32 s43, s43, 1
      s_cbranch_scc1 {Lo}
      s_cbranch_vccz {Lo}
      s_mov_b64 exec, vcc
      s_sleep {OPT["bk3"]}
      s_branch {L}""")
g.label(Lo)
Lf = g.nl("h3f")
g(f"""s_mov_b64 exec, 0xffff
      ds_write_b32 v16, v24 offset:{MLT}
      s_mov_b64 exec, 1
      ds_add_u32 v{VZ}, v{VONE} offset:{F_ML}
      s_mov_b64 exec, -1
      s_cmp_eq_u32 s43, {LIM_MEM-1}
      s_cbranch_scc1 {Lf}
      s_sleep {OPT["d3b"]}""")
g.label(Lf)
g(ib_loads)
stamp(11)
def global_max(dst, t0):
    g(f"""v_max_f32 v{dst}, v{t0}, v{t0+1}""")
    for mod in ("quad_perm:[1,0,3,2]", "quad_perm:[2,3,0,1]", "row_half_mirror", "row_mirror"):
        g(f"s_nop 1\nv_max_f32_dpp v{dst}, v{dst}, v{dst} {mod} {DPPM}")
    for sw in ("v_permlane16_swap_b32", "v_permlane32_swap_b32"):
        g(f"v_mov_b32 v{dst+1}, v{dst}\ns_nop 1\n{sw} v{dst}, v{dst+1}\nv_max_f32 v{dst}, v{dst}, v{dst+1}")
lds_wait(F_ML, 8, 42)
g(f"""ds_read_b64 v[24:25], v14 offset:{MLT}
      ds_read_b32 v8, v17 offset:{MLT}
      ds_read_b32 v9, v17 offset:{MLT+32}
      s_waitcnt lgkmcnt(0)""")
global_max(22, 24)
g(f"""v_sub_f32 v8, v8, v22
      v_sub_f32 v9, v9, v22
      v_exp_f32 v8, v8
      v_exp_f32 v9, v9
      s_nop 0
      v_cvt_pk_bf16_f32 v8, v8, v8
      v_cvt_pk_bf16_f32 v9, v9, v9""")
for n in range(2):
    for p in range(4): g(f"v_and_b32 v{88+4*n+p}, v{8+n}, v{MK+p}")
L, Lo = g.nl("h3d"), g.nl("h3do")
g(f"s_mov_b32 s43, {LIM_MEM}")
g.label(L)
g(f"s_waitcnt vmcnt(0)\nv_xor_b32 v{VT}, v{IR}, v{TP}")
for k in range(1, 8): g(f"v_bitop3_b32 v{VT}, v{IR+k}, v{TP+(k&3)}, v{VT} bitop3:0xbe")
g(f"""v_and_b32 v{VT}, s44, v{VT}
      v_cmp_ne_u32 vcc, 0, v{VT}
      s_cbranch_vccz {Lo}
      s_sub_u32 s43, s43, 1
      s_cbranch_scc1 {Lo}
      s_lshr_b64 s[48:49], vcc, 4
      s_or_b64 vcc, vcc, s[48:49]
      s_lshr_b64 s[48:49], vcc, 2
      s_or_b64 vcc, vcc, s[48:49]
      s_lshr_b64 s[48:49], vcc, 1
      s_or_b64 vcc, vcc, s[48:49]
      s_and_b32 s48, vcc_lo, 0x01010101
      s_and_b32 s49, vcc_hi, 0x01010101
      s_mul_i32 exec_lo, s48, 0xff
      s_mul_i32 exec_hi, s49, 0xff
      s_sleep {OPT["bk3"]}
      {ib_loads}
      s_branch {L}""")
g.label(Lo)
g("s_mov_b64 exec, -1")
stamp(12)
mfma(96, 88, IR, True)
mfma(96, 92, IR + 4, False)
g(f"""s_nop 7
      v_cvt_pk_bf16_f32 v100, v96, v97
      v_cvt_pk_bf16_f32 v101, v98, v99
      s_mov_b64 exec, s[46:47]
      ds_write_b64 v19, v[100:101] offset:{RIB}
      s_mov_b64 exec, 1
      ds_add_u32 v{VZ}, v{VONE} offset:{F_IB}
      s_mov_b64 exec, -1""")
stamp(13)
g(f"""s_cmp_lt_u32 s{sWG}, 20
      s_cbranch_scc0 L_A_end
      s_lshl_b32 s41, s{sWG}, 14
      s_lshl_b32 s42, s{sWV}, 11
      s_add_u32 s41, s41, s42
      s_add_u32 s41, s41, {SM}
      v_and_b32 v7, 7, v{LANE}
      v_lshlrev_b32 v6, 4, v7
      s_lshl_b32 s42, s{sWV}, 7
      v_add_u32 v6, s42, v6
      v_lshlrev_b32 v7, 3, v7
      s_lshl_b32 s55, s{sWG}, 6""")
tagbytes()
def red8(b):
    g("s_nop 0")
    for r in range(4): g(f"v_add_f32_dpp v{b+r}, v{b+r}, v{b+r} row_ror:8 {DPPM}")
    for sw in ("v_permlane16_swap_b32", "v_permlane32_swap_b32"):
        for r in range(4): g(f"v_mov_b32 v{b+4+r}, v{b+r}")
        for r in range(4): g(f"{sw} v{b+r}, v{b+4+r}")
        for r in range(4): g(f"v_add_f32 v{b+r}, v{b+r}, v{b+4+r}")
g(f"""s_cmp_eq_u32 s{sWV}, 0
      s_cbranch_scc0 L_fin_s""")
srd(SR, P_X, 1280)
g(f"""buffer_load_dwordx2 v[16:17], v7, {sr(SR,4)}, s55 offen
      s_lshl_b32 s40, s{sWG}, 12
      s_add_u32 s40, s40, {YM}""")
for d in range(4): g(f"v_mov_b32 v{60+d}, s{sTB+d}\nv_and_b32 v{60+d}, 0xff, v{60+d}")
poll_loads("h7", f"""buffer_load_dwordx4 v[48:51], v{VL16}, {sr(WS,4)}, s40 offen sc1
      buffer_load_dwordx4 v[52:55], v{VL16}, {sr(WS,4)}, s40 offen offset:1024 sc1
      buffer_load_dwordx4 v[56:59], v{VL16}, {sr(WS,4)}, s40 offen offset:2048 sc1
      s_mov_b64 exec, 0xffffff
      buffer_load_dwordx4 v[60:63], v{VL16}, {sr(WS,4)}, s40 offen offset:3072 sc1
      s_mov_b64 exec, -1""", [48, 52, 56, 60], 43, sleep=4, mask=False, b8=True)
sum_groups(48, 4)
red8(48)
for r in range(48, 52): rne(r)
for r in range(48, 52): g(f"v_mul_f32 v{r+4}, {hex(f32(-math.log2(math.e)))}, v{r}")
for r in range(48, 52): g(f"v_exp_f32 v{r+4}, v{r+4}")
for r in range(48, 52): g(f"v_add_f32 v{r+4}, 1.0, v{r+4}")
for r in range(48, 52): g(f"v_rcp_f32 v{r+4}, v{r+4}")
for r in range(48, 52): g(f"v_mul_f32 v{r}, v{r}, v{r+4}")
for r in range(48, 52): rne(r)
g("""v_lshlrev_b32 v20, 16, v16
     v_and_b32 v21, 0xffff0000, v16
     v_lshlrev_b32 v22, 16, v17
     v_and_b32 v23, 0xffff0000, v17""")
stamp(19)
g.label("L_fin_s")
lds_wait(F_SD, 4, 42, sleep=1)
if OPT["d5"]: g(f"s_sleep {OPT['d5']}")
poll_loads("h5", f"""buffer_load_dwordx4 v[32:35], v{VL16}, {sr(WS,4)}, s41 offen sc1
      buffer_load_dwordx4 v[36:39], v{VL16}, {sr(WS,4)}, s41 offen offset:1024 sc1""", [32, 36], 43, sleep=OPT["bk5"], b8=True)
stamp(20)
sum_groups(32, 2)
red8(32)
g(f"""s_mov_b64 exec, 0xff
      ds_write_b128 v6, v[32:35] offset:{RFIN}
      s_mov_b64 exec, 1
      ds_add_u32 v{VZ}, v{VONE} offset:{F_FIN}
      s_mov_b64 exec, -1
      s_cmp_eq_u32 s{sWV}, 0
      s_cbranch_scc0 L_A_end""")
srd(44, P_OUT, 1280)
lds_wait(F_FIN, 8, 42, extra=f"ds_read_b128 v[32:35], v{VL16} offset:{RFIN}")
red8(32)
for r in range(4): rne(32 + r)
for r in range(4): g(f"v_mul_f32 v{32+r}, v{32+r}, v{48+r}")
for r in range(4): rne(32 + r)
for r in range(4): g(f"v_add_f32 v{32+r}, v{32+r}, v{20+r}")
g(f"""v_cvt_pk_bf16_f32 v32, v32, v33
      v_cvt_pk_bf16_f32 v33, v34, v35
      s_mov_b64 exec, 0xff
      buffer_store_dwordx2 v[32:33], v7, {sr(44,4)}, s55 offen
      s_cmp_eq_u32 s{sWG}, 0
      s_cbranch_scc0 L_noep
      s_mov_b64 exec, 1
      v_mov_b32 v13, s{sTAG}
      buffer_store_dword v13, v{VZ}, {sr(WS,4)}, 0 offen offset:{EPOCH}""")
g.label("L_noep")
stamp(21)
g.label("L_A_end")
ts_flush()
g("s_endpgm")

KORD = (0, 2, 1, 3)
TH = OPT["gthr"]
def wo_setup():
    g(f"""v_mul_u32_u24 v6, {8*1280}, v{vKG}
          v_lshl_add_u32 v6, v{vN}, 3, v6
          s_lshl_b32 s40, s{sHF}, 7
          s_lshr_b32 s41, s{sJ}, 1
          s_lshl_b32 s41, s41, 5
          s_add_u32 s40, s40, s41
          s_mul_i32 s40, s40, 1280
          s_and_b32 s41, s{sJ}, 1
          s_mul_i32 s41, s41, 640
          s_add_u32 s48, s40, s41""")
    srd(44, P_WO, 5242880)

def wo_gate():
    if OPT["wogate"] == 1: lds_wait(F_L, 8, 40, sleep=2)
    elif OPT["wogate"] == 2: lds_wait(F_IB, 1, 40, sleep=2)

def h4_setup():
    g(f"""v_and_b32 v31, 7, v{vN}
          v_lshlrev_b32 v29, 7, v31
          v_lshl_add_u32 v29, v{vKG}, 5, v29
          s_lshl_b32 s50, s{sHF}, 2
          s_lshr_b32 s51, s{sJ}, 1
          s_add_u32 s50, s50, s51                 ; p = h*4+dq
          s_lshl_b32 s61, s50, 10
          s_add_u32 s65, s61, {CXM}
          s_add_u32 s61, s61, {CXA if OPT["fast4"] else CXM}
          v_lshrrev_b32 v30, 3, v{vN}
          v_lshlrev_b32 v30, 14, v30
          v_lshl_add_u32 v30, v31, 4, v30         ; (n>>3)*16K + (n&7)*16
          v_mov_b32 v31, 0xff
          s_and_b32 s41, s{sJ}, 1
          s_mul_i32 s41, s41, {10*16384}
          s_lshl_b32 s50, s50, 7
          s_add_u32 s50, s50, s41
          s_add_u32 s50, s50, {SM}""")
    tagbytes()

def h4_warm(A, cbks):
    g(f"buffer_load_dwordx4 {vr(A,4)}, v29, {sr(WS,4)}, s61 offen sc1")
    for cbk in cbks:
        g(f"""s_add_u32 s51, s50, {cbk*2*16384}
              buffer_load_dwordx4 {vr(A+4,4)}, v30, {sr(WS,4)}, s51 offen sc1""")

def h4_wait(A, late=""):
    Ls = g.nl("h4s")
    onfail = f"""s_cmp_gt_u32 s43, {LIM_MEM-32}
          s_cbranch_scc1 {Ls}
          s_mov_b32 s51, s61
          s_mov_b32 s61, s65
          s_mov_b32 s65, s51
          {late}
          {Ls}:""" if OPT["fast4"] else ""
    poll_loads("h4", f"""buffer_load_dwordx4 {vr(A,4)}, v29, {sr(WS,4)}, s61 offen sc1
          buffer_load_dwordx4 {vr(A+4,4)}, v29, {sr(WS,4)}, s61 offen offset:16 sc1""", [A+1, A+3, A+5, A+7], 43, sleep=OPT["bk4"], onfail=onfail)
    g(f"v_mov_b32 v{A+1}, v{A+4}\nv_mov_b32 v{A+3}, v{A+6}\ns_nop 1")

def wo_compute(A, frags, cbks, D):
    for bi, fr in enumerate(frags):
        for t in range(4): mfma(D + 16 * bi + 4 * t, A, fr + 4 * t, True)
    lds_wait(F_RLV, 1, 40, extra=f"ds_read_b32 v28, v{VZ} offset:{RLINV}")
    for bi, cbk in enumerate(cbks):
        d = D + 16 * bi
        for t in range(4):
            g(f"v_add_f32 v{d+4*t+1}, v{d+4*t}, v{d+4*t+1}\nv_add_f32 v{d+4*t+2}, v{d+4*t+2}, v{d+4*t+3}")
        for t in range(4): g(f"v_add_f32 v{16+t}, v{d+4*t+1}, v{d+4*t+2}")
        for t in range(4): g(f"v_mov_b32 v{20+t}, v{16+t}")
        g(f"s_add_u32 s51, s50, {cbk*2*16384}")
        for t in range(4): g(f"v_permlane16_swap_b32 v{16+t}, v{20+t}")
        for t in range(4): g(f"v_add_f32 v{16+t}, v{16+t}, v{20+t}")
        for t in range(4): g(f"v_mul_f32 v{d+t}, v{16+t}, v28")
        tagput([d, d+1, d+2, d+3], 31)
        g(f"""s_mov_b64 exec, 0xffff
              buffer_store_dwordx4 {vr(d,4)}, v30, {sr(WS,4)}, s51 offen sc1
              s_mov_b64 exec, -1""")
    lds_inc(F_SD)

def b1_gate():
    if OPT["b1gate"]:
        land_flush()
        lds_wait(F_STG, OPT['b1gate'], 40, sleep=2)

g.label("L_G")
get_tag(6)
g(f"""s_cmp_eq_u32 s{sWV}, 10
      s_cbranch_scc1 L_G_uv10""")
LD.pending = True; LD.n = 0
wo_setup(); h4_setup()
b1_gate()
if OPT["wogate"]: land_flush()
wo_gate()
stamp(4)
load_block(32, 6, 44, 48, 42, 1280, TH)
g("s_add_u32 s49, s48, 128")
load_block(48, 6, 44, 49, 42, 1280, TH)
land_flush()
g("s_waitcnt vmcnt(8)")
perm_block(32, 64, KORD)
g("s_waitcnt vmcnt(0)")
perm_block(48, 80, KORD)
h4_warm(8, [0, 1])
stamp(5)
g(f"""v_lshlrev_b32 v16, 3, v{LANE}
      v_lshlrev_b32 v17, 4, v{LANE}
      s_lshl_b32 s52, s{sHF}, 10
      s_add_u32 s52, s52, {HD + 0x8000}""")
lds_wait(F_ML, 8, 40, sleep=2)
g(f"ds_read_b64 v[20:21], v16 offset:{MLT}\ns_waitcnt lgkmcnt(0)")
global_max(22, 20)
g(f"""v_sub_f32 v20, v20, v22
      v_sub_f32 v21, v21, v22
      v_exp_f32 v20, v20
      v_exp_f32 v21, v21
      s_nop 0""")
rne(20); rne(21)
lds_wait(F_IB, 8, 40, sleep=1)
g("s_setprio 2")
poll_loads("hl", f"buffer_load_dwordx4 v[24:27], v17, {sr(WS,4)}, s52 offen sc1", [25, 27], 43, sleep=2)
g("v_mul_f32 v24, v24, v20\nv_fmac_f32 v24, v26, v21")
wave_sum(24, 40)
g(f"""s_nop 1
      v_rcp_f32 v24, s40
      s_nop 0
      ds_write_b32 v{VZ}, v24 offset:{RLINV}
      ds_write_b32 v{VZ}, v{VONE} offset:{F_RLV}""")
h4_wait(8)
stamp(6)
wo_compute(8, [64, 80], [0, 1], 96)
stamp(7)
g("s_branch L_G_end")

def uv_loads():
    g(f"""v_lshlrev_b32 v7, 13, v{vKG}
          v_lshl_add_u32 v7, v{vN}, 3, v7
          s_lshl_b32 s56, s{sJ}, 17               ; 16j rows
          s_lshl_b32 s41, s{sHF}, 8
          s_add_u32 s56, s56, s41
          s_sub_u32 s52, s{sWV}, 9                ; colhalf
          s_lshl_b32 s41, s52, 7
          s_add_u32 s56, s56, s41
          s_add_u32 s57, s56, {4*8192}""")
    srd(SR, P_WUV, 4194304)
    b1_gate()
    stamp(4)
    rows = [128 * (e & 3) + 8 * (e >> 2) for e in range(8)]
    load_block(32, 7, SR, 56, 42, 8192, TH, rows)
    load_block(48, 7, SR, 57, 42, 8192, TH, rows)
    land_flush()
g.label("L_G_uv10")
LD.pending = True; LD.n = 0
uv_loads()
g("s_branch L_G_uv")
g.label("L_G_uv9")
LD.pending = False
uv_loads()
g.label("L_G_uv")
wo_setup(); h4_setup()
g(f"""s_add_u32 s49, s52, 2
      s_mul_i32 s53, s49, {2*16384}
      s_add_u32 s50, s50, s53
      s_lshl_b32 s49, s49, 7
      s_add_u32 s49, s49, s48
      v_and_b32 v7, 7, v{vN}
      v_mul_u32_u24 v8, 144, v{vN}
      v_lshl_add_u32 v8, v{vKG}, 4, v8
      v_lshlrev_b32 v9, 4, v{LANE}
      v_lshrrev_b32 v11, 3, v{vN}
      v_lshlrev_b32 v11, 10, v11
      v_lshl_add_u32 v11, v7, 4, v11          ; (n>>3)*1024 + (n&7)*16
      s_lshl_b32 s40, s{sHF}, 2
      s_lshl_b32 s41, s52, 1
      s_add_u32 s40, s40, s41
      s_lshl_b32 s40, s40, 3
      s_add_u32 s40, s40, s{sJ}
      s_lshl_b32 s40, s40, 7
      s_add_u32 s54, s40, {CXM}
      s_waitcnt vmcnt(8)""")
perm_block(32, 80)
g("s_waitcnt vmcnt(0)")
perm_block(48, 96)
wo_gate()
load_block(64, 6, 44, 49, 42, 1280, TH)
g(f"v_mov_b32 v61, s{sTAG}\nv_mov_b32 v63, s{sTAG}\ns_add_u32 s55, s54, {CXA-CXM}")
h4_warm(16, [0])
g("s_waitcnt vmcnt(0)")
perm_block(64, 112, KORD)
stamp(5)
lds_wait(F_ML, 8, 40, sleep=2)
g("s_setprio 3")
lds_wait(F_IB, 8, 40)
g(f"""ds_read_b128 v[32:35], v8 offset:{RIB}
      ds_read_b128 v[36:39], v8 offset:{RIB+64}""")
stamp(6)
D = 128
for blk in range(2):
    g(f"s_waitcnt lgkmcnt({1-blk})")
    for t in range(4): mfma(D + 4 * t, 32 + 4 * blk, 80 + 16 * blk + 4 * t, blk == 0)
g("s_nop 4")
for t in range(4): g(f"v_add_f32 v{D+4*t}, v{D+4*t}, v{D+4*t+1}\nv_add_f32 v{D+4*t+2}, v{D+4*t+2}, v{D+4*t+3}")
for t in range(4): g(f"v_add_f32 v{D+4*t}, v{D+4*t}, v{D+4*t+2}")
for sw in ("v_permlane16_swap_b32", "v_permlane32_swap_b32"):
    for t in range(4): g(f"v_mov_b32 v{D+4*t+1}, v{D+4*t}")
    g("s_nop 0")
    for t in range(4): g(f"{sw} v{D+4*t}, v{D+4*t+1}")
    for t in range(4): g(f"v_add_f32 v{D+4*t}, v{D+4*t}, v{D+4*t+1}")
g(f"""v_cvt_pk_bf16_f32 v60, v{D}, v{D+4}
      v_cvt_pk_bf16_f32 v62, v{D+8}, v{D+12}
      s_mov_b64 exec, 0xffff
      buffer_store_dwordx4 v[60:63], v11, {sr(WS,4)}, {"s55 offen" if OPT["fast4"] else "s54 offen sc1"}
      s_mov_b64 exec, -1""")
stamp(7)
late = f"s_mov_b64 exec, 0xffff\nbuffer_store_dwordx4 v[60:63], v11, {sr(WS,4)}, s54 offen sc1"
h4_wait(32, late)
stamp(8)
wo_compute(32, [112], [0], 128)
if OPT["fast4"]: g(late + "\ns_mov_b64 exec, -1")
stamp(9)
g("s_branch L_G_end")

g.label("L_FFN")
XF = 8
g("s_waitcnt lgkmcnt(0)")
srd(WS, P_WS, WS_REC)
lds_wait(F_QI, 5, 40, sleep=1)
g(f"""s_lshr_b32 s40, s{sSLOT}, 3             ; hq
      s_lshl_b32 s40, s40, 1
      s_and_b32 s41, s{sJ}, 1
      s_add_u32 s40, s40, s41
      s_lshl_b32 s40, s40, 3
      s_add_u32 s62, s40, s{sXCD}             ; u in 0..63
      s_lshr_b32 s63, s{sJ}, 1                ; mq
      v_and_b32 v31, 1, v{vKG}
      v_cmp_eq_u32 s[56:57], 1, v31
      s_cmp_lt_u32 s62, 27
      s_cbranch_scc0 L_FFN2""")
LD.pending = False
g(f"""v_mul_u32_u24 v28, {8*3456}, v{vKG}
      v_lshl_add_u32 v28, v{vN}, 3, v28
      v_lshlrev_b32 v7, 4, v{vKG}
      s_mul_i32 s58, s63, 320
      v_add_u32 v7, s58, v7
      s_mul_i32 s58, s63, {160*3456}
      s_lshl_b32 s41, s62, 7
      s_add_u32 s58, s58, s41""")
srd(SR, P_W1, 2211840)
stamp(4)
for b in range(5):
    if b: g(f"s_add_u32 s58, s58, {32*3456}")
    load_block(48 + 16 * b, 28, SR, 58, 42, 3456, TH)
D = 144
get_tag(6)
lds_wait(F_XN, 1, 40)
for b in range(5): g(f"ds_read_b128 {vr(XF+4*b,4)}, v7 offset:{XNL+64*b}")
g("s_waitcnt lgkmcnt(0)")
for b in range(5):
    g(f"s_waitcnt vmcnt({8*(4-b)})")
    perm_block(48 + 16 * b, 32 + 16 * b)
    g("s_nop 1")
    for t in range(4): mfma(D + 4 * t, XF + 4 * b, 32 + 16 * b + 4 * t, b == 0)
g(f"""v_lshlrev_b32 v28, 4, v{LANE}
      s_nop 0
      s_lshl_b32 s40, s62, 2
      s_add_u32 s40, s40, s63
      s_lshl_b32 s40, s40, 9
      s_add_u32 s40, s40, {HM}
      v_mov_b32 v9, s{sTAG}
      v_mov_b32 v11, s{sTAG}
      s_nop 1
      v_cndmask_b32 v8, v{D}, v{D+8}, s[56:57]
      v_cndmask_b32 v10, v{D+4}, v{D+12}, s[56:57]
      s_mov_b32 exec_hi, 0
      buffer_store_dwordx4 v[8:11], v28, {sr(WS,4)}, s40 offen sc1
      s_mov_b64 exec, -1
      s_branch L_FFNe""")
g.label("L_FFN2")
g(f"""s_mul_i32 s40, s63, 37
      s_add_u32 s40, s40, s62
      s_sub_u32 s58, s40, 27
      s_cmp_lt_u32 s58, 135
      s_cbranch_scc1 L_FFN2a""")
get_tag(6)
g("s_branch L_FFNe")
g.label("L_FFN2a")
LD.pending = False
g(f"""s_mul_i32 s59, s58, 205
      s_lshr_b32 s59, s59, 10                 ; fb = v/5
      s_mul_i32 s60, s59, 5
      s_sub_u32 s60, s58, s60                 ; mb
      v_mul_u32_u24 v28, {8*1280}, v{vKG}
      v_lshl_add_u32 v28, v{vN}, 3, v28
      s_mul_i32 s58, s59, {64*1280}
      s_lshl_b32 s41, s60, 8
      s_add_u32 s58, s58, s41""")
srd(SR, P_W2, 2211840)
stamp(4)
for ch in range(2):
    for blk in range(2):
        g(f"s_add_u32 s41, s58, {blk*32*1280 + ch*128}")
        load_block(48 + 16 * (2 * ch + blk), 28, SR, 41, 42, 1280, TH)
get_tag(6)
for b in range(4):
    g(f"s_waitcnt vmcnt({8*(3-b)})")
    perm_block(48 + 16 * b, 32 + 16 * b)
g(f"""v_lshrrev_b32 v28, 2, v{vN}
      v_lshlrev_b32 v28, 9, v28
      v_lshl_add_u32 v28, v{vKG}, 5, v28
      v_bfe_u32 v29, v{vN}, 1, 1
      v_lshl_add_u32 v28, v29, 4, v28
      v_and_b32 v29, 1, v{vN}
      v_lshl_add_u32 v28, v29, 8, v28
      s_lshl_b32 s40, s59, 11
      s_add_u32 s40, s40, {HM}""")
poll_loads("h6", f"""buffer_load_dwordx4 v[8:11], v28, {sr(WS,4)}, s40 offen sc1
      buffer_load_dwordx4 v[12:15], v28, {sr(WS,4)}, s40 offen offset:128 sc1""", [9, 11, 13, 15], 43, sleep=6)
for mod in ("row_ror:4", "row_ror:8"):
    for r in (8, 10, 12, 14): g(f"v_add_f32_dpp v{r}, v{r}, v{r} {mod} {DPPM}")
for r in (8, 10, 12, 14): g(f"v_max_f32 v{r}, 0, v{r}")
g("v_cvt_pk_bf16_f32 v8, v8, v10\nv_cvt_pk_bf16_f32 v12, v12, v14\ns_nop 1")
for blk in range(2):
    for p in range(4):
        g(f"v_mov_b32_dpp v{16+4*blk+p}, v{8+4*blk} quad_perm:[{p},{p},{p},{p}] {DPPM}")
g("s_nop 1")
D = 96
for ch in range(2):
    for blk in range(2):
        for t in range(4): mfma(D + 16 * ch + 4 * t, 16 + 4 * blk, 32 + 16 * (2 * ch + blk) + 4 * t, blk == 0)
g(f"""v_lshrrev_b32 v28, 3, v{vN}
      v_lshlrev_b32 v28, 12, v28
      v_and_b32 v29, 7, v{vN}
      v_lshl_add_u32 v28, v29, 4, v28
      v_mov_b32 v29, 0xff
      s_lshl_b32 s40, s60, 14
      s_lshl_b32 s41, s59, 7
      s_add_u32 s40, s40, s41
      s_add_u32 s40, s40, {YM}
      s_add_u32 s41, s40, {2*4096}""")
tagbytes()
for ch in range(2):
    for t in range(4): g(f"v_bfi_b32 v{8+4*ch+t}, v29, s{sTB+t}, v{D+16*ch+4*t}")
g(f"""s_mov_b64 exec, 0xffff
      buffer_store_dwordx4 v[8:11], v28, {sr(WS,4)}, s40 offen sc1
      buffer_store_dwordx4 v[12:15], v28, {sr(WS,4)}, s41 offen sc1
      s_mov_b64 exec, -1""")
g.label("L_FFNe")
stamp(5)
wo_setup(); h4_setup()
g("s_add_u32 s49, s48, 512")
lds_wait(F_ISS, 2, 40, sleep=2)
b1_gate()
wo_gate()
load_block(128, 6, 44, 49, 42, 1280, TH)
g("s_waitcnt vmcnt(0)")
perm_block(128, 32, KORD)
h4_warm(8, [4])
lds_wait(F_IB, 8, 40, sleep=2)
g("s_setprio 2")
h4_wait(8)
stamp(6)
wo_compute(8, [32], [4], 48)
stamp(7)
g.label("L_G_end")
ts_flush("G")
g.label("L_END")
g("s_endpgm")
g.l.append(".p2align 12")
g.label("L_CODE_END")

s = file_head([f"; @launch grid=(256,1,1) block=(768,1,1) lds={LDS_BYTES}"])
s += f""".text
.globl {K}
.p2align 12
.type {K},@function
{K}:
"""
s += g.text()
s += kernel_desc(K, 168, 102)
open(OUT, "w").write(s)
print(OUT, "lines", len(g.l), "ws_end", hex(WS_END))
```

```python
import sys, math, struct
from asmlib import *

OPT = dict(ts=0, stop=99, inflight=24, gate=2, ksmap=1, gthr=24, wogate=0, b1gate=0, pol=1, h2iss=2, amax=0, bk2=4, bk3=2, dbg=0, bk4=0, bk5=3, d3=0, d3b=10, d1=8, d5=12, fast4=1, warm=1, pad=0)
for a in sys.argv[2:]:
    k, v = a.split("=")
    assert k in OPT, k
    OPT[k] = int(v)
OUT = sys.argv[1] if len(sys.argv) > 1 else "k.s"
NT = "nt" if OPT["pol"] else ""

def f32(x): return struct.unpack("<I", struct.pack("<f", x))[0]

EPOCH = 0
QM   = 0x1000
HD   = QM + 0x80000
QAM  = HD + 0x10000
CXM  = QAM + 0x10000
CXA  = CXM + 0x20000
HM   = CXA + 0x20000
YM   = HM + 0x10000
SM   = YM + 20 * 4096
IB   = SM + 20 * 16384
WS_END = IB + 256 * 8 * 2048
TSOFF = 0x1000000
WS_REC = 0x2000000 if (OPT["ts"] and not OPT["dbg"]) else WS_END

(F_Q, F_QA, F_LAND, F_ISS, F_H2I, F_STG, F_MAX, F_P, F_IB, F_UK, F_TAG, F_TAGV, F_QP, F_QI, F_SD, F_FIN) = [4 * i for i in range(16)]
RMAX = 0x40
RL   = 0x80
F_H3, F_ML, F_QAP, F_XN, F_L, F_RLV, RLINV = 0xC0, 0xC4, 0xC8, 0xCC, 0xD0, 0xD4, 0xD8
REDQ = 0x100
REDQA = 0x600
PL   = 0x1000
RIB  = 0x2000
RFIN = PL
MLT  = 0x2A00
RMX  = 0x2E00
RLP  = REDQ
XNL  = 0x3000
QL   = 0x3800
KV   = 0x7800
LDS_BYTES = KV + 0x20000

SCALE = (128 ** -0.5) * math.log2(math.e)
LIM_LDS = 1 << 16
LIM_MEM = 1 << 13

class G:
    def __init__(s): s.l = []; s.n = 0
    def __call__(s, x):
        for ln in x.strip("\n").split("\n"):
            if ln.strip(): s.l.append("  " + ln.strip())
    def label(s, x): s.l.append(x + ":")
    def nl(s, p): s.n += 1; return f"L_{p}_{s.n}"
    def text(s): return "\n".join(s.l) + "\n"
g = G()

def vr(a, n): return f"v[{a}:{a+n-1}]"
def sr(a, n): return f"s[{a}:{a+n-1}]"

LANE, VZ, VONE, VT, vN, vKG = 0, 1, 2, 3, 4, 5
VTS = 167
VL16 = 166
sWG, sWV = 2, 3
WS = 4
SR = 8
sXCD, sSLOT, sHF, sJ = 12, 13, 14, 15
P_X, P_KV, P_WQ, P_WUK, P_WUV, P_WO, P_BX, P_W1, P_W2, P_OUT, P_DBG, P_WS = [16 + 2 * i for i in range(12)]
sTAG, sCNT = 28, 29
sPLO, sPHI = 100, 101
DPPM = "row_mask:0xf bank_mask:0xf"

def srd(base, ptr, nbytes):
    g(f"""s_mov_b32 s{base}, s{ptr}
          s_mov_b32 s{base+1}, s{ptr+1}
          s_mov_b32 s{base+2}, {nbytes}
          s_mov_b32 s{base+3}, 0x20000""")

def stamp(k):
    if not OPT["ts"]: return
    g(f"""s_memrealtime vcc
          s_waitcnt lgkmcnt(0)
          v_writelane_b32 v{VTS}, vcc_lo, {k}""")

def ts_flush(role="A"):
    if not OPT["ts"]: return
    if OPT["dbg"]:
        sel = {"A": {1: 0, 2: 16, 6: 6, 7: 8, 8: 10, 9: 22, 10: 11, 11: 13, 14: 20, 15: 21}, "G": {3: 1, 4: 2, 5: 3, 12: 7, 13: 9}}[role]
        Ls = g.nl("dbg")
        g(f"""s_cmp_eq_u32 s{sWV}, {0 if role == "A" else 9}
              s_cbranch_scc0 {Ls}
              s_load_dwordx2 s[40:41], s[0:1], 80
              s_mov_b64 exec, -1
              v_mov_b32 v8, 0
              s_mov_b32 s42, 256
              s_mov_b32 s43, 0x20000""")
        for dst, src in sel.items():
            g(f"v_readlane_b32 s44, v{VTS}, {src}\ns_nop 3\nv_writelane_b32 v8, s44, {dst}")
        if role == "A":
            g(f"v_readlane_b32 s44, v{VTS}, 0\ns_nop 3\ns_not_b32 s44, s44\nv_writelane_b32 v8, s44, 0")
        g(f"""v_lshlrev_b32 v{VT}, 2, v{LANE}
              s_mov_b64 exec, 0xffff
              s_waitcnt lgkmcnt(0)
              buffer_atomic_umax v8, v{VT}, s[40:43], 0 offen""")
        g.label(Ls)
        return
    g(f"""s_mul_i32 s{sCNT}, s{sWG}, 12
          s_add_u32 s{sCNT}, s{sCNT}, s{sWV}
          s_lshl_b32 s{sCNT}, s{sCNT}, 7
          s_add_u32 s{sCNT}, s{sCNT}, {TSOFF}
          s_mov_b64 exec, -1
          s_mov_b32 exec_hi, 0
          v_lshlrev_b32 v{VT}, 2, v{LANE}
          buffer_store_dword v{VTS}, v{VT}, {sr(WS,4)}, s{sCNT} offen""")

def lds_wait(off, target, st, extra="", sleep=0):
    L, Lo = g.nl("w"), g.nl("wo")
    g(f"s_mov_b32 s{sCNT}, {LIM_LDS}")
    if sleep:
        Lf = g.nl("wf")
        g(f"s_branch {Lf}")
    g.label(L)
    if sleep:
        g(f"s_sleep {sleep}")
        g.label(Lf)
    g(f"ds_read_b32 v{VT}, v{VZ} offset:{off}")
    if extra: g(extra)
    g(f"""s_waitcnt lgkmcnt(0)
          v_readfirstlane_b32 s{st}, v{VT}
          s_sub_u32 s{sCNT}, s{sCNT}, 1
          s_cbranch_scc1 {Lo}
          s_cmp_ge_u32 s{st}, {target}
          s_cbranch_scc0 {L}""")
    g.label(Lo)

def lds_inc(off):
    g(f"""s_mov_b64 exec, 1
          ds_add_u32 v{VZ}, v{VONE} offset:{off}
          s_mov_b64 exec, -1""")

def get_tag(vtmp):
    lds_wait(F_TAGV, 1, sTAG, extra=f"ds_read_b32 v{vtmp}, v{VZ} offset:{F_TAG}")
    g(f"v_readfirstlane_b32 s{sTAG}, v{vtmp}")

def wave_sum(v, sdst):
    for mod in ("quad_perm:[1,0,3,2]", "quad_perm:[2,3,0,1]", "row_half_mirror", "row_mirror"):
        g(f"s_nop 1\nv_add_f32_dpp v{v}, v{v}, v{v} {mod} {DPPM}")
    g(f"s_nop 1\nv_add_f32_dpp v{v}, v{v}, v{v} row_bcast:15 row_mask:0xa bank_mask:0xf")
    g(f"s_nop 1\nv_add_f32_dpp v{v}, v{v}, v{v} row_bcast:31 row_mask:0xc bank_mask:0xf")
    g(f"s_nop 1\nv_readlane_b32 s{sdst}, v{v}, 63")

def rne(v):
    g(f"v_cvt_pk_bf16_f32 v{v}, v{v}, v{v}\nv_and_b32 v{v}, 0xffff0000, v{v}")

def ln_stats(x5, tmp, sA, sB, vM, vR):
    u = tmp
    for k in range(5):
        g(f"v_lshlrev_b32 v{u+2*k}, 16, v{x5+k}\nv_and_b32 v{u+2*k+1}, 0xffff0000, v{x5+k}")
    a = u + 10
    g(f"v_add_f32 v{a}, v{u}, v{u+1}")
    for k in range(2, 10): g(f"v_add_f32 v{a}, v{a}, v{u+k}")
    wave_sum(a, sA)
    g(f"s_nop 1\nv_mov_b32 v{vM}, s{sA}\nv_mul_f32 v{vM}, {hex(f32(1.0/640))}, v{vM}")
    for k in range(10): g(f"v_sub_f32 v{u+k}, v{u+k}, v{vM}")
    g(f"v_mul_f32 v{a}, v{u}, v{u}")
    for k in range(1, 10): g(f"v_fmac_f32 v{a}, v{u+k}, v{u+k}")
    wave_sum(a, sB)
    g(f"s_nop 1\nv_mov_b32 v{vR}, s{sB}\nv_mul_f32 v{vR}, {hex(f32(1.0/640))}, v{vR}")
    rne(vR)
    g(f"v_add_f32 v{vR}, {hex(f32(1e-5))}, v{vR}")
    rne(vR)
    g(f"v_sqrt_f32 v{vR}, v{vR}\ns_nop 0")
    rne(vR)
    g(f"v_rcp_f32 v{vR}, v{vR}")
    rne(vM)

def ln_frag(src, dst, t0, vM, vR):
    for k in range(4):
        g(f"""v_lshlrev_b32 v{t0}, 16, v{src+k}
              v_and_b32 v{t0+1}, 0xffff0000, v{src+k}
              v_sub_f32 v{t0}, v{t0}, v{vM}
              v_sub_f32 v{t0+1}, v{t0+1}, v{vM}
              v_cvt_pk_bf16_f32 v{t0+1}, v{t0}, v{t0+1}
              v_lshlrev_b32 v{t0}, 16, v{t0+1}
              v_and_b32 v{t0+1}, 0xffff0000, v{t0+1}
              v_mul_f32 v{t0}, v{t0}, v{vR}
              v_mul_f32 v{t0+1}, v{t0+1}, v{vR}
              v_cvt_pk_bf16_f32 v{dst+k}, v{t0}, v{t0+1}""")

def perm_block(raw, out, order=(0, 1, 2, 3)):
    for p in range(4):
        e = 2 * order[p]
        for d in range(2):
            g(f"v_perm_b32 v{out+4*(2*d)+p}, v{raw+2*(e+1)+d}, v{raw+2*e+d}, s{sPLO}")
            g(f"v_perm_b32 v{out+4*(2*d+1)+p}, v{raw+2*(e+1)+d}, v{raw+2*e+d}, s{sPHI}")

class Landing:
    pending = False
    n = 0
LD = Landing()

def load_block(raw, voff, srdb, sbase, stmp, rowbytes, thr=0, rows=None):
    per = 4095 // rowbytes + 1
    cur = None
    for e in range(8):
        grp, rem = divmod(e, per)
        if grp != cur:
            if grp == 0: so = sbase
            else:
                g(f"s_add_u32 s{stmp}, s{sbase}, {(rows[e] if rows else grp*per)*rowbytes}"); so = stmp
            cur = grp
        if thr:
            g(f"s_waitcnt vmcnt({thr-1})")
            if LD.pending and LD.n >= thr - 1:
                land_now()
        off = f" offset:{rem*rowbytes}" if rem else ""
        g(f"buffer_load_dwordx2 {vr(raw+2*e,2)}, v{voff}, {sr(srdb,4)}, s{so} offen{off} {NT}")
        LD.n += 1

def land_now():
    lds_inc(F_LAND)
    stamp(2)
    LD.pending = False

def land_flush():
    if LD.pending:
        g(f"s_waitcnt vmcnt({LD.n})")
        land_now()

def tagcheck(regs, acc):
    g(f"v_xor_b32 v{acc}, s{sTAG}, v{regs[0]}")
    for r in regs[1:]:
        g(f"v_bitop3_b32 v{acc}, v{r}, s{sTAG}, v{acc} bitop3:0xbe")
    g(f"v_cmp_ne_u32 vcc, 0, v{acc}")

def poll_loads(nm, loads, tags, scnt, acc=VT, sleep=0, mask=True, b8=False, onfail=""):
    L, Lo = g.nl(nm), g.nl(nm + "o")
    g(f"s_mov_b32 s{scnt}, {LIM_MEM}")
    g.label(L)
    g(loads)
    g("s_waitcnt vmcnt(0)")
    (tagcheck8 if b8 else tagcheck)(tags, acc)
    g(f"s_cbranch_vccz {Lo}")
    if onfail: g(onfail)
    if mask: g("s_mov_b64 exec, vcc")
    if sleep: g(f"s_sleep {sleep}")
    g(f"""s_sub_u32 s{scnt}, s{scnt}, 1
          s_cbranch_scc0 {L}""")
    g.label(Lo)
    if mask: g("s_mov_b64 exec, -1")

def flag16_wait(nm, ap):
    L, Lo = g.nl(nm), g.nl(nm + "o")
    g(f"s_mov_b32 s{sCNT}, {LIM_MEM}\ns_lshl_b32 s18, s{sTAG}, 4")
    g.label(L)
    g(f"""s_load_dwordx16 s[48:63], s[{ap}:{ap+1}], 0 glc
          s_sub_u32 s{sCNT}, s{sCNT}, 1
          s_cbranch_scc1 {Lo}
          s_waitcnt lgkmcnt(0)
          s_add_u32 s19, s48, s49""")
    for k in range(2, 16): g(f"s_add_u32 s19, s19, s{48+k}")
    g(f"s_cmp_eq_u32 s19, s18\ns_cbranch_scc0 {L}")
    g.label(Lo)
    g("s_waitcnt lgkmcnt(0)")

sTB = 66
def tagbytes():
    g(f"""s_and_b32 s{sTB}, s{sTAG}, 1
          s_mul_i32 s{sTB}, s{sTB}, 0x01010101
          s_and_b32 s{sTB+1}, s{sTAG}, 0xfefefefe
          s_or_b32 s{sTB}, s{sTB}, s{sTB+1}
          s_lshr_b32 s{sTB+1}, s{sTB}, 8
          s_lshr_b32 s{sTB+2}, s{sTB}, 16
          s_lshr_b32 s{sTB+3}, s{sTB}, 24""")
def tagput(regs, vmask):
    for d, r in enumerate(regs): g(f"v_bfi_b32 v{r}, v{vmask}, s{sTB+d}, v{r}")
def tagcheck8(bases, acc):
    first = True
    for b in bases:
        for d in range(4):
            if first: g(f"v_xor_b32 v{acc}, s{sTB+d}, v{b+d}"); first = False
            else: g(f"v_bitop3_b32 v{acc}, v{b+d}, s{sTB+d}, v{acc} bitop3:0xbe")
    g(f"v_and_b32 v{acc}, 0xff, v{acc}\nv_cmp_ne_u32 vcc, 0, v{acc}")

def fswz(dst, i, t):
    g(f"""v_lshrrev_b32 v{t}, 1, v{i}
          v_xor_b32 v{dst}, v{t}, v{i}
          v_and_b32 v{dst}, 4, v{dst}
          v_and_or_b32 v{dst}, v{i}, 2, v{dst}
          v_bfe_u32 v{t}, v{i}, 3, 1
          v_or_b32 v{dst}, v{dst}, v{t}""")

def sum_groups(base, n):
    step = 1
    while step < n:
        for a in range(0, n - step, 2 * step):
            g(f"v_pk_add_f32 {vr(base+4*a,2)}, {vr(base+4*a,2)}, {vr(base+4*(a+step),2)}")
            g(f"v_pk_add_f32 {vr(base+4*a+2,2)}, {vr(base+4*a+2,2)}, {vr(base+4*(a+step)+2,2)}")
        step *= 2

def red16(regs, full=True):
    for mod in ("row_ror:4", "row_ror:8"):
        g("s_nop 1")
        for r in regs: g(f"v_add_f32_dpp v{r}, v{r}, v{r} {mod} {DPPM}")
    for sw in (("v_permlane16_swap_b32", "v_permlane32_swap_b32") if full else ("v_permlane16_swap_b32",)):
        for r in regs: g(f"v_mov_b32 v{r+1}, v{r}")
        g("s_nop 1")
        for r in regs: g(f"{sw} v{r}, v{r+1}")
        for r in regs: g(f"v_add_f32 v{r}, v{r}, v{r+1}")

def mfma(d, a, b, first):
    g(f"v_mfma_f32_16x16x32_bf16 {vr(d,4)}, {vr(a,4)}, {vr(b,4)}, {'0' if first else vr(d,4)}")

K = NAME + "_kernel"
g(f"""s_cmp_ge_u32 s{sWG}, 256
      s_cbranch_scc1 L_END
      v_lshrrev_b32 v{VT}, 6, v0
      v_and_b32 v{LANE}, 63, v0
      v_readfirstlane_b32 s{sWV}, v{VT}
      v_mov_b32 v{VZ}, 0
      v_lshrrev_b32 v{vKG}, 4, v{LANE}
      s_cmp_eq_u32 s{sWV}, 9
      s_cbranch_scc0 L_noinit
      v_lshlrev_b32 v8, 2, v{LANE}
      v_cmp_eq_u32 vcc, 1, v{vKG}
      v_mov_b32 v10, 0xff800000
      s_nop 0
      v_cndmask_b32 v9, v{VZ}, v10, vcc
      ds_write_b32 v8, v9
      s_waitcnt lgkmcnt(0)""")
g.label("L_noinit")
g(f"""s_load_dwordx16 s[16:31], s[0:1], 0
      s_load_dwordx8 s[32:39], s[0:1], 64
      s_barrier
      v_mov_b32 v{VONE}, 1
      v_and_b32 v{vN}, 15, v{LANE}
      s_and_b32 s{sXCD}, s{sWG}, 7
      s_lshr_b32 s{sSLOT}, s{sWG}, 3
      s_lshr_b32 s{sHF}, s{sSLOT}, 3
      s_lshl_b32 s{sJ}, s{sXCD}, 2
      s_add_u32 s{sHF}, s{sHF}, s{sJ}
      s_and_b32 s{sJ}, s{sSLOT}, 7
      s_mov_b32 s{sPLO}, 0x05040100
      s_mov_b32 s{sPHI}, 0x07060302""")
if OPT["ts"]:
    g(f"v_mov_b32 v{VTS}, 0")
    stamp(0)
if OPT["pad"]:
    g(f"s_memrealtime vcc\ns_waitcnt lgkmcnt(0)\nv_mov_b32 v{VTS}, vcc_lo")
g(f"""s_cmp_lt_u32 s{sWV}, 5
      s_cbranch_scc1 L_A
      s_cmp_eq_u32 s{sWV}, 5
      s_cbranch_scc1 L_LN
      s_cmp_lt_u32 s{sWV}, 8
      s_cbranch_scc1 L_A5
      s_cmp_eq_u32 s{sWV}, 9
      s_cbranch_scc1 L_G9
      s_cmp_eq_u32 s{sWV}, 11
      s_cbranch_scc1 L_FFN""")
g(f"v_lshrrev_b32 v32, 3, v{LANE}")
fswz(33, 32, 34)
g(f"""v_and_b32 v34, 7, v{LANE}
      v_xor_b32 v33, v33, v34
      v_lshlrev_b32 v33, 4, v33
      v_lshl_add_u32 v36, v32, 10, v33
      s_bfe_u32 s43, s{sWV}, 0x10001
      s_and_b32 s40, s43, 1
      s_mul_i32 s40, s40, 80
      v_xor_b32 v36, s40, v36
      s_lshr_b32 s41, s{sSLOT}, 1""")
if OPT["ksmap"] == 0:
    g(f"s_lshl_b32 s41, s41, 3\ns_add_u32 s41, s41, s{sXCD}             ; ks")
else:
    g(f"s_lshl_b32 s42, s{sXCD}, 4\ns_add_u32 s41, s41, s42             ; ks")
g(f"""s_lshl_b32 s41, s41, 17                 ; ks*128KB
      s_lshl_b32 s42, s43, 13
      s_add_u32 s41, s41, s42                 ; + kgp*8192
      s_lshl_b32 s42, s43, 10
      s_add_u32 s42, s42, {KV}
      s_waitcnt lgkmcnt(0)""")
srd(44, P_KV, 16777216)
srd(WS, P_WS, WS_REC)
if OPT["gate"]:
    lds_wait(F_Q, OPT["gate"], 40, sleep=1)
stamp(8)
g.label("L_ld")
for cb in range(8):
    g(f"s_add_u32 m0, s42, {cb*(16384-128)}")
    g(f"s_waitcnt vmcnt({OPT['inflight']-1})")
    g(f"buffer_load_dwordx4 v36, {sr(44,4)}, s41 offen offset:{cb*128} {NT} lds")
g(f"""s_add_u32 s41, s41, {2*8192}
      s_add_u32 s42, s42, {2*1024}
      s_add_u32 s43, s43, 2
      s_cmp_lt_u32 s43, 16
      s_cbranch_scc1 L_ld""")
lds_inc(F_ISS)
stamp(1)
g("s_branch L_G")
g.label("L_LN")
g(f"""s_setprio 3
      v_mul_u32_u24 v6, 20, v{LANE}
      s_mov_b32 s{SR+2}, 1280
      s_mov_b32 s{SR+3}, 0x20000
      s_waitcnt lgkmcnt(0)
      s_mov_b32 s{SR}, s{P_X}
      s_mov_b32 s{SR+1}, s{P_X+1}
      buffer_load_dwordx4 v[8:11], v6, {sr(SR,4)}, 0 offen
      buffer_load_dword v12, v6, {sr(SR,4)}, 0 offen offset:16""")
srd(WS, P_WS, WS_REC)
g(f"v_add_u32 v6, {XNL}, v6\ns_waitcnt vmcnt(0)")
stamp(16)
U, E, Dd = 32, 44, 56
for k in range(5):
    g(f"v_lshlrev_b32 v{U+2*k}, 16, v{8+k}\nv_and_b32 v{U+2*k+1}, 0xffff0000, v{8+k}")
g(f"""v_pk_add_f32 v[14:15], {vr(U,2)}, {vr(U+2,2)}
      v_pk_add_f32 v[16:17], {vr(U+4,2)}, {vr(U+6,2)}
      v_pk_add_f32 v[14:15], v[14:15], {vr(U+8,2)}
      v_pk_add_f32 v[14:15], v[14:15], v[16:17]
      v_add_f32 v14, v14, v15""")
wave_sum(14, 40)
g(f"""s_nop 1
      v_mov_b32 v18, {hex(f32(-1.0/640))}
      v_mul_f32 v18, s40, v18                 ; -mean
      v_mov_b32 v19, v18""")
for k in range(5): g(f"v_pk_add_f32 {vr(E+2*k,2)}, {vr(U+2*k,2)}, v[18:19]")
g(f"v_pk_mul_f32 v[14:15], {vr(E,2)}, {vr(E,2)}")
for k in range(1, 5): g(f"v_pk_fma_f32 v[14:15], {vr(E+2*k,2)}, {vr(E+2*k,2)}, v[14:15]")
g(f"""v_cvt_pk_bf16_f32 v20, v18, v18
      v_add_f32 v14, v14, v15
      v_and_b32 v20, 0xffff0000, v20
      v_mov_b32 v21, v20""")
fill = [f"v_pk_add_f32 {vr(E+2*k,2)}, {vr(U+2*k,2)}, v[20:21]" for k in range(5)]
fill += [f"v_cvt_pk_bf16_f32 v{8+k}, v{E+2*k}, v{E+2*k+1}" for k in range(5)]
fill += [x for k in range(5) for x in (f"v_lshlrev_b32 v{Dd+2*k}, 16, v{8+k}", f"v_and_b32 v{Dd+2*k+1}, 0xffff0000, v{8+k}")]
steps = [f"v_add_f32_dpp v14, v14, v14 {m} {DPPM}" for m in ("quad_perm:[1,0,3,2]", "quad_perm:[2,3,0,1]", "row_half_mirror", "row_mirror")]
steps += ["v_add_f32_dpp v14, v14, v14 row_bcast:15 row_mask:0xa bank_mask:0xf", "v_add_f32_dpp v14, v14, v14 row_bcast:31 row_mask:0xc bank_mask:0xf", "v_readlane_b32 s42, v14, 63"]
for st_ in steps:
    g(st_); g(fill.pop(0)); g(fill.pop(0))
g(f"""v_mov_b32 v22, {hex(f32(1.0/640))}
      v_mul_f32 v22, s42, v22""")
rne(22)
g(f"v_add_f32 v22, {hex(f32(1e-5))}, v22")
rne(22)
g("v_sqrt_f32 v22, v22"); g(fill.pop(0))
rne(22)
g("v_rcp_f32 v22, v22")
while fill: g(fill.pop(0))
g("v_mov_b32 v23, v22")
for k in range(5): g(f"v_pk_mul_f32 {vr(Dd+2*k,2)}, {vr(Dd+2*k,2)}, v[22:23]")
for k in range(5): g(f"v_cvt_pk_bf16_f32 v{8+k}, v{Dd+2*k}, v{Dd+2*k+1}")
g(f"""ds_write2_b32 v6, v8, v9 offset0:0 offset1:1
      ds_write2_b32 v6, v10, v11 offset0:2 offset1:3
      ds_write_b32 v6, v12 offset:16
      ds_write_b32 v{VZ}, v{VONE} offset:{F_XN}""")
stamp(17)
g("s_branch L_A_q")
g.label("L_A5")
g(f"""s_sub_u32 s43, s{sWV}, 6
      v_xor_b32 v8, v{vN}, v{vKG}
      v_lshlrev_b32 v8, 4, v8
      v_lshl_add_u32 v8, v{vKG}, 13, v8
      s_lshl_b32 s40, s43, 6
      v_xor_b32 v8, s40, v8                   ; u&3 = r
      v_xor_b32 v9, 128, v8                   ; u&3 = r+2
      s_lshl_b32 s48, s{sJ}, 19               ; 64*j rows * 8192
      s_lshl_b32 s49, s{sHF}, 8
      s_add_u32 s48, s48, s49
      s_lshl_b32 s49, s43, 15
      s_add_u32 s48, s48, s49
      s_lshl_b32 s50, s43, 10
      s_getpc_b64 s[44:45]""")
g.label("L_pc")
g(f"""s_sub_u32 s44, s44, L_pc-{K}
      s_subb_u32 s45, s45, 0
      s_lshl_b32 s41, s{sSLOT}, 1
      s_add_u32 s41, s41, s43
      s_lshl_b32 s41, s41, 2
      v_add_u32 v10, s41, v{LANE}
      v_lshlrev_b32 v10, 7, v10
      s_mov_b32 s41, L_CODE_END-{K}
      v_cmp_gt_u32 s[46:47], s41, v10
      s_waitcnt lgkmcnt(0)""")
srd(WS, P_WS, WS_REC)
srd(SR, P_WUK, 4194304)
lds_wait(F_QI, 5, 41)
for k in range(8):
    g(f"s_add_u32 m0, s50, {QL + k*2048}")
    g(f"s_add_u32 s49, s48, {k*8*8192}")
    g(f"buffer_load_dwordx4 v{8+(k&1)}, {sr(SR,4)}, s49 offen {NT} lds")
g(f"""s_and_b64 exec, s[46:47], 0xf
      s_cbranch_execz L_nopf
      global_load_dword v159, v10, s[44:45]""")
g.label("L_nopf")
g("s_mov_b64 exec, -1\ns_branch L_A_q")
g.label("L_G9")
g(f"""s_setprio 3
      s_waitcnt lgkmcnt(0)
      s_load_dword s40, s[{P_WS}:{P_WS+1}], {EPOCH}""")
srd(WS, P_WS, WS_REC)
g(f"""v_lshlrev_b32 v8, 4, v{vN}              ; n*16
      s_lshl_b32 s41, s{sHF}, 3
      s_add_u32 s41, s41, s{sJ}
      s_lshl_b32 s41, s41, 8
      s_add_u32 s43, s41, {QAM}
      s_lshl_b32 s42, s{sHF}, 14
      s_lshl_b32 s41, s{sJ}, 8
      s_add_u32 s42, s42, s41
      s_add_u32 s42, s42, {QM}
      s_add_u32 s45, s42, 8192
      v_lshl_add_u32 v7, v{vKG}, 11, v8
      v_mov_b32 v11, 1
      s_waitcnt lgkmcnt(0)
      s_mul_i32 s{sTAG}, s40, 1664525
      s_add_u32 s{sTAG}, s{sTAG}, 1013904223
      v_mov_b32 v10, s{sTAG}
      v_mov_b32 v13, s{sTAG}
      v_mov_b32 v15, s{sTAG}
      ds_write_b64 v{VZ}, v[10:11] offset:{F_TAG}""")
stamp(1)
if OPT["warm"]:
    g(f"""s_and_b32 s46, s{sSLOT}, 1
          s_lshl_b32 s46, s46, 7
          s_add_u32 s46, s46, s{sXCD}
          s_lshl_b32 s46, s46, 7
          s_add_u32 s46, s46, {HD}
          v_lshlrev_b32 v9, 10, v{vN}
          v_and_b32 v16, 1, v{vKG}
          v_lshl_add_u32 v9, v16, 15, v9""")
    lds_wait(F_QI, 5, 40)
    g(f"""buffer_load_dwordx4 v[16:19], v7, {sr(WS,4)}, s42 offen sc1
          buffer_load_dwordx4 v[16:19], v7, {sr(WS,4)}, s45 offen sc1
          buffer_load_dwordx4 v[16:19], v8, {sr(WS,4)}, s43 offen sc1
          buffer_load_dword v16, v9, {sr(WS,4)}, s46 offen sc1""")
lds_wait(F_Q, 5, 40)
g("\n".join(f"ds_read_b128 {vr(32+4*b,4)}, v8 offset:{REDQ+256*b}" for b in range(5)))
g("s_waitcnt lgkmcnt(0)")
sum_groups(32, 5)
g(f"""v_cvt_pk_bf16_f32 v12, v32, v33
      v_cvt_pk_bf16_f32 v14, v34, v35
      buffer_store_dwordx4 v[12:15], v7, {sr(WS,4)}, s42 offen sc1
      buffer_store_dwordx4 v[12:15], v7, {sr(WS,4)}, s45 offen sc1
      ds_write_b32 v{VZ}, v{VONE} offset:{F_QP}
      s_mov_b64 exec, 0xffff""")
stamp(2)
lds_wait(F_QA, 8, 40)
g("\n".join(f"ds_read_b128 {vr(32+4*b,4)}, v8 offset:{REDQA+256*b}" for b in range(8)))
g("s_waitcnt lgkmcnt(0)")
sum_groups(32, 8)
for r in range(4): g(f"v_mul_f32 v{32+r}, {hex(f32(SCALE))}, v{32+r}")
g(f"""v_cvt_pk_bf16_f32 v12, v32, v33
      v_cvt_pk_bf16_f32 v14, v34, v35
      buffer_store_dwordx4 v[12:15], v8, {sr(WS,4)}, s43 offen sc1
      ds_write_b32 v{VZ}, v{VONE} offset:{F_QAP}
      s_mov_b64 exec, -1
      s_setprio 0""")
stamp(3)
lds_wait(F_ISS, 2, 40, sleep=2)
g("s_branch L_G_uv9")

g.label("L_A")
g(f"""s_setprio 2
      v_lshlrev_b32 v24, 16, v{vKG}
      v_lshl_add_u32 v24, v{vN}, 3, v24       ; + n*8
      s_lshr_b32 s40, s{sJ}, 1                ; mq
      s_mul_i32 s40, s40, 160
      s_lshl_b32 s41, s{sWV}, 5
      s_add_u32 s40, s40, s41
      s_lshl_b32 s41, s40, 13                 ; row0*8192
      s_lshl_b32 s42, s{sHF}, 8
      s_add_u32 s41, s41, s42
      s_and_b32 s42, s{sJ}, 1
      s_lshl_b32 s42, s42, 7
      s_add_u32 s41, s41, s42                 ; w_q soffset
      s_lshl_b32 s40, s40, 1
      v_lshlrev_b32 v112, 4, v{vKG}
      v_add_u32 v112, s40, v112
      s_mov_b32 s46, 5242880
      s_mov_b32 s47, 0x20000
      s_waitcnt lgkmcnt(0)
      s_mov_b32 s44, s{P_WQ}
      s_mov_b32 s45, s{P_WQ+1}
      s_nop 3""")
load_block(32, 24, 44, 41, 42, 8192)
lds_inc(F_QI)
srd(WS, P_WS, WS_REC)
g(f"""v_lshlrev_b32 v113, 4, v{vN}
      s_lshl_b32 s40, s{sWV}, 8
      v_add_u32 v113, s40, v113""")
g.label("L_A_q")
g("s_setprio 2")
g(f"""s_and_b32 s40, s{sSLOT}, 1              ; g
      s_lshl_b32 s41, s40, 4
      s_lshl_b32 s42, s{sWV}, 1
      s_add_u32 s41, s41, s42                 ; 16g+2w
      s_lshl_b32 s41, s41, 11
      s_add_u32 s20, s41, {QAM}
      s_lshr_b32 s21, s{sSLOT}, 1             ; mi 0..15
      s_lshl_b32 s42, s40, 7                  ; 16g*8
      s_add_u32 s42, s42, s{sWV}
      s_lshl_b32 s42, s42, 3
      s_add_u32 s42, s42, s{sXCD}
      s_lshl_b32 s42, s42, 4
      s_add_u32 s42, s42, s21
      s_lshl_b32 s42, s42, 7
      s_add_u32 s26, s42, {IB}
      s_add_u32 s22, s26, {2*8*8*2048}
      s_lshl_b32 s42, s40, 7                  ; 16g*8
      s_add_u32 s42, s42, s{sXCD}
      s_lshl_b32 s42, s42, 4
      s_add_u32 s42, s42, s21
      s_lshl_b32 s42, s42, 3
      s_add_u32 s27, s42, {HD}
      s_add_u32 s23, s27, 0x8000
      s_lshl_b32 s42, s{sHF}, 3
      s_add_u32 s42, s42, s{sWV}
      s_lshl_b32 s42, s42, 7
      s_add_u32 s31, s42, {HD}
      s_lshl_b32 s42, s{sHF}, 3
      s_add_u32 s42, s42, s{sJ}
      s_lshl_b32 s42, s42, 3
      s_add_u32 s42, s42, s{sWV}              ; (h*8+j)*8+w
      s_lshl_b32 s30, s42, 11
      s_add_u32 s30, s30, {IB}
      s_lshl_b32 s42, s42, 8
      s_add_u32 s42, s42, {QM}
      s_add_u32 s32, s{WS}, s42
      s_addc_u32 s33, s{WS+1}, 0
      s_and_b32 s40, s{sWV}, 1
      s_lshl_b32 s40, s40, 3                  ; 8*dhalf'
      v_xor_b32 v6, s40, v{vN}
      v_lshlrev_b32 v6, 4, v6
      v_lshl_add_u32 v6, v{LANE}, 8, v6       ; row*256 + ...
      v_lshlrev_b32 v10, 2, v{LANE}
      s_lshl_b32 s40, s{sWV}, 8
      v_add_u32 v10, s40, v10
      v_mov_b32 v8, 0
      v_mov_b32 v9, 0""")
W = 80
QKA, PVA = 32, 96
fswz(24, vN, 25)
g(f"""v_xor_b32 v24, v24, v{vKG}
      v_lshlrev_b32 v24, 4, v24
      v_and_b32 v25, 7, v{vN}
      v_lshl_add_u32 v24, v25, 7, v24         ; + (i&7)*128
      v_lshrrev_b32 v25, 3, v{vN}
      v_lshl_add_u32 v24, v25, 10, v24        ; + (i>>3)*1024
      s_lshl_b32 s42, s{sWV}, 11
      s_add_u32 s42, s42, {KV}
      v_add_u32 v160, s42, v24
      v_xor_b32 v161, 64, v160
      v_add_u32 v162, 0x10000, v160
      v_add_u32 v163, 0x10000, v161
      v_lshrrev_b32 v26, 2, v{LANE}           ; i16""")
fswz(24, 26, 25)
g(f"""s_and_b32 s42, s{sWV}, 3
      s_lshl_b32 s42, s42, 1
      v_bfe_u32 v25, v{LANE}, 1, 1
      v_or_b32 v25, s42, v25                  ; xi = 2(w&3) + (c'>>1)
      v_xor_b32 v24, v24, v25
      v_lshlrev_b32 v24, 4, v24
      v_and_b32 v25, 1, v{LANE}
      v_lshl_add_u32 v24, v25, 3, v24
      v_and_b32 v25, 7, v26
      v_lshl_add_u32 v24, v25, 7, v24
      v_lshrrev_b32 v25, 3, v26
      v_lshl_add_u32 v24, v25, 10, v24
      s_lshr_b32 s42, s{sWV}, 2
      s_lshl_b32 s42, s42, 14
      s_add_u32 s42, s42, {KV}
      v_add_u32 v164, s42, v24
      v_add_u32 v165, 0x10000, v164
      v_lshrrev_b32 v24, 1, v{vN}             ; xi
      v_and_b32 v25, 4, v24
      v_lshl_or_b32 v25, v25, 1, v24          ; sigma
      s_lshl_b32 s42, s{sWV}, 1
      v_xor_b32 v25, s42, v25
      v_lshlrev_b32 v25, 4, v25
      v_lshl_add_u32 v25, v24, 8, v25         ; + xi*256
      v_lshl_add_u32 v25, v{vKG}, 11, v25     ; + (l>>4)*2048
      v_and_b32 v24, 1, v{LANE}
      v_lshl_add_u32 v28, v24, 3, v25
      v_xor_b32 v29, 16, v28
      v_xor_b32 v30, v{vN}, v{vKG}
      v_lshlrev_b32 v30, 4, v30
      v_lshl_add_u32 v30, v{vKG}, 8, v30
      v_xor_b32 v31, {12*16}, v30             ; odd s
      v_lshlrev_b32 v166, 4, v{LANE}          ; lane*16""")
g(f"s_cmp_ge_u32 s{sWV}, 5\ns_cbranch_scc1 L_A_q2")
for p in range(4):
    g(f"s_waitcnt vmcnt({6-2*p})")
    e = 2 * p
    for d in range(2):
        g(f"v_perm_b32 v{48+8*d+p}, v{32+2*(e+1)+d}, v{32+2*e+d}, s{sPLO}")
        g(f"v_perm_b32 v{48+8*d+4+p}, v{32+2*(e+1)+d}, v{32+2*e+d}, s{sPHI}")
stamp(18)
lds_wait(F_XN, 1, 19, extra=f"ds_read_b128 v[116:119], v112 offset:{XNL}")
for t in range(4): mfma(64 + 4 * t, 116, 48 + 4 * t, True)
g(f"""s_nop 6
      v_mov_b32 v65, v68
      v_mov_b32 v66, v72
      v_mov_b32 v67, v76
      s_mov_b64 exec, 0xffff
      ds_write_b128 v113, v[64:67] offset:{REDQ}
      s_mov_b64 exec, 1
      ds_add_u32 v{VZ}, v{VONE} offset:{F_Q}
      s_mov_b64 exec, -1""")
g.label("L_A_q2")
stamp(2)
get_tag(7)
g(f"s_lshl_b32 s18, s{sTAG}, 5              ; 32*TAG")
lds_wait(F_QP, 1, 19, sleep=1)
if OPT["d1"]: g(f"s_sleep {OPT['d1']}")
stamp(3)
L, Lo = g.nl("h1"), g.nl("h1o")
g(f"s_mov_b32 s{sCNT}, {LIM_MEM}")
g.label(L)
for k in range(4):
    g(f"s_load_dwordx16 {sr(36+16*k,16)}, s[32:33], {64*k} glc")
g(f"""s_sub_u32 s{sCNT}, s{sCNT}, 1
      s_cbranch_scc1 {Lo}
      s_waitcnt lgkmcnt(0)
      s_cmp_eq_u32 s99, s{sTAG}
      s_cbranch_scc0 {L}
      s_add_u32 s19, s37, s39""")
for k in range(2, 32):
    g(f"s_add_u32 s19, s19, s{37+2*k}")
g(f"s_cmp_eq_u32 s19, s18\ns_cbranch_scc0 {L}")
g.label(Lo)
stamp(1)
g(f"""s_cmp_lt_u32 s{sWV}, 6
      s_cbranch_scc1 L_nouk
      s_waitcnt vmcnt(0)""")
lds_inc(F_UK)
g.label("L_nouk")
lds_wait(F_UK, 2, 19)
for e in range(8):
    if e: g(f"v_xor_b32 v7, {e*16}, v6")
    g(f"ds_read_b128 {vr(W+4*e,4)}, v{6 if e == 0 else 7} offset:{QL}")
for k in range(32):
    if k % 4 == 0: g(f"s_waitcnt lgkmcnt({7 - k//4})")
    g(f"v_dot2c_f32_bf16 v{8+(k&1)}, s{36+2*k}, v{W+k}")
g(f"""s_nop 2
      v_add_f32 v8, v8, v9
      ds_write_b32 v10, v8 offset:{REDQA}""")
lds_inc(F_QA)
stamp(4)
lds_wait(F_QAP, 1, 42, sleep=1)
lds_wait(F_ISS, OPT["h2iss"], 42, sleep=1)
h2_loads = "\n".join(f"buffer_load_dwordx4 {vr(8+4*n,4)}, v{VL16}, {sr(WS,4)}, s20 offen offset:{1024*n} sc1" for n in range(4))
g(h2_loads)
stamp(5)
lds_wait(F_LAND, 2, 42)
stamp(6)
for s in range(16):
    cb = s >> 1
    a = 160 + (s & 1) + (2 if cb >= 4 else 0)
    g(f"ds_read_b128 {vr(QKA+4*s,4)}, v{a} offset:{(cb&3)*16384}")
L, Lo = g.nl("h2c"), g.nl("h2co")
g(f"s_mov_b32 s43, {LIM_MEM}")
g.label(L)
g("s_waitcnt vmcnt(0)")
tagcheck([9, 11, 13, 15, 17, 19, 21, 23], 24)
g(f"""s_cbranch_vccz {Lo}
      s_sub_u32 s43, s43, 1
      s_cbranch_scc1 {Lo}
      s_sleep {OPT["bk2"]}
      s_mov_b64 exec, vcc""")
g(h2_loads)
g(f"s_mov_b64 exec, -1\ns_branch {L}")
g.label(Lo)
stamp(7)
for n in range(4):
    g(f"v_mov_b32 v{9+4*n}, v{10+4*n}")
lds_wait(F_QA, 8, 42)
for n in range(4):
    g(f"ds_write_b64 v{28+(n>>1)}, {vr(8+4*n,2)} offset:{QL+(n&1)*8192}")
lds_inc(F_STG)
for i in range(4):
    for u in range(4):
        for hh in range(2):
            T = 2 * u + hh
            g(f"ds_read_b64_tr_b16 {vr(PVA+16*i+4*u+2*hh,2)}, v{164+(i>>1)} offset:{(i&1)*32768+T*2048}")
g(f"""s_lshr_b32 s42, s{sWV}, 1
      s_lshl_b32 s42, s42, 10
      s_and_b32 s43, s{sWV}, 1
      s_lshl_b32 s43, s43, 3
      s_add_u32 s42, s42, s43
      v_add_u32 v7, s42, v{VL16}
      v_lshlrev_b32 v6, 5, v{vN}
      s_lshl_b32 s42, s{sWV}, 2
      v_add_u32 v29, s42, v6
      v_lshrrev_b32 v24, 3, v{vN}
      v_lshl_add_u32 v24, v{vKG}, 2, v24      ; head = 4q + (j>>3)
      v_lshlrev_b32 v28, 17, v24              ; * 8*8*2048
      v_and_b32 v24, 7, v{vN}
      v_lshl_add_u32 v28, v24, 4, v28
      s_mov_b32 s43, 0x3f803f80
      s_and_b32 s42, s{sTAG}, 1
      s_mul_i32 s42, s42, 0x01010101
      s_and_b32 s44, s{sTAG}, 0xfefefefe
      s_or_b32 s42, s42, s44
      v_and_b32 v24, 3, v{LANE}
      v_lshlrev_b32 v24, 3, v24
      v_lshrrev_b32 v24, v24, s42
      v_lshl_or_b32 v24, v24, 15, v24
      s_mov_b32 s44, 0x00010001""")
TP = 160
g(f"v_and_b32 v25, 0xff, v24\nv_lshlrev_b32 v24, 15, v25\nv_or_b32 v24, v24, v25")
for d in range(4):
    g(f"v_lshrrev_b32 v25, {2*d}, v24\nv_and_b32 v{TP+d}, s44, v25")
def bread(s): return f"ds_read_b128 {vr(8+4*(s&3),4)}, v{30+(s&1)} offset:{QL+s*1024}"
lds_wait(F_STG, 8, 42)
stamp(8)
g("\n".join(bread(s) for s in range(4)))
SA = 24
for s in range(16):
    g(f"s_waitcnt lgkmcnt({min(3, 15-s)})")
    mfma(SA, QKA + 4 * s, 8 + 4 * (s & 3), s == 0)
    if s + 4 < 16: g(bread(s + 4))
VM = 10
if OPT["amax"]:
    g(f"""v_lshlrev_b32 v8, 2, v{vN}
          v_mov_b32 v11, 0
          s_nop 5
          v_max3_f32 v9, v{SA}, v{SA+1}, v{SA+2}
          v_max_f32 v9, v9, v{SA+3}
          ds_max_f32 v8, v9 offset:{RMAX}""")
    lds_inc(F_MAX)
    stamp(14)
    lds_wait(F_MAX, 8, 42, extra=f"ds_read_b32 v{VM}, v8 offset:{RMAX}")
else:
    g(f"""v_mov_b32 v11, 0
          s_nop 6
          v_max3_f32 v9, v{SA}, v{SA+1}, v{SA+2}
          v_max_f32 v9, v9, v{SA+3}
          v_mov_b32 v8, v9
          s_nop 1
          v_permlane16_swap_b32 v9, v8
          v_max_f32 v9, v9, v8
          v_mov_b32 v8, v9
          s_nop 1
          v_permlane32_swap_b32 v9, v8
          v_max_f32 v9, v9, v8
          s_mov_b64 exec, 0xffff
          ds_write_b32 v29, v9 offset:{RMX}
          s_mov_b64 exec, 1
          ds_add_u32 v{VZ}, v{VONE} offset:{F_MAX}
          s_mov_b64 exec, -1""")
    stamp(14)
    lds_wait(F_MAX, 8, 42, extra=f"ds_read_b128 v[12:15], v6 offset:{RMX}\nds_read_b128 v[16:19], v6 offset:{RMX+16}")
    g(f"""v_max3_f32 v{VM}, v12, v13, v14
          v_max3_f32 v16, v15, v16, v17
          v_max3_f32 v{VM}, v{VM}, v18, v19
          v_max_f32 v{VM}, v{VM}, v16""")
for r in range(4): g(f"v_sub_f32 v{SA+r}, v{SA+r}, v{VM}")
for r in range(4): g(f"v_exp_f32 v{SA+r}, v{SA+r}")
g(f"""v_lshlrev_b32 v15, 10, v{vN}
      v_cvt_pk_bf16_f32 v12, v{SA}, v{SA+1}
      v_cvt_pk_bf16_f32 v13, v{SA+2}, v{SA+3}
      ds_write_b64 v7, v[12:13] offset:{PL}""")
lds_inc(F_P)
g(f"""v_dot2c_f32_bf16 v11, s43, v12
      v_dot2c_f32_bf16 v11, s43, v13
      v_lshlrev_b32 v14, 2, v29               ; n*128 + T*16
      v_lshl_add_u32 v14, v{vKG}, 2, v14      ; + q*4
      s_cmp_eq_u32 s{sWV}, 0
      ds_write_b32 v14, v11 offset:{RLP}
      s_mov_b64 exec, 1
      ds_add_u32 v{VZ}, v{VONE} offset:{F_L}
      s_cbranch_scc0 L_nomh
      s_mov_b64 exec, 0xffff
      v_mov_b32 v11, s{sTAG}
      buffer_store_dwordx2 v[10:11], v15, {sr(WS,4)}, s27 offen sc1""")
g.label("L_nomh")
g("s_mov_b64 exec, -1")
stamp(15)
PF = 32
lds_wait(F_P, 8, 42)
stamp(9)
g("\n".join(f"ds_read_b128 {vr(PF+4*u,4)}, v{VL16} offset:{PL+1024*u}" for u in range(4)))
OA = 48
for u in range(4):
    g(f"s_waitcnt lgkmcnt({3-u})")
    for i in range(4): mfma(OA + 4 * i, PF + 4 * u, PVA + 16 * i + 4 * u, u == 0)
GR = 64
g("s_nop 6")
for a in range(2):
    A0, B0, T0 = GR + 4 * a, GR + 4 * a + 2, 72
    for d in range(2):
        g(f"v_perm_b32 v{A0+d}, v{OA+8*d+4+2*a}, v{OA+8*d+2*a}, s{sPHI}")
        g(f"v_perm_b32 v{B0+d}, v{OA+8*d+4+2*a+1}, v{OA+8*d+2*a+1}, s{sPHI}")
    g("s_nop 0")
    for d in range(2): g(f"v_mov_b32_dpp v{T0+d}, v{A0+d} row_ror:8 {DPPM}")
    for d in range(2): g(f"v_mov_b32_dpp v{A0+d}, v{B0+d} row_ror:8 row_mask:0xf bank_mask:0xc")
    for d in range(2): g(f"v_mov_b32_dpp v{B0+d}, v{T0+d} quad_perm:[0,1,2,3] row_mask:0xf bank_mask:0x3")
    for d in range(4): g(f"v_xad_u32 v{A0+d}, v{TP+d}, s44, v{A0+d}")
    for d in range(4): g(f"v_bfi_b32 v{A0+d}, s44, v{TP+d}, v{A0+d}")
    g(f"buffer_store_dwordx4 {vr(A0,4)}, v28, {sr(WS,4)}, s{26 if a == 0 else 22} offen sc1")
stamp(10)
MK = 76
g(f"""v_and_b32 v12, 1, v{LANE}
      v_lshlrev_b32 v12, 4, v12
      v_mov_b32 v13, 0xffff
      v_lshlrev_b32 v13, v12, v13
      v_bfe_u32 v12, v{LANE}, 1, 2""")
for p in range(4):
    g(f"v_cmp_eq_u32 vcc, {p}, v12\ns_nop 1\nv_cndmask_b32 v{MK+p}, v{VZ}, v13, vcc")
g(f"""v_lshlrev_b32 v16, 2, v{vN}
      s_lshl_b32 s42, s{sWV}, 6
      v_add_u32 v16, s42, v16
      v_lshrrev_b32 v17, 3, v{LANE}
      v_lshlrev_b32 v17, 2, v17
      v_add_u32 v17, s42, v17
      v_lshrrev_b32 v18, 3, v{vN}             ; a = j>>3
      s_lshl_b32 s42, s{sWV}, 1
      v_add_u32 v19, s42, v18
      v_mul_u32_u24 v19, 144, v19
      v_and_b32 v20, 7, v{vN}
      v_lshl_add_u32 v19, v20, 4, v19
      v_and_b32 v20, 1, v{vKG}
      v_lshl_add_u32 v19, v20, 3, v19
      v_lshrrev_b32 v20, 1, v{vKG}
      v_cmp_eq_u32 s[46:47], v18, v20
      v_lshlrev_b32 v21, 7, v{vN}
      v_lshlrev_b32 v14, 3, v{LANE}           ; lane*8
      s_cmp_eq_u32 s{sWV}, 1
      s_cbranch_scc0 L_nohdr""")
lds_wait(F_L, 8, 42)
for k in range(8): g(f"ds_read_b128 {vr(80+4*k,4)}, v21 offset:{RLP+16*k}")
g(f"v_mov_b32 v13, s{sTAG}\ns_waitcnt lgkmcnt(0)")
sum_groups(80, 8)
g(f"""v_add_f32 v80, v80, v81
      v_add_f32 v82, v82, v83
      v_add_f32 v12, v80, v82
      s_mov_b64 exec, 0xffff
      buffer_store_dwordx2 v[12:13], v15, {sr(WS,4)}, s23 offen sc1
      s_mov_b64 exec, -1""")
g.label("L_nohdr")
if OPT["d3"]: g(f"s_sleep {OPT['d3']}")
stamp(22)
IR = 80
ib_loads = f"""buffer_load_dwordx4 {vr(IR,4)}, v{VL16}, {sr(WS,4)}, s30 offen sc1
      buffer_load_dwordx4 {vr(IR+4,4)}, v{VL16}, {sr(WS,4)}, s30 offen offset:1024 sc1"""
L, Lo = g.nl("h3"), g.nl("h3o")
g(f"s_mov_b32 s43, {LIM_MEM}\ns_mov_b64 exec, 0xffff")
g.label(L)
g(f"""buffer_load_dwordx2 v[24:25], v14, {sr(WS,4)}, s31 offen sc1
      s_waitcnt vmcnt(0)
      v_cmp_ne_u32 vcc, s{sTAG}, v25
      s_sub_u32 s43, s43, 1
      s_cbranch_scc1 {Lo}
      s_cbranch_vccz {Lo}
      s_mov_b64 exec, vcc
      s_sleep {OPT["bk3"]}
      s_branch {L}""")
g.label(Lo)
Lf = g.nl("h3f")
g(f"""s_mov_b64 exec, 0xffff
      ds_write_b32 v16, v24 offset:{MLT}
      s_mov_b64 exec, 1
      ds_add_u32 v{VZ}, v{VONE} offset:{F_ML}
      s_mov_b64 exec, -1
      s_cmp_eq_u32 s43, {LIM_MEM-1}
      s_cbranch_scc1 {Lf}
      s_sleep {OPT["d3b"]}""")
g.label(Lf)
g(ib_loads)
stamp(11)
def global_max(dst, t0):
    g(f"""v_max_f32 v{dst}, v{t0}, v{t0+1}""")
    for mod in ("quad_perm:[1,0,3,2]", "quad_perm:[2,3,0,1]", "row_half_mirror", "row_mirror"):
        g(f"s_nop 1\nv_max_f32_dpp v{dst}, v{dst}, v{dst} {mod} {DPPM}")
    for sw in ("v_permlane16_swap_b32", "v_permlane32_swap_b32"):
        g(f"v_mov_b32 v{dst+1}, v{dst}\ns_nop 1\n{sw} v{dst}, v{dst+1}\nv_max_f32 v{dst}, v{dst}, v{dst+1}")
lds_wait(F_ML, 8, 42)
g(f"""ds_read_b64 v[24:25], v14 offset:{MLT}
      ds_read_b32 v8, v17 offset:{MLT}
      ds_read_b32 v9, v17 offset:{MLT+32}
      s_waitcnt lgkmcnt(0)""")
global_max(22, 24)
g(f"""v_sub_f32 v8, v8, v22
      v_sub_f32 v9, v9, v22
      v_exp_f32 v8, v8
      v_exp_f32 v9, v9
      s_nop 0
      v_cvt_pk_bf16_f32 v8, v8, v8
      v_cvt_pk_bf16_f32 v9, v9, v9""")
for n in range(2):
    for p in range(4): g(f"v_and_b32 v{88+4*n+p}, v{8+n}, v{MK+p}")
L, Lo = g.nl("h3d"), g.nl("h3do")
g(f"s_mov_b32 s43, {LIM_MEM}")
g.label(L)
g(f"s_waitcnt vmcnt(0)\nv_xor_b32 v{VT}, v{IR}, v{TP}")
for k in range(1, 8): g(f"v_bitop3_b32 v{VT}, v{IR+k}, v{TP+(k&3)}, v{VT} bitop3:0xbe")
g(f"""v_and_b32 v{VT}, s44, v{VT}
      v_cmp_ne_u32 vcc, 0, v{VT}
      s_cbranch_vccz {Lo}
      s_sub_u32 s43, s43, 1
      s_cbranch_scc1 {Lo}
      s_lshr_b64 s[48:49], vcc, 4
      s_or_b64 vcc, vcc, s[48:49]
      s_lshr_b64 s[48:49], vcc, 2
      s_or_b64 vcc, vcc, s[48:49]
      s_lshr_b64 s[48:49], vcc, 1
      s_or_b64 vcc, vcc, s[48:49]
      s_and_b32 s48, vcc_lo, 0x01010101
      s_and_b32 s49, vcc_hi, 0x01010101
      s_mul_i32 exec_lo, s48, 0xff
      s_mul_i32 exec_hi, s49, 0xff
      s_sleep {OPT["bk3"]}
      {ib_loads}
      s_branch {L}""")
g.label(Lo)
g("s_mov_b64 exec, -1")
stamp(12)
mfma(96, 88, IR, True)
mfma(96, 92, IR + 4, False)
g(f"""s_nop 7
      v_cvt_pk_bf16_f32 v100, v96, v97
      v_cvt_pk_bf16_f32 v101, v98, v99
      s_mov_b64 exec, s[46:47]
      ds_write_b64 v19, v[100:101] offset:{RIB}
      s_mov_b64 exec, 1
      ds_add_u32 v{VZ}, v{VONE} offset:{F_IB}
      s_mov_b64 exec, -1""")
stamp(13)
g(f"""s_cmp_lt_u32 s{sWG}, 20
      s_cbranch_scc0 L_A_end
      s_lshl_b32 s41, s{sWG}, 14
      s_lshl_b32 s42, s{sWV}, 11
      s_add_u32 s41, s41, s42
      s_add_u32 s41, s41, {SM}
      v_and_b32 v7, 7, v{LANE}
      v_lshlrev_b32 v6, 4, v7
      s_lshl_b32 s42, s{sWV}, 7
      v_add_u32 v6, s42, v6
      v_lshlrev_b32 v7, 3, v7
      s_lshl_b32 s55, s{sWG}, 6""")
tagbytes()
def red8(b):
    g("s_nop 0")
    for r in range(4): g(f"v_add_f32_dpp v{b+r}, v{b+r}, v{b+r} row_ror:8 {DPPM}")
    for sw in ("v_permlane16_swap_b32", "v_permlane32_swap_b32"):
        for r in range(4): g(f"v_mov_b32 v{b+4+r}, v{b+r}")
        for r in range(4): g(f"{sw} v{b+r}, v{b+4+r}")
        for r in range(4): g(f"v_add_f32 v{b+r}, v{b+r}, v{b+4+r}")
g(f"""s_cmp_eq_u32 s{sWV}, 0
      s_cbranch_scc0 L_fin_s""")
srd(SR, P_X, 1280)
g(f"""buffer_load_dwordx2 v[16:17], v7, {sr(SR,4)}, s55 offen
      s_lshl_b32 s40, s{sWG}, 12
      s_add_u32 s40, s40, {YM}""")
for d in range(4): g(f"v_mov_b32 v{60+d}, s{sTB+d}\nv_and_b32 v{60+d}, 0xff, v{60+d}")
poll_loads("h7", f"""buffer_load_dwordx4 v[48:51], v{VL16}, {sr(WS,4)}, s40 offen sc1
      buffer_load_dwordx4 v[52:55], v{VL16}, {sr(WS,4)}, s40 offen offset:1024 sc1
      buffer_load_dwordx4 v[56:59], v{VL16}, {sr(WS,4)}, s40 offen offset:2048 sc1
      s_mov_b64 exec, 0xffffff
      buffer_load_dwordx4 v[60:63], v{VL16}, {sr(WS,4)}, s40 offen offset:3072 sc1
      s_mov_b64 exec, -1""", [48, 52, 56, 60], 43, sleep=4, mask=False, b8=True)
sum_groups(48, 4)
red8(48)
for r in range(48, 52): rne(r)
for r in range(48, 52): g(f"v_mul_f32 v{r+4}, {hex(f32(-math.log2(math.e)))}, v{r}")
for r in range(48, 52): g(f"v_exp_f32 v{r+4}, v{r+4}")
for r in range(48, 52): g(f"v_add_f32 v{r+4}, 1.0, v{r+4}")
for r in range(48, 52): g(f"v_rcp_f32 v{r+4}, v{r+4}")
for r in range(48, 52): g(f"v_mul_f32 v{r}, v{r}, v{r+4}")
for r in range(48, 52): rne(r)
g("""v_lshlrev_b32 v20, 16, v16
     v_and_b32 v21, 0xffff0000, v16
     v_lshlrev_b32 v22, 16, v17
     v_and_b32 v23, 0xffff0000, v17""")
stamp(19)
g.label("L_fin_s")
lds_wait(F_SD, 4, 42, sleep=1)
if OPT["d5"]: g(f"s_sleep {OPT['d5']}")
poll_loads("h5", f"""buffer_load_dwordx4 v[32:35], v{VL16}, {sr(WS,4)}, s41 offen sc1
      buffer_load_dwordx4 v[36:39], v{VL16}, {sr(WS,4)}, s41 offen offset:1024 sc1""", [32, 36], 43, sleep=OPT["bk5"], b8=True)
stamp(20)
sum_groups(32, 2)
red8(32)
g(f"""s_mov_b64 exec, 0xff
      ds_write_b128 v6, v[32:35] offset:{RFIN}
      s_mov_b64 exec, 1
      ds_add_u32 v{VZ}, v{VONE} offset:{F_FIN}
      s_mov_b64 exec, -1
      s_cmp_eq_u32 s{sWV}, 0
      s_cbranch_scc0 L_A_end""")
srd(44, P_OUT, 1280)
lds_wait(F_FIN, 8, 42, extra=f"ds_read_b128 v[32:35], v{VL16} offset:{RFIN}")
red8(32)
for r in range(4): rne(32 + r)
for r in range(4): g(f"v_mul_f32 v{32+r}, v{32+r}, v{48+r}")
for r in range(4): rne(32 + r)
for r in range(4): g(f"v_add_f32 v{32+r}, v{32+r}, v{20+r}")
g(f"""v_cvt_pk_bf16_f32 v32, v32, v33
      v_cvt_pk_bf16_f32 v33, v34, v35
      s_mov_b64 exec, 0xff
      buffer_store_dwordx2 v[32:33], v7, {sr(44,4)}, s55 offen
      s_cmp_eq_u32 s{sWG}, 0
      s_cbranch_scc0 L_noep
      s_mov_b64 exec, 1
      v_mov_b32 v13, s{sTAG}
      buffer_store_dword v13, v{VZ}, {sr(WS,4)}, 0 offen offset:{EPOCH}""")
g.label("L_noep")
stamp(21)
g.label("L_A_end")
ts_flush()
g("s_endpgm")

KORD = (0, 2, 1, 3)
TH = OPT["gthr"]
def wo_setup():
    g(f"""v_mul_u32_u24 v6, {8*1280}, v{vKG}
          v_lshl_add_u32 v6, v{vN}, 3, v6
          s_lshl_b32 s40, s{sHF}, 7
          s_lshr_b32 s41, s{sJ}, 1
          s_lshl_b32 s41, s41, 5
          s_add_u32 s40, s40, s41
          s_mul_i32 s40, s40, 1280
          s_and_b32 s41, s{sJ}, 1
          s_mul_i32 s41, s41, 640
          s_add_u32 s48, s40, s41""")
    srd(44, P_WO, 5242880)

def wo_gate():
    if OPT["wogate"] == 1: lds_wait(F_L, 8, 40, sleep=2)
    elif OPT["wogate"] == 2: lds_wait(F_IB, 1, 40, sleep=2)

def h4_setup():
    g(f"""v_and_b32 v31, 7, v{vN}
          v_lshlrev_b32 v29, 7, v31
          v_lshl_add_u32 v29, v{vKG}, 5, v29
          s_lshl_b32 s50, s{sHF}, 2
          s_lshr_b32 s51, s{sJ}, 1
          s_add_u32 s50, s50, s51                 ; p = h*4+dq
          s_lshl_b32 s61, s50, 10
          s_add_u32 s65, s61, {CXM}
          s_add_u32 s61, s61, {CXA if OPT["fast4"] else CXM}
          v_lshrrev_b32 v30, 3, v{vN}
          v_lshlrev_b32 v30, 14, v30
          v_lshl_add_u32 v30, v31, 4, v30         ; (n>>3)*16K + (n&7)*16
          v_mov_b32 v31, 0xff
          s_and_b32 s41, s{sJ}, 1
          s_mul_i32 s41, s41, {10*16384}
          s_lshl_b32 s50, s50, 7
          s_add_u32 s50, s50, s41
          s_add_u32 s50, s50, {SM}""")
    tagbytes()

def h4_warm(A, cbks):
    g(f"buffer_load_dwordx4 {vr(A,4)}, v29, {sr(WS,4)}, s61 offen sc1")
    for cbk in cbks:
        g(f"""s_add_u32 s51, s50, {cbk*2*16384}
              buffer_load_dwordx4 {vr(A+4,4)}, v30, {sr(WS,4)}, s51 offen sc1""")

def h4_wait(A, late=""):
    Ls = g.nl("h4s")
    onfail = f"""s_cmp_gt_u32 s43, {LIM_MEM-32}
          s_cbranch_scc1 {Ls}
          s_mov_b32 s51, s61
          s_mov_b32 s61, s65
          s_mov_b32 s65, s51
          {late}
          {Ls}:""" if OPT["fast4"] else ""
    poll_loads("h4", f"""buffer_load_dwordx4 {vr(A,4)}, v29, {sr(WS,4)}, s61 offen sc1
          buffer_load_dwordx4 {vr(A+4,4)}, v29, {sr(WS,4)}, s61 offen offset:16 sc1""", [A+1, A+3, A+5, A+7], 43, sleep=OPT["bk4"], onfail=onfail)
    g(f"v_mov_b32 v{A+1}, v{A+4}\nv_mov_b32 v{A+3}, v{A+6}\ns_nop 1")

def wo_compute(A, frags, cbks, D):
    for bi, fr in enumerate(frags):
        for t in range(4): mfma(D + 16 * bi + 4 * t, A, fr + 4 * t, True)
    lds_wait(F_RLV, 1, 40, extra=f"ds_read_b32 v28, v{VZ} offset:{RLINV}")
    for bi, cbk in enumerate(cbks):
        d = D + 16 * bi
        for t in range(4):
            g(f"v_add_f32 v{d+4*t+1}, v{d+4*t}, v{d+4*t+1}\nv_add_f32 v{d+4*t+2}, v{d+4*t+2}, v{d+4*t+3}")
        for t in range(4): g(f"v_add_f32 v{16+t}, v{d+4*t+1}, v{d+4*t+2}")
        for t in range(4): g(f"v_mov_b32 v{20+t}, v{16+t}")
        g(f"s_add_u32 s51, s50, {cbk*2*16384}")
        for t in range(4): g(f"v_permlane16_swap_b32 v{16+t}, v{20+t}")
        for t in range(4): g(f"v_add_f32 v{16+t}, v{16+t}, v{20+t}")
        for t in range(4): g(f"v_mul_f32 v{d+t}, v{16+t}, v28")
        tagput([d, d+1, d+2, d+3], 31)
        g(f"""s_mov_b64 exec, 0xffff
              buffer_store_dwordx4 {vr(d,4)}, v30, {sr(WS,4)}, s51 offen sc1
              s_mov_b64 exec, -1""")
    lds_inc(F_SD)

def b1_gate():
    if OPT["b1gate"]:
        land_flush()
        lds_wait(F_STG, OPT['b1gate'], 40, sleep=2)

g.label("L_G")
get_tag(6)
g(f"""s_cmp_eq_u32 s{sWV}, 10
      s_cbranch_scc1 L_G_uv10""")
LD.pending = True; LD.n = 0
wo_setup(); h4_setup()
b1_gate()
if OPT["wogate"]: land_flush()
wo_gate()
stamp(4)
load_block(32, 6, 44, 48, 42, 1280, TH)
g("s_add_u32 s49, s48, 128")
load_block(48, 6, 44, 49, 42, 1280, TH)
land_flush()
g("s_waitcnt vmcnt(8)")
perm_block(32, 64, KORD)
g("s_waitcnt vmcnt(0)")
perm_block(48, 80, KORD)
h4_warm(8, [0, 1])
stamp(5)
g(f"""v_lshlrev_b32 v16, 3, v{LANE}
      v_lshlrev_b32 v17, 4, v{LANE}
      s_lshl_b32 s52, s{sHF}, 10
      s_add_u32 s52, s52, {HD + 0x8000}""")
lds_wait(F_ML, 8, 40, sleep=2)
g(f"ds_read_b64 v[20:21], v16 offset:{MLT}\ns_waitcnt lgkmcnt(0)")
global_max(22, 20)
g(f"""v_sub_f32 v20, v20, v22
      v_sub_f32 v21, v21, v22
      v_exp_f32 v20, v20
      v_exp_f32 v21, v21
      s_nop 0""")
rne(20); rne(21)
lds_wait(F_IB, 8, 40, sleep=1)
g("s_setprio 2")
poll_loads("hl", f"buffer_load_dwordx4 v[24:27], v17, {sr(WS,4)}, s52 offen sc1", [25, 27], 43, sleep=2)
g("v_mul_f32 v24, v24, v20\nv_fmac_f32 v24, v26, v21")
wave_sum(24, 40)
g(f"""s_nop 1
      v_rcp_f32 v24, s40
      s_nop 0
      ds_write_b32 v{VZ}, v24 offset:{RLINV}
      ds_write_b32 v{VZ}, v{VONE} offset:{F_RLV}""")
h4_wait(8)
stamp(6)
wo_compute(8, [64, 80], [0, 1], 96)
stamp(7)
g("s_branch L_G_end")

def uv_loads():
    g(f"""v_lshlrev_b32 v7, 13, v{vKG}
          v_lshl_add_u32 v7, v{vN}, 3, v7
          s_lshl_b32 s56, s{sJ}, 17               ; 16j rows
          s_lshl_b32 s41, s{sHF}, 8
          s_add_u32 s56, s56, s41
          s_sub_u32 s52, s{sWV}, 9                ; colhalf
          s_lshl_b32 s41, s52, 7
          s_add_u32 s56, s56, s41
          s_add_u32 s57, s56, {4*8192}""")
    srd(SR, P_WUV, 4194304)
    b1_gate()
    stamp(4)
    rows = [128 * (e & 3) + 8 * (e >> 2) for e in range(8)]
    load_block(32, 7, SR, 56, 42, 8192, TH, rows)
    load_block(48, 7, SR, 57, 42, 8192, TH, rows)
    land_flush()
g.label("L_G_uv10")
LD.pending = True; LD.n = 0
uv_loads()
g("s_branch L_G_uv")
g.label("L_G_uv9")
LD.pending = False
uv_loads()
g.label("L_G_uv")
wo_setup(); h4_setup()
g(f"""s_add_u32 s49, s52, 2
      s_mul_i32 s53, s49, {2*16384}
      s_add_u32 s50, s50, s53
      s_lshl_b32 s49, s49, 7
      s_add_u32 s49, s49, s48
      v_and_b32 v7, 7, v{vN}
      v_mul_u32_u24 v8, 144, v{vN}
      v_lshl_add_u32 v8, v{vKG}, 4, v8
      v_lshlrev_b32 v9, 4, v{LANE}
      v_lshrrev_b32 v11, 3, v{vN}
      v_lshlrev_b32 v11, 10, v11
      v_lshl_add_u32 v11, v7, 4, v11          ; (n>>3)*1024 + (n&7)*16
      s_lshl_b32 s40, s{sHF}, 2
      s_lshl_b32 s41, s52, 1
      s_add_u32 s40, s40, s41
      s_lshl_b32 s40, s40, 3
      s_add_u32 s40, s40, s{sJ}
      s_lshl_b32 s40, s40, 7
      s_add_u32 s54, s40, {CXM}
      s_waitcnt vmcnt(8)""")
perm_block(32, 80)
g("s_waitcnt vmcnt(0)")
perm_block(48, 96)
wo_gate()
load_block(64, 6, 44, 49, 42, 1280, TH)
g(f"v_mov_b32 v61, s{sTAG}\nv_mov_b32 v63, s{sTAG}\ns_add_u32 s55, s54, {CXA-CXM}")
h4_warm(16, [0])
g("s_waitcnt vmcnt(0)")
perm_block(64, 112, KORD)
stamp(5)
lds_wait(F_ML, 8, 40, sleep=2)
g("s_setprio 3")
lds_wait(F_IB, 8, 40)
g(f"""ds_read_b128 v[32:35], v8 offset:{RIB}
      ds_read_b128 v[36:39], v8 offset:{RIB+64}""")
stamp(6)
D = 128
for blk in range(2):
    g(f"s_waitcnt lgkmcnt({1-blk})")
    for t in range(4): mfma(D + 4 * t, 32 + 4 * blk, 80 + 16 * blk + 4 * t, blk == 0)
g("s_nop 4")
for t in range(4): g(f"v_add_f32 v{D+4*t}, v{D+4*t}, v{D+4*t+1}\nv_add_f32 v{D+4*t+2}, v{D+4*t+2}, v{D+4*t+3}")
for t in range(4): g(f"v_add_f32 v{D+4*t}, v{D+4*t}, v{D+4*t+2}")
for sw in ("v_permlane16_swap_b32", "v_permlane32_swap_b32"):
    for t in range(4): g(f"v_mov_b32 v{D+4*t+1}, v{D+4*t}")
    g("s_nop 0")
    for t in range(4): g(f"{sw} v{D+4*t}, v{D+4*t+1}")
    for t in range(4): g(f"v_add_f32 v{D+4*t}, v{D+4*t}, v{D+4*t+1}")
g(f"""v_cvt_pk_bf16_f32 v60, v{D}, v{D+4}
      v_cvt_pk_bf16_f32 v62, v{D+8}, v{D+12}
      s_mov_b64 exec, 0xffff
      buffer_store_dwordx4 v[60:63], v11, {sr(WS,4)}, {"s55 offen" if OPT["fast4"] else "s54 offen sc1"}
      s_mov_b64 exec, -1""")
stamp(7)
late = f"s_mov_b64 exec, 0xffff\nbuffer_store_dwordx4 v[60:63], v11, {sr(WS,4)}, s54 offen sc1"
h4_wait(32, late)
stamp(8)
wo_compute(32, [112], [0], 128)
if OPT["fast4"]: g(late + "\ns_mov_b64 exec, -1")
stamp(9)
g("s_branch L_G_end")

g.label("L_FFN")
XF = 8
g("s_waitcnt lgkmcnt(0)")
srd(WS, P_WS, WS_REC)
lds_wait(F_QI, 5, 40, sleep=1)
g(f"""s_lshr_b32 s40, s{sSLOT}, 3             ; hq
      s_lshl_b32 s40, s40, 1
      s_and_b32 s41, s{sJ}, 1
      s_add_u32 s40, s40, s41
      s_lshl_b32 s40, s40, 3
      s_add_u32 s62, s40, s{sXCD}             ; u in 0..63
      s_lshr_b32 s63, s{sJ}, 1                ; mq
      v_and_b32 v31, 1, v{vKG}
      v_cmp_eq_u32 s[56:57], 1, v31
      s_cmp_lt_u32 s62, 27
      s_cbranch_scc0 L_FFN2""")
LD.pending = False
g(f"""v_mul_u32_u24 v28, {8*3456}, v{vKG}
      v_lshl_add_u32 v28, v{vN}, 3, v28
      v_lshlrev_b32 v7, 4, v{vKG}
      s_mul_i32 s58, s63, 320
      v_add_u32 v7, s58, v7
      s_mul_i32 s58, s63, {160*3456}
      s_lshl_b32 s41, s62, 7
      s_add_u32 s58, s58, s41""")
srd(SR, P_W1, 2211840)
stamp(4)
for b in range(5):
    if b: g(f"s_add_u32 s58, s58, {32*3456}")
    load_block(48 + 16 * b, 28, SR, 58, 42, 3456, TH)
D = 144
get_tag(6)
lds_wait(F_XN, 1, 40)
for b in range(5): g(f"ds_read_b128 {vr(XF+4*b,4)}, v7 offset:{XNL+64*b}")
g("s_waitcnt lgkmcnt(0)")
for b in range(5):
    g(f"s_waitcnt vmcnt({8*(4-b)})")
    perm_block(48 + 16 * b, 32 + 16 * b)
    g("s_nop 1")
    for t in range(4): mfma(D + 4 * t, XF + 4 * b, 32 + 16 * b + 4 * t, b == 0)
g(f"""v_lshlrev_b32 v28, 4, v{LANE}
      s_nop 0
      s_lshl_b32 s40, s62, 2
      s_add_u32 s40, s40, s63
      s_lshl_b32 s40, s40, 9
      s_add_u32 s40, s40, {HM}
      v_mov_b32 v9, s{sTAG}
      v_mov_b32 v11, s{sTAG}
      s_nop 1
      v_cndmask_b32 v8, v{D}, v{D+8}, s[56:57]
      v_cndmask_b32 v10, v{D+4}, v{D+12}, s[56:57]
      s_mov_b32 exec_hi, 0
      buffer_store_dwordx4 v[8:11], v28, {sr(WS,4)}, s40 offen sc1
      s_mov_b64 exec, -1
      s_branch L_FFNe""")
g.label("L_FFN2")
g(f"""s_mul_i32 s40, s63, 37
      s_add_u32 s40, s40, s62
      s_sub_u32 s58, s40, 27
      s_cmp_lt_u32 s58, 135
      s_cbranch_scc1 L_FFN2a""")
get_tag(6)
g("s_branch L_FFNe")
g.label("L_FFN2a")
LD.pending = False
g(f"""s_mul_i32 s59, s58, 205
      s_lshr_b32 s59, s59, 10                 ; fb = v/5
      s_mul_i32 s60, s59, 5
      s_sub_u32 s60, s58, s60                 ; mb
      v_mul_u32_u24 v28, {8*1280}, v{vKG}
      v_lshl_add_u32 v28, v{vN}, 3, v28
      s_mul_i32 s58, s59, {64*1280}
      s_lshl_b32 s41, s60, 8
      s_add_u32 s58, s58, s41""")
srd(SR, P_W2, 2211840)
stamp(4)
for ch in range(2):
    for blk in range(2):
        g(f"s_add_u32 s41, s58, {blk*32*1280 + ch*128}")
        load_block(48 + 16 * (2 * ch + blk), 28, SR, 41, 42, 1280, TH)
get_tag(6)
for b in range(4):
    g(f"s_waitcnt vmcnt({8*(3-b)})")
    perm_block(48 + 16 * b, 32 + 16 * b)
g(f"""v_lshrrev_b32 v28, 2, v{vN}
      v_lshlrev_b32 v28, 9, v28
      v_lshl_add_u32 v28, v{vKG}, 5, v28
      v_bfe_u32 v29, v{vN}, 1, 1
      v_lshl_add_u32 v28, v29, 4, v28
      v_and_b32 v29, 1, v{vN}
      v_lshl_add_u32 v28, v29, 8, v28
      s_lshl_b32 s40, s59, 11
      s_add_u32 s40, s40, {HM}""")
poll_loads("h6", f"""buffer_load_dwordx4 v[8:11], v28, {sr(WS,4)}, s40 offen sc1
      buffer_load_dwordx4 v[12:15], v28, {sr(WS,4)}, s40 offen offset:128 sc1""", [9, 11, 13, 15], 43, sleep=6)
for mod in ("row_ror:4", "row_ror:8"):
    for r in (8, 10, 12, 14): g(f"v_add_f32_dpp v{r}, v{r}, v{r} {mod} {DPPM}")
for r in (8, 10, 12, 14): g(f"v_max_f32 v{r}, 0, v{r}")
g("v_cvt_pk_bf16_f32 v8, v8, v10\nv_cvt_pk_bf16_f32 v12, v12, v14\ns_nop 1")
for blk in range(2):
    for p in range(4):
        g(f"v_mov_b32_dpp v{16+4*blk+p}, v{8+4*blk} quad_perm:[{p},{p},{p},{p}] {DPPM}")
g("s_nop 1")
D = 96
for ch in range(2):
    for blk in range(2):
        for t in range(4): mfma(D + 16 * ch + 4 * t, 16 + 4 * blk, 32 + 16 * (2 * ch + blk) + 4 * t, blk == 0)
g(f"""v_lshrrev_b32 v28, 3, v{vN}
      v_lshlrev_b32 v28, 12, v28
      v_and_b32 v29, 7, v{vN}
      v_lshl_add_u32 v28, v29, 4, v28
      v_mov_b32 v29, 0xff
      s_lshl_b32 s40, s60, 14
      s_lshl_b32 s41, s59, 7
      s_add_u32 s40, s40, s41
      s_add_u32 s40, s40, {YM}
      s_add_u32 s41, s40, {2*4096}""")
tagbytes()
for ch in range(2):
    for t in range(4): g(f"v_bfi_b32 v{8+4*ch+t}, v29, s{sTB+t}, v{D+16*ch+4*t}")
g(f"""s_mov_b64 exec, 0xffff
      buffer_store_dwordx4 v[8:11], v28, {sr(WS,4)}, s40 offen sc1
      buffer_store_dwordx4 v[12:15], v28, {sr(WS,4)}, s41 offen sc1
      s_mov_b64 exec, -1""")
g.label("L_FFNe")
stamp(5)
wo_setup(); h4_setup()
g("s_add_u32 s49, s48, 512")
lds_wait(F_ISS, 2, 40, sleep=2)
b1_gate()
wo_gate()
load_block(128, 6, 44, 49, 42, 1280, TH)
g("s_waitcnt vmcnt(0)")
perm_block(128, 32, KORD)
h4_warm(8, [4])
lds_wait(F_IB, 8, 40, sleep=2)
g("s_setprio 2")
h4_wait(8)
stamp(6)
wo_compute(8, [32], [4], 48)
stamp(7)
g.label("L_G_end")
if OPT["pad"]:
    g(f"""v_readfirstlane_b32 s40, v{VTS}
          s_cmp_lt_u32 s{sWG}, 8
          s_cbranch_scc0 L_END
          s_add_u32 s40, s40, {OPT["pad"]}
          L_padl:
          s_memrealtime s[42:43]
          s_waitcnt lgkmcnt(0)
          s_sub_u32 s41, s42, s40
          s_cmp_lt_i32 s41, 0
          s_cbranch_scc1 L_padl""")
ts_flush("G")
g.label("L_END")
g("s_endpgm")
g.l.append(".p2align 12")
g.label("L_CODE_END")

s = file_head([f"; @launch grid=(256,1,1) block=(768,1,1) lds={LDS_BYTES}"])
s += f""".text
.globl {K}
.p2align 12
.type {K},@function
{K}:
"""
s += g.text()
s += kernel_desc(K, 168, 102)
open(OUT, "w").write(s)
print(OUT, "lines", len(g.l), "ws_end", hex(WS_END))
```

```python
import sys, math, struct
from asmlib import *

OPT = dict(ts=0, stop=99, inflight=24, gate=2, ksmap=1, gthr=24, wogate=0, b1gate=0, pol=1, h2iss=2, amax=0, bk2=4, bk3=2, dbg=0, bk4=0, bk5=3, d3=0, d3b=10, d1=8, d5=12, fast4=1, warm=1, pad=0, padmin=0)
for a in sys.argv[2:]:
    k, v = a.split("=")
    assert k in OPT, k
    OPT[k] = int(v)
OUT = sys.argv[1] if len(sys.argv) > 1 else "k.s"
NT = "nt" if OPT["pol"] else ""

def f32(x): return struct.unpack("<I", struct.pack("<f", x))[0]

EPOCH = 0
QM   = 0x1000
HD   = QM + 0x80000
QAM  = HD + 0x10000
CXM  = QAM + 0x10000
CXA  = CXM + 0x20000
HM   = CXA + 0x20000
YM   = HM + 0x10000
SM   = YM + 20 * 4096
IB   = SM + 20 * 16384
WS_END = IB + 256 * 8 * 2048
TSOFF = 0x1000000
WS_REC = 0x2000000 if (OPT["ts"] and not OPT["dbg"]) else WS_END

(F_Q, F_QA, F_LAND, F_ISS, F_H2I, F_STG, F_MAX, F_P, F_IB, F_UK, F_TAG, F_TAGV, F_QP, F_QI, F_SD, F_FIN) = [4 * i for i in range(16)]
RMAX = 0x40
RL   = 0x80
F_H3, F_ML, F_QAP, F_XN, F_L, F_RLV, RLINV = 0xC0, 0xC4, 0xC8, 0xCC, 0xD0, 0xD4, 0xD8
REDQ = 0x100
REDQA = 0x600
PL   = 0x1000
RIB  = 0x2000
RFIN = PL
MLT  = 0x2A00
RMX  = 0x2E00
RLP  = REDQ
XNL  = 0x3000
QL   = 0x3800
KV   = 0x7800
LDS_BYTES = KV + 0x20000

SCALE = (128 ** -0.5) * math.log2(math.e)
LIM_LDS = 1 << 16
LIM_MEM = 1 << 13

class G:
    def __init__(s): s.l = []; s.n = 0
    def __call__(s, x):
        for ln in x.strip("\n").split("\n"):
            if ln.strip(): s.l.append("  " + ln.strip())
    def label(s, x): s.l.append(x + ":")
    def nl(s, p): s.n += 1; return f"L_{p}_{s.n}"
    def text(s): return "\n".join(s.l) + "\n"
g = G()

def vr(a, n): return f"v[{a}:{a+n-1}]"
def sr(a, n): return f"s[{a}:{a+n-1}]"

LANE, VZ, VONE, VT, vN, vKG = 0, 1, 2, 3, 4, 5
VTS = 167
VL16 = 166
sWG, sWV = 2, 3
WS = 4
SR = 8
sXCD, sSLOT, sHF, sJ = 12, 13, 14, 15
P_X, P_KV, P_WQ, P_WUK, P_WUV, P_WO, P_BX, P_W1, P_W2, P_OUT, P_DBG, P_WS = [16 + 2 * i for i in range(12)]
sTAG, sCNT = 28, 29
sPLO, sPHI = 100, 101
DPPM = "row_mask:0xf bank_mask:0xf"

def srd(base, ptr, nbytes):
    g(f"""s_mov_b32 s{base}, s{ptr}
          s_mov_b32 s{base+1}, s{ptr+1}
          s_mov_b32 s{base+2}, {nbytes}
          s_mov_b32 s{base+3}, 0x20000""")

def stamp(k):
    if not OPT["ts"]: return
    g(f"""s_memrealtime vcc
          s_waitcnt lgkmcnt(0)
          v_writelane_b32 v{VTS}, vcc_lo, {k}""")

def ts_flush(role="A"):
    if not OPT["ts"]: return
    if OPT["dbg"]:
        sel = {"A": {1: 0, 2: 16, 6: 6, 7: 8, 8: 10, 9: 22, 10: 11, 11: 13, 14: 20, 15: 21}, "G": {3: 1, 4: 2, 5: 3, 12: 7, 13: 9}}[role]
        Ls = g.nl("dbg")
        g(f"""s_cmp_eq_u32 s{sWV}, {0 if role == "A" else 9}
              s_cbranch_scc0 {Ls}
              s_load_dwordx2 s[40:41], s[0:1], 80
              s_mov_b64 exec, -1
              v_mov_b32 v8, 0
              s_mov_b32 s42, 256
              s_mov_b32 s43, 0x20000""")
        for dst, src in sel.items():
            g(f"v_readlane_b32 s44, v{VTS}, {src}\ns_nop 3\nv_writelane_b32 v8, s44, {dst}")
        if role == "A":
            g(f"v_readlane_b32 s44, v{VTS}, 0\ns_nop 3\ns_not_b32 s44, s44\nv_writelane_b32 v8, s44, 0")
        g(f"""v_lshlrev_b32 v{VT}, 2, v{LANE}
              s_mov_b64 exec, 0xffff
              s_waitcnt lgkmcnt(0)
              buffer_atomic_umax v8, v{VT}, s[40:43], 0 offen""")
        g.label(Ls)
        return
    g(f"""s_mul_i32 s{sCNT}, s{sWG}, 12
          s_add_u32 s{sCNT}, s{sCNT}, s{sWV}
          s_lshl_b32 s{sCNT}, s{sCNT}, 7
          s_add_u32 s{sCNT}, s{sCNT}, {TSOFF}
          s_mov_b64 exec, -1
          s_mov_b32 exec_hi, 0
          v_lshlrev_b32 v{VT}, 2, v{LANE}
          buffer_store_dword v{VTS}, v{VT}, {sr(WS,4)}, s{sCNT} offen""")

def lds_wait(off, target, st, extra="", sleep=0):
    L, Lo = g.nl("w"), g.nl("wo")
    g(f"s_mov_b32 s{sCNT}, {LIM_LDS}")
    if sleep:
        Lf = g.nl("wf")
        g(f"s_branch {Lf}")
    g.label(L)
    if sleep:
        g(f"s_sleep {sleep}")
        g.label(Lf)
    g(f"ds_read_b32 v{VT}, v{VZ} offset:{off}")
    if extra: g(extra)
    g(f"""s_waitcnt lgkmcnt(0)
          v_readfirstlane_b32 s{st}, v{VT}
          s_sub_u32 s{sCNT}, s{sCNT}, 1
          s_cbranch_scc1 {Lo}
          s_cmp_ge_u32 s{st}, {target}
          s_cbranch_scc0 {L}""")
    g.label(Lo)

def lds_inc(off):
    g(f"""s_mov_b64 exec, 1
          ds_add_u32 v{VZ}, v{VONE} offset:{off}
          s_mov_b64 exec, -1""")

def get_tag(vtmp):
    lds_wait(F_TAGV, 1, sTAG, extra=f"ds_read_b32 v{vtmp}, v{VZ} offset:{F_TAG}")
    g(f"v_readfirstlane_b32 s{sTAG}, v{vtmp}")

def wave_sum(v, sdst):
    for mod in ("quad_perm:[1,0,3,2]", "quad_perm:[2,3,0,1]", "row_half_mirror", "row_mirror"):
        g(f"s_nop 1\nv_add_f32_dpp v{v}, v{v}, v{v} {mod} {DPPM}")
    g(f"s_nop 1\nv_add_f32_dpp v{v}, v{v}, v{v} row_bcast:15 row_mask:0xa bank_mask:0xf")
    g(f"s_nop 1\nv_add_f32_dpp v{v}, v{v}, v{v} row_bcast:31 row_mask:0xc bank_mask:0xf")
    g(f"s_nop 1\nv_readlane_b32 s{sdst}, v{v}, 63")

def rne(v):
    g(f"v_cvt_pk_bf16_f32 v{v}, v{v}, v{v}\nv_and_b32 v{v}, 0xffff0000, v{v}")

def ln_stats(x5, tmp, sA, sB, vM, vR):
    u = tmp
    for k in range(5):
        g(f"v_lshlrev_b32 v{u+2*k}, 16, v{x5+k}\nv_and_b32 v{u+2*k+1}, 0xffff0000, v{x5+k}")
    a = u + 10
    g(f"v_add_f32 v{a}, v{u}, v{u+1}")
    for k in range(2, 10): g(f"v_add_f32 v{a}, v{a}, v{u+k}")
    wave_sum(a, sA)
    g(f"s_nop 1\nv_mov_b32 v{vM}, s{sA}\nv_mul_f32 v{vM}, {hex(f32(1.0/640))}, v{vM}")
    for k in range(10): g(f"v_sub_f32 v{u+k}, v{u+k}, v{vM}")
    g(f"v_mul_f32 v{a}, v{u}, v{u}")
    for k in range(1, 10): g(f"v_fmac_f32 v{a}, v{u+k}, v{u+k}")
    wave_sum(a, sB)
    g(f"s_nop 1\nv_mov_b32 v{vR}, s{sB}\nv_mul_f32 v{vR}, {hex(f32(1.0/640))}, v{vR}")
    rne(vR)
    g(f"v_add_f32 v{vR}, {hex(f32(1e-5))}, v{vR}")
    rne(vR)
    g(f"v_sqrt_f32 v{vR}, v{vR}\ns_nop 0")
    rne(vR)
    g(f"v_rcp_f32 v{vR}, v{vR}")
    rne(vM)

def ln_frag(src, dst, t0, vM, vR):
    for k in range(4):
        g(f"""v_lshlrev_b32 v{t0}, 16, v{src+k}
              v_and_b32 v{t0+1}, 0xffff0000, v{src+k}
              v_sub_f32 v{t0}, v{t0}, v{vM}
              v_sub_f32 v{t0+1}, v{t0+1}, v{vM}
              v_cvt_pk_bf16_f32 v{t0+1}, v{t0}, v{t0+1}
              v_lshlrev_b32 v{t0}, 16, v{t0+1}
              v_and_b32 v{t0+1}, 0xffff0000, v{t0+1}
              v_mul_f32 v{t0}, v{t0}, v{vR}
              v_mul_f32 v{t0+1}, v{t0+1}, v{vR}
              v_cvt_pk_bf16_f32 v{dst+k}, v{t0}, v{t0+1}""")

def perm_block(raw, out, order=(0, 1, 2, 3)):
    for p in range(4):
        e = 2 * order[p]
        for d in range(2):
            g(f"v_perm_b32 v{out+4*(2*d)+p}, v{raw+2*(e+1)+d}, v{raw+2*e+d}, s{sPLO}")
            g(f"v_perm_b32 v{out+4*(2*d+1)+p}, v{raw+2*(e+1)+d}, v{raw+2*e+d}, s{sPHI}")

class Landing:
    pending = False
    n = 0
LD = Landing()

def load_block(raw, voff, srdb, sbase, stmp, rowbytes, thr=0, rows=None):
    per = 4095 // rowbytes + 1
    cur = None
    for e in range(8):
        grp, rem = divmod(e, per)
        if grp != cur:
            if grp == 0: so = sbase
            else:
                g(f"s_add_u32 s{stmp}, s{sbase}, {(rows[e] if rows else grp*per)*rowbytes}"); so = stmp
            cur = grp
        if thr:
            g(f"s_waitcnt vmcnt({thr-1})")
            if LD.pending and LD.n >= thr - 1:
                land_now()
        off = f" offset:{rem*rowbytes}" if rem else ""
        g(f"buffer_load_dwordx2 {vr(raw+2*e,2)}, v{voff}, {sr(srdb,4)}, s{so} offen{off} {NT}")
        LD.n += 1

def land_now():
    lds_inc(F_LAND)
    stamp(2)
    LD.pending = False

def land_flush():
    if LD.pending:
        g(f"s_waitcnt vmcnt({LD.n})")
        land_now()

def tagcheck(regs, acc):
    g(f"v_xor_b32 v{acc}, s{sTAG}, v{regs[0]}")
    for r in regs[1:]:
        g(f"v_bitop3_b32 v{acc}, v{r}, s{sTAG}, v{acc} bitop3:0xbe")
    g(f"v_cmp_ne_u32 vcc, 0, v{acc}")

def poll_loads(nm, loads, tags, scnt, acc=VT, sleep=0, mask=True, b8=False, onfail=""):
    L, Lo = g.nl(nm), g.nl(nm + "o")
    g(f"s_mov_b32 s{scnt}, {LIM_MEM}")
    g.label(L)
    g(loads)
    g("s_waitcnt vmcnt(0)")
    (tagcheck8 if b8 else tagcheck)(tags, acc)
    g(f"s_cbranch_vccz {Lo}")
    if onfail: g(onfail)
    if mask: g("s_mov_b64 exec, vcc")
    if sleep: g(f"s_sleep {sleep}")
    g(f"""s_sub_u32 s{scnt}, s{scnt}, 1
          s_cbranch_scc0 {L}""")
    g.label(Lo)
    if mask: g("s_mov_b64 exec, -1")

def flag16_wait(nm, ap):
    L, Lo = g.nl(nm), g.nl(nm + "o")
    g(f"s_mov_b32 s{sCNT}, {LIM_MEM}\ns_lshl_b32 s18, s{sTAG}, 4")
    g.label(L)
    g(f"""s_load_dwordx16 s[48:63], s[{ap}:{ap+1}], 0 glc
          s_sub_u32 s{sCNT}, s{sCNT}, 1
          s_cbranch_scc1 {Lo}
          s_waitcnt lgkmcnt(0)
          s_add_u32 s19, s48, s49""")
    for k in range(2, 16): g(f"s_add_u32 s19, s19, s{48+k}")
    g(f"s_cmp_eq_u32 s19, s18\ns_cbranch_scc0 {L}")
    g.label(Lo)
    g("s_waitcnt lgkmcnt(0)")

sTB = 66
def tagbytes():
    g(f"""s_and_b32 s{sTB}, s{sTAG}, 1
          s_mul_i32 s{sTB}, s{sTB}, 0x01010101
          s_and_b32 s{sTB+1}, s{sTAG}, 0xfefefefe
          s_or_b32 s{sTB}, s{sTB}, s{sTB+1}
          s_lshr_b32 s{sTB+1}, s{sTB}, 8
          s_lshr_b32 s{sTB+2}, s{sTB}, 16
          s_lshr_b32 s{sTB+3}, s{sTB}, 24""")
def tagput(regs, vmask):
    for d, r in enumerate(regs): g(f"v_bfi_b32 v{r}, v{vmask}, s{sTB+d}, v{r}")
def tagcheck8(bases, acc):
    first = True
    for b in bases:
        for d in range(4):
            if first: g(f"v_xor_b32 v{acc}, s{sTB+d}, v{b+d}"); first = False
            else: g(f"v_bitop3_b32 v{acc}, v{b+d}, s{sTB+d}, v{acc} bitop3:0xbe")
    g(f"v_and_b32 v{acc}, 0xff, v{acc}\nv_cmp_ne_u32 vcc, 0, v{acc}")

def fswz(dst, i, t):
    g(f"""v_lshrrev_b32 v{t}, 1, v{i}
          v_xor_b32 v{dst}, v{t}, v{i}
          v_and_b32 v{dst}, 4, v{dst}
          v_and_or_b32 v{dst}, v{i}, 2, v{dst}
          v_bfe_u32 v{t}, v{i}, 3, 1
          v_or_b32 v{dst}, v{dst}, v{t}""")

def sum_groups(base, n):
    step = 1
    while step < n:
        for a in range(0, n - step, 2 * step):
            g(f"v_pk_add_f32 {vr(base+4*a,2)}, {vr(base+4*a,2)}, {vr(base+4*(a+step),2)}")
            g(f"v_pk_add_f32 {vr(base+4*a+2,2)}, {vr(base+4*a+2,2)}, {vr(base+4*(a+step)+2,2)}")
        step *= 2

def red16(regs, full=True):
    for mod in ("row_ror:4", "row_ror:8"):
        g("s_nop 1")
        for r in regs: g(f"v_add_f32_dpp v{r}, v{r}, v{r} {mod} {DPPM}")
    for sw in (("v_permlane16_swap_b32", "v_permlane32_swap_b32") if full else ("v_permlane16_swap_b32",)):
        for r in regs: g(f"v_mov_b32 v{r+1}, v{r}")
        g("s_nop 1")
        for r in regs: g(f"{sw} v{r}, v{r+1}")
        for r in regs: g(f"v_add_f32 v{r}, v{r}, v{r+1}")

def mfma(d, a, b, first):
    g(f"v_mfma_f32_16x16x32_bf16 {vr(d,4)}, {vr(a,4)}, {vr(b,4)}, {'0' if first else vr(d,4)}")

K = NAME + "_kernel"
g(f"""s_cmp_ge_u32 s{sWG}, 256
      s_cbranch_scc1 L_END
      v_lshrrev_b32 v{VT}, 6, v0
      v_and_b32 v{LANE}, 63, v0
      v_readfirstlane_b32 s{sWV}, v{VT}
      v_mov_b32 v{VZ}, 0
      v_lshrrev_b32 v{vKG}, 4, v{LANE}
      s_cmp_eq_u32 s{sWV}, 9
      s_cbranch_scc0 L_noinit
      v_lshlrev_b32 v8, 2, v{LANE}
      v_cmp_eq_u32 vcc, 1, v{vKG}
      v_mov_b32 v10, 0xff800000
      s_nop 0
      v_cndmask_b32 v9, v{VZ}, v10, vcc
      ds_write_b32 v8, v9
      s_waitcnt lgkmcnt(0)""")
g.label("L_noinit")
g(f"""s_load_dwordx16 s[16:31], s[0:1], 0
      s_load_dwordx8 s[32:39], s[0:1], 64
      s_barrier
      v_mov_b32 v{VONE}, 1
      v_and_b32 v{vN}, 15, v{LANE}
      s_and_b32 s{sXCD}, s{sWG}, 7
      s_lshr_b32 s{sSLOT}, s{sWG}, 3
      s_lshr_b32 s{sHF}, s{sSLOT}, 3
      s_lshl_b32 s{sJ}, s{sXCD}, 2
      s_add_u32 s{sHF}, s{sHF}, s{sJ}
      s_and_b32 s{sJ}, s{sSLOT}, 7
      s_mov_b32 s{sPLO}, 0x05040100
      s_mov_b32 s{sPHI}, 0x07060302""")
if OPT["ts"]:
    g(f"v_mov_b32 v{VTS}, 0")
    stamp(0)
if OPT["pad"]:
    g(f"s_memrealtime vcc\ns_waitcnt lgkmcnt(0)\nv_mov_b32 v{VTS}, vcc_lo")
g(f"""s_cmp_lt_u32 s{sWV}, 5
      s_cbranch_scc1 L_A
      s_cmp_eq_u32 s{sWV}, 5
      s_cbranch_scc1 L_LN
      s_cmp_lt_u32 s{sWV}, 8
      s_cbranch_scc1 L_A5
      s_cmp_eq_u32 s{sWV}, 9
      s_cbranch_scc1 L_G9
      s_cmp_eq_u32 s{sWV}, 11
      s_cbranch_scc1 L_FFN""")
g(f"v_lshrrev_b32 v32, 3, v{LANE}")
fswz(33, 32, 34)
g(f"""v_and_b32 v34, 7, v{LANE}
      v_xor_b32 v33, v33, v34
      v_lshlrev_b32 v33, 4, v33
      v_lshl_add_u32 v36, v32, 10, v33
      s_bfe_u32 s43, s{sWV}, 0x10001
      s_and_b32 s40, s43, 1
      s_mul_i32 s40, s40, 80
      v_xor_b32 v36, s40, v36
      s_lshr_b32 s41, s{sSLOT}, 1""")
if OPT["ksmap"] == 0:
    g(f"s_lshl_b32 s41, s41, 3\ns_add_u32 s41, s41, s{sXCD}             ; ks")
else:
    g(f"s_lshl_b32 s42, s{sXCD}, 4\ns_add_u32 s41, s41, s42             ; ks")
g(f"""s_lshl_b32 s41, s41, 17                 ; ks*128KB
      s_lshl_b32 s42, s43, 13
      s_add_u32 s41, s41, s42                 ; + kgp*8192
      s_lshl_b32 s42, s43, 10
      s_add_u32 s42, s42, {KV}
      s_waitcnt lgkmcnt(0)""")
srd(44, P_KV, 16777216)
srd(WS, P_WS, WS_REC)
if OPT["gate"]:
    lds_wait(F_Q, OPT["gate"], 40, sleep=1)
stamp(8)
g.label("L_ld")
for cb in range(8):
    g(f"s_add_u32 m0, s42, {cb*(16384-128)}")
    g(f"s_waitcnt vmcnt({OPT['inflight']-1})")
    g(f"buffer_load_dwordx4 v36, {sr(44,4)}, s41 offen offset:{cb*128} {NT} lds")
g(f"""s_add_u32 s41, s41, {2*8192}
      s_add_u32 s42, s42, {2*1024}
      s_add_u32 s43, s43, 2
      s_cmp_lt_u32 s43, 16
      s_cbranch_scc1 L_ld""")
lds_inc(F_ISS)
stamp(1)
g("s_branch L_G")
g.label("L_LN")
g(f"""s_setprio 3
      v_mul_u32_u24 v6, 20, v{LANE}
      s_mov_b32 s{SR+2}, 1280
      s_mov_b32 s{SR+3}, 0x20000
      s_waitcnt lgkmcnt(0)
      s_mov_b32 s{SR}, s{P_X}
      s_mov_b32 s{SR+1}, s{P_X+1}
      buffer_load_dwordx4 v[8:11], v6, {sr(SR,4)}, 0 offen
      buffer_load_dword v12, v6, {sr(SR,4)}, 0 offen offset:16""")
srd(WS, P_WS, WS_REC)
g(f"v_add_u32 v6, {XNL}, v6\ns_waitcnt vmcnt(0)")
stamp(16)
U, E, Dd = 32, 44, 56
for k in range(5):
    g(f"v_lshlrev_b32 v{U+2*k}, 16, v{8+k}\nv_and_b32 v{U+2*k+1}, 0xffff0000, v{8+k}")
g(f"""v_pk_add_f32 v[14:15], {vr(U,2)}, {vr(U+2,2)}
      v_pk_add_f32 v[16:17], {vr(U+4,2)}, {vr(U+6,2)}
      v_pk_add_f32 v[14:15], v[14:15], {vr(U+8,2)}
      v_pk_add_f32 v[14:15], v[14:15], v[16:17]
      v_add_f32 v14, v14, v15""")
wave_sum(14, 40)
g(f"""s_nop 1
      v_mov_b32 v18, {hex(f32(-1.0/640))}
      v_mul_f32 v18, s40, v18                 ; -mean
      v_mov_b32 v19, v18""")
for k in range(5): g(f"v_pk_add_f32 {vr(E+2*k,2)}, {vr(U+2*k,2)}, v[18:19]")
g(f"v_pk_mul_f32 v[14:15], {vr(E,2)}, {vr(E,2)}")
for k in range(1, 5): g(f"v_pk_fma_f32 v[14:15], {vr(E+2*k,2)}, {vr(E+2*k,2)}, v[14:15]")
g(f"""v_cvt_pk_bf16_f32 v20, v18, v18
      v_add_f32 v14, v14, v15
      v_and_b32 v20, 0xffff0000, v20
      v_mov_b32 v21, v20""")
fill = [f"v_pk_add_f32 {vr(E+2*k,2)}, {vr(U+2*k,2)}, v[20:21]" for k in range(5)]
fill += [f"v_cvt_pk_bf16_f32 v{8+k}, v{E+2*k}, v{E+2*k+1}" for k in range(5)]
fill += [x for k in range(5) for x in (f"v_lshlrev_b32 v{Dd+2*k}, 16, v{8+k}", f"v_and_b32 v{Dd+2*k+1}, 0xffff0000, v{8+k}")]
steps = [f"v_add_f32_dpp v14, v14, v14 {m} {DPPM}" for m in ("quad_perm:[1,0,3,2]", "quad_perm:[2,3,0,1]", "row_half_mirror", "row_mirror")]
steps += ["v_add_f32_dpp v14, v14, v14 row_bcast:15 row_mask:0xa bank_mask:0xf", "v_add_f32_dpp v14, v14, v14 row_bcast:31 row_mask:0xc bank_mask:0xf", "v_readlane_b32 s42, v14, 63"]
for st_ in steps:
    g(st_); g(fill.pop(0)); g(fill.pop(0))
g(f"""v_mov_b32 v22, {hex(f32(1.0/640))}
      v_mul_f32 v22, s42, v22""")
rne(22)
g(f"v_add_f32 v22, {hex(f32(1e-5))}, v22")
rne(22)
g("v_sqrt_f32 v22, v22"); g(fill.pop(0))
rne(22)
g("v_rcp_f32 v22, v22")
while fill: g(fill.pop(0))
g("v_mov_b32 v23, v22")
for k in range(5): g(f"v_pk_mul_f32 {vr(Dd+2*k,2)}, {vr(Dd+2*k,2)}, v[22:23]")
for k in range(5): g(f"v_cvt_pk_bf16_f32 v{8+k}, v{Dd+2*k}, v{Dd+2*k+1}")
g(f"""ds_write2_b32 v6, v8, v9 offset0:0 offset1:1
      ds_write2_b32 v6, v10, v11 offset0:2 offset1:3
      ds_write_b32 v6, v12 offset:16
      ds_write_b32 v{VZ}, v{VONE} offset:{F_XN}""")
stamp(17)
g("s_branch L_A_q")
g.label("L_A5")
g(f"""s_sub_u32 s43, s{sWV}, 6
      v_xor_b32 v8, v{vN}, v{vKG}
      v_lshlrev_b32 v8, 4, v8
      v_lshl_add_u32 v8, v{vKG}, 13, v8
      s_lshl_b32 s40, s43, 6
      v_xor_b32 v8, s40, v8                   ; u&3 = r
      v_xor_b32 v9, 128, v8                   ; u&3 = r+2
      s_lshl_b32 s48, s{sJ}, 19               ; 64*j rows * 8192
      s_lshl_b32 s49, s{sHF}, 8
      s_add_u32 s48, s48, s49
      s_lshl_b32 s49, s43, 15
      s_add_u32 s48, s48, s49
      s_lshl_b32 s50, s43, 10
      s_getpc_b64 s[44:45]""")
g.label("L_pc")
g(f"""s_sub_u32 s44, s44, L_pc-{K}
      s_subb_u32 s45, s45, 0
      s_lshl_b32 s41, s{sSLOT}, 1
      s_add_u32 s41, s41, s43
      s_lshl_b32 s41, s41, 2
      v_add_u32 v10, s41, v{LANE}
      v_lshlrev_b32 v10, 7, v10
      s_mov_b32 s41, L_CODE_END-{K}
      v_cmp_gt_u32 s[46:47], s41, v10
      s_waitcnt lgkmcnt(0)""")
srd(WS, P_WS, WS_REC)
srd(SR, P_WUK, 4194304)
lds_wait(F_QI, 5, 41)
for k in range(8):
    g(f"s_add_u32 m0, s50, {QL + k*2048}")
    g(f"s_add_u32 s49, s48, {k*8*8192}")
    g(f"buffer_load_dwordx4 v{8+(k&1)}, {sr(SR,4)}, s49 offen {NT} lds")
g(f"""s_and_b64 exec, s[46:47], 0xf
      s_cbranch_execz L_nopf
      global_load_dword v159, v10, s[44:45]""")
g.label("L_nopf")
g("s_mov_b64 exec, -1\ns_branch L_A_q")
g.label("L_G9")
g(f"""s_setprio 3
      s_waitcnt lgkmcnt(0)
      s_load_dword s40, s[{P_WS}:{P_WS+1}], {EPOCH}""")
srd(WS, P_WS, WS_REC)
g(f"""v_lshlrev_b32 v8, 4, v{vN}              ; n*16
      s_lshl_b32 s41, s{sHF}, 3
      s_add_u32 s41, s41, s{sJ}
      s_lshl_b32 s41, s41, 8
      s_add_u32 s43, s41, {QAM}
      s_lshl_b32 s42, s{sHF}, 14
      s_lshl_b32 s41, s{sJ}, 8
      s_add_u32 s42, s42, s41
      s_add_u32 s42, s42, {QM}
      s_add_u32 s45, s42, 8192
      v_lshl_add_u32 v7, v{vKG}, 11, v8
      v_mov_b32 v11, 1
      s_waitcnt lgkmcnt(0)
      s_mul_i32 s{sTAG}, s40, 1664525
      s_add_u32 s{sTAG}, s{sTAG}, 1013904223
      v_mov_b32 v10, s{sTAG}
      v_mov_b32 v13, s{sTAG}
      v_mov_b32 v15, s{sTAG}
      ds_write_b64 v{VZ}, v[10:11] offset:{F_TAG}""")
stamp(1)
if OPT["warm"]:
    g(f"""s_and_b32 s46, s{sSLOT}, 1
          s_lshl_b32 s46, s46, 7
          s_add_u32 s46, s46, s{sXCD}
          s_lshl_b32 s46, s46, 7
          s_add_u32 s46, s46, {HD}
          v_lshlrev_b32 v9, 10, v{vN}
          v_and_b32 v16, 1, v{vKG}
          v_lshl_add_u32 v9, v16, 15, v9""")
    lds_wait(F_QI, 5, 40)
    g(f"""buffer_load_dwordx4 v[16:19], v7, {sr(WS,4)}, s42 offen sc1
          buffer_load_dwordx4 v[16:19], v7, {sr(WS,4)}, s45 offen sc1
          buffer_load_dwordx4 v[16:19], v8, {sr(WS,4)}, s43 offen sc1
          buffer_load_dword v16, v9, {sr(WS,4)}, s46 offen sc1""")
lds_wait(F_Q, 5, 40)
g("\n".join(f"ds_read_b128 {vr(32+4*b,4)}, v8 offset:{REDQ+256*b}" for b in range(5)))
g("s_waitcnt lgkmcnt(0)")
sum_groups(32, 5)
g(f"""v_cvt_pk_bf16_f32 v12, v32, v33
      v_cvt_pk_bf16_f32 v14, v34, v35
      buffer_store_dwordx4 v[12:15], v7, {sr(WS,4)}, s42 offen sc1
      buffer_store_dwordx4 v[12:15], v7, {sr(WS,4)}, s45 offen sc1
      ds_write_b32 v{VZ}, v{VONE} offset:{F_QP}
      s_mov_b64 exec, 0xffff""")
stamp(2)
lds_wait(F_QA, 8, 40)
g("\n".join(f"ds_read_b128 {vr(32+4*b,4)}, v8 offset:{REDQA+256*b}" for b in range(8)))
g("s_waitcnt lgkmcnt(0)")
sum_groups(32, 8)
for r in range(4): g(f"v_mul_f32 v{32+r}, {hex(f32(SCALE))}, v{32+r}")
g(f"""v_cvt_pk_bf16_f32 v12, v32, v33
      v_cvt_pk_bf16_f32 v14, v34, v35
      buffer_store_dwordx4 v[12:15], v8, {sr(WS,4)}, s43 offen sc1
      ds_write_b32 v{VZ}, v{VONE} offset:{F_QAP}
      s_mov_b64 exec, -1
      s_setprio 0""")
stamp(3)
lds_wait(F_ISS, 2, 40, sleep=2)
g("s_branch L_G_uv9")

g.label("L_A")
g(f"""s_setprio 2
      v_lshlrev_b32 v24, 16, v{vKG}
      v_lshl_add_u32 v24, v{vN}, 3, v24       ; + n*8
      s_lshr_b32 s40, s{sJ}, 1                ; mq
      s_mul_i32 s40, s40, 160
      s_lshl_b32 s41, s{sWV}, 5
      s_add_u32 s40, s40, s41
      s_lshl_b32 s41, s40, 13                 ; row0*8192
      s_lshl_b32 s42, s{sHF}, 8
      s_add_u32 s41, s41, s42
      s_and_b32 s42, s{sJ}, 1
      s_lshl_b32 s42, s42, 7
      s_add_u32 s41, s41, s42                 ; w_q soffset
      s_lshl_b32 s40, s40, 1
      v_lshlrev_b32 v112, 4, v{vKG}
      v_add_u32 v112, s40, v112
      s_mov_b32 s46, 5242880
      s_mov_b32 s47, 0x20000
      s_waitcnt lgkmcnt(0)
      s_mov_b32 s44, s{P_WQ}
      s_mov_b32 s45, s{P_WQ+1}
      s_nop 3""")
load_block(32, 24, 44, 41, 42, 8192)
lds_inc(F_QI)
srd(WS, P_WS, WS_REC)
g(f"""v_lshlrev_b32 v113, 4, v{vN}
      s_lshl_b32 s40, s{sWV}, 8
      v_add_u32 v113, s40, v113""")
g.label("L_A_q")
g("s_setprio 2")
g(f"""s_and_b32 s40, s{sSLOT}, 1              ; g
      s_lshl_b32 s41, s40, 4
      s_lshl_b32 s42, s{sWV}, 1
      s_add_u32 s41, s41, s42                 ; 16g+2w
      s_lshl_b32 s41, s41, 11
      s_add_u32 s20, s41, {QAM}
      s_lshr_b32 s21, s{sSLOT}, 1             ; mi 0..15
      s_lshl_b32 s42, s40, 7                  ; 16g*8
      s_add_u32 s42, s42, s{sWV}
      s_lshl_b32 s42, s42, 3
      s_add_u32 s42, s42, s{sXCD}
      s_lshl_b32 s42, s42, 4
      s_add_u32 s42, s42, s21
      s_lshl_b32 s42, s42, 7
      s_add_u32 s26, s42, {IB}
      s_add_u32 s22, s26, {2*8*8*2048}
      s_lshl_b32 s42, s40, 7                  ; 16g*8
      s_add_u32 s42, s42, s{sXCD}
      s_lshl_b32 s42, s42, 4
      s_add_u32 s42, s42, s21
      s_lshl_b32 s42, s42, 3
      s_add_u32 s27, s42, {HD}
      s_add_u32 s23, s27, 0x8000
      s_lshl_b32 s42, s{sHF}, 3
      s_add_u32 s42, s42, s{sWV}
      s_lshl_b32 s42, s42, 7
      s_add_u32 s31, s42, {HD}
      s_lshl_b32 s42, s{sHF}, 3
      s_add_u32 s42, s42, s{sJ}
      s_lshl_b32 s42, s42, 3
      s_add_u32 s42, s42, s{sWV}              ; (h*8+j)*8+w
      s_lshl_b32 s30, s42, 11
      s_add_u32 s30, s30, {IB}
      s_lshl_b32 s42, s42, 8
      s_add_u32 s42, s42, {QM}
      s_add_u32 s32, s{WS}, s42
      s_addc_u32 s33, s{WS+1}, 0
      s_and_b32 s40, s{sWV}, 1
      s_lshl_b32 s40, s40, 3                  ; 8*dhalf'
      v_xor_b32 v6, s40, v{vN}
      v_lshlrev_b32 v6, 4, v6
      v_lshl_add_u32 v6, v{LANE}, 8, v6       ; row*256 + ...
      v_lshlrev_b32 v10, 2, v{LANE}
      s_lshl_b32 s40, s{sWV}, 8
      v_add_u32 v10, s40, v10
      v_mov_b32 v8, 0
      v_mov_b32 v9, 0""")
W = 80
QKA, PVA = 32, 96
fswz(24, vN, 25)
g(f"""v_xor_b32 v24, v24, v{vKG}
      v_lshlrev_b32 v24, 4, v24
      v_and_b32 v25, 7, v{vN}
      v_lshl_add_u32 v24, v25, 7, v24         ; + (i&7)*128
      v_lshrrev_b32 v25, 3, v{vN}
      v_lshl_add_u32 v24, v25, 10, v24        ; + (i>>3)*1024
      s_lshl_b32 s42, s{sWV}, 11
      s_add_u32 s42, s42, {KV}
      v_add_u32 v160, s42, v24
      v_xor_b32 v161, 64, v160
      v_add_u32 v162, 0x10000, v160
      v_add_u32 v163, 0x10000, v161
      v_lshrrev_b32 v26, 2, v{LANE}           ; i16""")
fswz(24, 26, 25)
g(f"""s_and_b32 s42, s{sWV}, 3
      s_lshl_b32 s42, s42, 1
      v_bfe_u32 v25, v{LANE}, 1, 1
      v_or_b32 v25, s42, v25                  ; xi = 2(w&3) + (c'>>1)
      v_xor_b32 v24, v24, v25
      v_lshlrev_b32 v24, 4, v24
      v_and_b32 v25, 1, v{LANE}
      v_lshl_add_u32 v24, v25, 3, v24
      v_and_b32 v25, 7, v26
      v_lshl_add_u32 v24, v25, 7, v24
      v_lshrrev_b32 v25, 3, v26
      v_lshl_add_u32 v24, v25, 10, v24
      s_lshr_b32 s42, s{sWV}, 2
      s_lshl_b32 s42, s42, 14
      s_add_u32 s42, s42, {KV}
      v_add_u32 v164, s42, v24
      v_add_u32 v165, 0x10000, v164
      v_lshrrev_b32 v24, 1, v{vN}             ; xi
      v_and_b32 v25, 4, v24
      v_lshl_or_b32 v25, v25, 1, v24          ; sigma
      s_lshl_b32 s42, s{sWV}, 1
      v_xor_b32 v25, s42, v25
      v_lshlrev_b32 v25, 4, v25
      v_lshl_add_u32 v25, v24, 8, v25         ; + xi*256
      v_lshl_add_u32 v25, v{vKG}, 11, v25     ; + (l>>4)*2048
      v_and_b32 v24, 1, v{LANE}
      v_lshl_add_u32 v28, v24, 3, v25
      v_xor_b32 v29, 16, v28
      v_xor_b32 v30, v{vN}, v{vKG}
      v_lshlrev_b32 v30, 4, v30
      v_lshl_add_u32 v30, v{vKG}, 8, v30
      v_xor_b32 v31, {12*16}, v30             ; odd s
      v_lshlrev_b32 v166, 4, v{LANE}          ; lane*16""")
g(f"s_cmp_ge_u32 s{sWV}, 5\ns_cbranch_scc1 L_A_q2")
for p in range(4):
    g(f"s_waitcnt vmcnt({6-2*p})")
    e = 2 * p
    for d in range(2):
        g(f"v_perm_b32 v{48+8*d+p}, v{32+2*(e+1)+d}, v{32+2*e+d}, s{sPLO}")
        g(f"v_perm_b32 v{48+8*d+4+p}, v{32+2*(e+1)+d}, v{32+2*e+d}, s{sPHI}")
stamp(18)
lds_wait(F_XN, 1, 19, extra=f"ds_read_b128 v[116:119], v112 offset:{XNL}")
for t in range(4): mfma(64 + 4 * t, 116, 48 + 4 * t, True)
g(f"""s_nop 6
      v_mov_b32 v65, v68
      v_mov_b32 v66, v72
      v_mov_b32 v67, v76
      s_mov_b64 exec, 0xffff
      ds_write_b128 v113, v[64:67] offset:{REDQ}
      s_mov_b64 exec, 1
      ds_add_u32 v{VZ}, v{VONE} offset:{F_Q}
      s_mov_b64 exec, -1""")
g.label("L_A_q2")
stamp(2)
get_tag(7)
g(f"s_lshl_b32 s18, s{sTAG}, 5              ; 32*TAG")
lds_wait(F_QP, 1, 19, sleep=1)
if OPT["d1"]: g(f"s_sleep {OPT['d1']}")
stamp(3)
L, Lo = g.nl("h1"), g.nl("h1o")
g(f"s_mov_b32 s{sCNT}, {LIM_MEM}")
g.label(L)
for k in range(4):
    g(f"s_load_dwordx16 {sr(36+16*k,16)}, s[32:33], {64*k} glc")
g(f"""s_sub_u32 s{sCNT}, s{sCNT}, 1
      s_cbranch_scc1 {Lo}
      s_waitcnt lgkmcnt(0)
      s_cmp_eq_u32 s99, s{sTAG}
      s_cbranch_scc0 {L}
      s_add_u32 s19, s37, s39""")
for k in range(2, 32):
    g(f"s_add_u32 s19, s19, s{37+2*k}")
g(f"s_cmp_eq_u32 s19, s18\ns_cbranch_scc0 {L}")
g.label(Lo)
stamp(1)
g(f"""s_cmp_lt_u32 s{sWV}, 6
      s_cbranch_scc1 L_nouk
      s_waitcnt vmcnt(0)""")
lds_inc(F_UK)
g.label("L_nouk")
lds_wait(F_UK, 2, 19)
for e in range(8):
    if e: g(f"v_xor_b32 v7, {e*16}, v6")
    g(f"ds_read_b128 {vr(W+4*e,4)}, v{6 if e == 0 else 7} offset:{QL}")
for k in range(32):
    if k % 4 == 0: g(f"s_waitcnt lgkmcnt({7 - k//4})")
    g(f"v_dot2c_f32_bf16 v{8+(k&1)}, s{36+2*k}, v{W+k}")
g(f"""s_nop 2
      v_add_f32 v8, v8, v9
      ds_write_b32 v10, v8 offset:{REDQA}""")
lds_inc(F_QA)
stamp(4)
lds_wait(F_QAP, 1, 42, sleep=1)
lds_wait(F_ISS, OPT["h2iss"], 42, sleep=1)
h2_loads = "\n".join(f"buffer_load_dwordx4 {vr(8+4*n,4)}, v{VL16}, {sr(WS,4)}, s20 offen offset:{1024*n} sc1" for n in range(4))
g(h2_loads)
stamp(5)
lds_wait(F_LAND, 2, 42)
stamp(6)
for s in range(16):
    cb = s >> 1
    a = 160 + (s & 1) + (2 if cb >= 4 else 0)
    g(f"ds_read_b128 {vr(QKA+4*s,4)}, v{a} offset:{(cb&3)*16384}")
L, Lo = g.nl("h2c"), g.nl("h2co")
g(f"s_mov_b32 s43, {LIM_MEM}")
g.label(L)
g("s_waitcnt vmcnt(0)")
tagcheck([9, 11, 13, 15, 17, 19, 21, 23], 24)
g(f"""s_cbranch_vccz {Lo}
      s_sub_u32 s43, s43, 1
      s_cbranch_scc1 {Lo}
      s_sleep {OPT["bk2"]}
      s_mov_b64 exec, vcc""")
g(h2_loads)
g(f"s_mov_b64 exec, -1\ns_branch {L}")
g.label(Lo)
stamp(7)
for n in range(4):
    g(f"v_mov_b32 v{9+4*n}, v{10+4*n}")
lds_wait(F_QA, 8, 42)
for n in range(4):
    g(f"ds_write_b64 v{28+(n>>1)}, {vr(8+4*n,2)} offset:{QL+(n&1)*8192}")
lds_inc(F_STG)
for i in range(4):
    for u in range(4):
        for hh in range(2):
            T = 2 * u + hh
            g(f"ds_read_b64_tr_b16 {vr(PVA+16*i+4*u+2*hh,2)}, v{164+(i>>1)} offset:{(i&1)*32768+T*2048}")
g(f"""s_lshr_b32 s42, s{sWV}, 1
      s_lshl_b32 s42, s42, 10
      s_and_b32 s43, s{sWV}, 1
      s_lshl_b32 s43, s43, 3
      s_add_u32 s42, s42, s43
      v_add_u32 v7, s42, v{VL16}
      v_lshlrev_b32 v6, 5, v{vN}
      s_lshl_b32 s42, s{sWV}, 2
      v_add_u32 v29, s42, v6
      v_lshrrev_b32 v24, 3, v{vN}
      v_lshl_add_u32 v24, v{vKG}, 2, v24      ; head = 4q + (j>>3)
      v_lshlrev_b32 v28, 17, v24              ; * 8*8*2048
      v_and_b32 v24, 7, v{vN}
      v_lshl_add_u32 v28, v24, 4, v28
      s_mov_b32 s43, 0x3f803f80
      s_and_b32 s42, s{sTAG}, 1
      s_mul_i32 s42, s42, 0x01010101
      s_and_b32 s44, s{sTAG}, 0xfefefefe
      s_or_b32 s42, s42, s44
      v_and_b32 v24, 3, v{LANE}
      v_lshlrev_b32 v24, 3, v24
      v_lshrrev_b32 v24, v24, s42
      v_lshl_or_b32 v24, v24, 15, v24
      s_mov_b32 s44, 0x00010001""")
TP = 160
g(f"v_and_b32 v25, 0xff, v24\nv_lshlrev_b32 v24, 15, v25\nv_or_b32 v24, v24, v25")
for d in range(4):
    g(f"v_lshrrev_b32 v25, {2*d}, v24\nv_and_b32 v{TP+d}, s44, v25")
def bread(s): return f"ds_read_b128 {vr(8+4*(s&3),4)}, v{30+(s&1)} offset:{QL+s*1024}"
lds_wait(F_STG, 8, 42)
stamp(8)
g("\n".join(bread(s) for s in range(4)))
SA = 24
for s in range(16):
    g(f"s_waitcnt lgkmcnt({min(3, 15-s)})")
    mfma(SA, QKA + 4 * s, 8 + 4 * (s & 3), s == 0)
    if s + 4 < 16: g(bread(s + 4))
VM = 10
if OPT["amax"]:
    g(f"""v_lshlrev_b32 v8, 2, v{vN}
          v_mov_b32 v11, 0
          s_nop 5
          v_max3_f32 v9, v{SA}, v{SA+1}, v{SA+2}
          v_max_f32 v9, v9, v{SA+3}
          ds_max_f32 v8, v9 offset:{RMAX}""")
    lds_inc(F_MAX)
    stamp(14)
    lds_wait(F_MAX, 8, 42, extra=f"ds_read_b32 v{VM}, v8 offset:{RMAX}")
else:
    g(f"""v_mov_b32 v11, 0
          s_nop 6
          v_max3_f32 v9, v{SA}, v{SA+1}, v{SA+2}
          v_max_f32 v9, v9, v{SA+3}
          v_mov_b32 v8, v9
          s_nop 1
          v_permlane16_swap_b32 v9, v8
          v_max_f32 v9, v9, v8
          v_mov_b32 v8, v9
          s_nop 1
          v_permlane32_swap_b32 v9, v8
          v_max_f32 v9, v9, v8
          s_mov_b64 exec, 0xffff
          ds_write_b32 v29, v9 offset:{RMX}
          s_mov_b64 exec, 1
          ds_add_u32 v{VZ}, v{VONE} offset:{F_MAX}
          s_mov_b64 exec, -1""")
    stamp(14)
    lds_wait(F_MAX, 8, 42, extra=f"ds_read_b128 v[12:15], v6 offset:{RMX}\nds_read_b128 v[16:19], v6 offset:{RMX+16}")
    g(f"""v_max3_f32 v{VM}, v12, v13, v14
          v_max3_f32 v16, v15, v16, v17
          v_max3_f32 v{VM}, v{VM}, v18, v19
          v_max_f32 v{VM}, v{VM}, v16""")
for r in range(4): g(f"v_sub_f32 v{SA+r}, v{SA+r}, v{VM}")
for r in range(4): g(f"v_exp_f32 v{SA+r}, v{SA+r}")
g(f"""v_lshlrev_b32 v15, 10, v{vN}
      v_cvt_pk_bf16_f32 v12, v{SA}, v{SA+1}
      v_cvt_pk_bf16_f32 v13, v{SA+2}, v{SA+3}
      ds_write_b64 v7, v[12:13] offset:{PL}""")
lds_inc(F_P)
g(f"""v_dot2c_f32_bf16 v11, s43, v12
      v_dot2c_f32_bf16 v11, s43, v13
      v_lshlrev_b32 v14, 2, v29               ; n*128 + T*16
      v_lshl_add_u32 v14, v{vKG}, 2, v14      ; + q*4
      s_cmp_eq_u32 s{sWV}, 0
      ds_write_b32 v14, v11 offset:{RLP}
      s_mov_b64 exec, 1
      ds_add_u32 v{VZ}, v{VONE} offset:{F_L}
      s_cbranch_scc0 L_nomh
      s_mov_b64 exec, 0xffff
      v_mov_b32 v11, s{sTAG}
      buffer_store_dwordx2 v[10:11], v15, {sr(WS,4)}, s27 offen sc1""")
g.label("L_nomh")
g("s_mov_b64 exec, -1")
stamp(15)
PF = 32
lds_wait(F_P, 8, 42)
stamp(9)
g("\n".join(f"ds_read_b128 {vr(PF+4*u,4)}, v{VL16} offset:{PL+1024*u}" for u in range(4)))
OA = 48
for u in range(4):
    g(f"s_waitcnt lgkmcnt({3-u})")
    for i in range(4): mfma(OA + 4 * i, PF + 4 * u, PVA + 16 * i + 4 * u, u == 0)
GR = 64
g("s_nop 6")
for a in range(2):
    A0, B0, T0 = GR + 4 * a, GR + 4 * a + 2, 72
    for d in range(2):
        g(f"v_perm_b32 v{A0+d}, v{OA+8*d+4+2*a}, v{OA+8*d+2*a}, s{sPHI}")
        g(f"v_perm_b32 v{B0+d}, v{OA+8*d+4+2*a+1}, v{OA+8*d+2*a+1}, s{sPHI}")
    g("s_nop 0")
    for d in range(2): g(f"v_mov_b32_dpp v{T0+d}, v{A0+d} row_ror:8 {DPPM}")
    for d in range(2): g(f"v_mov_b32_dpp v{A0+d}, v{B0+d} row_ror:8 row_mask:0xf bank_mask:0xc")
    for d in range(2): g(f"v_mov_b32_dpp v{B0+d}, v{T0+d} quad_perm:[0,1,2,3] row_mask:0xf bank_mask:0x3")
    for d in range(4): g(f"v_xad_u32 v{A0+d}, v{TP+d}, s44, v{A0+d}")
    for d in range(4): g(f"v_bfi_b32 v{A0+d}, s44, v{TP+d}, v{A0+d}")
    g(f"buffer_store_dwordx4 {vr(A0,4)}, v28, {sr(WS,4)}, s{26 if a == 0 else 22} offen sc1")
stamp(10)
MK = 76
g(f"""v_and_b32 v12, 1, v{LANE}
      v_lshlrev_b32 v12, 4, v12
      v_mov_b32 v13, 0xffff
      v_lshlrev_b32 v13, v12, v13
      v_bfe_u32 v12, v{LANE}, 1, 2""")
for p in range(4):
    g(f"v_cmp_eq_u32 vcc, {p}, v12\ns_nop 1\nv_cndmask_b32 v{MK+p}, v{VZ}, v13, vcc")
g(f"""v_lshlrev_b32 v16, 2, v{vN}
      s_lshl_b32 s42, s{sWV}, 6
      v_add_u32 v16, s42, v16
      v_lshrrev_b32 v17, 3, v{LANE}
      v_lshlrev_b32 v17, 2, v17
      v_add_u32 v17, s42, v17
      v_lshrrev_b32 v18, 3, v{vN}             ; a = j>>3
      s_lshl_b32 s42, s{sWV}, 1
      v_add_u32 v19, s42, v18
      v_mul_u32_u24 v19, 144, v19
      v_and_b32 v20, 7, v{vN}
      v_lshl_add_u32 v19, v20, 4, v19
      v_and_b32 v20, 1, v{vKG}
      v_lshl_add_u32 v19, v20, 3, v19
      v_lshrrev_b32 v20, 1, v{vKG}
      v_cmp_eq_u32 s[46:47], v18, v20
      v_lshlrev_b32 v21, 7, v{vN}
      v_lshlrev_b32 v14, 3, v{LANE}           ; lane*8
      s_cmp_eq_u32 s{sWV}, 1
      s_cbranch_scc0 L_nohdr""")
lds_wait(F_L, 8, 42)
for k in range(8): g(f"ds_read_b128 {vr(80+4*k,4)}, v21 offset:{RLP+16*k}")
g(f"v_mov_b32 v13, s{sTAG}\ns_waitcnt lgkmcnt(0)")
sum_groups(80, 8)
g(f"""v_add_f32 v80, v80, v81
      v_add_f32 v82, v82, v83
      v_add_f32 v12, v80, v82
      s_mov_b64 exec, 0xffff
      buffer_store_dwordx2 v[12:13], v15, {sr(WS,4)}, s23 offen sc1
      s_mov_b64 exec, -1""")
g.label("L_nohdr")
if OPT["d3"]: g(f"s_sleep {OPT['d3']}")
stamp(22)
IR = 80
ib_loads = f"""buffer_load_dwordx4 {vr(IR,4)}, v{VL16}, {sr(WS,4)}, s30 offen sc1
      buffer_load_dwordx4 {vr(IR+4,4)}, v{VL16}, {sr(WS,4)}, s30 offen offset:1024 sc1"""
L, Lo = g.nl("h3"), g.nl("h3o")
g(f"s_mov_b32 s43, {LIM_MEM}\ns_mov_b64 exec, 0xffff")
g.label(L)
g(f"""buffer_load_dwordx2 v[24:25], v14, {sr(WS,4)}, s31 offen sc1
      s_waitcnt vmcnt(0)
      v_cmp_ne_u32 vcc, s{sTAG}, v25
      s_sub_u32 s43, s43, 1
      s_cbranch_scc1 {Lo}
      s_cbranch_vccz {Lo}
      s_mov_b64 exec, vcc
      s_sleep {OPT["bk3"]}
      s_branch {L}""")
g.label(Lo)
Lf = g.nl("h3f")
g(f"""s_mov_b64 exec, 0xffff
      ds_write_b32 v16, v24 offset:{MLT}
      s_mov_b64 exec, 1
      ds_add_u32 v{VZ}, v{VONE} offset:{F_ML}
      s_mov_b64 exec, -1
      s_cmp_eq_u32 s43, {LIM_MEM-1}
      s_cbranch_scc1 {Lf}
      s_sleep {OPT["d3b"]}""")
g.label(Lf)
g(ib_loads)
stamp(11)
def global_max(dst, t0):
    g(f"""v_max_f32 v{dst}, v{t0}, v{t0+1}""")
    for mod in ("quad_perm:[1,0,3,2]", "quad_perm:[2,3,0,1]", "row_half_mirror", "row_mirror"):
        g(f"s_nop 1\nv_max_f32_dpp v{dst}, v{dst}, v{dst} {mod} {DPPM}")
    for sw in ("v_permlane16_swap_b32", "v_permlane32_swap_b32"):
        g(f"v_mov_b32 v{dst+1}, v{dst}\ns_nop 1\n{sw} v{dst}, v{dst+1}\nv_max_f32 v{dst}, v{dst}, v{dst+1}")
lds_wait(F_ML, 8, 42)
g(f"""ds_read_b64 v[24:25], v14 offset:{MLT}
      ds_read_b32 v8, v17 offset:{MLT}
      ds_read_b32 v9, v17 offset:{MLT+32}
      s_waitcnt lgkmcnt(0)""")
global_max(22, 24)
g(f"""v_sub_f32 v8, v8, v22
      v_sub_f32 v9, v9, v22
      v_exp_f32 v8, v8
      v_exp_f32 v9, v9
      s_nop 0
      v_cvt_pk_bf16_f32 v8, v8, v8
      v_cvt_pk_bf16_f32 v9, v9, v9""")
for n in range(2):
    for p in range(4): g(f"v_and_b32 v{88+4*n+p}, v{8+n}, v{MK+p}")
L, Lo = g.nl("h3d"), g.nl("h3do")
g(f"s_mov_b32 s43, {LIM_MEM}")
g.label(L)
g(f"s_waitcnt vmcnt(0)\nv_xor_b32 v{VT}, v{IR}, v{TP}")
for k in range(1, 8): g(f"v_bitop3_b32 v{VT}, v{IR+k}, v{TP+(k&3)}, v{VT} bitop3:0xbe")
g(f"""v_and_b32 v{VT}, s44, v{VT}
      v_cmp_ne_u32 vcc, 0, v{VT}
      s_cbranch_vccz {Lo}
      s_sub_u32 s43, s43, 1
      s_cbranch_scc1 {Lo}
      s_lshr_b64 s[48:49], vcc, 4
      s_or_b64 vcc, vcc, s[48:49]
      s_lshr_b64 s[48:49], vcc, 2
      s_or_b64 vcc, vcc, s[48:49]
      s_lshr_b64 s[48:49], vcc, 1
      s_or_b64 vcc, vcc, s[48:49]
      s_and_b32 s48, vcc_lo, 0x01010101
      s_and_b32 s49, vcc_hi, 0x01010101
      s_mul_i32 exec_lo, s48, 0xff
      s_mul_i32 exec_hi, s49, 0xff
      s_sleep {OPT["bk3"]}
      {ib_loads}
      s_branch {L}""")
g.label(Lo)
g("s_mov_b64 exec, -1")
stamp(12)
mfma(96, 88, IR, True)
mfma(96, 92, IR + 4, False)
g(f"""s_nop 7
      v_cvt_pk_bf16_f32 v100, v96, v97
      v_cvt_pk_bf16_f32 v101, v98, v99
      s_mov_b64 exec, s[46:47]
      ds_write_b64 v19, v[100:101] offset:{RIB}
      s_mov_b64 exec, 1
      ds_add_u32 v{VZ}, v{VONE} offset:{F_IB}
      s_mov_b64 exec, -1""")
stamp(13)
g(f"""s_cmp_lt_u32 s{sWG}, 20
      s_cbranch_scc0 L_A_end
      s_lshl_b32 s41, s{sWG}, 14
      s_lshl_b32 s42, s{sWV}, 11
      s_add_u32 s41, s41, s42
      s_add_u32 s41, s41, {SM}
      v_and_b32 v7, 7, v{LANE}
      v_lshlrev_b32 v6, 4, v7
      s_lshl_b32 s42, s{sWV}, 7
      v_add_u32 v6, s42, v6
      v_lshlrev_b32 v7, 3, v7
      s_lshl_b32 s55, s{sWG}, 6""")
tagbytes()
def red8(b):
    g("s_nop 0")
    for r in range(4): g(f"v_add_f32_dpp v{b+r}, v{b+r}, v{b+r} row_ror:8 {DPPM}")
    for sw in ("v_permlane16_swap_b32", "v_permlane32_swap_b32"):
        for r in range(4): g(f"v_mov_b32 v{b+4+r}, v{b+r}")
        for r in range(4): g(f"{sw} v{b+r}, v{b+4+r}")
        for r in range(4): g(f"v_add_f32 v{b+r}, v{b+r}, v{b+4+r}")
g(f"""s_cmp_eq_u32 s{sWV}, 0
      s_cbranch_scc0 L_fin_s""")
srd(SR, P_X, 1280)
g(f"""buffer_load_dwordx2 v[16:17], v7, {sr(SR,4)}, s55 offen
      s_lshl_b32 s40, s{sWG}, 12
      s_add_u32 s40, s40, {YM}""")
for d in range(4): g(f"v_mov_b32 v{60+d}, s{sTB+d}\nv_and_b32 v{60+d}, 0xff, v{60+d}")
poll_loads("h7", f"""buffer_load_dwordx4 v[48:51], v{VL16}, {sr(WS,4)}, s40 offen sc1
      buffer_load_dwordx4 v[52:55], v{VL16}, {sr(WS,4)}, s40 offen offset:1024 sc1
      buffer_load_dwordx4 v[56:59], v{VL16}, {sr(WS,4)}, s40 offen offset:2048 sc1
      s_mov_b64 exec, 0xffffff
      buffer_load_dwordx4 v[60:63], v{VL16}, {sr(WS,4)}, s40 offen offset:3072 sc1
      s_mov_b64 exec, -1""", [48, 52, 56, 60], 43, sleep=4, mask=False, b8=True)
sum_groups(48, 4)
red8(48)
for r in range(48, 52): rne(r)
for r in range(48, 52): g(f"v_mul_f32 v{r+4}, {hex(f32(-math.log2(math.e)))}, v{r}")
for r in range(48, 52): g(f"v_exp_f32 v{r+4}, v{r+4}")
for r in range(48, 52): g(f"v_add_f32 v{r+4}, 1.0, v{r+4}")
for r in range(48, 52): g(f"v_rcp_f32 v{r+4}, v{r+4}")
for r in range(48, 52): g(f"v_mul_f32 v{r}, v{r}, v{r+4}")
for r in range(48, 52): rne(r)
g("""v_lshlrev_b32 v20, 16, v16
     v_and_b32 v21, 0xffff0000, v16
     v_lshlrev_b32 v22, 16, v17
     v_and_b32 v23, 0xffff0000, v17""")
stamp(19)
g.label("L_fin_s")
lds_wait(F_SD, 4, 42, sleep=1)
if OPT["d5"]: g(f"s_sleep {OPT['d5']}")
poll_loads("h5", f"""buffer_load_dwordx4 v[32:35], v{VL16}, {sr(WS,4)}, s41 offen sc1
      buffer_load_dwordx4 v[36:39], v{VL16}, {sr(WS,4)}, s41 offen offset:1024 sc1""", [32, 36], 43, sleep=OPT["bk5"], b8=True)
stamp(20)
sum_groups(32, 2)
red8(32)
g(f"""s_mov_b64 exec, 0xff
      ds_write_b128 v6, v[32:35] offset:{RFIN}
      s_mov_b64 exec, 1
      ds_add_u32 v{VZ}, v{VONE} offset:{F_FIN}
      s_mov_b64 exec, -1
      s_cmp_eq_u32 s{sWV}, 0
      s_cbranch_scc0 L_A_end""")
srd(44, P_OUT, 1280)
lds_wait(F_FIN, 8, 42, extra=f"ds_read_b128 v[32:35], v{VL16} offset:{RFIN}")
red8(32)
for r in range(4): rne(32 + r)
for r in range(4): g(f"v_mul_f32 v{32+r}, v{32+r}, v{48+r}")
for r in range(4): rne(32 + r)
for r in range(4): g(f"v_add_f32 v{32+r}, v{32+r}, v{20+r}")
g(f"""v_cvt_pk_bf16_f32 v32, v32, v33
      v_cvt_pk_bf16_f32 v33, v34, v35
      s_mov_b64 exec, 0xff
      buffer_store_dwordx2 v[32:33], v7, {sr(44,4)}, s55 offen
      s_cmp_eq_u32 s{sWG}, 0
      s_cbranch_scc0 L_noep
      s_mov_b64 exec, 1
      v_mov_b32 v13, s{sTAG}
      buffer_store_dword v13, v{VZ}, {sr(WS,4)}, 0 offen offset:{EPOCH}""")
g.label("L_noep")
stamp(21)
g.label("L_A_end")
ts_flush()
g("s_endpgm")

KORD = (0, 2, 1, 3)
TH = OPT["gthr"]
def wo_setup():
    g(f"""v_mul_u32_u24 v6, {8*1280}, v{vKG}
          v_lshl_add_u32 v6, v{vN}, 3, v6
          s_lshl_b32 s40, s{sHF}, 7
          s_lshr_b32 s41, s{sJ}, 1
          s_lshl_b32 s41, s41, 5
          s_add_u32 s40, s40, s41
          s_mul_i32 s40, s40, 1280
          s_and_b32 s41, s{sJ}, 1
          s_mul_i32 s41, s41, 640
          s_add_u32 s48, s40, s41""")
    srd(44, P_WO, 5242880)

def wo_gate():
    if OPT["wogate"] == 1: lds_wait(F_L, 8, 40, sleep=2)
    elif OPT["wogate"] == 2: lds_wait(F_IB, 1, 40, sleep=2)

def h4_setup():
    g(f"""v_and_b32 v31, 7, v{vN}
          v_lshlrev_b32 v29, 7, v31
          v_lshl_add_u32 v29, v{vKG}, 5, v29
          s_lshl_b32 s50, s{sHF}, 2
          s_lshr_b32 s51, s{sJ}, 1
          s_add_u32 s50, s50, s51                 ; p = h*4+dq
          s_lshl_b32 s61, s50, 10
          s_add_u32 s65, s61, {CXM}
          s_add_u32 s61, s61, {CXA if OPT["fast4"] else CXM}
          v_lshrrev_b32 v30, 3, v{vN}
          v_lshlrev_b32 v30, 14, v30
          v_lshl_add_u32 v30, v31, 4, v30         ; (n>>3)*16K + (n&7)*16
          v_mov_b32 v31, 0xff
          s_and_b32 s41, s{sJ}, 1
          s_mul_i32 s41, s41, {10*16384}
          s_lshl_b32 s50, s50, 7
          s_add_u32 s50, s50, s41
          s_add_u32 s50, s50, {SM}""")
    tagbytes()

def h4_warm(A, cbks):
    g(f"buffer_load_dwordx4 {vr(A,4)}, v29, {sr(WS,4)}, s61 offen sc1")
    for cbk in cbks:
        g(f"""s_add_u32 s51, s50, {cbk*2*16384}
              buffer_load_dwordx4 {vr(A+4,4)}, v30, {sr(WS,4)}, s51 offen sc1""")

def h4_wait(A, late=""):
    Ls = g.nl("h4s")
    onfail = f"""s_cmp_gt_u32 s43, {LIM_MEM-32}
          s_cbranch_scc1 {Ls}
          s_mov_b32 s51, s61
          s_mov_b32 s61, s65
          s_mov_b32 s65, s51
          {late}
          {Ls}:""" if OPT["fast4"] else ""
    poll_loads("h4", f"""buffer_load_dwordx4 {vr(A,4)}, v29, {sr(WS,4)}, s61 offen sc1
          buffer_load_dwordx4 {vr(A+4,4)}, v29, {sr(WS,4)}, s61 offen offset:16 sc1""", [A+1, A+3, A+5, A+7], 43, sleep=OPT["bk4"], onfail=onfail)
    g(f"v_mov_b32 v{A+1}, v{A+4}\nv_mov_b32 v{A+3}, v{A+6}\ns_nop 1")

def wo_compute(A, frags, cbks, D):
    for bi, fr in enumerate(frags):
        for t in range(4): mfma(D + 16 * bi + 4 * t, A, fr + 4 * t, True)
    lds_wait(F_RLV, 1, 40, extra=f"ds_read_b32 v28, v{VZ} offset:{RLINV}")
    for bi, cbk in enumerate(cbks):
        d = D + 16 * bi
        for t in range(4):
            g(f"v_add_f32 v{d+4*t+1}, v{d+4*t}, v{d+4*t+1}\nv_add_f32 v{d+4*t+2}, v{d+4*t+2}, v{d+4*t+3}")
        for t in range(4): g(f"v_add_f32 v{16+t}, v{d+4*t+1}, v{d+4*t+2}")
        for t in range(4): g(f"v_mov_b32 v{20+t}, v{16+t}")
        g(f"s_add_u32 s51, s50, {cbk*2*16384}")
        for t in range(4): g(f"v_permlane16_swap_b32 v{16+t}, v{20+t}")
        for t in range(4): g(f"v_add_f32 v{16+t}, v{16+t}, v{20+t}")
        for t in range(4): g(f"v_mul_f32 v{d+t}, v{16+t}, v28")
        tagput([d, d+1, d+2, d+3], 31)
        g(f"""s_mov_b64 exec, 0xffff
              buffer_store_dwordx4 {vr(d,4)}, v30, {sr(WS,4)}, s51 offen sc1
              s_mov_b64 exec, -1""")
    lds_inc(F_SD)

def b1_gate():
    if OPT["b1gate"]:
        land_flush()
        lds_wait(F_STG, OPT['b1gate'], 40, sleep=2)

g.label("L_G")
get_tag(6)
g(f"""s_cmp_eq_u32 s{sWV}, 10
      s_cbranch_scc1 L_G_uv10""")
LD.pending = True; LD.n = 0
wo_setup(); h4_setup()
b1_gate()
if OPT["wogate"]: land_flush()
wo_gate()
stamp(4)
load_block(32, 6, 44, 48, 42, 1280, TH)
g("s_add_u32 s49, s48, 128")
load_block(48, 6, 44, 49, 42, 1280, TH)
land_flush()
g("s_waitcnt vmcnt(8)")
perm_block(32, 64, KORD)
g("s_waitcnt vmcnt(0)")
perm_block(48, 80, KORD)
h4_warm(8, [0, 1])
stamp(5)
g(f"""v_lshlrev_b32 v16, 3, v{LANE}
      v_lshlrev_b32 v17, 4, v{LANE}
      s_lshl_b32 s52, s{sHF}, 10
      s_add_u32 s52, s52, {HD + 0x8000}""")
lds_wait(F_ML, 8, 40, sleep=2)
g(f"ds_read_b64 v[20:21], v16 offset:{MLT}\ns_waitcnt lgkmcnt(0)")
global_max(22, 20)
g(f"""v_sub_f32 v20, v20, v22
      v_sub_f32 v21, v21, v22
      v_exp_f32 v20, v20
      v_exp_f32 v21, v21
      s_nop 0""")
rne(20); rne(21)
lds_wait(F_IB, 8, 40, sleep=1)
g("s_setprio 2")
poll_loads("hl", f"buffer_load_dwordx4 v[24:27], v17, {sr(WS,4)}, s52 offen sc1", [25, 27], 43, sleep=2)
g("v_mul_f32 v24, v24, v20\nv_fmac_f32 v24, v26, v21")
wave_sum(24, 40)
g(f"""s_nop 1
      v_rcp_f32 v24, s40
      s_nop 0
      ds_write_b32 v{VZ}, v24 offset:{RLINV}
      ds_write_b32 v{VZ}, v{VONE} offset:{F_RLV}""")
h4_wait(8)
stamp(6)
wo_compute(8, [64, 80], [0, 1], 96)
stamp(7)
g("s_branch L_G_end")

def uv_loads():
    g(f"""v_lshlrev_b32 v7, 13, v{vKG}
          v_lshl_add_u32 v7, v{vN}, 3, v7
          s_lshl_b32 s56, s{sJ}, 17               ; 16j rows
          s_lshl_b32 s41, s{sHF}, 8
          s_add_u32 s56, s56, s41
          s_sub_u32 s52, s{sWV}, 9                ; colhalf
          s_lshl_b32 s41, s52, 7
          s_add_u32 s56, s56, s41
          s_add_u32 s57, s56, {4*8192}""")
    srd(SR, P_WUV, 4194304)
    b1_gate()
    stamp(4)
    rows = [128 * (e & 3) + 8 * (e >> 2) for e in range(8)]
    load_block(32, 7, SR, 56, 42, 8192, TH, rows)
    load_block(48, 7, SR, 57, 42, 8192, TH, rows)
    land_flush()
g.label("L_G_uv10")
LD.pending = True; LD.n = 0
uv_loads()
g("s_branch L_G_uv")
g.label("L_G_uv9")
LD.pending = False
uv_loads()
g.label("L_G_uv")
wo_setup(); h4_setup()
g(f"""s_add_u32 s49, s52, 2
      s_mul_i32 s53, s49, {2*16384}
      s_add_u32 s50, s50, s53
      s_lshl_b32 s49, s49, 7
      s_add_u32 s49, s49, s48
      v_and_b32 v7, 7, v{vN}
      v_mul_u32_u24 v8, 144, v{vN}
      v_lshl_add_u32 v8, v{vKG}, 4, v8
      v_lshlrev_b32 v9, 4, v{LANE}
      v_lshrrev_b32 v11, 3, v{vN}
      v_lshlrev_b32 v11, 10, v11
      v_lshl_add_u32 v11, v7, 4, v11          ; (n>>3)*1024 + (n&7)*16
      s_lshl_b32 s40, s{sHF}, 2
      s_lshl_b32 s41, s52, 1
      s_add_u32 s40, s40, s41
      s_lshl_b32 s40, s40, 3
      s_add_u32 s40, s40, s{sJ}
      s_lshl_b32 s40, s40, 7
      s_add_u32 s54, s40, {CXM}
      s_waitcnt vmcnt(8)""")
perm_block(32, 80)
g("s_waitcnt vmcnt(0)")
perm_block(48, 96)
wo_gate()
load_block(64, 6, 44, 49, 42, 1280, TH)
g(f"v_mov_b32 v61, s{sTAG}\nv_mov_b32 v63, s{sTAG}\ns_add_u32 s55, s54, {CXA-CXM}")
h4_warm(16, [0])
g("s_waitcnt vmcnt(0)")
perm_block(64, 112, KORD)
stamp(5)
lds_wait(F_ML, 8, 40, sleep=2)
g("s_setprio 3")
lds_wait(F_IB, 8, 40)
g(f"""ds_read_b128 v[32:35], v8 offset:{RIB}
      ds_read_b128 v[36:39], v8 offset:{RIB+64}""")
stamp(6)
D = 128
for blk in range(2):
    g(f"s_waitcnt lgkmcnt({1-blk})")
    for t in range(4): mfma(D + 4 * t, 32 + 4 * blk, 80 + 16 * blk + 4 * t, blk == 0)
g("s_nop 4")
for t in range(4): g(f"v_add_f32 v{D+4*t}, v{D+4*t}, v{D+4*t+1}\nv_add_f32 v{D+4*t+2}, v{D+4*t+2}, v{D+4*t+3}")
for t in range(4): g(f"v_add_f32 v{D+4*t}, v{D+4*t}, v{D+4*t+2}")
for sw in ("v_permlane16_swap_b32", "v_permlane32_swap_b32"):
    for t in range(4): g(f"v_mov_b32 v{D+4*t+1}, v{D+4*t}")
    g("s_nop 0")
    for t in range(4): g(f"{sw} v{D+4*t}, v{D+4*t+1}")
    for t in range(4): g(f"v_add_f32 v{D+4*t}, v{D+4*t}, v{D+4*t+1}")
g(f"""v_cvt_pk_bf16_f32 v60, v{D}, v{D+4}
      v_cvt_pk_bf16_f32 v62, v{D+8}, v{D+12}
      s_mov_b64 exec, 0xffff
      buffer_store_dwordx4 v[60:63], v11, {sr(WS,4)}, {"s55 offen" if OPT["fast4"] else "s54 offen sc1"}
      s_mov_b64 exec, -1""")
stamp(7)
late = f"s_mov_b64 exec, 0xffff\nbuffer_store_dwordx4 v[60:63], v11, {sr(WS,4)}, s54 offen sc1"
h4_wait(32, late)
stamp(8)
wo_compute(32, [112], [0], 128)
if OPT["fast4"]: g(late + "\ns_mov_b64 exec, -1")
stamp(9)
g("s_branch L_G_end")

g.label("L_FFN")
XF = 8
g("s_waitcnt lgkmcnt(0)")
srd(WS, P_WS, WS_REC)
lds_wait(F_QI, 5, 40, sleep=1)
g(f"""s_lshr_b32 s40, s{sSLOT}, 3             ; hq
      s_lshl_b32 s40, s40, 1
      s_and_b32 s41, s{sJ}, 1
      s_add_u32 s40, s40, s41
      s_lshl_b32 s40, s40, 3
      s_add_u32 s62, s40, s{sXCD}             ; u in 0..63
      s_lshr_b32 s63, s{sJ}, 1                ; mq
      v_and_b32 v31, 1, v{vKG}
      v_cmp_eq_u32 s[56:57], 1, v31
      s_cmp_lt_u32 s62, 27
      s_cbranch_scc0 L_FFN2""")
LD.pending = False
g(f"""v_mul_u32_u24 v28, {8*3456}, v{vKG}
      v_lshl_add_u32 v28, v{vN}, 3, v28
      v_lshlrev_b32 v7, 4, v{vKG}
      s_mul_i32 s58, s63, 320
      v_add_u32 v7, s58, v7
      s_mul_i32 s58, s63, {160*3456}
      s_lshl_b32 s41, s62, 7
      s_add_u32 s58, s58, s41""")
srd(SR, P_W1, 2211840)
stamp(4)
for b in range(5):
    if b: g(f"s_add_u32 s58, s58, {32*3456}")
    load_block(48 + 16 * b, 28, SR, 58, 42, 3456, TH)
D = 144
get_tag(6)
lds_wait(F_XN, 1, 40)
for b in range(5): g(f"ds_read_b128 {vr(XF+4*b,4)}, v7 offset:{XNL+64*b}")
g("s_waitcnt lgkmcnt(0)")
for b in range(5):
    g(f"s_waitcnt vmcnt({8*(4-b)})")
    perm_block(48 + 16 * b, 32 + 16 * b)
    g("s_nop 1")
    for t in range(4): mfma(D + 4 * t, XF + 4 * b, 32 + 16 * b + 4 * t, b == 0)
g(f"""v_lshlrev_b32 v28, 4, v{LANE}
      s_nop 0
      s_lshl_b32 s40, s62, 2
      s_add_u32 s40, s40, s63
      s_lshl_b32 s40, s40, 9
      s_add_u32 s40, s40, {HM}
      v_mov_b32 v9, s{sTAG}
      v_mov_b32 v11, s{sTAG}
      s_nop 1
      v_cndmask_b32 v8, v{D}, v{D+8}, s[56:57]
      v_cndmask_b32 v10, v{D+4}, v{D+12}, s[56:57]
      s_mov_b32 exec_hi, 0
      buffer_store_dwordx4 v[8:11], v28, {sr(WS,4)}, s40 offen sc1
      s_mov_b64 exec, -1
      s_branch L_FFNe""")
g.label("L_FFN2")
g(f"""s_mul_i32 s40, s63, 37
      s_add_u32 s40, s40, s62
      s_sub_u32 s58, s40, 27
      s_cmp_lt_u32 s58, 135
      s_cbranch_scc1 L_FFN2a""")
get_tag(6)
g("s_branch L_FFNe")
g.label("L_FFN2a")
LD.pending = False
g(f"""s_mul_i32 s59, s58, 205
      s_lshr_b32 s59, s59, 10                 ; fb = v/5
      s_mul_i32 s60, s59, 5
      s_sub_u32 s60, s58, s60                 ; mb
      v_mul_u32_u24 v28, {8*1280}, v{vKG}
      v_lshl_add_u32 v28, v{vN}, 3, v28
      s_mul_i32 s58, s59, {64*1280}
      s_lshl_b32 s41, s60, 8
      s_add_u32 s58, s58, s41""")
srd(SR, P_W2, 2211840)
stamp(4)
for ch in range(2):
    for blk in range(2):
        g(f"s_add_u32 s41, s58, {blk*32*1280 + ch*128}")
        load_block(48 + 16 * (2 * ch + blk), 28, SR, 41, 42, 1280, TH)
get_tag(6)
for b in range(4):
    g(f"s_waitcnt vmcnt({8*(3-b)})")
    perm_block(48 + 16 * b, 32 + 16 * b)
g(f"""v_lshrrev_b32 v28, 2, v{vN}
      v_lshlrev_b32 v28, 9, v28
      v_lshl_add_u32 v28, v{vKG}, 5, v28
      v_bfe_u32 v29, v{vN}, 1, 1
      v_lshl_add_u32 v28, v29, 4, v28
      v_and_b32 v29, 1, v{vN}
      v_lshl_add_u32 v28, v29, 8, v28
      s_lshl_b32 s40, s59, 11
      s_add_u32 s40, s40, {HM}""")
poll_loads("h6", f"""buffer_load_dwordx4 v[8:11], v28, {sr(WS,4)}, s40 offen sc1
      buffer_load_dwordx4 v[12:15], v28, {sr(WS,4)}, s40 offen offset:128 sc1""", [9, 11, 13, 15], 43, sleep=6)
for mod in ("row_ror:4", "row_ror:8"):
    for r in (8, 10, 12, 14): g(f"v_add_f32_dpp v{r}, v{r}, v{r} {mod} {DPPM}")
for r in (8, 10, 12, 14): g(f"v_max_f32 v{r}, 0, v{r}")
g("v_cvt_pk_bf16_f32 v8, v8, v10\nv_cvt_pk_bf16_f32 v12, v12, v14\ns_nop 1")
for blk in range(2):
    for p in range(4):
        g(f"v_mov_b32_dpp v{16+4*blk+p}, v{8+4*blk} quad_perm:[{p},{p},{p},{p}] {DPPM}")
g("s_nop 1")
D = 96
for ch in range(2):
    for blk in range(2):
        for t in range(4): mfma(D + 16 * ch + 4 * t, 16 + 4 * blk, 32 + 16 * (2 * ch + blk) + 4 * t, blk == 0)
g(f"""v_lshrrev_b32 v28, 3, v{vN}
      v_lshlrev_b32 v28, 12, v28
      v_and_b32 v29, 7, v{vN}
      v_lshl_add_u32 v28, v29, 4, v28
      v_mov_b32 v29, 0xff
      s_lshl_b32 s40, s60, 14
      s_lshl_b32 s41, s59, 7
      s_add_u32 s40, s40, s41
      s_add_u32 s40, s40, {YM}
      s_add_u32 s41, s40, {2*4096}""")
tagbytes()
for ch in range(2):
    for t in range(4): g(f"v_bfi_b32 v{8+4*ch+t}, v29, s{sTB+t}, v{D+16*ch+4*t}")
g(f"""s_mov_b64 exec, 0xffff
      buffer_store_dwordx4 v[8:11], v28, {sr(WS,4)}, s40 offen sc1
      buffer_store_dwordx4 v[12:15], v28, {sr(WS,4)}, s41 offen sc1
      s_mov_b64 exec, -1""")
g.label("L_FFNe")
stamp(5)
wo_setup(); h4_setup()
g("s_add_u32 s49, s48, 512")
lds_wait(F_ISS, 2, 40, sleep=2)
b1_gate()
wo_gate()
load_block(128, 6, 44, 49, 42, 1280, TH)
g("s_waitcnt vmcnt(0)")
perm_block(128, 32, KORD)
h4_warm(8, [4])
lds_wait(F_IB, 8, 40, sleep=2)
g("s_setprio 2")
h4_wait(8)
stamp(6)
wo_compute(8, [32], [4], 48)
stamp(7)
g.label("L_G_end")
if OPT["pad"]:
    g(f"""v_readfirstlane_b32 s40, v{VTS}
          s_cmp_lt_u32 s{sWG}, 8
          s_cbranch_scc0 L_END
          s_add_u32 s40, s40, {OPT["pad"]}""")
    if OPT["padmin"]:
        g(f"""s_load_dwordx2 s[44:45], s[0:1], 80
          s_mov_b32 s46, 256
          s_mov_b32 s47, 0x20000
          v_not_b32 v8, v{VTS}
          s_mov_b64 exec, 1
          s_waitcnt lgkmcnt(0)
          buffer_atomic_umax v8, v{VZ}, s[44:47], 0 offen
          s_waitcnt vmcnt(0)
          s_sleep 100
          buffer_load_dword v8, v{VZ}, s[44:47], 0 offen sc1
          s_waitcnt vmcnt(0)
          v_not_b32 v8, v8
          s_nop 1
          v_readfirstlane_b32 s40, v8
          s_nop 3
          s_add_u32 s40, s40, {OPT["pad"]}""")
    g(f"""L_padl:
          s_memrealtime s[42:43]
          s_waitcnt lgkmcnt(0)
          s_sub_u32 s41, s42, s40
          s_cmp_lt_i32 s41, 0
          s_cbranch_scc1 L_padl""")
ts_flush("G")
g.label("L_END")
g("s_endpgm")
g.l.append(".p2align 12")
g.label("L_CODE_END")

s = file_head([f"; @launch grid=(256,1,1) block=(768,1,1) lds={LDS_BYTES}"])
s += f""".text
.globl {K}
.p2align 12
.type {K},@function
{K}:
"""
s += g.text()
s += kernel_desc(K, 168, 102)
open(OUT, "w").write(s)
print(OUT, "lines", len(g.l), "ws_end", hex(WS_END))
```

```python
import sys, math, struct
from asmlib import *

OPT = dict(ts=0, stop=99, inflight=16, gate=12, ksmap=1, gthr=32, wogate=0, b1gate=0, pol=1, h2iss=2, amax=0, bk2=4, bk3=2, dbg=0, bk4=0, bk5=3, d3=0, d3b=0, d1=2, d5=8, fast4=1, warm=1, pad=0, padmin=0, d2=8, fgate=2, fthr=12, ukgate=0, h2land=3, forder=0, fast1=1, dh=8, ldw=0, d3a=12, hl=0, rng=64, dl=8, uvgate=0, bkh=4, st1=2)
for a in sys.argv[2:]:
    k, v = a.split("=")
    assert k in OPT, k
    OPT[k] = int(v)
OUT = sys.argv[1] if len(sys.argv) > 1 else "k.s"
NT = "nt" if OPT["pol"] else ""

def f32(x): return struct.unpack("<I", struct.pack("<f", x))[0]

EPOCH = 0
QM   = 0x1000
QF   = QM + 0x80000
HD   = QF + 0x80000
QAM  = HD + 0x10000
CXM  = QAM + 0x10000
CXA  = CXM + 0x20000
HM   = CXA + 0x20000
YM   = HM + 0x10000
SM   = YM + 20 * 4096
IB   = SM + 20 * 16384
WS_END = IB + 256 * 8 * 2048
TSOFF = 0x1000000
WS_REC = 0x2000000 if (OPT["ts"] and not OPT["dbg"]) else WS_END

(F_Q, F_QA, F_LAND, F_ISS, F_H2I, F_STG, F_MAX, F_P, F_IB, F_UK, F_TAG, F_TAGV, F_QP, F_QI, F_SD, F_FIN) = [4 * i for i in range(16)]
RMAX = 0x40
RL   = 0x80
F_H3, F_ML, F_QAP, F_XN, F_L, F_RLV, RLINV, F_LT, F_LA, F_LB, F_WQ, F_PC = 0xC0, 0xC4, 0xC8, 0xCC, 0xD0, 0xD4, 0xD8, 0xDC, 0xE0, 0xE4, 0xE8, 0xEC
REDQ = 0x100
REDQA = 0x600
PL   = 0x1000
RIB  = 0x2000
RFIN = PL
MLT  = 0x2A00
LT   = 0x2C00
RMX  = 0x2E00
RLP  = REDQ
XNL  = 0x3000
QL   = 0x3800
KV   = 0x7800
LDS_BYTES = KV + 0x20000

SCALE = (128 ** -0.5) * math.log2(math.e)
LIM_LDS = 1 << 16
LIM_MEM = 1 << 13

class G:
    def __init__(s): s.l = []; s.n = 0
    def __call__(s, x):
        for ln in x.strip("\n").split("\n"):
            if ln.strip(): s.l.append("  " + ln.strip())
    def label(s, x): s.l.append(x + ":")
    def nl(s, p): s.n += 1; return f"L_{p}_{s.n}"
    def text(s): return "\n".join(s.l) + "\n"
g = G()

def vr(a, n): return f"v[{a}:{a+n-1}]"
def sr(a, n): return f"s[{a}:{a+n-1}]"

LANE, VZ, VONE, VT, vN, vKG = 0, 1, 2, 3, 4, 5
VTS = 167
VL16 = 166
sWG, sWV = 2, 3
WS = 4
SR = 8
sXCD, sSLOT, sHF, sJ = 12, 13, 14, 15
P_X, P_KV, P_WQ, P_WUK, P_WUV, P_WO, P_BX, P_W1, P_W2, P_OUT, P_DBG, P_WS = [16 + 2 * i for i in range(12)]
sTAG, sCNT = 28, 29
sPLO, sPHI = 100, 101
DPPM = "row_mask:0xf bank_mask:0xf"

def srd(base, ptr, nbytes):
    g(f"""s_mov_b32 s{base}, s{ptr}
          s_mov_b32 s{base+1}, s{ptr+1}
          s_mov_b32 s{base+2}, {nbytes}
          s_mov_b32 s{base+3}, 0x20000""")

def stamp(k):
    if not OPT["ts"]: return
    g(f"""s_memrealtime vcc
          s_waitcnt lgkmcnt(0)
          v_writelane_b32 v{VTS}, vcc_lo, {k}""")

def cnt(k, sreg):
    if OPT["ts"]: g(f"v_writelane_b32 v{VTS}, s{sreg}, {k}")

def ts_flush(role="A"):
    if not OPT["ts"]: return
    if OPT["dbg"]:
        sel = {"A": {1: 0, 2: 16, 6: 6, 7: 8, 8: 10, 9: 22, 10: 11, 11: 13, 14: 20, 15: 21}, "G": {3: 1, 4: 2, 5: 3, 12: 7, 13: 9}}[role]
        Ls = g.nl("dbg")
        g(f"""s_cmp_eq_u32 s{sWV}, {0 if role == "A" else 9}
              s_cbranch_scc0 {Ls}
              s_load_dwordx2 s[40:41], s[0:1], 80
              s_mov_b64 exec, -1
              v_mov_b32 v8, 0
              s_mov_b32 s42, 256
              s_mov_b32 s43, 0x20000""")
        for dst, src in sel.items():
            g(f"v_readlane_b32 s44, v{VTS}, {src}\ns_nop 3\nv_writelane_b32 v8, s44, {dst}")
        if role == "A":
            g(f"v_readlane_b32 s44, v{VTS}, 0\ns_nop 3\ns_not_b32 s44, s44\nv_writelane_b32 v8, s44, 0")
        g(f"""v_lshlrev_b32 v{VT}, 2, v{LANE}
              s_mov_b64 exec, 0xffff
              s_waitcnt lgkmcnt(0)
              buffer_atomic_umax v8, v{VT}, s[40:43], 0 offen""")
        g.label(Ls)
        return
    g(f"""s_mul_i32 s{sCNT}, s{sWG}, 12
          s_add_u32 s{sCNT}, s{sCNT}, s{sWV}
          s_lshl_b32 s{sCNT}, s{sCNT}, 7
          s_add_u32 s{sCNT}, s{sCNT}, {TSOFF}
          s_mov_b64 exec, -1
          s_mov_b32 exec_hi, 0
          v_lshlrev_b32 v{VT}, 2, v{LANE}
          buffer_store_dword v{VTS}, v{VT}, {sr(WS,4)}, s{sCNT} offen""")

def lds_wait(off, target, st, extra="", sleep=0):
    L, Lo = g.nl("w"), g.nl("wo")
    g(f"s_mov_b32 s{sCNT}, {LIM_LDS}")
    if sleep:
        Lf = g.nl("wf")
        g(f"s_branch {Lf}")
    g.label(L)
    if sleep:
        g(f"s_sleep {sleep}")
        g.label(Lf)
    g(f"ds_read_b32 v{VT}, v{VZ} offset:{off}")
    if extra: g(extra)
    g(f"""s_waitcnt lgkmcnt(0)
          v_readfirstlane_b32 s{st}, v{VT}
          s_sub_u32 s{sCNT}, s{sCNT}, 1
          s_cbranch_scc1 {Lo}
          s_cmp_ge_u32 s{st}, {target}
          s_cbranch_scc0 {L}""")
    g.label(Lo)

def pc_wait(mask, val, st, st2, extra="", sleep=0, off=None):
    L, Lo = g.nl("pw"), g.nl("pwo")
    g(f"s_mov_b32 s{sCNT}, {LIM_LDS}")
    g.label(L)
    if sleep: g(f"s_sleep {sleep}")
    g(f"ds_read_b32 v{VT}, v{VZ} offset:{F_PC if off is None else off}")
    if extra: g(extra)
    g(f"""s_waitcnt lgkmcnt(0)
          v_readfirstlane_b32 s{st}, v{VT}
          s_sub_u32 s{sCNT}, s{sCNT}, 1
          s_cbranch_scc1 {Lo}
          s_and_b32 s{st2}, s{st}, {hex(mask)}
          s_cmp_eq_u32 s{st2}, {hex(val)}
          s_cbranch_scc0 {L}""")
    g.label(Lo)

def land_wait(target, st, vt2, sleep=0):
    L, Lo = g.nl("lw"), g.nl("lwo")
    g(f"s_mov_b32 s{sCNT}, {LIM_LDS}")
    g.label(L)
    g(f"""ds_read_b64 {vr(vt2,2)}, v{VZ} offset:{F_LA}
          s_waitcnt lgkmcnt(0)
          v_min_u32 v{vt2}, v{vt2}, v{vt2+1}
          s_sub_u32 s{sCNT}, s{sCNT}, 1
          v_readfirstlane_b32 s{st}, v{vt2}
          s_cbranch_scc1 {Lo}
          s_cmp_ge_u32 s{st}, {target}
          s_cbranch_scc1 {Lo}""")
    if sleep: g(f"s_sleep {sleep}")
    g(f"s_branch {L}")
    g.label(Lo)

def lds_inc(off):
    g(f"""s_mov_b64 exec, 1
          ds_add_u32 v{VZ}, v{VONE} offset:{off}
          s_mov_b64 exec, -1""")

def get_tag(vtmp):
    lds_wait(F_TAGV, 1, sTAG, extra=f"ds_read_b32 v{vtmp}, v{VZ} offset:{F_TAG}")
    g(f"v_readfirstlane_b32 s{sTAG}, v{vtmp}")

def wave_sum(v, sdst):
    for mod in ("quad_perm:[1,0,3,2]", "quad_perm:[2,3,0,1]", "row_half_mirror", "row_mirror"):
        g(f"s_nop 1\nv_add_f32_dpp v{v}, v{v}, v{v} {mod} {DPPM}")
    g(f"s_nop 1\nv_add_f32_dpp v{v}, v{v}, v{v} row_bcast:15 row_mask:0xa bank_mask:0xf")
    g(f"s_nop 1\nv_add_f32_dpp v{v}, v{v}, v{v} row_bcast:31 row_mask:0xc bank_mask:0xf")
    g(f"s_nop 1\nv_readlane_b32 s{sdst}, v{v}, 63")

def rne(v):
    g(f"v_cvt_pk_bf16_f32 v{v}, v{v}, v{v}\nv_and_b32 v{v}, 0xffff0000, v{v}")

def ln_stats(x5, tmp, sA, sB, vM, vR):
    u = tmp
    for k in range(5):
        g(f"v_lshlrev_b32 v{u+2*k}, 16, v{x5+k}\nv_and_b32 v{u+2*k+1}, 0xffff0000, v{x5+k}")
    a = u + 10
    g(f"v_add_f32 v{a}, v{u}, v{u+1}")
    for k in range(2, 10): g(f"v_add_f32 v{a}, v{a}, v{u+k}")
    wave_sum(a, sA)
    g(f"s_nop 1\nv_mov_b32 v{vM}, s{sA}\nv_mul_f32 v{vM}, {hex(f32(1.0/640))}, v{vM}")
    for k in range(10): g(f"v_sub_f32 v{u+k}, v{u+k}, v{vM}")
    g(f"v_mul_f32 v{a}, v{u}, v{u}")
    for k in range(1, 10): g(f"v_fmac_f32 v{a}, v{u+k}, v{u+k}")
    wave_sum(a, sB)
    g(f"s_nop 1\nv_mov_b32 v{vR}, s{sB}\nv_mul_f32 v{vR}, {hex(f32(1.0/640))}, v{vR}")
    rne(vR)
    g(f"v_add_f32 v{vR}, {hex(f32(1e-5))}, v{vR}")
    rne(vR)
    g(f"v_sqrt_f32 v{vR}, v{vR}\ns_nop 0")
    rne(vR)
    g(f"v_rcp_f32 v{vR}, v{vR}")
    rne(vM)

def ln_frag(src, dst, t0, vM, vR):
    for k in range(4):
        g(f"""v_lshlrev_b32 v{t0}, 16, v{src+k}
              v_and_b32 v{t0+1}, 0xffff0000, v{src+k}
              v_sub_f32 v{t0}, v{t0}, v{vM}
              v_sub_f32 v{t0+1}, v{t0+1}, v{vM}
              v_cvt_pk_bf16_f32 v{t0+1}, v{t0}, v{t0+1}
              v_lshlrev_b32 v{t0}, 16, v{t0+1}
              v_and_b32 v{t0+1}, 0xffff0000, v{t0+1}
              v_mul_f32 v{t0}, v{t0}, v{vR}
              v_mul_f32 v{t0+1}, v{t0+1}, v{vR}
              v_cvt_pk_bf16_f32 v{dst+k}, v{t0}, v{t0+1}""")

def perm_block(raw, out, order=(0, 1, 2, 3)):
    for p in range(4):
        e = 2 * order[p]
        for d in range(2):
            g(f"v_perm_b32 v{out+4*(2*d)+p}, v{raw+2*(e+1)+d}, v{raw+2*e+d}, s{sPLO}")
            g(f"v_perm_b32 v{out+4*(2*d+1)+p}, v{raw+2*(e+1)+d}, v{raw+2*e+d}, s{sPHI}")

class Landing:
    pending = False
    n = 0
LD = Landing()

def load_block(raw, voff, srdb, sbase, stmp, rowbytes, thr=0, rows=None):
    per = 4095 // rowbytes + 1
    cur = None
    for e in range(8):
        grp, rem = divmod(e, per)
        if grp != cur:
            if grp == 0: so = sbase
            else:
                g(f"s_add_u32 s{stmp}, s{sbase}, {(rows[e] if rows else grp*per)*rowbytes}"); so = stmp
            cur = grp
        if thr:
            g(f"s_waitcnt vmcnt({thr-1})")
            if LD.pending and LD.n >= thr - 1:
                land_now()
        off = f" offset:{rem*rowbytes}" if rem else ""
        g(f"buffer_load_dwordx2 {vr(raw+2*e,2)}, v{voff}, {sr(srdb,4)}, s{so} offen{off} {NT}")
        LD.n += 1

def land_now():
    g(f"ds_write_b32 v{VZ}, v{VONE} offset:{F_UK}")
    stamp(2)
    LD.pending = False

def land_flush():
    if LD.pending:
        g(f"s_waitcnt vmcnt({LD.n})")
        land_now()

def tagcheck(regs, acc):
    g(f"v_xor_b32 v{acc}, s{sTAG}, v{regs[0]}")
    for r in regs[1:]:
        g(f"v_bitop3_b32 v{acc}, v{r}, s{sTAG}, v{acc} bitop3:0xbe")
    g(f"v_cmp_ne_u32 vcc, 0, v{acc}")

def poll_loads(nm, loads, tags, scnt, acc=VT, sleep=0, mask=True, b8=False, onfail=""):
    L, Lo = g.nl(nm), g.nl(nm + "o")
    g(f"s_mov_b32 s{scnt}, {LIM_MEM}")
    g.label(L)
    g(loads)
    g("s_waitcnt vmcnt(0)")
    (tagcheck8 if b8 else tagcheck)(tags, acc)
    g(f"s_cbranch_vccz {Lo}")
    if onfail: g(onfail)
    if mask: g("s_mov_b64 exec, vcc")
    if sleep: g(f"s_sleep {sleep}")
    g(f"""s_sub_u32 s{scnt}, s{scnt}, 1
          s_cbranch_scc0 {L}""")
    g.label(Lo)
    if mask: g("s_mov_b64 exec, -1")

def flag16_wait(nm, ap):
    L, Lo = g.nl(nm), g.nl(nm + "o")
    g(f"s_mov_b32 s{sCNT}, {LIM_MEM}\ns_lshl_b32 s18, s{sTAG}, 4")
    g.label(L)
    g(f"""s_load_dwordx16 s[48:63], s[{ap}:{ap+1}], 0 glc
          s_sub_u32 s{sCNT}, s{sCNT}, 1
          s_cbranch_scc1 {Lo}
          s_waitcnt lgkmcnt(0)
          s_add_u32 s19, s48, s49""")
    for k in range(2, 16): g(f"s_add_u32 s19, s19, s{48+k}")
    g(f"s_cmp_eq_u32 s19, s18\ns_cbranch_scc0 {L}")
    g.label(Lo)
    g("s_waitcnt lgkmcnt(0)")

sTB = 66
def tagbytes():
    g(f"""s_and_b32 s{sTB}, s{sTAG}, 1
          s_mul_i32 s{sTB}, s{sTB}, 0x01010101
          s_and_b32 s{sTB+1}, s{sTAG}, 0xfefefefe
          s_or_b32 s{sTB}, s{sTB}, s{sTB+1}
          s_lshr_b32 s{sTB+1}, s{sTB}, 8
          s_lshr_b32 s{sTB+2}, s{sTB}, 16
          s_lshr_b32 s{sTB+3}, s{sTB}, 24""")
def tagput(regs, vmask):
    for d, r in enumerate(regs): g(f"v_bfi_b32 v{r}, v{vmask}, s{sTB+d}, v{r}")
def tagcheck8(bases, acc):
    first = True
    for b in bases:
        for d in range(4):
            if first: g(f"v_xor_b32 v{acc}, s{sTB+d}, v{b+d}"); first = False
            else: g(f"v_bitop3_b32 v{acc}, v{b+d}, s{sTB+d}, v{acc} bitop3:0xbe")
    g(f"v_and_b32 v{acc}, 0xff, v{acc}\nv_cmp_ne_u32 vcc, 0, v{acc}")

def fswz(dst, i, t):
    g(f"""v_lshrrev_b32 v{t}, 1, v{i}
          v_xor_b32 v{dst}, v{t}, v{i}
          v_and_b32 v{dst}, 4, v{dst}
          v_and_or_b32 v{dst}, v{i}, 2, v{dst}
          v_bfe_u32 v{t}, v{i}, 3, 1
          v_or_b32 v{dst}, v{dst}, v{t}""")

def sum_groups(base, n):
    step = 1
    while step < n:
        for a in range(0, n - step, 2 * step):
            g(f"v_pk_add_f32 {vr(base+4*a,2)}, {vr(base+4*a,2)}, {vr(base+4*(a+step),2)}")
            g(f"v_pk_add_f32 {vr(base+4*a+2,2)}, {vr(base+4*a+2,2)}, {vr(base+4*(a+step)+2,2)}")
        step *= 2

def red16(regs, full=True):
    for mod in ("row_ror:4", "row_ror:8"):
        g("s_nop 1")
        for r in regs: g(f"v_add_f32_dpp v{r}, v{r}, v{r} {mod} {DPPM}")
    for sw in (("v_permlane16_swap_b32", "v_permlane32_swap_b32") if full else ("v_permlane16_swap_b32",)):
        for r in regs: g(f"v_mov_b32 v{r+1}, v{r}")
        g("s_nop 1")
        for r in regs: g(f"{sw} v{r}, v{r+1}")
        for r in regs: g(f"v_add_f32 v{r}, v{r}, v{r+1}")

def global_max(dst, t0):
    g(f"""v_max_f32 v{dst}, v{t0}, v{t0+1}""")
    for mod in ("quad_perm:[1,0,3,2]", "quad_perm:[2,3,0,1]", "row_half_mirror", "row_mirror"):
        g(f"s_nop 1\nv_max_f32_dpp v{dst}, v{dst}, v{dst} {mod} {DPPM}")
    for sw in ("v_permlane16_swap_b32", "v_permlane32_swap_b32"):
        g(f"v_mov_b32 v{dst+1}, v{dst}\ns_nop 1\n{sw} v{dst}, v{dst+1}\nv_max_f32 v{dst}, v{dst}, v{dst+1}")

def mfma(d, a, b, first):
    g(f"v_mfma_f32_16x16x32_bf16 {vr(d,4)}, {vr(a,4)}, {vr(b,4)}, {'0' if first else vr(d,4)}")

K = NAME + "_kernel"
g(f"""s_cmp_ge_u32 s{sWG}, 256
      s_cbranch_scc1 L_END
      v_lshrrev_b32 v{VT}, 6, v0
      v_and_b32 v{LANE}, 63, v0
      v_readfirstlane_b32 s{sWV}, v{VT}
      v_mov_b32 v{VZ}, 0
      v_lshrrev_b32 v{vKG}, 4, v{LANE}
      s_cmp_eq_u32 s{sWV}, 7
      s_cbranch_scc0 L_nopf
      s_getpc_b64 s[44:45]
      L_pc:
      s_sub_u32 s44, s44, L_pc-{K}
      s_subb_u32 s45, s45, 0
      s_and_b32 s41, s{sWG}, 0xf8
      v_add_u32 v10, s41, v{LANE}
      v_lshlrev_b32 v10, 7, v10
      v_cmp_gt_u32 vcc, L_CODE_END-{K}, v10
      s_and_b64 exec, vcc, 0xff
      s_cbranch_execz L_nopf2
      global_load_dword v159, v10, s[44:45]
      L_nopf2:
      s_mov_b64 exec, -1
      L_nopf:
      s_cmp_eq_u32 s{sWV}, 9
      s_cbranch_scc0 L_noinit
      v_lshlrev_b32 v8, 2, v{LANE}
      v_cmp_eq_u32 vcc, 1, v{vKG}
      v_mov_b32 v10, 0xff800000
      s_nop 0
      v_cndmask_b32 v9, v{VZ}, v10, vcc
      ds_write_b32 v8, v9
      s_waitcnt lgkmcnt(0)""")
g.label("L_noinit")
g(f"""s_load_dwordx16 s[16:31], s[0:1], 0
      s_load_dwordx8 s[32:39], s[0:1], 64
      s_barrier
      v_mov_b32 v{VONE}, 1
      v_and_b32 v{vN}, 15, v{LANE}
      s_and_b32 s{sXCD}, s{sWG}, 7
      s_lshr_b32 s{sSLOT}, s{sWG}, 3
      s_lshr_b32 s{sHF}, s{sSLOT}, 3
      s_lshl_b32 s{sJ}, s{sXCD}, 2
      s_add_u32 s{sHF}, s{sHF}, s{sJ}
      s_and_b32 s{sJ}, s{sSLOT}, 7
      s_mov_b32 s{sPLO}, 0x05040100
      s_mov_b32 s{sPHI}, 0x07060302""")
if OPT["ts"]:
    g(f"v_mov_b32 v{VTS}, 0")
    stamp(0)
if OPT["pad"]:
    g(f"s_memrealtime vcc\ns_waitcnt lgkmcnt(0)\nv_mov_b32 v{VTS}, vcc_lo")
g(f"""s_cmp_ge_u32 s{sWV}, 6
      s_cbranch_scc1 L_OTH
      s_setprio 2
      v_lshlrev_b32 v24, 16, v{vKG}
      v_lshl_add_u32 v24, v{vN}, 3, v24       ; + n*8
      v_mul_u32_u24 v6, 20, v{LANE}
      s_lshr_b32 s40, s{sJ}, 1                ; mq
      s_mul_i32 s40, s40, 160
      s_lshl_b32 s41, s{sWV}, 5
      s_add_u32 s40, s40, s41
      s_lshl_b32 s41, s40, 13                 ; row0*8192
      s_lshl_b32 s42, s{sHF}, 8
      s_add_u32 s41, s41, s42
      s_and_b32 s42, s{sJ}, 1
      s_lshl_b32 s42, s42, 7
      s_add_u32 s41, s41, s42                 ; w_q soffset
      s_mov_b32 s46, 5242880
      s_mov_b32 s47, 0x20000
      s_mov_b32 s{SR+2}, 1280
      s_mov_b32 s{SR+3}, 0x20000
      s_cmp_eq_u32 s{sWV}, 5
      s_cbranch_scc0 L_A
      s_setprio 3
      s_waitcnt lgkmcnt(0)
      s_mov_b32 s{SR}, s{P_X}
      s_mov_b32 s{SR+1}, s{P_X+1}
      buffer_load_dwordx4 v[8:11], v6, {sr(SR,4)}, 0 offen
      buffer_load_dword v12, v6, {sr(SR,4)}, 0 offen offset:16
      s_branch L_LN""")
g.label("L_A")
g(f"""s_waitcnt lgkmcnt(0)
      s_mov_b32 s44, s{P_WQ}
      s_mov_b32 s45, s{P_WQ+1}
      s_nop 1""")
load_block(32, 24, 44, 41, 42, 8192)
lds_inc(F_QI)
srd(WS, P_WS, WS_REC)
g(f"""s_lshl_b32 s40, s40, 1
      v_lshlrev_b32 v112, 4, v{vKG}
      v_add_u32 v112, s40, v112
      v_lshlrev_b32 v113, 4, v{vN}
      s_lshl_b32 s40, s{sWV}, 8
      v_add_u32 v113, s40, v113
      s_branch L_A_q""")
g.label("L_LN")
srd(WS, P_WS, WS_REC)
g(f"v_add_u32 v6, {XNL}, v6\ns_waitcnt vmcnt(0)")
stamp(16)
U, E, Dd = 32, 44, 56
for k in range(5):
    g(f"v_lshlrev_b32 v{U+2*k}, 16, v{8+k}\nv_and_b32 v{U+2*k+1}, 0xffff0000, v{8+k}")
g(f"""v_pk_add_f32 v[14:15], {vr(U,2)}, {vr(U+2,2)}
      v_pk_add_f32 v[16:17], {vr(U+4,2)}, {vr(U+6,2)}
      v_pk_add_f32 v[14:15], v[14:15], {vr(U+8,2)}
      v_pk_add_f32 v[14:15], v[14:15], v[16:17]
      v_add_f32 v14, v14, v15""")
wave_sum(14, 40)
g(f"""s_nop 1
      v_mov_b32 v18, {hex(f32(-1.0/640))}
      v_mul_f32 v18, s40, v18                 ; -mean
      v_mov_b32 v19, v18""")
for k in range(5): g(f"v_pk_add_f32 {vr(E+2*k,2)}, {vr(U+2*k,2)}, v[18:19]")
g(f"v_pk_mul_f32 v[14:15], {vr(E,2)}, {vr(E,2)}")
for k in range(1, 5): g(f"v_pk_fma_f32 v[14:15], {vr(E+2*k,2)}, {vr(E+2*k,2)}, v[14:15]")
g(f"""v_cvt_pk_bf16_f32 v20, v18, v18
      v_add_f32 v14, v14, v15
      v_and_b32 v20, 0xffff0000, v20
      v_mov_b32 v21, v20""")
fill = [f"v_pk_add_f32 {vr(E+2*k,2)}, {vr(U+2*k,2)}, v[20:21]" for k in range(5)]
fill += [f"v_cvt_pk_bf16_f32 v{8+k}, v{E+2*k}, v{E+2*k+1}" for k in range(5)]
fill += [x for k in range(5) for x in (f"v_lshlrev_b32 v{Dd+2*k}, 16, v{8+k}", f"v_and_b32 v{Dd+2*k+1}, 0xffff0000, v{8+k}")]
steps = [f"v_add_f32_dpp v14, v14, v14 {m} {DPPM}" for m in ("quad_perm:[1,0,3,2]", "quad_perm:[2,3,0,1]", "row_half_mirror", "row_mirror")]
steps += ["v_add_f32_dpp v14, v14, v14 row_bcast:15 row_mask:0xa bank_mask:0xf", "v_add_f32_dpp v14, v14, v14 row_bcast:31 row_mask:0xc bank_mask:0xf", "v_readlane_b32 s42, v14, 63"]
for st_ in steps:
    g(st_); g(fill.pop(0)); g(fill.pop(0))
g(f"""v_mov_b32 v22, {hex(f32(1.0/640))}
      v_mul_f32 v22, s42, v22""")
rne(22)
g(f"v_add_f32 v22, {hex(f32(1e-5))}, v22")
rne(22)
g("v_sqrt_f32 v22, v22"); g(fill.pop(0))
rne(22)
g("v_rcp_f32 v22, v22")
while fill: g(fill.pop(0))
g("v_mov_b32 v23, v22")
for k in range(5): g(f"v_pk_mul_f32 {vr(Dd+2*k,2)}, {vr(Dd+2*k,2)}, v[22:23]")
for k in range(5): g(f"v_cvt_pk_bf16_f32 v{8+k}, v{Dd+2*k}, v{Dd+2*k+1}")
g(f"""ds_write2_b32 v6, v8, v9 offset0:0 offset1:1
      ds_write2_b32 v6, v10, v11 offset0:2 offset1:3
      ds_write_b32 v6, v12 offset:16
      ds_write_b32 v{VZ}, v{VONE} offset:{F_XN}""")
stamp(17)
g("s_branch L_A_q")
g.label("L_OTH")
g(f"""      s_cmp_lt_u32 s{sWV}, 8
      s_cbranch_scc0 L_OTH2
      s_waitcnt lgkmcnt(0)""")
srd(WS, P_WS, WS_REC)
g("s_branch L_A_q")
g.label("L_OTH2")
g(f"""      s_cmp_eq_u32 s{sWV}, 9
      s_cbranch_scc1 L_G9
      s_cmp_eq_u32 s{sWV}, 11
      s_cbranch_scc1 L_FFN""")
g(f"v_lshrrev_b32 v32, 3, v{LANE}")
fswz(33, 32, 34)
g(f"""v_and_b32 v34, 7, v{LANE}
      v_xor_b32 v33, v33, v34
      v_lshlrev_b32 v33, 4, v33
      v_lshl_add_u32 v36, v32, 10, v33
      s_bfe_u32 s43, s{sWV}, 0x10001
      s_and_b32 s40, s43, 1
      s_mul_i32 s40, s40, 80
      v_xor_b32 v36, s40, v36
      s_lshr_b32 s41, s{sSLOT}, 1""")
if OPT["ksmap"] == 0:
    g(f"s_lshl_b32 s41, s41, 3\ns_add_u32 s41, s41, s{sXCD}             ; ks")
else:
    g(f"s_lshl_b32 s42, s{sXCD}, 4\ns_add_u32 s41, s41, s42             ; ks")
g(f"""s_lshl_b32 s41, s41, 17                 ; ks*128KB
      s_lshl_b32 s42, s43, 13
      s_add_u32 s41, s41, s42                 ; + kgp*8192
      s_lshl_b32 s42, s43, 10
      s_add_u32 s42, s42, {KV}
      s_waitcnt lgkmcnt(0)""")
srd(44, P_KV, 16777216)
srd(WS, P_WS, WS_REC)
if OPT["gate"]:
    lds_wait(F_WQ if OPT["gate"] < 10 else F_Q, OPT["gate"] % 10, 40, sleep=1)
stamp(8)
NI = OPT["inflight"]
assert 1 <= NI <= 32
g(f"""s_lshl_b32 s48, s43, 2
      v_mov_b32 v37, s48
      s_mov_b32 s43, 0""")
g.label("L_ld")
for k in range(16):
    cb, hi = k & 7, k >> 3
    g(f"s_add_u32 m0, s42, {cb*(16384-128) + hi*2048}")
    if k == 8: g(f"s_add_u32 s41, s41, {2*8192}")
    g(f"s_waitcnt vmcnt({NI-1})")
    if k == (NI - 1) % 16:
        g(f"""s_sub_u32 s48, s43, {(NI - 1) // 16}
              s_max_i32 s48, s48, 0
              v_mov_b32 v38, s48
              ds_write_b32 v37, v38 offset:{F_LA}""")
    g(f"buffer_load_dwordx4 v36, {sr(44,4)}, s41 offen offset:{cb*128} {NT} lds")
g(f"""s_add_u32 s41, s41, {2*8192}
      s_add_u32 s42, s42, {4*1024}
      s_add_u32 s43, s43, 1
      s_cmp_lt_u32 s43, 4
      s_cbranch_scc1 L_ld""")
lds_inc(F_ISS)
stamp(1)
g(f"""v_mov_b32 v38, 3
      v_mov_b32 v39, 4
      s_waitcnt vmcnt(16)
      ds_write_b32 v37, v38 offset:{F_LA}
      s_waitcnt vmcnt(0)
      ds_write_b32 v37, v39 offset:{F_LA}""")
stamp(2)
g("s_branch L_G")
g.label("L_FFN")
XF = 8
g("s_waitcnt lgkmcnt(0)")
srd(WS, P_WS, WS_REC)
srd(SR, P_WUK, 4194304)
g(f"""v_xor_b32 v8, v{vN}, v{vKG}
      v_lshlrev_b32 v8, 4, v8
      v_lshl_add_u32 v8, v{vKG}, 13, v8
      v_xor_b32 v9, 64, v8
      v_xor_b32 v10, 128, v8
      v_xor_b32 v11, 192, v8
      s_lshl_b32 s48, s{sJ}, 19               ; 64*j rows * 8192
      s_lshl_b32 s49, s{sHF}, 8
      s_add_u32 s48, s48, s49""")
if OPT["ukgate"]: lds_wait(F_WQ, OPT["ukgate"], 40)
else: lds_wait(F_QI, 5, 40)
for u in range(16):
    g(f"s_mov_b32 m0, {QL + u*1024}")
    g(f"s_add_u32 s49, s48, {u*4*8192}")
    g(f"buffer_load_dwordx4 v{8+(u&3)}, {sr(SR,4)}, s49 offen {NT} lds")
if OPT["fgate"] == 9:
    g("s_waitcnt vmcnt(0)"); land_now()
elif OPT["fgate"]:
    lds_wait(F_Q, OPT["fgate"], 40, sleep=1)
if OPT["forder"]: lds_wait(F_ISS, 2, 40, sleep=2)
g("s_branch L_FFNb")
FFN_EARLY_END = True
g.label("L_G9")
g(f"""s_setprio 3
      s_waitcnt lgkmcnt(0)
      s_load_dword s40, s[{P_WS}:{P_WS+1}], {EPOCH}""")
srd(WS, P_WS, WS_REC)
g(f"""v_lshlrev_b32 v8, 4, v{vN}              ; n*16
      s_lshl_b32 s41, s{sHF}, 3
      s_add_u32 s41, s41, s{sJ}
      s_lshl_b32 s41, s41, 8
      s_add_u32 s43, s41, {QAM}
      s_lshl_b32 s42, s{sHF}, 14
      s_lshl_b32 s41, s{sJ}, 8
      s_add_u32 s42, s42, s41
      s_add_u32 s42, s42, {QM}
      s_add_u32 s45, s42, 8192
      v_lshl_add_u32 v7, v{vKG}, 11, v8
      v_lshlrev_b32 v6, 4, v{LANE}
      s_lshl_b32 s47, s{sHF}, 3
      s_add_u32 s47, s47, s{sJ}
      s_lshl_b32 s47, s47, 11
      s_add_u32 s47, s47, {QF}
      v_mov_b32 v11, 1
      s_waitcnt lgkmcnt(0)
      s_mul_i32 s{sTAG}, s40, 1664525
      s_add_u32 s{sTAG}, s{sTAG}, 1013904223
      v_mov_b32 v10, s{sTAG}
      v_mov_b32 v13, s{sTAG}
      v_mov_b32 v15, s{sTAG}
      ds_write_b64 v{VZ}, v[10:11] offset:{F_TAG}""")
stamp(1)
if OPT["warm"]:
    g(f"""s_and_b32 s46, s{sSLOT}, 1
          s_lshl_b32 s46, s46, 7
          s_add_u32 s46, s46, s{sXCD}
          s_lshl_b32 s46, s46, 7
          s_add_u32 s46, s46, {HD}
          v_lshlrev_b32 v9, 10, v{vN}
          v_and_b32 v16, 1, v{vKG}
          v_lshl_add_u32 v9, v16, 15, v9""")
    lds_wait(F_QI, 5, 40)
    if OPT["fast1"]:
        g(f"""buffer_load_dwordx4 v[16:19], v6, {sr(WS,4)}, s47 offen sc1
              buffer_load_dwordx4 v[16:19], v6, {sr(WS,4)}, s47 offen offset:1024 sc1""")
    g(f"""buffer_load_dwordx4 v[16:19], v7, {sr(WS,4)}, s42 offen sc1
          buffer_load_dwordx4 v[16:19], v7, {sr(WS,4)}, s45 offen sc1
          buffer_load_dwordx4 v[16:19], v8, {sr(WS,4)}, s43 offen sc1
          buffer_load_dword v16, v9, {sr(WS,4)}, s46 offen sc1""")
lds_wait(F_Q, 5, 40)
g("\n".join(f"ds_read_b128 {vr(32+4*b,4)}, v8 offset:{REDQ+256*b}" for b in range(5)))
g("s_waitcnt lgkmcnt(0)")
sum_groups(32, 5)
g(f"""v_cvt_pk_bf16_f32 v12, v32, v33
      v_cvt_pk_bf16_f32 v14, v34, v35""")
if OPT["fast1"]:
    g(f"""buffer_store_dwordx4 v[12:15], v6, {sr(WS,4)}, s47 offen
          ds_write_b32 v{VZ}, v{VONE} offset:{F_QP}
          buffer_store_dwordx4 v[12:15], v6, {sr(WS,4)}, s47 offen offset:1024""")
g(f"""buffer_store_dwordx4 v[12:15], v7, {sr(WS,4)}, s42 offen sc1
      buffer_store_dwordx4 v[12:15], v7, {sr(WS,4)}, s45 offen sc1
      ds_write_b32 v{VZ}, v{VONE} offset:{F_QP}
      s_mov_b64 exec, 0xffff""")
stamp(2)
lds_wait(F_QA, 8, 40)
g("\n".join(f"ds_read_b128 {vr(32+4*b,4)}, v8 offset:{REDQA+256*b}" for b in range(8)))
g("s_waitcnt lgkmcnt(0)")
sum_groups(32, 8)
for r in range(4): g(f"v_mul_f32 v{32+r}, {hex(f32(SCALE))}, v{32+r}")
g(f"""v_cvt_pk_bf16_f32 v12, v32, v33
      v_cvt_pk_bf16_f32 v14, v34, v35
      buffer_store_dwordx4 v[12:15], v8, {sr(WS,4)}, s43 offen sc1
      ds_write_b32 v{VZ}, v{VONE} offset:{F_QAP}
      s_mov_b64 exec, -1
      s_setprio 0""")
stamp(3)
lds_wait(F_H2I if OPT["uvgate"] else F_ISS, 8 if OPT["uvgate"] else 2, 40, sleep=1)
g("s_branch L_G_uv9")

g.label("L_A_q")
g("s_setprio 2")
g(f"""s_and_b32 s40, s{sSLOT}, 1              ; g
      s_lshl_b32 s41, s40, 4
      s_lshl_b32 s42, s{sWV}, 1
      s_add_u32 s41, s41, s42                 ; 16g+2w
      s_lshl_b32 s41, s41, 11
      s_add_u32 s20, s41, {QAM}
      s_lshr_b32 s21, s{sSLOT}, 1             ; mi 0..15
      s_lshl_b32 s42, s40, 7                  ; 16g*8
      s_add_u32 s42, s42, s{sWV}
      s_lshl_b32 s42, s42, 3
      s_add_u32 s42, s42, s{sXCD}
      s_lshl_b32 s42, s42, 4
      s_add_u32 s42, s42, s21
      s_lshl_b32 s42, s42, 7
      s_add_u32 s26, s42, {IB}
      s_add_u32 s22, s26, {2*8*8*2048}
      s_lshl_b32 s42, s40, 7                  ; 16g*8
      s_add_u32 s42, s42, s{sXCD}
      s_lshl_b32 s42, s42, 4
      s_add_u32 s42, s42, s21
      s_lshl_b32 s42, s42, 3
      s_add_u32 s27, s42, {HD}
      s_add_u32 s23, s27, 0x8000
      s_lshl_b32 s42, s{sHF}, 3
      s_add_u32 s42, s42, s{sWV}
      s_lshl_b32 s42, s42, 7
      s_add_u32 s31, s42, {HD}
      s_lshl_b32 s42, s{sHF}, 3
      s_add_u32 s42, s42, s{sJ}
      s_lshl_b32 s42, s42, 3
      s_add_u32 s42, s42, s{sWV}              ; (h*8+j)*8+w
      s_lshl_b32 s30, s42, 11
      s_add_u32 s30, s30, {IB}
      s_lshl_b32 s42, s42, 8
      s_add_u32 s42, s42, {QM}
      s_add_u32 s32, s{WS}, s42
      s_addc_u32 s33, s{WS+1}, 0
      s_lshl_b32 s42, s{sHF}, 3
      s_add_u32 s42, s42, s{sWV}
      s_lshl_b32 s42, s42, 11
      s_add_u32 s42, s42, {QF}
      s_add_u32 s8, s{WS}, s42
      s_addc_u32 s9, s{WS+1}, 0
      s_and_b32 s40, s{sWV}, 1
      s_lshl_b32 s40, s40, 3                  ; 8*dhalf'
      v_xor_b32 v6, s40, v{vN}
      v_lshlrev_b32 v6, 4, v6
      v_lshl_add_u32 v6, v{LANE}, 8, v6       ; row*256 + ...
      v_lshlrev_b32 v10, 2, v{LANE}
      s_lshl_b32 s40, s{sWV}, 8
      v_add_u32 v10, s40, v10
      v_mov_b32 v8, 0
      v_mov_b32 v9, 0""")
W = 80
QKA, PVA = 32, 96
fswz(24, vN, 25)
g(f"""v_xor_b32 v24, v24, v{vKG}
      v_lshlrev_b32 v24, 4, v24
      v_and_b32 v25, 7, v{vN}
      v_lshl_add_u32 v24, v25, 7, v24         ; + (i&7)*128
      v_lshrrev_b32 v25, 3, v{vN}
      v_lshl_add_u32 v24, v25, 10, v24        ; + (i>>3)*1024
      s_lshl_b32 s42, s{sWV}, 11
      s_add_u32 s42, s42, {KV}
      v_add_u32 v160, s42, v24
      v_xor_b32 v161, 64, v160
      v_add_u32 v162, 0x10000, v160
      v_add_u32 v163, 0x10000, v161
      v_lshrrev_b32 v26, 2, v{LANE}           ; i16""")
fswz(24, 26, 25)
g(f"""s_and_b32 s42, s{sWV}, 3
      s_lshl_b32 s42, s42, 1
      v_bfe_u32 v25, v{LANE}, 1, 1
      v_or_b32 v25, s42, v25                  ; xi = 2(w&3) + (c'>>1)
      v_xor_b32 v24, v24, v25
      v_lshlrev_b32 v24, 4, v24
      v_and_b32 v25, 1, v{LANE}
      v_lshl_add_u32 v24, v25, 3, v24
      v_and_b32 v25, 7, v26
      v_lshl_add_u32 v24, v25, 7, v24
      v_lshrrev_b32 v25, 3, v26
      v_lshl_add_u32 v24, v25, 10, v24
      s_lshr_b32 s42, s{sWV}, 2
      s_lshl_b32 s42, s42, 14
      s_add_u32 s42, s42, {KV}
      v_add_u32 v164, s42, v24
      v_add_u32 v165, 0x10000, v164
      v_lshrrev_b32 v24, 1, v{vN}             ; xi
      v_and_b32 v25, 4, v24
      v_lshl_or_b32 v25, v25, 1, v24          ; sigma
      s_lshl_b32 s42, s{sWV}, 1
      v_xor_b32 v25, s42, v25
      v_lshlrev_b32 v25, 4, v25
      v_lshl_add_u32 v25, v24, 8, v25         ; + xi*256
      v_lshl_add_u32 v25, v{vKG}, 11, v25     ; + (l>>4)*2048
      v_and_b32 v24, 1, v{LANE}
      v_lshl_add_u32 v28, v24, 3, v25
      v_xor_b32 v29, 16, v28
      v_xor_b32 v30, v{vN}, v{vKG}
      v_lshlrev_b32 v30, 4, v30
      v_lshl_add_u32 v30, v{vKG}, 8, v30
      v_xor_b32 v31, {12*16}, v30             ; odd s
      v_lshlrev_b32 v166, 4, v{LANE}          ; lane*16""")
g(f"s_cmp_ge_u32 s{sWV}, 5\ns_cbranch_scc1 L_A_q2")
for p in range(4):
    g(f"s_waitcnt vmcnt({6-2*p})")
    if p == 0: lds_inc(F_WQ)
    e = 2 * p
    for d in range(2):
        g(f"v_perm_b32 v{48+8*d+p}, v{32+2*(e+1)+d}, v{32+2*e+d}, s{sPLO}")
        g(f"v_perm_b32 v{48+8*d+4+p}, v{32+2*(e+1)+d}, v{32+2*e+d}, s{sPHI}")
stamp(18)
lds_wait(F_XN, 1, 19, extra=f"ds_read_b128 v[116:119], v112 offset:{XNL}")
for t in range(4): mfma(64 + 4 * t, 116, 48 + 4 * t, True)
g(f"""s_nop 6
      v_mov_b32 v65, v68
      v_mov_b32 v66, v72
      v_mov_b32 v67, v76
      s_mov_b64 exec, 0xffff
      ds_write_b128 v113, v[64:67] offset:{REDQ}
      s_mov_b64 exec, 1
      ds_add_u32 v{VZ}, v{VONE} offset:{F_Q}
      s_mov_b64 exec, -1""")
g.label("L_A_q2")
stamp(2)
get_tag(7)
g(f"s_lshl_b32 s18, s{sTAG}, 5              ; 32*TAG")
def wreads():
    for e in range(8):
        if e: g(f"v_xor_b32 v7, {e*16}, v6")
        g(f"ds_read_b128 {vr(W+4*e,4)}, v{6 if e == 0 else 7} offset:{QL}")
lds_wait(F_QP, 1, 19, sleep=1)
if OPT["d1"]: g(f"s_sleep {OPT['d1']}")
g(f"""ds_read_b32 v{VT}, v{VZ} offset:{F_UK}
      s_waitcnt lgkmcnt(0)
      v_readfirstlane_b32 s24, v{VT}
      s_nop 0
      s_cmp_eq_u32 s24, 0
      s_cbranch_scc1 L_now""")
wreads()
g.label("L_now")
stamp(3)
L, Lo = g.nl("h1"), g.nl("h1o")
g(f"s_mov_b32 s{sCNT}, {LIM_MEM}")
g.label(L)
if OPT["fast1"]:
    Lg, Lc = g.nl("h1g"), g.nl("h1c")
    g(f"s_cmp_le_u32 s{sCNT}, {LIM_MEM-8}\ns_cbranch_scc1 {Lg}")
    for k in range(4):
        g(f"s_load_dwordx16 {sr(36+16*k,16)}, s[8:9], {64*k}")
    g(f"s_add_u32 s8, s8, 256\ns_addc_u32 s9, s9, 0\ns_branch {Lc}")
    g.label(Lg)
for k in range(4):
    g(f"s_load_dwordx16 {sr(36+16*k,16)}, s[32:33], {64*k} glc")
if OPT["fast1"]: g.label(Lc)
g(f"""s_sub_u32 s{sCNT}, s{sCNT}, 1
      s_cbranch_scc1 {Lo}
      s_waitcnt lgkmcnt(0)
      s_cmp_eq_u32 s99, s{sTAG}
      s_cbranch_scc0 {L}
      s_add_u32 s19, s37, s39""")
for k in range(2, 32):
    g(f"s_add_u32 s19, s19, s{37+2*k}")
g(f"s_cmp_eq_u32 s19, s18\ns_cbranch_scc0 {L}")
g.label(Lo)
cnt(23, sCNT)
stamp(1)
g(f"""s_cmp_eq_u32 s24, 0
      s_cbranch_scc0 L_havew""")
lds_wait(F_UK, 1, 19)
wreads()
g.label("L_havew")
for k in range(32):
    if k % 4 == 0: g(f"s_waitcnt lgkmcnt({7 - k//4})")
    g(f"v_dot2c_f32_bf16 v{8+(k&1)}, s{36+2*k}, v{W+k}")
g(f"""s_nop 2
      v_add_f32 v8, v8, v9
      ds_write_b32 v10, v8 offset:{REDQA}""")
lds_inc(F_QA)
stamp(4)
def qka_reads():
    for s in range(16):
        cb = s >> 1
        a = 160 + (s & 1) + (2 if cb >= 4 else 0)
        g(f"ds_read_b128 {vr(QKA+4*s,4)}, v{a} offset:{(cb&3)*16384}")
def pva_reads(u):
    for i in range(4):
        for hh in range(2):
            T = 2 * u + hh
            g(f"ds_read_b64_tr_b16 {vr(PVA+16*i+4*u+2*hh,2)}, v{164+(i>>1)} offset:{(i&1)*32768+T*2048}")
h2_loads = "\n".join(f"buffer_load_dwordx4 {vr(8+4*n,4)}, v{VL16}, {sr(WS,4)}, s20 offen offset:{1024*n} sc1" for n in range(4))
lds_wait(F_QAP, 1, 42)
if OPT["d2"]: g(f"s_sleep {OPT['d2']}")
def h2_issue(lv):
    if OPT["h2land"] == lv:
        g(h2_loads); lds_inc(F_H2I); stamp(5)
h2_issue(0)
land_wait(2, 42, 24, sleep=1)
h2_issue(2)
pva_reads(0); pva_reads(1)
land_wait(3, 42, 24, sleep=1)
h2_issue(3)
pva_reads(2)
g(f"s_cmp_ge_u32 s{sWV}, 6\ns_cbranch_scc1 L_noqka")
qka_reads()
g.label("L_noqka")
land_wait(4, 42, 24)
pva_reads(3)
g(f"s_cmp_lt_u32 s{sWV}, 6\ns_cbranch_scc1 L_hasqka")
qka_reads()
g.label("L_hasqka")
IBV = 164
g(f"""s_lshr_b32 s42, s{sWV}, 1
      s_lshl_b32 s48, s42, 2
      s_lshl_b32 s48, 1, s48
      s_add_u32 s49, s48, 0x10000
      s_mov_b32 s50, {hex(f32(OPT["rng"]))}
      s_lshl_b32 s42, s42, 10
      s_and_b32 s43, s{sWV}, 1
      s_lshl_b32 s43, s43, 3
      s_add_u32 s42, s42, s43
      v_add_u32 v7, s42, v{VL16}
      v_lshrrev_b32 v24, 3, v{vN}
      v_lshl_add_u32 v24, v{vKG}, 2, v24      ; head = 4q + (j>>3)
      v_lshlrev_b32 v{IBV}, 17, v24           ; * 8*8*2048
      v_and_b32 v24, 7, v{vN}
      v_lshl_add_u32 v{IBV}, v24, 4, v{IBV}
      v_add_u32 v28, {QL}, v28
      v_add_u32 v29, {QL}, v29
      v_add_u32 v6, 8192, v28
      v_add_u32 v165, 8192, v29
      s_and_b32 s42, s{sTAG}, 1
      s_mul_i32 s42, s42, 0x01010101
      s_and_b32 s44, s{sTAG}, 0xfefefefe
      s_or_b32 s42, s42, s44
      v_and_b32 v24, 3, v{LANE}
      v_lshlrev_b32 v24, 3, v24
      v_lshrrev_b32 v24, v24, s42
      s_mov_b32 s44, 0x00010001""")
TP = 160
g(f"v_and_b32 v25, 0xff, v24\nv_lshlrev_b32 v24, 15, v25\nv_or_b32 v24, v24, v25")
for d in range(4):
    g(f"v_lshrrev_b32 v25, {2*d}, v24\nv_and_b32 v{TP+d}, s44, v25")
stamp(6)
L, Lo = g.nl("h2c"), g.nl("h2co")
g(f"s_mov_b32 s43, {LIM_MEM}")
g.label(L)
g("s_waitcnt vmcnt(0)")
tagcheck([9, 11, 13, 15, 17, 19, 21, 23], 24)
g(f"""s_cbranch_vccz {Lo}
      s_sub_u32 s43, s43, 1
      s_cbranch_scc1 {Lo}
      s_sleep {OPT["bk2"]}
      s_mov_b64 exec, vcc""")
g(h2_loads)
g(f"s_mov_b64 exec, -1\ns_branch {L}")
g.label(Lo)
cnt(24, 43)
stamp(7)
for n in range(4):
    g(f"ds_write2_b32 v{[28, 6, 29, 165][n]}, v{8+4*n}, v{10+4*n} offset0:0 offset1:1")
lds_inc(F_STG)
def bread(s): return f"ds_read_b128 {vr(8+4*(s&3),4)}, v{30+(s&1)} offset:{QL+s*1024}"
lds_wait(F_STG, 8, 42)
stamp(8)
g("\n".join(bread(s) for s in range(4)))
SA = 24
for s in range(16):
    g(f"s_waitcnt lgkmcnt({min(3, 15-s)})")
    mfma(SA, QKA + 4 * s, 8 + 4 * (s & 3), s == 0)
    if s + 4 < 16: g(bread(s + 4))
VM = 10
PF, OA = 32, 48
def pread(u): return f"ds_read_b128 {vr(PF+4*u,4)}, v{VL16} offset:{PL+1024*u}"
g("s_nop 7")
for r in range(4): g(f"v_exp_f32 v{12+r}, v{SA+r}")
g(f"""v_max3_f32 v9, v{SA}, v{SA+1}, v{SA+2}
      v_cvt_pk_bf16_f32 v16, v12, v13
      v_cvt_pk_bf16_f32 v17, v14, v15
      v_max_f32 v9, v9, v{SA+3}
      ds_write_b64 v7, v[16:17] offset:{PL}
      v_cmp_nle_f32 vcc, abs(v9), s50
      s_cmp_lg_u64 vcc, 0
      s_cselect_b32 s48, s49, s48
      s_mov_b64 exec, 1
      v_mov_b32 v8, s48
      ds_add_u32 v{VZ}, v8 offset:{F_PC}
      s_mov_b64 exec, -1""")
stamp(15)
S1 = OPT["st1"]
if S1:
    pc_wait((1 << 4 * S1) - 1, 0x2222 & ((1 << 4 * S1) - 1), 42, 48)
    g("\n".join(pread(u) for u in range(S1)))
    for u in range(S1):
        g(f"s_waitcnt lgkmcnt({S1-1-u})")
        for i in range(4): mfma(OA + 4 * i, PF + 4 * u, PVA + 16 * i + 4 * u, u == 0)
pc_wait(0xffff, 0x2222, 42, 48)
g("\n".join(pread(u) for u in range(S1, 4)))
g(f"s_cmp_lg_u32 s42, 0x2222\ns_cbranch_scc1 L_slow")
stamp(9)
for u in range(S1, 4):
    g(f"s_waitcnt lgkmcnt({3-u})")
    for i in range(4): mfma(OA + 4 * i, PF + 4 * u, PVA + 16 * i + 4 * u, u == 0)
g.label("L_pv2")
GR = 64
g("s_nop 6")
for a in range(2):
    A0, B0, T0 = GR + 4 * a, GR + 4 * a + 2, 72
    for d in range(2):
        g(f"v_perm_b32 v{A0+d}, v{OA+8*d+4+2*a}, v{OA+8*d+2*a}, s{sPHI}")
        g(f"v_perm_b32 v{B0+d}, v{OA+8*d+4+2*a+1}, v{OA+8*d+2*a+1}, s{sPHI}")
    g("s_nop 0")
    for d in range(2): g(f"v_mov_b32_dpp v{T0+d}, v{A0+d} row_ror:8 {DPPM}")
    for d in range(2): g(f"v_mov_b32_dpp v{A0+d}, v{B0+d} row_ror:8 row_mask:0xf bank_mask:0xc")
    for d in range(2): g(f"v_mov_b32_dpp v{B0+d}, v{T0+d} quad_perm:[0,1,2,3] row_mask:0xf bank_mask:0x3")
    for d in range(4): g(f"v_xad_u32 v{A0+d}, v{TP+d}, s44, v{A0+d}")
    for d in range(4): g(f"v_bfi_b32 v{A0+d}, s44, v{TP+d}, v{A0+d}")
    g(f"buffer_store_dwordx4 {vr(A0,4)}, v{IBV}, {sr(WS,4)}, s{26 if a == 0 else 22} offen sc1")
if OPT["wogate"] == 1: lds_inc(F_H3)
stamp(10)
MK = 76
g(f"""v_and_b32 v12, 1, v{LANE}
      v_lshlrev_b32 v12, 4, v12
      v_mov_b32 v13, 0xffff
      v_lshlrev_b32 v13, v12, v13
      v_bfe_u32 v12, v{LANE}, 1, 2""")
for p in range(4):
    g(f"v_cmp_eq_u32 vcc, {p}, v12\ns_nop 1\nv_cndmask_b32 v{MK+p}, v{VZ}, v13, vcc")
g(f"""v_lshlrev_b32 v16, 2, v{vN}
      s_lshl_b32 s42, s{sWV}, 6
      v_add_u32 v16, s42, v16
      v_lshrrev_b32 v17, 3, v{LANE}
      v_lshlrev_b32 v17, 2, v17
      v_add_u32 v17, s42, v17
      v_lshrrev_b32 v18, 3, v{vN}             ; a = j>>3
      s_lshl_b32 s42, s{sWV}, 1
      v_add_u32 v19, s42, v18
      v_mul_u32_u24 v19, 144, v19
      v_and_b32 v20, 7, v{vN}
      v_lshl_add_u32 v19, v20, 4, v19
      v_and_b32 v20, 1, v{vKG}
      v_lshl_add_u32 v19, v20, 3, v19
      v_lshrrev_b32 v20, 1, v{vKG}
      v_cmp_eq_u32 s[46:47], v18, v20
      v_lshlrev_b32 v14, 3, v{LANE}           ; lane*8""")
if OPT["d3"]: g(f"s_sleep {OPT['d3']}")
stamp(22)
IR = 80
ib_loads = f"""buffer_load_dwordx4 {vr(IR,4)}, v{VL16}, {sr(WS,4)}, s30 offen sc1
      buffer_load_dwordx4 {vr(IR+4,4)}, v{VL16}, {sr(WS,4)}, s30 offen offset:1024 sc1"""
def hdr_poll(nm, off, dstoff, flag, after="", mark=False):
    L, Lo = g.nl(nm), g.nl(nm + "o")
    g(f"s_mov_b32 s43, {LIM_MEM}")
    if OPT["bkh"]:
        Lf = g.nl(nm + "f")
        g(f"s_branch {Lf}")
    g.label(L)
    if OPT["bkh"]:
        g(f"s_sleep {OPT['bkh']}")
        g.label(Lf)
    g(f"""s_load_dwordx16 s[52:67], s[24:25], {off} glc
          s_load_dwordx16 s[68:83], s[24:25], {off+64} glc
          s_sub_u32 s43, s43, 1
          s_cbranch_scc1 {Lo}
          s_waitcnt lgkmcnt(0)
          s_add_u32 s19, s53, s55""")
    for k in range(2, 16): g(f"s_add_u32 s19, s19, s{53+2*k}")
    g(f"s_cmp_eq_u32 s19, s18\ns_cbranch_scc0 {L}")
    g.label(Lo)
    g("s_waitcnt lgkmcnt(0)")
    if after: g(after)
    for k in range(16): g(f"v_writelane_b32 v24, s{52+2*k}, {k}")
    g("s_mov_b64 exec, 0xffff")
    if mark:
        g(f"""v_cmp_gt_i32 vcc, 0, v24
              s_cmp_lg_u64 vcc, 0
              s_cselect_b32 s42, 0x101, 1
              v_mov_b32 v25, s42""")
    g(f"""ds_write_b32 v16, v24 offset:{dstoff}
          s_mov_b64 exec, 1
          ds_add_u32 v{VZ}, v{25 if mark else VONE} offset:{flag}
          s_mov_b64 exec, -1""")
g(f"""s_add_u32 s24, s{WS}, s31
      s_addc_u32 s25, s{WS+1}, 0
      s_lshl_b32 s18, s{sTAG}, 4""")
for n in range(2):
    for p in range(4): g(f"v_and_b32 v{88+4*n+p}, 0x3f803f80, v{MK+p}")
if OPT["d3a"]: g(f"s_sleep {OPT['d3a']}")
hdr_poll("h3l", 0x8000, LT, F_LT, after=(f"s_sleep {OPT['d3b']}\n" if OPT["d3b"] else "") + ib_loads, mark=True)
cnt(25, 43)
stamp(11)
pc_wait(0xff, 8, 42, 43, off=F_LT)
g("s_cmp_lg_u32 s42, 8\ns_cbranch_scc1 L_genw")
g.label("L_genw_ret")
L, Lo = g.nl("h3d"), g.nl("h3do")
g(f"s_mov_b32 s43, {LIM_MEM}")
g.label(L)
g(f"s_waitcnt vmcnt(0)\nv_xor_b32 v{VT}, v{IR}, v{TP}")
for k in range(1, 8): g(f"v_bitop3_b32 v{VT}, v{IR+k}, v{TP+(k&3)}, v{VT} bitop3:0xbe")
g(f"""v_and_b32 v{VT}, s44, v{VT}
      v_cmp_ne_u32 vcc, 0, v{VT}
      s_cbranch_vccz {Lo}
      s_sub_u32 s43, s43, 1
      s_cbranch_scc1 {Lo}
      s_lshr_b64 s[48:49], vcc, 4
      s_or_b64 vcc, vcc, s[48:49]
      s_lshr_b64 s[48:49], vcc, 2
      s_or_b64 vcc, vcc, s[48:49]
      s_lshr_b64 s[48:49], vcc, 1
      s_or_b64 vcc, vcc, s[48:49]
      s_and_b32 s48, vcc_lo, 0x01010101
      s_and_b32 s49, vcc_hi, 0x01010101
      s_mul_i32 exec_lo, s48, 0xff
      s_mul_i32 exec_hi, s49, 0xff
      s_sleep {OPT["bk3"]}
      {ib_loads}
      s_branch {L}""")
g.label(Lo)
g("s_mov_b64 exec, -1")
cnt(26, 43)
stamp(12)
mfma(96, 88, IR, True)
mfma(96, 92, IR + 4, False)
g(f"""s_nop 7
      v_cvt_pk_bf16_f32 v100, v96, v97
      v_cvt_pk_bf16_f32 v101, v98, v99
      s_mov_b64 exec, s[46:47]
      ds_write_b64 v19, v[100:101] offset:{RIB}
      s_mov_b64 exec, 1
      ds_add_u32 v{VZ}, v{VONE} offset:{F_IB}
      s_mov_b64 exec, -1""")
stamp(13)
g(f"""s_cmp_lt_u32 s{sWG}, 20
      s_cbranch_scc0 L_A_end
      s_lshl_b32 s41, s{sWG}, 14
      s_lshl_b32 s42, s{sWV}, 11
      s_add_u32 s41, s41, s42
      s_add_u32 s41, s41, {SM}
      v_and_b32 v7, 7, v{LANE}
      v_lshlrev_b32 v7, 2, v7
      v_lshrrev_b32 v6, 5, v{LANE}
      v_lshl_add_u32 v7, v6, 1, v7
      v_and_b32 v6, 1, v{vKG}
      v_add_u32 v7, v7, v6
      v_lshlrev_b32 v18, 5, v7
      s_lshl_b32 s42, s{sWV}, 2
      v_add_u32 v6, s42, v18
      v_lshlrev_b32 v7, 1, v7
      s_lshl_b32 s55, s{sWG}, 6""")
tagbytes()
def red8(b):
    g(f"""s_nop 1
          v_permlane32_swap_b32 v{b}, v{b+2}
          v_permlane32_swap_b32 v{b+1}, v{b+3}
          v_pk_add_f32 {vr(b,2)}, {vr(b,2)}, {vr(b+2,2)}
          s_nop 1
          v_permlane16_swap_b32 v{b}, v{b+1}
          v_add_f32 v{b}, v{b}, v{b+1}
          s_nop 1
          v_add_f32_dpp v{b}, v{b}, v{b} row_ror:8 {DPPM}""")
g(f"""s_cmp_eq_u32 s{sWV}, 0
      s_cbranch_scc0 L_fin_s""")
srd(SR, P_X, 1280)
g(f"""buffer_load_ushort v16, v7, {sr(SR,4)}, s55 offen
      s_lshl_b32 s40, s{sWG}, 12
      s_add_u32 s40, s40, {YM}""")
for d in range(4): g(f"v_mov_b32 v{60+d}, s{sTB+d}\nv_and_b32 v{60+d}, 0xff, v{60+d}")
poll_loads("h7", f"""buffer_load_dwordx4 v[48:51], v{VL16}, {sr(WS,4)}, s40 offen sc1
      buffer_load_dwordx4 v[52:55], v{VL16}, {sr(WS,4)}, s40 offen offset:1024 sc1
      buffer_load_dwordx4 v[56:59], v{VL16}, {sr(WS,4)}, s40 offen offset:2048 sc1
      s_mov_b64 exec, 0xffffff
      buffer_load_dwordx4 v[60:63], v{VL16}, {sr(WS,4)}, s40 offen offset:3072 sc1
      s_mov_b64 exec, -1""", [48, 52, 56, 60], 43, sleep=4, mask=False, b8=True)
sum_groups(48, 4)
red8(48)
rne(48)
g(f"""v_mul_f32 v49, {hex(f32(-math.log2(math.e)))}, v48
      v_exp_f32 v49, v49
      s_nop 0
      v_add_f32 v49, 1.0, v49
      v_rcp_f32 v49, v49
      s_nop 0
      v_mul_f32 v48, v48, v49""")
rne(48)
g("v_lshlrev_b32 v20, 16, v16")
stamp(19)
g.label("L_fin_s")
lds_wait(F_SD, 4, 42, sleep=1)
if OPT["d5"]: g(f"s_sleep {OPT['d5']}")
poll_loads("h5", f"""buffer_load_dwordx4 v[32:35], v{VL16}, {sr(WS,4)}, s41 offen sc1
      buffer_load_dwordx4 v[36:39], v{VL16}, {sr(WS,4)}, s41 offen offset:1024 sc1""", [32, 36], 43, sleep=OPT["bk5"], b8=True)
cnt(27, 43)
stamp(20)
sum_groups(32, 2)
red8(32)
g(f"""ds_write_b32 v6, v32 offset:{RFIN}
      s_mov_b64 exec, 1
      ds_add_u32 v{VZ}, v{VONE} offset:{F_FIN}
      s_mov_b64 exec, -1
      s_cmp_eq_u32 s{sWV}, 0
      s_cbranch_scc0 L_A_end""")
srd(44, P_OUT, 1280)
lds_wait(F_FIN, 8, 42, extra=f"ds_read_b128 v[32:35], v18 offset:{RFIN}\nds_read_b128 v[36:39], v18 offset:{RFIN+16}")
sum_groups(32, 2)
g("v_pk_add_f32 v[32:33], v[32:33], v[34:35]\nv_add_f32 v32, v32, v33")
rne(32)
g("v_mul_f32 v32, v32, v48")
rne(32)
g(f"""v_add_f32 v32, v32, v20
      v_cvt_pk_bf16_f32 v32, v32, v32
      buffer_store_short v32, v7, {sr(44,4)}, s55 offen
      s_cmp_eq_u32 s{sWG}, 0
      s_cbranch_scc0 L_noep
      s_mov_b64 exec, 1
      v_mov_b32 v13, s{sTAG}
      buffer_store_dword v13, v{VZ}, {sr(WS,4)}, 0 offen offset:{EPOCH}""")
g.label("L_noep")
stamp(21)
g.label("L_A_end")
ts_flush()
g("s_endpgm")
g.label("L_genw")
hdr_poll("h3m", 0, MLT, F_ML)
lds_wait(F_ML, 8, 42)
g(f"""ds_read_b64 v[24:25], v14 offset:{MLT}
      ds_read_b32 v8, v17 offset:{MLT}
      ds_read_b32 v9, v17 offset:{MLT+32}
      s_waitcnt lgkmcnt(0)""")
global_max(22, 24)
g(f"""v_sub_f32 v8, v8, v22
      v_sub_f32 v9, v9, v22
      v_exp_f32 v8, v8
      v_exp_f32 v9, v9
      s_nop 0
      v_cvt_pk_bf16_f32 v8, v8, v8
      v_cvt_pk_bf16_f32 v9, v9, v9""")
for n in range(2):
    for p in range(4): g(f"v_and_b32 v{88+4*n+p}, v{8+n}, v{MK+p}")
g("s_branch L_genw_ret")
g.label("L_slow")
g(f"""v_mov_b32 v8, v9
      v_lshlrev_b32 v6, 5, v{vN}
      s_lshl_b32 s42, s{sWV}, 2
      v_add_u32 v29, s42, v6
      s_mov_b32 s43, 0x3f803f80
      v_permlane16_swap_b32 v9, v8
      v_max_f32 v9, v9, v8
      v_mov_b32 v8, v9
      s_nop 1
      v_permlane32_swap_b32 v9, v8
      v_max_f32 v9, v9, v8
      s_mov_b64 exec, 0xffff
      ds_write_b32 v29, v9 offset:{RMX}
      s_mov_b64 exec, 1
      ds_add_u32 v{VZ}, v{VONE} offset:{F_MAX}
      s_mov_b64 exec, -1""")
lds_wait(F_MAX, 8, 42, extra=f"ds_read_b128 v[12:15], v6 offset:{RMX}\nds_read_b128 v[16:19], v6 offset:{RMX+16}")
g(f"""v_max3_f32 v{VM}, v12, v13, v14
      v_max3_f32 v16, v15, v16, v17
      v_max3_f32 v{VM}, v{VM}, v18, v19
      v_max_f32 v{VM}, v{VM}, v16""")
for r in range(4): g(f"v_sub_f32 v{SA+r}, v{SA+r}, v{VM}")
for r in range(4): g(f"v_exp_f32 v{SA+r}, v{SA+r}")
g(f"""v_lshlrev_b32 v15, 10, v{vN}
      v_cvt_pk_bf16_f32 v12, v{SA}, v{SA+1}
      v_cvt_pk_bf16_f32 v13, v{SA+2}, v{SA+3}
      ds_write_b64 v7, v[12:13] offset:{PL}""")
lds_inc(F_P)
lds_wait(F_P, 8, 42)
g("\n".join(pread(u) for u in range(4)))
g("v_mov_b32 v12, 0\nv_mov_b32 v14, 0\ns_waitcnt lgkmcnt(0)")
for u in range(4):
    for i in range(4):
        mfma(OA + 4 * i, PF + 4 * u, PVA + 16 * i + 4 * u, u == 0)
        g(f"v_dot2c_f32_bf16 v{12+2*(i&1)}, s43, v{PF+4*u+i}")
def lsum():
    g(f"""v_mov_b32 v13, s{sTAG}
          v_mov_b32 v11, s{sTAG}
          s_nop 0
          v_add_f32 v12, v12, v14
          v_mov_b32 v14, v12
          s_nop 1
          v_permlane16_swap_b32 v12, v14
          v_add_f32 v12, v12, v14
          v_mov_b32 v14, v12
          s_nop 1
          v_permlane32_swap_b32 v12, v14
          v_add_f32 v12, v12, v14""")
lsum()
g(f"""v_or_b32 v12, 0x80000000, v12
      s_cmp_eq_u32 s{sWV}, 0
      s_cbranch_scc0 L_pv2
      s_mov_b64 exec, 0xffff
      buffer_store_dwordx2 v[10:11], v15, {sr(WS,4)}, s27 offen sc1
      buffer_store_dwordx2 v[12:13], v15, {sr(WS,4)}, s23 offen sc1
      s_mov_b64 exec, -1
      s_branch L_pv2""")

KORD = (0, 2, 1, 3)
TH = OPT["gthr"]
def wo_setup():
    g(f"""v_mul_u32_u24 v6, {8*1280}, v{vKG}
          v_lshl_add_u32 v6, v{vN}, 3, v6
          s_lshl_b32 s40, s{sHF}, 7
          s_lshr_b32 s41, s{sJ}, 1
          s_lshl_b32 s41, s41, 5
          s_add_u32 s40, s40, s41
          s_mul_i32 s40, s40, 1280
          s_and_b32 s41, s{sJ}, 1
          s_mul_i32 s41, s41, 640
          s_add_u32 s48, s40, s41""")
    srd(44, P_WO, 5242880)

def wo_gate():
    if OPT["wogate"] == 1: lds_wait(F_H3, 8, 40, sleep=1)
    elif OPT["wogate"] == 2: lds_wait(F_IB, 1, 40, sleep=2)

def h4_setup():
    g(f"""v_and_b32 v31, 7, v{vN}
          v_lshlrev_b32 v29, 7, v31
          v_lshl_add_u32 v29, v{vKG}, 5, v29
          s_lshl_b32 s50, s{sHF}, 2
          s_lshr_b32 s51, s{sJ}, 1
          s_add_u32 s50, s50, s51                 ; p = h*4+dq
          s_lshl_b32 s61, s50, 10
          s_add_u32 s65, s61, {CXM}
          s_add_u32 s61, s61, {CXA if OPT["fast4"] else CXM}
          v_lshrrev_b32 v30, 3, v{vN}
          v_lshlrev_b32 v30, 14, v30
          v_lshl_add_u32 v30, v31, 4, v30         ; (n>>3)*16K + (n&7)*16
          v_mov_b32 v31, 0xff
          s_and_b32 s41, s{sJ}, 1
          s_mul_i32 s41, s41, {10*16384}
          s_lshl_b32 s50, s50, 7
          s_add_u32 s50, s50, s41
          s_add_u32 s50, s50, {SM}""")
    tagbytes()

def h4_warm(A, cbks):
    g(f"buffer_load_dwordx4 {vr(A,4)}, v29, {sr(WS,4)}, s61 offen sc1")
    for cbk in cbks:
        g(f"""s_add_u32 s51, s50, {cbk*2*16384}
              buffer_load_dwordx4 {vr(A+4,4)}, v30, {sr(WS,4)}, s51 offen sc1""")

def h4_wait(A, late=""):
    Ls = g.nl("h4s")
    onfail = f"""s_cmp_gt_u32 s43, {LIM_MEM-32}
          s_cbranch_scc1 {Ls}
          s_mov_b32 s51, s61
          s_mov_b32 s61, s65
          s_mov_b32 s65, s51
          {late}
          {Ls}:""" if OPT["fast4"] else ""
    poll_loads("h4", f"""buffer_load_dwordx4 {vr(A,4)}, v29, {sr(WS,4)}, s61 offen sc1
          buffer_load_dwordx4 {vr(A+4,4)}, v29, {sr(WS,4)}, s61 offen offset:16 sc1""", [A+1, A+3, A+5, A+7], 43, sleep=OPT["bk4"], onfail=onfail)
    g(f"v_mov_b32 v{A+1}, v{A+4}\nv_mov_b32 v{A+3}, v{A+6}\ns_nop 1")

def rl_wait():
    lds_wait(F_RLV, 1, 40, extra=f"ds_read_b32 v28, v{VZ} offset:{RLINV}")

def wo_compute(A, frags, cbks, D):
    for bi, fr in enumerate(frags):
        for t in range(4): mfma(D + 16 * bi + 4 * t, A, fr + 4 * t, True)
    g("s_nop 4" if len(frags) == 1 else "s_nop 0")
    for bi, cbk in enumerate(cbks):
        d = D + 16 * bi
        for t in range(4): g(f"v_pk_add_f32 {vr(d+4*t,2)}, {vr(d+4*t,2)}, {vr(d+4*t+2,2)}")
        for t in range(4): g(f"v_add_f32 v{16+t}, v{d+4*t}, v{d+4*t+1}")
        for t in range(4): g(f"v_mov_b32 v{20+t}, v{16+t}")
        g(f"s_add_u32 s51, s50, {cbk*2*16384}")
        for t in range(4): g(f"v_permlane16_swap_b32 v{16+t}, v{20+t}")
        g("v_pk_add_f32 v[16:17], v[16:17], v[20:21]\nv_pk_add_f32 v[18:19], v[18:19], v[22:23]")
        for t in range(4): g(f"v_mul_f32 v{d+t}, v{16+t}, v28")
        tagput([d, d+1, d+2, d+3], 31)
        g(f"""s_mov_b64 exec, 0xffff
              buffer_store_dwordx4 {vr(d,4)}, v30, {sr(WS,4)}, s51 offen sc1
              s_mov_b64 exec, -1""")
    lds_inc(F_SD)

def b1_gate():
    if OPT["b1gate"]:
        land_flush()
        lds_wait(F_STG, OPT['b1gate'], 40, sleep=2)

g.label("L_G")
get_tag(6)
g(f"""s_cmp_eq_u32 s{sWV}, 10
      s_cbranch_scc1 L_G_uv10""")
LD.pending = False
wo_setup(); h4_setup()
b1_gate()
if OPT["wogate"]: land_flush()
wo_gate()
stamp(4)
load_block(32, 6, 44, 48, 42, 1280, TH)
g("s_add_u32 s49, s48, 128")
load_block(48, 6, 44, 49, 42, 1280, TH)
land_flush()
g("s_waitcnt vmcnt(8)")
perm_block(32, 64, KORD)
g("s_waitcnt vmcnt(0)")
perm_block(48, 80, KORD)
h4_warm(8, [0, 1])
stamp(5)
g(f"""v_lshlrev_b32 v16, 3, v{LANE}
      v_lshlrev_b32 v17, 4, v{LANE}
      s_lshl_b32 s52, s{sHF}, 10
      s_add_u32 s52, s52, {HD + 0x8000}""")
g("v_mov_b32 v20, 1.0\nv_mov_b32 v21, 1.0")
lds_wait(F_LT, 1, 40, sleep=1)
g("s_setprio 2")
pc_wait(0xff, 8, 40, 41, off=F_LT, extra=f"ds_read_b64 v[24:25], v16 offset:{LT}")
g("s_cmp_eq_u32 s40, 8\ns_cbranch_scc1 L_unitw")
lds_wait(F_ML, 8, 40)
g(f"ds_read_b64 v[20:21], v16 offset:{MLT}\ns_waitcnt lgkmcnt(0)")
global_max(22, 20)
g(f"""v_sub_f32 v20, v20, v22
      v_sub_f32 v21, v21, v22
      v_exp_f32 v20, v20
      v_exp_f32 v21, v21
      s_nop 0""")
rne(20); rne(21)
g.label("L_unitw")
g("v_mul_f32 v24, abs(v24), v20\nv_fma_f32 v24, abs(v25), v21, v24")
wave_sum(24, 40)
g(f"""s_nop 1
      v_rcp_f32 v24, s40
      s_nop 0
      ds_write_b32 v{VZ}, v24 offset:{RLINV}
      ds_write_b32 v{VZ}, v{VONE} offset:{F_RLV}
      v_mov_b32 v28, v24""")
lds_wait(F_IB, 8, 40, sleep=1)
h4_wait(8)
stamp(6)
wo_compute(8, [64, 80], [0, 1], 96)
stamp(7)
g("s_branch L_G_end")

def uv_loads():
    g(f"""v_lshlrev_b32 v7, 13, v{vKG}
          v_lshl_add_u32 v7, v{vN}, 3, v7
          s_lshl_b32 s56, s{sJ}, 17               ; 16j rows
          s_lshl_b32 s41, s{sHF}, 8
          s_add_u32 s56, s56, s41
          s_sub_u32 s52, s{sWV}, 9                ; colhalf
          s_lshl_b32 s41, s52, 7
          s_add_u32 s56, s56, s41
          s_add_u32 s57, s56, {4*8192}""")
    srd(SR, P_WUV, 4194304)
    b1_gate()
    stamp(4)
    rows = [128 * (e & 3) + 8 * (e >> 2) for e in range(8)]
    load_block(32, 7, SR, 56, 42, 8192, TH, rows)
    load_block(48, 7, SR, 57, 42, 8192, TH, rows)
g.label("L_G_uv10")
g.label("L_G_uv9")
LD.pending = False
uv_loads()
g.label("L_G_uv")
wo_setup(); h4_setup()
g(f"""s_add_u32 s49, s52, 2
      s_mul_i32 s53, s49, {2*16384}
      s_add_u32 s50, s50, s53
      s_lshl_b32 s49, s49, 7
      s_add_u32 s49, s49, s48
      v_and_b32 v7, 7, v{vN}
      v_mul_u32_u24 v8, 144, v{vN}
      v_lshl_add_u32 v8, v{vKG}, 4, v8
      v_lshlrev_b32 v9, 4, v{LANE}
      v_lshrrev_b32 v11, 3, v{vN}
      v_lshlrev_b32 v11, 10, v11
      v_lshl_add_u32 v11, v7, 4, v11          ; (n>>3)*1024 + (n&7)*16
      s_lshl_b32 s40, s{sHF}, 2
      s_lshl_b32 s41, s52, 1
      s_add_u32 s40, s40, s41
      s_lshl_b32 s40, s40, 3
      s_add_u32 s40, s40, s{sJ}
      s_lshl_b32 s40, s40, 7
      s_add_u32 s54, s40, {CXM}""")
if not OPT["wogate"]:
    load_block(64, 6, 44, 49, 42, 1280, TH)
    h4_warm(16, [0])
g(f"""s_cmp_eq_u32 s{sWV}, 9
      s_cbranch_scc0 L_nohd
      s_and_b32 s56, s{sSLOT}, 1
      s_lshl_b32 s56, s56, 7
      s_add_u32 s56, s56, s{sXCD}
      s_lshl_b32 s56, s56, 4
      s_lshr_b32 s57, s{sSLOT}, 1
      s_add_u32 s56, s56, s57
      s_lshl_b32 s56, s56, 3
      s_add_u32 s56, s56, {HD}
      s_add_u32 s57, s56, 0x8000
      v_lshlrev_b32 v15, 10, v{vN}
      v_mov_b32 v24, 0
      v_mov_b32 v25, s{sTAG}
      v_mov_b32 v12, 0
      v_mov_b32 v14, 0
      v_mov_b32 v26, v11
      s_mov_b32 s58, 0x3f803f80""")
pc_wait(0xfff, 0x222, 40, 41, sleep=1)
g("s_setprio 3")
pc_wait(0xffff, 0x2222, 40, 41)
g(f"""s_cmp_lg_u32 s40, 0x2222
      s_cbranch_scc1 L_nohd2""")
g("\n".join(f"ds_read_b128 {vr(128+4*u,4)}, v9 offset:{PL+1024*u}" for u in range(4)))
for u in range(4):
    g(f"s_waitcnt lgkmcnt({3-u})")
    for i in range(4): g(f"v_dot2c_f32_bf16 v{12+2*(i&1)}, s58, v{128+4*u+i}")
lsum()
if OPT["dl"]: g(f"s_sleep {OPT['dl']}")
g(f"""s_mov_b64 exec, 0xffff
      buffer_store_dwordx2 v[12:13], v15, {sr(WS,4)}, s57 offen sc1
      buffer_store_dwordx2 v[24:25], v15, {sr(WS,4)}, s56 offen sc1
      s_mov_b64 exec, -1""")
stamp(10)
g.label("L_nohd2")
g(f"""v_mov_b32 v11, v26
      s_setprio 0
      {"s_waitcnt vmcnt(2)" if not OPT["wogate"] else ""}""")
g.label("L_nohd")
if OPT["wogate"]:
    wo_gate()
    load_block(64, 6, 44, 49, 42, 1280, TH)
    h4_warm(16, [0])
g("s_waitcnt vmcnt(18)")
perm_block(32, 80)
g("s_waitcnt vmcnt(10)")
perm_block(48, 96)
g(f"v_mov_b32 v61, s{sTAG}\nv_mov_b32 v63, s{sTAG}\ns_add_u32 s55, s54, {CXA-CXM}")
g("s_waitcnt vmcnt(0)")
perm_block(64, 112, KORD)
stamp(5)
lds_wait(F_LT, 8, 40, sleep=2)
rl_wait()
g("s_setprio 3")
lds_wait(F_IB, 8, 40)
g(f"""ds_read_b128 v[32:35], v8 offset:{RIB}
      ds_read_b128 v[36:39], v8 offset:{RIB+64}""")
stamp(6)
D = 128
for blk in range(2):
    g(f"s_waitcnt lgkmcnt({1-blk})")
    for t in range(4): mfma(D + 4 * t, 32 + 4 * blk, 80 + 16 * blk + 4 * t, blk == 0)
g("s_nop 4")
for t in range(4): g(f"v_pk_add_f32 {vr(D+4*t,2)}, {vr(D+4*t,2)}, {vr(D+4*t+2,2)}")
for t in range(4): g(f"v_add_f32 v{16+t}, v{D+4*t}, v{D+4*t+1}")
g(f"""s_nop 0
      v_permlane32_swap_b32 v16, v18
      v_permlane32_swap_b32 v17, v19
      v_pk_add_f32 v[16:17], v[16:17], v[18:19]
      v_mov_b32 v18, v16
      v_mov_b32 v19, v17
      s_nop 0
      v_permlane16_swap_b32 v16, v18
      v_permlane16_swap_b32 v17, v19
      v_pk_add_f32 v[16:17], v[16:17], v[18:19]
      v_cvt_pk_bf16_f32 v60, v16, v17
      v_mov_b32 v62, v60
      s_nop 1
      v_permlane32_swap_b32 v60, v62""")
g(f"""s_mov_b64 exec, 0xffff
      buffer_store_dwordx4 v[60:63], v11, {sr(WS,4)}, {"s55 offen" if OPT["fast4"] else "s54 offen sc1"}
      s_mov_b64 exec, -1""")
stamp(7)
late = f"s_mov_b64 exec, 0xffff\nbuffer_store_dwordx4 v[60:63], v11, {sr(WS,4)}, s54 offen sc1"
h4_wait(32, late)
stamp(8)
wo_compute(32, [112], [0], 128)
if OPT["fast4"]: g(late + "\ns_mov_b64 exec, -1")
stamp(9)
g("s_branch L_G_end")

g.label("L_FFNb")
PEND = OPT["fgate"] != 9
g(f"""s_lshr_b32 s40, s{sSLOT}, 3             ; hq
      s_lshl_b32 s40, s40, 1
      s_and_b32 s41, s{sJ}, 1
      s_add_u32 s40, s40, s41
      s_lshl_b32 s40, s40, 3
      s_add_u32 s62, s40, s{sXCD}             ; u in 0..63
      s_lshr_b32 s63, s{sJ}, 1                ; mq
      v_and_b32 v31, 1, v{vKG}
      v_cmp_eq_u32 s[56:57], 1, v31
      s_cmp_lt_u32 s62, 27
      s_cbranch_scc0 L_FFN2""")
LD.pending = PEND; LD.n = 0
g(f"""v_mul_u32_u24 v28, {8*3456}, v{vKG}
      v_lshl_add_u32 v28, v{vN}, 3, v28
      v_lshlrev_b32 v7, 4, v{vKG}
      s_mul_i32 s58, s63, 320
      v_add_u32 v7, s58, v7
      s_mul_i32 s58, s63, {160*3456}
      s_lshl_b32 s41, s62, 7
      s_add_u32 s58, s58, s41""")
srd(SR, P_W1, 2211840)
stamp(4)
for b in range(5):
    if b: g(f"s_add_u32 s58, s58, {32*3456}")
    load_block(48 + 16 * b, 28, SR, 58, 42, 3456, OPT['fthr'])
land_flush()
D = 144
get_tag(6)
lds_wait(F_XN, 1, 40)
for b in range(5): g(f"ds_read_b128 {vr(XF+4*b,4)}, v7 offset:{XNL+64*b}")
g("s_waitcnt lgkmcnt(0)")
for b in range(5):
    g(f"s_waitcnt vmcnt({8*(4-b)})")
    perm_block(48 + 16 * b, 32 + 16 * b)
    g("s_nop 1")
    for t in range(4): mfma(D + 4 * t, XF + 4 * b, 32 + 16 * b + 4 * t, b == 0)
g(f"""v_lshlrev_b32 v28, 4, v{LANE}
      s_nop 0
      s_lshl_b32 s40, s62, 2
      s_add_u32 s40, s40, s63
      s_lshl_b32 s40, s40, 9
      s_add_u32 s40, s40, {HM}
      v_mov_b32 v9, s{sTAG}
      v_mov_b32 v11, s{sTAG}
      s_nop 1
      v_cndmask_b32 v8, v{D}, v{D+8}, s[56:57]
      v_cndmask_b32 v10, v{D+4}, v{D+12}, s[56:57]
      s_mov_b32 exec_hi, 0
      buffer_store_dwordx4 v[8:11], v28, {sr(WS,4)}, s40 offen sc1
      s_mov_b64 exec, -1
      s_branch L_FFNe""")
g.label("L_FFN2")
g(f"""s_mul_i32 s40, s63, 37
      s_add_u32 s40, s40, s62
      s_sub_u32 s58, s40, 27
      s_cmp_lt_u32 s58, 135
      s_cbranch_scc1 L_FFN2a""")
LD.pending = PEND; LD.n = 0
land_flush()
get_tag(6)
g("s_branch L_FFNe")
g.label("L_FFN2a")
LD.pending = PEND; LD.n = 0
g(f"""s_mul_i32 s59, s58, 205
      s_lshr_b32 s59, s59, 10                 ; fb = v/5
      s_mul_i32 s60, s59, 5
      s_sub_u32 s60, s58, s60                 ; mb
      v_mul_u32_u24 v28, {8*1280}, v{vKG}
      v_lshl_add_u32 v28, v{vN}, 3, v28
      s_mul_i32 s58, s59, {64*1280}
      s_lshl_b32 s41, s60, 8
      s_add_u32 s58, s58, s41""")
srd(SR, P_W2, 2211840)
stamp(4)
for ch in range(2):
    for blk in range(2):
        g(f"s_add_u32 s41, s58, {blk*32*1280 + ch*128}")
        load_block(48 + 16 * (2 * ch + blk), 28, SR, 41, 42, 1280, OPT['fthr'])
land_flush()
get_tag(6)
for b in range(4):
    g(f"s_waitcnt vmcnt({8*(3-b)})")
    perm_block(48 + 16 * b, 32 + 16 * b)
g(f"""v_lshrrev_b32 v28, 2, v{vN}
      v_lshlrev_b32 v28, 9, v28
      v_lshl_add_u32 v28, v{vKG}, 5, v28
      v_bfe_u32 v29, v{vN}, 1, 1
      v_lshl_add_u32 v28, v29, 4, v28
      v_and_b32 v29, 1, v{vN}
      v_lshl_add_u32 v28, v29, 8, v28
      s_lshl_b32 s40, s59, 11
      s_add_u32 s40, s40, {HM}""")
poll_loads("h6", f"""buffer_load_dwordx4 v[8:11], v28, {sr(WS,4)}, s40 offen sc1
      buffer_load_dwordx4 v[12:15], v28, {sr(WS,4)}, s40 offen offset:128 sc1""", [9, 11, 13, 15], 43, sleep=6)
for mod in ("row_ror:4", "row_ror:8"):
    for r in (8, 10, 12, 14): g(f"v_add_f32_dpp v{r}, v{r}, v{r} {mod} {DPPM}")
for r in (8, 10, 12, 14): g(f"v_max_f32 v{r}, 0, v{r}")
g("v_cvt_pk_bf16_f32 v8, v8, v10\nv_cvt_pk_bf16_f32 v12, v12, v14\ns_nop 1")
for blk in range(2):
    for p in range(4):
        g(f"v_mov_b32_dpp v{16+4*blk+p}, v{8+4*blk} quad_perm:[{p},{p},{p},{p}] {DPPM}")
g("s_nop 1")
D = 96
for ch in range(2):
    for blk in range(2):
        for t in range(4): mfma(D + 16 * ch + 4 * t, 16 + 4 * blk, 32 + 16 * (2 * ch + blk) + 4 * t, blk == 0)
g(f"""v_lshrrev_b32 v28, 3, v{vN}
      v_lshlrev_b32 v28, 12, v28
      v_and_b32 v29, 7, v{vN}
      v_lshl_add_u32 v28, v29, 4, v28
      v_mov_b32 v29, 0xff
      s_lshl_b32 s40, s60, 14
      s_lshl_b32 s41, s59, 7
      s_add_u32 s40, s40, s41
      s_add_u32 s40, s40, {YM}
      s_add_u32 s41, s40, {2*4096}""")
tagbytes()
for ch in range(2):
    for t in range(4): g(f"v_bfi_b32 v{8+4*ch+t}, v29, s{sTB+t}, v{D+16*ch+4*t}")
g(f"""s_mov_b64 exec, 0xffff
      buffer_store_dwordx4 v[8:11], v28, {sr(WS,4)}, s40 offen sc1
      buffer_store_dwordx4 v[12:15], v28, {sr(WS,4)}, s41 offen sc1
      s_mov_b64 exec, -1""")
g.label("L_FFNe")
stamp(5)
wo_setup(); h4_setup()
g("s_add_u32 s49, s48, 512")
lds_wait(F_ISS, 2, 40, sleep=2)
b1_gate()
wo_gate()
load_block(128, 6, 44, 49, 42, 1280, TH)
g("s_waitcnt vmcnt(0)")
perm_block(128, 32, KORD)
h4_warm(8, [4])
lds_wait(F_LT, 8, 40, sleep=2)
rl_wait()
lds_wait(F_IB, 8, 40, sleep=1)
g("s_setprio 2")
h4_wait(8)
stamp(6)
wo_compute(8, [32], [4], 48)
stamp(7)
g.label("L_G_end")
if OPT["pad"]:
    g(f"""v_readfirstlane_b32 s40, v{VTS}
          s_cmp_lt_u32 s{sWG}, 8
          s_cbranch_scc0 L_END
          s_add_u32 s40, s40, {OPT["pad"]}""")
    if OPT["padmin"]:
        g(f"""s_load_dwordx2 s[44:45], s[0:1], 80
          s_mov_b32 s46, 256
          s_mov_b32 s47, 0x20000
          v_not_b32 v8, v{VTS}
          s_mov_b64 exec, 1
          s_waitcnt lgkmcnt(0)
          buffer_atomic_umax v8, v{VZ}, s[44:47], 0 offen
          s_waitcnt vmcnt(0)
          s_sleep 100
          buffer_load_dword v8, v{VZ}, s[44:47], 0 offen sc1
          s_waitcnt vmcnt(0)
          v_not_b32 v8, v8
          s_nop 1
          v_readfirstlane_b32 s40, v8
          s_nop 3
          s_add_u32 s40, s40, {OPT["pad"]}""")
    g(f"""L_padl:
          s_memrealtime s[42:43]
          s_waitcnt lgkmcnt(0)
          s_sub_u32 s41, s42, s40
          s_cmp_lt_i32 s41, 0
          s_cbranch_scc1 L_padl""")
ts_flush("G")
g.label("L_END")
g("s_endpgm")
g.l.append(".p2align 12")
g.label("L_CODE_END")

s = file_head([f"; @launch grid=(256,1,1) block=(768,1,1) lds={LDS_BYTES}"])
s += f""".text
.globl {K}
.p2align 12
.type {K},@function
{K}:
"""
s += g.text()
s += kernel_desc(K, 168, 102)
open(OUT, "w").write(s)
print(OUT, "lines", len(g.l), "ws_end", hex(WS_END))
```

```python
import sys, math, struct
from asmlib import *

OPT = dict(ts=0, stop=99, inflight=16, gate=12, ksmap=1, gthr=32, wogate=0, b1gate=0, pol=1, h2iss=2, amax=0, bk2=4, bk3=2, dbg=0, bk4=0, bk5=3, d3=0, d3b=0, d1=8, d5=8, fast4=1, warm=1, pad=0, padmin=0, padat=-1, padw=0, d2=8, fgate=2, fthr=20, ukgate=0, h2land=3, forder=0, fast1=0, dh=8, ldw=0, d3a=12, hl=0, rng=64, dl=8, uvgate=0, bkh=4, st1=2, osc=1, d4=14, recl=1, rot=5, fthr2=20)
for a in sys.argv[2:]:
    k, v = a.split("=")
    assert k in OPT, k
    OPT[k] = int(v)
OUT = sys.argv[1] if len(sys.argv) > 1 else "k.s"
NT = "nt" if OPT["pol"] else ""

def f32(x): return struct.unpack("<I", struct.pack("<f", x))[0]

EPOCH = 0
QM   = 0x1000
QF   = QM + 0x80000
HD   = QF + 0x80000
QAM  = HD + 0x10000
CXM  = QAM + 0x10000
HM   = CXM + 0x20000
YM   = HM + 0x10000
SM   = YM + 20 * 4096
IB   = SM + 20 * 16384
WS_END = IB + 256 * 8 * 2048
TSOFF = 0x1000000
WS_REC = 0x2000000 if (OPT["ts"] and not OPT["dbg"]) else WS_END

(F_Q, F_QA, F_LAND, F_ISS, F_H2I, F_STG, F_MAX, F_P, F_IB, F_UK, F_TAG, F_TAGV, F_QP, F_QI, F_SD, F_FIN) = [4 * i for i in range(16)]
RMAX = 0x40
RL   = 0x80
F_H3, F_ML, F_QAP, F_XN, F_L, F_RLV, RLINV, F_LT, F_LA, F_LB, F_WQ, F_PC = 0xC0, 0xC4, 0xC8, 0xCC, 0xD0, 0xD4, 0xD8, 0xDC, 0xE0, 0xE4, 0xE8, 0xEC
REDQ = 0x100
REDQA = 0x600
PL   = 0x1000
RIB  = 0x2000
RFIN = PL
MLT  = 0x2A00
LT   = 0x2C00
RMX  = 0x2E00
RLP  = REDQ
XNL  = 0x3000
QL   = 0x3800
KV   = 0x7800
LDS_BYTES = KV + 0x20000

SCALE = (128 ** -0.5) * math.log2(math.e)
LIM_LDS = 1 << 16
LIM_MEM = 1 << 13

class G:
    def __init__(s): s.l = []; s.n = 0
    def __call__(s, x):
        for ln in x.strip("\n").split("\n"):
            if ln.strip(): s.l.append("  " + ln.strip())
    def label(s, x): s.l.append(x + ":")
    def nl(s, p): s.n += 1; return f"L_{p}_{s.n}"
    def text(s): return "\n".join(s.l) + "\n"
g = G()

def vr(a, n): return f"v[{a}:{a+n-1}]"
def sr(a, n): return f"s[{a}:{a+n-1}]"

LANE, VZ, VONE, VT, vN, vKG = 0, 1, 2, 3, 4, 5
VTS = 167
VL16 = 166
sWG, sWV = 2, 3
WS = 4
SR = 8
sXCD, sSLOT, sHF, sJ = 12, 13, 14, 15
P_X, P_KV, P_WQ, P_WUK, P_WUV, P_WO, P_BX, P_W1, P_W2, P_OUT, P_DBG, P_WS = [16 + 2 * i for i in range(12)]
sTAG, sCNT = 28, 29
sPLO, sPHI = 100, 101
DPPM = "row_mask:0xf bank_mask:0xf"

def srd(base, ptr, nbytes):
    g(f"""s_mov_b32 s{base}, s{ptr}
          s_mov_b32 s{base+1}, s{ptr+1}
          s_mov_b32 s{base+2}, {nbytes}
          s_mov_b32 s{base+3}, 0x20000""")

def stamp(k):
    if OPT["padat"] == k:
        g(f"s_memrealtime vcc\ns_waitcnt lgkmcnt(0)\nv_writelane_b32 v{VTS}, vcc_lo, 0")
    if not OPT["ts"]: return
    g(f"""s_memrealtime vcc
          s_waitcnt lgkmcnt(0)
          v_writelane_b32 v{VTS}, vcc_lo, {k}""")

def cnt(k, sreg):
    if OPT["ts"]: g(f"v_writelane_b32 v{VTS}, s{sreg}, {k}")

def ts_flush(role="A"):
    if OPT["padat"] >= 0:
        Lp, Le = g.nl("pad"), g.nl("pade")
        g(f"v_readlane_b32 s40, v{VTS}, 0")
        if OPT["padw"] >= 8: g(f"s_cmp_eq_u32 s{sWV}, {OPT['padw']}")
        else: g(f"s_cmp_lt_u32 s{sWV}, 8")
        g(f"""s_cbranch_scc0 {Le}
              s_cmp_eq_u32 s40, 0
              s_cbranch_scc1 {Le}
              s_add_u32 s40, s40, 3000
              {Lp}:
              s_sleep 8
              s_memrealtime s[42:43]
              s_waitcnt lgkmcnt(0)
              s_sub_u32 s41, s42, s40
              s_cmp_lt_i32 s41, -40
              s_cbranch_scc1 {Lp}
              {Lp}b:
              s_memrealtime s[42:43]
              s_waitcnt lgkmcnt(0)
              s_sub_u32 s41, s42, s40
              s_cmp_lt_i32 s41, 0
              s_cbranch_scc1 {Lp}b
              {Le}:""")
    if not OPT["ts"]: return
    if OPT["dbg"]:
        sel = {"A": {1: 0, 2: 16, 6: 6, 7: 8, 8: 10, 9: 22, 10: 11, 11: 13, 14: 20, 15: 21}, "G": {3: 1, 4: 2, 5: 3, 12: 7, 13: 9}}[role]
        Ls = g.nl("dbg")
        g(f"""s_cmp_eq_u32 s{sWV}, {0 if role == "A" else 9}
              s_cbranch_scc0 {Ls}
              s_load_dwordx2 s[40:41], s[0:1], 80
              s_mov_b64 exec, -1
              v_mov_b32 v8, 0
              s_mov_b32 s42, 256
              s_mov_b32 s43, 0x20000""")
        for dst, src in sel.items():
            g(f"v_readlane_b32 s44, v{VTS}, {src}\ns_nop 3\nv_writelane_b32 v8, s44, {dst}")
        if role == "A":
            g(f"v_readlane_b32 s44, v{VTS}, 0\ns_nop 3\ns_not_b32 s44, s44\nv_writelane_b32 v8, s44, 0")
        g(f"""v_lshlrev_b32 v{VT}, 2, v{LANE}
              s_mov_b64 exec, 0xffff
              s_waitcnt lgkmcnt(0)
              buffer_atomic_umax v8, v{VT}, s[40:43], 0 offen""")
        g.label(Ls)
        return
    g(f"""s_mul_i32 s{sCNT}, s{sWG}, 12
          s_add_u32 s{sCNT}, s{sCNT}, s{sWV}
          s_lshl_b32 s{sCNT}, s{sCNT}, 7
          s_add_u32 s{sCNT}, s{sCNT}, {TSOFF}
          s_mov_b64 exec, -1
          s_mov_b32 exec_hi, 0
          v_lshlrev_b32 v{VT}, 2, v{LANE}
          buffer_store_dword v{VTS}, v{VT}, {sr(WS,4)}, s{sCNT} offen""")

def lds_wait(off, target, st, extra="", sleep=0):
    L, Lo = g.nl("w"), g.nl("wo")
    g(f"s_mov_b32 s{sCNT}, {LIM_LDS}")
    if sleep:
        Lf = g.nl("wf")
        g(f"s_branch {Lf}")
    g.label(L)
    if sleep:
        g(f"s_sleep {sleep}")
        g.label(Lf)
    g(f"ds_read_b32 v{VT}, v{VZ} offset:{off}")
    if extra: g(extra)
    g(f"""s_waitcnt lgkmcnt(0)
          v_readfirstlane_b32 s{st}, v{VT}
          s_sub_u32 s{sCNT}, s{sCNT}, 1
          s_cbranch_scc1 {Lo}
          s_cmp_ge_u32 s{st}, {target}
          s_cbranch_scc0 {L}""")
    g.label(Lo)

def pc_wait(mask, val, st, st2, extra="", sleep=0, off=None):
    L, Lo = g.nl("pw"), g.nl("pwo")
    g(f"s_mov_b32 s{sCNT}, {LIM_LDS}")
    g.label(L)
    if sleep: g(f"s_sleep {sleep}")
    g(f"ds_read_b32 v{VT}, v{VZ} offset:{F_PC if off is None else off}")
    if extra: g(extra)
    g(f"""s_waitcnt lgkmcnt(0)
          v_readfirstlane_b32 s{st}, v{VT}
          s_sub_u32 s{sCNT}, s{sCNT}, 1
          s_cbranch_scc1 {Lo}
          s_and_b32 s{st2}, s{st}, {hex(mask)}
          s_cmp_eq_u32 s{st2}, {hex(val)}
          s_cbranch_scc0 {L}""")
    g.label(Lo)

def land_wait(target, st, vt2, sleep=0):
    L, Lo = g.nl("lw"), g.nl("lwo")
    g(f"s_mov_b32 s{sCNT}, {LIM_LDS}")
    g.label(L)
    g(f"""ds_read_b64 {vr(vt2,2)}, v{VZ} offset:{F_LA}
          s_waitcnt lgkmcnt(0)
          v_min_u32 v{vt2}, v{vt2}, v{vt2+1}
          s_sub_u32 s{sCNT}, s{sCNT}, 1
          v_readfirstlane_b32 s{st}, v{vt2}
          s_cbranch_scc1 {Lo}
          s_cmp_ge_u32 s{st}, {target}
          s_cbranch_scc1 {Lo}""")
    if sleep: g(f"s_sleep {sleep}")
    g(f"s_branch {L}")
    g.label(Lo)

def lds_inc(off):
    g(f"""s_mov_b64 exec, 1
          ds_add_u32 v{VZ}, v{VONE} offset:{off}
          s_mov_b64 exec, -1""")

def get_tag(vtmp):
    lds_wait(F_TAGV, 1, sTAG, extra=f"ds_read_b32 v{vtmp}, v{VZ} offset:{F_TAG}")
    g(f"v_readfirstlane_b32 s{sTAG}, v{vtmp}")

def wave_sum(v, sdst):
    for mod in ("quad_perm:[1,0,3,2]", "quad_perm:[2,3,0,1]", "row_half_mirror", "row_mirror"):
        g(f"s_nop 1\nv_add_f32_dpp v{v}, v{v}, v{v} {mod} {DPPM}")
    g(f"s_nop 1\nv_add_f32_dpp v{v}, v{v}, v{v} row_bcast:15 row_mask:0xa bank_mask:0xf")
    g(f"s_nop 1\nv_add_f32_dpp v{v}, v{v}, v{v} row_bcast:31 row_mask:0xc bank_mask:0xf")
    g(f"s_nop 1\nv_readlane_b32 s{sdst}, v{v}, 63")

def rne(v):
    g(f"v_cvt_pk_bf16_f32 v{v}, v{v}, v{v}\nv_and_b32 v{v}, 0xffff0000, v{v}")

def ln_stats(x5, tmp, sA, sB, vM, vR):
    u = tmp
    for k in range(5):
        g(f"v_lshlrev_b32 v{u+2*k}, 16, v{x5+k}\nv_and_b32 v{u+2*k+1}, 0xffff0000, v{x5+k}")
    a = u + 10
    g(f"v_add_f32 v{a}, v{u}, v{u+1}")
    for k in range(2, 10): g(f"v_add_f32 v{a}, v{a}, v{u+k}")
    wave_sum(a, sA)
    g(f"s_nop 1\nv_mov_b32 v{vM}, s{sA}\nv_mul_f32 v{vM}, {hex(f32(1.0/640))}, v{vM}")
    for k in range(10): g(f"v_sub_f32 v{u+k}, v{u+k}, v{vM}")
    g(f"v_mul_f32 v{a}, v{u}, v{u}")
    for k in range(1, 10): g(f"v_fmac_f32 v{a}, v{u+k}, v{u+k}")
    wave_sum(a, sB)
    g(f"s_nop 1\nv_mov_b32 v{vR}, s{sB}\nv_mul_f32 v{vR}, {hex(f32(1.0/640))}, v{vR}")
    rne(vR)
    g(f"v_add_f32 v{vR}, {hex(f32(1e-5))}, v{vR}")
    rne(vR)
    g(f"v_sqrt_f32 v{vR}, v{vR}\ns_nop 0")
    rne(vR)
    g(f"v_rcp_f32 v{vR}, v{vR}")
    rne(vM)

def ln_frag(src, dst, t0, vM, vR):
    for k in range(4):
        g(f"""v_lshlrev_b32 v{t0}, 16, v{src+k}
              v_and_b32 v{t0+1}, 0xffff0000, v{src+k}
              v_sub_f32 v{t0}, v{t0}, v{vM}
              v_sub_f32 v{t0+1}, v{t0+1}, v{vM}
              v_cvt_pk_bf16_f32 v{t0+1}, v{t0}, v{t0+1}
              v_lshlrev_b32 v{t0}, 16, v{t0+1}
              v_and_b32 v{t0+1}, 0xffff0000, v{t0+1}
              v_mul_f32 v{t0}, v{t0}, v{vR}
              v_mul_f32 v{t0+1}, v{t0+1}, v{vR}
              v_cvt_pk_bf16_f32 v{dst+k}, v{t0}, v{t0+1}""")

def perm_block(raw, out, order=(0, 1, 2, 3)):
    for p in range(4):
        e = 2 * order[p]
        for d in range(2):
            g(f"v_perm_b32 v{out+4*(2*d)+p}, v{raw+2*(e+1)+d}, v{raw+2*e+d}, s{sPLO}")
            g(f"v_perm_b32 v{out+4*(2*d+1)+p}, v{raw+2*(e+1)+d}, v{raw+2*e+d}, s{sPHI}")

class Landing:
    pending = False
    n = 0
LD = Landing()

def load_block(raw, voff, srdb, sbase, stmp, rowbytes, thr=0, rows=None):
    per = 4095 // rowbytes + 1
    cur = None
    for e in range(8):
        grp, rem = divmod(e, per)
        if grp != cur:
            if grp == 0: so = sbase
            else:
                g(f"s_add_u32 s{stmp}, s{sbase}, {(rows[e] if rows else grp*per)*rowbytes}"); so = stmp
            cur = grp
        if thr:
            g(f"s_waitcnt vmcnt({thr-1})")
            if LD.pending and LD.n >= thr - 1:
                land_now()
        off = f" offset:{rem*rowbytes}" if rem else ""
        g(f"buffer_load_dwordx2 {vr(raw+2*e,2)}, v{voff}, {sr(srdb,4)}, s{so} offen{off} {NT}")
        LD.n += 1

def land_now():
    g(f"ds_write_b32 v{VZ}, v{VONE} offset:{F_UK}")
    stamp(2)
    LD.pending = False

def land_flush():
    if LD.pending:
        g(f"s_waitcnt vmcnt({LD.n})")
        land_now()

def tagcheck(regs, acc):
    g(f"v_xor_b32 v{acc}, s{sTAG}, v{regs[0]}")
    for r in regs[1:]:
        g(f"v_bitop3_b32 v{acc}, v{r}, s{sTAG}, v{acc} bitop3:0xbe")
    g(f"v_cmp_ne_u32 vcc, 0, v{acc}")

def poll_loads(nm, loads, tags, scnt, acc=VT, sleep=0, mask=True, b8=False, onfail=""):
    L, Lo = g.nl(nm), g.nl(nm + "o")
    g(f"s_mov_b32 s{scnt}, {LIM_MEM}")
    g.label(L)
    g(loads)
    g("s_waitcnt vmcnt(0)")
    (tagcheck8 if b8 else tagcheck)(tags, acc)
    g(f"s_cbranch_vccz {Lo}")
    if onfail: g(onfail)
    if mask: g("s_mov_b64 exec, vcc")
    if sleep: g(f"s_sleep {sleep}")
    g(f"""s_sub_u32 s{scnt}, s{scnt}, 1
          s_cbranch_scc0 {L}""")
    g.label(Lo)
    if mask: g("s_mov_b64 exec, -1")

def flag16_wait(nm, ap):
    L, Lo = g.nl(nm), g.nl(nm + "o")
    g(f"s_mov_b32 s{sCNT}, {LIM_MEM}\ns_lshl_b32 s18, s{sTAG}, 4")
    g.label(L)
    g(f"""s_load_dwordx16 s[48:63], s[{ap}:{ap+1}], 0 glc
          s_sub_u32 s{sCNT}, s{sCNT}, 1
          s_cbranch_scc1 {Lo}
          s_waitcnt lgkmcnt(0)
          s_add_u32 s19, s48, s49""")
    for k in range(2, 16): g(f"s_add_u32 s19, s19, s{48+k}")
    g(f"s_cmp_eq_u32 s19, s18\ns_cbranch_scc0 {L}")
    g.label(Lo)
    g("s_waitcnt lgkmcnt(0)")

sTB = 66
def tagbytes():
    g(f"""s_and_b32 s{sTB}, s{sTAG}, 1
          s_mul_i32 s{sTB}, s{sTB}, 0x01010101
          s_and_b32 s{sTB+1}, s{sTAG}, 0xfefefefe
          s_or_b32 s{sTB}, s{sTB}, s{sTB+1}
          s_lshr_b32 s{sTB+1}, s{sTB}, 8
          s_lshr_b32 s{sTB+2}, s{sTB}, 16
          s_lshr_b32 s{sTB+3}, s{sTB}, 24""")
def tagput(regs, vmask):
    for d, r in enumerate(regs): g(f"v_bfi_b32 v{r}, v{vmask}, s{sTB+d}, v{r}")
def tagcheck8(bases, acc):
    first = True
    for b in bases:
        for d in range(4):
            if first: g(f"v_xor_b32 v{acc}, s{sTB+d}, v{b+d}"); first = False
            else: g(f"v_bitop3_b32 v{acc}, v{b+d}, s{sTB+d}, v{acc} bitop3:0xbe")
    g(f"v_and_b32 v{acc}, 0xff, v{acc}\nv_cmp_ne_u32 vcc, 0, v{acc}")

def fswz(dst, i, t):
    g(f"""v_lshrrev_b32 v{t}, 1, v{i}
          v_xor_b32 v{dst}, v{t}, v{i}
          v_and_b32 v{dst}, 4, v{dst}
          v_and_or_b32 v{dst}, v{i}, 2, v{dst}
          v_bfe_u32 v{t}, v{i}, 3, 1
          v_or_b32 v{dst}, v{dst}, v{t}""")

def sum_groups(base, n):
    step = 1
    while step < n:
        for a in range(0, n - step, 2 * step):
            g(f"v_pk_add_f32 {vr(base+4*a,2)}, {vr(base+4*a,2)}, {vr(base+4*(a+step),2)}")
            g(f"v_pk_add_f32 {vr(base+4*a+2,2)}, {vr(base+4*a+2,2)}, {vr(base+4*(a+step)+2,2)}")
        step *= 2

def red16(regs, full=True):
    for mod in ("row_ror:4", "row_ror:8"):
        g("s_nop 1")
        for r in regs: g(f"v_add_f32_dpp v{r}, v{r}, v{r} {mod} {DPPM}")
    for sw in (("v_permlane16_swap_b32", "v_permlane32_swap_b32") if full else ("v_permlane16_swap_b32",)):
        for r in regs: g(f"v_mov_b32 v{r+1}, v{r}")
        g("s_nop 1")
        for r in regs: g(f"{sw} v{r}, v{r+1}")
        for r in regs: g(f"v_add_f32 v{r}, v{r}, v{r+1}")

def global_max(dst, t0):
    g(f"""v_max_f32 v{dst}, v{t0}, v{t0+1}""")
    for mod in ("quad_perm:[1,0,3,2]", "quad_perm:[2,3,0,1]", "row_half_mirror", "row_mirror"):
        g(f"s_nop 1\nv_max_f32_dpp v{dst}, v{dst}, v{dst} {mod} {DPPM}")
    for sw in ("v_permlane16_swap_b32", "v_permlane32_swap_b32"):
        g(f"v_mov_b32 v{dst+1}, v{dst}\ns_nop 1\n{sw} v{dst}, v{dst+1}\nv_max_f32 v{dst}, v{dst}, v{dst+1}")

def mfma(d, a, b, first):
    g(f"v_mfma_f32_16x16x32_bf16 {vr(d,4)}, {vr(a,4)}, {vr(b,4)}, {'0' if first else vr(d,4)}")

K = NAME + "_kernel"
g(f"""s_load_dwordx16 s[16:31], s[0:1], 0
      s_load_dwordx8 s[32:39], s[0:1], 64
      s_cmp_ge_u32 s{sWG}, 256
      s_cbranch_scc1 L_END
      v_lshrrev_b32 v{VT}, 6, v0
      v_and_b32 v{LANE}, 63, v0
      v_readfirstlane_b32 s{sWV}, v{VT}
      v_mov_b32 v{VZ}, 0
      v_lshrrev_b32 v{vKG}, 4, v{LANE}
      s_cmp_eq_u32 s{sWV}, 7
      s_cbranch_scc0 L_nopf
      s_getpc_b64 s[44:45]
      L_pc:
      s_sub_u32 s44, s44, L_pc-{K}
      s_subb_u32 s45, s45, 0
      s_and_b32 s41, s{sWG}, 0xf8
      v_add_u32 v10, s41, v{LANE}
      v_lshlrev_b32 v10, 7, v10
      v_cmp_gt_u32 vcc, L_CODE_END-{K}, v10
      s_and_b64 exec, vcc, 0xff
      s_cbranch_execz L_nopf2
      global_load_dword v159, v10, s[44:45]
      L_nopf2:
      s_mov_b64 exec, -1
      L_nopf:
      v_mov_b32 v{VONE}, 1
      v_and_b32 v{vN}, 15, v{LANE}
      s_and_b32 s{sXCD}, s{sWG}, 7
      s_lshr_b32 s{sSLOT}, s{sWG}, 3
      s_lshr_b32 s{sHF}, s{sSLOT}, 3
      s_lshl_b32 s{sJ}, s{sXCD}, 2
      s_add_u32 s{sHF}, s{sHF}, s{sJ}
      s_and_b32 s{sJ}, s{sSLOT}, 7
      s_mov_b32 s{sPLO}, 0x05040100
      s_mov_b32 s{sPHI}, 0x07060302""")
if OPT["ts"] or OPT["padat"] >= 0:
    g(f"v_mov_b32 v{VTS}, 0")
    stamp(0)
if OPT["pad"]:
    g(f"s_memrealtime vcc\ns_waitcnt lgkmcnt(0)\nv_mov_b32 v{VTS}, vcc_lo")
g(f"""s_cmp_ge_u32 s{sWV}, 6
      s_cbranch_scc1 L_OTH
      s_setprio 2
      v_lshlrev_b32 v24, 16, v{vKG}
      v_lshl_add_u32 v24, v{vN}, 3, v24       ; + n*8
      v_mul_u32_u24 v6, 20, v{LANE}
      s_lshr_b32 s40, s{sJ}, 1                ; mq
      s_mul_i32 s40, s40, 160
      s_lshl_b32 s41, s{sWV}, 5
      s_add_u32 s40, s40, s41
      s_lshl_b32 s41, s40, 13                 ; row0*8192
      s_lshl_b32 s42, s{sHF}, 8
      s_add_u32 s41, s41, s42
      s_and_b32 s42, s{sJ}, 1
      s_lshl_b32 s42, s42, 7
      s_add_u32 s41, s41, s42                 ; w_q soffset
      s_mov_b32 s46, 5242880
      s_mov_b32 s47, 0x20000
      s_mov_b32 s{SR+2}, 1280
      s_mov_b32 s{SR+3}, 0x20000
      s_cmp_eq_u32 s{sWV}, 5
      s_cbranch_scc0 L_A
      s_setprio 3
      s_waitcnt lgkmcnt(0)
      s_mov_b32 s{SR}, s{P_X}
      s_mov_b32 s{SR+1}, s{P_X+1}
      buffer_load_dwordx4 v[8:11], v6, {sr(SR,4)}, 0 offen
      buffer_load_dword v12, v6, {sr(SR,4)}, 0 offen offset:16
      s_barrier
      s_branch L_LN""")
g.label("L_A")
g(f"""s_waitcnt lgkmcnt(0)
      s_mov_b32 s44, s{P_WQ}
      s_mov_b32 s45, s{P_WQ+1}
      s_nop 1""")
load_block(32, 24, 44, 41, 42, 8192)
g("s_barrier")
lds_inc(F_QI)
srd(WS, P_WS, WS_REC)
g(f"""s_lshl_b32 s40, s40, 1
      v_lshlrev_b32 v112, 4, v{vKG}
      v_add_u32 v112, s40, v112
      v_lshlrev_b32 v113, 4, v{vN}
      s_lshl_b32 s40, s{sWV}, 8
      v_add_u32 v113, s40, v113
      s_branch L_A_q""")
g.label("L_LN")
srd(WS, P_WS, WS_REC)
g(f"v_add_u32 v6, {XNL}, v6\ns_waitcnt vmcnt(0)")
stamp(16)
U, E, Dd = 32, 44, 56
for k in range(5):
    g(f"v_lshlrev_b32 v{U+2*k}, 16, v{8+k}\nv_and_b32 v{U+2*k+1}, 0xffff0000, v{8+k}")
g(f"""v_pk_add_f32 v[14:15], {vr(U,2)}, {vr(U+2,2)}
      v_pk_add_f32 v[16:17], {vr(U+4,2)}, {vr(U+6,2)}
      v_pk_add_f32 v[14:15], v[14:15], {vr(U+8,2)}
      v_pk_add_f32 v[14:15], v[14:15], v[16:17]
      v_add_f32 v14, v14, v15""")
wave_sum(14, 40)
g(f"""s_nop 1
      v_mov_b32 v18, {hex(f32(-1.0/640))}
      v_mul_f32 v18, s40, v18                 ; -mean
      v_mov_b32 v19, v18""")
for k in range(5): g(f"v_pk_add_f32 {vr(E+2*k,2)}, {vr(U+2*k,2)}, v[18:19]")
g(f"v_pk_mul_f32 v[14:15], {vr(E,2)}, {vr(E,2)}")
for k in range(1, 5): g(f"v_pk_fma_f32 v[14:15], {vr(E+2*k,2)}, {vr(E+2*k,2)}, v[14:15]")
g(f"""v_cvt_pk_bf16_f32 v20, v18, v18
      v_add_f32 v14, v14, v15
      v_and_b32 v20, 0xffff0000, v20
      v_mov_b32 v21, v20""")
fill = [f"v_pk_add_f32 {vr(E+2*k,2)}, {vr(U+2*k,2)}, v[20:21]" for k in range(5)]
fill += [f"v_cvt_pk_bf16_f32 v{8+k}, v{E+2*k}, v{E+2*k+1}" for k in range(5)]
fill += [x for k in range(5) for x in (f"v_lshlrev_b32 v{Dd+2*k}, 16, v{8+k}", f"v_and_b32 v{Dd+2*k+1}, 0xffff0000, v{8+k}")]
steps = [f"v_add_f32_dpp v14, v14, v14 {m} {DPPM}" for m in ("quad_perm:[1,0,3,2]", "quad_perm:[2,3,0,1]", "row_half_mirror", "row_mirror")]
steps += ["v_add_f32_dpp v14, v14, v14 row_bcast:15 row_mask:0xa bank_mask:0xf", "v_add_f32_dpp v14, v14, v14 row_bcast:31 row_mask:0xc bank_mask:0xf", "v_readlane_b32 s42, v14, 63"]
for st_ in steps:
    g(st_); g(fill.pop(0)); g(fill.pop(0))
g(f"""v_mov_b32 v22, {hex(f32(1.0/640))}
      v_mul_f32 v22, s42, v22""")
rne(22)
g(f"v_add_f32 v22, {hex(f32(1e-5))}, v22")
rne(22)
g("v_sqrt_f32 v22, v22"); g(fill.pop(0))
rne(22)
g("v_rcp_f32 v22, v22")
while fill: g(fill.pop(0))
g("v_mov_b32 v23, v22")
for k in range(5): g(f"v_pk_mul_f32 {vr(Dd+2*k,2)}, {vr(Dd+2*k,2)}, v[22:23]")
for k in range(5): g(f"v_cvt_pk_bf16_f32 v{8+k}, v{Dd+2*k}, v{Dd+2*k+1}")
g(f"""ds_write2_b32 v6, v8, v9 offset0:0 offset1:1
      ds_write2_b32 v6, v10, v11 offset0:2 offset1:3
      ds_write_b32 v6, v12 offset:16
      ds_write_b32 v{VZ}, v{VONE} offset:{F_XN}""")
stamp(17)
g("s_branch L_A_q")
g.label("L_OTH")
g(f"""s_cmp_eq_u32 s{sWV}, 6
      s_cbranch_scc0 L_noinit
      v_lshlrev_b32 v8, 2, v{LANE}
      ds_write_b32 v8, v{VZ}
      s_waitcnt lgkmcnt(0)
      L_noinit:
      s_cmp_eq_u32 s{sWV}, 9
      s_cbranch_scc1 L_G9
      s_barrier
      s_cmp_lt_u32 s{sWV}, 8
      s_cbranch_scc0 L_OTH2
      s_waitcnt lgkmcnt(0)""")
srd(WS, P_WS, WS_REC)
g("s_branch L_A_q")
g.label("L_OTH2")
g(f"""      s_cmp_eq_u32 s{sWV}, 9
      s_cbranch_scc1 L_G9
      s_cmp_eq_u32 s{sWV}, 11
      s_cbranch_scc1 L_FFN""")
g(f"v_lshrrev_b32 v32, 3, v{LANE}")
fswz(33, 32, 34)
g(f"""v_and_b32 v34, 7, v{LANE}
      v_xor_b32 v33, v33, v34
      v_lshlrev_b32 v33, 4, v33
      v_lshl_add_u32 v36, v32, 10, v33
      s_bfe_u32 s43, s{sWV}, 0x10001
      s_and_b32 s40, s43, 1
      s_mul_i32 s40, s40, 80
      v_xor_b32 v36, s40, v36
      s_lshr_b32 s41, s{sSLOT}, 1""")
if OPT["ksmap"] == 0:
    g(f"s_lshl_b32 s41, s41, 3\ns_add_u32 s41, s41, s{sXCD}             ; ks")
else:
    g(f"s_lshl_b32 s42, s{sXCD}, 4\ns_add_u32 s41, s41, s42             ; ks")
g(f"""s_mul_i32 s51, s41, {OPT["rot"]}
      s_add_u32 s51, s51, s43
      s_lshl_b32 s51, s51, 13
      s_and_b32 s51, s51, 0x1ffff
      s_lshl_b32 s52, s41, 17                 ; ks*128KB
      s_add_u32 s41, s52, s51
      s_lshl_b32 s42, s43, 10
      s_add_u32 s42, s42, {KV}
      s_waitcnt lgkmcnt(0)""")
srd(44, P_KV, 16777216)
srd(WS, P_WS, WS_REC)
if OPT["gate"]:
    lds_wait(F_WQ if OPT["gate"] < 10 else F_Q, OPT["gate"] % 10, 40, sleep=1)
stamp(8)
NI = OPT["inflight"]
assert 1 <= NI <= 32
g(f"""s_lshl_b32 s48, s43, 2
      v_mov_b32 v37, s48
      s_mov_b32 s43, 0""")
g.label("L_ld")
for k in range(16):
    cb, hi = k & 7, k >> 3
    g(f"s_add_u32 m0, s42, {cb*(16384-128) + hi*2048}")
    if k == 8: g(f"s_add_u32 s51, s51, {2*8192}\ns_and_b32 s51, s51, 0x1ffff\ns_add_u32 s41, s52, s51")
    g(f"s_waitcnt vmcnt({NI-1})")
    if k == (NI - 1) % 16:
        g(f"""s_sub_u32 s48, s43, {(NI - 1) // 16}
              s_max_i32 s48, s48, 0
              v_mov_b32 v38, s48
              ds_write_b32 v37, v38 offset:{F_LA}""")
    g(f"buffer_load_dwordx4 v36, {sr(44,4)}, s41 offen offset:{cb*128} {NT} lds")
g(f"""s_add_u32 s51, s51, {2*8192}
      s_and_b32 s51, s51, 0x1ffff
      s_add_u32 s41, s52, s51
      s_add_u32 s42, s42, {4*1024}
      s_add_u32 s43, s43, 1
      s_cmp_lt_u32 s43, 4
      s_cbranch_scc1 L_ld""")
lds_inc(F_ISS)
stamp(1)
g(f"""v_mov_b32 v38, 3
      v_mov_b32 v39, 4
      s_waitcnt vmcnt(16)
      ds_write_b32 v37, v38 offset:{F_LA}
      s_waitcnt vmcnt(0)
      ds_write_b32 v37, v39 offset:{F_LA}""")
stamp(2)
g("s_branch L_G")
g.label("L_FFN")
XF = 8
g("s_waitcnt lgkmcnt(0)")
srd(WS, P_WS, WS_REC)
srd(SR, P_WUK, 4194304)
g(f"""v_xor_b32 v8, v{vN}, v{vKG}
      v_lshlrev_b32 v8, 4, v8
      v_lshl_add_u32 v8, v{vKG}, 13, v8
      v_xor_b32 v9, 64, v8
      v_xor_b32 v10, 128, v8
      v_xor_b32 v11, 192, v8
      s_lshl_b32 s48, s{sJ}, 19               ; 64*j rows * 8192
      s_lshl_b32 s49, s{sHF}, 8
      s_add_u32 s48, s48, s49""")
if OPT["ukgate"]: lds_wait(F_WQ, OPT["ukgate"], 40)
else: lds_wait(F_QI, 5, 40)
for u in range(16):
    g(f"s_mov_b32 m0, {QL + u*1024}")
    g(f"s_add_u32 s49, s48, {u*4*8192}")
    g(f"buffer_load_dwordx4 v{8+(u&3)}, {sr(SR,4)}, s49 offen {NT} lds")
if OPT["fgate"] == 9:
    g("s_waitcnt vmcnt(0)"); land_now()
elif OPT["fgate"]:
    lds_wait(F_Q, OPT["fgate"], 40, sleep=1)
if OPT["forder"] == 1: lds_wait(F_ISS, 2, 40, sleep=2)
g("s_branch L_FFNb")
FFN_EARLY_END = True
g.label("L_G9")
g(f"""s_setprio 3
      s_waitcnt lgkmcnt(0)
      s_load_dword s40, s[{P_WS}:{P_WS+1}], {EPOCH}
      s_barrier""")
srd(WS, P_WS, WS_REC)
g(f"""v_lshlrev_b32 v8, 4, v{vN}              ; n*16
      s_lshl_b32 s41, s{sHF}, 3
      s_add_u32 s41, s41, s{sJ}
      s_lshl_b32 s41, s41, 8
      s_add_u32 s43, s41, {QAM}
      s_lshl_b32 s42, s{sHF}, 14
      s_lshl_b32 s41, s{sJ}, 8
      s_add_u32 s42, s42, s41
      s_add_u32 s42, s42, {QM}
      s_add_u32 s45, s42, 8192
      v_lshl_add_u32 v7, v{vKG}, 11, v8
      v_lshlrev_b32 v6, 4, v{LANE}
      s_lshl_b32 s47, s{sHF}, 3
      s_add_u32 s47, s47, s{sJ}
      s_lshl_b32 s47, s47, 11
      s_add_u32 s47, s47, {QF}
      v_mov_b32 v11, 1
      s_waitcnt lgkmcnt(0)
      s_mul_i32 s{sTAG}, s40, 1664525
      s_add_u32 s{sTAG}, s{sTAG}, 1013904223
      v_mov_b32 v10, s{sTAG}
      v_mov_b32 v13, s{sTAG}
      v_mov_b32 v15, s{sTAG}
      ds_write_b64 v{VZ}, v[10:11] offset:{F_TAG}""")
stamp(1)
if OPT["warm"]:
    g(f"""s_and_b32 s46, s{sSLOT}, 1
          s_lshl_b32 s46, s46, 7
          s_add_u32 s46, s46, s{sXCD}
          s_lshl_b32 s46, s46, 7
          s_add_u32 s46, s46, {HD}
          v_lshlrev_b32 v9, 10, v{vN}
          v_and_b32 v16, 1, v{vKG}
          v_lshl_add_u32 v9, v16, 15, v9""")
    lds_wait(F_QI, 5, 40)
    if OPT["fast1"]:
        g(f"""buffer_load_dwordx4 v[16:19], v6, {sr(WS,4)}, s47 offen sc1
              buffer_load_dwordx4 v[16:19], v6, {sr(WS,4)}, s47 offen offset:1024 sc1""")
    g(f"""buffer_load_dwordx4 v[16:19], v7, {sr(WS,4)}, s42 offen sc1
          buffer_load_dwordx4 v[16:19], v7, {sr(WS,4)}, s45 offen sc1
          buffer_load_dwordx4 v[16:19], v8, {sr(WS,4)}, s43 offen sc1
          buffer_load_dword v16, v9, {sr(WS,4)}, s46 offen sc1""")
lds_wait(F_Q, 5, 40)
g("\n".join(f"ds_read_b128 {vr(32+4*b,4)}, v8 offset:{REDQ+256*b}" for b in range(5)))
g("s_waitcnt lgkmcnt(0)")
sum_groups(32, 5)
g(f"""v_cvt_pk_bf16_f32 v12, v32, v33
      v_cvt_pk_bf16_f32 v14, v34, v35""")
if OPT["fast1"]:
    g(f"""buffer_store_dwordx4 v[12:15], v6, {sr(WS,4)}, s47 offen
          ds_write_b32 v{VZ}, v{VONE} offset:{F_QP}
          buffer_store_dwordx4 v[12:15], v6, {sr(WS,4)}, s47 offen offset:1024""")
g(f"""buffer_store_dwordx4 v[12:15], v7, {sr(WS,4)}, s42 offen sc1
      buffer_store_dwordx4 v[12:15], v7, {sr(WS,4)}, s45 offen sc1
      ds_write_b32 v{VZ}, v{VONE} offset:{F_QP}
      v_mov_b32 v20, v12
      v_mov_b32 v21, v13
      v_mov_b32 v22, v14
      v_mov_b32 v23, v15
      s_mov_b64 exec, 0xffff""")
stamp(2)
lds_wait(F_QA, 8, 40)
g("\n".join(f"ds_read_b128 {vr(32+4*b,4)}, v8 offset:{REDQA+256*b}" for b in range(8)))
g("s_waitcnt lgkmcnt(0)")
sum_groups(32, 8)
for r in range(4): g(f"v_mul_f32 v{32+r}, {hex(f32(SCALE))}, v{32+r}")
g(f"""v_cvt_pk_bf16_f32 v12, v32, v33
      v_cvt_pk_bf16_f32 v14, v34, v35
      buffer_store_dwordx4 v[12:15], v8, {sr(WS,4)}, s43 offen sc1
      ds_write_b32 v{VZ}, v{VONE} offset:{F_QAP}
      s_mov_b64 exec, -1
      s_setprio 0""")
stamp(3)
if OPT["uvgate"] < 2: lds_wait(F_H2I if OPT["uvgate"] else F_ISS, 8 if OPT["uvgate"] else 2, 40, sleep=1)
else: g("s_sleep 16")
if OPT["fast1"] and OPT["recl"]:
    g(f"""buffer_store_dwordx4 v[20:23], v6, {sr(WS,4)}, s47 offen sc1
          buffer_store_dwordx4 v[20:23], v6, {sr(WS,4)}, s47 offen offset:1024 sc1""")
g("s_branch L_G_uv9")

g.label("L_A_q")
g("s_setprio 2")
g(f"""s_and_b32 s40, s{sSLOT}, 1              ; g
      s_lshl_b32 s41, s40, 4
      s_lshl_b32 s42, s{sWV}, 1
      s_add_u32 s41, s41, s42                 ; 16g+2w
      s_lshl_b32 s41, s41, 11
      s_add_u32 s20, s41, {QAM}
      s_lshr_b32 s21, s{sSLOT}, 1             ; mi 0..15
      s_lshl_b32 s42, s40, 7                  ; 16g*8
      s_add_u32 s42, s42, s{sWV}
      s_lshl_b32 s42, s42, 3
      s_add_u32 s42, s42, s{sXCD}
      s_lshl_b32 s42, s42, 4
      s_add_u32 s42, s42, s21
      s_lshl_b32 s42, s42, 7
      s_add_u32 s26, s42, {IB}
      s_add_u32 s22, s26, {2*8*8*2048}
      s_lshl_b32 s42, s40, 7                  ; 16g*8
      s_add_u32 s42, s42, s{sXCD}
      s_lshl_b32 s42, s42, 4
      s_add_u32 s42, s42, s21
      s_lshl_b32 s42, s42, 3
      s_add_u32 s27, s42, {HD}
      s_add_u32 s23, s27, 0x8000
      s_lshl_b32 s42, s{sHF}, 3
      s_add_u32 s42, s42, s{sWV}
      s_lshl_b32 s42, s42, 7
      s_add_u32 s31, s42, {HD}
      s_lshl_b32 s42, s{sHF}, 3
      s_add_u32 s42, s42, s{sJ}
      s_lshl_b32 s42, s42, 3
      s_add_u32 s42, s42, s{sWV}              ; (h*8+j)*8+w
      s_lshl_b32 s30, s42, 11
      s_add_u32 s30, s30, {IB}
      s_lshl_b32 s42, s42, 8
      s_add_u32 s42, s42, {QM}
      s_add_u32 s32, s{WS}, s42
      s_addc_u32 s33, s{WS+1}, 0
      s_lshl_b32 s42, s{sHF}, 3
      s_add_u32 s42, s42, s{sWV}
      s_lshl_b32 s42, s42, 11
      s_add_u32 s42, s42, {QF}
      s_add_u32 s8, s{WS}, s42
      s_addc_u32 s9, s{WS+1}, 0
      s_and_b32 s40, s{sWV}, 1
      s_lshl_b32 s40, s40, 3                  ; 8*dhalf'
      v_xor_b32 v6, s40, v{vN}
      v_lshlrev_b32 v6, 4, v6
      v_lshl_add_u32 v6, v{LANE}, 8, v6       ; row*256 + ...
      v_lshlrev_b32 v10, 2, v{LANE}
      s_lshl_b32 s40, s{sWV}, 8
      v_add_u32 v10, s40, v10
      v_mov_b32 v8, 0
      v_mov_b32 v9, 0""")
W = 80
QKA, PVA = 32, 96
fswz(24, vN, 25)
g(f"""v_xor_b32 v24, v24, v{vKG}
      v_lshlrev_b32 v24, 4, v24
      v_and_b32 v25, 7, v{vN}
      v_lshl_add_u32 v24, v25, 7, v24         ; + (i&7)*128
      v_lshrrev_b32 v25, 3, v{vN}
      v_lshl_add_u32 v24, v25, 10, v24        ; + (i>>3)*1024
      s_lshl_b32 s42, s{sWV}, 11
      s_add_u32 s42, s42, {KV}
      v_add_u32 v160, s42, v24
      v_xor_b32 v161, 64, v160
      v_add_u32 v162, 0x10000, v160
      v_add_u32 v163, 0x10000, v161
      v_lshrrev_b32 v26, 2, v{LANE}           ; i16""")
fswz(24, 26, 25)
g(f"""s_and_b32 s42, s{sWV}, 3
      s_lshl_b32 s42, s42, 1
      v_bfe_u32 v25, v{LANE}, 1, 1
      v_or_b32 v25, s42, v25                  ; xi = 2(w&3) + (c'>>1)
      v_xor_b32 v24, v24, v25
      v_lshlrev_b32 v24, 4, v24
      v_and_b32 v25, 1, v{LANE}
      v_lshl_add_u32 v24, v25, 3, v24
      v_and_b32 v25, 7, v26
      v_lshl_add_u32 v24, v25, 7, v24
      v_lshrrev_b32 v25, 3, v26
      v_lshl_add_u32 v24, v25, 10, v24
      s_lshr_b32 s42, s{sWV}, 2
      s_lshl_b32 s42, s42, 14
      s_add_u32 s42, s42, {KV}
      v_add_u32 v164, s42, v24
      v_add_u32 v165, 0x10000, v164
      v_lshrrev_b32 v24, 1, v{vN}             ; xi
      v_and_b32 v25, 4, v24
      v_lshl_or_b32 v25, v25, 1, v24          ; sigma
      s_lshl_b32 s42, s{sWV}, 1
      v_xor_b32 v25, s42, v25
      v_lshlrev_b32 v25, 4, v25
      v_lshl_add_u32 v25, v24, 8, v25         ; + xi*256
      v_lshl_add_u32 v25, v{vKG}, 11, v25     ; + (l>>4)*2048
      v_and_b32 v24, 1, v{LANE}
      v_lshl_add_u32 v28, v24, 3, v25
      v_xor_b32 v29, 16, v28
      v_xor_b32 v30, v{vN}, v{vKG}
      v_lshlrev_b32 v30, 4, v30
      v_lshl_add_u32 v30, v{vKG}, 8, v30
      v_xor_b32 v31, {12*16}, v30             ; odd s
      v_lshlrev_b32 v166, 4, v{LANE}          ; lane*16""")
g(f"s_cmp_ge_u32 s{sWV}, 5\ns_cbranch_scc1 L_A_q2")
for p in range(4):
    g(f"s_waitcnt vmcnt({6-2*p})")
    if p == 0: lds_inc(F_WQ)
    e = 2 * p
    for d in range(2):
        g(f"v_perm_b32 v{48+8*d+p}, v{32+2*(e+1)+d}, v{32+2*e+d}, s{sPLO}")
        g(f"v_perm_b32 v{48+8*d+4+p}, v{32+2*(e+1)+d}, v{32+2*e+d}, s{sPHI}")
stamp(18)
lds_wait(F_XN, 1, 19, extra=f"ds_read_b128 v[116:119], v112 offset:{XNL}")
for t in range(4): mfma(64 + 4 * t, 116, 48 + 4 * t, True)
g(f"""s_nop 6
      v_mov_b32 v65, v68
      v_mov_b32 v66, v72
      v_mov_b32 v67, v76
      s_mov_b64 exec, 0xffff
      ds_write_b128 v113, v[64:67] offset:{REDQ}
      s_mov_b64 exec, 1
      ds_add_u32 v{VZ}, v{VONE} offset:{F_Q}
      s_mov_b64 exec, -1""")
g.label("L_A_q2")
stamp(2)
get_tag(7)
g(f"s_lshl_b32 s18, s{sTAG}, 5              ; 32*TAG")
def wreads():
    for e in range(8):
        if e: g(f"v_xor_b32 v7, {e*16}, v6")
        g(f"ds_read_b128 {vr(W+4*e,4)}, v{6 if e == 0 else 7} offset:{QL}")
lds_wait(F_QP, 1, 19, sleep=1)
if OPT["d1"]: g(f"s_sleep {OPT['d1']}")
g(f"""ds_read_b32 v{VT}, v{VZ} offset:{F_UK}
      s_waitcnt lgkmcnt(0)
      v_readfirstlane_b32 s24, v{VT}
      s_nop 0
      s_cmp_eq_u32 s24, 0
      s_cbranch_scc1 L_now""")
wreads()
g.label("L_now")
stamp(3)
L, Lo = g.nl("h1"), g.nl("h1o")
g(f"s_mov_b32 s{sCNT}, {LIM_MEM}")
g.label(L)
if OPT["fast1"]:
    Lg, Lc = g.nl("h1g"), g.nl("h1c")
    g(f"s_cmp_le_u32 s{sCNT}, {LIM_MEM-8}\ns_cbranch_scc1 {Lg}")
    for k in range(4):
        g(f"s_load_dwordx16 {sr(36+16*k,16)}, s[8:9], {64*k}")
    g(f"s_add_u32 s8, s8, 256\ns_addc_u32 s9, s9, 0\ns_branch {Lc}")
    g.label(Lg)
for k in range(4):
    g(f"s_load_dwordx16 {sr(36+16*k,16)}, s[32:33], {64*k} glc")
if OPT["fast1"]: g.label(Lc)
g(f"""s_sub_u32 s{sCNT}, s{sCNT}, 1
      s_cbranch_scc1 {Lo}
      s_waitcnt lgkmcnt(0)
      s_cmp_eq_u32 s99, s{sTAG}
      s_cbranch_scc0 {L}
      s_add_u32 s19, s37, s39""")
for k in range(2, 32):
    g(f"s_add_u32 s19, s19, s{37+2*k}")
g(f"s_cmp_eq_u32 s19, s18\ns_cbranch_scc0 {L}")
g.label(Lo)
cnt(23, sCNT)
stamp(1)
g(f"""s_cmp_eq_u32 s24, 0
      s_cbranch_scc0 L_havew""")
lds_wait(F_UK, 1, 19)
wreads()
g.label("L_havew")
for k in range(32):
    if k % 4 == 0: g(f"s_waitcnt lgkmcnt({7 - k//4})")
    g(f"v_dot2c_f32_bf16 v{8+(k&1)}, s{36+2*k}, v{W+k}")
g(f"""s_nop 2
      v_add_f32 v8, v8, v9
      ds_write_b32 v10, v8 offset:{REDQA}""")
lds_inc(F_QA)
stamp(4)
def qka_reads():
    for s in range(16):
        cb = s >> 1
        a = 160 + (s & 1) + (2 if cb >= 4 else 0)
        g(f"ds_read_b128 {vr(QKA+4*s,4)}, v{a} offset:{(cb&3)*16384}")
def pva_reads(u):
    for i in range(4):
        for hh in range(2):
            T = 2 * u + hh
            g(f"ds_read_b64_tr_b16 {vr(PVA+16*i+4*u+2*hh,2)}, v{164+(i>>1)} offset:{(i&1)*32768+T*2048}")
h2_loads = "\n".join(f"buffer_load_dwordx4 {vr(8+4*n,4)}, v{VL16}, {sr(WS,4)}, s20 offen offset:{1024*n} sc1" for n in range(4))
g(f"""s_lshr_b32 s42, s{sWV}, 1
      s_lshl_b32 s48, s42, 2
      s_lshl_b32 s48, 1, s48
      s_add_u32 s49, s48, 0x10000
      s_mov_b32 s50, {hex(f32(OPT["rng"]))}
      s_lshl_b32 s42, s42, 10
      s_and_b32 s43, s{sWV}, 1
      s_lshl_b32 s43, s43, 3
      s_add_u32 s42, s42, s43
      v_add_u32 v7, s42, v{VL16}
      v_add_u32 v28, {QL}, v28
      v_add_u32 v29, {QL}, v29
      v_add_u32 v26, 8192, v28
      v_add_u32 v27, 8192, v29
      s_and_b32 s45, s{sTAG}, 1
      s_mul_i32 s45, s45, 0x55555555
      s_and_b32 s44, s{sTAG}, 0xaaaaaaaa
      s_or_b32 s45, s45, s44
      s_mov_b32 s44, 0x00010001""")
lds_wait(F_QAP, 1, 42)
if OPT["d2"]: g(f"s_sleep {OPT['d2']}")
def h2_issue(lv):
    if OPT["h2land"] == lv:
        g(h2_loads); lds_inc(F_H2I); stamp(5)
h2_issue(0)
land_wait(2, 42, 24, sleep=1)
h2_issue(2)
pva_reads(0); pva_reads(1)
land_wait(3, 42, 24, sleep=1)
h2_issue(3)
pva_reads(2)
g(f"s_cmp_lt_u32 s{sWV}, 6\ns_cbranch_scc1 L_qka")
land_wait(4, 42, 24)
g.label("L_qka")
qka_reads()
stamp(6)
L, Lo = g.nl("h2c"), g.nl("h2co")
g(f"s_mov_b32 s43, {LIM_MEM}")
g.label(L)
g("s_waitcnt vmcnt(0)")
tagcheck([9, 11, 13, 15, 17, 19, 21, 23], 24)
g(f"""s_cbranch_vccz {Lo}
      s_sub_u32 s43, s43, 1
      s_cbranch_scc1 {Lo}
      s_sleep {OPT["bk2"]}
      s_mov_b64 exec, vcc""")
g(h2_loads)
g(f"s_mov_b64 exec, -1\ns_branch {L}")
g.label(Lo)
cnt(24, 43)
stamp(7)
for n in range(4):
    g(f"ds_write2_b32 v{[28, 26, 29, 27][n]}, v{8+4*n}, v{10+4*n} offset0:0 offset1:1")
lds_inc(F_STG)
def bread(s): return f"ds_read_b128 {vr(8+4*(s&3),4)}, v{30+(s&1)} offset:{QL+s*1024}"
lds_wait(F_STG, 8, 42)
stamp(8)
g("\n".join(bread(s) for s in range(4)))
SA = 24
for s in range(16):
    g(f"s_waitcnt lgkmcnt({min(3, 15-s)})")
    mfma(SA, QKA + 4 * s, 8 + 4 * (s & 3), s == 0)
    if s + 4 < 16: g(bread(s + 4))
VM = 10
PF, OA = 32, 48
def pread(u): return f"ds_read_b128 {vr(PF+4*u,4)}, v{VL16} offset:{PL+1024*u}"
g("s_nop 7")
for r in range(4): g(f"v_exp_f32 v{12+r}, v{SA+r}")
g(f"""v_max3_f32 v9, v{SA}, v{SA+1}, v{SA+2}
      v_cvt_pk_bf16_f32 v16, v12, v13
      v_cvt_pk_bf16_f32 v17, v14, v15
      v_max_f32 v9, v9, v{SA+3}
      ds_write_b64 v7, v[16:17] offset:{PL}
      v_cmp_nle_f32 vcc, abs(v9), s50
      s_cmp_lg_u64 vcc, 0
      s_cselect_b32 s48, s49, s48
      s_mov_b64 exec, 1
      v_mov_b32 v8, s48
      ds_add_u32 v{VZ}, v8 offset:{F_PC}
      s_mov_b64 exec, -1""")
pva_reads(3)
stamp(15)
TP, IBV = 80, 84
fill = [f"v_lshrrev_b32 v12, 3, v{vN}",
        f"v_lshl_add_u32 v12, v{vKG}, 2, v12      ; head = 4q + (j>>3)",
        f"v_lshlrev_b32 v{IBV}, 17, v12",
        f"v_and_b32 v12, 7, v{vN}",
        f"v_lshl_add_u32 v{IBV}, v12, 4, v{IBV}",
        f"v_and_b32 v12, 3, v{LANE}",
        f"v_lshlrev_b32 v12, 3, v12",
        f"v_lshrrev_b32 v12, v12, s45",
        f"v_and_b32 v13, 0xff, v12", f"v_lshlrev_b32 v12, 15, v13", f"v_or_b32 v12, v12, v13"]
for d in range(4): fill += [f"v_lshrrev_b32 v13, {2*d}, v12", f"v_and_b32 v{TP+d}, s44, v13"]
S1 = 2
for _ in range(3): g(fill.pop(0))
pc_wait(0xff, 0x22, 42, 48)
g("\n".join(pread(u) for u in range(S1)))
for u in range(S1):
    g(f"s_waitcnt lgkmcnt({S1-1-u})")
    for i in range(4):
        mfma(OA + 4 * i, PF + 4 * u, PVA + 16 * i + 4 * u, u == 0)
        for _ in range(2): g(fill.pop(0))
assert not fill
pc_wait(0xffff, 0x2222, 42, 48)
g("\n".join(pread(u) for u in range(S1, 4)))
g(f"s_cmp_lg_u32 s42, 0x2222\ns_cbranch_scc1 L_slow")
stamp(9)
for u in range(S1, 4):
    g(f"s_waitcnt lgkmcnt({3-u})")
    for i in range(4): mfma(OA + 4 * i, PF + 4 * u, PVA + 16 * i + 4 * u, u == 0)
g.label("L_pv2")
GR = 64
g("s_nop 6")
for a in range(2):
    A0, B0, T0 = GR + 4 * a, GR + 4 * a + 2, 72
    for d in range(2):
        g(f"v_perm_b32 v{A0+d}, v{OA+8*d+4+2*a}, v{OA+8*d+2*a}, s{sPHI}")
        g(f"v_perm_b32 v{B0+d}, v{OA+8*d+4+2*a+1}, v{OA+8*d+2*a+1}, s{sPHI}")
    g("s_nop 0")
    for d in range(2): g(f"v_mov_b32_dpp v{T0+d}, v{A0+d} row_ror:8 {DPPM}")
    for d in range(2): g(f"v_mov_b32_dpp v{A0+d}, v{B0+d} row_ror:8 row_mask:0xf bank_mask:0xc")
    for d in range(2): g(f"v_mov_b32_dpp v{B0+d}, v{T0+d} quad_perm:[0,1,2,3] row_mask:0xf bank_mask:0x3")
    for d in range(4): g(f"v_xad_u32 v{A0+d}, v{TP+d}, s44, v{A0+d}")
    for d in range(4): g(f"v_bfi_b32 v{A0+d}, s44, v{TP+d}, v{A0+d}")
    g(f"buffer_store_dwordx4 {vr(A0,4)}, v{IBV}, {sr(WS,4)}, s{26 if a == 0 else 22} offen sc1")
if OPT["wogate"] == 1: lds_inc(F_H3)
stamp(10)
MK = 76
g(f"""v_and_b32 v12, 1, v{LANE}
      v_lshlrev_b32 v12, 4, v12
      v_mov_b32 v13, 0xffff
      v_lshlrev_b32 v13, v12, v13
      v_bfe_u32 v12, v{LANE}, 1, 2""")
for p in range(4):
    g(f"v_cmp_eq_u32 vcc, {p}, v12\ns_nop 1\nv_cndmask_b32 v{MK+p}, v{VZ}, v13, vcc")
g(f"""v_lshlrev_b32 v16, 2, v{vN}
      s_lshl_b32 s42, s{sWV}, 6
      v_add_u32 v16, s42, v16
      v_lshrrev_b32 v17, 3, v{LANE}
      v_lshlrev_b32 v17, 2, v17
      v_add_u32 v17, s42, v17
      v_lshrrev_b32 v18, 3, v{vN}             ; a = j>>3
      s_lshl_b32 s42, s{sWV}, 1
      v_add_u32 v19, s42, v18
      v_mul_u32_u24 v19, 144, v19
      v_and_b32 v20, 7, v{vN}
      v_lshl_add_u32 v19, v20, 4, v19
      v_and_b32 v20, 1, v{vKG}
      v_lshl_add_u32 v19, v20, 3, v19
      v_lshrrev_b32 v20, 1, v{vKG}
      v_cmp_eq_u32 s[46:47], v18, v20
      v_lshlrev_b32 v14, 3, v{LANE}           ; lane*8""")
if OPT["d3"]: g(f"s_sleep {OPT['d3']}")
stamp(22)
IR = 104
ib_loads = f"""buffer_load_dwordx4 {vr(IR,4)}, v{VL16}, {sr(WS,4)}, s30 offen sc1
      buffer_load_dwordx4 {vr(IR+4,4)}, v{VL16}, {sr(WS,4)}, s30 offen offset:1024 sc1"""
def hdr_poll(nm, off, dstoff, flag, after="", mark=False):
    L, Lo = g.nl(nm), g.nl(nm + "o")
    g(f"s_mov_b32 s43, {LIM_MEM}")
    if OPT["bkh"]:
        Lf = g.nl(nm + "f")
        g(f"s_branch {Lf}")
    g.label(L)
    if OPT["bkh"]:
        g(f"s_sleep {OPT['bkh']}")
        g.label(Lf)
    g(f"""s_load_dwordx16 s[52:67], s[24:25], {off} glc
          s_load_dwordx16 s[68:83], s[24:25], {off+64} glc
          s_sub_u32 s43, s43, 1
          s_cbranch_scc1 {Lo}
          s_waitcnt lgkmcnt(0)
          s_add_u32 s19, s53, s55""")
    for k in range(2, 16): g(f"s_add_u32 s19, s19, s{53+2*k}")
    g(f"s_cmp_eq_u32 s19, s18\ns_cbranch_scc0 {L}")
    g.label(Lo)
    g("s_waitcnt lgkmcnt(0)")
    if after: g(after)
    for k in range(16): g(f"v_writelane_b32 v24, s{52+2*k}, {k}")
    g("s_mov_b64 exec, 0xffff")
    if mark:
        g(f"""v_cmp_gt_i32 vcc, 0, v24
              s_cmp_lg_u64 vcc, 0
              s_cselect_b32 s42, 0x101, 1
              v_mov_b32 v25, s42""")
    g(f"""ds_write_b32 v16, v24 offset:{dstoff}
          s_mov_b64 exec, 1
          ds_add_u32 v{VZ}, v{25 if mark else VONE} offset:{flag}
          s_mov_b64 exec, -1""")
g(f"""s_add_u32 s24, s{WS}, s31
      s_addc_u32 s25, s{WS+1}, 0
      s_lshl_b32 s18, s{sTAG}, 4""")
for n in range(2):
    for p in range(4): g(f"v_and_b32 v{88+4*n+p}, 0x3f803f80, v{MK+p}")
if OPT["d3a"]: g(f"s_sleep {OPT['d3a']}")
hdr_poll("h3l", 0x8000, LT, F_LT, after=(f"s_sleep {OPT['d3b']}\n" if OPT["d3b"] else "") + ib_loads, mark=True)
cnt(25, 43)
stamp(11)
pc_wait(0xff, 8, 42, 43, off=F_LT)
g("s_cmp_lg_u32 s42, 8\ns_cbranch_scc1 L_genw")
g.label("L_genw_ret")
L, Lo = g.nl("h3d"), g.nl("h3do")
g(f"s_mov_b32 s43, {LIM_MEM}")
g.label(L)
g(f"s_waitcnt vmcnt(0)\nv_xor_b32 v{VT}, v{IR}, v{TP}")
for k in range(1, 8): g(f"v_bitop3_b32 v{VT}, v{IR+k}, v{TP+(k&3)}, v{VT} bitop3:0xbe")
g(f"""v_and_b32 v{VT}, s44, v{VT}
      v_cmp_ne_u32 vcc, 0, v{VT}
      s_cbranch_vccz {Lo}
      s_sub_u32 s43, s43, 1
      s_cbranch_scc1 {Lo}
      s_lshr_b64 s[48:49], vcc, 4
      s_or_b64 vcc, vcc, s[48:49]
      s_lshr_b64 s[48:49], vcc, 2
      s_or_b64 vcc, vcc, s[48:49]
      s_lshr_b64 s[48:49], vcc, 1
      s_or_b64 vcc, vcc, s[48:49]
      s_and_b32 s48, vcc_lo, 0x01010101
      s_and_b32 s49, vcc_hi, 0x01010101
      s_mul_i32 exec_lo, s48, 0xff
      s_mul_i32 exec_hi, s49, 0xff
      s_sleep {OPT["bk3"]}
      {ib_loads}
      s_branch {L}""")
g.label(Lo)
g("s_mov_b64 exec, -1")
cnt(26, 43)
stamp(12)
mfma(96, 88, IR, True)
mfma(96, 92, IR + 4, False)
g(f"""s_nop 7
      v_cvt_pk_bf16_f32 v100, v96, v97
      v_cvt_pk_bf16_f32 v101, v98, v99
      s_mov_b64 exec, s[46:47]
      ds_write_b64 v19, v[100:101] offset:{RIB}
      s_mov_b64 exec, 1
      ds_add_u32 v{VZ}, v{VONE} offset:{F_IB}
      s_mov_b64 exec, -1""")
stamp(13)
g(f"""s_cmp_lt_u32 s{sWG}, 20
      s_cbranch_scc0 L_A_end
      s_lshl_b32 s41, s{sWG}, 14
      s_lshl_b32 s42, s{sWV}, 11
      s_add_u32 s41, s41, s42
      s_add_u32 s41, s41, {SM}
      v_and_b32 v7, 7, v{LANE}
      v_lshlrev_b32 v7, 2, v7
      v_lshrrev_b32 v6, 5, v{LANE}
      v_lshl_add_u32 v7, v6, 1, v7
      v_and_b32 v6, 1, v{vKG}
      v_add_u32 v7, v7, v6
      v_lshlrev_b32 v18, 5, v7
      s_lshl_b32 s42, s{sWV}, 2
      v_add_u32 v6, s42, v18
      v_lshlrev_b32 v7, 1, v7
      s_lshl_b32 s55, s{sWG}, 6""")
tagbytes()
def red8(b):
    g(f"""s_nop 1
          v_permlane32_swap_b32 v{b}, v{b+2}
          v_permlane32_swap_b32 v{b+1}, v{b+3}
          v_pk_add_f32 {vr(b,2)}, {vr(b,2)}, {vr(b+2,2)}
          s_nop 1
          v_permlane16_swap_b32 v{b}, v{b+1}
          v_add_f32 v{b}, v{b}, v{b+1}
          s_nop 1
          v_add_f32_dpp v{b}, v{b}, v{b} row_ror:8 {DPPM}""")
g(f"""s_cmp_eq_u32 s{sWV}, 0
      s_cbranch_scc0 L_fin_s""")
srd(SR, P_X, 1280)
g(f"""buffer_load_ushort v16, v7, {sr(SR,4)}, s55 offen
      s_lshl_b32 s40, s{sWG}, 12
      s_add_u32 s40, s40, {YM}""")
for d in range(4): g(f"v_mov_b32 v{60+d}, s{sTB+d}\nv_and_b32 v{60+d}, 0xff, v{60+d}")
poll_loads("h7", f"""buffer_load_dwordx4 v[48:51], v{VL16}, {sr(WS,4)}, s40 offen sc1
      buffer_load_dwordx4 v[52:55], v{VL16}, {sr(WS,4)}, s40 offen offset:1024 sc1
      buffer_load_dwordx4 v[56:59], v{VL16}, {sr(WS,4)}, s40 offen offset:2048 sc1
      s_mov_b64 exec, 0xffffff
      buffer_load_dwordx4 v[60:63], v{VL16}, {sr(WS,4)}, s40 offen offset:3072 sc1
      s_mov_b64 exec, -1""", [48, 52, 56, 60], 43, sleep=4, mask=False, b8=True)
sum_groups(48, 4)
red8(48)
rne(48)
g(f"""v_mul_f32 v49, {hex(f32(-math.log2(math.e)))}, v48
      v_exp_f32 v49, v49
      s_nop 0
      v_add_f32 v49, 1.0, v49
      v_rcp_f32 v49, v49
      s_nop 0
      v_mul_f32 v48, v48, v49""")
rne(48)
g("v_lshlrev_b32 v20, 16, v16")
stamp(19)
g.label("L_fin_s")
lds_wait(F_SD, 4, 42, sleep=1)
if OPT["d5"]: g(f"s_sleep {OPT['d5']}")
poll_loads("h5", f"""buffer_load_dwordx4 v[32:35], v{VL16}, {sr(WS,4)}, s41 offen sc1
      buffer_load_dwordx4 v[36:39], v{VL16}, {sr(WS,4)}, s41 offen offset:1024 sc1""", [32, 36], 43, sleep=OPT["bk5"], b8=True)
cnt(27, 43)
stamp(20)
sum_groups(32, 2)
red8(32)
g(f"""ds_write_b32 v6, v32 offset:{RFIN}
      s_mov_b64 exec, 1
      ds_add_u32 v{VZ}, v{VONE} offset:{F_FIN}
      s_mov_b64 exec, -1
      s_cmp_eq_u32 s{sWV}, 0
      s_cbranch_scc0 L_A_end""")
srd(44, P_OUT, 1280)
lds_wait(F_FIN, 8, 42, extra=f"ds_read_b128 v[32:35], v18 offset:{RFIN}\nds_read_b128 v[36:39], v18 offset:{RFIN+16}")
sum_groups(32, 2)
g("v_pk_add_f32 v[32:33], v[32:33], v[34:35]\nv_add_f32 v32, v32, v33")
rne(32)
g("v_mul_f32 v32, v32, v48")
rne(32)
g(f"""v_add_f32 v32, v32, v20
      v_cvt_pk_bf16_f32 v32, v32, v32
      buffer_store_short v32, v7, {sr(44,4)}, s55 offen {'sc1' if OPT['osc'] else ''}
      s_cmp_eq_u32 s{sWG}, 0
      s_cbranch_scc0 L_noep
      s_mov_b64 exec, 1
      v_mov_b32 v13, s{sTAG}
      buffer_store_dword v13, v{VZ}, {sr(WS,4)}, 0 offen offset:{EPOCH} sc1""")
g.label("L_noep")
stamp(21)
g.label("L_A_end")
ts_flush()
g("s_endpgm")
g.label("L_genw")
hdr_poll("h3m", 0, MLT, F_ML)
lds_wait(F_ML, 8, 42)
g(f"""ds_read_b64 v[24:25], v14 offset:{MLT}
      ds_read_b32 v8, v17 offset:{MLT}
      ds_read_b32 v9, v17 offset:{MLT+32}
      s_waitcnt lgkmcnt(0)""")
global_max(22, 24)
g(f"""v_sub_f32 v8, v8, v22
      v_sub_f32 v9, v9, v22
      v_exp_f32 v8, v8
      v_exp_f32 v9, v9
      s_nop 0
      v_cvt_pk_bf16_f32 v8, v8, v8
      v_cvt_pk_bf16_f32 v9, v9, v9""")
for n in range(2):
    for p in range(4): g(f"v_and_b32 v{88+4*n+p}, v{8+n}, v{MK+p}")
g("s_branch L_genw_ret")
g.label("L_slow")
g(f"""v_mov_b32 v8, v9
      v_lshlrev_b32 v6, 5, v{vN}
      s_lshl_b32 s42, s{sWV}, 2
      v_add_u32 v29, s42, v6
      s_mov_b32 s43, 0x3f803f80
      v_permlane16_swap_b32 v9, v8
      v_max_f32 v9, v9, v8
      v_mov_b32 v8, v9
      s_nop 1
      v_permlane32_swap_b32 v9, v8
      v_max_f32 v9, v9, v8
      s_mov_b64 exec, 0xffff
      ds_write_b32 v29, v9 offset:{RMX}
      s_mov_b64 exec, 1
      ds_add_u32 v{VZ}, v{VONE} offset:{F_MAX}
      s_mov_b64 exec, -1""")
lds_wait(F_MAX, 8, 42, extra=f"ds_read_b128 v[12:15], v6 offset:{RMX}\nds_read_b128 v[16:19], v6 offset:{RMX+16}")
g(f"""v_max3_f32 v{VM}, v12, v13, v14
      v_max3_f32 v16, v15, v16, v17
      v_max3_f32 v{VM}, v{VM}, v18, v19
      v_max_f32 v{VM}, v{VM}, v16""")
for r in range(4): g(f"v_sub_f32 v{SA+r}, v{SA+r}, v{VM}")
for r in range(4): g(f"v_exp_f32 v{SA+r}, v{SA+r}")
g(f"""v_lshlrev_b32 v15, 10, v{vN}
      v_cvt_pk_bf16_f32 v12, v{SA}, v{SA+1}
      v_cvt_pk_bf16_f32 v13, v{SA+2}, v{SA+3}
      ds_write_b64 v7, v[12:13] offset:{PL}""")
lds_inc(F_P)
lds_wait(F_P, 8, 42)
g("\n".join(pread(u) for u in range(4)))
g("v_mov_b32 v12, 0\nv_mov_b32 v14, 0\ns_waitcnt lgkmcnt(0)")
for u in range(4):
    for i in range(4):
        mfma(OA + 4 * i, PF + 4 * u, PVA + 16 * i + 4 * u, u == 0)
        g(f"v_dot2c_f32_bf16 v{12+2*(i&1)}, s43, v{PF+4*u+i}")
def lsum():
    g(f"""v_mov_b32 v13, s{sTAG}
          v_mov_b32 v11, s{sTAG}
          s_nop 0
          v_add_f32 v12, v12, v14
          v_mov_b32 v14, v12
          s_nop 1
          v_permlane16_swap_b32 v12, v14
          v_add_f32 v12, v12, v14
          v_mov_b32 v14, v12
          s_nop 1
          v_permlane32_swap_b32 v12, v14
          v_add_f32 v12, v12, v14""")
lsum()
g(f"""v_or_b32 v12, 0x80000000, v12
      s_cmp_eq_u32 s{sWV}, 0
      s_cbranch_scc0 L_pv2
      s_mov_b64 exec, 0xffff
      buffer_store_dwordx2 v[10:11], v15, {sr(WS,4)}, s27 offen sc1
      buffer_store_dwordx2 v[12:13], v15, {sr(WS,4)}, s23 offen sc1
      s_mov_b64 exec, -1
      s_branch L_pv2""")

KORD = (0, 2, 1, 3)
TH = OPT["gthr"]
def wo_setup():
    g(f"""v_mul_u32_u24 v6, {8*1280}, v{vKG}
          v_lshl_add_u32 v6, v{vN}, 3, v6
          s_lshl_b32 s40, s{sHF}, 7
          s_lshr_b32 s41, s{sJ}, 1
          s_lshl_b32 s41, s41, 5
          s_add_u32 s40, s40, s41
          s_mul_i32 s40, s40, 1280
          s_and_b32 s41, s{sJ}, 1
          s_mul_i32 s41, s41, 640
          s_add_u32 s48, s40, s41""")
    srd(44, P_WO, 5242880)

def wo_gate():
    if OPT["wogate"] == 1: lds_wait(F_H3, 8, 40, sleep=1)
    elif OPT["wogate"] == 2: lds_wait(F_IB, 1, 40, sleep=2)

def h4_setup():
    g(f"""v_and_b32 v31, 7, v{vN}
          v_lshlrev_b32 v29, 7, v31
          v_lshl_add_u32 v29, v{vKG}, 5, v29
          s_lshl_b32 s50, s{sHF}, 2
          s_lshr_b32 s51, s{sJ}, 1
          s_add_u32 s50, s50, s51                 ; p = h*4+dq
          s_lshl_b32 s61, s50, 10
          s_add_u32 s61, s61, {CXM}
          v_lshrrev_b32 v30, 3, v{vN}
          v_lshlrev_b32 v30, 14, v30
          v_lshl_add_u32 v30, v31, 4, v30         ; (n>>3)*16K + (n&7)*16
          v_mov_b32 v31, 0xff
          s_and_b32 s41, s{sJ}, 1
          s_mul_i32 s41, s41, {10*16384}
          s_lshl_b32 s50, s50, 7
          s_add_u32 s50, s50, s41
          s_add_u32 s50, s50, {SM}""")
    tagbytes()

def h4_warm(A, cbks):
    g(f"buffer_load_dwordx4 {vr(A,4)}, v29, {sr(WS,4)}, s61 offen sc1")
    for cbk in cbks:
        g(f"""s_add_u32 s51, s50, {cbk*2*16384}
              buffer_load_dwordx4 {vr(A+4,4)}, v30, {sr(WS,4)}, s51 offen sc1""")

def h4_wait(A, late=""):
    Ls = g.nl("h4s")
    onfail = f"""s_cmp_lg_u32 s43, {LIM_MEM-32}
          s_cbranch_scc1 {Ls}
          {late}
          {Ls}:""" if (OPT["fast4"] and late) else ""
    poll_loads("h4", f"""buffer_load_dwordx4 {vr(A,4)}, v29, {sr(WS,4)}, s61 offen sc1
          buffer_load_dwordx4 {vr(A+4,4)}, v29, {sr(WS,4)}, s61 offen offset:16 sc1""", [A+1, A+3, A+5, A+7], 43, sleep=OPT["bk4"], onfail=onfail)
    g(f"v_mov_b32 v{A+1}, v{A+4}\nv_mov_b32 v{A+3}, v{A+6}\ns_nop 1")

def rl_wait():
    lds_wait(F_RLV, 1, 40, extra=f"ds_read_b32 v28, v{VZ} offset:{RLINV}")

def wo_compute(A, frags, cbks, D):
    for bi, fr in enumerate(frags):
        for t in range(4): mfma(D + 16 * bi + 4 * t, A, fr + 4 * t, True)
    g("s_nop 4" if len(frags) == 1 else "s_nop 0")
    for bi, cbk in enumerate(cbks):
        d = D + 16 * bi
        for t in range(4): g(f"v_pk_add_f32 {vr(d+4*t,2)}, {vr(d+4*t,2)}, {vr(d+4*t+2,2)}")
        for t in range(4): g(f"v_add_f32 v{16+t}, v{d+4*t}, v{d+4*t+1}")
        for t in range(4): g(f"v_mov_b32 v{20+t}, v{16+t}")
        g(f"s_add_u32 s51, s50, {cbk*2*16384}")
        for t in range(4): g(f"v_permlane16_swap_b32 v{16+t}, v{20+t}")
        g("v_pk_add_f32 v[16:17], v[16:17], v[20:21]\nv_pk_add_f32 v[18:19], v[18:19], v[22:23]")
        for t in range(4): g(f"v_mul_f32 v{d+t}, v{16+t}, v28")
        tagput([d, d+1, d+2, d+3], 31)
        g(f"""s_mov_b64 exec, 0xffff
              buffer_store_dwordx4 {vr(d,4)}, v30, {sr(WS,4)}, s51 offen sc1
              s_mov_b64 exec, -1""")
    lds_inc(F_SD)

def b1_gate():
    if OPT["b1gate"]:
        land_flush()
        lds_wait(F_STG, OPT['b1gate'], 40, sleep=2)

g.label("L_G")
get_tag(6)
g(f"""s_cmp_eq_u32 s{sWV}, 10
      s_cbranch_scc1 L_G_uv10""")
LD.pending = False
wo_setup(); h4_setup()
b1_gate()
if OPT["wogate"]: land_flush()
wo_gate()
stamp(4)
load_block(32, 6, 44, 48, 42, 1280, TH)
g("s_add_u32 s49, s48, 128")
load_block(48, 6, 44, 49, 42, 1280, TH)
land_flush()
g("s_waitcnt vmcnt(8)")
perm_block(32, 64, KORD)
g("s_waitcnt vmcnt(0)")
perm_block(48, 80, KORD)
h4_warm(8, [0, 1])
stamp(5)
g(f"""v_lshlrev_b32 v16, 3, v{LANE}
      v_lshlrev_b32 v17, 4, v{LANE}
      s_lshl_b32 s52, s{sHF}, 10
      s_add_u32 s52, s52, {HD + 0x8000}""")
g("v_mov_b32 v20, 1.0\nv_mov_b32 v21, 1.0")
lds_wait(F_LT, 1, 40, sleep=1)
g("s_setprio 2")
pc_wait(0xff, 8, 40, 41, off=F_LT, extra=f"ds_read_b64 v[24:25], v16 offset:{LT}")
g("s_cmp_eq_u32 s40, 8\ns_cbranch_scc1 L_unitw")
lds_wait(F_ML, 8, 40)
g(f"ds_read_b64 v[20:21], v16 offset:{MLT}\ns_waitcnt lgkmcnt(0)")
global_max(22, 20)
g(f"""v_sub_f32 v20, v20, v22
      v_sub_f32 v21, v21, v22
      v_exp_f32 v20, v20
      v_exp_f32 v21, v21
      s_nop 0""")
rne(20); rne(21)
g.label("L_unitw")
g("v_mul_f32 v24, abs(v24), v20\nv_fma_f32 v24, abs(v25), v21, v24")
wave_sum(24, 40)
g(f"""s_nop 1
      v_rcp_f32 v24, s40
      s_nop 0
      ds_write_b32 v{VZ}, v24 offset:{RLINV}
      ds_write_b32 v{VZ}, v{VONE} offset:{F_RLV}
      v_mov_b32 v28, v24""")
lds_wait(F_IB, 8, 40, sleep=1)
h4_wait(8)
stamp(6)
wo_compute(8, [64, 80], [0, 1], 96)
stamp(7)
g("s_branch L_G_end")

def uv_loads():
    g(f"""v_lshlrev_b32 v7, 13, v{vKG}
          v_lshl_add_u32 v7, v{vN}, 3, v7
          s_lshl_b32 s56, s{sJ}, 17               ; 16j rows
          s_lshl_b32 s41, s{sHF}, 8
          s_add_u32 s56, s56, s41
          s_sub_u32 s52, s{sWV}, 9                ; colhalf
          s_lshl_b32 s41, s52, 7
          s_add_u32 s56, s56, s41
          s_add_u32 s57, s56, {4*8192}""")
    srd(SR, P_WUV, 4194304)
    b1_gate()
    stamp(4)
    rows = [128 * (e & 3) + 8 * (e >> 2) for e in range(8)]
    load_block(32, 7, SR, 56, 42, 8192, TH, rows)
    load_block(48, 7, SR, 57, 42, 8192, TH, rows)
g.label("L_G_uv10")
g.label("L_G_uv9")
LD.pending = False
uv_loads()
g.label("L_G_uv")
wo_setup(); h4_setup()
g(f"""s_add_u32 s49, s52, 2
      s_mul_i32 s53, s49, {2*16384}
      s_add_u32 s50, s50, s53
      s_lshl_b32 s49, s49, 7
      s_add_u32 s49, s49, s48
      v_and_b32 v7, 7, v{vN}
      v_mul_u32_u24 v8, 144, v{vN}
      v_lshl_add_u32 v8, v{vKG}, 4, v8
      v_lshlrev_b32 v9, 4, v{LANE}
      v_lshrrev_b32 v11, 3, v{vN}
      v_lshlrev_b32 v11, 10, v11
      v_lshl_add_u32 v11, v7, 4, v11          ; (n>>3)*1024 + (n&7)*16
      s_lshl_b32 s40, s{sHF}, 2
      s_lshl_b32 s41, s52, 1
      s_add_u32 s40, s40, s41
      s_lshl_b32 s40, s40, 3
      s_add_u32 s40, s40, s{sJ}
      s_lshl_b32 s40, s40, 7
      s_add_u32 s54, s40, {CXM}""")
if not OPT["wogate"]:
    load_block(64, 6, 44, 49, 42, 1280, TH)
    h4_warm(16, [0])
g(f"""s_cmp_eq_u32 s{sWV}, 9
      s_cbranch_scc0 L_nohd
      s_and_b32 s56, s{sSLOT}, 1
      s_lshl_b32 s56, s56, 7
      s_add_u32 s56, s56, s{sXCD}
      s_lshl_b32 s56, s56, 4
      s_lshr_b32 s57, s{sSLOT}, 1
      s_add_u32 s56, s56, s57
      s_lshl_b32 s56, s56, 3
      s_add_u32 s56, s56, {HD}
      s_add_u32 s57, s56, 0x8000
      v_lshlrev_b32 v15, 10, v{vN}
      v_mov_b32 v24, 0
      v_mov_b32 v25, s{sTAG}
      v_mov_b32 v12, 0
      v_mov_b32 v14, 0
      v_mov_b32 v26, v11
      s_mov_b32 s58, 0x3f803f80""")
pc_wait(0xfff, 0x222, 40, 41, sleep=1)
g("s_setprio 3")
pc_wait(0xffff, 0x2222, 40, 41)
g(f"""s_cmp_lg_u32 s40, 0x2222
      s_cbranch_scc1 L_nohd2""")
g("\n".join(f"ds_read_b128 {vr(128+4*u,4)}, v9 offset:{PL+1024*u}" for u in range(4)))
for u in range(4):
    g(f"s_waitcnt lgkmcnt({3-u})")
    for i in range(4): g(f"v_dot2c_f32_bf16 v{12+2*(i&1)}, s58, v{128+4*u+i}")
lsum()
if OPT["dl"]: g(f"s_sleep {OPT['dl']}")
g(f"""s_mov_b64 exec, 0xffff
      buffer_store_dwordx2 v[12:13], v15, {sr(WS,4)}, s57 offen sc1
      buffer_store_dwordx2 v[24:25], v15, {sr(WS,4)}, s56 offen sc1
      s_mov_b64 exec, -1""")
stamp(10)
g.label("L_nohd2")
g(f"""v_mov_b32 v11, v26
      s_setprio 0
      {"s_waitcnt vmcnt(2)" if not OPT["wogate"] else ""}""")
g.label("L_nohd")
if OPT["wogate"]:
    wo_gate()
    load_block(64, 6, 44, 49, 42, 1280, TH)
    h4_warm(16, [0])
g("s_waitcnt vmcnt(18)")
perm_block(32, 80)
g("s_waitcnt vmcnt(10)")
perm_block(48, 96)
g(f"v_mov_b32 v61, s{sTAG}\nv_mov_b32 v63, s{sTAG}")
g("s_waitcnt vmcnt(0)")
perm_block(64, 112, KORD)
stamp(5)
lds_wait(F_LT, 8, 40, sleep=2)
rl_wait()
g("s_setprio 3")
lds_wait(F_IB, 8, 40)
g(f"""ds_read_b128 v[32:35], v8 offset:{RIB}
      ds_read_b128 v[36:39], v8 offset:{RIB+64}""")
stamp(6)
D = 128
for blk in range(2):
    g(f"s_waitcnt lgkmcnt({1-blk})")
    for t in range(4): mfma(D + 4 * t, 32 + 4 * blk, 80 + 16 * blk + 4 * t, blk == 0)
g("s_nop 4")
for t in range(4): g(f"v_pk_add_f32 {vr(D+4*t,2)}, {vr(D+4*t,2)}, {vr(D+4*t+2,2)}")
for t in range(4): g(f"v_add_f32 v{16+t}, v{D+4*t}, v{D+4*t+1}")
g(f"""s_nop 0
      v_permlane32_swap_b32 v16, v18
      v_permlane32_swap_b32 v17, v19
      v_pk_add_f32 v[16:17], v[16:17], v[18:19]
      v_mov_b32 v18, v16
      v_mov_b32 v19, v17
      s_nop 0
      v_permlane16_swap_b32 v16, v18
      v_permlane16_swap_b32 v17, v19
      v_pk_add_f32 v[16:17], v[16:17], v[18:19]
      v_cvt_pk_bf16_f32 v60, v16, v17
      v_mov_b32 v62, v60
      s_nop 1
      v_permlane32_swap_b32 v60, v62""")
g(f"""s_mov_b64 exec, 0xffff
      buffer_store_dwordx4 v[60:63], v11, {sr(WS,4)}, {"s54 offen" if OPT["fast4"] else "s54 offen sc1"}
      s_mov_b64 exec, -1""")
stamp(7)
late = f"s_mov_b64 exec, 0xffff\nbuffer_store_dwordx4 v[60:63], v11, {sr(WS,4)}, s54 offen sc1"
h4_wait(32, late)
stamp(8)
wo_compute(32, [112], [0], 128)
if OPT["fast4"]: g(f"s_sleep {OPT['d4']}\n" + late + "\ns_mov_b64 exec, -1")
stamp(9)
g("s_branch L_G_end")

g.label("L_FFNb")
PEND = OPT["fgate"] != 9
g(f"""s_lshr_b32 s40, s{sSLOT}, 3             ; hq
      s_lshl_b32 s40, s40, 1
      s_and_b32 s41, s{sJ}, 1
      s_add_u32 s40, s40, s41
      s_lshl_b32 s40, s40, 3
      s_add_u32 s62, s40, s{sXCD}             ; u in 0..63
      s_lshr_b32 s63, s{sJ}, 1                ; mq
      v_and_b32 v31, 1, v{vKG}
      v_cmp_eq_u32 s[56:57], 1, v31
      s_cmp_lt_u32 s62, 27
      s_cbranch_scc0 L_FFN2""")
LD.pending = PEND; LD.n = 0
g(f"""v_mul_u32_u24 v28, {8*3456}, v{vKG}
      v_lshl_add_u32 v28, v{vN}, 3, v28
      v_lshlrev_b32 v7, 4, v{vKG}
      s_mul_i32 s58, s63, 320
      v_add_u32 v7, s58, v7
      s_mul_i32 s58, s63, {160*3456}
      s_lshl_b32 s41, s62, 7
      s_add_u32 s58, s58, s41""")
srd(SR, P_W1, 2211840)
stamp(4)
for b in range(5):
    if b: g(f"s_add_u32 s58, s58, {32*3456}")
    load_block(48 + 16 * b, 28, SR, 58, 42, 3456, OPT['fthr'])
land_flush()
D = 144
get_tag(6)
lds_wait(F_XN, 1, 40)
for b in range(5): g(f"ds_read_b128 {vr(XF+4*b,4)}, v7 offset:{XNL+64*b}")
g("s_waitcnt lgkmcnt(0)")
for b in range(5):
    g(f"s_waitcnt vmcnt({8*(4-b)})")
    perm_block(48 + 16 * b, 32 + 16 * b)
    g("s_nop 1")
    for t in range(4): mfma(D + 4 * t, XF + 4 * b, 32 + 16 * b + 4 * t, b == 0)
g(f"""v_lshlrev_b32 v28, 4, v{LANE}
      s_nop 0
      s_lshl_b32 s40, s62, 2
      s_add_u32 s40, s40, s63
      s_lshl_b32 s40, s40, 9
      s_add_u32 s40, s40, {HM}
      v_mov_b32 v9, s{sTAG}
      v_mov_b32 v11, s{sTAG}
      s_nop 1
      v_cndmask_b32 v8, v{D}, v{D+8}, s[56:57]
      v_cndmask_b32 v10, v{D+4}, v{D+12}, s[56:57]
      s_mov_b32 exec_hi, 0
      buffer_store_dwordx4 v[8:11], v28, {sr(WS,4)}, s40 offen sc1
      s_mov_b64 exec, -1
      s_branch L_FFNe""")
g.label("L_FFN2")
g(f"""s_mul_i32 s40, s63, 37
      s_add_u32 s40, s40, s62
      s_sub_u32 s58, s40, 27
      s_cmp_lt_u32 s58, 135
      s_cbranch_scc1 L_FFN2a""")
LD.pending = PEND; LD.n = 0
land_flush()
get_tag(6)
g("s_branch L_FFNe")
g.label("L_FFN2a")
LD.pending = PEND; LD.n = 0
g(f"""s_mul_i32 s59, s58, 205
      s_lshr_b32 s59, s59, 10                 ; fb = v/5
      s_mul_i32 s60, s59, 5
      s_sub_u32 s60, s58, s60                 ; mb
      v_mul_u32_u24 v28, {8*1280}, v{vKG}
      v_lshl_add_u32 v28, v{vN}, 3, v28
      s_mul_i32 s58, s59, {64*1280}
      s_lshl_b32 s41, s60, 8
      s_add_u32 s58, s58, s41""")
srd(SR, P_W2, 2211840)
if OPT["forder"] >= 2:
    land_flush()
    if OPT["forder"] == 2: lds_wait(F_ISS, 2, 40, sleep=2)
    if OPT["forder"] == 3: lds_wait(F_STG, 8, 40, sleep=2)
    if OPT["forder"] == 4: pc_wait(0xff, 8, 40, 41, off=F_LT, sleep=2)
stamp(4)
for ch in range(2):
    for blk in range(2):
        g(f"s_add_u32 s41, s58, {blk*32*1280 + ch*128}")
        load_block(48 + 16 * (2 * ch + blk), 28, SR, 41, 42, 1280, OPT['fthr2'])
land_flush()
get_tag(6)
for b in range(4):
    g(f"s_waitcnt vmcnt({8*(3-b)})")
    perm_block(48 + 16 * b, 32 + 16 * b)
g(f"""v_lshrrev_b32 v28, 2, v{vN}
      v_lshlrev_b32 v28, 9, v28
      v_lshl_add_u32 v28, v{vKG}, 5, v28
      v_bfe_u32 v29, v{vN}, 1, 1
      v_lshl_add_u32 v28, v29, 4, v28
      v_and_b32 v29, 1, v{vN}
      v_lshl_add_u32 v28, v29, 8, v28
      s_lshl_b32 s40, s59, 11
      s_add_u32 s40, s40, {HM}""")
poll_loads("h6", f"""buffer_load_dwordx4 v[8:11], v28, {sr(WS,4)}, s40 offen sc1
      buffer_load_dwordx4 v[12:15], v28, {sr(WS,4)}, s40 offen offset:128 sc1""", [9, 11, 13, 15], 43, sleep=6)
for mod in ("row_ror:4", "row_ror:8"):
    for r in (8, 10, 12, 14): g(f"v_add_f32_dpp v{r}, v{r}, v{r} {mod} {DPPM}")
for r in (8, 10, 12, 14): g(f"v_max_f32 v{r}, 0, v{r}")
g("v_cvt_pk_bf16_f32 v8, v8, v10\nv_cvt_pk_bf16_f32 v12, v12, v14\ns_nop 1")
for blk in range(2):
    for p in range(4):
        g(f"v_mov_b32_dpp v{16+4*blk+p}, v{8+4*blk} quad_perm:[{p},{p},{p},{p}] {DPPM}")
g("s_nop 1")
D = 96
for ch in range(2):
    for blk in range(2):
        for t in range(4): mfma(D + 16 * ch + 4 * t, 16 + 4 * blk, 32 + 16 * (2 * ch + blk) + 4 * t, blk == 0)
g(f"""v_lshrrev_b32 v28, 3, v{vN}
      v_lshlrev_b32 v28, 12, v28
      v_and_b32 v29, 7, v{vN}
      v_lshl_add_u32 v28, v29, 4, v28
      v_mov_b32 v29, 0xff
      s_lshl_b32 s40, s60, 14
      s_lshl_b32 s41, s59, 7
      s_add_u32 s40, s40, s41
      s_add_u32 s40, s40, {YM}
      s_add_u32 s41, s40, {2*4096}""")
tagbytes()
for ch in range(2):
    for t in range(4): g(f"v_bfi_b32 v{8+4*ch+t}, v29, s{sTB+t}, v{D+16*ch+4*t}")
g(f"""s_mov_b64 exec, 0xffff
      buffer_store_dwordx4 v[8:11], v28, {sr(WS,4)}, s40 offen sc1
      buffer_store_dwordx4 v[12:15], v28, {sr(WS,4)}, s41 offen sc1
      s_mov_b64 exec, -1""")
g.label("L_FFNe")
stamp(5)
wo_setup(); h4_setup()
g("s_add_u32 s49, s48, 512")
lds_wait(F_ISS, 2, 40, sleep=2)
b1_gate()
wo_gate()
load_block(128, 6, 44, 49, 42, 1280, TH)
g("s_waitcnt vmcnt(0)")
perm_block(128, 32, KORD)
h4_warm(8, [4])
lds_wait(F_LT, 8, 40, sleep=2)
rl_wait()
lds_wait(F_IB, 8, 40, sleep=1)
g("s_setprio 2")
h4_wait(8)
stamp(6)
wo_compute(8, [32], [4], 48)
stamp(7)
g.label("L_G_end")
if OPT["pad"]:
    g(f"""v_readfirstlane_b32 s40, v{VTS}
          s_cmp_lt_u32 s{sWG}, 8
          s_cbranch_scc0 L_END
          s_add_u32 s40, s40, {OPT["pad"]}""")
    if OPT["padmin"]:
        g(f"""s_load_dwordx2 s[44:45], s[0:1], 80
          s_mov_b32 s46, 256
          s_mov_b32 s47, 0x20000
          v_not_b32 v8, v{VTS}
          s_mov_b64 exec, 1
          s_waitcnt lgkmcnt(0)
          buffer_atomic_umax v8, v{VZ}, s[44:47], 0 offen
          s_waitcnt vmcnt(0)
          s_sleep 100
          buffer_load_dword v8, v{VZ}, s[44:47], 0 offen sc1
          s_waitcnt vmcnt(0)
          v_not_b32 v8, v8
          s_nop 1
          v_readfirstlane_b32 s40, v8
          s_nop 3
          s_add_u32 s40, s40, {OPT["pad"]}""")
    g(f"""L_padl:
          s_memrealtime s[42:43]
          s_waitcnt lgkmcnt(0)
          s_sub_u32 s41, s42, s40
          s_cmp_lt_i32 s41, 0
          s_cbranch_scc1 L_padl""")
ts_flush("G")
g.label("L_END")
g("s_endpgm")
g.l.append(".p2align 12")
g.label("L_CODE_END")

s = file_head([f"; @launch grid=(256,1,1) block=(768,1,1) lds={LDS_BYTES}"])
s += f""".text
.globl {K}
.p2align 12
.type {K},@function
{K}:
"""
s += g.text()
s += kernel_desc(K, 168, 102)
open(OUT, "w").write(s)
print(OUT, "lines", len(g.l), "ws_end", hex(WS_END))
```

```python
import sys, math, struct
from asmlib import *

OPT = dict(ts=0, stop=99, inflight=16, gate=12, ksmap=1, gthr=32, wogate=0, b1gate=0, pol=1, h2iss=2, amax=0, bk2=4, bk3=2, dbg=0, bk4=0, bk5=3, d3=0, d3b=0, d1=8, d5=8, fast4=1, warm=1, pad=0, padmin=0, padat=-1, padw=0, tlb=0, d2=8, fgate=2, fthr=20, ukgate=0, h2land=3, forder=0, fast1=0, dh=8, ldw=0, d3a=12, hl=0, rng=64, dl=8, uvgate=0, bkh=4, st1=2, osc=1, d4=14, recl=1, rot=5, fthr2=20)
for a in sys.argv[2:]:
    k, v = a.split("=")
    assert k in OPT, k
    OPT[k] = int(v)
OUT = sys.argv[1] if len(sys.argv) > 1 else "k.s"
NT = "nt" if OPT["pol"] else ""

def f32(x): return struct.unpack("<I", struct.pack("<f", x))[0]

EPOCH = 0
QM   = 0x1000
QF   = QM + 0x80000
HD   = QF + 0x80000
QAM  = HD + 0x10000
CXM  = QAM + 0x10000
HM   = CXM + 0x20000
YM   = HM + 0x10000
SM   = YM + 20 * 4096
IB   = SM + 20 * 16384
WS_END = IB + 256 * 8 * 2048
TSOFF = 0x1000000
WS_REC = 0x2000000 if (OPT["ts"] and not OPT["dbg"]) else WS_END

(F_Q, F_QA, F_LAND, F_ISS, F_H2I, F_STG, F_MAX, F_P, F_IB, F_UK, F_TAG, F_TAGV, F_QP, F_QI, F_SD, F_FIN) = [4 * i for i in range(16)]
RMAX = 0x40
RL   = 0x80
F_H3, F_ML, F_QAP, F_XN, F_L, F_RLV, RLINV, F_LT, F_LA, F_LB, F_WQ, F_PC = 0xC0, 0xC4, 0xC8, 0xCC, 0xD0, 0xD4, 0xD8, 0xDC, 0xE0, 0xE4, 0xE8, 0xEC
REDQ = 0x100
REDQA = 0x600
PL   = 0x1000
RIB  = 0x2000
RFIN = PL
MLT  = 0x2A00
LT   = 0x2C00
RMX  = 0x2E00
RLP  = REDQ
XNL  = 0x3000
QL   = 0x3800
KV   = 0x7800
LDS_BYTES = KV + 0x20000

SCALE = (128 ** -0.5) * math.log2(math.e)
LIM_LDS = 1 << 16
LIM_MEM = 1 << 13

class G:
    def __init__(s): s.l = []; s.n = 0
    def __call__(s, x):
        for ln in x.strip("\n").split("\n"):
            if ln.strip(): s.l.append("  " + ln.strip())
    def label(s, x): s.l.append(x + ":")
    def nl(s, p): s.n += 1; return f"L_{p}_{s.n}"
    def text(s): return "\n".join(s.l) + "\n"
g = G()

def vr(a, n): return f"v[{a}:{a+n-1}]"
def sr(a, n): return f"s[{a}:{a+n-1}]"

LANE, VZ, VONE, VT, vN, vKG = 0, 1, 2, 3, 4, 5
VTS = 167
VL16 = 166
sWG, sWV = 2, 3
WS = 4
SR = 8
sXCD, sSLOT, sHF, sJ = 12, 13, 14, 15
P_X, P_KV, P_WQ, P_WUK, P_WUV, P_WO, P_BX, P_W1, P_W2, P_OUT, P_DBG, P_WS = [16 + 2 * i for i in range(12)]
sTAG, sCNT = 28, 29
sPLO, sPHI = 100, 101
DPPM = "row_mask:0xf bank_mask:0xf"

def srd(base, ptr, nbytes):
    g(f"""s_mov_b32 s{base}, s{ptr}
          s_mov_b32 s{base+1}, s{ptr+1}
          s_mov_b32 s{base+2}, {nbytes}
          s_mov_b32 s{base+3}, 0x20000""")

def stamp(k):
    if OPT["padat"] == k:
        g(f"s_memrealtime vcc\ns_waitcnt lgkmcnt(0)\nv_writelane_b32 v{VTS}, vcc_lo, 0")
    if not OPT["ts"]: return
    g(f"""s_memrealtime vcc
          s_waitcnt lgkmcnt(0)
          v_writelane_b32 v{VTS}, vcc_lo, {k}""")

def cnt(k, sreg):
    if OPT["ts"]: g(f"v_writelane_b32 v{VTS}, s{sreg}, {k}")

def ts_flush(role="A"):
    if OPT["padat"] >= 0:
        Lp, Le = g.nl("pad"), g.nl("pade")
        g(f"v_readlane_b32 s40, v{VTS}, 0")
        if OPT["padw"] >= 8: g(f"s_cmp_eq_u32 s{sWV}, {OPT['padw']}")
        else: g(f"s_cmp_lt_u32 s{sWV}, 8")
        g(f"""s_cbranch_scc0 {Le}
              s_cmp_eq_u32 s40, 0
              s_cbranch_scc1 {Le}
              s_add_u32 s40, s40, 3000
              {Lp}:
              s_sleep 8
              s_memrealtime s[42:43]
              s_waitcnt lgkmcnt(0)
              s_sub_u32 s41, s42, s40
              s_cmp_lt_i32 s41, -40
              s_cbranch_scc1 {Lp}
              {Lp}b:
              s_memrealtime s[42:43]
              s_waitcnt lgkmcnt(0)
              s_sub_u32 s41, s42, s40
              s_cmp_lt_i32 s41, 0
              s_cbranch_scc1 {Lp}b
              {Le}:""")
    if not OPT["ts"]: return
    if OPT["dbg"]:
        sel = {"A": {1: 0, 2: 16, 6: 6, 7: 8, 8: 10, 9: 22, 10: 11, 11: 13, 14: 20, 15: 21}, "G": {3: 1, 4: 2, 5: 3, 12: 7, 13: 9}}[role]
        Ls = g.nl("dbg")
        g(f"""s_cmp_eq_u32 s{sWV}, {0 if role == "A" else 9}
              s_cbranch_scc0 {Ls}
              s_load_dwordx2 s[40:41], s[0:1], 80
              s_mov_b64 exec, -1
              v_mov_b32 v8, 0
              s_mov_b32 s42, 256
              s_mov_b32 s43, 0x20000""")
        for dst, src in sel.items():
            g(f"v_readlane_b32 s44, v{VTS}, {src}\ns_nop 3\nv_writelane_b32 v8, s44, {dst}")
        if role == "A":
            g(f"v_readlane_b32 s44, v{VTS}, 0\ns_nop 3\ns_not_b32 s44, s44\nv_writelane_b32 v8, s44, 0")
        g(f"""v_lshlrev_b32 v{VT}, 2, v{LANE}
              s_mov_b64 exec, 0xffff
              s_waitcnt lgkmcnt(0)
              buffer_atomic_umax v8, v{VT}, s[40:43], 0 offen""")
        g.label(Ls)
        return
    g(f"""s_mul_i32 s{sCNT}, s{sWG}, 12
          s_add_u32 s{sCNT}, s{sCNT}, s{sWV}
          s_lshl_b32 s{sCNT}, s{sCNT}, 7
          s_add_u32 s{sCNT}, s{sCNT}, {TSOFF}
          s_mov_b64 exec, -1
          s_mov_b32 exec_hi, 0
          v_lshlrev_b32 v{VT}, 2, v{LANE}
          buffer_store_dword v{VTS}, v{VT}, {sr(WS,4)}, s{sCNT} offen""")

def lds_wait(off, target, st, extra="", sleep=0):
    L, Lo = g.nl("w"), g.nl("wo")
    g(f"s_mov_b32 s{sCNT}, {LIM_LDS}")
    if sleep:
        Lf = g.nl("wf")
        g(f"s_branch {Lf}")
    g.label(L)
    if sleep:
        g(f"s_sleep {sleep}")
        g.label(Lf)
    g(f"ds_read_b32 v{VT}, v{VZ} offset:{off}")
    if extra: g(extra)
    g(f"""s_waitcnt lgkmcnt(0)
          v_readfirstlane_b32 s{st}, v{VT}
          s_sub_u32 s{sCNT}, s{sCNT}, 1
          s_cbranch_scc1 {Lo}
          s_cmp_ge_u32 s{st}, {target}
          s_cbranch_scc0 {L}""")
    g.label(Lo)

def pc_wait(mask, val, st, st2, extra="", sleep=0, off=None):
    L, Lo = g.nl("pw"), g.nl("pwo")
    g(f"s_mov_b32 s{sCNT}, {LIM_LDS}")
    g.label(L)
    if sleep: g(f"s_sleep {sleep}")
    g(f"ds_read_b32 v{VT}, v{VZ} offset:{F_PC if off is None else off}")
    if extra: g(extra)
    g(f"""s_waitcnt lgkmcnt(0)
          v_readfirstlane_b32 s{st}, v{VT}
          s_sub_u32 s{sCNT}, s{sCNT}, 1
          s_cbranch_scc1 {Lo}
          s_and_b32 s{st2}, s{st}, {hex(mask)}
          s_cmp_eq_u32 s{st2}, {hex(val)}
          s_cbranch_scc0 {L}""")
    g.label(Lo)

def land_wait(target, st, vt2, sleep=0):
    L, Lo = g.nl("lw"), g.nl("lwo")
    g(f"s_mov_b32 s{sCNT}, {LIM_LDS}")
    g.label(L)
    g(f"""ds_read_b64 {vr(vt2,2)}, v{VZ} offset:{F_LA}
          s_waitcnt lgkmcnt(0)
          v_min_u32 v{vt2}, v{vt2}, v{vt2+1}
          s_sub_u32 s{sCNT}, s{sCNT}, 1
          v_readfirstlane_b32 s{st}, v{vt2}
          s_cbranch_scc1 {Lo}
          s_cmp_ge_u32 s{st}, {target}
          s_cbranch_scc1 {Lo}""")
    if sleep: g(f"s_sleep {sleep}")
    g(f"s_branch {L}")
    g.label(Lo)

def lds_inc(off):
    g(f"""s_mov_b64 exec, 1
          ds_add_u32 v{VZ}, v{VONE} offset:{off}
          s_mov_b64 exec, -1""")

def get_tag(vtmp):
    lds_wait(F_TAGV, 1, sTAG, extra=f"ds_read_b32 v{vtmp}, v{VZ} offset:{F_TAG}")
    g(f"v_readfirstlane_b32 s{sTAG}, v{vtmp}")

def wave_sum(v, sdst):
    for mod in ("quad_perm:[1,0,3,2]", "quad_perm:[2,3,0,1]", "row_half_mirror", "row_mirror"):
        g(f"s_nop 1\nv_add_f32_dpp v{v}, v{v}, v{v} {mod} {DPPM}")
    g(f"s_nop 1\nv_add_f32_dpp v{v}, v{v}, v{v} row_bcast:15 row_mask:0xa bank_mask:0xf")
    g(f"s_nop 1\nv_add_f32_dpp v{v}, v{v}, v{v} row_bcast:31 row_mask:0xc bank_mask:0xf")
    g(f"s_nop 1\nv_readlane_b32 s{sdst}, v{v}, 63")

def rne(v):
    g(f"v_cvt_pk_bf16_f32 v{v}, v{v}, v{v}\nv_and_b32 v{v}, 0xffff0000, v{v}")

def ln_stats(x5, tmp, sA, sB, vM, vR):
    u = tmp
    for k in range(5):
        g(f"v_lshlrev_b32 v{u+2*k}, 16, v{x5+k}\nv_and_b32 v{u+2*k+1}, 0xffff0000, v{x5+k}")
    a = u + 10
    g(f"v_add_f32 v{a}, v{u}, v{u+1}")
    for k in range(2, 10): g(f"v_add_f32 v{a}, v{a}, v{u+k}")
    wave_sum(a, sA)
    g(f"s_nop 1\nv_mov_b32 v{vM}, s{sA}\nv_mul_f32 v{vM}, {hex(f32(1.0/640))}, v{vM}")
    for k in range(10): g(f"v_sub_f32 v{u+k}, v{u+k}, v{vM}")
    g(f"v_mul_f32 v{a}, v{u}, v{u}")
    for k in range(1, 10): g(f"v_fmac_f32 v{a}, v{u+k}, v{u+k}")
    wave_sum(a, sB)
    g(f"s_nop 1\nv_mov_b32 v{vR}, s{sB}\nv_mul_f32 v{vR}, {hex(f32(1.0/640))}, v{vR}")
    rne(vR)
    g(f"v_add_f32 v{vR}, {hex(f32(1e-5))}, v{vR}")
    rne(vR)
    g(f"v_sqrt_f32 v{vR}, v{vR}\ns_nop 0")
    rne(vR)
    g(f"v_rcp_f32 v{vR}, v{vR}")
    rne(vM)

def ln_frag(src, dst, t0, vM, vR):
    for k in range(4):
        g(f"""v_lshlrev_b32 v{t0}, 16, v{src+k}
              v_and_b32 v{t0+1}, 0xffff0000, v{src+k}
              v_sub_f32 v{t0}, v{t0}, v{vM}
              v_sub_f32 v{t0+1}, v{t0+1}, v{vM}
              v_cvt_pk_bf16_f32 v{t0+1}, v{t0}, v{t0+1}
              v_lshlrev_b32 v{t0}, 16, v{t0+1}
              v_and_b32 v{t0+1}, 0xffff0000, v{t0+1}
              v_mul_f32 v{t0}, v{t0}, v{vR}
              v_mul_f32 v{t0+1}, v{t0+1}, v{vR}
              v_cvt_pk_bf16_f32 v{dst+k}, v{t0}, v{t0+1}""")

def perm_block(raw, out, order=(0, 1, 2, 3)):
    for p in range(4):
        e = 2 * order[p]
        for d in range(2):
            g(f"v_perm_b32 v{out+4*(2*d)+p}, v{raw+2*(e+1)+d}, v{raw+2*e+d}, s{sPLO}")
            g(f"v_perm_b32 v{out+4*(2*d+1)+p}, v{raw+2*(e+1)+d}, v{raw+2*e+d}, s{sPHI}")

class Landing:
    pending = False
    n = 0
LD = Landing()

def load_block(raw, voff, srdb, sbase, stmp, rowbytes, thr=0, rows=None):
    per = 4095 // rowbytes + 1
    cur = None
    for e in range(8):
        grp, rem = divmod(e, per)
        if grp != cur:
            if grp == 0: so = sbase
            else:
                g(f"s_add_u32 s{stmp}, s{sbase}, {(rows[e] if rows else grp*per)*rowbytes}"); so = stmp
            cur = grp
        if thr:
            g(f"s_waitcnt vmcnt({thr-1})")
            if LD.pending and LD.n >= thr - 1:
                land_now()
        off = f" offset:{rem*rowbytes}" if rem else ""
        g(f"buffer_load_dwordx2 {vr(raw+2*e,2)}, v{voff}, {sr(srdb,4)}, s{so} offen{off} {NT}")
        LD.n += 1

def land_now():
    g(f"ds_write_b32 v{VZ}, v{VONE} offset:{F_UK}")
    stamp(2)
    LD.pending = False

def land_flush():
    if LD.pending:
        g(f"s_waitcnt vmcnt({LD.n})")
        land_now()

def tagcheck(regs, acc):
    g(f"v_xor_b32 v{acc}, s{sTAG}, v{regs[0]}")
    for r in regs[1:]:
        g(f"v_bitop3_b32 v{acc}, v{r}, s{sTAG}, v{acc} bitop3:0xbe")
    g(f"v_cmp_ne_u32 vcc, 0, v{acc}")

def poll_loads(nm, loads, tags, scnt, acc=VT, sleep=0, mask=True, b8=False, onfail=""):
    L, Lo = g.nl(nm), g.nl(nm + "o")
    g(f"s_mov_b32 s{scnt}, {LIM_MEM}")
    g.label(L)
    g(loads)
    g("s_waitcnt vmcnt(0)")
    (tagcheck8 if b8 else tagcheck)(tags, acc)
    g(f"s_cbranch_vccz {Lo}")
    if onfail: g(onfail)
    if mask: g("s_mov_b64 exec, vcc")
    if sleep: g(f"s_sleep {sleep}")
    g(f"""s_sub_u32 s{scnt}, s{scnt}, 1
          s_cbranch_scc0 {L}""")
    g.label(Lo)
    if mask: g("s_mov_b64 exec, -1")

def flag16_wait(nm, ap):
    L, Lo = g.nl(nm), g.nl(nm + "o")
    g(f"s_mov_b32 s{sCNT}, {LIM_MEM}\ns_lshl_b32 s18, s{sTAG}, 4")
    g.label(L)
    g(f"""s_load_dwordx16 s[48:63], s[{ap}:{ap+1}], 0 glc
          s_sub_u32 s{sCNT}, s{sCNT}, 1
          s_cbranch_scc1 {Lo}
          s_waitcnt lgkmcnt(0)
          s_add_u32 s19, s48, s49""")
    for k in range(2, 16): g(f"s_add_u32 s19, s19, s{48+k}")
    g(f"s_cmp_eq_u32 s19, s18\ns_cbranch_scc0 {L}")
    g.label(Lo)
    g("s_waitcnt lgkmcnt(0)")

sTB = 66
def tagbytes():
    g(f"""s_and_b32 s{sTB}, s{sTAG}, 1
          s_mul_i32 s{sTB}, s{sTB}, 0x01010101
          s_and_b32 s{sTB+1}, s{sTAG}, 0xfefefefe
          s_or_b32 s{sTB}, s{sTB}, s{sTB+1}
          s_lshr_b32 s{sTB+1}, s{sTB}, 8
          s_lshr_b32 s{sTB+2}, s{sTB}, 16
          s_lshr_b32 s{sTB+3}, s{sTB}, 24""")
def tagput(regs, vmask):
    for d, r in enumerate(regs): g(f"v_bfi_b32 v{r}, v{vmask}, s{sTB+d}, v{r}")
def tagcheck8(bases, acc):
    first = True
    for b in bases:
        for d in range(4):
            if first: g(f"v_xor_b32 v{acc}, s{sTB+d}, v{b+d}"); first = False
            else: g(f"v_bitop3_b32 v{acc}, v{b+d}, s{sTB+d}, v{acc} bitop3:0xbe")
    g(f"v_and_b32 v{acc}, 0xff, v{acc}\nv_cmp_ne_u32 vcc, 0, v{acc}")

def fswz(dst, i, t):
    g(f"""v_lshrrev_b32 v{t}, 1, v{i}
          v_xor_b32 v{dst}, v{t}, v{i}
          v_and_b32 v{dst}, 4, v{dst}
          v_and_or_b32 v{dst}, v{i}, 2, v{dst}
          v_bfe_u32 v{t}, v{i}, 3, 1
          v_or_b32 v{dst}, v{dst}, v{t}""")

def sum_groups(base, n):
    step = 1
    while step < n:
        for a in range(0, n - step, 2 * step):
            g(f"v_pk_add_f32 {vr(base+4*a,2)}, {vr(base+4*a,2)}, {vr(base+4*(a+step),2)}")
            g(f"v_pk_add_f32 {vr(base+4*a+2,2)}, {vr(base+4*a+2,2)}, {vr(base+4*(a+step)+2,2)}")
        step *= 2

def red16(regs, full=True):
    for mod in ("row_ror:4", "row_ror:8"):
        g("s_nop 1")
        for r in regs: g(f"v_add_f32_dpp v{r}, v{r}, v{r} {mod} {DPPM}")
    for sw in (("v_permlane16_swap_b32", "v_permlane32_swap_b32") if full else ("v_permlane16_swap_b32",)):
        for r in regs: g(f"v_mov_b32 v{r+1}, v{r}")
        g("s_nop 1")
        for r in regs: g(f"{sw} v{r}, v{r+1}")
        for r in regs: g(f"v_add_f32 v{r}, v{r}, v{r+1}")

def global_max(dst, t0):
    g(f"""v_max_f32 v{dst}, v{t0}, v{t0+1}""")
    for mod in ("quad_perm:[1,0,3,2]", "quad_perm:[2,3,0,1]", "row_half_mirror", "row_mirror"):
        g(f"s_nop 1\nv_max_f32_dpp v{dst}, v{dst}, v{dst} {mod} {DPPM}")
    for sw in ("v_permlane16_swap_b32", "v_permlane32_swap_b32"):
        g(f"v_mov_b32 v{dst+1}, v{dst}\ns_nop 1\n{sw} v{dst}, v{dst+1}\nv_max_f32 v{dst}, v{dst}, v{dst+1}")

def mfma(d, a, b, first):
    g(f"v_mfma_f32_16x16x32_bf16 {vr(d,4)}, {vr(a,4)}, {vr(b,4)}, {'0' if first else vr(d,4)}")

K = NAME + "_kernel"
g(f"""s_load_dwordx16 s[16:31], s[0:1], 0
      s_load_dwordx8 s[32:39], s[0:1], 64
      s_cmp_ge_u32 s{sWG}, 256
      s_cbranch_scc1 L_END
      v_lshrrev_b32 v{VT}, 6, v0
      v_and_b32 v{LANE}, 63, v0
      v_readfirstlane_b32 s{sWV}, v{VT}
      v_mov_b32 v{VZ}, 0
      v_lshrrev_b32 v{vKG}, 4, v{LANE}
      s_cmp_eq_u32 s{sWV}, 7
      s_cbranch_scc0 L_nopf
      s_getpc_b64 s[44:45]
      L_pc:
      s_sub_u32 s44, s44, L_pc-{K}
      s_subb_u32 s45, s45, 0
      s_and_b32 s41, s{sWG}, 0xf8
      v_add_u32 v10, s41, v{LANE}
      v_lshlrev_b32 v10, 7, v10
      v_cmp_gt_u32 vcc, L_CODE_END-{K}, v10
      s_and_b64 exec, vcc, 0xff
      s_cbranch_execz L_nopf2
      global_load_dword v159, v10, s[44:45]
      L_nopf2:
      s_mov_b64 exec, -1
      L_nopf:
      v_mov_b32 v{VONE}, 1
      v_and_b32 v{vN}, 15, v{LANE}
      s_and_b32 s{sXCD}, s{sWG}, 7
      s_lshr_b32 s{sSLOT}, s{sWG}, 3
      s_lshr_b32 s{sHF}, s{sSLOT}, 3
      s_lshl_b32 s{sJ}, s{sXCD}, 2
      s_add_u32 s{sHF}, s{sHF}, s{sJ}
      s_and_b32 s{sJ}, s{sSLOT}, 7
      s_mov_b32 s{sPLO}, 0x05040100
      s_mov_b32 s{sPHI}, 0x07060302""")
if OPT["ts"] or OPT["padat"] >= 0:
    g(f"v_mov_b32 v{VTS}, 0")
    stamp(0)
if OPT["pad"]:
    g(f"s_memrealtime vcc\ns_waitcnt lgkmcnt(0)\nv_mov_b32 v{VTS}, vcc_lo")
g(f"""s_cmp_ge_u32 s{sWV}, 6
      s_cbranch_scc1 L_OTH
      s_setprio 2
      v_lshlrev_b32 v24, 16, v{vKG}
      v_lshl_add_u32 v24, v{vN}, 3, v24       ; + n*8
      v_mul_u32_u24 v6, 20, v{LANE}
      s_lshr_b32 s40, s{sJ}, 1                ; mq
      s_mul_i32 s40, s40, 160
      s_lshl_b32 s41, s{sWV}, 5
      s_add_u32 s40, s40, s41
      s_lshl_b32 s41, s40, 13                 ; row0*8192
      s_lshl_b32 s42, s{sHF}, 8
      s_add_u32 s41, s41, s42
      s_and_b32 s42, s{sJ}, 1
      s_lshl_b32 s42, s42, 7
      s_add_u32 s41, s41, s42                 ; w_q soffset
      s_mov_b32 s46, 5242880
      s_mov_b32 s47, 0x20000
      s_mov_b32 s{SR+2}, 1280
      s_mov_b32 s{SR+3}, 0x20000
      s_cmp_eq_u32 s{sWV}, 5
      s_cbranch_scc0 L_A
      s_setprio 3
      s_waitcnt lgkmcnt(0)
      s_mov_b32 s{SR}, s{P_X}
      s_mov_b32 s{SR+1}, s{P_X+1}
      buffer_load_dwordx4 v[8:11], v6, {sr(SR,4)}, 0 offen
      buffer_load_dword v12, v6, {sr(SR,4)}, 0 offen offset:16
      s_barrier
      s_branch L_LN""")
g.label("L_A")
g(f"""s_waitcnt lgkmcnt(0)
      s_mov_b32 s44, s{P_WQ}
      s_mov_b32 s45, s{P_WQ+1}
      s_nop 1""")
load_block(32, 24, 44, 41, 42, 8192)
g("s_barrier")
lds_inc(F_QI)
srd(WS, P_WS, WS_REC)
g(f"""s_lshl_b32 s40, s40, 1
      v_lshlrev_b32 v112, 4, v{vKG}
      v_add_u32 v112, s40, v112
      v_lshlrev_b32 v113, 4, v{vN}
      s_lshl_b32 s40, s{sWV}, 8
      v_add_u32 v113, s40, v113
      s_branch L_A_q""")
g.label("L_LN")
srd(WS, P_WS, WS_REC)
g(f"v_add_u32 v6, {XNL}, v6\ns_waitcnt vmcnt(0)")
stamp(16)
U, E, Dd = 32, 44, 56
for k in range(5):
    g(f"v_lshlrev_b32 v{U+2*k}, 16, v{8+k}\nv_and_b32 v{U+2*k+1}, 0xffff0000, v{8+k}")
g(f"""v_pk_add_f32 v[14:15], {vr(U,2)}, {vr(U+2,2)}
      v_pk_add_f32 v[16:17], {vr(U+4,2)}, {vr(U+6,2)}
      v_pk_add_f32 v[14:15], v[14:15], {vr(U+8,2)}
      v_pk_add_f32 v[14:15], v[14:15], v[16:17]
      v_add_f32 v14, v14, v15""")
wave_sum(14, 40)
g(f"""s_nop 1
      v_mov_b32 v18, {hex(f32(-1.0/640))}
      v_mul_f32 v18, s40, v18                 ; -mean
      v_mov_b32 v19, v18""")
for k in range(5): g(f"v_pk_add_f32 {vr(E+2*k,2)}, {vr(U+2*k,2)}, v[18:19]")
g(f"v_pk_mul_f32 v[14:15], {vr(E,2)}, {vr(E,2)}")
for k in range(1, 5): g(f"v_pk_fma_f32 v[14:15], {vr(E+2*k,2)}, {vr(E+2*k,2)}, v[14:15]")
g(f"""v_cvt_pk_bf16_f32 v20, v18, v18
      v_add_f32 v14, v14, v15
      v_and_b32 v20, 0xffff0000, v20
      v_mov_b32 v21, v20""")
fill = [f"v_pk_add_f32 {vr(E+2*k,2)}, {vr(U+2*k,2)}, v[20:21]" for k in range(5)]
fill += [f"v_cvt_pk_bf16_f32 v{8+k}, v{E+2*k}, v{E+2*k+1}" for k in range(5)]
fill += [x for k in range(5) for x in (f"v_lshlrev_b32 v{Dd+2*k}, 16, v{8+k}", f"v_and_b32 v{Dd+2*k+1}, 0xffff0000, v{8+k}")]
steps = [f"v_add_f32_dpp v14, v14, v14 {m} {DPPM}" for m in ("quad_perm:[1,0,3,2]", "quad_perm:[2,3,0,1]", "row_half_mirror", "row_mirror")]
steps += ["v_add_f32_dpp v14, v14, v14 row_bcast:15 row_mask:0xa bank_mask:0xf", "v_add_f32_dpp v14, v14, v14 row_bcast:31 row_mask:0xc bank_mask:0xf", "v_readlane_b32 s42, v14, 63"]
for st_ in steps:
    g(st_); g(fill.pop(0)); g(fill.pop(0))
g(f"""v_mov_b32 v22, {hex(f32(1.0/640))}
      v_mul_f32 v22, s42, v22""")
rne(22)
g(f"v_add_f32 v22, {hex(f32(1e-5))}, v22")
rne(22)
g("v_sqrt_f32 v22, v22"); g(fill.pop(0))
rne(22)
g("v_rcp_f32 v22, v22")
while fill: g(fill.pop(0))
g("v_mov_b32 v23, v22")
for k in range(5): g(f"v_pk_mul_f32 {vr(Dd+2*k,2)}, {vr(Dd+2*k,2)}, v[22:23]")
for k in range(5): g(f"v_cvt_pk_bf16_f32 v{8+k}, v{Dd+2*k}, v{Dd+2*k+1}")
g(f"""ds_write2_b32 v6, v8, v9 offset0:0 offset1:1
      ds_write2_b32 v6, v10, v11 offset0:2 offset1:3
      ds_write_b32 v6, v12 offset:16
      ds_write_b32 v{VZ}, v{VONE} offset:{F_XN}""")
stamp(17)
g("s_branch L_A_q")
g.label("L_OTH")
g(f"""s_cmp_eq_u32 s{sWV}, 6
      s_cbranch_scc0 L_noinit
      v_lshlrev_b32 v8, 2, v{LANE}
      ds_write_b32 v8, v{VZ}
      s_waitcnt lgkmcnt(0)
      L_noinit:
      s_cmp_eq_u32 s{sWV}, 9
      s_cbranch_scc1 L_G9
      s_barrier
      s_cmp_lt_u32 s{sWV}, 8
      s_cbranch_scc0 L_OTH2
      s_waitcnt lgkmcnt(0)""")
srd(WS, P_WS, WS_REC)
if OPT["tlb"]:
    g(f"""s_cmp_eq_u32 s{sWV}, 7
          s_cbranch_scc0 L_A_q
          s_and_b32 s40, s{sSLOT}, 7
          s_lshl_b32 s40, s40, 6
          s_lshr_b32 s41, s{sSLOT}, 3             ; 0..3
          s_lshl_b32 s42, s41, 20
          s_add_u32 s42, s42, s40
          s_and_b32 s43, s41, 1
          s_lshl_b32 s43, s43, 20
          s_add_u32 s43, s43, s40
          s_lshl_b32 s44, s{sXCD}, 21
          s_add_u32 s44, s44, s43
          s_add_u32 s45, s40, 0x400000
          s_add_u32 s46, s40, 0x200000
          s_add_u32 s47, s43, 0x400000
          s_load_dword s52, s[{P_KV}:{P_KV+1}], s44
          s_load_dword s53, s[{P_WUK}:{P_WUK+1}], s42
          s_load_dword s54, s[{P_W1}:{P_W1+1}], s43
          s_load_dword s55, s[{P_W2}:{P_W2+1}], s43
          s_load_dword s56, s[{P_WS}:{P_WS+1}], s42
          s_load_dword s57, s[{P_WUV}:{P_WUV+1}], s42
          s_load_dword s58, s[{P_WO}:{P_WO+1}], s42
          s_load_dword s59, s[{P_WO}:{P_WO+1}], s45
          s_load_dword s60, s[{P_W1}:{P_W1+1}], s46
          s_load_dword s61, s[{P_W2}:{P_W2+1}], s46
          s_load_dword s62, s[{P_WS}:{P_WS+1}], s47
          s_load_dword s63, s[{P_OUT}:{P_OUT+1}], 0
          s_waitcnt lgkmcnt(0)""")
g("s_branch L_A_q")
g.label("L_OTH2")
g(f"""      s_cmp_eq_u32 s{sWV}, 9
      s_cbranch_scc1 L_G9
      s_cmp_eq_u32 s{sWV}, 11
      s_cbranch_scc1 L_FFN""")
g(f"v_lshrrev_b32 v32, 3, v{LANE}")
fswz(33, 32, 34)
g(f"""v_and_b32 v34, 7, v{LANE}
      v_xor_b32 v33, v33, v34
      v_lshlrev_b32 v33, 4, v33
      v_lshl_add_u32 v36, v32, 10, v33
      s_bfe_u32 s43, s{sWV}, 0x10001
      s_and_b32 s40, s43, 1
      s_mul_i32 s40, s40, 80
      v_xor_b32 v36, s40, v36
      s_lshr_b32 s41, s{sSLOT}, 1""")
if OPT["ksmap"] == 0:
    g(f"s_lshl_b32 s41, s41, 3\ns_add_u32 s41, s41, s{sXCD}             ; ks")
else:
    g(f"s_lshl_b32 s42, s{sXCD}, 4\ns_add_u32 s41, s41, s42             ; ks")
g(f"""s_mul_i32 s51, s41, {OPT["rot"]}
      s_add_u32 s51, s51, s43
      s_lshl_b32 s51, s51, 13
      s_and_b32 s51, s51, 0x1ffff
      s_lshl_b32 s52, s41, 17                 ; ks*128KB
      s_add_u32 s41, s52, s51
      s_lshl_b32 s42, s43, 10
      s_add_u32 s42, s42, {KV}
      s_waitcnt lgkmcnt(0)""")
srd(44, P_KV, 16777216)
srd(WS, P_WS, WS_REC)
if OPT["gate"]:
    lds_wait(F_WQ if OPT["gate"] < 10 else F_Q, OPT["gate"] % 10, 40, sleep=1)
stamp(8)
NI = OPT["inflight"]
assert 1 <= NI <= 32
g(f"""s_lshl_b32 s48, s43, 2
      v_mov_b32 v37, s48
      s_mov_b32 s43, 0""")
g.label("L_ld")
for k in range(16):
    cb, hi = k & 7, k >> 3
    g(f"s_add_u32 m0, s42, {cb*(16384-128) + hi*2048}")
    if k == 8: g(f"s_add_u32 s51, s51, {2*8192}\ns_and_b32 s51, s51, 0x1ffff\ns_add_u32 s41, s52, s51")
    g(f"s_waitcnt vmcnt({NI-1})")
    if k == (NI - 1) % 16:
        g(f"""s_sub_u32 s48, s43, {(NI - 1) // 16}
              s_max_i32 s48, s48, 0
              v_mov_b32 v38, s48
              ds_write_b32 v37, v38 offset:{F_LA}""")
    g(f"buffer_load_dwordx4 v36, {sr(44,4)}, s41 offen offset:{cb*128} {NT} lds")
g(f"""s_add_u32 s51, s51, {2*8192}
      s_and_b32 s51, s51, 0x1ffff
      s_add_u32 s41, s52, s51
      s_add_u32 s42, s42, {4*1024}
      s_add_u32 s43, s43, 1
      s_cmp_lt_u32 s43, 4
      s_cbranch_scc1 L_ld""")
lds_inc(F_ISS)
stamp(1)
g(f"""v_mov_b32 v38, 3
      v_mov_b32 v39, 4
      s_waitcnt vmcnt(16)
      ds_write_b32 v37, v38 offset:{F_LA}
      s_waitcnt vmcnt(0)
      ds_write_b32 v37, v39 offset:{F_LA}""")
stamp(2)
g("s_branch L_G")
g.label("L_FFN")
XF = 8
g("s_waitcnt lgkmcnt(0)")
srd(WS, P_WS, WS_REC)
srd(SR, P_WUK, 4194304)
g(f"""v_xor_b32 v8, v{vN}, v{vKG}
      v_lshlrev_b32 v8, 4, v8
      v_lshl_add_u32 v8, v{vKG}, 13, v8
      v_xor_b32 v9, 64, v8
      v_xor_b32 v10, 128, v8
      v_xor_b32 v11, 192, v8
      s_lshl_b32 s48, s{sJ}, 19               ; 64*j rows * 8192
      s_lshl_b32 s49, s{sHF}, 8
      s_add_u32 s48, s48, s49""")
if OPT["ukgate"]: lds_wait(F_WQ, OPT["ukgate"], 40)
else: lds_wait(F_QI, 5, 40)
for u in range(16):
    g(f"s_mov_b32 m0, {QL + u*1024}")
    g(f"s_add_u32 s49, s48, {u*4*8192}")
    g(f"buffer_load_dwordx4 v{8+(u&3)}, {sr(SR,4)}, s49 offen {NT} lds")
if OPT["fgate"] == 9:
    g("s_waitcnt vmcnt(0)"); land_now()
elif OPT["fgate"]:
    lds_wait(F_Q, OPT["fgate"], 40, sleep=1)
if OPT["forder"] == 1: lds_wait(F_ISS, 2, 40, sleep=2)
g("s_branch L_FFNb")
FFN_EARLY_END = True
g.label("L_G9")
g(f"""s_setprio 3
      s_waitcnt lgkmcnt(0)
      s_load_dword s40, s[{P_WS}:{P_WS+1}], {EPOCH}
      s_barrier""")
srd(WS, P_WS, WS_REC)
g(f"""v_lshlrev_b32 v8, 4, v{vN}              ; n*16
      s_lshl_b32 s41, s{sHF}, 3
      s_add_u32 s41, s41, s{sJ}
      s_lshl_b32 s41, s41, 8
      s_add_u32 s43, s41, {QAM}
      s_lshl_b32 s42, s{sHF}, 14
      s_lshl_b32 s41, s{sJ}, 8
      s_add_u32 s42, s42, s41
      s_add_u32 s42, s42, {QM}
      s_add_u32 s45, s42, 8192
      v_lshl_add_u32 v7, v{vKG}, 11, v8
      v_lshlrev_b32 v6, 4, v{LANE}
      s_lshl_b32 s47, s{sHF}, 3
      s_add_u32 s47, s47, s{sJ}
      s_lshl_b32 s47, s47, 11
      s_add_u32 s47, s47, {QF}
      v_mov_b32 v11, 1
      s_waitcnt lgkmcnt(0)
      s_mul_i32 s{sTAG}, s40, 1664525
      s_add_u32 s{sTAG}, s{sTAG}, 1013904223
      v_mov_b32 v10, s{sTAG}
      v_mov_b32 v13, s{sTAG}
      v_mov_b32 v15, s{sTAG}
      ds_write_b64 v{VZ}, v[10:11] offset:{F_TAG}""")
stamp(1)
if OPT["warm"]:
    g(f"""s_and_b32 s46, s{sSLOT}, 1
          s_lshl_b32 s46, s46, 7
          s_add_u32 s46, s46, s{sXCD}
          s_lshl_b32 s46, s46, 7
          s_add_u32 s46, s46, {HD}
          v_lshlrev_b32 v9, 10, v{vN}
          v_and_b32 v16, 1, v{vKG}
          v_lshl_add_u32 v9, v16, 15, v9""")
    lds_wait(F_QI, 5, 40)
    if OPT["fast1"]:
        g(f"""buffer_load_dwordx4 v[16:19], v6, {sr(WS,4)}, s47 offen sc1
              buffer_load_dwordx4 v[16:19], v6, {sr(WS,4)}, s47 offen offset:1024 sc1""")
    g(f"""buffer_load_dwordx4 v[16:19], v7, {sr(WS,4)}, s42 offen sc1
          buffer_load_dwordx4 v[16:19], v7, {sr(WS,4)}, s45 offen sc1
          buffer_load_dwordx4 v[16:19], v8, {sr(WS,4)}, s43 offen sc1
          buffer_load_dword v16, v9, {sr(WS,4)}, s46 offen sc1""")
lds_wait(F_Q, 5, 40)
g("\n".join(f"ds_read_b128 {vr(32+4*b,4)}, v8 offset:{REDQ+256*b}" for b in range(5)))
g("s_waitcnt lgkmcnt(0)")
sum_groups(32, 5)
g(f"""v_cvt_pk_bf16_f32 v12, v32, v33
      v_cvt_pk_bf16_f32 v14, v34, v35""")
if OPT["fast1"]:
    g(f"""buffer_store_dwordx4 v[12:15], v6, {sr(WS,4)}, s47 offen
          ds_write_b32 v{VZ}, v{VONE} offset:{F_QP}
          buffer_store_dwordx4 v[12:15], v6, {sr(WS,4)}, s47 offen offset:1024""")
g(f"""buffer_store_dwordx4 v[12:15], v7, {sr(WS,4)}, s42 offen sc1
      buffer_store_dwordx4 v[12:15], v7, {sr(WS,4)}, s45 offen sc1
      ds_write_b32 v{VZ}, v{VONE} offset:{F_QP}
      v_mov_b32 v20, v12
      v_mov_b32 v21, v13
      v_mov_b32 v22, v14
      v_mov_b32 v23, v15
      s_mov_b64 exec, 0xffff""")
stamp(2)
lds_wait(F_QA, 8, 40)
g("\n".join(f"ds_read_b128 {vr(32+4*b,4)}, v8 offset:{REDQA+256*b}" for b in range(8)))
g("s_waitcnt lgkmcnt(0)")
sum_groups(32, 8)
for r in range(4): g(f"v_mul_f32 v{32+r}, {hex(f32(SCALE))}, v{32+r}")
g(f"""v_cvt_pk_bf16_f32 v12, v32, v33
      v_cvt_pk_bf16_f32 v14, v34, v35
      buffer_store_dwordx4 v[12:15], v8, {sr(WS,4)}, s43 offen sc1
      ds_write_b32 v{VZ}, v{VONE} offset:{F_QAP}
      s_mov_b64 exec, -1
      s_setprio 0""")
stamp(3)
if OPT["uvgate"] < 2: lds_wait(F_H2I if OPT["uvgate"] else F_ISS, 8 if OPT["uvgate"] else 2, 40, sleep=1)
else: g("s_sleep 16")
if OPT["fast1"] and OPT["recl"]:
    g(f"""buffer_store_dwordx4 v[20:23], v6, {sr(WS,4)}, s47 offen sc1
          buffer_store_dwordx4 v[20:23], v6, {sr(WS,4)}, s47 offen offset:1024 sc1""")
g("s_branch L_G_uv9")

g.label("L_A_q")
g("s_setprio 2")
g(f"""s_and_b32 s40, s{sSLOT}, 1              ; g
      s_lshl_b32 s41, s40, 4
      s_lshl_b32 s42, s{sWV}, 1
      s_add_u32 s41, s41, s42                 ; 16g+2w
      s_lshl_b32 s41, s41, 11
      s_add_u32 s20, s41, {QAM}
      s_lshr_b32 s21, s{sSLOT}, 1             ; mi 0..15
      s_lshl_b32 s42, s40, 7                  ; 16g*8
      s_add_u32 s42, s42, s{sWV}
      s_lshl_b32 s42, s42, 3
      s_add_u32 s42, s42, s{sXCD}
      s_lshl_b32 s42, s42, 4
      s_add_u32 s42, s42, s21
      s_lshl_b32 s42, s42, 7
      s_add_u32 s26, s42, {IB}
      s_add_u32 s22, s26, {2*8*8*2048}
      s_lshl_b32 s42, s40, 7                  ; 16g*8
      s_add_u32 s42, s42, s{sXCD}
      s_lshl_b32 s42, s42, 4
      s_add_u32 s42, s42, s21
      s_lshl_b32 s42, s42, 3
      s_add_u32 s27, s42, {HD}
      s_add_u32 s23, s27, 0x8000
      s_lshl_b32 s42, s{sHF}, 3
      s_add_u32 s42, s42, s{sWV}
      s_lshl_b32 s42, s42, 7
      s_add_u32 s31, s42, {HD}
      s_lshl_b32 s42, s{sHF}, 3
      s_add_u32 s42, s42, s{sJ}
      s_lshl_b32 s42, s42, 3
      s_add_u32 s42, s42, s{sWV}              ; (h*8+j)*8+w
      s_lshl_b32 s30, s42, 11
      s_add_u32 s30, s30, {IB}
      s_lshl_b32 s42, s42, 8
      s_add_u32 s42, s42, {QM}
      s_add_u32 s32, s{WS}, s42
      s_addc_u32 s33, s{WS+1}, 0
      s_lshl_b32 s42, s{sHF}, 3
      s_add_u32 s42, s42, s{sWV}
      s_lshl_b32 s42, s42, 11
      s_add_u32 s42, s42, {QF}
      s_add_u32 s8, s{WS}, s42
      s_addc_u32 s9, s{WS+1}, 0
      s_and_b32 s40, s{sWV}, 1
      s_lshl_b32 s40, s40, 3                  ; 8*dhalf'
      v_xor_b32 v6, s40, v{vN}
      v_lshlrev_b32 v6, 4, v6
      v_lshl_add_u32 v6, v{LANE}, 8, v6       ; row*256 + ...
      v_lshlrev_b32 v10, 2, v{LANE}
      s_lshl_b32 s40, s{sWV}, 8
      v_add_u32 v10, s40, v10
      v_mov_b32 v8, 0
      v_mov_b32 v9, 0""")
W = 80
QKA, PVA = 32, 96
fswz(24, vN, 25)
g(f"""v_xor_b32 v24, v24, v{vKG}
      v_lshlrev_b32 v24, 4, v24
      v_and_b32 v25, 7, v{vN}
      v_lshl_add_u32 v24, v25, 7, v24         ; + (i&7)*128
      v_lshrrev_b32 v25, 3, v{vN}
      v_lshl_add_u32 v24, v25, 10, v24        ; + (i>>3)*1024
      s_lshl_b32 s42, s{sWV}, 11
      s_add_u32 s42, s42, {KV}
      v_add_u32 v160, s42, v24
      v_xor_b32 v161, 64, v160
      v_add_u32 v162, 0x10000, v160
      v_add_u32 v163, 0x10000, v161
      v_lshrrev_b32 v26, 2, v{LANE}           ; i16""")
fswz(24, 26, 25)
g(f"""s_and_b32 s42, s{sWV}, 3
      s_lshl_b32 s42, s42, 1
      v_bfe_u32 v25, v{LANE}, 1, 1
      v_or_b32 v25, s42, v25                  ; xi = 2(w&3) + (c'>>1)
      v_xor_b32 v24, v24, v25
      v_lshlrev_b32 v24, 4, v24
      v_and_b32 v25, 1, v{LANE}
      v_lshl_add_u32 v24, v25, 3, v24
      v_and_b32 v25, 7, v26
      v_lshl_add_u32 v24, v25, 7, v24
      v_lshrrev_b32 v25, 3, v26
      v_lshl_add_u32 v24, v25, 10, v24
      s_lshr_b32 s42, s{sWV}, 2
      s_lshl_b32 s42, s42, 14
      s_add_u32 s42, s42, {KV}
      v_add_u32 v164, s42, v24
      v_add_u32 v165, 0x10000, v164
      v_lshrrev_b32 v24, 1, v{vN}             ; xi
      v_and_b32 v25, 4, v24
      v_lshl_or_b32 v25, v25, 1, v24          ; sigma
      s_lshl_b32 s42, s{sWV}, 1
      v_xor_b32 v25, s42, v25
      v_lshlrev_b32 v25, 4, v25
      v_lshl_add_u32 v25, v24, 8, v25         ; + xi*256
      v_lshl_add_u32 v25, v{vKG}, 11, v25     ; + (l>>4)*2048
      v_and_b32 v24, 1, v{LANE}
      v_lshl_add_u32 v28, v24, 3, v25
      v_xor_b32 v29, 16, v28
      v_xor_b32 v30, v{vN}, v{vKG}
      v_lshlrev_b32 v30, 4, v30
      v_lshl_add_u32 v30, v{vKG}, 8, v30
      v_xor_b32 v31, {12*16}, v30             ; odd s
      v_lshlrev_b32 v166, 4, v{LANE}          ; lane*16""")
g(f"s_cmp_ge_u32 s{sWV}, 5\ns_cbranch_scc1 L_A_q2")
for p in range(4):
    g(f"s_waitcnt vmcnt({6-2*p})")
    if p == 0: lds_inc(F_WQ)
    e = 2 * p
    for d in range(2):
        g(f"v_perm_b32 v{48+8*d+p}, v{32+2*(e+1)+d}, v{32+2*e+d}, s{sPLO}")
        g(f"v_perm_b32 v{48+8*d+4+p}, v{32+2*(e+1)+d}, v{32+2*e+d}, s{sPHI}")
stamp(18)
lds_wait(F_XN, 1, 19, extra=f"ds_read_b128 v[116:119], v112 offset:{XNL}")
for t in range(4): mfma(64 + 4 * t, 116, 48 + 4 * t, True)
g(f"""s_nop 6
      v_mov_b32 v65, v68
      v_mov_b32 v66, v72
      v_mov_b32 v67, v76
      s_mov_b64 exec, 0xffff
      ds_write_b128 v113, v[64:67] offset:{REDQ}
      s_mov_b64 exec, 1
      ds_add_u32 v{VZ}, v{VONE} offset:{F_Q}
      s_mov_b64 exec, -1""")
g.label("L_A_q2")
stamp(2)
get_tag(7)
g(f"s_lshl_b32 s18, s{sTAG}, 5              ; 32*TAG")
def wreads():
    for e in range(8):
        if e: g(f"v_xor_b32 v7, {e*16}, v6")
        g(f"ds_read_b128 {vr(W+4*e,4)}, v{6 if e == 0 else 7} offset:{QL}")
lds_wait(F_QP, 1, 19, sleep=1)
if OPT["d1"]: g(f"s_sleep {OPT['d1']}")
g(f"""ds_read_b32 v{VT}, v{VZ} offset:{F_UK}
      s_waitcnt lgkmcnt(0)
      v_readfirstlane_b32 s24, v{VT}
      s_nop 0
      s_cmp_eq_u32 s24, 0
      s_cbranch_scc1 L_now""")
wreads()
g.label("L_now")
stamp(3)
L, Lo = g.nl("h1"), g.nl("h1o")
g(f"s_mov_b32 s{sCNT}, {LIM_MEM}")
g.label(L)
if OPT["fast1"]:
    Lg, Lc = g.nl("h1g"), g.nl("h1c")
    g(f"s_cmp_le_u32 s{sCNT}, {LIM_MEM-8}\ns_cbranch_scc1 {Lg}")
    for k in range(4):
        g(f"s_load_dwordx16 {sr(36+16*k,16)}, s[8:9], {64*k}")
    g(f"s_add_u32 s8, s8, 256\ns_addc_u32 s9, s9, 0\ns_branch {Lc}")
    g.label(Lg)
for k in range(4):
    g(f"s_load_dwordx16 {sr(36+16*k,16)}, s[32:33], {64*k} glc")
if OPT["fast1"]: g.label(Lc)
g(f"""s_sub_u32 s{sCNT}, s{sCNT}, 1
      s_cbranch_scc1 {Lo}
      s_waitcnt lgkmcnt(0)
      s_cmp_eq_u32 s99, s{sTAG}
      s_cbranch_scc0 {L}
      s_add_u32 s19, s37, s39""")
for k in range(2, 32):
    g(f"s_add_u32 s19, s19, s{37+2*k}")
g(f"s_cmp_eq_u32 s19, s18\ns_cbranch_scc0 {L}")
g.label(Lo)
cnt(23, sCNT)
stamp(1)
g(f"""s_cmp_eq_u32 s24, 0
      s_cbranch_scc0 L_havew""")
lds_wait(F_UK, 1, 19)
wreads()
g.label("L_havew")
for k in range(32):
    if k % 4 == 0: g(f"s_waitcnt lgkmcnt({7 - k//4})")
    g(f"v_dot2c_f32_bf16 v{8+(k&1)}, s{36+2*k}, v{W+k}")
g(f"""s_nop 2
      v_add_f32 v8, v8, v9
      ds_write_b32 v10, v8 offset:{REDQA}""")
lds_inc(F_QA)
stamp(4)
def qka_reads():
    for s in range(16):
        cb = s >> 1
        a = 160 + (s & 1) + (2 if cb >= 4 else 0)
        g(f"ds_read_b128 {vr(QKA+4*s,4)}, v{a} offset:{(cb&3)*16384}")
def pva_reads(u):
    for i in range(4):
        for hh in range(2):
            T = 2 * u + hh
            g(f"ds_read_b64_tr_b16 {vr(PVA+16*i+4*u+2*hh,2)}, v{164+(i>>1)} offset:{(i&1)*32768+T*2048}")
h2_loads = "\n".join(f"buffer_load_dwordx4 {vr(8+4*n,4)}, v{VL16}, {sr(WS,4)}, s20 offen offset:{1024*n} sc1" for n in range(4))
g(f"""s_lshr_b32 s42, s{sWV}, 1
      s_lshl_b32 s48, s42, 2
      s_lshl_b32 s48, 1, s48
      s_add_u32 s49, s48, 0x10000
      s_mov_b32 s50, {hex(f32(OPT["rng"]))}
      s_lshl_b32 s42, s42, 10
      s_and_b32 s43, s{sWV}, 1
      s_lshl_b32 s43, s43, 3
      s_add_u32 s42, s42, s43
      v_add_u32 v7, s42, v{VL16}
      v_add_u32 v28, {QL}, v28
      v_add_u32 v29, {QL}, v29
      v_add_u32 v26, 8192, v28
      v_add_u32 v27, 8192, v29
      s_and_b32 s45, s{sTAG}, 1
      s_mul_i32 s45, s45, 0x55555555
      s_and_b32 s44, s{sTAG}, 0xaaaaaaaa
      s_or_b32 s45, s45, s44
      s_mov_b32 s44, 0x00010001""")
lds_wait(F_QAP, 1, 42)
if OPT["d2"]: g(f"s_sleep {OPT['d2']}")
def h2_issue(lv):
    if OPT["h2land"] == lv:
        g(h2_loads); lds_inc(F_H2I); stamp(5)
h2_issue(0)
land_wait(2, 42, 24, sleep=1)
h2_issue(2)
pva_reads(0); pva_reads(1)
land_wait(3, 42, 24, sleep=1)
h2_issue(3)
pva_reads(2)
g(f"s_cmp_lt_u32 s{sWV}, 6\ns_cbranch_scc1 L_qka")
land_wait(4, 42, 24)
g.label("L_qka")
qka_reads()
stamp(6)
L, Lo = g.nl("h2c"), g.nl("h2co")
g(f"s_mov_b32 s43, {LIM_MEM}")
g.label(L)
g("s_waitcnt vmcnt(0)")
tagcheck([9, 11, 13, 15, 17, 19, 21, 23], 24)
g(f"""s_cbranch_vccz {Lo}
      s_sub_u32 s43, s43, 1
      s_cbranch_scc1 {Lo}
      s_sleep {OPT["bk2"]}
      s_mov_b64 exec, vcc""")
g(h2_loads)
g(f"s_mov_b64 exec, -1\ns_branch {L}")
g.label(Lo)
cnt(24, 43)
stamp(7)
for n in range(4):
    g(f"ds_write2_b32 v{[28, 26, 29, 27][n]}, v{8+4*n}, v{10+4*n} offset0:0 offset1:1")
lds_inc(F_STG)
def bread(s): return f"ds_read_b128 {vr(8+4*(s&3),4)}, v{30+(s&1)} offset:{QL+s*1024}"
lds_wait(F_STG, 8, 42)
stamp(8)
g("\n".join(bread(s) for s in range(4)))
SA = 24
for s in range(16):
    g(f"s_waitcnt lgkmcnt({min(3, 15-s)})")
    mfma(SA, QKA + 4 * s, 8 + 4 * (s & 3), s == 0)
    if s + 4 < 16: g(bread(s + 4))
VM = 10
PF, OA = 32, 48
def pread(u): return f"ds_read_b128 {vr(PF+4*u,4)}, v{VL16} offset:{PL+1024*u}"
g("s_nop 7")
for r in range(4): g(f"v_exp_f32 v{12+r}, v{SA+r}")
g(f"""v_max3_f32 v9, v{SA}, v{SA+1}, v{SA+2}
      v_cvt_pk_bf16_f32 v16, v12, v13
      v_cvt_pk_bf16_f32 v17, v14, v15
      v_max_f32 v9, v9, v{SA+3}
      ds_write_b64 v7, v[16:17] offset:{PL}
      v_cmp_nle_f32 vcc, abs(v9), s50
      s_cmp_lg_u64 vcc, 0
      s_cselect_b32 s48, s49, s48
      s_mov_b64 exec, 1
      v_mov_b32 v8, s48
      ds_add_u32 v{VZ}, v8 offset:{F_PC}
      s_mov_b64 exec, -1""")
pva_reads(3)
stamp(15)
TP, IBV = 80, 84
fill = [f"v_lshrrev_b32 v12, 3, v{vN}",
        f"v_lshl_add_u32 v12, v{vKG}, 2, v12      ; head = 4q + (j>>3)",
        f"v_lshlrev_b32 v{IBV}, 17, v12",
        f"v_and_b32 v12, 7, v{vN}",
        f"v_lshl_add_u32 v{IBV}, v12, 4, v{IBV}",
        f"v_and_b32 v12, 3, v{LANE}",
        f"v_lshlrev_b32 v12, 3, v12",
        f"v_lshrrev_b32 v12, v12, s45",
        f"v_and_b32 v13, 0xff, v12", f"v_lshlrev_b32 v12, 15, v13", f"v_or_b32 v12, v12, v13"]
for d in range(4): fill += [f"v_lshrrev_b32 v13, {2*d}, v12", f"v_and_b32 v{TP+d}, s44, v13"]
S1 = 2
for _ in range(3): g(fill.pop(0))
pc_wait(0xff, 0x22, 42, 48)
g("\n".join(pread(u) for u in range(S1)))
for u in range(S1):
    g(f"s_waitcnt lgkmcnt({S1-1-u})")
    for i in range(4):
        mfma(OA + 4 * i, PF + 4 * u, PVA + 16 * i + 4 * u, u == 0)
        for _ in range(2): g(fill.pop(0))
assert not fill
pc_wait(0xffff, 0x2222, 42, 48)
g("\n".join(pread(u) for u in range(S1, 4)))
g(f"s_cmp_lg_u32 s42, 0x2222\ns_cbranch_scc1 L_slow")
stamp(9)
for u in range(S1, 4):
    g(f"s_waitcnt lgkmcnt({3-u})")
    for i in range(4): mfma(OA + 4 * i, PF + 4 * u, PVA + 16 * i + 4 * u, u == 0)
g.label("L_pv2")
GR = 64
g("s_nop 6")
for a in range(2):
    A0, B0, T0 = GR + 4 * a, GR + 4 * a + 2, 72
    for d in range(2):
        g(f"v_perm_b32 v{A0+d}, v{OA+8*d+4+2*a}, v{OA+8*d+2*a}, s{sPHI}")
        g(f"v_perm_b32 v{B0+d}, v{OA+8*d+4+2*a+1}, v{OA+8*d+2*a+1}, s{sPHI}")
    g("s_nop 0")
    for d in range(2): g(f"v_mov_b32_dpp v{T0+d}, v{A0+d} row_ror:8 {DPPM}")
    for d in range(2): g(f"v_mov_b32_dpp v{A0+d}, v{B0+d} row_ror:8 row_mask:0xf bank_mask:0xc")
    for d in range(2): g(f"v_mov_b32_dpp v{B0+d}, v{T0+d} quad_perm:[0,1,2,3] row_mask:0xf bank_mask:0x3")
    for d in range(4): g(f"v_xad_u32 v{A0+d}, v{TP+d}, s44, v{A0+d}")
    for d in range(4): g(f"v_bfi_b32 v{A0+d}, s44, v{TP+d}, v{A0+d}")
    g(f"buffer_store_dwordx4 {vr(A0,4)}, v{IBV}, {sr(WS,4)}, s{26 if a == 0 else 22} offen sc1")
if OPT["wogate"] == 1: lds_inc(F_H3)
stamp(10)
MK = 76
g(f"""v_and_b32 v12, 1, v{LANE}
      v_lshlrev_b32 v12, 4, v12
      v_mov_b32 v13, 0xffff
      v_lshlrev_b32 v13, v12, v13
      v_bfe_u32 v12, v{LANE}, 1, 2""")
for p in range(4):
    g(f"v_cmp_eq_u32 vcc, {p}, v12\ns_nop 1\nv_cndmask_b32 v{MK+p}, v{VZ}, v13, vcc")
g(f"""v_lshlrev_b32 v16, 2, v{vN}
      s_lshl_b32 s42, s{sWV}, 6
      v_add_u32 v16, s42, v16
      v_lshrrev_b32 v17, 3, v{LANE}
      v_lshlrev_b32 v17, 2, v17
      v_add_u32 v17, s42, v17
      v_lshrrev_b32 v18, 3, v{vN}             ; a = j>>3
      s_lshl_b32 s42, s{sWV}, 1
      v_add_u32 v19, s42, v18
      v_mul_u32_u24 v19, 144, v19
      v_and_b32 v20, 7, v{vN}
      v_lshl_add_u32 v19, v20, 4, v19
      v_and_b32 v20, 1, v{vKG}
      v_lshl_add_u32 v19, v20, 3, v19
      v_lshrrev_b32 v20, 1, v{vKG}
      v_cmp_eq_u32 s[46:47], v18, v20
      v_lshlrev_b32 v14, 3, v{LANE}           ; lane*8""")
if OPT["d3"]: g(f"s_sleep {OPT['d3']}")
stamp(22)
IR = 104
ib_loads = f"""buffer_load_dwordx4 {vr(IR,4)}, v{VL16}, {sr(WS,4)}, s30 offen sc1
      buffer_load_dwordx4 {vr(IR+4,4)}, v{VL16}, {sr(WS,4)}, s30 offen offset:1024 sc1"""
def hdr_poll(nm, off, dstoff, flag, after="", mark=False):
    L, Lo = g.nl(nm), g.nl(nm + "o")
    g(f"s_mov_b32 s43, {LIM_MEM}")
    if OPT["bkh"]:
        Lf = g.nl(nm + "f")
        g(f"s_branch {Lf}")
    g.label(L)
    if OPT["bkh"]:
        g(f"s_sleep {OPT['bkh']}")
        g.label(Lf)
    g(f"""s_load_dwordx16 s[52:67], s[24:25], {off} glc
          s_load_dwordx16 s[68:83], s[24:25], {off+64} glc
          s_sub_u32 s43, s43, 1
          s_cbranch_scc1 {Lo}
          s_waitcnt lgkmcnt(0)
          s_add_u32 s19, s53, s55""")
    for k in range(2, 16): g(f"s_add_u32 s19, s19, s{53+2*k}")
    g(f"s_cmp_eq_u32 s19, s18\ns_cbranch_scc0 {L}")
    g.label(Lo)
    g("s_waitcnt lgkmcnt(0)")
    if after: g(after)
    for k in range(16): g(f"v_writelane_b32 v24, s{52+2*k}, {k}")
    g("s_mov_b64 exec, 0xffff")
    if mark:
        g(f"""v_cmp_gt_i32 vcc, 0, v24
              s_cmp_lg_u64 vcc, 0
              s_cselect_b32 s42, 0x101, 1
              v_mov_b32 v25, s42""")
    g(f"""ds_write_b32 v16, v24 offset:{dstoff}
          s_mov_b64 exec, 1
          ds_add_u32 v{VZ}, v{25 if mark else VONE} offset:{flag}
          s_mov_b64 exec, -1""")
g(f"""s_add_u32 s24, s{WS}, s31
      s_addc_u32 s25, s{WS+1}, 0
      s_lshl_b32 s18, s{sTAG}, 4""")
for n in range(2):
    for p in range(4): g(f"v_and_b32 v{88+4*n+p}, 0x3f803f80, v{MK+p}")
if OPT["d3a"]: g(f"s_sleep {OPT['d3a']}")
hdr_poll("h3l", 0x8000, LT, F_LT, after=(f"s_sleep {OPT['d3b']}\n" if OPT["d3b"] else "") + ib_loads, mark=True)
cnt(25, 43)
stamp(11)
pc_wait(0xff, 8, 42, 43, off=F_LT)
g("s_cmp_lg_u32 s42, 8\ns_cbranch_scc1 L_genw")
g.label("L_genw_ret")
L, Lo = g.nl("h3d"), g.nl("h3do")
g(f"s_mov_b32 s43, {LIM_MEM}")
g.label(L)
g(f"s_waitcnt vmcnt(0)\nv_xor_b32 v{VT}, v{IR}, v{TP}")
for k in range(1, 8): g(f"v_bitop3_b32 v{VT}, v{IR+k}, v{TP+(k&3)}, v{VT} bitop3:0xbe")
g(f"""v_and_b32 v{VT}, s44, v{VT}
      v_cmp_ne_u32 vcc, 0, v{VT}
      s_cbranch_vccz {Lo}
      s_sub_u32 s43, s43, 1
      s_cbranch_scc1 {Lo}
      s_lshr_b64 s[48:49], vcc, 4
      s_or_b64 vcc, vcc, s[48:49]
      s_lshr_b64 s[48:49], vcc, 2
      s_or_b64 vcc, vcc, s[48:49]
      s_lshr_b64 s[48:49], vcc, 1
      s_or_b64 vcc, vcc, s[48:49]
      s_and_b32 s48, vcc_lo, 0x01010101
      s_and_b32 s49, vcc_hi, 0x01010101
      s_mul_i32 exec_lo, s48, 0xff
      s_mul_i32 exec_hi, s49, 0xff
      s_sleep {OPT["bk3"]}
      {ib_loads}
      s_branch {L}""")
g.label(Lo)
g("s_mov_b64 exec, -1")
cnt(26, 43)
stamp(12)
mfma(96, 88, IR, True)
mfma(96, 92, IR + 4, False)
g(f"""s_nop 7
      v_cvt_pk_bf16_f32 v100, v96, v97
      v_cvt_pk_bf16_f32 v101, v98, v99
      s_mov_b64 exec, s[46:47]
      ds_write_b64 v19, v[100:101] offset:{RIB}
      s_mov_b64 exec, 1
      ds_add_u32 v{VZ}, v{VONE} offset:{F_IB}
      s_mov_b64 exec, -1""")
stamp(13)
g(f"""s_cmp_lt_u32 s{sWG}, 20
      s_cbranch_scc0 L_A_end
      s_lshl_b32 s41, s{sWG}, 14
      s_lshl_b32 s42, s{sWV}, 11
      s_add_u32 s41, s41, s42
      s_add_u32 s41, s41, {SM}
      v_and_b32 v7, 7, v{LANE}
      v_lshlrev_b32 v7, 2, v7
      v_lshrrev_b32 v6, 5, v{LANE}
      v_lshl_add_u32 v7, v6, 1, v7
      v_and_b32 v6, 1, v{vKG}
      v_add_u32 v7, v7, v6
      v_lshlrev_b32 v18, 5, v7
      s_lshl_b32 s42, s{sWV}, 2
      v_add_u32 v6, s42, v18
      v_lshlrev_b32 v7, 1, v7
      s_lshl_b32 s55, s{sWG}, 6""")
tagbytes()
def red8(b):
    g(f"""s_nop 1
          v_permlane32_swap_b32 v{b}, v{b+2}
          v_permlane32_swap_b32 v{b+1}, v{b+3}
          v_pk_add_f32 {vr(b,2)}, {vr(b,2)}, {vr(b+2,2)}
          s_nop 1
          v_permlane16_swap_b32 v{b}, v{b+1}
          v_add_f32 v{b}, v{b}, v{b+1}
          s_nop 1
          v_add_f32_dpp v{b}, v{b}, v{b} row_ror:8 {DPPM}""")
g(f"""s_cmp_eq_u32 s{sWV}, 0
      s_cbranch_scc0 L_fin_s""")
srd(SR, P_X, 1280)
g(f"""buffer_load_ushort v16, v7, {sr(SR,4)}, s55 offen
      s_lshl_b32 s40, s{sWG}, 12
      s_add_u32 s40, s40, {YM}""")
for d in range(4): g(f"v_mov_b32 v{60+d}, s{sTB+d}\nv_and_b32 v{60+d}, 0xff, v{60+d}")
poll_loads("h7", f"""buffer_load_dwordx4 v[48:51], v{VL16}, {sr(WS,4)}, s40 offen sc1
      buffer_load_dwordx4 v[52:55], v{VL16}, {sr(WS,4)}, s40 offen offset:1024 sc1
      buffer_load_dwordx4 v[56:59], v{VL16}, {sr(WS,4)}, s40 offen offset:2048 sc1
      s_mov_b64 exec, 0xffffff
      buffer_load_dwordx4 v[60:63], v{VL16}, {sr(WS,4)}, s40 offen offset:3072 sc1
      s_mov_b64 exec, -1""", [48, 52, 56, 60], 43, sleep=4, mask=False, b8=True)
sum_groups(48, 4)
red8(48)
rne(48)
g(f"""v_mul_f32 v49, {hex(f32(-math.log2(math.e)))}, v48
      v_exp_f32 v49, v49
      s_nop 0
      v_add_f32 v49, 1.0, v49
      v_rcp_f32 v49, v49
      s_nop 0
      v_mul_f32 v48, v48, v49""")
rne(48)
g("v_lshlrev_b32 v20, 16, v16")
stamp(19)
g.label("L_fin_s")
lds_wait(F_SD, 4, 42, sleep=1)
if OPT["d5"]: g(f"s_sleep {OPT['d5']}")
poll_loads("h5", f"""buffer_load_dwordx4 v[32:35], v{VL16}, {sr(WS,4)}, s41 offen sc1
      buffer_load_dwordx4 v[36:39], v{VL16}, {sr(WS,4)}, s41 offen offset:1024 sc1""", [32, 36], 43, sleep=OPT["bk5"], b8=True)
cnt(27, 43)
stamp(20)
sum_groups(32, 2)
red8(32)
g(f"""ds_write_b32 v6, v32 offset:{RFIN}
      s_mov_b64 exec, 1
      ds_add_u32 v{VZ}, v{VONE} offset:{F_FIN}
      s_mov_b64 exec, -1
      s_cmp_eq_u32 s{sWV}, 0
      s_cbranch_scc0 L_A_end""")
srd(44, P_OUT, 1280)
lds_wait(F_FIN, 8, 42, extra=f"ds_read_b128 v[32:35], v18 offset:{RFIN}\nds_read_b128 v[36:39], v18 offset:{RFIN+16}")
sum_groups(32, 2)
g("v_pk_add_f32 v[32:33], v[32:33], v[34:35]\nv_add_f32 v32, v32, v33")
rne(32)
g("v_mul_f32 v32, v32, v48")
rne(32)
g(f"""v_add_f32 v32, v32, v20
      v_cvt_pk_bf16_f32 v32, v32, v32
      buffer_store_short v32, v7, {sr(44,4)}, s55 offen {'sc1' if OPT['osc'] else ''}
      s_cmp_eq_u32 s{sWG}, 0
      s_cbranch_scc0 L_noep
      s_mov_b64 exec, 1
      v_mov_b32 v13, s{sTAG}
      buffer_store_dword v13, v{VZ}, {sr(WS,4)}, 0 offen offset:{EPOCH} sc1""")
g.label("L_noep")
stamp(21)
g.label("L_A_end")
ts_flush()
g("s_endpgm")
g.label("L_genw")
hdr_poll("h3m", 0, MLT, F_ML)
lds_wait(F_ML, 8, 42)
g(f"""ds_read_b64 v[24:25], v14 offset:{MLT}
      ds_read_b32 v8, v17 offset:{MLT}
      ds_read_b32 v9, v17 offset:{MLT+32}
      s_waitcnt lgkmcnt(0)""")
global_max(22, 24)
g(f"""v_sub_f32 v8, v8, v22
      v_sub_f32 v9, v9, v22
      v_exp_f32 v8, v8
      v_exp_f32 v9, v9
      s_nop 0
      v_cvt_pk_bf16_f32 v8, v8, v8
      v_cvt_pk_bf16_f32 v9, v9, v9""")
for n in range(2):
    for p in range(4): g(f"v_and_b32 v{88+4*n+p}, v{8+n}, v{MK+p}")
g("s_branch L_genw_ret")
g.label("L_slow")
g(f"""v_mov_b32 v8, v9
      v_lshlrev_b32 v6, 5, v{vN}
      s_lshl_b32 s42, s{sWV}, 2
      v_add_u32 v29, s42, v6
      s_mov_b32 s43, 0x3f803f80
      v_permlane16_swap_b32 v9, v8
      v_max_f32 v9, v9, v8
      v_mov_b32 v8, v9
      s_nop 1
      v_permlane32_swap_b32 v9, v8
      v_max_f32 v9, v9, v8
      s_mov_b64 exec, 0xffff
      ds_write_b32 v29, v9 offset:{RMX}
      s_mov_b64 exec, 1
      ds_add_u32 v{VZ}, v{VONE} offset:{F_MAX}
      s_mov_b64 exec, -1""")
lds_wait(F_MAX, 8, 42, extra=f"ds_read_b128 v[12:15], v6 offset:{RMX}\nds_read_b128 v[16:19], v6 offset:{RMX+16}")
g(f"""v_max3_f32 v{VM}, v12, v13, v14
      v_max3_f32 v16, v15, v16, v17
      v_max3_f32 v{VM}, v{VM}, v18, v19
      v_max_f32 v{VM}, v{VM}, v16""")
for r in range(4): g(f"v_sub_f32 v{SA+r}, v{SA+r}, v{VM}")
for r in range(4): g(f"v_exp_f32 v{SA+r}, v{SA+r}")
g(f"""v_lshlrev_b32 v15, 10, v{vN}
      v_cvt_pk_bf16_f32 v12, v{SA}, v{SA+1}
      v_cvt_pk_bf16_f32 v13, v{SA+2}, v{SA+3}
      ds_write_b64 v7, v[12:13] offset:{PL}""")
lds_inc(F_P)
lds_wait(F_P, 8, 42)
g("\n".join(pread(u) for u in range(4)))
g("v_mov_b32 v12, 0\nv_mov_b32 v14, 0\ns_waitcnt lgkmcnt(0)")
for u in range(4):
    for i in range(4):
        mfma(OA + 4 * i, PF + 4 * u, PVA + 16 * i + 4 * u, u == 0)
        g(f"v_dot2c_f32_bf16 v{12+2*(i&1)}, s43, v{PF+4*u+i}")
def lsum():
    g(f"""v_mov_b32 v13, s{sTAG}
          v_mov_b32 v11, s{sTAG}
          s_nop 0
          v_add_f32 v12, v12, v14
          v_mov_b32 v14, v12
          s_nop 1
          v_permlane16_swap_b32 v12, v14
          v_add_f32 v12, v12, v14
          v_mov_b32 v14, v12
          s_nop 1
          v_permlane32_swap_b32 v12, v14
          v_add_f32 v12, v12, v14""")
lsum()
g(f"""v_or_b32 v12, 0x80000000, v12
      s_cmp_eq_u32 s{sWV}, 0
      s_cbranch_scc0 L_pv2
      s_mov_b64 exec, 0xffff
      buffer_store_dwordx2 v[10:11], v15, {sr(WS,4)}, s27 offen sc1
      buffer_store_dwordx2 v[12:13], v15, {sr(WS,4)}, s23 offen sc1
      s_mov_b64 exec, -1
      s_branch L_pv2""")

KORD = (0, 2, 1, 3)
TH = OPT["gthr"]
def wo_setup():
    g(f"""v_mul_u32_u24 v6, {8*1280}, v{vKG}
          v_lshl_add_u32 v6, v{vN}, 3, v6
          s_lshl_b32 s40, s{sHF}, 7
          s_lshr_b32 s41, s{sJ}, 1
          s_lshl_b32 s41, s41, 5
          s_add_u32 s40, s40, s41
          s_mul_i32 s40, s40, 1280
          s_and_b32 s41, s{sJ}, 1
          s_mul_i32 s41, s41, 640
          s_add_u32 s48, s40, s41""")
    srd(44, P_WO, 5242880)

def wo_gate():
    if OPT["wogate"] == 1: lds_wait(F_H3, 8, 40, sleep=1)
    elif OPT["wogate"] == 2: lds_wait(F_IB, 1, 40, sleep=2)

def h4_setup():
    g(f"""v_and_b32 v31, 7, v{vN}
          v_lshlrev_b32 v29, 7, v31
          v_lshl_add_u32 v29, v{vKG}, 5, v29
          s_lshl_b32 s50, s{sHF}, 2
          s_lshr_b32 s51, s{sJ}, 1
          s_add_u32 s50, s50, s51                 ; p = h*4+dq
          s_lshl_b32 s61, s50, 10
          s_add_u32 s61, s61, {CXM}
          v_lshrrev_b32 v30, 3, v{vN}
          v_lshlrev_b32 v30, 14, v30
          v_lshl_add_u32 v30, v31, 4, v30         ; (n>>3)*16K + (n&7)*16
          v_mov_b32 v31, 0xff
          s_and_b32 s41, s{sJ}, 1
          s_mul_i32 s41, s41, {10*16384}
          s_lshl_b32 s50, s50, 7
          s_add_u32 s50, s50, s41
          s_add_u32 s50, s50, {SM}""")
    tagbytes()

def h4_warm(A, cbks):
    g(f"buffer_load_dwordx4 {vr(A,4)}, v29, {sr(WS,4)}, s61 offen sc1")
    for cbk in cbks:
        g(f"""s_add_u32 s51, s50, {cbk*2*16384}
              buffer_load_dwordx4 {vr(A+4,4)}, v30, {sr(WS,4)}, s51 offen sc1""")

def h4_wait(A, late=""):
    Ls = g.nl("h4s")
    onfail = f"""s_cmp_lg_u32 s43, {LIM_MEM-32}
          s_cbranch_scc1 {Ls}
          {late}
          {Ls}:""" if (OPT["fast4"] and late) else ""
    poll_loads("h4", f"""buffer_load_dwordx4 {vr(A,4)}, v29, {sr(WS,4)}, s61 offen sc1
          buffer_load_dwordx4 {vr(A+4,4)}, v29, {sr(WS,4)}, s61 offen offset:16 sc1""", [A+1, A+3, A+5, A+7], 43, sleep=OPT["bk4"], onfail=onfail)
    g(f"v_mov_b32 v{A+1}, v{A+4}\nv_mov_b32 v{A+3}, v{A+6}\ns_nop 1")

def rl_wait():
    lds_wait(F_RLV, 1, 40, extra=f"ds_read_b32 v28, v{VZ} offset:{RLINV}")

def wo_compute(A, frags, cbks, D):
    for bi, fr in enumerate(frags):
        for t in range(4): mfma(D + 16 * bi + 4 * t, A, fr + 4 * t, True)
    g("s_nop 4" if len(frags) == 1 else "s_nop 0")
    for bi, cbk in enumerate(cbks):
        d = D + 16 * bi
        for t in range(4): g(f"v_pk_add_f32 {vr(d+4*t,2)}, {vr(d+4*t,2)}, {vr(d+4*t+2,2)}")
        for t in range(4): g(f"v_add_f32 v{16+t}, v{d+4*t}, v{d+4*t+1}")
        for t in range(4): g(f"v_mov_b32 v{20+t}, v{16+t}")
        g(f"s_add_u32 s51, s50, {cbk*2*16384}")
        for t in range(4): g(f"v_permlane16_swap_b32 v{16+t}, v{20+t}")
        g("v_pk_add_f32 v[16:17], v[16:17], v[20:21]\nv_pk_add_f32 v[18:19], v[18:19], v[22:23]")
        for t in range(4): g(f"v_mul_f32 v{d+t}, v{16+t}, v28")
        tagput([d, d+1, d+2, d+3], 31)
        g(f"""s_mov_b64 exec, 0xffff
              buffer_store_dwordx4 {vr(d,4)}, v30, {sr(WS,4)}, s51 offen sc1
              s_mov_b64 exec, -1""")
    lds_inc(F_SD)

def b1_gate():
    if OPT["b1gate"]:
        land_flush()
        lds_wait(F_STG, OPT['b1gate'], 40, sleep=2)

g.label("L_G")
get_tag(6)
g(f"""s_cmp_eq_u32 s{sWV}, 10
      s_cbranch_scc1 L_G_uv10""")
LD.pending = False
wo_setup(); h4_setup()
b1_gate()
if OPT["wogate"]: land_flush()
wo_gate()
stamp(4)
load_block(32, 6, 44, 48, 42, 1280, TH)
g("s_add_u32 s49, s48, 128")
load_block(48, 6, 44, 49, 42, 1280, TH)
land_flush()
g("s_waitcnt vmcnt(8)")
perm_block(32, 64, KORD)
g("s_waitcnt vmcnt(0)")
perm_block(48, 80, KORD)
h4_warm(8, [0, 1])
stamp(5)
g(f"""v_lshlrev_b32 v16, 3, v{LANE}
      v_lshlrev_b32 v17, 4, v{LANE}
      s_lshl_b32 s52, s{sHF}, 10
      s_add_u32 s52, s52, {HD + 0x8000}""")
g("v_mov_b32 v20, 1.0\nv_mov_b32 v21, 1.0")
lds_wait(F_LT, 1, 40, sleep=1)
g("s_setprio 2")
pc_wait(0xff, 8, 40, 41, off=F_LT, extra=f"ds_read_b64 v[24:25], v16 offset:{LT}")
g("s_cmp_eq_u32 s40, 8\ns_cbranch_scc1 L_unitw")
lds_wait(F_ML, 8, 40)
g(f"ds_read_b64 v[20:21], v16 offset:{MLT}\ns_waitcnt lgkmcnt(0)")
global_max(22, 20)
g(f"""v_sub_f32 v20, v20, v22
      v_sub_f32 v21, v21, v22
      v_exp_f32 v20, v20
      v_exp_f32 v21, v21
      s_nop 0""")
rne(20); rne(21)
g.label("L_unitw")
g("v_mul_f32 v24, abs(v24), v20\nv_fma_f32 v24, abs(v25), v21, v24")
wave_sum(24, 40)
g(f"""s_nop 1
      v_rcp_f32 v24, s40
      s_nop 0
      ds_write_b32 v{VZ}, v24 offset:{RLINV}
      ds_write_b32 v{VZ}, v{VONE} offset:{F_RLV}
      v_mov_b32 v28, v24""")
lds_wait(F_IB, 8, 40, sleep=1)
h4_wait(8)
stamp(6)
wo_compute(8, [64, 80], [0, 1], 96)
stamp(7)
g("s_branch L_G_end")

def uv_loads():
    g(f"""v_lshlrev_b32 v7, 13, v{vKG}
          v_lshl_add_u32 v7, v{vN}, 3, v7
          s_lshl_b32 s56, s{sJ}, 17               ; 16j rows
          s_lshl_b32 s41, s{sHF}, 8
          s_add_u32 s56, s56, s41
          s_sub_u32 s52, s{sWV}, 9                ; colhalf
          s_lshl_b32 s41, s52, 7
          s_add_u32 s56, s56, s41
          s_add_u32 s57, s56, {4*8192}""")
    srd(SR, P_WUV, 4194304)
    b1_gate()
    stamp(4)
    rows = [128 * (e & 3) + 8 * (e >> 2) for e in range(8)]
    load_block(32, 7, SR, 56, 42, 8192, TH, rows)
    load_block(48, 7, SR, 57, 42, 8192, TH, rows)
g.label("L_G_uv10")
g.label("L_G_uv9")
LD.pending = False
uv_loads()
g.label("L_G_uv")
wo_setup(); h4_setup()
g(f"""s_add_u32 s49, s52, 2
      s_mul_i32 s53, s49, {2*16384}
      s_add_u32 s50, s50, s53
      s_lshl_b32 s49, s49, 7
      s_add_u32 s49, s49, s48
      v_and_b32 v7, 7, v{vN}
      v_mul_u32_u24 v8, 144, v{vN}
      v_lshl_add_u32 v8, v{vKG}, 4, v8
      v_lshlrev_b32 v9, 4, v{LANE}
      v_lshrrev_b32 v11, 3, v{vN}
      v_lshlrev_b32 v11, 10, v11
      v_lshl_add_u32 v11, v7, 4, v11          ; (n>>3)*1024 + (n&7)*16
      s_lshl_b32 s40, s{sHF}, 2
      s_lshl_b32 s41, s52, 1
      s_add_u32 s40, s40, s41
      s_lshl_b32 s40, s40, 3
      s_add_u32 s40, s40, s{sJ}
      s_lshl_b32 s40, s40, 7
      s_add_u32 s54, s40, {CXM}""")
if not OPT["wogate"]:
    load_block(64, 6, 44, 49, 42, 1280, TH)
    h4_warm(16, [0])
g(f"""s_cmp_eq_u32 s{sWV}, 9
      s_cbranch_scc0 L_nohd
      s_and_b32 s56, s{sSLOT}, 1
      s_lshl_b32 s56, s56, 7
      s_add_u32 s56, s56, s{sXCD}
      s_lshl_b32 s56, s56, 4
      s_lshr_b32 s57, s{sSLOT}, 1
      s_add_u32 s56, s56, s57
      s_lshl_b32 s56, s56, 3
      s_add_u32 s56, s56, {HD}
      s_add_u32 s57, s56, 0x8000
      v_lshlrev_b32 v15, 10, v{vN}
      v_mov_b32 v24, 0
      v_mov_b32 v25, s{sTAG}
      v_mov_b32 v12, 0
      v_mov_b32 v14, 0
      v_mov_b32 v26, v11
      s_mov_b32 s58, 0x3f803f80""")
pc_wait(0xfff, 0x222, 40, 41, sleep=1)
g("s_setprio 3")
pc_wait(0xffff, 0x2222, 40, 41)
g(f"""s_cmp_lg_u32 s40, 0x2222
      s_cbranch_scc1 L_nohd2""")
g("\n".join(f"ds_read_b128 {vr(128+4*u,4)}, v9 offset:{PL+1024*u}" for u in range(4)))
for u in range(4):
    g(f"s_waitcnt lgkmcnt({3-u})")
    for i in range(4): g(f"v_dot2c_f32_bf16 v{12+2*(i&1)}, s58, v{128+4*u+i}")
lsum()
if OPT["dl"]: g(f"s_sleep {OPT['dl']}")
g(f"""s_mov_b64 exec, 0xffff
      buffer_store_dwordx2 v[12:13], v15, {sr(WS,4)}, s57 offen sc1
      buffer_store_dwordx2 v[24:25], v15, {sr(WS,4)}, s56 offen sc1
      s_mov_b64 exec, -1""")
stamp(10)
g.label("L_nohd2")
g(f"""v_mov_b32 v11, v26
      s_setprio 0
      {"s_waitcnt vmcnt(2)" if not OPT["wogate"] else ""}""")
g.label("L_nohd")
if OPT["wogate"]:
    wo_gate()
    load_block(64, 6, 44, 49, 42, 1280, TH)
    h4_warm(16, [0])
g("s_waitcnt vmcnt(18)")
perm_block(32, 80)
g("s_waitcnt vmcnt(10)")
perm_block(48, 96)
g(f"v_mov_b32 v61, s{sTAG}\nv_mov_b32 v63, s{sTAG}")
g("s_waitcnt vmcnt(0)")
perm_block(64, 112, KORD)
stamp(5)
lds_wait(F_LT, 8, 40, sleep=2)
rl_wait()
g("s_setprio 3")
lds_wait(F_IB, 8, 40)
g(f"""ds_read_b128 v[32:35], v8 offset:{RIB}
      ds_read_b128 v[36:39], v8 offset:{RIB+64}""")
stamp(6)
D = 128
for blk in range(2):
    g(f"s_waitcnt lgkmcnt({1-blk})")
    for t in range(4): mfma(D + 4 * t, 32 + 4 * blk, 80 + 16 * blk + 4 * t, blk == 0)
g("s_nop 4")
for t in range(4): g(f"v_pk_add_f32 {vr(D+4*t,2)}, {vr(D+4*t,2)}, {vr(D+4*t+2,2)}")
for t in range(4): g(f"v_add_f32 v{16+t}, v{D+4*t}, v{D+4*t+1}")
g(f"""s_nop 0
      v_permlane32_swap_b32 v16, v18
      v_permlane32_swap_b32 v17, v19
      v_pk_add_f32 v[16:17], v[16:17], v[18:19]
      v_mov_b32 v18, v16
      v_mov_b32 v19, v17
      s_nop 0
      v_permlane16_swap_b32 v16, v18
      v_permlane16_swap_b32 v17, v19
      v_pk_add_f32 v[16:17], v[16:17], v[18:19]
      v_cvt_pk_bf16_f32 v60, v16, v17
      v_mov_b32 v62, v60
      s_nop 1
      v_permlane32_swap_b32 v60, v62""")
g(f"""s_mov_b64 exec, 0xffff
      buffer_store_dwordx4 v[60:63], v11, {sr(WS,4)}, {"s54 offen" if OPT["fast4"] else "s54 offen sc1"}
      s_mov_b64 exec, -1""")
stamp(7)
late = f"s_mov_b64 exec, 0xffff\nbuffer_store_dwordx4 v[60:63], v11, {sr(WS,4)}, s54 offen sc1"
h4_wait(32, late)
stamp(8)
wo_compute(32, [112], [0], 128)
if OPT["fast4"]: g(f"s_sleep {OPT['d4']}\n" + late + "\ns_mov_b64 exec, -1")
stamp(9)
g("s_branch L_G_end")

g.label("L_FFNb")
PEND = OPT["fgate"] != 9
g(f"""s_lshr_b32 s40, s{sSLOT}, 3             ; hq
      s_lshl_b32 s40, s40, 1
      s_and_b32 s41, s{sJ}, 1
      s_add_u32 s40, s40, s41
      s_lshl_b32 s40, s40, 3
      s_add_u32 s62, s40, s{sXCD}             ; u in 0..63
      s_lshr_b32 s63, s{sJ}, 1                ; mq
      v_and_b32 v31, 1, v{vKG}
      v_cmp_eq_u32 s[56:57], 1, v31
      s_cmp_lt_u32 s62, 27
      s_cbranch_scc0 L_FFN2""")
LD.pending = PEND; LD.n = 0
g(f"""v_mul_u32_u24 v28, {8*3456}, v{vKG}
      v_lshl_add_u32 v28, v{vN}, 3, v28
      v_lshlrev_b32 v7, 4, v{vKG}
      s_mul_i32 s58, s63, 320
      v_add_u32 v7, s58, v7
      s_mul_i32 s58, s63, {160*3456}
      s_lshl_b32 s41, s62, 7
      s_add_u32 s58, s58, s41""")
srd(SR, P_W1, 2211840)
stamp(4)
for b in range(5):
    if b: g(f"s_add_u32 s58, s58, {32*3456}")
    load_block(48 + 16 * b, 28, SR, 58, 42, 3456, OPT['fthr'])
land_flush()
D = 144
get_tag(6)
lds_wait(F_XN, 1, 40)
for b in range(5): g(f"ds_read_b128 {vr(XF+4*b,4)}, v7 offset:{XNL+64*b}")
g("s_waitcnt lgkmcnt(0)")
for b in range(5):
    g(f"s_waitcnt vmcnt({8*(4-b)})")
    perm_block(48 + 16 * b, 32 + 16 * b)
    g("s_nop 1")
    for t in range(4): mfma(D + 4 * t, XF + 4 * b, 32 + 16 * b + 4 * t, b == 0)
g(f"""v_lshlrev_b32 v28, 4, v{LANE}
      s_nop 0
      s_lshl_b32 s40, s62, 2
      s_add_u32 s40, s40, s63
      s_lshl_b32 s40, s40, 9
      s_add_u32 s40, s40, {HM}
      v_mov_b32 v9, s{sTAG}
      v_mov_b32 v11, s{sTAG}
      s_nop 1
      v_cndmask_b32 v8, v{D}, v{D+8}, s[56:57]
      v_cndmask_b32 v10, v{D+4}, v{D+12}, s[56:57]
      s_mov_b32 exec_hi, 0
      buffer_store_dwordx4 v[8:11], v28, {sr(WS,4)}, s40 offen sc1
      s_mov_b64 exec, -1
      s_branch L_FFNe""")
g.label("L_FFN2")
g(f"""s_mul_i32 s40, s63, 37
      s_add_u32 s40, s40, s62
      s_sub_u32 s58, s40, 27
      s_cmp_lt_u32 s58, 135
      s_cbranch_scc1 L_FFN2a""")
LD.pending = PEND; LD.n = 0
land_flush()
get_tag(6)
g("s_branch L_FFNe")
g.label("L_FFN2a")
LD.pending = PEND; LD.n = 0
g(f"""s_mul_i32 s59, s58, 205
      s_lshr_b32 s59, s59, 10                 ; fb = v/5
      s_mul_i32 s60, s59, 5
      s_sub_u32 s60, s58, s60                 ; mb
      v_mul_u32_u24 v28, {8*1280}, v{vKG}
      v_lshl_add_u32 v28, v{vN}, 3, v28
      s_mul_i32 s58, s59, {64*1280}
      s_lshl_b32 s41, s60, 8
      s_add_u32 s58, s58, s41""")
srd(SR, P_W2, 2211840)
if OPT["forder"] >= 2:
    land_flush()
    if OPT["forder"] == 2: lds_wait(F_ISS, 2, 40, sleep=2)
    if OPT["forder"] == 3: lds_wait(F_STG, 8, 40, sleep=2)
    if OPT["forder"] == 4: pc_wait(0xff, 8, 40, 41, off=F_LT, sleep=2)
stamp(4)
for ch in range(2):
    for blk in range(2):
        g(f"s_add_u32 s41, s58, {blk*32*1280 + ch*128}")
        load_block(48 + 16 * (2 * ch + blk), 28, SR, 41, 42, 1280, OPT['fthr2'])
land_flush()
get_tag(6)
for b in range(4):
    g(f"s_waitcnt vmcnt({8*(3-b)})")
    perm_block(48 + 16 * b, 32 + 16 * b)
g(f"""v_lshrrev_b32 v28, 2, v{vN}
      v_lshlrev_b32 v28, 9, v28
      v_lshl_add_u32 v28, v{vKG}, 5, v28
      v_bfe_u32 v29, v{vN}, 1, 1
      v_lshl_add_u32 v28, v29, 4, v28
      v_and_b32 v29, 1, v{vN}
      v_lshl_add_u32 v28, v29, 8, v28
      s_lshl_b32 s40, s59, 11
      s_add_u32 s40, s40, {HM}""")
poll_loads("h6", f"""buffer_load_dwordx4 v[8:11], v28, {sr(WS,4)}, s40 offen sc1
      buffer_load_dwordx4 v[12:15], v28, {sr(WS,4)}, s40 offen offset:128 sc1""", [9, 11, 13, 15], 43, sleep=6)
for mod in ("row_ror:4", "row_ror:8"):
    for r in (8, 10, 12, 14): g(f"v_add_f32_dpp v{r}, v{r}, v{r} {mod} {DPPM}")
for r in (8, 10, 12, 14): g(f"v_max_f32 v{r}, 0, v{r}")
g("v_cvt_pk_bf16_f32 v8, v8, v10\nv_cvt_pk_bf16_f32 v12, v12, v14\ns_nop 1")
for blk in range(2):
    for p in range(4):
        g(f"v_mov_b32_dpp v{16+4*blk+p}, v{8+4*blk} quad_perm:[{p},{p},{p},{p}] {DPPM}")
g("s_nop 1")
D = 96
for ch in range(2):
    for blk in range(2):
        for t in range(4): mfma(D + 16 * ch + 4 * t, 16 + 4 * blk, 32 + 16 * (2 * ch + blk) + 4 * t, blk == 0)
g(f"""v_lshrrev_b32 v28, 3, v{vN}
      v_lshlrev_b32 v28, 12, v28
      v_and_b32 v29, 7, v{vN}
      v_lshl_add_u32 v28, v29, 4, v28
      v_mov_b32 v29, 0xff
      s_lshl_b32 s40, s60, 14
      s_lshl_b32 s41, s59, 7
      s_add_u32 s40, s40, s41
      s_add_u32 s40, s40, {YM}
      s_add_u32 s41, s40, {2*4096}""")
tagbytes()
for ch in range(2):
    for t in range(4): g(f"v_bfi_b32 v{8+4*ch+t}, v29, s{sTB+t}, v{D+16*ch+4*t}")
g(f"""s_mov_b64 exec, 0xffff
      buffer_store_dwordx4 v[8:11], v28, {sr(WS,4)}, s40 offen sc1
      buffer_store_dwordx4 v[12:15], v28, {sr(WS,4)}, s41 offen sc1
      s_mov_b64 exec, -1""")
g.label("L_FFNe")
stamp(5)
wo_setup(); h4_setup()
g("s_add_u32 s49, s48, 512")
lds_wait(F_ISS, 2, 40, sleep=2)
b1_gate()
wo_gate()
load_block(128, 6, 44, 49, 42, 1280, TH)
g("s_waitcnt vmcnt(0)")
perm_block(128, 32, KORD)
h4_warm(8, [4])
lds_wait(F_LT, 8, 40, sleep=2)
rl_wait()
lds_wait(F_IB, 8, 40, sleep=1)
g("s_setprio 2")
h4_wait(8)
stamp(6)
wo_compute(8, [32], [4], 48)
stamp(7)
g.label("L_G_end")
if OPT["pad"]:
    g(f"""v_readfirstlane_b32 s40, v{VTS}
          s_cmp_lt_u32 s{sWG}, 8
          s_cbranch_scc0 L_END
          s_add_u32 s40, s40, {OPT["pad"]}""")
    if OPT["padmin"]:
        g(f"""s_load_dwordx2 s[44:45], s[0:1], 80
          s_mov_b32 s46, 256
          s_mov_b32 s47, 0x20000
          v_not_b32 v8, v{VTS}
          s_mov_b64 exec, 1
          s_waitcnt lgkmcnt(0)
          buffer_atomic_umax v8, v{VZ}, s[44:47], 0 offen
          s_waitcnt vmcnt(0)
          s_sleep 100
          buffer_load_dword v8, v{VZ}, s[44:47], 0 offen sc1
          s_waitcnt vmcnt(0)
          v_not_b32 v8, v8
          s_nop 1
          v_readfirstlane_b32 s40, v8
          s_nop 3
          s_add_u32 s40, s40, {OPT["pad"]}""")
    g(f"""L_padl:
          s_memrealtime s[42:43]
          s_waitcnt lgkmcnt(0)
          s_sub_u32 s41, s42, s40
          s_cmp_lt_i32 s41, 0
          s_cbranch_scc1 L_padl""")
ts_flush("G")
g.label("L_END")
g("s_endpgm")
g.l.append(".p2align 12")
g.label("L_CODE_END")

s = file_head([f"; @launch grid=(256,1,1) block=(768,1,1) lds={LDS_BYTES}"])
s += f""".text
.globl {K}
.p2align 12
.type {K},@function
{K}:
"""
s += g.text()
s += kernel_desc(K, 168, 102)
open(OUT, "w").write(s)
print(OUT, "lines", len(g.l), "ws_end", hex(WS_END))
```

```python
import sys, math, struct
from asmlib import *

OPT = dict(ts=0, stop=99, inflight=16, gate=12, ksmap=1, gthr=32, wogate=0, b1gate=0, pol=1, h2iss=2, amax=0, bk2=4, bk3=2, dbg=0, bk4=0, bk5=3, d3=0, d3b=0, d1=8, d5=8, fast4=1, warm=1, pad=0, padmin=0, padat=-1, padw=0, tlb=0, remap=1, d2=8, fgate=2, fthr=20, ukgate=0, h2land=3, forder=0, fast1=0, dh=8, ldw=0, d3a=12, hl=0, rng=64, dl=8, uvgate=0, bkh=4, st1=2, osc=1, d4=14, recl=1, rot=5, fthr2=20)
for a in sys.argv[2:]:
    k, v = a.split("=")
    assert k in OPT, k
    OPT[k] = int(v)
OUT = sys.argv[1] if len(sys.argv) > 1 else "k.s"
NT = "nt" if OPT["pol"] else ""

def f32(x): return struct.unpack("<I", struct.pack("<f", x))[0]

EPOCH = 0
QM   = 0x1000
QF   = QM + 0x80000
HD   = QF + 0x80000
QAM  = HD + 0x10000
CXM  = QAM + 0x10000
HM   = CXM + 0x20000
YM   = HM + 0x10000
SM   = YM + 20 * 4096
IB   = SM + 20 * 16384
WS_END = IB + 256 * 8 * 2048
TSOFF = 0x1000000
WS_REC = 0x2000000 if (OPT["ts"] and not OPT["dbg"]) else WS_END

(F_Q, F_QA, F_LAND, F_ISS, F_H2I, F_STG, F_MAX, F_P, F_IB, F_UK, F_TAG, F_TAGV, F_QP, F_QI, F_SD, F_FIN) = [4 * i for i in range(16)]
RMAX = 0x40
RL   = 0x80
F_H3, F_ML, F_QAP, F_XN, F_L, F_RLV, RLINV, F_LT, F_LA, F_LB, F_WQ, F_PC = 0xC0, 0xC4, 0xC8, 0xCC, 0xD0, 0xD4, 0xD8, 0xDC, 0xE0, 0xE4, 0xE8, 0xEC
REDQ = 0x100
REDQA = 0x600
PL   = 0x1000
RIB  = 0x2000
RFIN = PL
MLT  = 0x2A00
LT   = 0x2C00
RMX  = 0x2E00
RLP  = REDQ
XNL  = 0x3000
QL   = 0x3800
KV   = 0x7800
LDS_BYTES = KV + 0x20000

SCALE = (128 ** -0.5) * math.log2(math.e)
LIM_LDS = 1 << 16
LIM_MEM = 1 << 13

class G:
    def __init__(s): s.l = []; s.n = 0
    def __call__(s, x):
        for ln in x.strip("\n").split("\n"):
            if ln.strip(): s.l.append("  " + ln.strip())
    def label(s, x): s.l.append(x + ":")
    def nl(s, p): s.n += 1; return f"L_{p}_{s.n}"
    def text(s): return "\n".join(s.l) + "\n"
g = G()

def vr(a, n): return f"v[{a}:{a+n-1}]"
def sr(a, n): return f"s[{a}:{a+n-1}]"

LANE, VZ, VONE, VT, vN, vKG = 0, 1, 2, 3, 4, 5
VTS = 167
VL16 = 166
sWG, sWV = 2, 3
WS = 4
SR = 8
sXCD, sSLOT, sHF, sJ = 12, 13, 14, 15
P_X, P_KV, P_WQ, P_WUK, P_WUV, P_WO, P_BX, P_W1, P_W2, P_OUT, P_DBG, P_WS = [16 + 2 * i for i in range(12)]
sHA, sCA = (sSLOT, sXCD) if OPT['remap'] else (sHF, sJ)
sTAG, sCNT = 28, 29
sPLO, sPHI = 100, 101
DPPM = "row_mask:0xf bank_mask:0xf"

def srd(base, ptr, nbytes):
    g(f"""s_mov_b32 s{base}, s{ptr}
          s_mov_b32 s{base+1}, s{ptr+1}
          s_mov_b32 s{base+2}, {nbytes}
          s_mov_b32 s{base+3}, 0x20000""")

def stamp(k):
    if OPT["padat"] == k:
        g(f"s_memrealtime vcc\ns_waitcnt lgkmcnt(0)\nv_writelane_b32 v{VTS}, vcc_lo, 0")
    if not OPT["ts"]: return
    g(f"""s_memrealtime vcc
          s_waitcnt lgkmcnt(0)
          v_writelane_b32 v{VTS}, vcc_lo, {k}""")

def cnt(k, sreg):
    if OPT["ts"]: g(f"v_writelane_b32 v{VTS}, s{sreg}, {k}")

def ts_flush(role="A"):
    if OPT["padat"] >= 0:
        Lp, Le = g.nl("pad"), g.nl("pade")
        g(f"s_nop 4\nv_readlane_b32 s40, v{VTS}, 0")
        g("s_nop 4")
        if OPT["padw"] >= 8: g(f"s_cmp_eq_u32 s{sWV}, {OPT['padw'] % 100}")
        else: g(f"s_cmp_lt_u32 s{sWV}, 8")
        g(f"""s_cbranch_scc0 {Le}
              s_cmp_eq_u32 s40, 0
              s_cbranch_scc1 {Le}
              s_add_u32 s40, s40, 3000
              {Lp}:
              s_sleep 8
              s_memrealtime s[42:43]
              s_waitcnt lgkmcnt(0)
              s_sub_u32 s41, s42, s40
              s_cmp_lt_i32 s41, -40
              s_cbranch_scc1 {Lp}
              {Lp}b:
              s_memrealtime s[42:43]
              s_waitcnt lgkmcnt(0)
              s_sub_u32 s41, s42, s40
              s_cmp_lt_i32 s41, 0
              s_cbranch_scc1 {Lp}b
              {Le}:""")
    if not OPT["ts"]: return
    if OPT["dbg"]:
        sel = {"A": {1: 0, 2: 16, 6: 6, 7: 8, 8: 10, 9: 22, 10: 11, 11: 13, 14: 20, 15: 21}, "G": {3: 1, 4: 2, 5: 3, 12: 7, 13: 9}}[role]
        Ls = g.nl("dbg")
        g(f"""s_cmp_eq_u32 s{sWV}, {0 if role == "A" else 9}
              s_cbranch_scc0 {Ls}
              s_load_dwordx2 s[40:41], s[0:1], 80
              s_mov_b64 exec, -1
              v_mov_b32 v8, 0
              s_mov_b32 s42, 256
              s_mov_b32 s43, 0x20000""")
        for dst, src in sel.items():
            g(f"v_readlane_b32 s44, v{VTS}, {src}\ns_nop 3\nv_writelane_b32 v8, s44, {dst}")
        if role == "A":
            g(f"v_readlane_b32 s44, v{VTS}, 0\ns_nop 3\ns_not_b32 s44, s44\nv_writelane_b32 v8, s44, 0")
        g(f"""v_lshlrev_b32 v{VT}, 2, v{LANE}
              s_mov_b64 exec, 0xffff
              s_waitcnt lgkmcnt(0)
              buffer_atomic_umax v8, v{VT}, s[40:43], 0 offen""")
        g.label(Ls)
        return
    g(f"""s_mul_i32 s{sCNT}, s{sWG}, 12
          s_add_u32 s{sCNT}, s{sCNT}, s{sWV}
          s_lshl_b32 s{sCNT}, s{sCNT}, 7
          s_add_u32 s{sCNT}, s{sCNT}, {TSOFF}
          s_mov_b64 exec, -1
          s_mov_b32 exec_hi, 0
          v_lshlrev_b32 v{VT}, 2, v{LANE}
          buffer_store_dword v{VTS}, v{VT}, {sr(WS,4)}, s{sCNT} offen""")

def lds_wait(off, target, st, extra="", sleep=0):
    L, Lo = g.nl("w"), g.nl("wo")
    g(f"s_mov_b32 s{sCNT}, {LIM_LDS}")
    if sleep:
        Lf = g.nl("wf")
        g(f"s_branch {Lf}")
    g.label(L)
    if sleep:
        g(f"s_sleep {sleep}")
        g.label(Lf)
    g(f"ds_read_b32 v{VT}, v{VZ} offset:{off}")
    if extra: g(extra)
    g(f"""s_waitcnt lgkmcnt(0)
          v_readfirstlane_b32 s{st}, v{VT}
          s_sub_u32 s{sCNT}, s{sCNT}, 1
          s_cbranch_scc1 {Lo}
          s_cmp_ge_u32 s{st}, {target}
          s_cbranch_scc0 {L}""")
    g.label(Lo)

def pc_wait(mask, val, st, st2, extra="", sleep=0, off=None):
    L, Lo = g.nl("pw"), g.nl("pwo")
    g(f"s_mov_b32 s{sCNT}, {LIM_LDS}")
    g.label(L)
    if sleep: g(f"s_sleep {sleep}")
    g(f"ds_read_b32 v{VT}, v{VZ} offset:{F_PC if off is None else off}")
    if extra: g(extra)
    g(f"""s_waitcnt lgkmcnt(0)
          v_readfirstlane_b32 s{st}, v{VT}
          s_sub_u32 s{sCNT}, s{sCNT}, 1
          s_cbranch_scc1 {Lo}
          s_and_b32 s{st2}, s{st}, {hex(mask)}
          s_cmp_eq_u32 s{st2}, {hex(val)}
          s_cbranch_scc0 {L}""")
    g.label(Lo)

def land_wait(target, st, vt2, sleep=0):
    L, Lo = g.nl("lw"), g.nl("lwo")
    g(f"s_mov_b32 s{sCNT}, {LIM_LDS}")
    g.label(L)
    g(f"""ds_read_b64 {vr(vt2,2)}, v{VZ} offset:{F_LA}
          s_waitcnt lgkmcnt(0)
          v_min_u32 v{vt2}, v{vt2}, v{vt2+1}
          s_sub_u32 s{sCNT}, s{sCNT}, 1
          v_readfirstlane_b32 s{st}, v{vt2}
          s_cbranch_scc1 {Lo}
          s_cmp_ge_u32 s{st}, {target}
          s_cbranch_scc1 {Lo}""")
    if sleep: g(f"s_sleep {sleep}")
    g(f"s_branch {L}")
    g.label(Lo)

def lds_inc(off):
    g(f"""s_mov_b64 exec, 1
          ds_add_u32 v{VZ}, v{VONE} offset:{off}
          s_mov_b64 exec, -1""")

def get_tag(vtmp):
    lds_wait(F_TAGV, 1, sTAG, extra=f"ds_read_b32 v{vtmp}, v{VZ} offset:{F_TAG}")
    g(f"v_readfirstlane_b32 s{sTAG}, v{vtmp}")

def wave_sum(v, sdst):
    for mod in ("quad_perm:[1,0,3,2]", "quad_perm:[2,3,0,1]", "row_half_mirror", "row_mirror"):
        g(f"s_nop 1\nv_add_f32_dpp v{v}, v{v}, v{v} {mod} {DPPM}")
    g(f"s_nop 1\nv_add_f32_dpp v{v}, v{v}, v{v} row_bcast:15 row_mask:0xa bank_mask:0xf")
    g(f"s_nop 1\nv_add_f32_dpp v{v}, v{v}, v{v} row_bcast:31 row_mask:0xc bank_mask:0xf")
    g(f"s_nop 1\nv_readlane_b32 s{sdst}, v{v}, 63")

def rne(v):
    g(f"v_cvt_pk_bf16_f32 v{v}, v{v}, v{v}\nv_and_b32 v{v}, 0xffff0000, v{v}")

def ln_stats(x5, tmp, sA, sB, vM, vR):
    u = tmp
    for k in range(5):
        g(f"v_lshlrev_b32 v{u+2*k}, 16, v{x5+k}\nv_and_b32 v{u+2*k+1}, 0xffff0000, v{x5+k}")
    a = u + 10
    g(f"v_add_f32 v{a}, v{u}, v{u+1}")
    for k in range(2, 10): g(f"v_add_f32 v{a}, v{a}, v{u+k}")
    wave_sum(a, sA)
    g(f"s_nop 1\nv_mov_b32 v{vM}, s{sA}\nv_mul_f32 v{vM}, {hex(f32(1.0/640))}, v{vM}")
    for k in range(10): g(f"v_sub_f32 v{u+k}, v{u+k}, v{vM}")
    g(f"v_mul_f32 v{a}, v{u}, v{u}")
    for k in range(1, 10): g(f"v_fmac_f32 v{a}, v{u+k}, v{u+k}")
    wave_sum(a, sB)
    g(f"s_nop 1\nv_mov_b32 v{vR}, s{sB}\nv_mul_f32 v{vR}, {hex(f32(1.0/640))}, v{vR}")
    rne(vR)
    g(f"v_add_f32 v{vR}, {hex(f32(1e-5))}, v{vR}")
    rne(vR)
    g(f"v_sqrt_f32 v{vR}, v{vR}\ns_nop 0")
    rne(vR)
    g(f"v_rcp_f32 v{vR}, v{vR}")
    rne(vM)

def ln_frag(src, dst, t0, vM, vR):
    for k in range(4):
        g(f"""v_lshlrev_b32 v{t0}, 16, v{src+k}
              v_and_b32 v{t0+1}, 0xffff0000, v{src+k}
              v_sub_f32 v{t0}, v{t0}, v{vM}
              v_sub_f32 v{t0+1}, v{t0+1}, v{vM}
              v_cvt_pk_bf16_f32 v{t0+1}, v{t0}, v{t0+1}
              v_lshlrev_b32 v{t0}, 16, v{t0+1}
              v_and_b32 v{t0+1}, 0xffff0000, v{t0+1}
              v_mul_f32 v{t0}, v{t0}, v{vR}
              v_mul_f32 v{t0+1}, v{t0+1}, v{vR}
              v_cvt_pk_bf16_f32 v{dst+k}, v{t0}, v{t0+1}""")

def perm_block(raw, out, order=(0, 1, 2, 3)):
    for p in range(4):
        e = 2 * order[p]
        for d in range(2):
            g(f"v_perm_b32 v{out+4*(2*d)+p}, v{raw+2*(e+1)+d}, v{raw+2*e+d}, s{sPLO}")
            g(f"v_perm_b32 v{out+4*(2*d+1)+p}, v{raw+2*(e+1)+d}, v{raw+2*e+d}, s{sPHI}")

class Landing:
    pending = False
    n = 0
LD = Landing()

def load_block(raw, voff, srdb, sbase, stmp, rowbytes, thr=0, rows=None):
    per = 4095 // rowbytes + 1
    cur = None
    for e in range(8):
        grp, rem = divmod(e, per)
        if grp != cur:
            if grp == 0: so = sbase
            else:
                g(f"s_add_u32 s{stmp}, s{sbase}, {(rows[e] if rows else grp*per)*rowbytes}"); so = stmp
            cur = grp
        if thr:
            g(f"s_waitcnt vmcnt({thr-1})")
            if LD.pending and LD.n >= thr - 1:
                land_now()
        off = f" offset:{rem*rowbytes}" if rem else ""
        g(f"buffer_load_dwordx2 {vr(raw+2*e,2)}, v{voff}, {sr(srdb,4)}, s{so} offen{off} {NT}")
        LD.n += 1

def land_now():
    g(f"ds_write_b32 v{VZ}, v{VONE} offset:{F_UK}")
    stamp(2)
    LD.pending = False

def land_flush():
    if LD.pending:
        g(f"s_waitcnt vmcnt({LD.n})")
        land_now()

def tagcheck(regs, acc):
    g(f"v_xor_b32 v{acc}, s{sTAG}, v{regs[0]}")
    for r in regs[1:]:
        g(f"v_bitop3_b32 v{acc}, v{r}, s{sTAG}, v{acc} bitop3:0xbe")
    g(f"v_cmp_ne_u32 vcc, 0, v{acc}")

def poll_loads(nm, loads, tags, scnt, acc=VT, sleep=0, mask=True, b8=False, onfail=""):
    L, Lo = g.nl(nm), g.nl(nm + "o")
    g(f"s_mov_b32 s{scnt}, {LIM_MEM}")
    g.label(L)
    g(loads)
    g("s_waitcnt vmcnt(0)")
    (tagcheck8 if b8 else tagcheck)(tags, acc)
    g(f"s_cbranch_vccz {Lo}")
    if onfail: g(onfail)
    if mask: g("s_mov_b64 exec, vcc")
    if sleep: g(f"s_sleep {sleep}")
    g(f"""s_sub_u32 s{scnt}, s{scnt}, 1
          s_cbranch_scc0 {L}""")
    g.label(Lo)
    if mask: g("s_mov_b64 exec, -1")

def flag16_wait(nm, ap):
    L, Lo = g.nl(nm), g.nl(nm + "o")
    g(f"s_mov_b32 s{sCNT}, {LIM_MEM}\ns_lshl_b32 s18, s{sTAG}, 4")
    g.label(L)
    g(f"""s_load_dwordx16 s[48:63], s[{ap}:{ap+1}], 0 glc
          s_sub_u32 s{sCNT}, s{sCNT}, 1
          s_cbranch_scc1 {Lo}
          s_waitcnt lgkmcnt(0)
          s_add_u32 s19, s48, s49""")
    for k in range(2, 16): g(f"s_add_u32 s19, s19, s{48+k}")
    g(f"s_cmp_eq_u32 s19, s18\ns_cbranch_scc0 {L}")
    g.label(Lo)
    g("s_waitcnt lgkmcnt(0)")

sTB = 66
def tagbytes():
    g(f"""s_and_b32 s{sTB}, s{sTAG}, 1
          s_mul_i32 s{sTB}, s{sTB}, 0x01010101
          s_and_b32 s{sTB+1}, s{sTAG}, 0xfefefefe
          s_or_b32 s{sTB}, s{sTB}, s{sTB+1}
          s_lshr_b32 s{sTB+1}, s{sTB}, 8
          s_lshr_b32 s{sTB+2}, s{sTB}, 16
          s_lshr_b32 s{sTB+3}, s{sTB}, 24""")
def tagput(regs, vmask):
    for d, r in enumerate(regs): g(f"v_bfi_b32 v{r}, v{vmask}, s{sTB+d}, v{r}")
def tagcheck8(bases, acc):
    first = True
    for b in bases:
        for d in range(4):
            if first: g(f"v_xor_b32 v{acc}, s{sTB+d}, v{b+d}"); first = False
            else: g(f"v_bitop3_b32 v{acc}, v{b+d}, s{sTB+d}, v{acc} bitop3:0xbe")
    g(f"v_and_b32 v{acc}, 0xff, v{acc}\nv_cmp_ne_u32 vcc, 0, v{acc}")

def fswz(dst, i, t):
    g(f"""v_lshrrev_b32 v{t}, 1, v{i}
          v_xor_b32 v{dst}, v{t}, v{i}
          v_and_b32 v{dst}, 4, v{dst}
          v_and_or_b32 v{dst}, v{i}, 2, v{dst}
          v_bfe_u32 v{t}, v{i}, 3, 1
          v_or_b32 v{dst}, v{dst}, v{t}""")

def sum_groups(base, n):
    step = 1
    while step < n:
        for a in range(0, n - step, 2 * step):
            g(f"v_pk_add_f32 {vr(base+4*a,2)}, {vr(base+4*a,2)}, {vr(base+4*(a+step),2)}")
            g(f"v_pk_add_f32 {vr(base+4*a+2,2)}, {vr(base+4*a+2,2)}, {vr(base+4*(a+step)+2,2)}")
        step *= 2

def red16(regs, full=True):
    for mod in ("row_ror:4", "row_ror:8"):
        g("s_nop 1")
        for r in regs: g(f"v_add_f32_dpp v{r}, v{r}, v{r} {mod} {DPPM}")
    for sw in (("v_permlane16_swap_b32", "v_permlane32_swap_b32") if full else ("v_permlane16_swap_b32",)):
        for r in regs: g(f"v_mov_b32 v{r+1}, v{r}")
        g("s_nop 1")
        for r in regs: g(f"{sw} v{r}, v{r+1}")
        for r in regs: g(f"v_add_f32 v{r}, v{r}, v{r+1}")

def global_max(dst, t0):
    g(f"""v_max_f32 v{dst}, v{t0}, v{t0+1}""")
    for mod in ("quad_perm:[1,0,3,2]", "quad_perm:[2,3,0,1]", "row_half_mirror", "row_mirror"):
        g(f"s_nop 1\nv_max_f32_dpp v{dst}, v{dst}, v{dst} {mod} {DPPM}")
    for sw in ("v_permlane16_swap_b32", "v_permlane32_swap_b32"):
        g(f"v_mov_b32 v{dst+1}, v{dst}\ns_nop 1\n{sw} v{dst}, v{dst+1}\nv_max_f32 v{dst}, v{dst}, v{dst+1}")

def mfma(d, a, b, first):
    g(f"v_mfma_f32_16x16x32_bf16 {vr(d,4)}, {vr(a,4)}, {vr(b,4)}, {'0' if first else vr(d,4)}")

K = NAME + "_kernel"
g(f"""s_load_dwordx16 s[16:31], s[0:1], 0
      s_load_dwordx8 s[32:39], s[0:1], 64
      s_cmp_ge_u32 s{sWG}, 256
      s_cbranch_scc1 L_END
      v_lshrrev_b32 v{VT}, 6, v0
      v_and_b32 v{LANE}, 63, v0
      v_readfirstlane_b32 s{sWV}, v{VT}
      v_mov_b32 v{VZ}, 0
      v_lshrrev_b32 v{vKG}, 4, v{LANE}
      s_cmp_eq_u32 s{sWV}, 7
      s_cbranch_scc0 L_nopf
      s_getpc_b64 s[44:45]
      L_pc:
      s_sub_u32 s44, s44, L_pc-{K}
      s_subb_u32 s45, s45, 0
      s_and_b32 s41, s{sWG}, 0xf8
      v_add_u32 v10, s41, v{LANE}
      v_lshlrev_b32 v10, 7, v10
      v_cmp_gt_u32 vcc, L_CODE_END-{K}, v10
      s_and_b64 exec, vcc, 0xff
      s_cbranch_execz L_nopf2
      global_load_dword v159, v10, s[44:45]
      L_nopf2:
      s_mov_b64 exec, -1
      L_nopf:
      v_mov_b32 v{VONE}, 1
      v_and_b32 v{vN}, 15, v{LANE}
      s_and_b32 s{sXCD}, s{sWG}, 7
      s_lshr_b32 s{sSLOT}, s{sWG}, 3
      s_lshr_b32 s{sHF}, s{sSLOT}, 3
      s_lshl_b32 s{sJ}, s{sXCD}, 2
      s_add_u32 s{sHF}, s{sHF}, s{sJ}
      s_and_b32 s{sJ}, s{sSLOT}, 7
      s_mov_b32 s{sPLO}, 0x05040100
      s_mov_b32 s{sPHI}, 0x07060302""")
if OPT["ts"] or OPT["padat"] >= 0:
    g(f"v_mov_b32 v{VTS}, 0")
    stamp(0)
if OPT["pad"]:
    g(f"s_memrealtime vcc\ns_waitcnt lgkmcnt(0)\nv_mov_b32 v{VTS}, vcc_lo")
g(f"""s_cmp_ge_u32 s{sWV}, 6
      s_cbranch_scc1 L_OTH
      s_setprio 2
      v_lshlrev_b32 v24, 16, v{vKG}
      v_lshl_add_u32 v24, v{vN}, 3, v24       ; + n*8
      v_mul_u32_u24 v6, 20, v{LANE}
      s_lshr_b32 s40, s{sXCD if OPT["remap"] else sJ}, 1   ; mq
      s_mul_i32 s40, s40, 160
      s_lshl_b32 s41, s{sWV}, 5
      s_add_u32 s40, s40, s41
      s_lshl_b32 s41, s40, 13                 ; row0*8192
      {f"s_lshl_b32 s42, s{sSLOT}, 7" if OPT["remap"] else f"s_lshl_b32 s42, s{sHF}, 8"}
      s_add_u32 s41, s41, s42
      s_and_b32 s42, s{sXCD if OPT["remap"] else sJ}, 1
      s_lshl_b32 s42, s42, {12 if OPT["remap"] else 7}
      s_add_u32 s41, s41, s42                 ; w_q soffset
      s_mov_b32 s46, 5242880
      s_mov_b32 s47, 0x20000
      s_mov_b32 s{SR+2}, 1280
      s_mov_b32 s{SR+3}, 0x20000
      s_cmp_eq_u32 s{sWV}, 5
      s_cbranch_scc0 L_A
      s_setprio 3
      s_waitcnt lgkmcnt(0)
      s_mov_b32 s{SR}, s{P_X}
      s_mov_b32 s{SR+1}, s{P_X+1}
      buffer_load_dwordx4 v[8:11], v6, {sr(SR,4)}, 0 offen
      buffer_load_dword v12, v6, {sr(SR,4)}, 0 offen offset:16
      s_barrier
      s_branch L_LN""")
g.label("L_A")
g(f"""s_waitcnt lgkmcnt(0)
      s_mov_b32 s44, s{P_WQ}
      s_mov_b32 s45, s{P_WQ+1}
      s_nop 1""")
load_block(32, 24, 44, 41, 42, 8192)
g("s_barrier")
lds_inc(F_QI)
srd(WS, P_WS, WS_REC)
g(f"""s_lshl_b32 s40, s40, 1
      v_lshlrev_b32 v112, 4, v{vKG}
      v_add_u32 v112, s40, v112
      v_lshlrev_b32 v113, 4, v{vN}
      s_lshl_b32 s40, s{sWV}, 8
      v_add_u32 v113, s40, v113
      s_branch L_A_q""")
g.label("L_LN")
srd(WS, P_WS, WS_REC)
g(f"v_add_u32 v6, {XNL}, v6\ns_waitcnt vmcnt(0)")
stamp(16)
U, E, Dd = 32, 44, 56
for k in range(5):
    g(f"v_lshlrev_b32 v{U+2*k}, 16, v{8+k}\nv_and_b32 v{U+2*k+1}, 0xffff0000, v{8+k}")
g(f"""v_pk_add_f32 v[14:15], {vr(U,2)}, {vr(U+2,2)}
      v_pk_add_f32 v[16:17], {vr(U+4,2)}, {vr(U+6,2)}
      v_pk_add_f32 v[14:15], v[14:15], {vr(U+8,2)}
      v_pk_add_f32 v[14:15], v[14:15], v[16:17]
      v_add_f32 v14, v14, v15""")
wave_sum(14, 40)
g(f"""s_nop 1
      v_mov_b32 v18, {hex(f32(-1.0/640))}
      v_mul_f32 v18, s40, v18                 ; -mean
      v_mov_b32 v19, v18""")
for k in range(5): g(f"v_pk_add_f32 {vr(E+2*k,2)}, {vr(U+2*k,2)}, v[18:19]")
g(f"v_pk_mul_f32 v[14:15], {vr(E,2)}, {vr(E,2)}")
for k in range(1, 5): g(f"v_pk_fma_f32 v[14:15], {vr(E+2*k,2)}, {vr(E+2*k,2)}, v[14:15]")
g(f"""v_cvt_pk_bf16_f32 v20, v18, v18
      v_add_f32 v14, v14, v15
      v_and_b32 v20, 0xffff0000, v20
      v_mov_b32 v21, v20""")
fill = [f"v_pk_add_f32 {vr(E+2*k,2)}, {vr(U+2*k,2)}, v[20:21]" for k in range(5)]
fill += [f"v_cvt_pk_bf16_f32 v{8+k}, v{E+2*k}, v{E+2*k+1}" for k in range(5)]
fill += [x for k in range(5) for x in (f"v_lshlrev_b32 v{Dd+2*k}, 16, v{8+k}", f"v_and_b32 v{Dd+2*k+1}, 0xffff0000, v{8+k}")]
steps = [f"v_add_f32_dpp v14, v14, v14 {m} {DPPM}" for m in ("quad_perm:[1,0,3,2]", "quad_perm:[2,3,0,1]", "row_half_mirror", "row_mirror")]
steps += ["v_add_f32_dpp v14, v14, v14 row_bcast:15 row_mask:0xa bank_mask:0xf", "v_add_f32_dpp v14, v14, v14 row_bcast:31 row_mask:0xc bank_mask:0xf", "v_readlane_b32 s42, v14, 63"]
for st_ in steps:
    g(st_); g(fill.pop(0)); g(fill.pop(0))
g(f"""v_mov_b32 v22, {hex(f32(1.0/640))}
      v_mul_f32 v22, s42, v22""")
rne(22)
g(f"v_add_f32 v22, {hex(f32(1e-5))}, v22")
rne(22)
g("v_sqrt_f32 v22, v22"); g(fill.pop(0))
rne(22)
g("v_rcp_f32 v22, v22")
while fill: g(fill.pop(0))
g("v_mov_b32 v23, v22")
for k in range(5): g(f"v_pk_mul_f32 {vr(Dd+2*k,2)}, {vr(Dd+2*k,2)}, v[22:23]")
for k in range(5): g(f"v_cvt_pk_bf16_f32 v{8+k}, v{Dd+2*k}, v{Dd+2*k+1}")
g(f"""ds_write2_b32 v6, v8, v9 offset0:0 offset1:1
      ds_write2_b32 v6, v10, v11 offset0:2 offset1:3
      ds_write_b32 v6, v12 offset:16
      ds_write_b32 v{VZ}, v{VONE} offset:{F_XN}""")
stamp(17)
g("s_branch L_A_q")
g.label("L_OTH")
g(f"""s_cmp_eq_u32 s{sWV}, 6
      s_cbranch_scc0 L_noinit
      v_lshlrev_b32 v8, 2, v{LANE}
      ds_write_b32 v8, v{VZ}
      s_waitcnt lgkmcnt(0)
      L_noinit:
      s_cmp_eq_u32 s{sWV}, 9
      s_cbranch_scc1 L_G9
      s_barrier
      s_cmp_lt_u32 s{sWV}, 8
      s_cbranch_scc0 L_OTH2
      s_waitcnt lgkmcnt(0)""")
srd(WS, P_WS, WS_REC)
if OPT["tlb"]:
    g(f"""s_cmp_eq_u32 s{sWV}, 7
          s_cbranch_scc0 L_A_q
          s_and_b32 s40, s{sSLOT}, 7
          s_lshl_b32 s40, s40, 6
          s_lshr_b32 s41, s{sSLOT}, 3             ; 0..3
          s_lshl_b32 s42, s41, 20
          s_add_u32 s42, s42, s40
          s_and_b32 s43, s41, 1
          s_lshl_b32 s43, s43, 20
          s_add_u32 s43, s43, s40
          s_lshl_b32 s44, s{sXCD}, 21
          s_add_u32 s44, s44, s43
          s_add_u32 s45, s40, 0x400000
          s_add_u32 s46, s40, 0x200000
          s_add_u32 s47, s43, 0x400000
          s_load_dword s52, s[{P_KV}:{P_KV+1}], s44
          s_load_dword s53, s[{P_WUK}:{P_WUK+1}], s42
          s_load_dword s54, s[{P_W1}:{P_W1+1}], s43
          s_load_dword s55, s[{P_W2}:{P_W2+1}], s43
          s_load_dword s56, s[{P_WS}:{P_WS+1}], s42
          s_load_dword s57, s[{P_WUV}:{P_WUV+1}], s42
          s_load_dword s58, s[{P_WO}:{P_WO+1}], s42
          s_load_dword s59, s[{P_WO}:{P_WO+1}], s45
          s_load_dword s60, s[{P_W1}:{P_W1+1}], s46
          s_load_dword s61, s[{P_W2}:{P_W2+1}], s46
          s_load_dword s62, s[{P_WS}:{P_WS+1}], s47
          s_load_dword s63, s[{P_OUT}:{P_OUT+1}], 0
          s_waitcnt lgkmcnt(0)""")
g("s_branch L_A_q")
g.label("L_OTH2")
g(f"""      s_cmp_eq_u32 s{sWV}, 9
      s_cbranch_scc1 L_G9
      s_cmp_eq_u32 s{sWV}, 11
      s_cbranch_scc1 L_FFN""")
g(f"v_lshrrev_b32 v32, 3, v{LANE}")
fswz(33, 32, 34)
g(f"""v_and_b32 v34, 7, v{LANE}
      v_xor_b32 v33, v33, v34
      v_lshlrev_b32 v33, 4, v33
      v_lshl_add_u32 v36, v32, 10, v33
      s_bfe_u32 s43, s{sWV}, 0x10001
      s_and_b32 s40, s43, 1
      s_mul_i32 s40, s40, 80
      v_xor_b32 v36, s40, v36
      s_lshr_b32 s41, s{sSLOT}, 1""")
if OPT["ksmap"] == 0:
    g(f"s_lshl_b32 s41, s41, 3\ns_add_u32 s41, s41, s{sXCD}             ; ks")
else:
    g(f"s_lshl_b32 s42, s{sXCD}, 4\ns_add_u32 s41, s41, s42             ; ks")
g(f"""s_mul_i32 s51, s41, {OPT["rot"]}
      s_add_u32 s51, s51, s43
      s_lshl_b32 s51, s51, 13
      s_and_b32 s51, s51, 0x1ffff
      s_lshl_b32 s52, s41, 17                 ; ks*128KB
      s_add_u32 s41, s52, s51
      s_lshl_b32 s42, s43, 10
      s_add_u32 s42, s42, {KV}
      s_waitcnt lgkmcnt(0)""")
srd(44, P_KV, 16777216)
srd(WS, P_WS, WS_REC)
if OPT["gate"]:
    lds_wait(F_WQ if OPT["gate"] < 10 else F_Q, OPT["gate"] % 10, 40, sleep=1)
stamp(8)
NI = OPT["inflight"]
assert 1 <= NI <= 32
g(f"""s_lshl_b32 s48, s43, 2
      v_mov_b32 v37, s48
      s_mov_b32 s43, 0""")
g.label("L_ld")
for k in range(16):
    cb, hi = k & 7, k >> 3
    g(f"s_add_u32 m0, s42, {cb*(16384-128) + hi*2048}")
    if k == 8: g(f"s_add_u32 s51, s51, {2*8192}\ns_and_b32 s51, s51, 0x1ffff\ns_add_u32 s41, s52, s51")
    g(f"s_waitcnt vmcnt({NI-1})")
    if k == (NI - 1) % 16:
        g(f"""s_sub_u32 s48, s43, {(NI - 1) // 16}
              s_max_i32 s48, s48, 0
              v_mov_b32 v38, s48
              ds_write_b32 v37, v38 offset:{F_LA}""")
    g(f"buffer_load_dwordx4 v36, {sr(44,4)}, s41 offen offset:{cb*128} {NT} lds")
g(f"""s_add_u32 s51, s51, {2*8192}
      s_and_b32 s51, s51, 0x1ffff
      s_add_u32 s41, s52, s51
      s_add_u32 s42, s42, {4*1024}
      s_add_u32 s43, s43, 1
      s_cmp_lt_u32 s43, 4
      s_cbranch_scc1 L_ld""")
lds_inc(F_ISS)
stamp(1)
g(f"""v_mov_b32 v38, 3
      v_mov_b32 v39, 4
      s_waitcnt vmcnt(16)
      ds_write_b32 v37, v38 offset:{F_LA}
      s_waitcnt vmcnt(0)
      ds_write_b32 v37, v39 offset:{F_LA}""")
stamp(2)
g("s_branch L_G")
g.label("L_FFN")
XF = 8
g("s_waitcnt lgkmcnt(0)")
srd(WS, P_WS, WS_REC)
srd(SR, P_WUK, 4194304)
g(f"""v_xor_b32 v8, v{vN}, v{vKG}
      v_lshlrev_b32 v8, 4, v8
      v_lshl_add_u32 v8, v{vKG}, 13, v8
      v_xor_b32 v9, 64, v8
      v_xor_b32 v10, 128, v8
      v_xor_b32 v11, 192, v8
      s_lshl_b32 s48, s{sCA}, 19
      s_lshl_b32 s49, s{sHA}, 8
      s_add_u32 s48, s48, s49""")
if OPT["ukgate"]: lds_wait(F_WQ, OPT["ukgate"], 40)
else: lds_wait(F_QI, 5, 40)
for u in range(16):
    g(f"s_mov_b32 m0, {QL + u*1024}")
    g(f"s_add_u32 s49, s48, {u*4*8192}")
    g(f"buffer_load_dwordx4 v{8+(u&3)}, {sr(SR,4)}, s49 offen {NT} lds")
if OPT["fgate"] == 9:
    g("s_waitcnt vmcnt(0)"); land_now()
elif OPT["fgate"]:
    lds_wait(F_Q, OPT["fgate"], 40, sleep=1)
if OPT["forder"] == 1: lds_wait(F_ISS, 2, 40, sleep=2)
g("s_branch L_FFNb")
FFN_EARLY_END = True
g.label("L_G9")
g(f"""s_setprio 3
      s_waitcnt lgkmcnt(0)
      s_load_dword s40, s[{P_WS}:{P_WS+1}], {EPOCH}
      s_barrier""")
srd(WS, P_WS, WS_REC)
g(f"""v_lshlrev_b32 v8, 4, v{vN}              ; n*16
      s_lshl_b32 s41, s{sHA}, 3
      s_add_u32 s41, s41, s{sCA}
      s_lshl_b32 s41, s41, 8
      s_add_u32 s43, s41, {QAM}""")
if OPT["remap"]:
    g(f"""s_and_b32 s42, s{sXCD}, 1
          s_lshl_b32 s42, s42, 4
          s_lshr_b32 s41, s{sSLOT}, 1
          s_add_u32 s42, s42, s41                 ; hQ
          s_lshl_b32 s42, s42, 14
          s_and_b32 s41, s{sXCD}, 6
          s_and_b32 s45, s{sSLOT}, 1
          s_add_u32 s41, s41, s45
          s_lshl_b32 s41, s41, 8""")
else:
    g(f"s_lshl_b32 s42, s{sHF}, 14\ns_lshl_b32 s41, s{sJ}, 8")
g(f"""
      s_add_u32 s42, s42, s41
      s_add_u32 s42, s42, {QM}
      s_add_u32 s45, s42, 8192
      v_lshl_add_u32 v7, v{vKG}, 11, v8
      v_lshlrev_b32 v6, 4, v{LANE}
      s_lshl_b32 s47, s{sHF}, 3
      s_add_u32 s47, s47, s{sJ}
      s_lshl_b32 s47, s47, 11
      s_add_u32 s47, s47, {QF}
      v_mov_b32 v11, 1
      s_waitcnt lgkmcnt(0)
      s_mul_i32 s{sTAG}, s40, 1664525
      s_add_u32 s{sTAG}, s{sTAG}, 1013904223
      v_mov_b32 v10, s{sTAG}
      v_mov_b32 v13, s{sTAG}
      v_mov_b32 v15, s{sTAG}
      ds_write_b64 v{VZ}, v[10:11] offset:{F_TAG}""")
stamp(1)
if OPT["warm"]:
    g(f"""s_and_b32 s46, s{sSLOT}, 1
          s_lshl_b32 s46, s46, 7
          s_add_u32 s46, s46, s{sXCD}
          s_lshl_b32 s46, s46, 7
          s_add_u32 s46, s46, {HD}
          v_lshlrev_b32 v9, 10, v{vN}
          v_and_b32 v16, 1, v{vKG}
          v_lshl_add_u32 v9, v16, 15, v9""")
    lds_wait(F_QI, 5, 40)
    if OPT["fast1"]:
        g(f"""buffer_load_dwordx4 v[16:19], v6, {sr(WS,4)}, s47 offen sc1
              buffer_load_dwordx4 v[16:19], v6, {sr(WS,4)}, s47 offen offset:1024 sc1""")
    g(f"""buffer_load_dwordx4 v[16:19], v7, {sr(WS,4)}, s42 offen sc1
          buffer_load_dwordx4 v[16:19], v7, {sr(WS,4)}, s45 offen sc1
          buffer_load_dwordx4 v[16:19], v8, {sr(WS,4)}, s43 offen sc1
          buffer_load_dword v16, v9, {sr(WS,4)}, s46 offen sc1""")
lds_wait(F_Q, 5, 40)
g("\n".join(f"ds_read_b128 {vr(32+4*b,4)}, v8 offset:{REDQ+256*b}" for b in range(5)))
g("s_waitcnt lgkmcnt(0)")
sum_groups(32, 5)
g(f"""v_cvt_pk_bf16_f32 v12, v32, v33
      v_cvt_pk_bf16_f32 v14, v34, v35""")
if OPT["fast1"]:
    g(f"""buffer_store_dwordx4 v[12:15], v6, {sr(WS,4)}, s47 offen
          ds_write_b32 v{VZ}, v{VONE} offset:{F_QP}
          buffer_store_dwordx4 v[12:15], v6, {sr(WS,4)}, s47 offen offset:1024""")
g(f"""buffer_store_dwordx4 v[12:15], v7, {sr(WS,4)}, s42 offen sc1
      buffer_store_dwordx4 v[12:15], v7, {sr(WS,4)}, s45 offen sc1
      ds_write_b32 v{VZ}, v{VONE} offset:{F_QP}
      v_mov_b32 v20, v12
      v_mov_b32 v21, v13
      v_mov_b32 v22, v14
      v_mov_b32 v23, v15
      s_mov_b64 exec, 0xffff""")
stamp(2)
lds_wait(F_QA, 8, 40)
g("\n".join(f"ds_read_b128 {vr(32+4*b,4)}, v8 offset:{REDQA+256*b}" for b in range(8)))
g("s_waitcnt lgkmcnt(0)")
sum_groups(32, 8)
for r in range(4): g(f"v_mul_f32 v{32+r}, {hex(f32(SCALE))}, v{32+r}")
g(f"""v_cvt_pk_bf16_f32 v12, v32, v33
      v_cvt_pk_bf16_f32 v14, v34, v35
      buffer_store_dwordx4 v[12:15], v8, {sr(WS,4)}, s43 offen sc1
      ds_write_b32 v{VZ}, v{VONE} offset:{F_QAP}
      s_mov_b64 exec, -1
      s_setprio 0""")
stamp(3)
if OPT["uvgate"] < 2: lds_wait(F_H2I if OPT["uvgate"] else F_ISS, 8 if OPT["uvgate"] else 2, 40, sleep=1)
else: g("s_sleep 16")
if OPT["fast1"] and OPT["recl"]:
    g(f"""buffer_store_dwordx4 v[20:23], v6, {sr(WS,4)}, s47 offen sc1
          buffer_store_dwordx4 v[20:23], v6, {sr(WS,4)}, s47 offen offset:1024 sc1""")
g("s_branch L_G_uv9")

g.label("L_A_q")
g("s_setprio 2")
g(f"""s_and_b32 s40, s{sSLOT}, 1              ; g
      s_lshl_b32 s41, s40, 4
      s_lshl_b32 s42, s{sWV}, 1
      s_add_u32 s41, s41, s42                 ; 16g+2w
      s_lshl_b32 s41, s41, 11
      s_add_u32 s20, s41, {QAM}
      s_lshr_b32 s21, s{sSLOT}, 1             ; mi 0..15
      s_lshl_b32 s42, s40, 7                  ; 16g*8
      s_add_u32 s42, s42, s{sWV}
      s_lshl_b32 s42, s42, 3
      s_add_u32 s42, s42, s{sXCD}
      s_lshl_b32 s42, s42, 4
      s_add_u32 s42, s42, s21
      s_lshl_b32 s42, s42, 7
      s_add_u32 s26, s42, {IB}
      s_add_u32 s22, s26, {2*8*8*2048}
      s_lshl_b32 s42, s40, 7                  ; 16g*8
      s_add_u32 s42, s42, s{sXCD}
      s_lshl_b32 s42, s42, 4
      s_add_u32 s42, s42, s21
      s_lshl_b32 s42, s42, 3
      s_add_u32 s27, s42, {HD}
      s_add_u32 s23, s27, 0x8000
      s_lshl_b32 s42, s{sHF}, 3
      s_add_u32 s42, s42, s{sWV}
      s_lshl_b32 s42, s42, 7
      s_add_u32 s31, s42, {HD}
      s_lshl_b32 s42, s{sHF}, 3
      s_add_u32 s42, s42, s{sJ}
      s_lshl_b32 s42, s42, 3
      s_add_u32 s42, s42, s{sWV}              ; (h*8+j)*8+w
      s_lshl_b32 s30, s42, 11
      s_add_u32 s30, s30, {IB}
      s_lshl_b32 s42, s{sHA}, 3
      s_add_u32 s42, s42, s{sCA}
      s_lshl_b32 s42, s42, 3
      s_add_u32 s42, s42, s{sWV}
      s_lshl_b32 s42, s42, 8
      s_add_u32 s42, s42, {QM}
      s_add_u32 s32, s{WS}, s42
      s_addc_u32 s33, s{WS+1}, 0
      s_lshl_b32 s42, s{sHF}, 3
      s_add_u32 s42, s42, s{sWV}
      s_lshl_b32 s42, s42, 11
      s_add_u32 s42, s42, {QF}
      s_add_u32 s8, s{WS}, s42
      s_addc_u32 s9, s{WS+1}, 0
      s_and_b32 s40, s{sWV}, 1
      s_lshl_b32 s40, s40, 3                  ; 8*dhalf'
      v_xor_b32 v6, s40, v{vN}
      v_lshlrev_b32 v6, 4, v6
      v_lshl_add_u32 v6, v{LANE}, 8, v6       ; row*256 + ...
      v_lshlrev_b32 v10, 2, v{LANE}
      s_lshl_b32 s40, s{sWV}, 8
      v_add_u32 v10, s40, v10
      v_mov_b32 v8, 0
      v_mov_b32 v9, 0""")
W = 80
QKA, PVA = 32, 96
fswz(24, vN, 25)
g(f"""v_xor_b32 v24, v24, v{vKG}
      v_lshlrev_b32 v24, 4, v24
      v_and_b32 v25, 7, v{vN}
      v_lshl_add_u32 v24, v25, 7, v24         ; + (i&7)*128
      v_lshrrev_b32 v25, 3, v{vN}
      v_lshl_add_u32 v24, v25, 10, v24        ; + (i>>3)*1024
      s_lshl_b32 s42, s{sWV}, 11
      s_add_u32 s42, s42, {KV}
      v_add_u32 v160, s42, v24
      v_xor_b32 v161, 64, v160
      v_add_u32 v162, 0x10000, v160
      v_add_u32 v163, 0x10000, v161
      v_lshrrev_b32 v26, 2, v{LANE}           ; i16""")
fswz(24, 26, 25)
g(f"""s_and_b32 s42, s{sWV}, 3
      s_lshl_b32 s42, s42, 1
      v_bfe_u32 v25, v{LANE}, 1, 1
      v_or_b32 v25, s42, v25                  ; xi = 2(w&3) + (c'>>1)
      v_xor_b32 v24, v24, v25
      v_lshlrev_b32 v24, 4, v24
      v_and_b32 v25, 1, v{LANE}
      v_lshl_add_u32 v24, v25, 3, v24
      v_and_b32 v25, 7, v26
      v_lshl_add_u32 v24, v25, 7, v24
      v_lshrrev_b32 v25, 3, v26
      v_lshl_add_u32 v24, v25, 10, v24
      s_lshr_b32 s42, s{sWV}, 2
      s_lshl_b32 s42, s42, 14
      s_add_u32 s42, s42, {KV}
      v_add_u32 v164, s42, v24
      v_add_u32 v165, 0x10000, v164
      v_lshrrev_b32 v24, 1, v{vN}             ; xi
      v_and_b32 v25, 4, v24
      v_lshl_or_b32 v25, v25, 1, v24          ; sigma
      s_lshl_b32 s42, s{sWV}, 1
      v_xor_b32 v25, s42, v25
      v_lshlrev_b32 v25, 4, v25
      v_lshl_add_u32 v25, v24, 8, v25         ; + xi*256
      v_lshl_add_u32 v25, v{vKG}, 11, v25     ; + (l>>4)*2048
      v_and_b32 v24, 1, v{LANE}
      v_lshl_add_u32 v28, v24, 3, v25
      v_xor_b32 v29, 16, v28
      v_xor_b32 v30, v{vN}, v{vKG}
      v_lshlrev_b32 v30, 4, v30
      v_lshl_add_u32 v30, v{vKG}, 8, v30
      v_xor_b32 v31, {12*16}, v30             ; odd s
      v_lshlrev_b32 v166, 4, v{LANE}          ; lane*16""")
g(f"s_cmp_ge_u32 s{sWV}, 5\ns_cbranch_scc1 L_A_q2")
for p in range(4):
    g(f"s_waitcnt vmcnt({6-2*p})")
    if p == 0: lds_inc(F_WQ)
    e = 2 * p
    for d in range(2):
        g(f"v_perm_b32 v{48+8*d+p}, v{32+2*(e+1)+d}, v{32+2*e+d}, s{sPLO}")
        g(f"v_perm_b32 v{48+8*d+4+p}, v{32+2*(e+1)+d}, v{32+2*e+d}, s{sPHI}")
stamp(18)
lds_wait(F_XN, 1, 19, extra=f"ds_read_b128 v[116:119], v112 offset:{XNL}")
for t in range(4): mfma(64 + 4 * t, 116, 48 + 4 * t, True)
g(f"""s_nop 6
      v_mov_b32 v65, v68
      v_mov_b32 v66, v72
      v_mov_b32 v67, v76
      s_mov_b64 exec, 0xffff
      ds_write_b128 v113, v[64:67] offset:{REDQ}
      s_mov_b64 exec, 1
      ds_add_u32 v{VZ}, v{VONE} offset:{F_Q}
      s_mov_b64 exec, -1""")
g.label("L_A_q2")
stamp(2)
get_tag(7)
g(f"s_lshl_b32 s18, s{sTAG}, 5              ; 32*TAG")
def wreads():
    for e in range(8):
        if e: g(f"v_xor_b32 v7, {e*16}, v6")
        g(f"ds_read_b128 {vr(W+4*e,4)}, v{6 if e == 0 else 7} offset:{QL}")
lds_wait(F_QP, 1, 19, sleep=1)
if OPT["d1"]: g(f"s_sleep {OPT['d1']}")
g(f"""ds_read_b32 v{VT}, v{VZ} offset:{F_UK}
      s_waitcnt lgkmcnt(0)
      v_readfirstlane_b32 s24, v{VT}
      s_nop 0
      s_cmp_eq_u32 s24, 0
      s_cbranch_scc1 L_now""")
wreads()
g.label("L_now")
stamp(3)
L, Lo = g.nl("h1"), g.nl("h1o")
g(f"s_mov_b32 s{sCNT}, {LIM_MEM}")
g.label(L)
if OPT["fast1"]:
    Lg, Lc = g.nl("h1g"), g.nl("h1c")
    g(f"s_cmp_le_u32 s{sCNT}, {LIM_MEM-8}\ns_cbranch_scc1 {Lg}")
    for k in range(4):
        g(f"s_load_dwordx16 {sr(36+16*k,16)}, s[8:9], {64*k}")
    g(f"s_add_u32 s8, s8, 256\ns_addc_u32 s9, s9, 0\ns_branch {Lc}")
    g.label(Lg)
for k in range(4):
    g(f"s_load_dwordx16 {sr(36+16*k,16)}, s[32:33], {64*k} glc")
if OPT["fast1"]: g.label(Lc)
g(f"""s_sub_u32 s{sCNT}, s{sCNT}, 1
      s_cbranch_scc1 {Lo}
      s_waitcnt lgkmcnt(0)
      s_cmp_eq_u32 s99, s{sTAG}
      s_cbranch_scc0 {L}
      s_add_u32 s19, s37, s39""")
for k in range(2, 32):
    g(f"s_add_u32 s19, s19, s{37+2*k}")
g(f"s_cmp_eq_u32 s19, s18\ns_cbranch_scc0 {L}")
g.label(Lo)
cnt(23, sCNT)
stamp(1)
g(f"""s_cmp_eq_u32 s24, 0
      s_cbranch_scc0 L_havew""")
lds_wait(F_UK, 1, 19)
wreads()
g.label("L_havew")
for k in range(32):
    if k % 4 == 0: g(f"s_waitcnt lgkmcnt({7 - k//4})")
    g(f"v_dot2c_f32_bf16 v{8+(k&1)}, s{36+2*k}, v{W+k}")
g(f"""s_nop 2
      v_add_f32 v8, v8, v9
      ds_write_b32 v10, v8 offset:{REDQA}""")
lds_inc(F_QA)
stamp(4)
def qka_reads():
    for s in range(16):
        cb = s >> 1
        a = 160 + (s & 1) + (2 if cb >= 4 else 0)
        g(f"ds_read_b128 {vr(QKA+4*s,4)}, v{a} offset:{(cb&3)*16384}")
def pva_reads(u):
    for i in range(4):
        for hh in range(2):
            T = 2 * u + hh
            g(f"ds_read_b64_tr_b16 {vr(PVA+16*i+4*u+2*hh,2)}, v{164+(i>>1)} offset:{(i&1)*32768+T*2048}")
h2_loads = "\n".join(f"buffer_load_dwordx4 {vr(8+4*n,4)}, v{VL16}, {sr(WS,4)}, s20 offen offset:{1024*n} sc1" for n in range(4))
g(f"""s_lshr_b32 s42, s{sWV}, 1
      s_lshl_b32 s48, s42, 2
      s_lshl_b32 s48, 1, s48
      s_add_u32 s49, s48, 0x10000
      s_mov_b32 s50, {hex(f32(OPT["rng"]))}
      s_lshl_b32 s42, s42, 10
      s_and_b32 s43, s{sWV}, 1
      s_lshl_b32 s43, s43, 3
      s_add_u32 s42, s42, s43
      v_add_u32 v7, s42, v{VL16}
      v_add_u32 v28, {QL}, v28
      v_add_u32 v29, {QL}, v29
      v_add_u32 v26, 8192, v28
      v_add_u32 v27, 8192, v29
      s_and_b32 s45, s{sTAG}, 1
      s_mul_i32 s45, s45, 0x55555555
      s_and_b32 s44, s{sTAG}, 0xaaaaaaaa
      s_or_b32 s45, s45, s44
      s_mov_b32 s44, 0x00010001""")
lds_wait(F_QAP, 1, 42)
if OPT["d2"]: g(f"s_sleep {OPT['d2']}")
def h2_issue(lv):
    if OPT["h2land"] == lv:
        g(h2_loads); lds_inc(F_H2I); stamp(5)
h2_issue(0)
land_wait(2, 42, 24, sleep=1)
h2_issue(2)
pva_reads(0); pva_reads(1)
land_wait(3, 42, 24, sleep=1)
h2_issue(3)
pva_reads(2)
g(f"s_cmp_lt_u32 s{sWV}, 6\ns_cbranch_scc1 L_qka")
land_wait(4, 42, 24)
g.label("L_qka")
qka_reads()
stamp(6)
L, Lo = g.nl("h2c"), g.nl("h2co")
g(f"s_mov_b32 s43, {LIM_MEM}")
g.label(L)
g("s_waitcnt vmcnt(0)")
tagcheck([9, 11, 13, 15, 17, 19, 21, 23], 24)
g(f"""s_cbranch_vccz {Lo}
      s_sub_u32 s43, s43, 1
      s_cbranch_scc1 {Lo}
      s_sleep {OPT["bk2"]}
      s_mov_b64 exec, vcc""")
g(h2_loads)
g(f"s_mov_b64 exec, -1\ns_branch {L}")
g.label(Lo)
cnt(24, 43)
stamp(7)
for n in range(4):
    g(f"ds_write2_b32 v{[28, 26, 29, 27][n]}, v{8+4*n}, v{10+4*n} offset0:0 offset1:1")
lds_inc(F_STG)
def bread(s): return f"ds_read_b128 {vr(8+4*(s&3),4)}, v{30+(s&1)} offset:{QL+s*1024}"
lds_wait(F_STG, 8, 42)
stamp(8)
g("\n".join(bread(s) for s in range(4)))
SA = 24
for s in range(16):
    g(f"s_waitcnt lgkmcnt({min(3, 15-s)})")
    mfma(SA, QKA + 4 * s, 8 + 4 * (s & 3), s == 0)
    if s + 4 < 16: g(bread(s + 4))
VM = 10
PF, OA = 32, 48
def pread(u): return f"ds_read_b128 {vr(PF+4*u,4)}, v{VL16} offset:{PL+1024*u}"
g("s_nop 7")
for r in range(4): g(f"v_exp_f32 v{12+r}, v{SA+r}")
g(f"""v_max3_f32 v9, v{SA}, v{SA+1}, v{SA+2}
      v_cvt_pk_bf16_f32 v16, v12, v13
      v_cvt_pk_bf16_f32 v17, v14, v15
      v_max_f32 v9, v9, v{SA+3}
      ds_write_b64 v7, v[16:17] offset:{PL}
      v_cmp_nle_f32 vcc, abs(v9), s50
      s_cmp_lg_u64 vcc, 0
      s_cselect_b32 s48, s49, s48
      s_mov_b64 exec, 1
      v_mov_b32 v8, s48
      ds_add_u32 v{VZ}, v8 offset:{F_PC}
      s_mov_b64 exec, -1""")
pva_reads(3)
stamp(15)
TP, IBV = 80, 84
fill = [f"v_lshrrev_b32 v12, 3, v{vN}",
        f"v_lshl_add_u32 v12, v{vKG}, 2, v12      ; head = 4q + (j>>3)",
        f"v_lshlrev_b32 v{IBV}, 17, v12",
        f"v_and_b32 v12, 7, v{vN}",
        f"v_lshl_add_u32 v{IBV}, v12, 4, v{IBV}",
        f"v_and_b32 v12, 3, v{LANE}",
        f"v_lshlrev_b32 v12, 3, v12",
        f"v_lshrrev_b32 v12, v12, s45",
        f"v_and_b32 v13, 0xff, v12", f"v_lshlrev_b32 v12, 15, v13", f"v_or_b32 v12, v12, v13"]
for d in range(4): fill += [f"v_lshrrev_b32 v13, {2*d}, v12", f"v_and_b32 v{TP+d}, s44, v13"]
S1 = 2
for _ in range(3): g(fill.pop(0))
pc_wait(0xff, 0x22, 42, 48)
g("\n".join(pread(u) for u in range(S1)))
for u in range(S1):
    g(f"s_waitcnt lgkmcnt({S1-1-u})")
    for i in range(4):
        mfma(OA + 4 * i, PF + 4 * u, PVA + 16 * i + 4 * u, u == 0)
        for _ in range(2): g(fill.pop(0))
assert not fill
pc_wait(0xffff, 0x2222, 42, 48)
g("\n".join(pread(u) for u in range(S1, 4)))
g(f"s_cmp_lg_u32 s42, 0x2222\ns_cbranch_scc1 L_slow")
stamp(9)
for u in range(S1, 4):
    g(f"s_waitcnt lgkmcnt({3-u})")
    for i in range(4): mfma(OA + 4 * i, PF + 4 * u, PVA + 16 * i + 4 * u, u == 0)
g.label("L_pv2")
GR = 64
g("s_nop 6")
for a in range(2):
    A0, B0, T0 = GR + 4 * a, GR + 4 * a + 2, 72
    for d in range(2):
        g(f"v_perm_b32 v{A0+d}, v{OA+8*d+4+2*a}, v{OA+8*d+2*a}, s{sPHI}")
        g(f"v_perm_b32 v{B0+d}, v{OA+8*d+4+2*a+1}, v{OA+8*d+2*a+1}, s{sPHI}")
    g("s_nop 0")
    for d in range(2): g(f"v_mov_b32_dpp v{T0+d}, v{A0+d} row_ror:8 {DPPM}")
    for d in range(2): g(f"v_mov_b32_dpp v{A0+d}, v{B0+d} row_ror:8 row_mask:0xf bank_mask:0xc")
    for d in range(2): g(f"v_mov_b32_dpp v{B0+d}, v{T0+d} quad_perm:[0,1,2,3] row_mask:0xf bank_mask:0x3")
    for d in range(4): g(f"v_xad_u32 v{A0+d}, v{TP+d}, s44, v{A0+d}")
    for d in range(4): g(f"v_bfi_b32 v{A0+d}, s44, v{TP+d}, v{A0+d}")
    g(f"buffer_store_dwordx4 {vr(A0,4)}, v{IBV}, {sr(WS,4)}, s{26 if a == 0 else 22} offen sc1")
if OPT["wogate"] == 1: lds_inc(F_H3)
stamp(10)
MK = 76
g(f"""v_and_b32 v12, 1, v{LANE}
      v_lshlrev_b32 v12, 4, v12
      v_mov_b32 v13, 0xffff
      v_lshlrev_b32 v13, v12, v13
      v_bfe_u32 v12, v{LANE}, 1, 2""")
for p in range(4):
    g(f"v_cmp_eq_u32 vcc, {p}, v12\ns_nop 1\nv_cndmask_b32 v{MK+p}, v{VZ}, v13, vcc")
g(f"""v_lshlrev_b32 v16, 2, v{vN}
      s_lshl_b32 s42, s{sWV}, 6
      v_add_u32 v16, s42, v16
      v_lshrrev_b32 v17, 3, v{LANE}
      v_lshlrev_b32 v17, 2, v17
      v_add_u32 v17, s42, v17
      v_lshrrev_b32 v18, 3, v{vN}             ; a = j>>3
      s_lshl_b32 s42, s{sWV}, 1
      v_add_u32 v19, s42, v18
      v_mul_u32_u24 v19, 144, v19
      v_and_b32 v20, 7, v{vN}
      v_lshl_add_u32 v19, v20, 4, v19
      v_and_b32 v20, 1, v{vKG}
      v_lshl_add_u32 v19, v20, 3, v19
      v_lshrrev_b32 v20, 1, v{vKG}
      v_cmp_eq_u32 s[46:47], v18, v20
      v_lshlrev_b32 v14, 3, v{LANE}           ; lane*8""")
if OPT["d3"]: g(f"s_sleep {OPT['d3']}")
stamp(22)
IR = 104
ib_loads = f"""buffer_load_dwordx4 {vr(IR,4)}, v{VL16}, {sr(WS,4)}, s30 offen sc1
      buffer_load_dwordx4 {vr(IR+4,4)}, v{VL16}, {sr(WS,4)}, s30 offen offset:1024 sc1"""
def hdr_poll(nm, off, dstoff, flag, after="", mark=False):
    L, Lo = g.nl(nm), g.nl(nm + "o")
    g(f"s_mov_b32 s43, {LIM_MEM}")
    if OPT["bkh"]:
        Lf = g.nl(nm + "f")
        g(f"s_branch {Lf}")
    g.label(L)
    if OPT["bkh"]:
        g(f"s_sleep {OPT['bkh']}")
        g.label(Lf)
    g(f"""s_load_dwordx16 s[52:67], s[24:25], {off} glc
          s_load_dwordx16 s[68:83], s[24:25], {off+64} glc
          s_sub_u32 s43, s43, 1
          s_cbranch_scc1 {Lo}
          s_waitcnt lgkmcnt(0)
          s_add_u32 s19, s53, s55""")
    for k in range(2, 16): g(f"s_add_u32 s19, s19, s{53+2*k}")
    g(f"s_cmp_eq_u32 s19, s18\ns_cbranch_scc0 {L}")
    g.label(Lo)
    g("s_waitcnt lgkmcnt(0)")
    if after: g(after)
    for k in range(16): g(f"v_writelane_b32 v24, s{52+2*k}, {k}")
    g("s_mov_b64 exec, 0xffff")
    if mark:
        g(f"""v_cmp_gt_i32 vcc, 0, v24
              s_cmp_lg_u64 vcc, 0
              s_cselect_b32 s42, 0x101, 1
              v_mov_b32 v25, s42""")
    g(f"""ds_write_b32 v16, v24 offset:{dstoff}
          s_mov_b64 exec, 1
          ds_add_u32 v{VZ}, v{25 if mark else VONE} offset:{flag}
          s_mov_b64 exec, -1""")
g(f"""s_add_u32 s24, s{WS}, s31
      s_addc_u32 s25, s{WS+1}, 0
      s_lshl_b32 s18, s{sTAG}, 4""")
for n in range(2):
    for p in range(4): g(f"v_and_b32 v{88+4*n+p}, 0x3f803f80, v{MK+p}")
if OPT["d3a"]: g(f"s_sleep {OPT['d3a']}")
hdr_poll("h3l", 0x8000, LT, F_LT, after=(f"s_sleep {OPT['d3b']}\n" if OPT["d3b"] else "") + ib_loads, mark=True)
cnt(25, 43)
stamp(11)
pc_wait(0xff, 8, 42, 43, off=F_LT)
g("s_cmp_lg_u32 s42, 8\ns_cbranch_scc1 L_genw")
g.label("L_genw_ret")
L, Lo = g.nl("h3d"), g.nl("h3do")
g(f"s_mov_b32 s43, {LIM_MEM}")
g.label(L)
g(f"s_waitcnt vmcnt(0)\nv_xor_b32 v{VT}, v{IR}, v{TP}")
for k in range(1, 8): g(f"v_bitop3_b32 v{VT}, v{IR+k}, v{TP+(k&3)}, v{VT} bitop3:0xbe")
g(f"""v_and_b32 v{VT}, s44, v{VT}
      v_cmp_ne_u32 vcc, 0, v{VT}
      s_cbranch_vccz {Lo}
      s_sub_u32 s43, s43, 1
      s_cbranch_scc1 {Lo}
      s_lshr_b64 s[48:49], vcc, 4
      s_or_b64 vcc, vcc, s[48:49]
      s_lshr_b64 s[48:49], vcc, 2
      s_or_b64 vcc, vcc, s[48:49]
      s_lshr_b64 s[48:49], vcc, 1
      s_or_b64 vcc, vcc, s[48:49]
      s_and_b32 s48, vcc_lo, 0x01010101
      s_and_b32 s49, vcc_hi, 0x01010101
      s_mul_i32 exec_lo, s48, 0xff
      s_mul_i32 exec_hi, s49, 0xff
      s_sleep {OPT["bk3"]}
      {ib_loads}
      s_branch {L}""")
g.label(Lo)
g("s_mov_b64 exec, -1")
cnt(26, 43)
stamp(12)
mfma(96, 88, IR, True)
mfma(96, 92, IR + 4, False)
g(f"""s_nop 7
      v_cvt_pk_bf16_f32 v100, v96, v97
      v_cvt_pk_bf16_f32 v101, v98, v99
      s_mov_b64 exec, s[46:47]
      ds_write_b64 v19, v[100:101] offset:{RIB}
      s_mov_b64 exec, 1
      ds_add_u32 v{VZ}, v{VONE} offset:{F_IB}
      s_mov_b64 exec, -1""")
stamp(13)
g(f"""s_cmp_lt_u32 s{sWG}, 20
      s_cbranch_scc0 L_A_end
      s_lshl_b32 s41, s{sWG}, 14
      s_lshl_b32 s42, s{sWV}, 11
      s_add_u32 s41, s41, s42
      s_add_u32 s41, s41, {SM}
      v_and_b32 v7, 7, v{LANE}
      v_lshlrev_b32 v7, 2, v7
      v_lshrrev_b32 v6, 5, v{LANE}
      v_lshl_add_u32 v7, v6, 1, v7
      v_and_b32 v6, 1, v{vKG}
      v_add_u32 v7, v7, v6
      v_lshlrev_b32 v18, 5, v7
      s_lshl_b32 s42, s{sWV}, 2
      v_add_u32 v6, s42, v18
      v_lshlrev_b32 v7, 1, v7
      s_lshl_b32 s55, s{sWG}, 6""")
tagbytes()
def red8(b):
    g(f"""s_nop 1
          v_permlane32_swap_b32 v{b}, v{b+2}
          v_permlane32_swap_b32 v{b+1}, v{b+3}
          v_pk_add_f32 {vr(b,2)}, {vr(b,2)}, {vr(b+2,2)}
          s_nop 1
          v_permlane16_swap_b32 v{b}, v{b+1}
          v_add_f32 v{b}, v{b}, v{b+1}
          s_nop 1
          v_add_f32_dpp v{b}, v{b}, v{b} row_ror:8 {DPPM}""")
g(f"""s_cmp_eq_u32 s{sWV}, 0
      s_cbranch_scc0 L_fin_s""")
srd(SR, P_X, 1280)
g(f"""buffer_load_ushort v16, v7, {sr(SR,4)}, s55 offen
      s_lshl_b32 s40, s{sWG}, 12
      s_add_u32 s40, s40, {YM}""")
for d in range(4): g(f"v_mov_b32 v{60+d}, s{sTB+d}\nv_and_b32 v{60+d}, 0xff, v{60+d}")
poll_loads("h7", f"""buffer_load_dwordx4 v[48:51], v{VL16}, {sr(WS,4)}, s40 offen sc1
      buffer_load_dwordx4 v[52:55], v{VL16}, {sr(WS,4)}, s40 offen offset:1024 sc1
      buffer_load_dwordx4 v[56:59], v{VL16}, {sr(WS,4)}, s40 offen offset:2048 sc1
      s_mov_b64 exec, 0xffffff
      buffer_load_dwordx4 v[60:63], v{VL16}, {sr(WS,4)}, s40 offen offset:3072 sc1
      s_mov_b64 exec, -1""", [48, 52, 56, 60], 43, sleep=4, mask=False, b8=True)
sum_groups(48, 4)
red8(48)
rne(48)
g(f"""v_mul_f32 v49, {hex(f32(-math.log2(math.e)))}, v48
      v_exp_f32 v49, v49
      s_nop 0
      v_add_f32 v49, 1.0, v49
      v_rcp_f32 v49, v49
      s_nop 0
      v_mul_f32 v48, v48, v49""")
rne(48)
g("v_lshlrev_b32 v20, 16, v16")
stamp(19)
g.label("L_fin_s")
lds_wait(F_SD, 4, 42, sleep=1)
if OPT["d5"]: g(f"s_sleep {OPT['d5']}")
poll_loads("h5", f"""buffer_load_dwordx4 v[32:35], v{VL16}, {sr(WS,4)}, s41 offen sc1
      buffer_load_dwordx4 v[36:39], v{VL16}, {sr(WS,4)}, s41 offen offset:1024 sc1""", [32, 36], 43, sleep=OPT["bk5"], b8=True)
cnt(27, 43)
stamp(20)
sum_groups(32, 2)
red8(32)
g(f"""ds_write_b32 v6, v32 offset:{RFIN}
      s_mov_b64 exec, 1
      ds_add_u32 v{VZ}, v{VONE} offset:{F_FIN}
      s_mov_b64 exec, -1
      s_cmp_eq_u32 s{sWV}, 0
      s_cbranch_scc0 L_A_end""")
srd(44, P_OUT, 1280)
lds_wait(F_FIN, 8, 42, extra=f"ds_read_b128 v[32:35], v18 offset:{RFIN}\nds_read_b128 v[36:39], v18 offset:{RFIN+16}")
sum_groups(32, 2)
g("v_pk_add_f32 v[32:33], v[32:33], v[34:35]\nv_add_f32 v32, v32, v33")
rne(32)
g("v_mul_f32 v32, v32, v48")
rne(32)
g(f"""v_add_f32 v32, v32, v20
      v_cvt_pk_bf16_f32 v32, v32, v32
      buffer_store_short v32, v7, {sr(44,4)}, s55 offen {'sc1' if OPT['osc'] else ''}
      s_cmp_eq_u32 s{sWG}, 0
      s_cbranch_scc0 L_noep
      s_mov_b64 exec, 1
      v_mov_b32 v13, s{sTAG}
      buffer_store_dword v13, v{VZ}, {sr(WS,4)}, 0 offen offset:{EPOCH} sc1""")
g.label("L_noep")
stamp(21)
g.label("L_A_end")
ts_flush()
g("s_endpgm")
g.label("L_genw")
hdr_poll("h3m", 0, MLT, F_ML)
lds_wait(F_ML, 8, 42)
g(f"""ds_read_b64 v[24:25], v14 offset:{MLT}
      ds_read_b32 v8, v17 offset:{MLT}
      ds_read_b32 v9, v17 offset:{MLT+32}
      s_waitcnt lgkmcnt(0)""")
global_max(22, 24)
g(f"""v_sub_f32 v8, v8, v22
      v_sub_f32 v9, v9, v22
      v_exp_f32 v8, v8
      v_exp_f32 v9, v9
      s_nop 0
      v_cvt_pk_bf16_f32 v8, v8, v8
      v_cvt_pk_bf16_f32 v9, v9, v9""")
for n in range(2):
    for p in range(4): g(f"v_and_b32 v{88+4*n+p}, v{8+n}, v{MK+p}")
g("s_branch L_genw_ret")
g.label("L_slow")
g(f"""v_mov_b32 v8, v9
      v_lshlrev_b32 v6, 5, v{vN}
      s_lshl_b32 s42, s{sWV}, 2
      v_add_u32 v29, s42, v6
      s_mov_b32 s43, 0x3f803f80
      v_permlane16_swap_b32 v9, v8
      v_max_f32 v9, v9, v8
      v_mov_b32 v8, v9
      s_nop 1
      v_permlane32_swap_b32 v9, v8
      v_max_f32 v9, v9, v8
      s_mov_b64 exec, 0xffff
      ds_write_b32 v29, v9 offset:{RMX}
      s_mov_b64 exec, 1
      ds_add_u32 v{VZ}, v{VONE} offset:{F_MAX}
      s_mov_b64 exec, -1""")
lds_wait(F_MAX, 8, 42, extra=f"ds_read_b128 v[12:15], v6 offset:{RMX}\nds_read_b128 v[16:19], v6 offset:{RMX+16}")
g(f"""v_max3_f32 v{VM}, v12, v13, v14
      v_max3_f32 v16, v15, v16, v17
      v_max3_f32 v{VM}, v{VM}, v18, v19
      v_max_f32 v{VM}, v{VM}, v16""")
for r in range(4): g(f"v_sub_f32 v{SA+r}, v{SA+r}, v{VM}")
for r in range(4): g(f"v_exp_f32 v{SA+r}, v{SA+r}")
g(f"""v_lshlrev_b32 v15, 10, v{vN}
      v_cvt_pk_bf16_f32 v12, v{SA}, v{SA+1}
      v_cvt_pk_bf16_f32 v13, v{SA+2}, v{SA+3}
      ds_write_b64 v7, v[12:13] offset:{PL}""")
lds_inc(F_P)
lds_wait(F_P, 8, 42)
g("\n".join(pread(u) for u in range(4)))
g("v_mov_b32 v12, 0\nv_mov_b32 v14, 0\ns_waitcnt lgkmcnt(0)")
for u in range(4):
    for i in range(4):
        mfma(OA + 4 * i, PF + 4 * u, PVA + 16 * i + 4 * u, u == 0)
        g(f"v_dot2c_f32_bf16 v{12+2*(i&1)}, s43, v{PF+4*u+i}")
def lsum():
    g(f"""v_mov_b32 v13, s{sTAG}
          v_mov_b32 v11, s{sTAG}
          s_nop 0
          v_add_f32 v12, v12, v14
          v_mov_b32 v14, v12
          s_nop 1
          v_permlane16_swap_b32 v12, v14
          v_add_f32 v12, v12, v14
          v_mov_b32 v14, v12
          s_nop 1
          v_permlane32_swap_b32 v12, v14
          v_add_f32 v12, v12, v14""")
lsum()
g(f"""v_or_b32 v12, 0x80000000, v12
      s_cmp_eq_u32 s{sWV}, 0
      s_cbranch_scc0 L_pv2
      s_mov_b64 exec, 0xffff
      buffer_store_dwordx2 v[10:11], v15, {sr(WS,4)}, s27 offen sc1
      buffer_store_dwordx2 v[12:13], v15, {sr(WS,4)}, s23 offen sc1
      s_mov_b64 exec, -1
      s_branch L_pv2""")

KORD = (0, 2, 1, 3)
TH = OPT["gthr"]
def wo_setup():
    g(f"""v_mul_u32_u24 v6, {8*1280}, v{vKG}
          v_lshl_add_u32 v6, v{vN}, 3, v6
          s_lshl_b32 s40, s{sHF}, 7
          s_lshr_b32 s41, s{sJ}, 1
          s_lshl_b32 s41, s41, 5
          s_add_u32 s40, s40, s41
          s_mul_i32 s40, s40, 1280
          s_and_b32 s41, s{sJ}, 1
          s_mul_i32 s41, s41, 640
          s_add_u32 s48, s40, s41""")
    srd(44, P_WO, 5242880)

def wo_gate():
    if OPT["wogate"] == 1: lds_wait(F_H3, 8, 40, sleep=1)
    elif OPT["wogate"] == 2: lds_wait(F_IB, 1, 40, sleep=2)

def h4_setup():
    g(f"""v_and_b32 v31, 7, v{vN}
          v_lshlrev_b32 v29, 7, v31
          v_lshl_add_u32 v29, v{vKG}, 5, v29
          s_lshl_b32 s50, s{sHF}, 2
          s_lshr_b32 s51, s{sJ}, 1
          s_add_u32 s50, s50, s51                 ; p = h*4+dq
          s_lshl_b32 s61, s50, 10
          s_add_u32 s61, s61, {CXM}
          v_lshrrev_b32 v30, 3, v{vN}
          v_lshlrev_b32 v30, 14, v30
          v_lshl_add_u32 v30, v31, 4, v30         ; (n>>3)*16K + (n&7)*16
          v_mov_b32 v31, 0xff
          s_and_b32 s41, s{sJ}, 1
          s_mul_i32 s41, s41, {10*16384}
          s_lshl_b32 s50, s50, 7
          s_add_u32 s50, s50, s41
          s_add_u32 s50, s50, {SM}""")
    tagbytes()

def h4_warm(A, cbks):
    g(f"buffer_load_dwordx4 {vr(A,4)}, v29, {sr(WS,4)}, s61 offen sc1")
    for cbk in cbks:
        g(f"""s_add_u32 s51, s50, {cbk*2*16384}
              buffer_load_dwordx4 {vr(A+4,4)}, v30, {sr(WS,4)}, s51 offen sc1""")

def h4_wait(A, late=""):
    Ls = g.nl("h4s")
    onfail = f"""s_cmp_lg_u32 s43, {LIM_MEM-32}
          s_cbranch_scc1 {Ls}
          {late}
          {Ls}:""" if (OPT["fast4"] and late) else ""
    poll_loads("h4", f"""buffer_load_dwordx4 {vr(A,4)}, v29, {sr(WS,4)}, s61 offen sc1
          buffer_load_dwordx4 {vr(A+4,4)}, v29, {sr(WS,4)}, s61 offen offset:16 sc1""", [A+1, A+3, A+5, A+7], 43, sleep=OPT["bk4"], onfail=onfail)
    g(f"v_mov_b32 v{A+1}, v{A+4}\nv_mov_b32 v{A+3}, v{A+6}\ns_nop 1")

def rl_wait():
    lds_wait(F_RLV, 1, 40, extra=f"ds_read_b32 v28, v{VZ} offset:{RLINV}")

def wo_compute(A, frags, cbks, D):
    for bi, fr in enumerate(frags):
        for t in range(4): mfma(D + 16 * bi + 4 * t, A, fr + 4 * t, True)
    g("s_nop 4" if len(frags) == 1 else "s_nop 0")
    for bi, cbk in enumerate(cbks):
        d = D + 16 * bi
        for t in range(4): g(f"v_pk_add_f32 {vr(d+4*t,2)}, {vr(d+4*t,2)}, {vr(d+4*t+2,2)}")
        for t in range(4): g(f"v_add_f32 v{16+t}, v{d+4*t}, v{d+4*t+1}")
        for t in range(4): g(f"v_mov_b32 v{20+t}, v{16+t}")
        g(f"s_add_u32 s51, s50, {cbk*2*16384}")
        for t in range(4): g(f"v_permlane16_swap_b32 v{16+t}, v{20+t}")
        g("v_pk_add_f32 v[16:17], v[16:17], v[20:21]\nv_pk_add_f32 v[18:19], v[18:19], v[22:23]")
        for t in range(4): g(f"v_mul_f32 v{d+t}, v{16+t}, v28")
        tagput([d, d+1, d+2, d+3], 31)
        g(f"""s_mov_b64 exec, 0xffff
              buffer_store_dwordx4 {vr(d,4)}, v30, {sr(WS,4)}, s51 offen sc1
              s_mov_b64 exec, -1""")
    lds_inc(F_SD)

def b1_gate():
    if OPT["b1gate"]:
        land_flush()
        lds_wait(F_STG, OPT['b1gate'], 40, sleep=2)

g.label("L_G")
get_tag(6)
g(f"""s_cmp_eq_u32 s{sWV}, 10
      s_cbranch_scc1 L_G_uv10""")
LD.pending = False
wo_setup(); h4_setup()
b1_gate()
if OPT["wogate"]: land_flush()
wo_gate()
stamp(4)
load_block(32, 6, 44, 48, 42, 1280, TH)
g("s_add_u32 s49, s48, 128")
load_block(48, 6, 44, 49, 42, 1280, TH)
land_flush()
g("s_waitcnt vmcnt(8)")
perm_block(32, 64, KORD)
g("s_waitcnt vmcnt(0)")
perm_block(48, 80, KORD)
h4_warm(8, [0, 1])
stamp(5)
g(f"""v_lshlrev_b32 v16, 3, v{LANE}
      v_lshlrev_b32 v17, 4, v{LANE}
      s_lshl_b32 s52, s{sHF}, 10
      s_add_u32 s52, s52, {HD + 0x8000}""")
g("v_mov_b32 v20, 1.0\nv_mov_b32 v21, 1.0")
lds_wait(F_LT, 1, 40, sleep=1)
g("s_setprio 2")
pc_wait(0xff, 8, 40, 41, off=F_LT, extra=f"ds_read_b64 v[24:25], v16 offset:{LT}")
g("s_cmp_eq_u32 s40, 8\ns_cbranch_scc1 L_unitw")
lds_wait(F_ML, 8, 40)
g(f"ds_read_b64 v[20:21], v16 offset:{MLT}\ns_waitcnt lgkmcnt(0)")
global_max(22, 20)
g(f"""v_sub_f32 v20, v20, v22
      v_sub_f32 v21, v21, v22
      v_exp_f32 v20, v20
      v_exp_f32 v21, v21
      s_nop 0""")
rne(20); rne(21)
g.label("L_unitw")
g("v_mul_f32 v24, abs(v24), v20\nv_fma_f32 v24, abs(v25), v21, v24")
wave_sum(24, 40)
g(f"""s_nop 1
      v_rcp_f32 v24, s40
      s_nop 0
      ds_write_b32 v{VZ}, v24 offset:{RLINV}
      ds_write_b32 v{VZ}, v{VONE} offset:{F_RLV}
      v_mov_b32 v28, v24""")
lds_wait(F_IB, 8, 40, sleep=1)
h4_wait(8)
stamp(6)
wo_compute(8, [64, 80], [0, 1], 96)
stamp(7)
g("s_branch L_G_end")

def uv_loads():
    g(f"""v_lshlrev_b32 v7, 13, v{vKG}
          v_lshl_add_u32 v7, v{vN}, 3, v7
          s_lshl_b32 s56, s{sJ}, 17               ; 16j rows
          s_lshl_b32 s41, s{sHF}, 8
          s_add_u32 s56, s56, s41
          s_sub_u32 s52, s{sWV}, 9                ; colhalf
          s_lshl_b32 s41, s52, 7
          s_add_u32 s56, s56, s41
          s_add_u32 s57, s56, {4*8192}""")
    srd(SR, P_WUV, 4194304)
    b1_gate()
    stamp(4)
    rows = [128 * (e & 3) + 8 * (e >> 2) for e in range(8)]
    load_block(32, 7, SR, 56, 42, 8192, TH, rows)
    load_block(48, 7, SR, 57, 42, 8192, TH, rows)
g.label("L_G_uv10")
g.label("L_G_uv9")
LD.pending = False
uv_loads()
g.label("L_G_uv")
wo_setup(); h4_setup()
g(f"""s_add_u32 s49, s52, 2
      s_mul_i32 s53, s49, {2*16384}
      s_add_u32 s50, s50, s53
      s_lshl_b32 s49, s49, 7
      s_add_u32 s49, s49, s48
      v_and_b32 v7, 7, v{vN}
      v_mul_u32_u24 v8, 144, v{vN}
      v_lshl_add_u32 v8, v{vKG}, 4, v8
      v_lshlrev_b32 v9, 4, v{LANE}
      v_lshrrev_b32 v11, 3, v{vN}
      v_lshlrev_b32 v11, 10, v11
      v_lshl_add_u32 v11, v7, 4, v11          ; (n>>3)*1024 + (n&7)*16
      s_lshl_b32 s40, s{sHF}, 2
      s_lshl_b32 s41, s52, 1
      s_add_u32 s40, s40, s41
      s_lshl_b32 s40, s40, 3
      s_add_u32 s40, s40, s{sJ}
      s_lshl_b32 s40, s40, 7
      s_add_u32 s54, s40, {CXM}""")
if not OPT["wogate"]:
    load_block(64, 6, 44, 49, 42, 1280, TH)
    h4_warm(16, [0])
g(f"""s_cmp_eq_u32 s{sWV}, 9
      s_cbranch_scc0 L_nohd
      s_and_b32 s56, s{sSLOT}, 1
      s_lshl_b32 s56, s56, 7
      s_add_u32 s56, s56, s{sXCD}
      s_lshl_b32 s56, s56, 4
      s_lshr_b32 s57, s{sSLOT}, 1
      s_add_u32 s56, s56, s57
      s_lshl_b32 s56, s56, 3
      s_add_u32 s56, s56, {HD}
      s_add_u32 s57, s56, 0x8000
      v_lshlrev_b32 v15, 10, v{vN}
      v_mov_b32 v24, 0
      v_mov_b32 v25, s{sTAG}
      v_mov_b32 v12, 0
      v_mov_b32 v14, 0
      v_mov_b32 v26, v11
      s_mov_b32 s58, 0x3f803f80""")
pc_wait(0xfff, 0x222, 40, 41, sleep=1)
g("s_setprio 3")
pc_wait(0xffff, 0x2222, 40, 41)
g(f"""s_cmp_lg_u32 s40, 0x2222
      s_cbranch_scc1 L_nohd2""")
g("\n".join(f"ds_read_b128 {vr(128+4*u,4)}, v9 offset:{PL+1024*u}" for u in range(4)))
for u in range(4):
    g(f"s_waitcnt lgkmcnt({3-u})")
    for i in range(4): g(f"v_dot2c_f32_bf16 v{12+2*(i&1)}, s58, v{128+4*u+i}")
lsum()
if OPT["dl"]: g(f"s_sleep {OPT['dl']}")
g(f"""s_mov_b64 exec, 0xffff
      buffer_store_dwordx2 v[12:13], v15, {sr(WS,4)}, s57 offen sc1
      buffer_store_dwordx2 v[24:25], v15, {sr(WS,4)}, s56 offen sc1
      s_mov_b64 exec, -1""")
stamp(10)
g.label("L_nohd2")
g(f"""v_mov_b32 v11, v26
      s_setprio 0
      {"s_waitcnt vmcnt(2)" if not OPT["wogate"] else ""}""")
g.label("L_nohd")
if OPT["wogate"]:
    wo_gate()
    load_block(64, 6, 44, 49, 42, 1280, TH)
    h4_warm(16, [0])
g("s_waitcnt vmcnt(18)")
perm_block(32, 80)
g("s_waitcnt vmcnt(10)")
perm_block(48, 96)
g(f"v_mov_b32 v61, s{sTAG}\nv_mov_b32 v63, s{sTAG}")
g("s_waitcnt vmcnt(0)")
perm_block(64, 112, KORD)
stamp(5)
lds_wait(F_LT, 8, 40, sleep=2)
rl_wait()
g("s_setprio 3")
lds_wait(F_IB, 8, 40)
g(f"""ds_read_b128 v[32:35], v8 offset:{RIB}
      ds_read_b128 v[36:39], v8 offset:{RIB+64}""")
stamp(6)
D = 128
for blk in range(2):
    g(f"s_waitcnt lgkmcnt({1-blk})")
    for t in range(4): mfma(D + 4 * t, 32 + 4 * blk, 80 + 16 * blk + 4 * t, blk == 0)
g("s_nop 4")
for t in range(4): g(f"v_pk_add_f32 {vr(D+4*t,2)}, {vr(D+4*t,2)}, {vr(D+4*t+2,2)}")
for t in range(4): g(f"v_add_f32 v{16+t}, v{D+4*t}, v{D+4*t+1}")
g(f"""s_nop 0
      v_permlane32_swap_b32 v16, v18
      v_permlane32_swap_b32 v17, v19
      v_pk_add_f32 v[16:17], v[16:17], v[18:19]
      v_mov_b32 v18, v16
      v_mov_b32 v19, v17
      s_nop 0
      v_permlane16_swap_b32 v16, v18
      v_permlane16_swap_b32 v17, v19
      v_pk_add_f32 v[16:17], v[16:17], v[18:19]
      v_cvt_pk_bf16_f32 v60, v16, v17
      v_mov_b32 v62, v60
      s_nop 1
      v_permlane32_swap_b32 v60, v62""")
g(f"""s_mov_b64 exec, 0xffff
      buffer_store_dwordx4 v[60:63], v11, {sr(WS,4)}, {"s54 offen" if OPT["fast4"] else "s54 offen sc1"}
      s_mov_b64 exec, -1""")
stamp(7)
late = f"s_mov_b64 exec, 0xffff\nbuffer_store_dwordx4 v[60:63], v11, {sr(WS,4)}, s54 offen sc1"
h4_wait(32, late)
stamp(8)
wo_compute(32, [112], [0], 128)
if OPT["fast4"]: g(f"s_sleep {OPT['d4']}\n" + late + "\ns_mov_b64 exec, -1")
stamp(9)
g("s_branch L_G_end")

g.label("L_FFNb")
PEND = OPT["fgate"] != 9
if OPT["remap"]:
    g(f"""s_and_b32 s40, s{sXCD}, 1
          s_lshl_b32 s62, s{sSLOT}, 1
          s_add_u32 s62, s62, s40                 ; u in 0..63
          s_lshr_b32 s63, s{sXCD}, 1              ; mq""")
else:
    g(f"""s_lshr_b32 s40, s{sSLOT}, 3             ; hq
      s_lshl_b32 s40, s40, 1
      s_and_b32 s41, s{sJ}, 1
      s_add_u32 s40, s40, s41
      s_lshl_b32 s40, s40, 3
      s_add_u32 s62, s40, s{sXCD}             ; u in 0..63
      s_lshr_b32 s63, s{sJ}, 1                ; mq""")
g(f"""v_and_b32 v31, 1, v{vKG}
      v_cmp_eq_u32 s[56:57], 1, v31
      s_cmp_lt_u32 s62, 27
      s_cbranch_scc0 L_FFN2""")
LD.pending = PEND; LD.n = 0
g(f"""v_mul_u32_u24 v28, {8*3456}, v{vKG}
      v_lshl_add_u32 v28, v{vN}, 3, v28
      v_lshlrev_b32 v7, 4, v{vKG}
      s_mul_i32 s58, s63, 320
      v_add_u32 v7, s58, v7
      s_mul_i32 s58, s63, {160*3456}
      s_lshl_b32 s41, s62, 7
      s_add_u32 s58, s58, s41""")
srd(SR, P_W1, 2211840)
stamp(4)
for b in range(5):
    if b: g(f"s_add_u32 s58, s58, {32*3456}")
    load_block(48 + 16 * b, 28, SR, 58, 42, 3456, OPT['fthr'])
land_flush()
D = 144
get_tag(6)
lds_wait(F_XN, 1, 40)
for b in range(5): g(f"ds_read_b128 {vr(XF+4*b,4)}, v7 offset:{XNL+64*b}")
g("s_waitcnt lgkmcnt(0)")
for b in range(5):
    g(f"s_waitcnt vmcnt({8*(4-b)})")
    perm_block(48 + 16 * b, 32 + 16 * b)
    g("s_nop 1")
    for t in range(4): mfma(D + 4 * t, XF + 4 * b, 32 + 16 * b + 4 * t, b == 0)
g(f"""v_lshlrev_b32 v28, 4, v{LANE}
      s_nop 0
      s_lshl_b32 s40, s62, 2
      s_add_u32 s40, s40, s63
      s_lshl_b32 s40, s40, 9
      s_add_u32 s40, s40, {HM}
      v_mov_b32 v9, s{sTAG}
      v_mov_b32 v11, s{sTAG}
      s_nop 1
      v_cndmask_b32 v8, v{D}, v{D+8}, s[56:57]
      v_cndmask_b32 v10, v{D+4}, v{D+12}, s[56:57]
      s_mov_b32 exec_hi, 0
      buffer_store_dwordx4 v[8:11], v28, {sr(WS,4)}, s40 offen sc1
      s_mov_b64 exec, -1
      s_branch L_FFNe""")
g.label("L_FFN2")
g(f"""s_mul_i32 s40, s63, 37
      s_add_u32 s40, s40, s62
      s_sub_u32 s58, s40, 27
      s_cmp_lt_u32 s58, 135
      s_cbranch_scc1 L_FFN2a""")
LD.pending = PEND; LD.n = 0
land_flush()
get_tag(6)
g("s_branch L_FFNe")
g.label("L_FFN2a")
LD.pending = PEND; LD.n = 0
g(f"""s_mul_i32 s59, s58, 205
      s_lshr_b32 s59, s59, 10                 ; fb = v/5
      s_mul_i32 s60, s59, 5
      s_sub_u32 s60, s58, s60                 ; mb
      v_mul_u32_u24 v28, {8*1280}, v{vKG}
      v_lshl_add_u32 v28, v{vN}, 3, v28
      s_mul_i32 s58, s59, {64*1280}
      s_lshl_b32 s41, s60, 8
      s_add_u32 s58, s58, s41""")
srd(SR, P_W2, 2211840)
if OPT["forder"] >= 2:
    land_flush()
    if OPT["forder"] == 2: lds_wait(F_ISS, 2, 40, sleep=2)
    if OPT["forder"] == 3: lds_wait(F_STG, 8, 40, sleep=2)
    if OPT["forder"] == 4: pc_wait(0xff, 8, 40, 41, off=F_LT, sleep=2)
stamp(4)
for ch in range(2):
    for blk in range(2):
        g(f"s_add_u32 s41, s58, {blk*32*1280 + ch*128}")
        load_block(48 + 16 * (2 * ch + blk), 28, SR, 41, 42, 1280, OPT['fthr2'])
land_flush()
get_tag(6)
for b in range(4):
    g(f"s_waitcnt vmcnt({8*(3-b)})")
    perm_block(48 + 16 * b, 32 + 16 * b)
g(f"""v_lshrrev_b32 v28, 2, v{vN}
      v_lshlrev_b32 v28, 9, v28
      v_lshl_add_u32 v28, v{vKG}, 5, v28
      v_bfe_u32 v29, v{vN}, 1, 1
      v_lshl_add_u32 v28, v29, 4, v28
      v_and_b32 v29, 1, v{vN}
      v_lshl_add_u32 v28, v29, 8, v28
      s_lshl_b32 s40, s59, 11
      s_add_u32 s40, s40, {HM}""")
poll_loads("h6", f"""buffer_load_dwordx4 v[8:11], v28, {sr(WS,4)}, s40 offen sc1
      buffer_load_dwordx4 v[12:15], v28, {sr(WS,4)}, s40 offen offset:128 sc1""", [9, 11, 13, 15], 43, sleep=6)
for mod in ("row_ror:4", "row_ror:8"):
    for r in (8, 10, 12, 14): g(f"v_add_f32_dpp v{r}, v{r}, v{r} {mod} {DPPM}")
for r in (8, 10, 12, 14): g(f"v_max_f32 v{r}, 0, v{r}")
g("v_cvt_pk_bf16_f32 v8, v8, v10\nv_cvt_pk_bf16_f32 v12, v12, v14\ns_nop 1")
for blk in range(2):
    for p in range(4):
        g(f"v_mov_b32_dpp v{16+4*blk+p}, v{8+4*blk} quad_perm:[{p},{p},{p},{p}] {DPPM}")
g("s_nop 1")
D = 96
for ch in range(2):
    for blk in range(2):
        for t in range(4): mfma(D + 16 * ch + 4 * t, 16 + 4 * blk, 32 + 16 * (2 * ch + blk) + 4 * t, blk == 0)
g(f"""v_lshrrev_b32 v28, 3, v{vN}
      v_lshlrev_b32 v28, 12, v28
      v_and_b32 v29, 7, v{vN}
      v_lshl_add_u32 v28, v29, 4, v28
      v_mov_b32 v29, 0xff
      s_lshl_b32 s40, s60, 14
      s_lshl_b32 s41, s59, 7
      s_add_u32 s40, s40, s41
      s_add_u32 s40, s40, {YM}
      s_add_u32 s41, s40, {2*4096}""")
tagbytes()
for ch in range(2):
    for t in range(4): g(f"v_bfi_b32 v{8+4*ch+t}, v29, s{sTB+t}, v{D+16*ch+4*t}")
g(f"""s_mov_b64 exec, 0xffff
      buffer_store_dwordx4 v[8:11], v28, {sr(WS,4)}, s40 offen sc1
      buffer_store_dwordx4 v[12:15], v28, {sr(WS,4)}, s41 offen sc1
      s_mov_b64 exec, -1""")
g.label("L_FFNe")
stamp(5)
wo_setup(); h4_setup()
g("s_add_u32 s49, s48, 512")
lds_wait(F_ISS, 2, 40, sleep=2)
b1_gate()
wo_gate()
load_block(128, 6, 44, 49, 42, 1280, TH)
g("s_waitcnt vmcnt(0)")
perm_block(128, 32, KORD)
h4_warm(8, [4])
lds_wait(F_LT, 8, 40, sleep=2)
rl_wait()
lds_wait(F_IB, 8, 40, sleep=1)
g("s_setprio 2")
h4_wait(8)
stamp(6)
wo_compute(8, [32], [4], 48)
stamp(7)
g.label("L_G_end")
if OPT["pad"]:
    g(f"""v_readfirstlane_b32 s40, v{VTS}
          s_cmp_lt_u32 s{sWG}, 8
          s_cbranch_scc0 L_END
          s_add_u32 s40, s40, {OPT["pad"]}""")
    if OPT["padmin"]:
        g(f"""s_load_dwordx2 s[44:45], s[0:1], 80
          s_mov_b32 s46, 256
          s_mov_b32 s47, 0x20000
          v_not_b32 v8, v{VTS}
          s_mov_b64 exec, 1
          s_waitcnt lgkmcnt(0)
          buffer_atomic_umax v8, v{VZ}, s[44:47], 0 offen
          s_waitcnt vmcnt(0)
          s_sleep 100
          buffer_load_dword v8, v{VZ}, s[44:47], 0 offen sc1
          s_waitcnt vmcnt(0)
          v_not_b32 v8, v8
          s_nop 1
          v_readfirstlane_b32 s40, v8
          s_nop 3
          s_add_u32 s40, s40, {OPT["pad"]}""")
    g(f"""L_padl:
          s_memrealtime s[42:43]
          s_waitcnt lgkmcnt(0)
          s_sub_u32 s41, s42, s40
          s_cmp_lt_i32 s41, 0
          s_cbranch_scc1 L_padl""")
ts_flush("G")
g.label("L_END")
g("s_endpgm")
g.l.append(".p2align 12")
g.label("L_CODE_END")

s = file_head([f"; @launch grid=(256,1,1) block=(768,1,1) lds={LDS_BYTES}"])
s += f""".text
.globl {K}
.p2align 12
.type {K},@function
{K}:
"""
s += g.text()
s += kernel_desc(K, 168, 102)
open(OUT, "w").write(s)
print(OUT, "lines", len(g.l), "ws_end", hex(WS_END))
```

```python
import sys, math, struct
from asmlib import *

OPT = dict(ts=0, stop=99, inflight=16, gate=12, ksmap=1, gthr=32, wogate=0, b1gate=0, pol=1, h2iss=2, amax=0, bk2=4, bk3=2, dbg=0, bk4=0, bk5=3, d3=0, d3b=0, d1=8, d5=8, fast4=1, warm=1, pad=0, padmin=0, padat=-1, padw=0, tlb=0, remap=1, pkv=-1, pwq=-1, puk=-1, puv=-1, pwo=-1, pw1=-1, pw2=-1, d2=8, fgate=2, fthr=20, ukgate=0, h2land=3, forder=0, fast1=0, dh=8, ldw=0, d3a=12, hl=0, rng=64, dl=8, uvgate=0, bkh=4, st1=2, osc=1, d4=14, recl=1, rot=5, fthr2=20)
for a in sys.argv[2:]:
    k, v = a.split("=")
    assert k in OPT, k
    OPT[k] = int(v)
OUT = sys.argv[1] if len(sys.argv) > 1 else "k.s"
POLS = {0: "", 1: "nt", 2: "sc1", 3: "sc1 nt", 4: "sc0 sc1", 5: "sc0 sc1 nt", 6: "sc0", 7: "sc0 nt"}
def pol(name): return POLS[OPT[name] if OPT[name] >= 0 else OPT["pol"]]
CUR = {"p": "pwq"}

def f32(x): return struct.unpack("<I", struct.pack("<f", x))[0]

EPOCH = 0
QM   = 0x1000
QF   = QM + 0x80000
HD   = QF + 0x80000
QAM  = HD + 0x10000
CXM  = QAM + 0x10000
HM   = CXM + 0x20000
YM   = HM + 0x10000
SM   = YM + 20 * 4096
IB   = SM + 20 * 16384
WS_END = IB + 256 * 8 * 2048
TSOFF = 0x1000000
WS_REC = 0x2000000 if (OPT["ts"] and not OPT["dbg"]) else WS_END

(F_Q, F_QA, F_LAND, F_ISS, F_H2I, F_STG, F_MAX, F_P, F_IB, F_UK, F_TAG, F_TAGV, F_QP, F_QI, F_SD, F_FIN) = [4 * i for i in range(16)]
RMAX = 0x40
RL   = 0x80
F_H3, F_ML, F_QAP, F_XN, F_L, F_RLV, RLINV, F_LT, F_LA, F_LB, F_WQ, F_PC = 0xC0, 0xC4, 0xC8, 0xCC, 0xD0, 0xD4, 0xD8, 0xDC, 0xE0, 0xE4, 0xE8, 0xEC
REDQ = 0x100
REDQA = 0x600
PL   = 0x1000
RIB  = 0x2000
RFIN = PL
MLT  = 0x2A00
LT   = 0x2C00
RMX  = 0x2E00
RLP  = REDQ
XNL  = 0x3000
QL   = 0x3800
KV   = 0x7800
LDS_BYTES = KV + 0x20000

SCALE = (128 ** -0.5) * math.log2(math.e)
LIM_LDS = 1 << 16
LIM_MEM = 1 << 13

class G:
    def __init__(s): s.l = []; s.n = 0
    def __call__(s, x):
        for ln in x.strip("\n").split("\n"):
            if ln.strip(): s.l.append("  " + ln.strip())
    def label(s, x): s.l.append(x + ":")
    def nl(s, p): s.n += 1; return f"L_{p}_{s.n}"
    def text(s): return "\n".join(s.l) + "\n"
g = G()

def vr(a, n): return f"v[{a}:{a+n-1}]"
def sr(a, n): return f"s[{a}:{a+n-1}]"

LANE, VZ, VONE, VT, vN, vKG = 0, 1, 2, 3, 4, 5
VTS = 167
VL16 = 166
sWG, sWV = 2, 3
WS = 4
SR = 8
sXCD, sSLOT, sHF, sJ = 12, 13, 14, 15
P_X, P_KV, P_WQ, P_WUK, P_WUV, P_WO, P_BX, P_W1, P_W2, P_OUT, P_DBG, P_WS = [16 + 2 * i for i in range(12)]
sHA, sCA = (sSLOT, sXCD) if OPT['remap'] else (sHF, sJ)
sTAG, sCNT = 28, 29
sPLO, sPHI = 100, 101
DPPM = "row_mask:0xf bank_mask:0xf"

def srd(base, ptr, nbytes):
    g(f"""s_mov_b32 s{base}, s{ptr}
          s_mov_b32 s{base+1}, s{ptr+1}
          s_mov_b32 s{base+2}, {nbytes}
          s_mov_b32 s{base+3}, 0x20000""")

def stamp(k):
    if OPT["padat"] == k:
        g(f"s_memrealtime vcc\ns_waitcnt lgkmcnt(0)\nv_writelane_b32 v{VTS}, vcc_lo, 0")
    if not OPT["ts"]: return
    g(f"""s_memrealtime vcc
          s_waitcnt lgkmcnt(0)
          v_writelane_b32 v{VTS}, vcc_lo, {k}""")

def cnt(k, sreg):
    if OPT["ts"]: g(f"v_writelane_b32 v{VTS}, s{sreg}, {k}")

def ts_flush(role="A"):
    if OPT["padat"] >= 0:
        Lp, Le = g.nl("pad"), g.nl("pade")
        g(f"s_nop 4\nv_readlane_b32 s40, v{VTS}, 0")
        g("s_nop 4")
        if OPT["padw"] >= 8: g(f"s_cmp_eq_u32 s{sWV}, {OPT['padw'] % 100}")
        else: g(f"s_cmp_lt_u32 s{sWV}, 8")
        g(f"""s_cbranch_scc0 {Le}
              s_cmp_eq_u32 s40, 0
              s_cbranch_scc1 {Le}
              s_add_u32 s40, s40, 3000
              {Lp}:
              s_sleep 8
              s_memrealtime s[42:43]
              s_waitcnt lgkmcnt(0)
              s_sub_u32 s41, s42, s40
              s_cmp_lt_i32 s41, -40
              s_cbranch_scc1 {Lp}
              {Lp}b:
              s_memrealtime s[42:43]
              s_waitcnt lgkmcnt(0)
              s_sub_u32 s41, s42, s40
              s_cmp_lt_i32 s41, 0
              s_cbranch_scc1 {Lp}b
              {Le}:""")
    if not OPT["ts"]: return
    if OPT["dbg"]:
        sel = {"A": {1: 0, 2: 16, 6: 6, 7: 8, 8: 10, 9: 22, 10: 11, 11: 13, 14: 20, 15: 21}, "G": {3: 1, 4: 2, 5: 3, 12: 7, 13: 9}}[role]
        Ls = g.nl("dbg")
        g(f"""s_cmp_eq_u32 s{sWV}, {0 if role == "A" else 9}
              s_cbranch_scc0 {Ls}
              s_load_dwordx2 s[40:41], s[0:1], 80
              s_mov_b64 exec, -1
              v_mov_b32 v8, 0
              s_mov_b32 s42, 256
              s_mov_b32 s43, 0x20000""")
        for dst, src in sel.items():
            g(f"v_readlane_b32 s44, v{VTS}, {src}\ns_nop 3\nv_writelane_b32 v8, s44, {dst}")
        if role == "A":
            g(f"v_readlane_b32 s44, v{VTS}, 0\ns_nop 3\ns_not_b32 s44, s44\nv_writelane_b32 v8, s44, 0")
        g(f"""v_lshlrev_b32 v{VT}, 2, v{LANE}
              s_mov_b64 exec, 0xffff
              s_waitcnt lgkmcnt(0)
              buffer_atomic_umax v8, v{VT}, s[40:43], 0 offen""")
        g.label(Ls)
        return
    g(f"""s_mul_i32 s{sCNT}, s{sWG}, 12
          s_add_u32 s{sCNT}, s{sCNT}, s{sWV}
          s_lshl_b32 s{sCNT}, s{sCNT}, 7
          s_add_u32 s{sCNT}, s{sCNT}, {TSOFF}
          s_mov_b64 exec, -1
          s_mov_b32 exec_hi, 0
          v_lshlrev_b32 v{VT}, 2, v{LANE}
          buffer_store_dword v{VTS}, v{VT}, {sr(WS,4)}, s{sCNT} offen""")

def lds_wait(off, target, st, extra="", sleep=0):
    L, Lo = g.nl("w"), g.nl("wo")
    g(f"s_mov_b32 s{sCNT}, {LIM_LDS}")
    if sleep:
        Lf = g.nl("wf")
        g(f"s_branch {Lf}")
    g.label(L)
    if sleep:
        g(f"s_sleep {sleep}")
        g.label(Lf)
    g(f"ds_read_b32 v{VT}, v{VZ} offset:{off}")
    if extra: g(extra)
    g(f"""s_waitcnt lgkmcnt(0)
          v_readfirstlane_b32 s{st}, v{VT}
          s_sub_u32 s{sCNT}, s{sCNT}, 1
          s_cbranch_scc1 {Lo}
          s_cmp_ge_u32 s{st}, {target}
          s_cbranch_scc0 {L}""")
    g.label(Lo)

def pc_wait(mask, val, st, st2, extra="", sleep=0, off=None):
    L, Lo = g.nl("pw"), g.nl("pwo")
    g(f"s_mov_b32 s{sCNT}, {LIM_LDS}")
    g.label(L)
    if sleep: g(f"s_sleep {sleep}")
    g(f"ds_read_b32 v{VT}, v{VZ} offset:{F_PC if off is None else off}")
    if extra: g(extra)
    g(f"""s_waitcnt lgkmcnt(0)
          v_readfirstlane_b32 s{st}, v{VT}
          s_sub_u32 s{sCNT}, s{sCNT}, 1
          s_cbranch_scc1 {Lo}
          s_and_b32 s{st2}, s{st}, {hex(mask)}
          s_cmp_eq_u32 s{st2}, {hex(val)}
          s_cbranch_scc0 {L}""")
    g.label(Lo)

def land_wait(target, st, vt2, sleep=0):
    L, Lo = g.nl("lw"), g.nl("lwo")
    g(f"s_mov_b32 s{sCNT}, {LIM_LDS}")
    g.label(L)
    g(f"""ds_read_b64 {vr(vt2,2)}, v{VZ} offset:{F_LA}
          s_waitcnt lgkmcnt(0)
          v_min_u32 v{vt2}, v{vt2}, v{vt2+1}
          s_sub_u32 s{sCNT}, s{sCNT}, 1
          v_readfirstlane_b32 s{st}, v{vt2}
          s_cbranch_scc1 {Lo}
          s_cmp_ge_u32 s{st}, {target}
          s_cbranch_scc1 {Lo}""")
    if sleep: g(f"s_sleep {sleep}")
    g(f"s_branch {L}")
    g.label(Lo)

def lds_inc(off):
    g(f"""s_mov_b64 exec, 1
          ds_add_u32 v{VZ}, v{VONE} offset:{off}
          s_mov_b64 exec, -1""")

def get_tag(vtmp):
    lds_wait(F_TAGV, 1, sTAG, extra=f"ds_read_b32 v{vtmp}, v{VZ} offset:{F_TAG}")
    g(f"v_readfirstlane_b32 s{sTAG}, v{vtmp}")

def wave_sum(v, sdst):
    for mod in ("quad_perm:[1,0,3,2]", "quad_perm:[2,3,0,1]", "row_half_mirror", "row_mirror"):
        g(f"s_nop 1\nv_add_f32_dpp v{v}, v{v}, v{v} {mod} {DPPM}")
    g(f"s_nop 1\nv_add_f32_dpp v{v}, v{v}, v{v} row_bcast:15 row_mask:0xa bank_mask:0xf")
    g(f"s_nop 1\nv_add_f32_dpp v{v}, v{v}, v{v} row_bcast:31 row_mask:0xc bank_mask:0xf")
    g(f"s_nop 1\nv_readlane_b32 s{sdst}, v{v}, 63")

def rne(v):
    g(f"v_cvt_pk_bf16_f32 v{v}, v{v}, v{v}\nv_and_b32 v{v}, 0xffff0000, v{v}")

def ln_stats(x5, tmp, sA, sB, vM, vR):
    u = tmp
    for k in range(5):
        g(f"v_lshlrev_b32 v{u+2*k}, 16, v{x5+k}\nv_and_b32 v{u+2*k+1}, 0xffff0000, v{x5+k}")
    a = u + 10
    g(f"v_add_f32 v{a}, v{u}, v{u+1}")
    for k in range(2, 10): g(f"v_add_f32 v{a}, v{a}, v{u+k}")
    wave_sum(a, sA)
    g(f"s_nop 1\nv_mov_b32 v{vM}, s{sA}\nv_mul_f32 v{vM}, {hex(f32(1.0/640))}, v{vM}")
    for k in range(10): g(f"v_sub_f32 v{u+k}, v{u+k}, v{vM}")
    g(f"v_mul_f32 v{a}, v{u}, v{u}")
    for k in range(1, 10): g(f"v_fmac_f32 v{a}, v{u+k}, v{u+k}")
    wave_sum(a, sB)
    g(f"s_nop 1\nv_mov_b32 v{vR}, s{sB}\nv_mul_f32 v{vR}, {hex(f32(1.0/640))}, v{vR}")
    rne(vR)
    g(f"v_add_f32 v{vR}, {hex(f32(1e-5))}, v{vR}")
    rne(vR)
    g(f"v_sqrt_f32 v{vR}, v{vR}\ns_nop 0")
    rne(vR)
    g(f"v_rcp_f32 v{vR}, v{vR}")
    rne(vM)

def ln_frag(src, dst, t0, vM, vR):
    for k in range(4):
        g(f"""v_lshlrev_b32 v{t0}, 16, v{src+k}
              v_and_b32 v{t0+1}, 0xffff0000, v{src+k}
              v_sub_f32 v{t0}, v{t0}, v{vM}
              v_sub_f32 v{t0+1}, v{t0+1}, v{vM}
              v_cvt_pk_bf16_f32 v{t0+1}, v{t0}, v{t0+1}
              v_lshlrev_b32 v{t0}, 16, v{t0+1}
              v_and_b32 v{t0+1}, 0xffff0000, v{t0+1}
              v_mul_f32 v{t0}, v{t0}, v{vR}
              v_mul_f32 v{t0+1}, v{t0+1}, v{vR}
              v_cvt_pk_bf16_f32 v{dst+k}, v{t0}, v{t0+1}""")

def perm_block(raw, out, order=(0, 1, 2, 3)):
    for p in range(4):
        e = 2 * order[p]
        for d in range(2):
            g(f"v_perm_b32 v{out+4*(2*d)+p}, v{raw+2*(e+1)+d}, v{raw+2*e+d}, s{sPLO}")
            g(f"v_perm_b32 v{out+4*(2*d+1)+p}, v{raw+2*(e+1)+d}, v{raw+2*e+d}, s{sPHI}")

class Landing:
    pending = False
    n = 0
LD = Landing()

def load_block(raw, voff, srdb, sbase, stmp, rowbytes, thr=0, rows=None):
    CUR["p"] = {3456: "pw1", 8192: ("puv" if rows else "pwq"), 1280: ("pw2" if srdb == SR else "pwo")}[rowbytes]
    per = 4095 // rowbytes + 1
    cur = None
    for e in range(8):
        grp, rem = divmod(e, per)
        if grp != cur:
            if grp == 0: so = sbase
            else:
                g(f"s_add_u32 s{stmp}, s{sbase}, {(rows[e] if rows else grp*per)*rowbytes}"); so = stmp
            cur = grp
        if thr:
            g(f"s_waitcnt vmcnt({thr-1})")
            if LD.pending and LD.n >= thr - 1:
                land_now()
        off = f" offset:{rem*rowbytes}" if rem else ""
        g(f"buffer_load_dwordx2 {vr(raw+2*e,2)}, v{voff}, {sr(srdb,4)}, s{so} offen{off} {pol(CUR['p'])}")
        LD.n += 1

def land_now():
    g(f"ds_write_b32 v{VZ}, v{VONE} offset:{F_UK}")
    stamp(2)
    LD.pending = False

def land_flush():
    if LD.pending:
        g(f"s_waitcnt vmcnt({LD.n})")
        land_now()

def tagcheck(regs, acc):
    g(f"v_xor_b32 v{acc}, s{sTAG}, v{regs[0]}")
    for r in regs[1:]:
        g(f"v_bitop3_b32 v{acc}, v{r}, s{sTAG}, v{acc} bitop3:0xbe")
    g(f"v_cmp_ne_u32 vcc, 0, v{acc}")

def poll_loads(nm, loads, tags, scnt, acc=VT, sleep=0, mask=True, b8=False, onfail=""):
    L, Lo = g.nl(nm), g.nl(nm + "o")
    g(f"s_mov_b32 s{scnt}, {LIM_MEM}")
    g.label(L)
    g(loads)
    g("s_waitcnt vmcnt(0)")
    (tagcheck8 if b8 else tagcheck)(tags, acc)
    g(f"s_cbranch_vccz {Lo}")
    if onfail: g(onfail)
    if mask: g("s_mov_b64 exec, vcc")
    if sleep: g(f"s_sleep {sleep}")
    g(f"""s_sub_u32 s{scnt}, s{scnt}, 1
          s_cbranch_scc0 {L}""")
    g.label(Lo)
    if mask: g("s_mov_b64 exec, -1")

def flag16_wait(nm, ap):
    L, Lo = g.nl(nm), g.nl(nm + "o")
    g(f"s_mov_b32 s{sCNT}, {LIM_MEM}\ns_lshl_b32 s18, s{sTAG}, 4")
    g.label(L)
    g(f"""s_load_dwordx16 s[48:63], s[{ap}:{ap+1}], 0 glc
          s_sub_u32 s{sCNT}, s{sCNT}, 1
          s_cbranch_scc1 {Lo}
          s_waitcnt lgkmcnt(0)
          s_add_u32 s19, s48, s49""")
    for k in range(2, 16): g(f"s_add_u32 s19, s19, s{48+k}")
    g(f"s_cmp_eq_u32 s19, s18\ns_cbranch_scc0 {L}")
    g.label(Lo)
    g("s_waitcnt lgkmcnt(0)")

sTB = 66
def tagbytes():
    g(f"""s_and_b32 s{sTB}, s{sTAG}, 1
          s_mul_i32 s{sTB}, s{sTB}, 0x01010101
          s_and_b32 s{sTB+1}, s{sTAG}, 0xfefefefe
          s_or_b32 s{sTB}, s{sTB}, s{sTB+1}
          s_lshr_b32 s{sTB+1}, s{sTB}, 8
          s_lshr_b32 s{sTB+2}, s{sTB}, 16
          s_lshr_b32 s{sTB+3}, s{sTB}, 24""")
def tagput(regs, vmask):
    for d, r in enumerate(regs): g(f"v_bfi_b32 v{r}, v{vmask}, s{sTB+d}, v{r}")
def tagcheck8(bases, acc):
    first = True
    for b in bases:
        for d in range(4):
            if first: g(f"v_xor_b32 v{acc}, s{sTB+d}, v{b+d}"); first = False
            else: g(f"v_bitop3_b32 v{acc}, v{b+d}, s{sTB+d}, v{acc} bitop3:0xbe")
    g(f"v_and_b32 v{acc}, 0xff, v{acc}\nv_cmp_ne_u32 vcc, 0, v{acc}")

def fswz(dst, i, t):
    g(f"""v_lshrrev_b32 v{t}, 1, v{i}
          v_xor_b32 v{dst}, v{t}, v{i}
          v_and_b32 v{dst}, 4, v{dst}
          v_and_or_b32 v{dst}, v{i}, 2, v{dst}
          v_bfe_u32 v{t}, v{i}, 3, 1
          v_or_b32 v{dst}, v{dst}, v{t}""")

def sum_groups(base, n):
    step = 1
    while step < n:
        for a in range(0, n - step, 2 * step):
            g(f"v_pk_add_f32 {vr(base+4*a,2)}, {vr(base+4*a,2)}, {vr(base+4*(a+step),2)}")
            g(f"v_pk_add_f32 {vr(base+4*a+2,2)}, {vr(base+4*a+2,2)}, {vr(base+4*(a+step)+2,2)}")
        step *= 2

def red16(regs, full=True):
    for mod in ("row_ror:4", "row_ror:8"):
        g("s_nop 1")
        for r in regs: g(f"v_add_f32_dpp v{r}, v{r}, v{r} {mod} {DPPM}")
    for sw in (("v_permlane16_swap_b32", "v_permlane32_swap_b32") if full else ("v_permlane16_swap_b32",)):
        for r in regs: g(f"v_mov_b32 v{r+1}, v{r}")
        g("s_nop 1")
        for r in regs: g(f"{sw} v{r}, v{r+1}")
        for r in regs: g(f"v_add_f32 v{r}, v{r}, v{r+1}")

def global_max(dst, t0):
    g(f"""v_max_f32 v{dst}, v{t0}, v{t0+1}""")
    for mod in ("quad_perm:[1,0,3,2]", "quad_perm:[2,3,0,1]", "row_half_mirror", "row_mirror"):
        g(f"s_nop 1\nv_max_f32_dpp v{dst}, v{dst}, v{dst} {mod} {DPPM}")
    for sw in ("v_permlane16_swap_b32", "v_permlane32_swap_b32"):
        g(f"v_mov_b32 v{dst+1}, v{dst}\ns_nop 1\n{sw} v{dst}, v{dst+1}\nv_max_f32 v{dst}, v{dst}, v{dst+1}")

def mfma(d, a, b, first):
    g(f"v_mfma_f32_16x16x32_bf16 {vr(d,4)}, {vr(a,4)}, {vr(b,4)}, {'0' if first else vr(d,4)}")

K = NAME + "_kernel"
g(f"""s_load_dwordx16 s[16:31], s[0:1], 0
      s_load_dwordx8 s[32:39], s[0:1], 64
      s_cmp_ge_u32 s{sWG}, 256
      s_cbranch_scc1 L_END
      v_lshrrev_b32 v{VT}, 6, v0
      v_and_b32 v{LANE}, 63, v0
      v_readfirstlane_b32 s{sWV}, v{VT}
      v_mov_b32 v{VZ}, 0
      v_lshrrev_b32 v{vKG}, 4, v{LANE}
      s_cmp_eq_u32 s{sWV}, 7
      s_cbranch_scc0 L_nopf
      s_getpc_b64 s[44:45]
      L_pc:
      s_sub_u32 s44, s44, L_pc-{K}
      s_subb_u32 s45, s45, 0
      s_and_b32 s41, s{sWG}, 0xf8
      v_add_u32 v10, s41, v{LANE}
      v_lshlrev_b32 v10, 7, v10
      v_cmp_gt_u32 vcc, L_CODE_END-{K}, v10
      s_and_b64 exec, vcc, 0xff
      s_cbranch_execz L_nopf2
      global_load_dword v159, v10, s[44:45]
      L_nopf2:
      s_mov_b64 exec, -1
      L_nopf:
      v_mov_b32 v{VONE}, 1
      v_and_b32 v{vN}, 15, v{LANE}
      s_and_b32 s{sXCD}, s{sWG}, 7
      s_lshr_b32 s{sSLOT}, s{sWG}, 3
      s_lshr_b32 s{sHF}, s{sSLOT}, 3
      s_lshl_b32 s{sJ}, s{sXCD}, 2
      s_add_u32 s{sHF}, s{sHF}, s{sJ}
      s_and_b32 s{sJ}, s{sSLOT}, 7
      s_mov_b32 s{sPLO}, 0x05040100
      s_mov_b32 s{sPHI}, 0x07060302""")
if OPT["ts"] or OPT["padat"] >= 0:
    g(f"v_mov_b32 v{VTS}, 0")
    stamp(0)
if OPT["pad"]:
    g(f"s_memrealtime vcc\ns_waitcnt lgkmcnt(0)\nv_mov_b32 v{VTS}, vcc_lo")
g(f"""s_cmp_ge_u32 s{sWV}, 6
      s_cbranch_scc1 L_OTH
      s_setprio 2
      v_lshlrev_b32 v24, 16, v{vKG}
      v_lshl_add_u32 v24, v{vN}, 3, v24       ; + n*8
      v_mul_u32_u24 v6, 20, v{LANE}
      s_lshr_b32 s40, s{sXCD if OPT["remap"] else sJ}, 1   ; mq
      s_mul_i32 s40, s40, 160
      s_lshl_b32 s41, s{sWV}, 5
      s_add_u32 s40, s40, s41
      s_lshl_b32 s41, s40, 13                 ; row0*8192
      {f"s_lshl_b32 s42, s{sSLOT}, 7" if OPT["remap"] else f"s_lshl_b32 s42, s{sHF}, 8"}
      s_add_u32 s41, s41, s42
      s_and_b32 s42, s{sXCD if OPT["remap"] else sJ}, 1
      s_lshl_b32 s42, s42, {12 if OPT["remap"] else 7}
      s_add_u32 s41, s41, s42                 ; w_q soffset
      s_mov_b32 s46, 5242880
      s_mov_b32 s47, 0x20000
      s_mov_b32 s{SR+2}, 1280
      s_mov_b32 s{SR+3}, 0x20000
      s_cmp_eq_u32 s{sWV}, 5
      s_cbranch_scc0 L_A
      s_setprio 3
      s_waitcnt lgkmcnt(0)
      s_mov_b32 s{SR}, s{P_X}
      s_mov_b32 s{SR+1}, s{P_X+1}
      buffer_load_dwordx4 v[8:11], v6, {sr(SR,4)}, 0 offen
      buffer_load_dword v12, v6, {sr(SR,4)}, 0 offen offset:16
      s_barrier
      s_branch L_LN""")
g.label("L_A")
g(f"""s_waitcnt lgkmcnt(0)
      s_mov_b32 s44, s{P_WQ}
      s_mov_b32 s45, s{P_WQ+1}
      s_nop 1""")
load_block(32, 24, 44, 41, 42, 8192)
g("s_barrier")
lds_inc(F_QI)
srd(WS, P_WS, WS_REC)
g(f"""s_lshl_b32 s40, s40, 1
      v_lshlrev_b32 v112, 4, v{vKG}
      v_add_u32 v112, s40, v112
      v_lshlrev_b32 v113, 4, v{vN}
      s_lshl_b32 s40, s{sWV}, 8
      v_add_u32 v113, s40, v113
      s_branch L_A_q""")
g.label("L_LN")
srd(WS, P_WS, WS_REC)
g(f"v_add_u32 v6, {XNL}, v6\ns_waitcnt vmcnt(0)")
stamp(16)
U, E, Dd = 32, 44, 56
for k in range(5):
    g(f"v_lshlrev_b32 v{U+2*k}, 16, v{8+k}\nv_and_b32 v{U+2*k+1}, 0xffff0000, v{8+k}")
g(f"""v_pk_add_f32 v[14:15], {vr(U,2)}, {vr(U+2,2)}
      v_pk_add_f32 v[16:17], {vr(U+4,2)}, {vr(U+6,2)}
      v_pk_add_f32 v[14:15], v[14:15], {vr(U+8,2)}
      v_pk_add_f32 v[14:15], v[14:15], v[16:17]
      v_add_f32 v14, v14, v15""")
wave_sum(14, 40)
g(f"""s_nop 1
      v_mov_b32 v18, {hex(f32(-1.0/640))}
      v_mul_f32 v18, s40, v18                 ; -mean
      v_mov_b32 v19, v18""")
for k in range(5): g(f"v_pk_add_f32 {vr(E+2*k,2)}, {vr(U+2*k,2)}, v[18:19]")
g(f"v_pk_mul_f32 v[14:15], {vr(E,2)}, {vr(E,2)}")
for k in range(1, 5): g(f"v_pk_fma_f32 v[14:15], {vr(E+2*k,2)}, {vr(E+2*k,2)}, v[14:15]")
g(f"""v_cvt_pk_bf16_f32 v20, v18, v18
      v_add_f32 v14, v14, v15
      v_and_b32 v20, 0xffff0000, v20
      v_mov_b32 v21, v20""")
fill = [f"v_pk_add_f32 {vr(E+2*k,2)}, {vr(U+2*k,2)}, v[20:21]" for k in range(5)]
fill += [f"v_cvt_pk_bf16_f32 v{8+k}, v{E+2*k}, v{E+2*k+1}" for k in range(5)]
fill += [x for k in range(5) for x in (f"v_lshlrev_b32 v{Dd+2*k}, 16, v{8+k}", f"v_and_b32 v{Dd+2*k+1}, 0xffff0000, v{8+k}")]
steps = [f"v_add_f32_dpp v14, v14, v14 {m} {DPPM}" for m in ("quad_perm:[1,0,3,2]", "quad_perm:[2,3,0,1]", "row_half_mirror", "row_mirror")]
steps += ["v_add_f32_dpp v14, v14, v14 row_bcast:15 row_mask:0xa bank_mask:0xf", "v_add_f32_dpp v14, v14, v14 row_bcast:31 row_mask:0xc bank_mask:0xf", "v_readlane_b32 s42, v14, 63"]
for st_ in steps:
    g(st_); g(fill.pop(0)); g(fill.pop(0))
g(f"""v_mov_b32 v22, {hex(f32(1.0/640))}
      v_mul_f32 v22, s42, v22""")
rne(22)
g(f"v_add_f32 v22, {hex(f32(1e-5))}, v22")
rne(22)
g("v_sqrt_f32 v22, v22"); g(fill.pop(0))
rne(22)
g("v_rcp_f32 v22, v22")
while fill: g(fill.pop(0))
g("v_mov_b32 v23, v22")
for k in range(5): g(f"v_pk_mul_f32 {vr(Dd+2*k,2)}, {vr(Dd+2*k,2)}, v[22:23]")
for k in range(5): g(f"v_cvt_pk_bf16_f32 v{8+k}, v{Dd+2*k}, v{Dd+2*k+1}")
g(f"""ds_write2_b32 v6, v8, v9 offset0:0 offset1:1
      ds_write2_b32 v6, v10, v11 offset0:2 offset1:3
      ds_write_b32 v6, v12 offset:16
      ds_write_b32 v{VZ}, v{VONE} offset:{F_XN}""")
stamp(17)
g("s_branch L_A_q")
g.label("L_OTH")
g(f"""s_cmp_eq_u32 s{sWV}, 6
      s_cbranch_scc0 L_noinit
      v_lshlrev_b32 v8, 2, v{LANE}
      ds_write_b32 v8, v{VZ}
      s_waitcnt lgkmcnt(0)
      L_noinit:
      s_cmp_eq_u32 s{sWV}, 9
      s_cbranch_scc1 L_G9
      s_barrier
      s_cmp_lt_u32 s{sWV}, 8
      s_cbranch_scc0 L_OTH2
      s_waitcnt lgkmcnt(0)""")
srd(WS, P_WS, WS_REC)
if OPT["tlb"]:
    g(f"""s_cmp_eq_u32 s{sWV}, 7
          s_cbranch_scc0 L_A_q
          s_and_b32 s40, s{sSLOT}, 7
          s_lshl_b32 s40, s40, 6
          s_lshr_b32 s41, s{sSLOT}, 3             ; 0..3
          s_lshl_b32 s42, s41, 20
          s_add_u32 s42, s42, s40
          s_and_b32 s43, s41, 1
          s_lshl_b32 s43, s43, 20
          s_add_u32 s43, s43, s40
          s_lshl_b32 s44, s{sXCD}, 21
          s_add_u32 s44, s44, s43
          s_add_u32 s45, s40, 0x400000
          s_add_u32 s46, s40, 0x200000
          s_add_u32 s47, s43, 0x400000
          s_load_dword s52, s[{P_KV}:{P_KV+1}], s44
          s_load_dword s53, s[{P_WUK}:{P_WUK+1}], s42
          s_load_dword s54, s[{P_W1}:{P_W1+1}], s43
          s_load_dword s55, s[{P_W2}:{P_W2+1}], s43
          s_load_dword s56, s[{P_WS}:{P_WS+1}], s42
          s_load_dword s57, s[{P_WUV}:{P_WUV+1}], s42
          s_load_dword s58, s[{P_WO}:{P_WO+1}], s42
          s_load_dword s59, s[{P_WO}:{P_WO+1}], s45
          s_load_dword s60, s[{P_W1}:{P_W1+1}], s46
          s_load_dword s61, s[{P_W2}:{P_W2+1}], s46
          s_load_dword s62, s[{P_WS}:{P_WS+1}], s47
          s_load_dword s63, s[{P_OUT}:{P_OUT+1}], 0
          s_waitcnt lgkmcnt(0)""")
g("s_branch L_A_q")
g.label("L_OTH2")
g(f"""      s_cmp_eq_u32 s{sWV}, 9
      s_cbranch_scc1 L_G9
      s_cmp_eq_u32 s{sWV}, 11
      s_cbranch_scc1 L_FFN""")
g(f"v_lshrrev_b32 v32, 3, v{LANE}")
fswz(33, 32, 34)
g(f"""v_and_b32 v34, 7, v{LANE}
      v_xor_b32 v33, v33, v34
      v_lshlrev_b32 v33, 4, v33
      v_lshl_add_u32 v36, v32, 10, v33
      s_bfe_u32 s43, s{sWV}, 0x10001
      s_and_b32 s40, s43, 1
      s_mul_i32 s40, s40, 80
      v_xor_b32 v36, s40, v36
      s_lshr_b32 s41, s{sSLOT}, 1""")
if OPT["ksmap"] == 0:
    g(f"s_lshl_b32 s41, s41, 3\ns_add_u32 s41, s41, s{sXCD}             ; ks")
else:
    g(f"s_lshl_b32 s42, s{sXCD}, 4\ns_add_u32 s41, s41, s42             ; ks")
g(f"""s_mul_i32 s51, s41, {OPT["rot"]}
      s_add_u32 s51, s51, s43
      s_lshl_b32 s51, s51, 13
      s_and_b32 s51, s51, 0x1ffff
      s_lshl_b32 s52, s41, 17                 ; ks*128KB
      s_add_u32 s41, s52, s51
      s_lshl_b32 s42, s43, 10
      s_add_u32 s42, s42, {KV}
      s_waitcnt lgkmcnt(0)""")
srd(44, P_KV, 16777216)
srd(WS, P_WS, WS_REC)
if OPT["gate"]:
    lds_wait(F_WQ if OPT["gate"] < 10 else F_Q, OPT["gate"] % 10, 40, sleep=1)
stamp(8)
NI = OPT["inflight"]
assert 1 <= NI <= 32
g(f"""s_lshl_b32 s48, s43, 2
      v_mov_b32 v37, s48
      s_mov_b32 s43, 0""")
g.label("L_ld")
for k in range(16):
    cb, hi = k & 7, k >> 3
    g(f"s_add_u32 m0, s42, {cb*(16384-128) + hi*2048}")
    if k == 8: g(f"s_add_u32 s51, s51, {2*8192}\ns_and_b32 s51, s51, 0x1ffff\ns_add_u32 s41, s52, s51")
    g(f"s_waitcnt vmcnt({NI-1})")
    if k == (NI - 1) % 16:
        g(f"""s_sub_u32 s48, s43, {(NI - 1) // 16}
              s_max_i32 s48, s48, 0
              v_mov_b32 v38, s48
              ds_write_b32 v37, v38 offset:{F_LA}""")
    g(f"buffer_load_dwordx4 v36, {sr(44,4)}, s41 offen offset:{cb*128} {pol('pkv')} lds")
g(f"""s_add_u32 s51, s51, {2*8192}
      s_and_b32 s51, s51, 0x1ffff
      s_add_u32 s41, s52, s51
      s_add_u32 s42, s42, {4*1024}
      s_add_u32 s43, s43, 1
      s_cmp_lt_u32 s43, 4
      s_cbranch_scc1 L_ld""")
lds_inc(F_ISS)
stamp(1)
g(f"""v_mov_b32 v38, 3
      v_mov_b32 v39, 4
      s_waitcnt vmcnt(16)
      ds_write_b32 v37, v38 offset:{F_LA}
      s_waitcnt vmcnt(0)
      ds_write_b32 v37, v39 offset:{F_LA}""")
stamp(2)
g("s_branch L_G")
g.label("L_FFN")
XF = 8
g("s_waitcnt lgkmcnt(0)")
srd(WS, P_WS, WS_REC)
srd(SR, P_WUK, 4194304)
g(f"""v_xor_b32 v8, v{vN}, v{vKG}
      v_lshlrev_b32 v8, 4, v8
      v_lshl_add_u32 v8, v{vKG}, 13, v8
      v_xor_b32 v9, 64, v8
      v_xor_b32 v10, 128, v8
      v_xor_b32 v11, 192, v8
      s_lshl_b32 s48, s{sCA}, 19
      s_lshl_b32 s49, s{sHA}, 8
      s_add_u32 s48, s48, s49""")
if OPT["ukgate"]: lds_wait(F_WQ, OPT["ukgate"], 40)
else: lds_wait(F_QI, 5, 40)
for u in range(16):
    g(f"s_mov_b32 m0, {QL + u*1024}")
    g(f"s_add_u32 s49, s48, {u*4*8192}")
    g(f"buffer_load_dwordx4 v{8+(u&3)}, {sr(SR,4)}, s49 offen {pol('puk')} lds")
if OPT["fgate"] == 9:
    g("s_waitcnt vmcnt(0)"); land_now()
elif OPT["fgate"]:
    lds_wait(F_Q, OPT["fgate"], 40, sleep=1)
if OPT["forder"] == 1: lds_wait(F_ISS, 2, 40, sleep=2)
g("s_branch L_FFNb")
FFN_EARLY_END = True
g.label("L_G9")
g(f"""s_setprio 3
      s_waitcnt lgkmcnt(0)
      s_load_dword s40, s[{P_WS}:{P_WS+1}], {EPOCH}
      s_barrier""")
srd(WS, P_WS, WS_REC)
g(f"""v_lshlrev_b32 v8, 4, v{vN}              ; n*16
      s_lshl_b32 s41, s{sHA}, 3
      s_add_u32 s41, s41, s{sCA}
      s_lshl_b32 s41, s41, 8
      s_add_u32 s43, s41, {QAM}""")
if OPT["remap"]:
    g(f"""s_and_b32 s42, s{sXCD}, 1
          s_lshl_b32 s42, s42, 4
          s_lshr_b32 s41, s{sSLOT}, 1
          s_add_u32 s42, s42, s41                 ; hQ
          s_lshl_b32 s42, s42, 14
          s_and_b32 s41, s{sXCD}, 6
          s_and_b32 s45, s{sSLOT}, 1
          s_add_u32 s41, s41, s45
          s_lshl_b32 s41, s41, 8""")
else:
    g(f"s_lshl_b32 s42, s{sHF}, 14\ns_lshl_b32 s41, s{sJ}, 8")
g(f"""
      s_add_u32 s42, s42, s41
      s_add_u32 s42, s42, {QM}
      s_add_u32 s45, s42, 8192
      v_lshl_add_u32 v7, v{vKG}, 11, v8
      v_lshlrev_b32 v6, 4, v{LANE}
      s_lshl_b32 s47, s{sHF}, 3
      s_add_u32 s47, s47, s{sJ}
      s_lshl_b32 s47, s47, 11
      s_add_u32 s47, s47, {QF}
      v_mov_b32 v11, 1
      s_waitcnt lgkmcnt(0)
      s_mul_i32 s{sTAG}, s40, 1664525
      s_add_u32 s{sTAG}, s{sTAG}, 1013904223
      v_mov_b32 v10, s{sTAG}
      v_mov_b32 v13, s{sTAG}
      v_mov_b32 v15, s{sTAG}
      ds_write_b64 v{VZ}, v[10:11] offset:{F_TAG}""")
stamp(1)
if OPT["warm"]:
    g(f"""s_and_b32 s46, s{sSLOT}, 1
          s_lshl_b32 s46, s46, 7
          s_add_u32 s46, s46, s{sXCD}
          s_lshl_b32 s46, s46, 7
          s_add_u32 s46, s46, {HD}
          v_lshlrev_b32 v9, 10, v{vN}
          v_and_b32 v16, 1, v{vKG}
          v_lshl_add_u32 v9, v16, 15, v9""")
    lds_wait(F_QI, 5, 40)
    if OPT["fast1"]:
        g(f"""buffer_load_dwordx4 v[16:19], v6, {sr(WS,4)}, s47 offen sc1
              buffer_load_dwordx4 v[16:19], v6, {sr(WS,4)}, s47 offen offset:1024 sc1""")
    g(f"""buffer_load_dwordx4 v[16:19], v7, {sr(WS,4)}, s42 offen sc1
          buffer_load_dwordx4 v[16:19], v7, {sr(WS,4)}, s45 offen sc1
          buffer_load_dwordx4 v[16:19], v8, {sr(WS,4)}, s43 offen sc1
          buffer_load_dword v16, v9, {sr(WS,4)}, s46 offen sc1""")
lds_wait(F_Q, 5, 40)
g("\n".join(f"ds_read_b128 {vr(32+4*b,4)}, v8 offset:{REDQ+256*b}" for b in range(5)))
g("s_waitcnt lgkmcnt(0)")
sum_groups(32, 5)
g(f"""v_cvt_pk_bf16_f32 v12, v32, v33
      v_cvt_pk_bf16_f32 v14, v34, v35""")
if OPT["fast1"]:
    g(f"""buffer_store_dwordx4 v[12:15], v6, {sr(WS,4)}, s47 offen
          ds_write_b32 v{VZ}, v{VONE} offset:{F_QP}
          buffer_store_dwordx4 v[12:15], v6, {sr(WS,4)}, s47 offen offset:1024""")
g(f"""buffer_store_dwordx4 v[12:15], v7, {sr(WS,4)}, s42 offen sc1
      buffer_store_dwordx4 v[12:15], v7, {sr(WS,4)}, s45 offen sc1
      ds_write_b32 v{VZ}, v{VONE} offset:{F_QP}
      v_mov_b32 v20, v12
      v_mov_b32 v21, v13
      v_mov_b32 v22, v14
      v_mov_b32 v23, v15
      s_mov_b64 exec, 0xffff""")
stamp(2)
lds_wait(F_QA, 8, 40)
g("\n".join(f"ds_read_b128 {vr(32+4*b,4)}, v8 offset:{REDQA+256*b}" for b in range(8)))
g("s_waitcnt lgkmcnt(0)")
sum_groups(32, 8)
for r in range(4): g(f"v_mul_f32 v{32+r}, {hex(f32(SCALE))}, v{32+r}")
g(f"""v_cvt_pk_bf16_f32 v12, v32, v33
      v_cvt_pk_bf16_f32 v14, v34, v35
      buffer_store_dwordx4 v[12:15], v8, {sr(WS,4)}, s43 offen sc1
      ds_write_b32 v{VZ}, v{VONE} offset:{F_QAP}
      s_mov_b64 exec, -1
      s_setprio 0""")
stamp(3)
if OPT["uvgate"] < 2: lds_wait(F_H2I if OPT["uvgate"] else F_ISS, 8 if OPT["uvgate"] else 2, 40, sleep=1)
else: g("s_sleep 16")
if OPT["fast1"] and OPT["recl"]:
    g(f"""buffer_store_dwordx4 v[20:23], v6, {sr(WS,4)}, s47 offen sc1
          buffer_store_dwordx4 v[20:23], v6, {sr(WS,4)}, s47 offen offset:1024 sc1""")
g("s_branch L_G_uv9")

g.label("L_A_q")
g("s_setprio 2")
g(f"""s_and_b32 s40, s{sSLOT}, 1              ; g
      s_lshl_b32 s41, s40, 4
      s_lshl_b32 s42, s{sWV}, 1
      s_add_u32 s41, s41, s42                 ; 16g+2w
      s_lshl_b32 s41, s41, 11
      s_add_u32 s20, s41, {QAM}
      s_lshr_b32 s21, s{sSLOT}, 1             ; mi 0..15
      s_lshl_b32 s42, s40, 7                  ; 16g*8
      s_add_u32 s42, s42, s{sWV}
      s_lshl_b32 s42, s42, 3
      s_add_u32 s42, s42, s{sXCD}
      s_lshl_b32 s42, s42, 4
      s_add_u32 s42, s42, s21
      s_lshl_b32 s42, s42, 7
      s_add_u32 s26, s42, {IB}
      s_add_u32 s22, s26, {2*8*8*2048}
      s_lshl_b32 s42, s40, 7                  ; 16g*8
      s_add_u32 s42, s42, s{sXCD}
      s_lshl_b32 s42, s42, 4
      s_add_u32 s42, s42, s21
      s_lshl_b32 s42, s42, 3
      s_add_u32 s27, s42, {HD}
      s_add_u32 s23, s27, 0x8000
      s_lshl_b32 s42, s{sHF}, 3
      s_add_u32 s42, s42, s{sWV}
      s_lshl_b32 s42, s42, 7
      s_add_u32 s31, s42, {HD}
      s_lshl_b32 s42, s{sHF}, 3
      s_add_u32 s42, s42, s{sJ}
      s_lshl_b32 s42, s42, 3
      s_add_u32 s42, s42, s{sWV}              ; (h*8+j)*8+w
      s_lshl_b32 s30, s42, 11
      s_add_u32 s30, s30, {IB}
      s_lshl_b32 s42, s{sHA}, 3
      s_add_u32 s42, s42, s{sCA}
      s_lshl_b32 s42, s42, 3
      s_add_u32 s42, s42, s{sWV}
      s_lshl_b32 s42, s42, 8
      s_add_u32 s42, s42, {QM}
      s_add_u32 s32, s{WS}, s42
      s_addc_u32 s33, s{WS+1}, 0
      s_lshl_b32 s42, s{sHF}, 3
      s_add_u32 s42, s42, s{sWV}
      s_lshl_b32 s42, s42, 11
      s_add_u32 s42, s42, {QF}
      s_add_u32 s8, s{WS}, s42
      s_addc_u32 s9, s{WS+1}, 0
      s_and_b32 s40, s{sWV}, 1
      s_lshl_b32 s40, s40, 3                  ; 8*dhalf'
      v_xor_b32 v6, s40, v{vN}
      v_lshlrev_b32 v6, 4, v6
      v_lshl_add_u32 v6, v{LANE}, 8, v6       ; row*256 + ...
      v_lshlrev_b32 v10, 2, v{LANE}
      s_lshl_b32 s40, s{sWV}, 8
      v_add_u32 v10, s40, v10
      v_mov_b32 v8, 0
      v_mov_b32 v9, 0""")
W = 80
QKA, PVA = 32, 96
fswz(24, vN, 25)
g(f"""v_xor_b32 v24, v24, v{vKG}
      v_lshlrev_b32 v24, 4, v24
      v_and_b32 v25, 7, v{vN}
      v_lshl_add_u32 v24, v25, 7, v24         ; + (i&7)*128
      v_lshrrev_b32 v25, 3, v{vN}
      v_lshl_add_u32 v24, v25, 10, v24        ; + (i>>3)*1024
      s_lshl_b32 s42, s{sWV}, 11
      s_add_u32 s42, s42, {KV}
      v_add_u32 v160, s42, v24
      v_xor_b32 v161, 64, v160
      v_add_u32 v162, 0x10000, v160
      v_add_u32 v163, 0x10000, v161
      v_lshrrev_b32 v26, 2, v{LANE}           ; i16""")
fswz(24, 26, 25)
g(f"""s_and_b32 s42, s{sWV}, 3
      s_lshl_b32 s42, s42, 1
      v_bfe_u32 v25, v{LANE}, 1, 1
      v_or_b32 v25, s42, v25                  ; xi = 2(w&3) + (c'>>1)
      v_xor_b32 v24, v24, v25
      v_lshlrev_b32 v24, 4, v24
      v_and_b32 v25, 1, v{LANE}
      v_lshl_add_u32 v24, v25, 3, v24
      v_and_b32 v25, 7, v26
      v_lshl_add_u32 v24, v25, 7, v24
      v_lshrrev_b32 v25, 3, v26
      v_lshl_add_u32 v24, v25, 10, v24
      s_lshr_b32 s42, s{sWV}, 2
      s_lshl_b32 s42, s42, 14
      s_add_u32 s42, s42, {KV}
      v_add_u32 v164, s42, v24
      v_add_u32 v165, 0x10000, v164
      v_lshrrev_b32 v24, 1, v{vN}             ; xi
      v_and_b32 v25, 4, v24
      v_lshl_or_b32 v25, v25, 1, v24          ; sigma
      s_lshl_b32 s42, s{sWV}, 1
      v_xor_b32 v25, s42, v25
      v_lshlrev_b32 v25, 4, v25
      v_lshl_add_u32 v25, v24, 8, v25         ; + xi*256
      v_lshl_add_u32 v25, v{vKG}, 11, v25     ; + (l>>4)*2048
      v_and_b32 v24, 1, v{LANE}
      v_lshl_add_u32 v28, v24, 3, v25
      v_xor_b32 v29, 16, v28
      v_xor_b32 v30, v{vN}, v{vKG}
      v_lshlrev_b32 v30, 4, v30
      v_lshl_add_u32 v30, v{vKG}, 8, v30
      v_xor_b32 v31, {12*16}, v30             ; odd s
      v_lshlrev_b32 v166, 4, v{LANE}          ; lane*16""")
g(f"s_cmp_ge_u32 s{sWV}, 5\ns_cbranch_scc1 L_A_q2")
for p in range(4):
    g(f"s_waitcnt vmcnt({6-2*p})")
    if p == 0: lds_inc(F_WQ)
    e = 2 * p
    for d in range(2):
        g(f"v_perm_b32 v{48+8*d+p}, v{32+2*(e+1)+d}, v{32+2*e+d}, s{sPLO}")
        g(f"v_perm_b32 v{48+8*d+4+p}, v{32+2*(e+1)+d}, v{32+2*e+d}, s{sPHI}")
stamp(18)
lds_wait(F_XN, 1, 19, extra=f"ds_read_b128 v[116:119], v112 offset:{XNL}")
for t in range(4): mfma(64 + 4 * t, 116, 48 + 4 * t, True)
g(f"""s_nop 6
      v_mov_b32 v65, v68
      v_mov_b32 v66, v72
      v_mov_b32 v67, v76
      s_mov_b64 exec, 0xffff
      ds_write_b128 v113, v[64:67] offset:{REDQ}
      s_mov_b64 exec, 1
      ds_add_u32 v{VZ}, v{VONE} offset:{F_Q}
      s_mov_b64 exec, -1""")
g.label("L_A_q2")
stamp(2)
get_tag(7)
g(f"s_lshl_b32 s18, s{sTAG}, 5              ; 32*TAG")
def wreads():
    for e in range(8):
        if e: g(f"v_xor_b32 v7, {e*16}, v6")
        g(f"ds_read_b128 {vr(W+4*e,4)}, v{6 if e == 0 else 7} offset:{QL}")
lds_wait(F_QP, 1, 19, sleep=1)
if OPT["d1"]: g(f"s_sleep {OPT['d1']}")
g(f"""ds_read_b32 v{VT}, v{VZ} offset:{F_UK}
      s_waitcnt lgkmcnt(0)
      v_readfirstlane_b32 s24, v{VT}
      s_nop 0
      s_cmp_eq_u32 s24, 0
      s_cbranch_scc1 L_now""")
wreads()
g.label("L_now")
stamp(3)
L, Lo = g.nl("h1"), g.nl("h1o")
g(f"s_mov_b32 s{sCNT}, {LIM_MEM}")
g.label(L)
if OPT["fast1"]:
    Lg, Lc = g.nl("h1g"), g.nl("h1c")
    g(f"s_cmp_le_u32 s{sCNT}, {LIM_MEM-8}\ns_cbranch_scc1 {Lg}")
    for k in range(4):
        g(f"s_load_dwordx16 {sr(36+16*k,16)}, s[8:9], {64*k}")
    g(f"s_add_u32 s8, s8, 256\ns_addc_u32 s9, s9, 0\ns_branch {Lc}")
    g.label(Lg)
for k in range(4):
    g(f"s_load_dwordx16 {sr(36+16*k,16)}, s[32:33], {64*k} glc")
if OPT["fast1"]: g.label(Lc)
g(f"""s_sub_u32 s{sCNT}, s{sCNT}, 1
      s_cbranch_scc1 {Lo}
      s_waitcnt lgkmcnt(0)
      s_cmp_eq_u32 s99, s{sTAG}
      s_cbranch_scc0 {L}
      s_add_u32 s19, s37, s39""")
for k in range(2, 32):
    g(f"s_add_u32 s19, s19, s{37+2*k}")
g(f"s_cmp_eq_u32 s19, s18\ns_cbranch_scc0 {L}")
g.label(Lo)
cnt(23, sCNT)
stamp(1)
g(f"""s_cmp_eq_u32 s24, 0
      s_cbranch_scc0 L_havew""")
lds_wait(F_UK, 1, 19)
wreads()
g.label("L_havew")
for k in range(32):
    if k % 4 == 0: g(f"s_waitcnt lgkmcnt({7 - k//4})")
    g(f"v_dot2c_f32_bf16 v{8+(k&1)}, s{36+2*k}, v{W+k}")
g(f"""s_nop 2
      v_add_f32 v8, v8, v9
      ds_write_b32 v10, v8 offset:{REDQA}""")
lds_inc(F_QA)
stamp(4)
def qka_reads():
    for s in range(16):
        cb = s >> 1
        a = 160 + (s & 1) + (2 if cb >= 4 else 0)
        g(f"ds_read_b128 {vr(QKA+4*s,4)}, v{a} offset:{(cb&3)*16384}")
def pva_reads(u):
    for i in range(4):
        for hh in range(2):
            T = 2 * u + hh
            g(f"ds_read_b64_tr_b16 {vr(PVA+16*i+4*u+2*hh,2)}, v{164+(i>>1)} offset:{(i&1)*32768+T*2048}")
h2_loads = "\n".join(f"buffer_load_dwordx4 {vr(8+4*n,4)}, v{VL16}, {sr(WS,4)}, s20 offen offset:{1024*n} sc1" for n in range(4))
g(f"""s_lshr_b32 s42, s{sWV}, 1
      s_lshl_b32 s48, s42, 2
      s_lshl_b32 s48, 1, s48
      s_add_u32 s49, s48, 0x10000
      s_mov_b32 s50, {hex(f32(OPT["rng"]))}
      s_lshl_b32 s42, s42, 10
      s_and_b32 s43, s{sWV}, 1
      s_lshl_b32 s43, s43, 3
      s_add_u32 s42, s42, s43
      v_add_u32 v7, s42, v{VL16}
      v_add_u32 v28, {QL}, v28
      v_add_u32 v29, {QL}, v29
      v_add_u32 v26, 8192, v28
      v_add_u32 v27, 8192, v29
      s_and_b32 s45, s{sTAG}, 1
      s_mul_i32 s45, s45, 0x55555555
      s_and_b32 s44, s{sTAG}, 0xaaaaaaaa
      s_or_b32 s45, s45, s44
      s_mov_b32 s44, 0x00010001""")
lds_wait(F_QAP, 1, 42)
if OPT["d2"]: g(f"s_sleep {OPT['d2']}")
def h2_issue(lv):
    if OPT["h2land"] == lv:
        g(h2_loads); lds_inc(F_H2I); stamp(5)
h2_issue(0)
land_wait(2, 42, 24, sleep=1)
h2_issue(2)
pva_reads(0); pva_reads(1)
land_wait(3, 42, 24, sleep=1)
h2_issue(3)
pva_reads(2)
g(f"s_cmp_lt_u32 s{sWV}, 6\ns_cbranch_scc1 L_qka")
land_wait(4, 42, 24)
g.label("L_qka")
qka_reads()
stamp(6)
L, Lo = g.nl("h2c"), g.nl("h2co")
g(f"s_mov_b32 s43, {LIM_MEM}")
g.label(L)
g("s_waitcnt vmcnt(0)")
tagcheck([9, 11, 13, 15, 17, 19, 21, 23], 24)
g(f"""s_cbranch_vccz {Lo}
      s_sub_u32 s43, s43, 1
      s_cbranch_scc1 {Lo}
      s_sleep {OPT["bk2"]}
      s_mov_b64 exec, vcc""")
g(h2_loads)
g(f"s_mov_b64 exec, -1\ns_branch {L}")
g.label(Lo)
cnt(24, 43)
stamp(7)
for n in range(4):
    g(f"ds_write2_b32 v{[28, 26, 29, 27][n]}, v{8+4*n}, v{10+4*n} offset0:0 offset1:1")
lds_inc(F_STG)
def bread(s): return f"ds_read_b128 {vr(8+4*(s&3),4)}, v{30+(s&1)} offset:{QL+s*1024}"
lds_wait(F_STG, 8, 42)
stamp(8)
g("\n".join(bread(s) for s in range(4)))
SA = 24
for s in range(16):
    g(f"s_waitcnt lgkmcnt({min(3, 15-s)})")
    mfma(SA, QKA + 4 * s, 8 + 4 * (s & 3), s == 0)
    if s + 4 < 16: g(bread(s + 4))
VM = 10
PF, OA = 32, 48
def pread(u): return f"ds_read_b128 {vr(PF+4*u,4)}, v{VL16} offset:{PL+1024*u}"
g("s_nop 7")
for r in range(4): g(f"v_exp_f32 v{12+r}, v{SA+r}")
g(f"""v_max3_f32 v9, v{SA}, v{SA+1}, v{SA+2}
      v_cvt_pk_bf16_f32 v16, v12, v13
      v_cvt_pk_bf16_f32 v17, v14, v15
      v_max_f32 v9, v9, v{SA+3}
      ds_write_b64 v7, v[16:17] offset:{PL}
      v_cmp_nle_f32 vcc, abs(v9), s50
      s_cmp_lg_u64 vcc, 0
      s_cselect_b32 s48, s49, s48
      s_mov_b64 exec, 1
      v_mov_b32 v8, s48
      ds_add_u32 v{VZ}, v8 offset:{F_PC}
      s_mov_b64 exec, -1""")
pva_reads(3)
stamp(15)
TP, IBV = 80, 84
fill = [f"v_lshrrev_b32 v12, 3, v{vN}",
        f"v_lshl_add_u32 v12, v{vKG}, 2, v12      ; head = 4q + (j>>3)",
        f"v_lshlrev_b32 v{IBV}, 17, v12",
        f"v_and_b32 v12, 7, v{vN}",
        f"v_lshl_add_u32 v{IBV}, v12, 4, v{IBV}",
        f"v_and_b32 v12, 3, v{LANE}",
        f"v_lshlrev_b32 v12, 3, v12",
        f"v_lshrrev_b32 v12, v12, s45",
        f"v_and_b32 v13, 0xff, v12", f"v_lshlrev_b32 v12, 15, v13", f"v_or_b32 v12, v12, v13"]
for d in range(4): fill += [f"v_lshrrev_b32 v13, {2*d}, v12", f"v_and_b32 v{TP+d}, s44, v13"]
S1 = 2
for _ in range(3): g(fill.pop(0))
pc_wait(0xff, 0x22, 42, 48)
g("\n".join(pread(u) for u in range(S1)))
for u in range(S1):
    g(f"s_waitcnt lgkmcnt({S1-1-u})")
    for i in range(4):
        mfma(OA + 4 * i, PF + 4 * u, PVA + 16 * i + 4 * u, u == 0)
        for _ in range(2): g(fill.pop(0))
assert not fill
pc_wait(0xffff, 0x2222, 42, 48)
g("\n".join(pread(u) for u in range(S1, 4)))
g(f"s_cmp_lg_u32 s42, 0x2222\ns_cbranch_scc1 L_slow")
stamp(9)
for u in range(S1, 4):
    g(f"s_waitcnt lgkmcnt({3-u})")
    for i in range(4): mfma(OA + 4 * i, PF + 4 * u, PVA + 16 * i + 4 * u, u == 0)
g.label("L_pv2")
GR = 64
g("s_nop 6")
for a in range(2):
    A0, B0, T0 = GR + 4 * a, GR + 4 * a + 2, 72
    for d in range(2):
        g(f"v_perm_b32 v{A0+d}, v{OA+8*d+4+2*a}, v{OA+8*d+2*a}, s{sPHI}")
        g(f"v_perm_b32 v{B0+d}, v{OA+8*d+4+2*a+1}, v{OA+8*d+2*a+1}, s{sPHI}")
    g("s_nop 0")
    for d in range(2): g(f"v_mov_b32_dpp v{T0+d}, v{A0+d} row_ror:8 {DPPM}")
    for d in range(2): g(f"v_mov_b32_dpp v{A0+d}, v{B0+d} row_ror:8 row_mask:0xf bank_mask:0xc")
    for d in range(2): g(f"v_mov_b32_dpp v{B0+d}, v{T0+d} quad_perm:[0,1,2,3] row_mask:0xf bank_mask:0x3")
    for d in range(4): g(f"v_xad_u32 v{A0+d}, v{TP+d}, s44, v{A0+d}")
    for d in range(4): g(f"v_bfi_b32 v{A0+d}, s44, v{TP+d}, v{A0+d}")
    g(f"buffer_store_dwordx4 {vr(A0,4)}, v{IBV}, {sr(WS,4)}, s{26 if a == 0 else 22} offen sc1")
if OPT["wogate"] == 1: lds_inc(F_H3)
stamp(10)
MK = 76
g(f"""v_and_b32 v12, 1, v{LANE}
      v_lshlrev_b32 v12, 4, v12
      v_mov_b32 v13, 0xffff
      v_lshlrev_b32 v13, v12, v13
      v_bfe_u32 v12, v{LANE}, 1, 2""")
for p in range(4):
    g(f"v_cmp_eq_u32 vcc, {p}, v12\ns_nop 1\nv_cndmask_b32 v{MK+p}, v{VZ}, v13, vcc")
g(f"""v_lshlrev_b32 v16, 2, v{vN}
      s_lshl_b32 s42, s{sWV}, 6
      v_add_u32 v16, s42, v16
      v_lshrrev_b32 v17, 3, v{LANE}
      v_lshlrev_b32 v17, 2, v17
      v_add_u32 v17, s42, v17
      v_lshrrev_b32 v18, 3, v{vN}             ; a = j>>3
      s_lshl_b32 s42, s{sWV}, 1
      v_add_u32 v19, s42, v18
      v_mul_u32_u24 v19, 144, v19
      v_and_b32 v20, 7, v{vN}
      v_lshl_add_u32 v19, v20, 4, v19
      v_and_b32 v20, 1, v{vKG}
      v_lshl_add_u32 v19, v20, 3, v19
      v_lshrrev_b32 v20, 1, v{vKG}
      v_cmp_eq_u32 s[46:47], v18, v20
      v_lshlrev_b32 v14, 3, v{LANE}           ; lane*8""")
if OPT["d3"]: g(f"s_sleep {OPT['d3']}")
stamp(22)
IR = 104
ib_loads = f"""buffer_load_dwordx4 {vr(IR,4)}, v{VL16}, {sr(WS,4)}, s30 offen sc1
      buffer_load_dwordx4 {vr(IR+4,4)}, v{VL16}, {sr(WS,4)}, s30 offen offset:1024 sc1"""
def hdr_poll(nm, off, dstoff, flag, after="", mark=False):
    L, Lo = g.nl(nm), g.nl(nm + "o")
    g(f"s_mov_b32 s43, {LIM_MEM}")
    if OPT["bkh"]:
        Lf = g.nl(nm + "f")
        g(f"s_branch {Lf}")
    g.label(L)
    if OPT["bkh"]:
        g(f"s_sleep {OPT['bkh']}")
        g.label(Lf)
    g(f"""s_load_dwordx16 s[52:67], s[24:25], {off} glc
          s_load_dwordx16 s[68:83], s[24:25], {off+64} glc
          s_sub_u32 s43, s43, 1
          s_cbranch_scc1 {Lo}
          s_waitcnt lgkmcnt(0)
          s_add_u32 s19, s53, s55""")
    for k in range(2, 16): g(f"s_add_u32 s19, s19, s{53+2*k}")
    g(f"s_cmp_eq_u32 s19, s18\ns_cbranch_scc0 {L}")
    g.label(Lo)
    g("s_waitcnt lgkmcnt(0)")
    if after: g(after)
    for k in range(16): g(f"v_writelane_b32 v24, s{52+2*k}, {k}")
    g("s_mov_b64 exec, 0xffff")
    if mark:
        g(f"""v_cmp_gt_i32 vcc, 0, v24
              s_cmp_lg_u64 vcc, 0
              s_cselect_b32 s42, 0x101, 1
              v_mov_b32 v25, s42""")
    g(f"""ds_write_b32 v16, v24 offset:{dstoff}
          s_mov_b64 exec, 1
          ds_add_u32 v{VZ}, v{25 if mark else VONE} offset:{flag}
          s_mov_b64 exec, -1""")
g(f"""s_add_u32 s24, s{WS}, s31
      s_addc_u32 s25, s{WS+1}, 0
      s_lshl_b32 s18, s{sTAG}, 4""")
for n in range(2):
    for p in range(4): g(f"v_and_b32 v{88+4*n+p}, 0x3f803f80, v{MK+p}")
if OPT["d3a"]: g(f"s_sleep {OPT['d3a']}")
hdr_poll("h3l", 0x8000, LT, F_LT, after=(f"s_sleep {OPT['d3b']}\n" if OPT["d3b"] else "") + ib_loads, mark=True)
cnt(25, 43)
stamp(11)
pc_wait(0xff, 8, 42, 43, off=F_LT)
g("s_cmp_lg_u32 s42, 8\ns_cbranch_scc1 L_genw")
g.label("L_genw_ret")
L, Lo = g.nl("h3d"), g.nl("h3do")
g(f"s_mov_b32 s43, {LIM_MEM}")
g.label(L)
g(f"s_waitcnt vmcnt(0)\nv_xor_b32 v{VT}, v{IR}, v{TP}")
for k in range(1, 8): g(f"v_bitop3_b32 v{VT}, v{IR+k}, v{TP+(k&3)}, v{VT} bitop3:0xbe")
g(f"""v_and_b32 v{VT}, s44, v{VT}
      v_cmp_ne_u32 vcc, 0, v{VT}
      s_cbranch_vccz {Lo}
      s_sub_u32 s43, s43, 1
      s_cbranch_scc1 {Lo}
      s_lshr_b64 s[48:49], vcc, 4
      s_or_b64 vcc, vcc, s[48:49]
      s_lshr_b64 s[48:49], vcc, 2
      s_or_b64 vcc, vcc, s[48:49]
      s_lshr_b64 s[48:49], vcc, 1
      s_or_b64 vcc, vcc, s[48:49]
      s_and_b32 s48, vcc_lo, 0x01010101
      s_and_b32 s49, vcc_hi, 0x01010101
      s_mul_i32 exec_lo, s48, 0xff
      s_mul_i32 exec_hi, s49, 0xff
      s_sleep {OPT["bk3"]}
      {ib_loads}
      s_branch {L}""")
g.label(Lo)
g("s_mov_b64 exec, -1")
cnt(26, 43)
stamp(12)
mfma(96, 88, IR, True)
mfma(96, 92, IR + 4, False)
g(f"""s_nop 7
      v_cvt_pk_bf16_f32 v100, v96, v97
      v_cvt_pk_bf16_f32 v101, v98, v99
      s_mov_b64 exec, s[46:47]
      ds_write_b64 v19, v[100:101] offset:{RIB}
      s_mov_b64 exec, 1
      ds_add_u32 v{VZ}, v{VONE} offset:{F_IB}
      s_mov_b64 exec, -1""")
stamp(13)
g(f"""s_cmp_lt_u32 s{sWG}, 20
      s_cbranch_scc0 L_A_end
      s_lshl_b32 s41, s{sWG}, 14
      s_lshl_b32 s42, s{sWV}, 11
      s_add_u32 s41, s41, s42
      s_add_u32 s41, s41, {SM}
      v_and_b32 v7, 7, v{LANE}
      v_lshlrev_b32 v7, 2, v7
      v_lshrrev_b32 v6, 5, v{LANE}
      v_lshl_add_u32 v7, v6, 1, v7
      v_and_b32 v6, 1, v{vKG}
      v_add_u32 v7, v7, v6
      v_lshlrev_b32 v18, 5, v7
      s_lshl_b32 s42, s{sWV}, 2
      v_add_u32 v6, s42, v18
      v_lshlrev_b32 v7, 1, v7
      s_lshl_b32 s55, s{sWG}, 6""")
tagbytes()
def red8(b):
    g(f"""s_nop 1
          v_permlane32_swap_b32 v{b}, v{b+2}
          v_permlane32_swap_b32 v{b+1}, v{b+3}
          v_pk_add_f32 {vr(b,2)}, {vr(b,2)}, {vr(b+2,2)}
          s_nop 1
          v_permlane16_swap_b32 v{b}, v{b+1}
          v_add_f32 v{b}, v{b}, v{b+1}
          s_nop 1
          v_add_f32_dpp v{b}, v{b}, v{b} row_ror:8 {DPPM}""")
g(f"""s_cmp_eq_u32 s{sWV}, 0
      s_cbranch_scc0 L_fin_s""")
srd(SR, P_X, 1280)
g(f"""buffer_load_ushort v16, v7, {sr(SR,4)}, s55 offen
      s_lshl_b32 s40, s{sWG}, 12
      s_add_u32 s40, s40, {YM}""")
for d in range(4): g(f"v_mov_b32 v{60+d}, s{sTB+d}\nv_and_b32 v{60+d}, 0xff, v{60+d}")
poll_loads("h7", f"""buffer_load_dwordx4 v[48:51], v{VL16}, {sr(WS,4)}, s40 offen sc1
      buffer_load_dwordx4 v[52:55], v{VL16}, {sr(WS,4)}, s40 offen offset:1024 sc1
      buffer_load_dwordx4 v[56:59], v{VL16}, {sr(WS,4)}, s40 offen offset:2048 sc1
      s_mov_b64 exec, 0xffffff
      buffer_load_dwordx4 v[60:63], v{VL16}, {sr(WS,4)}, s40 offen offset:3072 sc1
      s_mov_b64 exec, -1""", [48, 52, 56, 60], 43, sleep=4, mask=False, b8=True)
sum_groups(48, 4)
red8(48)
rne(48)
g(f"""v_mul_f32 v49, {hex(f32(-math.log2(math.e)))}, v48
      v_exp_f32 v49, v49
      s_nop 0
      v_add_f32 v49, 1.0, v49
      v_rcp_f32 v49, v49
      s_nop 0
      v_mul_f32 v48, v48, v49""")
rne(48)
g("v_lshlrev_b32 v20, 16, v16")
stamp(19)
g.label("L_fin_s")
lds_wait(F_SD, 4, 42, sleep=1)
if OPT["d5"]: g(f"s_sleep {OPT['d5']}")
poll_loads("h5", f"""buffer_load_dwordx4 v[32:35], v{VL16}, {sr(WS,4)}, s41 offen sc1
      buffer_load_dwordx4 v[36:39], v{VL16}, {sr(WS,4)}, s41 offen offset:1024 sc1""", [32, 36], 43, sleep=OPT["bk5"], b8=True)
cnt(27, 43)
stamp(20)
sum_groups(32, 2)
red8(32)
g(f"""ds_write_b32 v6, v32 offset:{RFIN}
      s_mov_b64 exec, 1
      ds_add_u32 v{VZ}, v{VONE} offset:{F_FIN}
      s_mov_b64 exec, -1
      s_cmp_eq_u32 s{sWV}, 0
      s_cbranch_scc0 L_A_end""")
srd(44, P_OUT, 1280)
lds_wait(F_FIN, 8, 42, extra=f"ds_read_b128 v[32:35], v18 offset:{RFIN}\nds_read_b128 v[36:39], v18 offset:{RFIN+16}")
sum_groups(32, 2)
g("v_pk_add_f32 v[32:33], v[32:33], v[34:35]\nv_add_f32 v32, v32, v33")
rne(32)
g("v_mul_f32 v32, v32, v48")
rne(32)
g(f"""v_add_f32 v32, v32, v20
      v_cvt_pk_bf16_f32 v32, v32, v32
      buffer_store_short v32, v7, {sr(44,4)}, s55 offen {'sc1' if OPT['osc'] else ''}
      s_cmp_eq_u32 s{sWG}, 0
      s_cbranch_scc0 L_noep
      s_mov_b64 exec, 1
      v_mov_b32 v13, s{sTAG}
      buffer_store_dword v13, v{VZ}, {sr(WS,4)}, 0 offen offset:{EPOCH} sc1""")
g.label("L_noep")
stamp(21)
g.label("L_A_end")
ts_flush()
g("s_endpgm")
g.label("L_genw")
hdr_poll("h3m", 0, MLT, F_ML)
lds_wait(F_ML, 8, 42)
g(f"""ds_read_b64 v[24:25], v14 offset:{MLT}
      ds_read_b32 v8, v17 offset:{MLT}
      ds_read_b32 v9, v17 offset:{MLT+32}
      s_waitcnt lgkmcnt(0)""")
global_max(22, 24)
g(f"""v_sub_f32 v8, v8, v22
      v_sub_f32 v9, v9, v22
      v_exp_f32 v8, v8
      v_exp_f32 v9, v9
      s_nop 0
      v_cvt_pk_bf16_f32 v8, v8, v8
      v_cvt_pk_bf16_f32 v9, v9, v9""")
for n in range(2):
    for p in range(4): g(f"v_and_b32 v{88+4*n+p}, v{8+n}, v{MK+p}")
g("s_branch L_genw_ret")
g.label("L_slow")
g(f"""v_mov_b32 v8, v9
      v_lshlrev_b32 v6, 5, v{vN}
      s_lshl_b32 s42, s{sWV}, 2
      v_add_u32 v29, s42, v6
      s_mov_b32 s43, 0x3f803f80
      v_permlane16_swap_b32 v9, v8
      v_max_f32 v9, v9, v8
      v_mov_b32 v8, v9
      s_nop 1
      v_permlane32_swap_b32 v9, v8
      v_max_f32 v9, v9, v8
      s_mov_b64 exec, 0xffff
      ds_write_b32 v29, v9 offset:{RMX}
      s_mov_b64 exec, 1
      ds_add_u32 v{VZ}, v{VONE} offset:{F_MAX}
      s_mov_b64 exec, -1""")
lds_wait(F_MAX, 8, 42, extra=f"ds_read_b128 v[12:15], v6 offset:{RMX}\nds_read_b128 v[16:19], v6 offset:{RMX+16}")
g(f"""v_max3_f32 v{VM}, v12, v13, v14
      v_max3_f32 v16, v15, v16, v17
      v_max3_f32 v{VM}, v{VM}, v18, v19
      v_max_f32 v{VM}, v{VM}, v16""")
for r in range(4): g(f"v_sub_f32 v{SA+r}, v{SA+r}, v{VM}")
for r in range(4): g(f"v_exp_f32 v{SA+r}, v{SA+r}")
g(f"""v_lshlrev_b32 v15, 10, v{vN}
      v_cvt_pk_bf16_f32 v12, v{SA}, v{SA+1}
      v_cvt_pk_bf16_f32 v13, v{SA+2}, v{SA+3}
      ds_write_b64 v7, v[12:13] offset:{PL}""")
lds_inc(F_P)
lds_wait(F_P, 8, 42)
g("\n".join(pread(u) for u in range(4)))
g("v_mov_b32 v12, 0\nv_mov_b32 v14, 0\ns_waitcnt lgkmcnt(0)")
for u in range(4):
    for i in range(4):
        mfma(OA + 4 * i, PF + 4 * u, PVA + 16 * i + 4 * u, u == 0)
        g(f"v_dot2c_f32_bf16 v{12+2*(i&1)}, s43, v{PF+4*u+i}")
def lsum():
    g(f"""v_mov_b32 v13, s{sTAG}
          v_mov_b32 v11, s{sTAG}
          s_nop 0
          v_add_f32 v12, v12, v14
          v_mov_b32 v14, v12
          s_nop 1
          v_permlane16_swap_b32 v12, v14
          v_add_f32 v12, v12, v14
          v_mov_b32 v14, v12
          s_nop 1
          v_permlane32_swap_b32 v12, v14
          v_add_f32 v12, v12, v14""")
lsum()
g(f"""v_or_b32 v12, 0x80000000, v12
      s_cmp_eq_u32 s{sWV}, 0
      s_cbranch_scc0 L_pv2
      s_mov_b64 exec, 0xffff
      buffer_store_dwordx2 v[10:11], v15, {sr(WS,4)}, s27 offen sc1
      buffer_store_dwordx2 v[12:13], v15, {sr(WS,4)}, s23 offen sc1
      s_mov_b64 exec, -1
      s_branch L_pv2""")

KORD = (0, 2, 1, 3)
TH = OPT["gthr"]
def wo_setup():
    g(f"""v_mul_u32_u24 v6, {8*1280}, v{vKG}
          v_lshl_add_u32 v6, v{vN}, 3, v6
          s_lshl_b32 s40, s{sHF}, 7
          s_lshr_b32 s41, s{sJ}, 1
          s_lshl_b32 s41, s41, 5
          s_add_u32 s40, s40, s41
          s_mul_i32 s40, s40, 1280
          s_and_b32 s41, s{sJ}, 1
          s_mul_i32 s41, s41, 640
          s_add_u32 s48, s40, s41""")
    srd(44, P_WO, 5242880)

def wo_gate():
    if OPT["wogate"] == 1: lds_wait(F_H3, 8, 40, sleep=1)
    elif OPT["wogate"] == 2: lds_wait(F_IB, 1, 40, sleep=2)

def h4_setup():
    g(f"""v_and_b32 v31, 7, v{vN}
          v_lshlrev_b32 v29, 7, v31
          v_lshl_add_u32 v29, v{vKG}, 5, v29
          s_lshl_b32 s50, s{sHF}, 2
          s_lshr_b32 s51, s{sJ}, 1
          s_add_u32 s50, s50, s51                 ; p = h*4+dq
          s_lshl_b32 s61, s50, 10
          s_add_u32 s61, s61, {CXM}
          v_lshrrev_b32 v30, 3, v{vN}
          v_lshlrev_b32 v30, 14, v30
          v_lshl_add_u32 v30, v31, 4, v30         ; (n>>3)*16K + (n&7)*16
          v_mov_b32 v31, 0xff
          s_and_b32 s41, s{sJ}, 1
          s_mul_i32 s41, s41, {10*16384}
          s_lshl_b32 s50, s50, 7
          s_add_u32 s50, s50, s41
          s_add_u32 s50, s50, {SM}""")
    tagbytes()

def h4_warm(A, cbks):
    g(f"buffer_load_dwordx4 {vr(A,4)}, v29, {sr(WS,4)}, s61 offen sc1")
    for cbk in cbks:
        g(f"""s_add_u32 s51, s50, {cbk*2*16384}
              buffer_load_dwordx4 {vr(A+4,4)}, v30, {sr(WS,4)}, s51 offen sc1""")

def h4_wait(A, late=""):
    Ls = g.nl("h4s")
    onfail = f"""s_cmp_lg_u32 s43, {LIM_MEM-32}
          s_cbranch_scc1 {Ls}
          {late}
          {Ls}:""" if (OPT["fast4"] and late) else ""
    poll_loads("h4", f"""buffer_load_dwordx4 {vr(A,4)}, v29, {sr(WS,4)}, s61 offen sc1
          buffer_load_dwordx4 {vr(A+4,4)}, v29, {sr(WS,4)}, s61 offen offset:16 sc1""", [A+1, A+3, A+5, A+7], 43, sleep=OPT["bk4"], onfail=onfail)
    g(f"v_mov_b32 v{A+1}, v{A+4}\nv_mov_b32 v{A+3}, v{A+6}\ns_nop 1")

def rl_wait():
    lds_wait(F_RLV, 1, 40, extra=f"ds_read_b32 v28, v{VZ} offset:{RLINV}")

def wo_compute(A, frags, cbks, D):
    for bi, fr in enumerate(frags):
        for t in range(4): mfma(D + 16 * bi + 4 * t, A, fr + 4 * t, True)
    g("s_nop 4" if len(frags) == 1 else "s_nop 0")
    for bi, cbk in enumerate(cbks):
        d = D + 16 * bi
        for t in range(4): g(f"v_pk_add_f32 {vr(d+4*t,2)}, {vr(d+4*t,2)}, {vr(d+4*t+2,2)}")
        for t in range(4): g(f"v_add_f32 v{16+t}, v{d+4*t}, v{d+4*t+1}")
        for t in range(4): g(f"v_mov_b32 v{20+t}, v{16+t}")
        g(f"s_add_u32 s51, s50, {cbk*2*16384}")
        for t in range(4): g(f"v_permlane16_swap_b32 v{16+t}, v{20+t}")
        g("v_pk_add_f32 v[16:17], v[16:17], v[20:21]\nv_pk_add_f32 v[18:19], v[18:19], v[22:23]")
        for t in range(4): g(f"v_mul_f32 v{d+t}, v{16+t}, v28")
        tagput([d, d+1, d+2, d+3], 31)
        g(f"""s_mov_b64 exec, 0xffff
              buffer_store_dwordx4 {vr(d,4)}, v30, {sr(WS,4)}, s51 offen sc1
              s_mov_b64 exec, -1""")
    lds_inc(F_SD)

def b1_gate():
    if OPT["b1gate"]:
        land_flush()
        lds_wait(F_STG, OPT['b1gate'], 40, sleep=2)

g.label("L_G")
get_tag(6)
g(f"""s_cmp_eq_u32 s{sWV}, 10
      s_cbranch_scc1 L_G_uv10""")
LD.pending = False
wo_setup(); h4_setup()
b1_gate()
if OPT["wogate"]: land_flush()
wo_gate()
stamp(4)
load_block(32, 6, 44, 48, 42, 1280, TH)
g("s_add_u32 s49, s48, 128")
load_block(48, 6, 44, 49, 42, 1280, TH)
land_flush()
g("s_waitcnt vmcnt(8)")
perm_block(32, 64, KORD)
g("s_waitcnt vmcnt(0)")
perm_block(48, 80, KORD)
h4_warm(8, [0, 1])
stamp(5)
g(f"""v_lshlrev_b32 v16, 3, v{LANE}
      v_lshlrev_b32 v17, 4, v{LANE}
      s_lshl_b32 s52, s{sHF}, 10
      s_add_u32 s52, s52, {HD + 0x8000}""")
g("v_mov_b32 v20, 1.0\nv_mov_b32 v21, 1.0")
lds_wait(F_LT, 1, 40, sleep=1)
g("s_setprio 2")
pc_wait(0xff, 8, 40, 41, off=F_LT, extra=f"ds_read_b64 v[24:25], v16 offset:{LT}")
g("s_cmp_eq_u32 s40, 8\ns_cbranch_scc1 L_unitw")
lds_wait(F_ML, 8, 40)
g(f"ds_read_b64 v[20:21], v16 offset:{MLT}\ns_waitcnt lgkmcnt(0)")
global_max(22, 20)
g(f"""v_sub_f32 v20, v20, v22
      v_sub_f32 v21, v21, v22
      v_exp_f32 v20, v20
      v_exp_f32 v21, v21
      s_nop 0""")
rne(20); rne(21)
g.label("L_unitw")
g("v_mul_f32 v24, abs(v24), v20\nv_fma_f32 v24, abs(v25), v21, v24")
wave_sum(24, 40)
g(f"""s_nop 1
      v_rcp_f32 v24, s40
      s_nop 0
      ds_write_b32 v{VZ}, v24 offset:{RLINV}
      ds_write_b32 v{VZ}, v{VONE} offset:{F_RLV}
      v_mov_b32 v28, v24""")
lds_wait(F_IB, 8, 40, sleep=1)
h4_wait(8)
stamp(6)
wo_compute(8, [64, 80], [0, 1], 96)
stamp(7)
g("s_branch L_G_end")

def uv_loads():
    g(f"""v_lshlrev_b32 v7, 13, v{vKG}
          v_lshl_add_u32 v7, v{vN}, 3, v7
          s_lshl_b32 s56, s{sJ}, 17               ; 16j rows
          s_lshl_b32 s41, s{sHF}, 8
          s_add_u32 s56, s56, s41
          s_sub_u32 s52, s{sWV}, 9                ; colhalf
          s_lshl_b32 s41, s52, 7
          s_add_u32 s56, s56, s41
          s_add_u32 s57, s56, {4*8192}""")
    srd(SR, P_WUV, 4194304)
    b1_gate()
    stamp(4)
    rows = [128 * (e & 3) + 8 * (e >> 2) for e in range(8)]
    load_block(32, 7, SR, 56, 42, 8192, TH, rows)
    load_block(48, 7, SR, 57, 42, 8192, TH, rows)
g.label("L_G_uv10")
g.label("L_G_uv9")
LD.pending = False
uv_loads()
g.label("L_G_uv")
wo_setup(); h4_setup()
g(f"""s_add_u32 s49, s52, 2
      s_mul_i32 s53, s49, {2*16384}
      s_add_u32 s50, s50, s53
      s_lshl_b32 s49, s49, 7
      s_add_u32 s49, s49, s48
      v_and_b32 v7, 7, v{vN}
      v_mul_u32_u24 v8, 144, v{vN}
      v_lshl_add_u32 v8, v{vKG}, 4, v8
      v_lshlrev_b32 v9, 4, v{LANE}
      v_lshrrev_b32 v11, 3, v{vN}
      v_lshlrev_b32 v11, 10, v11
      v_lshl_add_u32 v11, v7, 4, v11          ; (n>>3)*1024 + (n&7)*16
      s_lshl_b32 s40, s{sHF}, 2
      s_lshl_b32 s41, s52, 1
      s_add_u32 s40, s40, s41
      s_lshl_b32 s40, s40, 3
      s_add_u32 s40, s40, s{sJ}
      s_lshl_b32 s40, s40, 7
      s_add_u32 s54, s40, {CXM}""")
if not OPT["wogate"]:
    load_block(64, 6, 44, 49, 42, 1280, TH)
    h4_warm(16, [0])
g(f"""s_cmp_eq_u32 s{sWV}, 9
      s_cbranch_scc0 L_nohd
      s_and_b32 s56, s{sSLOT}, 1
      s_lshl_b32 s56, s56, 7
      s_add_u32 s56, s56, s{sXCD}
      s_lshl_b32 s56, s56, 4
      s_lshr_b32 s57, s{sSLOT}, 1
      s_add_u32 s56, s56, s57
      s_lshl_b32 s56, s56, 3
      s_add_u32 s56, s56, {HD}
      s_add_u32 s57, s56, 0x8000
      v_lshlrev_b32 v15, 10, v{vN}
      v_mov_b32 v24, 0
      v_mov_b32 v25, s{sTAG}
      v_mov_b32 v12, 0
      v_mov_b32 v14, 0
      v_mov_b32 v26, v11
      s_mov_b32 s58, 0x3f803f80""")
pc_wait(0xfff, 0x222, 40, 41, sleep=1)
g("s_setprio 3")
pc_wait(0xffff, 0x2222, 40, 41)
g(f"""s_cmp_lg_u32 s40, 0x2222
      s_cbranch_scc1 L_nohd2""")
g("\n".join(f"ds_read_b128 {vr(128+4*u,4)}, v9 offset:{PL+1024*u}" for u in range(4)))
for u in range(4):
    g(f"s_waitcnt lgkmcnt({3-u})")
    for i in range(4): g(f"v_dot2c_f32_bf16 v{12+2*(i&1)}, s58, v{128+4*u+i}")
lsum()
if OPT["dl"]: g(f"s_sleep {OPT['dl']}")
g(f"""s_mov_b64 exec, 0xffff
      buffer_store_dwordx2 v[12:13], v15, {sr(WS,4)}, s57 offen sc1
      buffer_store_dwordx2 v[24:25], v15, {sr(WS,4)}, s56 offen sc1
      s_mov_b64 exec, -1""")
stamp(10)
g.label("L_nohd2")
g(f"""v_mov_b32 v11, v26
      s_setprio 0
      {"s_waitcnt vmcnt(2)" if not OPT["wogate"] else ""}""")
g.label("L_nohd")
if OPT["wogate"]:
    wo_gate()
    load_block(64, 6, 44, 49, 42, 1280, TH)
    h4_warm(16, [0])
g("s_waitcnt vmcnt(18)")
perm_block(32, 80)
g("s_waitcnt vmcnt(10)")
perm_block(48, 96)
g(f"v_mov_b32 v61, s{sTAG}\nv_mov_b32 v63, s{sTAG}")
g("s_waitcnt vmcnt(0)")
perm_block(64, 112, KORD)
stamp(5)
lds_wait(F_LT, 8, 40, sleep=2)
rl_wait()
g("s_setprio 3")
lds_wait(F_IB, 8, 40)
g(f"""ds_read_b128 v[32:35], v8 offset:{RIB}
      ds_read_b128 v[36:39], v8 offset:{RIB+64}""")
stamp(6)
D = 128
for blk in range(2):
    g(f"s_waitcnt lgkmcnt({1-blk})")
    for t in range(4): mfma(D + 4 * t, 32 + 4 * blk, 80 + 16 * blk + 4 * t, blk == 0)
g("s_nop 4")
for t in range(4): g(f"v_pk_add_f32 {vr(D+4*t,2)}, {vr(D+4*t,2)}, {vr(D+4*t+2,2)}")
for t in range(4): g(f"v_add_f32 v{16+t}, v{D+4*t}, v{D+4*t+1}")
g(f"""s_nop 0
      v_permlane32_swap_b32 v16, v18
      v_permlane32_swap_b32 v17, v19
      v_pk_add_f32 v[16:17], v[16:17], v[18:19]
      v_mov_b32 v18, v16
      v_mov_b32 v19, v17
      s_nop 0
      v_permlane16_swap_b32 v16, v18
      v_permlane16_swap_b32 v17, v19
      v_pk_add_f32 v[16:17], v[16:17], v[18:19]
      v_cvt_pk_bf16_f32 v60, v16, v17
      v_mov_b32 v62, v60
      s_nop 1
      v_permlane32_swap_b32 v60, v62""")
g(f"""s_mov_b64 exec, 0xffff
      buffer_store_dwordx4 v[60:63], v11, {sr(WS,4)}, {"s54 offen" if OPT["fast4"] else "s54 offen sc1"}
      s_mov_b64 exec, -1""")
stamp(7)
late = f"s_mov_b64 exec, 0xffff\nbuffer_store_dwordx4 v[60:63], v11, {sr(WS,4)}, s54 offen sc1"
h4_wait(32, late)
stamp(8)
wo_compute(32, [112], [0], 128)
if OPT["fast4"]: g(f"s_sleep {OPT['d4']}\n" + late + "\ns_mov_b64 exec, -1")
stamp(9)
g("s_branch L_G_end")

g.label("L_FFNb")
PEND = OPT["fgate"] != 9
if OPT["remap"]:
    g(f"""s_and_b32 s40, s{sXCD}, 1
          s_lshl_b32 s62, s{sSLOT}, 1
          s_add_u32 s62, s62, s40                 ; u in 0..63
          s_lshr_b32 s63, s{sXCD}, 1              ; mq""")
else:
    g(f"""s_lshr_b32 s40, s{sSLOT}, 3             ; hq
      s_lshl_b32 s40, s40, 1
      s_and_b32 s41, s{sJ}, 1
      s_add_u32 s40, s40, s41
      s_lshl_b32 s40, s40, 3
      s_add_u32 s62, s40, s{sXCD}             ; u in 0..63
      s_lshr_b32 s63, s{sJ}, 1                ; mq""")
g(f"""v_and_b32 v31, 1, v{vKG}
      v_cmp_eq_u32 s[56:57], 1, v31
      s_cmp_lt_u32 s62, 27
      s_cbranch_scc0 L_FFN2""")
LD.pending = PEND; LD.n = 0
g(f"""v_mul_u32_u24 v28, {8*3456}, v{vKG}
      v_lshl_add_u32 v28, v{vN}, 3, v28
      v_lshlrev_b32 v7, 4, v{vKG}
      s_mul_i32 s58, s63, 320
      v_add_u32 v7, s58, v7
      s_mul_i32 s58, s63, {160*3456}
      s_lshl_b32 s41, s62, 7
      s_add_u32 s58, s58, s41""")
srd(SR, P_W1, 2211840)
stamp(4)
for b in range(5):
    if b: g(f"s_add_u32 s58, s58, {32*3456}")
    load_block(48 + 16 * b, 28, SR, 58, 42, 3456, OPT['fthr'])
land_flush()
D = 144
get_tag(6)
lds_wait(F_XN, 1, 40)
for b in range(5): g(f"ds_read_b128 {vr(XF+4*b,4)}, v7 offset:{XNL+64*b}")
g("s_waitcnt lgkmcnt(0)")
for b in range(5):
    g(f"s_waitcnt vmcnt({8*(4-b)})")
    perm_block(48 + 16 * b, 32 + 16 * b)
    g("s_nop 1")
    for t in range(4): mfma(D + 4 * t, XF + 4 * b, 32 + 16 * b + 4 * t, b == 0)
g(f"""v_lshlrev_b32 v28, 4, v{LANE}
      s_nop 0
      s_lshl_b32 s40, s62, 2
      s_add_u32 s40, s40, s63
      s_lshl_b32 s40, s40, 9
      s_add_u32 s40, s40, {HM}
      v_mov_b32 v9, s{sTAG}
      v_mov_b32 v11, s{sTAG}
      s_nop 1
      v_cndmask_b32 v8, v{D}, v{D+8}, s[56:57]
      v_cndmask_b32 v10, v{D+4}, v{D+12}, s[56:57]
      s_mov_b32 exec_hi, 0
      buffer_store_dwordx4 v[8:11], v28, {sr(WS,4)}, s40 offen sc1
      s_mov_b64 exec, -1
      s_branch L_FFNe""")
g.label("L_FFN2")
g(f"""s_mul_i32 s40, s63, 37
      s_add_u32 s40, s40, s62
      s_sub_u32 s58, s40, 27
      s_cmp_lt_u32 s58, 135
      s_cbranch_scc1 L_FFN2a""")
LD.pending = PEND; LD.n = 0
land_flush()
get_tag(6)
g("s_branch L_FFNe")
g.label("L_FFN2a")
LD.pending = PEND; LD.n = 0
g(f"""s_mul_i32 s59, s58, 205
      s_lshr_b32 s59, s59, 10                 ; fb = v/5
      s_mul_i32 s60, s59, 5
      s_sub_u32 s60, s58, s60                 ; mb
      v_mul_u32_u24 v28, {8*1280}, v{vKG}
      v_lshl_add_u32 v28, v{vN}, 3, v28
      s_mul_i32 s58, s59, {64*1280}
      s_lshl_b32 s41, s60, 8
      s_add_u32 s58, s58, s41""")
srd(SR, P_W2, 2211840)
if OPT["forder"] >= 2:
    land_flush()
    if OPT["forder"] == 2: lds_wait(F_ISS, 2, 40, sleep=2)
    if OPT["forder"] == 3: lds_wait(F_STG, 8, 40, sleep=2)
    if OPT["forder"] == 4: pc_wait(0xff, 8, 40, 41, off=F_LT, sleep=2)
stamp(4)
for ch in range(2):
    for blk in range(2):
        g(f"s_add_u32 s41, s58, {blk*32*1280 + ch*128}")
        load_block(48 + 16 * (2 * ch + blk), 28, SR, 41, 42, 1280, OPT['fthr2'])
land_flush()
get_tag(6)
for b in range(4):
    g(f"s_waitcnt vmcnt({8*(3-b)})")
    perm_block(48 + 16 * b, 32 + 16 * b)
g(f"""v_lshrrev_b32 v28, 2, v{vN}
      v_lshlrev_b32 v28, 9, v28
      v_lshl_add_u32 v28, v{vKG}, 5, v28
      v_bfe_u32 v29, v{vN}, 1, 1
      v_lshl_add_u32 v28, v29, 4, v28
      v_and_b32 v29, 1, v{vN}
      v_lshl_add_u32 v28, v29, 8, v28
      s_lshl_b32 s40, s59, 11
      s_add_u32 s40, s40, {HM}""")
poll_loads("h6", f"""buffer_load_dwordx4 v[8:11], v28, {sr(WS,4)}, s40 offen sc1
      buffer_load_dwordx4 v[12:15], v28, {sr(WS,4)}, s40 offen offset:128 sc1""", [9, 11, 13, 15], 43, sleep=6)
for mod in ("row_ror:4", "row_ror:8"):
    for r in (8, 10, 12, 14): g(f"v_add_f32_dpp v{r}, v{r}, v{r} {mod} {DPPM}")
for r in (8, 10, 12, 14): g(f"v_max_f32 v{r}, 0, v{r}")
g("v_cvt_pk_bf16_f32 v8, v8, v10\nv_cvt_pk_bf16_f32 v12, v12, v14\ns_nop 1")
for blk in range(2):
    for p in range(4):
        g(f"v_mov_b32_dpp v{16+4*blk+p}, v{8+4*blk} quad_perm:[{p},{p},{p},{p}] {DPPM}")
g("s_nop 1")
D = 96
for ch in range(2):
    for blk in range(2):
        for t in range(4): mfma(D + 16 * ch + 4 * t, 16 + 4 * blk, 32 + 16 * (2 * ch + blk) + 4 * t, blk == 0)
g(f"""v_lshrrev_b32 v28, 3, v{vN}
      v_lshlrev_b32 v28, 12, v28
      v_and_b32 v29, 7, v{vN}
      v_lshl_add_u32 v28, v29, 4, v28
      v_mov_b32 v29, 0xff
      s_lshl_b32 s40, s60, 14
      s_lshl_b32 s41, s59, 7
      s_add_u32 s40, s40, s41
      s_add_u32 s40, s40, {YM}
      s_add_u32 s41, s40, {2*4096}""")
tagbytes()
for ch in range(2):
    for t in range(4): g(f"v_bfi_b32 v{8+4*ch+t}, v29, s{sTB+t}, v{D+16*ch+4*t}")
g(f"""s_mov_b64 exec, 0xffff
      buffer_store_dwordx4 v[8:11], v28, {sr(WS,4)}, s40 offen sc1
      buffer_store_dwordx4 v[12:15], v28, {sr(WS,4)}, s41 offen sc1
      s_mov_b64 exec, -1""")
g.label("L_FFNe")
stamp(5)
wo_setup(); h4_setup()
g("s_add_u32 s49, s48, 512")
lds_wait(F_ISS, 2, 40, sleep=2)
b1_gate()
wo_gate()
load_block(128, 6, 44, 49, 42, 1280, TH)
g("s_waitcnt vmcnt(0)")
perm_block(128, 32, KORD)
h4_warm(8, [4])
lds_wait(F_LT, 8, 40, sleep=2)
rl_wait()
lds_wait(F_IB, 8, 40, sleep=1)
g("s_setprio 2")
h4_wait(8)
stamp(6)
wo_compute(8, [32], [4], 48)
stamp(7)
g.label("L_G_end")
if OPT["pad"]:
    g(f"""v_readfirstlane_b32 s40, v{VTS}
          s_cmp_lt_u32 s{sWG}, 8
          s_cbranch_scc0 L_END
          s_add_u32 s40, s40, {OPT["pad"]}""")
    if OPT["padmin"]:
        g(f"""s_load_dwordx2 s[44:45], s[0:1], 80
          s_mov_b32 s46, 256
          s_mov_b32 s47, 0x20000
          v_not_b32 v8, v{VTS}
          s_mov_b64 exec, 1
          s_waitcnt lgkmcnt(0)
          buffer_atomic_umax v8, v{VZ}, s[44:47], 0 offen
          s_waitcnt vmcnt(0)
          s_sleep 100
          buffer_load_dword v8, v{VZ}, s[44:47], 0 offen sc1
          s_waitcnt vmcnt(0)
          v_not_b32 v8, v8
          s_nop 1
          v_readfirstlane_b32 s40, v8
          s_nop 3
          s_add_u32 s40, s40, {OPT["pad"]}""")
    g(f"""L_padl:
          s_memrealtime s[42:43]
          s_waitcnt lgkmcnt(0)
          s_sub_u32 s41, s42, s40
          s_cmp_lt_i32 s41, 0
          s_cbranch_scc1 L_padl""")
ts_flush("G")
g.label("L_END")
g("s_endpgm")
g.l.append(".p2align 12")
g.label("L_CODE_END")

s = file_head([f"; @launch grid=(256,1,1) block=(768,1,1) lds={LDS_BYTES}"])
s += f""".text
.globl {K}
.p2align 12
.type {K},@function
{K}:
"""
s += g.text()
s += kernel_desc(K, 168, 102)
open(OUT, "w").write(s)
print(OUT, "lines", len(g.l), "ws_end", hex(WS_END))
```

```python
import sys, math, struct
from asmlib import *

OPT = dict(ts=0, stop=99, inflight=16, gate=12, ksmap=1, gthr=32, wogate=0, b1gate=0, pol=1, h2iss=2, amax=0, bk2=4, bk3=2, dbg=0, bk4=0, bk5=3, d3=0, d3b=0, d1=8, d5=8, fast4=1, warm=1, pad=0, padmin=0, padat=-1, padw=0, tlb=2, remap=1, kvt=0, uk6=1, vt=0, pr0=1, hp=3, inf2=0, split=2, w8x3=0, pkv=-1, pwq=-1, puk=-1, puv=-1, pwo=-1, pw1=-1, pw2=-1, d2=8, fgate=2, fthr=32, ukgate=0, h2land=3, forder=0, fast1=0, dh=8, ldw=0, d3a=12, hl=0, rng=64, dl=8, uvgate=0, bkh=4, st1=2, osc=1, d4=14, recl=1, rot=5, fthr2=32)
for a in sys.argv[2:]:
    k, v = a.split("=")
    assert k in OPT and k != "fast1", k
    OPT[k] = int(v)
OUT = sys.argv[1] if len(sys.argv) > 1 else "k.s"
POLS = {0: "", 1: "nt", 2: "sc1", 3: "sc1 nt", 4: "sc0 sc1", 5: "sc0 sc1 nt", 6: "sc0", 7: "sc0 nt"}
def pol(name): return POLS[OPT[name] if OPT[name] >= 0 else OPT["pol"]]
CUR = {"p": "pwq"}

def f32(x): return struct.unpack("<I", struct.pack("<f", x))[0]

EPOCH = 0
QM   = 0x1000
HD   = QM + 0x80000
QAM  = HD + 0x10000
CXM  = QAM + 0x10000
HM   = CXM + 0x20000
YM   = HM + 0x10000
SM   = YM + 20 * 4096
IB   = SM + 20 * 16384
WS_END = IB + 256 * 8 * 2048
TSOFF = 0x1000000
WS_REC = 0x2000000 if (OPT["ts"] and not OPT["dbg"]) else WS_END

(F_Q, F_QA, F_LAND, F_ISS, F_H2I, F_STG, F_MAX, F_P, F_IB, F_UK, F_TAG, F_TAGV, F_QP, F_QI, F_SD, F_FIN) = [4 * i for i in range(16)]
RMAX = 0x40
RL   = 0x80
F_H3, F_ML, F_QAP, F_XN, F_L, F_RLV, RLINV, F_LT, F_LA, F_LB, F_WQ, F_PC = 0xC0, 0xC4, 0xC8, 0xCC, 0xD0, 0xD4, 0xD8, 0xDC, 0xE0, 0xE4, 0xE8, 0xEC
REDQ = 0x100
REDQA = 0x600
PL   = 0x1000
RIB  = 0x2000
RFIN = PL
MLT  = 0x2A00
LT   = 0x2C00
RMX  = 0x2E00
RLP  = REDQ
XNL  = 0x3000
QL   = 0x3800
KV   = 0x7800
LDS_BYTES = KV + 0x20000

SCALE = (128 ** -0.5) * math.log2(math.e)
LIM_LDS = 1 << 16
LIM_MEM = 1 << 13

class G:
    def __init__(s): s.l = []; s.n = 0
    def __call__(s, x):
        for ln in x.strip("\n").split("\n"):
            if ln.strip(): s.l.append("  " + ln.strip())
    def label(s, x): s.l.append(x + ":")
    def nl(s, p): s.n += 1; return f"L_{p}_{s.n}"
    def text(s): return "\n".join(s.l) + "\n"
g = G()

def vr(a, n): return f"v[{a}:{a+n-1}]"
def sr(a, n): return f"s[{a}:{a+n-1}]"

LANE, VZ, VONE, VT, vN, vKG = 0, 1, 2, 3, 4, 5
VTS = 167
VL16 = 166
sWG, sWV = 2, 3
WS = 4
SR = 8
sXCD, sSLOT, sHF, sJ = 12, 13, 14, 15
P_X, P_KV, P_WQ, P_WUK, P_WUV, P_WO, P_BX, P_W1, P_W2, P_OUT, P_DBG, P_WS = [16 + 2 * i for i in range(12)]
sHA, sCA = (sSLOT, sXCD) if OPT['remap'] else (sHF, sJ)
sTAG, sCNT = 28, 29
sPLO, sPHI = 100, 101
DPPM = "row_mask:0xf bank_mask:0xf"

def srd(base, ptr, nbytes):
    g(f"""s_mov_b32 s{base}, s{ptr}
          s_mov_b32 s{base+1}, s{ptr+1}
          s_mov_b32 s{base+2}, {nbytes}
          s_mov_b32 s{base+3}, 0x20000""")

def stamp(k):
    if OPT["padat"] == k:
        g(f"s_memrealtime vcc\ns_waitcnt lgkmcnt(0)\nv_writelane_b32 v{VTS}, vcc_lo, 0")
    if not OPT["ts"]: return
    g(f"""s_memrealtime vcc
          s_waitcnt lgkmcnt(0)
          v_writelane_b32 v{VTS}, vcc_lo, {k}""")

def cnt(k, sreg):
    if OPT["ts"]: g(f"v_writelane_b32 v{VTS}, s{sreg}, {k}")

def ts_flush(role="A"):
    if OPT["padat"] >= 0:
        Lp, Le = g.nl("pad"), g.nl("pade")
        g(f"s_nop 4\nv_readlane_b32 s40, v{VTS}, 0")
        g("s_nop 4")
        if OPT["padw"] >= 8: g(f"s_cmp_eq_u32 s{sWV}, {OPT['padw'] % 100}")
        else: g(f"s_cmp_lt_u32 s{sWV}, 8")
        g(f"""s_cbranch_scc0 {Le}
              s_cmp_eq_u32 s40, 0
              s_cbranch_scc1 {Le}
              s_add_u32 s40, s40, 3000
              {Lp}:
              s_sleep 8
              s_memrealtime s[42:43]
              s_waitcnt lgkmcnt(0)
              s_sub_u32 s41, s42, s40
              s_cmp_lt_i32 s41, -40
              s_cbranch_scc1 {Lp}
              {Lp}b:
              s_memrealtime s[42:43]
              s_waitcnt lgkmcnt(0)
              s_sub_u32 s41, s42, s40
              s_cmp_lt_i32 s41, 0
              s_cbranch_scc1 {Lp}b
              {Le}:""")
    if not OPT["ts"]: return
    if OPT["dbg"]:
        sel = {"A": {1: 0, 2: 16, 6: 6, 7: 8, 8: 10, 9: 22, 10: 11, 11: 13, 14: 20, 15: 21}, "G": {3: 1, 4: 2, 5: 3, 12: 7, 13: 9}}[role]
        Ls = g.nl("dbg")
        g(f"""s_cmp_eq_u32 s{sWV}, {0 if role == "A" else 9}
              s_cbranch_scc0 {Ls}
              s_load_dwordx2 s[40:41], s[0:1], 80
              s_mov_b64 exec, -1
              v_mov_b32 v8, 0
              s_mov_b32 s42, 256
              s_mov_b32 s43, 0x20000""")
        for dst, src in sel.items():
            g(f"v_readlane_b32 s44, v{VTS}, {src}\ns_nop 3\nv_writelane_b32 v8, s44, {dst}")
        if role == "A":
            g(f"v_readlane_b32 s44, v{VTS}, 0\ns_nop 3\ns_not_b32 s44, s44\nv_writelane_b32 v8, s44, 0")
        g(f"""v_lshlrev_b32 v{VT}, 2, v{LANE}
              s_mov_b64 exec, 0xffff
              s_waitcnt lgkmcnt(0)
              buffer_atomic_umax v8, v{VT}, s[40:43], 0 offen""")
        g.label(Ls)
        return
    g(f"""s_mul_i32 s{sCNT}, s{sWG}, 12
          s_add_u32 s{sCNT}, s{sCNT}, s{sWV}
          s_lshl_b32 s{sCNT}, s{sCNT}, 7
          s_add_u32 s{sCNT}, s{sCNT}, {TSOFF}
          s_mov_b64 exec, -1
          s_mov_b32 exec_hi, 0
          v_lshlrev_b32 v{VT}, 2, v{LANE}
          buffer_store_dword v{VTS}, v{VT}, {sr(WS,4)}, s{sCNT} offen""")

def lds_wait(off, target, st, extra="", sleep=0):
    L, Lo = g.nl("w"), g.nl("wo")
    g(f"s_mov_b32 s{sCNT}, {LIM_LDS}")
    if sleep:
        Lf = g.nl("wf")
        g(f"s_branch {Lf}")
    g.label(L)
    if sleep:
        g(f"s_sleep {sleep}")
        g.label(Lf)
    g(f"ds_read_b32 v{VT}, v{VZ} offset:{off}")
    if extra: g(extra)
    g(f"""s_waitcnt lgkmcnt(0)
          v_readfirstlane_b32 s{st}, v{VT}
          s_sub_u32 s{sCNT}, s{sCNT}, 1
          s_cbranch_scc1 {Lo}
          s_cmp_ge_u32 s{st}, {target}
          s_cbranch_scc0 {L}""")
    g.label(Lo)

def pc_wait(mask, val, st, st2, extra="", sleep=0, off=None):
    L, Lo = g.nl("pw"), g.nl("pwo")
    g(f"s_mov_b32 s{sCNT}, {LIM_LDS}")
    g.label(L)
    if sleep: g(f"s_sleep {sleep}")
    g(f"ds_read_b32 v{VT}, v{VZ} offset:{F_PC if off is None else off}")
    if extra: g(extra)
    g(f"""s_waitcnt lgkmcnt(0)
          v_readfirstlane_b32 s{st}, v{VT}
          s_sub_u32 s{sCNT}, s{sCNT}, 1
          s_cbranch_scc1 {Lo}
          s_and_b32 s{st2}, s{st}, {hex(mask)}
          s_cmp_eq_u32 s{st2}, {hex(val)}
          s_cbranch_scc0 {L}""")
    g.label(Lo)

def land_wait(target, st, vt2, sleep=0):
    L, Lo = g.nl("lw"), g.nl("lwo")
    g(f"s_mov_b32 s{sCNT}, {LIM_LDS}")
    g.label(L)
    g(f"""ds_read_b64 {vr(vt2,2)}, v{VZ} offset:{F_LA}
          s_waitcnt lgkmcnt(0)
          v_min_u32 v{vt2}, v{vt2}, v{vt2+1}
          s_sub_u32 s{sCNT}, s{sCNT}, 1
          v_readfirstlane_b32 s{st}, v{vt2}
          s_cbranch_scc1 {Lo}
          s_cmp_ge_u32 s{st}, {target}
          s_cbranch_scc1 {Lo}""")
    if sleep: g(f"s_sleep {sleep}")
    g(f"s_branch {L}")
    g.label(Lo)

def lds_inc(off):
    g(f"""s_mov_b64 exec, 1
          ds_add_u32 v{VZ}, v{VONE} offset:{off}
          s_mov_b64 exec, -1""")

def get_tag(vtmp):
    lds_wait(F_TAGV, 1, sTAG, extra=f"ds_read_b32 v{vtmp}, v{VZ} offset:{F_TAG}")
    g(f"v_readfirstlane_b32 s{sTAG}, v{vtmp}")

def wave_sum(v, sdst):
    for mod in ("quad_perm:[1,0,3,2]", "quad_perm:[2,3,0,1]", "row_half_mirror", "row_mirror"):
        g(f"s_nop 1\nv_add_f32_dpp v{v}, v{v}, v{v} {mod} {DPPM}")
    g(f"s_nop 1\nv_add_f32_dpp v{v}, v{v}, v{v} row_bcast:15 row_mask:0xa bank_mask:0xf")
    g(f"s_nop 1\nv_add_f32_dpp v{v}, v{v}, v{v} row_bcast:31 row_mask:0xc bank_mask:0xf")
    g(f"s_nop 1\nv_readlane_b32 s{sdst}, v{v}, 63")

def rne(v):
    g(f"v_cvt_pk_bf16_f32 v{v}, v{v}, v{v}\nv_and_b32 v{v}, 0xffff0000, v{v}")

def ln_stats(x5, tmp, sA, sB, vM, vR):
    u = tmp
    for k in range(5):
        g(f"v_lshlrev_b32 v{u+2*k}, 16, v{x5+k}\nv_and_b32 v{u+2*k+1}, 0xffff0000, v{x5+k}")
    a = u + 10
    g(f"v_add_f32 v{a}, v{u}, v{u+1}")
    for k in range(2, 10): g(f"v_add_f32 v{a}, v{a}, v{u+k}")
    wave_sum(a, sA)
    g(f"s_nop 1\nv_mov_b32 v{vM}, s{sA}\nv_mul_f32 v{vM}, {hex(f32(1.0/640))}, v{vM}")
    for k in range(10): g(f"v_sub_f32 v{u+k}, v{u+k}, v{vM}")
    g(f"v_mul_f32 v{a}, v{u}, v{u}")
    for k in range(1, 10): g(f"v_fmac_f32 v{a}, v{u+k}, v{u+k}")
    wave_sum(a, sB)
    g(f"s_nop 1\nv_mov_b32 v{vR}, s{sB}\nv_mul_f32 v{vR}, {hex(f32(1.0/640))}, v{vR}")
    rne(vR)
    g(f"v_add_f32 v{vR}, {hex(f32(1e-5))}, v{vR}")
    rne(vR)
    g(f"v_sqrt_f32 v{vR}, v{vR}\ns_nop 0")
    rne(vR)
    g(f"v_rcp_f32 v{vR}, v{vR}")
    rne(vM)

def ln_frag(src, dst, t0, vM, vR):
    for k in range(4):
        g(f"""v_lshlrev_b32 v{t0}, 16, v{src+k}
              v_and_b32 v{t0+1}, 0xffff0000, v{src+k}
              v_sub_f32 v{t0}, v{t0}, v{vM}
              v_sub_f32 v{t0+1}, v{t0+1}, v{vM}
              v_cvt_pk_bf16_f32 v{t0+1}, v{t0}, v{t0+1}
              v_lshlrev_b32 v{t0}, 16, v{t0+1}
              v_and_b32 v{t0+1}, 0xffff0000, v{t0+1}
              v_mul_f32 v{t0}, v{t0}, v{vR}
              v_mul_f32 v{t0+1}, v{t0+1}, v{vR}
              v_cvt_pk_bf16_f32 v{dst+k}, v{t0}, v{t0+1}""")

def perm_block(raw, out, order=(0, 1, 2, 3)):
    for p in range(4):
        e = 2 * order[p]
        for d in range(2):
            g(f"v_perm_b32 v{out+4*(2*d)+p}, v{raw+2*(e+1)+d}, v{raw+2*e+d}, s{sPLO}")
            g(f"v_perm_b32 v{out+4*(2*d+1)+p}, v{raw+2*(e+1)+d}, v{raw+2*e+d}, s{sPHI}")

class Landing:
    pending = False
    n = 0
LD = Landing()

def load_block(raw, voff, srdb, sbase, stmp, rowbytes, thr=0, rows=None):
    CUR["p"] = {3456: "pw1", 8192: ("puv" if rows else "pwq"), 1280: ("pw2" if srdb == SR else "pwo")}[rowbytes]
    per = 4095 // rowbytes + 1
    cur = None
    for e in range(8):
        grp, rem = divmod(e, per)
        if grp != cur:
            if grp == 0: so = sbase
            else:
                g(f"s_add_u32 s{stmp}, s{sbase}, {(rows[e] if rows else grp*per)*rowbytes}"); so = stmp
            cur = grp
        if thr:
            g(f"s_waitcnt vmcnt({thr-1})")
            if LD.pending and LD.n >= thr - 1:
                land_now()
        off = f" offset:{rem*rowbytes}" if rem else ""
        g(f"buffer_load_dwordx2 {vr(raw+2*e,2)}, v{voff}, {sr(srdb,4)}, s{so} offen{off} {pol(CUR['p'])}")
        LD.n += 1

def land_now():
    g(f"ds_write_b32 v{VZ}, v{VONE} offset:{F_UK}")
    stamp(2)
    LD.pending = False

def land_flush():
    if LD.pending:
        g(f"s_waitcnt vmcnt({LD.n})")
        land_now()

def tagcheck(regs, acc):
    g(f"v_xor_b32 v{acc}, s{sTAG}, v{regs[0]}")
    for r in regs[1:]:
        g(f"v_bitop3_b32 v{acc}, v{r}, s{sTAG}, v{acc} bitop3:0xbe")
    g(f"v_cmp_ne_u32 vcc, 0, v{acc}")

def poll_loads(nm, loads, tags, scnt, acc=VT, sleep=0, mask=True, b8=False, onfail=""):
    L, Lo = g.nl(nm), g.nl(nm + "o")
    g(f"s_mov_b32 s{scnt}, {LIM_MEM}")
    g.label(L)
    g(loads)
    g("s_waitcnt vmcnt(0)")
    (tagcheck8 if b8 else tagcheck)(tags, acc)
    g(f"s_cbranch_vccz {Lo}")
    if onfail: g(onfail)
    if mask: g("s_mov_b64 exec, vcc")
    if sleep: g(f"s_sleep {sleep}")
    g(f"""s_sub_u32 s{scnt}, s{scnt}, 1
          s_cbranch_scc0 {L}""")
    g.label(Lo)
    if mask: g("s_mov_b64 exec, -1")

def flag16_wait(nm, ap):
    L, Lo = g.nl(nm), g.nl(nm + "o")
    g(f"s_mov_b32 s{sCNT}, {LIM_MEM}\ns_lshl_b32 s18, s{sTAG}, 4")
    g.label(L)
    g(f"""s_load_dwordx16 s[48:63], s[{ap}:{ap+1}], 0 glc
          s_sub_u32 s{sCNT}, s{sCNT}, 1
          s_cbranch_scc1 {Lo}
          s_waitcnt lgkmcnt(0)
          s_add_u32 s19, s48, s49""")
    for k in range(2, 16): g(f"s_add_u32 s19, s19, s{48+k}")
    g(f"s_cmp_eq_u32 s19, s18\ns_cbranch_scc0 {L}")
    g.label(Lo)
    g("s_waitcnt lgkmcnt(0)")

sTB = 66
def tagbytes():
    g(f"""s_and_b32 s{sTB}, s{sTAG}, 1
          s_mul_i32 s{sTB}, s{sTB}, 0x01010101
          s_and_b32 s{sTB+1}, s{sTAG}, 0xfefefefe
          s_or_b32 s{sTB}, s{sTB}, s{sTB+1}
          s_lshr_b32 s{sTB+1}, s{sTB}, 8
          s_lshr_b32 s{sTB+2}, s{sTB}, 16
          s_lshr_b32 s{sTB+3}, s{sTB}, 24""")
def tagput(regs, vmask):
    for d, r in enumerate(regs): g(f"v_bfi_b32 v{r}, v{vmask}, s{sTB+d}, v{r}")
def tagcheck8(bases, acc):
    first = True
    for b in bases:
        for d in range(4):
            if first: g(f"v_xor_b32 v{acc}, s{sTB+d}, v{b+d}"); first = False
            else: g(f"v_bitop3_b32 v{acc}, v{b+d}, s{sTB+d}, v{acc} bitop3:0xbe")
    g(f"v_and_b32 v{acc}, 0xff, v{acc}\nv_cmp_ne_u32 vcc, 0, v{acc}")

def fswz(dst, i, t):
    g(f"""v_lshrrev_b32 v{t}, 1, v{i}
          v_xor_b32 v{dst}, v{t}, v{i}
          v_and_b32 v{dst}, 4, v{dst}
          v_and_or_b32 v{dst}, v{i}, 2, v{dst}
          v_bfe_u32 v{t}, v{i}, 3, 1
          v_or_b32 v{dst}, v{dst}, v{t}""")

def sum_groups(base, n):
    step = 1
    while step < n:
        for a in range(0, n - step, 2 * step):
            g(f"v_pk_add_f32 {vr(base+4*a,2)}, {vr(base+4*a,2)}, {vr(base+4*(a+step),2)}")
            g(f"v_pk_add_f32 {vr(base+4*a+2,2)}, {vr(base+4*a+2,2)}, {vr(base+4*(a+step)+2,2)}")
        step *= 2

def red16(regs, full=True):
    for mod in ("row_ror:4", "row_ror:8"):
        g("s_nop 1")
        for r in regs: g(f"v_add_f32_dpp v{r}, v{r}, v{r} {mod} {DPPM}")
    for sw in (("v_permlane16_swap_b32", "v_permlane32_swap_b32") if full else ("v_permlane16_swap_b32",)):
        for r in regs: g(f"v_mov_b32 v{r+1}, v{r}")
        g("s_nop 1")
        for r in regs: g(f"{sw} v{r}, v{r+1}")
        for r in regs: g(f"v_add_f32 v{r}, v{r}, v{r+1}")

def global_max(dst, t0):
    g(f"""v_max_f32 v{dst}, v{t0}, v{t0+1}""")
    for mod in ("quad_perm:[1,0,3,2]", "quad_perm:[2,3,0,1]", "row_half_mirror", "row_mirror"):
        g(f"s_nop 1\nv_max_f32_dpp v{dst}, v{dst}, v{dst} {mod} {DPPM}")
    for sw in ("v_permlane16_swap_b32", "v_permlane32_swap_b32"):
        g(f"v_mov_b32 v{dst+1}, v{dst}\ns_nop 1\n{sw} v{dst}, v{dst+1}\nv_max_f32 v{dst}, v{dst}, v{dst+1}")

def mfma(d, a, b, first):
    g(f"v_mfma_f32_16x16x32_bf16 {vr(d,4)}, {vr(a,4)}, {vr(b,4)}, {'0' if first else vr(d,4)}")

K = NAME + "_kernel"
g(f"""s_load_dwordx16 s[16:31], s[0:1], 0
      s_load_dwordx8 s[32:39], s[0:1], 64
      s_cmp_ge_u32 s{sWG}, 256
      s_cbranch_scc1 L_END
      v_lshrrev_b32 v{VT}, 6, v0
      v_and_b32 v{LANE}, 63, v0
      v_readfirstlane_b32 s{sWV}, v{VT}
      v_mov_b32 v{VZ}, 0
      v_lshrrev_b32 v{vKG}, 4, v{LANE}
      s_cmp_eq_u32 s{sWV}, 7
      s_cbranch_scc0 L_nopf
      s_getpc_b64 s[44:45]
      L_pc:
      s_sub_u32 s44, s44, L_pc-{K}
      s_subb_u32 s45, s45, 0
      s_and_b32 s41, s{sWG}, 0xf8
      v_add_u32 v10, s41, v{LANE}
      v_lshlrev_b32 v10, 7, v10
      v_cmp_gt_u32 vcc, L_CODE_END-{K}, v10
      s_and_b64 exec, vcc, 0xff
      s_cbranch_execz L_nopf2
      global_load_dword v159, v10, s[44:45]
      L_nopf2:
      s_mov_b64 exec, -1
      L_nopf:
      v_mov_b32 v{VONE}, 1
      v_and_b32 v{vN}, 15, v{LANE}
      s_and_b32 s{sXCD}, s{sWG}, 7
      s_lshr_b32 s{sSLOT}, s{sWG}, 3
      s_lshr_b32 s{sHF}, s{sSLOT}, 3
      s_lshl_b32 s{sJ}, s{sXCD}, 2
      s_add_u32 s{sHF}, s{sHF}, s{sJ}
      s_and_b32 s{sJ}, s{sSLOT}, 7
      s_mov_b32 s{sPLO}, 0x05040100
      s_mov_b32 s{sPHI}, 0x07060302""")
if OPT["ts"] or OPT["padat"] >= 0:
    g(f"v_mov_b32 v{VTS}, 0")
    stamp(0)
if OPT["pad"]:
    g(f"s_memrealtime vcc\ns_waitcnt lgkmcnt(0)\nv_mov_b32 v{VTS}, vcc_lo")
g(f"""s_cmp_ge_u32 s{sWV}, 6
      s_cbranch_scc1 L_OTH
      s_setprio 2
      v_lshlrev_b32 v24, 16, v{vKG}
      v_lshl_add_u32 v24, v{vN}, 3, v24       ; + n*8
      v_mul_u32_u24 v6, 20, v{LANE}
      s_lshr_b32 s40, s{sXCD if OPT["remap"] else sJ}, 1   ; mq
      s_mul_i32 s40, s40, 160
      s_lshl_b32 s41, s{sWV}, 5
      s_add_u32 s40, s40, s41
      s_lshl_b32 s41, s40, 13                 ; row0*8192
      {f"s_lshl_b32 s42, s{sSLOT}, 7" if OPT["remap"] else f"s_lshl_b32 s42, s{sHF}, 8"}
      s_add_u32 s41, s41, s42
      s_and_b32 s42, s{sXCD if OPT["remap"] else sJ}, 1
      s_lshl_b32 s42, s42, {12 if OPT["remap"] else 7}
      s_add_u32 s41, s41, s42                 ; w_q soffset
      s_mov_b32 s46, 5242880
      s_mov_b32 s47, 0x20000
      s_mov_b32 s{SR+2}, 1280
      s_mov_b32 s{SR+3}, 0x20000
      s_cmp_eq_u32 s{sWV}, 5
      s_cbranch_scc0 L_A
      s_setprio 3
      s_waitcnt lgkmcnt(0)
      s_mov_b32 s{SR}, s{P_X}
      s_mov_b32 s{SR+1}, s{P_X+1}
      buffer_load_dwordx4 v[8:11], v6, {sr(SR,4)}, 0 offen
      buffer_load_dword v12, v6, {sr(SR,4)}, 0 offen offset:16
      s_barrier
      s_branch L_LN""")
g.label("L_A")
g(f"""s_waitcnt lgkmcnt(0)
      s_mov_b32 s44, s{P_WQ}
      s_mov_b32 s45, s{P_WQ+1}
      s_nop 1""")
load_block(32, 24, 44, 41, 42, 8192)
g("s_barrier")
lds_inc(F_QI)
srd(WS, P_WS, WS_REC)
g(f"""s_lshl_b32 s40, s40, 1
      v_lshlrev_b32 v112, 4, v{vKG}
      v_add_u32 v112, s40, v112
      v_lshlrev_b32 v113, 4, v{vN}
      s_lshl_b32 s40, s{sWV}, 8
      v_add_u32 v113, s40, v113
      s_branch L_A_q""")
g.label("L_LN")
srd(WS, P_WS, WS_REC)
g(f"v_add_u32 v6, {XNL}, v6\ns_waitcnt vmcnt(0)")
stamp(16)
U, E, Dd = 32, 44, 56
for k in range(5):
    g(f"v_lshlrev_b32 v{U+2*k}, 16, v{8+k}\nv_and_b32 v{U+2*k+1}, 0xffff0000, v{8+k}")
g(f"""v_pk_add_f32 v[14:15], {vr(U,2)}, {vr(U+2,2)}
      v_pk_add_f32 v[16:17], {vr(U+4,2)}, {vr(U+6,2)}
      v_pk_add_f32 v[14:15], v[14:15], {vr(U+8,2)}
      v_pk_add_f32 v[14:15], v[14:15], v[16:17]
      v_add_f32 v14, v14, v15""")
wave_sum(14, 40)
g(f"""s_nop 1
      v_mov_b32 v18, {hex(f32(-1.0/640))}
      v_mul_f32 v18, s40, v18                 ; -mean
      v_mov_b32 v19, v18""")
for k in range(5): g(f"v_pk_add_f32 {vr(E+2*k,2)}, {vr(U+2*k,2)}, v[18:19]")
g(f"v_pk_mul_f32 v[14:15], {vr(E,2)}, {vr(E,2)}")
for k in range(1, 5): g(f"v_pk_fma_f32 v[14:15], {vr(E+2*k,2)}, {vr(E+2*k,2)}, v[14:15]")
g(f"""v_cvt_pk_bf16_f32 v20, v18, v18
      v_add_f32 v14, v14, v15
      v_and_b32 v20, 0xffff0000, v20
      v_mov_b32 v21, v20""")
fill = [f"v_pk_add_f32 {vr(E+2*k,2)}, {vr(U+2*k,2)}, v[20:21]" for k in range(5)]
fill += [f"v_cvt_pk_bf16_f32 v{8+k}, v{E+2*k}, v{E+2*k+1}" for k in range(5)]
fill += [x for k in range(5) for x in (f"v_lshlrev_b32 v{Dd+2*k}, 16, v{8+k}", f"v_and_b32 v{Dd+2*k+1}, 0xffff0000, v{8+k}")]
steps = [f"v_add_f32_dpp v14, v14, v14 {m} {DPPM}" for m in ("quad_perm:[1,0,3,2]", "quad_perm:[2,3,0,1]", "row_half_mirror", "row_mirror")]
steps += ["v_add_f32_dpp v14, v14, v14 row_bcast:15 row_mask:0xa bank_mask:0xf", "v_add_f32_dpp v14, v14, v14 row_bcast:31 row_mask:0xc bank_mask:0xf", "v_readlane_b32 s42, v14, 63"]
for st_ in steps:
    g(st_); g(fill.pop(0)); g(fill.pop(0))
g(f"""v_mov_b32 v22, {hex(f32(1.0/640))}
      v_mul_f32 v22, s42, v22""")
rne(22)
g(f"v_add_f32 v22, {hex(f32(1e-5))}, v22")
rne(22)
g("v_sqrt_f32 v22, v22"); g(fill.pop(0))
rne(22)
g("v_rcp_f32 v22, v22")
while fill: g(fill.pop(0))
g("v_mov_b32 v23, v22")
for k in range(5): g(f"v_pk_mul_f32 {vr(Dd+2*k,2)}, {vr(Dd+2*k,2)}, v[22:23]")
for k in range(5): g(f"v_cvt_pk_bf16_f32 v{8+k}, v{Dd+2*k}, v{Dd+2*k+1}")
g(f"""ds_write2_b32 v6, v8, v9 offset0:0 offset1:1
      ds_write2_b32 v6, v10, v11 offset0:2 offset1:3
      ds_write_b32 v6, v12 offset:16
      ds_write_b32 v{VZ}, v{VONE} offset:{F_XN}""")
stamp(17)
g("s_branch L_A_q")
g.label("L_OTH")
g(f"""s_cmp_eq_u32 s{sWV}, 6
      s_cbranch_scc0 L_noinit
      v_lshlrev_b32 v8, 2, v{LANE}
      ds_write_b32 v8, v{VZ}
      s_waitcnt lgkmcnt(0)
      L_noinit:
      s_cmp_eq_u32 s{sWV}, 9
      s_cbranch_scc1 L_G9
      s_barrier
      {f"s_cmp_eq_u32 s{sWV}, 6" if OPT["uk6"] else ""}
      {"s_cbranch_scc1 L_FFN" if OPT["uk6"] else ""}
      s_cmp_lt_u32 s{sWV}, 8
      s_cbranch_scc0 L_OTH2
      s_waitcnt lgkmcnt(0)""")
srd(WS, P_WS, WS_REC)
if OPT["tlb"]:
    g(f"""s_cmp_eq_u32 s{sWV}, 7
          s_cbranch_scc0 L_A_q
          s_and_b32 s40, s{sSLOT}, 7
          s_lshl_b32 s40, s40, 6
          s_lshr_b32 s41, s{sSLOT}, 3             ; 0..3
          s_lshl_b32 s42, s41, 20
          s_add_u32 s42, s42, s40
          s_and_b32 s43, s41, 1
          s_lshl_b32 s43, s43, 20
          s_add_u32 s43, s43, s40
          s_lshl_b32 s44, s{sXCD}, 21
          s_add_u32 s44, s44, s43
          s_add_u32 s45, s40, 0x400000
          s_add_u32 s46, s40, 0x200000
          s_add_u32 s47, s43, 0x400000""")
    if OPT["tlb"] == 2: lds_wait(F_XN, 1, 41, sleep=1)
    if OPT["tlb"] in (1, 3):
        g(f"""s_load_dword s52, s[{P_KV}:{P_KV+1}], s44
          s_load_dword s53, s[{P_WUK}:{P_WUK+1}], s42
          s_load_dword s54, s[{P_W1}:{P_W1+1}], s43
          s_load_dword s55, s[{P_W2}:{P_W2+1}], s43
          s_load_dword s60, s[{P_W1}:{P_W1+1}], s46
          s_load_dword s61, s[{P_W2}:{P_W2+1}], s46""")
    if OPT["tlb"] == 3: lds_wait(F_XN, 1, 41, sleep=1)
    g(f"""s_load_dword s56, s[{P_WS}:{P_WS+1}], s42
          s_load_dword s57, s[{P_WUV}:{P_WUV+1}], s42
          s_load_dword s58, s[{P_WO}:{P_WO+1}], s42
          s_load_dword s59, s[{P_WO}:{P_WO+1}], s45
          s_load_dword s62, s[{P_WS}:{P_WS+1}], s47
          s_load_dword s63, s[{P_OUT}:{P_OUT+1}], 0
          s_waitcnt lgkmcnt(0)""")
g("s_branch L_A_q")
g.label("L_OTH2")
g(f"""      s_cmp_eq_u32 s{sWV}, 9
      s_cbranch_scc1 L_G9
      s_cmp_eq_u32 s{sWV}, 11
      s_cbranch_scc1 L_FFN""")
g(f"v_lshrrev_b32 v32, 3, v{LANE}")
fswz(33, 32, 34)
g(f"""v_and_b32 v34, 7, v{LANE}
      v_xor_b32 v33, v33, v34
      v_lshlrev_b32 v33, 4, v33
      v_lshl_add_u32 v36, v32, 10, v33
      s_bfe_u32 s43, s{sWV}, 0x10001
      s_and_b32 s40, s43, 1
      s_mul_i32 s40, s40, 80
      v_xor_b32 v36, s40, v36
      s_lshr_b32 s41, s{sSLOT}, 1""")
if OPT["ksmap"] == 0:
    g(f"s_lshl_b32 s41, s41, 3\ns_add_u32 s41, s41, s{sXCD}             ; ks")
else:
    g(f"s_lshl_b32 s42, s{sXCD}, 4\ns_add_u32 s41, s41, s42             ; ks")
g(f"""s_mul_i32 s51, s41, {OPT["rot"]}
      s_add_u32 s51, s51, s43
      s_lshl_b32 s51, s51, 13
      s_and_b32 s51, s51, 0x1ffff
      s_lshl_b32 s52, s41, 17                 ; ks*128KB
      s_add_u32 s41, s52, s51
      s_lshl_b32 s42, s43, 10
      s_add_u32 s42, s42, {KV}
      s_waitcnt lgkmcnt(0)""")
srd(44, P_KV, 16777216)
srd(WS, P_WS, WS_REC)
if OPT["kvt"]:
    n = OPT["kvt"]; step = 131072 // n
    g(f"s_lshl_b32 s49, s43, 16\ns_add_u32 s49, s49, s52")
    for k in range(n // 2):
        g(f"s_add_u32 s50, s49, {k*step}\ns_load_dword s{56+(k&7)}, s[{P_KV}:{P_KV+1}], s50")
if OPT["vt"]:
    lds_wait(F_QI, 5, 40)
    g(f"""s_mov_b64 exec, 1
          buffer_load_dword v40, v{VZ}, {sr(44,4)}, s41 offen {pol('pkv')}
          s_mov_b64 exec, -1""")
if OPT["gate"] >= 20: lds_wait(F_QP, 1, 40)
elif OPT["gate"]:
    lds_wait(F_WQ if OPT["gate"] < 10 else F_Q, OPT["gate"] % 10, 40, sleep=1)
stamp(8)
NI = OPT["inflight"]
assert 1 <= NI <= 32
g(f"""s_lshl_b32 s48, s43, 2
      v_mov_b32 v37, s48
      s_mov_b32 s43, 0""")
def ld_loop(lab, NI, end):
    g.label(lab)
    for k in range(16):
        cb, hi = k & 7, k >> 3
        g(f"s_add_u32 m0, s42, {cb*(16384-128) + hi*2048}")
        if k == 8: g(f"s_add_u32 s51, s51, {2*8192}\ns_and_b32 s51, s51, 0x1ffff\ns_add_u32 s41, s52, s51")
        g(f"s_waitcnt vmcnt({NI-1})")
        if k == (NI - 1) % 16:
            g(f"""s_sub_u32 s48, s43, {(NI - 1) // 16}
                  s_max_i32 s48, s48, 0
                  v_mov_b32 v38, s48
                  ds_write_b32 v37, v38 offset:{F_LA}""")
        g(f"buffer_load_dwordx4 v36, {sr(44,4)}, s41 offen offset:{cb*128} {pol('pkv')} lds")
    g(f"""s_add_u32 s51, s51, {2*8192}
          s_and_b32 s51, s51, 0x1ffff
          s_add_u32 s41, s52, s51
          s_add_u32 s42, s42, {4*1024}
          s_add_u32 s43, s43, 1
          s_cmp_lt_u32 s43, {end}
          s_cbranch_scc1 {lab}""")
if OPT["inf2"]:
    ld_loop("L_ld", NI, OPT["split"])
    ld_loop("L_ld2", OPT["inf2"], 4)
else:
    ld_loop("L_ld", NI, 4)
lds_inc(F_ISS)
stamp(1)
g(f"""v_mov_b32 v38, 3
      v_mov_b32 v39, 4
      s_waitcnt vmcnt(16)
      ds_write_b32 v37, v38 offset:{F_LA}
      s_waitcnt vmcnt(0)
      ds_write_b32 v37, v39 offset:{F_LA}""")
stamp(2)
g("s_branch L_G")
g.label("L_FFN")
XF = 8
g("s_waitcnt lgkmcnt(0)")
srd(WS, P_WS, WS_REC)
if OPT["uk6"]: g(f"s_cmp_eq_u32 s{sWV}, 11\ns_cbranch_scc1 L_FFNa")
srd(SR, P_WUK, 4194304)
g(f"""v_xor_b32 v8, v{vN}, v{vKG}
      v_lshlrev_b32 v8, 4, v8
      v_lshl_add_u32 v8, v{vKG}, 13, v8
      v_xor_b32 v9, 64, v8
      v_xor_b32 v10, 128, v8
      v_xor_b32 v11, 192, v8
      s_lshl_b32 s48, s{sCA}, 19
      s_lshl_b32 s49, s{sHA}, 8
      s_add_u32 s48, s48, s49""")
if OPT["ukgate"]: lds_wait(F_WQ, OPT["ukgate"], 40)
else: lds_wait(F_QI, 5, 40)
for u in range(16):
    g(f"s_mov_b32 m0, {QL + u*1024}")
    g(f"s_add_u32 s49, s48, {u*4*8192}")
    g(f"buffer_load_dwordx4 v{8+(u&3)}, {sr(SR,4)}, s49 offen {pol('puk')} lds")
if OPT["uk6"]:
    g("s_branch L_A_q")
    g.label("L_FFNa")
    if OPT["fgate"] == 0: lds_wait(F_QI, 5, 40)
if OPT["fgate"] == 9:
    g("s_waitcnt vmcnt(0)"); land_now()
elif OPT["fgate"] == 8:
    lds_wait(F_QP, 1, 40, sleep=1)
elif OPT["fgate"]:
    lds_wait(F_Q, OPT["fgate"], 40, sleep=1)
if OPT["forder"] == 1: lds_wait(F_ISS, 2, 40, sleep=2)
if OPT["forder"] == 5: lds_wait(F_H3, 8, 40, sleep=2)
if OPT["forder"] == 6: lds_wait(F_STG, 8, 40, sleep=2)
g("s_branch L_FFNb")
FFN_EARLY_END = True
g.label("L_G9")
g(f"""s_setprio 3
      s_waitcnt lgkmcnt(0)
      s_load_dword s40, s[{P_WS}:{P_WS+1}], {EPOCH}
      s_barrier""")
srd(WS, P_WS, WS_REC)
g(f"""v_lshlrev_b32 v8, 4, v{vN}              ; n*16
      s_lshl_b32 s41, s{sHA}, 3
      s_add_u32 s41, s41, s{sCA}
      s_lshl_b32 s41, s41, 8
      s_add_u32 s43, s41, {QAM}""")
if OPT["remap"]:
    g(f"""s_and_b32 s42, s{sXCD}, 1
          s_lshl_b32 s42, s42, 4
          s_lshr_b32 s41, s{sSLOT}, 1
          s_add_u32 s42, s42, s41                 ; hQ
          s_lshl_b32 s42, s42, 14
          s_and_b32 s41, s{sXCD}, 6
          s_and_b32 s45, s{sSLOT}, 1
          s_add_u32 s41, s41, s45
          s_lshl_b32 s41, s41, 8""")
else:
    g(f"s_lshl_b32 s42, s{sHF}, 14\ns_lshl_b32 s41, s{sJ}, 8")
g(f"""
      s_add_u32 s42, s42, s41
      s_add_u32 s42, s42, {QM}
      s_add_u32 s45, s42, 8192
      v_lshl_add_u32 v7, v{vKG}, 11, v8

      v_mov_b32 v11, 1
      s_waitcnt lgkmcnt(0)
      s_mul_i32 s{sTAG}, s40, 1664525
      s_add_u32 s{sTAG}, s{sTAG}, 1013904223
      v_mov_b32 v10, s{sTAG}
      v_mov_b32 v13, s{sTAG}
      v_mov_b32 v15, s{sTAG}
      ds_write_b64 v{VZ}, v[10:11] offset:{F_TAG}""")
stamp(1)
if OPT["warm"]:
    g(f"""s_and_b32 s46, s{sSLOT}, 1
          s_lshl_b32 s46, s46, 7
          s_add_u32 s46, s46, s{sXCD}
          s_lshl_b32 s46, s46, 7
          s_add_u32 s46, s46, {HD}
          v_lshlrev_b32 v9, 10, v{vN}
          v_and_b32 v16, 1, v{vKG}
          v_lshl_add_u32 v9, v16, 15, v9""")
    lds_wait(F_QI, 5, 40)
    if OPT["fast1"]:
        g(f"""buffer_load_dwordx4 v[16:19], v6, {sr(WS,4)}, s47 offen sc1
              buffer_load_dwordx4 v[16:19], v6, {sr(WS,4)}, s47 offen offset:1024 sc1""")
    g(f"""buffer_load_dwordx4 v[16:19], v7, {sr(WS,4)}, s42 offen sc1
          buffer_load_dwordx4 v[16:19], v7, {sr(WS,4)}, s45 offen sc1
          buffer_load_dwordx4 v[16:19], v8, {sr(WS,4)}, s43 offen sc1
          buffer_load_dword v16, v9, {sr(WS,4)}, s46 offen sc1""")
lds_wait(F_Q, 5, 40)
g("\n".join(f"ds_read_b128 {vr(32+4*b,4)}, v8 offset:{REDQ+256*b}" for b in range(5)))
g("s_waitcnt lgkmcnt(0)")
sum_groups(32, 5)
g(f"""v_cvt_pk_bf16_f32 v12, v32, v33
      v_cvt_pk_bf16_f32 v14, v34, v35""")
if OPT["fast1"]:
    g(f"""buffer_store_dwordx4 v[12:15], v6, {sr(WS,4)}, s47 offen
          ds_write_b32 v{VZ}, v{VONE} offset:{F_QP}
          buffer_store_dwordx4 v[12:15], v6, {sr(WS,4)}, s47 offen offset:1024""")
g(f"""buffer_store_dwordx4 v[12:15], v7, {sr(WS,4)}, s42 offen sc1
      buffer_store_dwordx4 v[12:15], v7, {sr(WS,4)}, s45 offen sc1
      ds_write_b32 v{VZ}, v{VONE} offset:{F_QP}
      s_mov_b64 exec, 0xffff""")
stamp(2)
lds_wait(F_QA, 8, 40)
g("\n".join(f"ds_read_b128 {vr(32+4*b,4)}, v8 offset:{REDQA+256*b}" for b in range(8)))
g("s_waitcnt lgkmcnt(0)")
sum_groups(32, 8)
for r in range(4): g(f"v_mul_f32 v{32+r}, {hex(f32(SCALE))}, v{32+r}")
g(f"""v_cvt_pk_bf16_f32 v12, v32, v33
      v_cvt_pk_bf16_f32 v14, v34, v35
      buffer_store_dwordx4 v[12:15], v8, {sr(WS,4)}, s43 offen sc1
      ds_write_b32 v{VZ}, v{VONE} offset:{F_QAP}
      s_mov_b64 exec, -1
      s_setprio 0""")
stamp(3)
if OPT["uvgate"] < 2: lds_wait(F_H2I if OPT["uvgate"] else F_ISS, 8 if OPT["uvgate"] else 2, 40, sleep=1)
elif OPT["uvgate"] == 3: land_wait(4, 40, 24, sleep=1)
else: g("s_sleep 16")
if OPT["fast1"] and OPT["recl"]:
    g(f"""buffer_store_dwordx4 v[20:23], v6, {sr(WS,4)}, s47 offen sc1
          buffer_store_dwordx4 v[20:23], v6, {sr(WS,4)}, s47 offen offset:1024 sc1""")
g("s_branch L_G_uv9")

g.label("L_A_q")
g("s_setprio 2")
g(f"""s_and_b32 s40, s{sSLOT}, 1              ; g
      s_lshl_b32 s41, s40, 4
      s_lshl_b32 s42, s{sWV}, 1
      s_add_u32 s41, s41, s42                 ; 16g+2w
      s_lshl_b32 s41, s41, 11
      s_add_u32 s20, s41, {QAM}
      s_lshr_b32 s21, s{sSLOT}, 1             ; mi 0..15
      s_lshl_b32 s42, s40, 7                  ; 16g*8
      s_add_u32 s42, s42, s{sWV}
      s_lshl_b32 s42, s42, 3
      s_add_u32 s42, s42, s{sXCD}
      s_lshl_b32 s42, s42, 4
      s_add_u32 s42, s42, s21
      s_lshl_b32 s42, s42, 7
      s_add_u32 s26, s42, {IB}
      s_add_u32 s22, s26, {2*8*8*2048}
      s_lshl_b32 s42, s40, 7                  ; 16g*8
      s_add_u32 s42, s42, s{sXCD}
      s_lshl_b32 s42, s42, 4
      s_add_u32 s42, s42, s21
      s_lshl_b32 s42, s42, 3
      s_add_u32 s27, s42, {HD}
      s_add_u32 s23, s27, 0x8000
      s_lshl_b32 s42, s{sHF}, 3
      s_add_u32 s42, s42, s{sWV}
      s_lshl_b32 s42, s42, 7
      s_add_u32 s31, s42, {HD}
      s_lshl_b32 s42, s{sHF}, 3
      s_add_u32 s42, s42, s{sJ}
      s_lshl_b32 s42, s42, 3
      s_add_u32 s42, s42, s{sWV}              ; (h*8+j)*8+w
      s_lshl_b32 s30, s42, 11
      s_add_u32 s30, s30, {IB}
      s_lshl_b32 s42, s{sHA}, 3
      s_add_u32 s42, s42, s{sCA}
      s_lshl_b32 s42, s42, 3
      s_add_u32 s42, s42, s{sWV}
      s_lshl_b32 s42, s42, 8
      s_add_u32 s42, s42, {QM}
      s_add_u32 s32, s{WS}, s42
      s_addc_u32 s33, s{WS+1}, 0
      s_and_b32 s40, s{sWV}, 1
      s_lshl_b32 s40, s40, 3                  ; 8*dhalf'
      v_xor_b32 v6, s40, v{vN}
      v_lshlrev_b32 v6, 4, v6
      v_lshl_add_u32 v6, v{LANE}, 8, v6       ; row*256 + ...
      v_lshlrev_b32 v10, 2, v{LANE}
      s_lshl_b32 s40, s{sWV}, 8
      v_add_u32 v10, s40, v10
      v_mov_b32 v8, 0
      v_mov_b32 v9, 0""")
W = 80
QKA, PVA = 32, 96
fswz(24, vN, 25)
g(f"""v_xor_b32 v24, v24, v{vKG}
      v_lshlrev_b32 v24, 4, v24
      v_and_b32 v25, 7, v{vN}
      v_lshl_add_u32 v24, v25, 7, v24         ; + (i&7)*128
      v_lshrrev_b32 v25, 3, v{vN}
      v_lshl_add_u32 v24, v25, 10, v24        ; + (i>>3)*1024
      s_lshl_b32 s42, s{sWV}, 11
      s_add_u32 s42, s42, {KV}
      v_add_u32 v160, s42, v24
      v_xor_b32 v161, 64, v160
      v_add_u32 v162, 0x10000, v160
      v_add_u32 v163, 0x10000, v161
      v_lshrrev_b32 v26, 2, v{LANE}           ; i16""")
fswz(24, 26, 25)
g(f"""s_and_b32 s42, s{sWV}, 3
      s_lshl_b32 s42, s42, 1
      v_bfe_u32 v25, v{LANE}, 1, 1
      v_or_b32 v25, s42, v25                  ; xi = 2(w&3) + (c'>>1)
      v_xor_b32 v24, v24, v25
      v_lshlrev_b32 v24, 4, v24
      v_and_b32 v25, 1, v{LANE}
      v_lshl_add_u32 v24, v25, 3, v24
      v_and_b32 v25, 7, v26
      v_lshl_add_u32 v24, v25, 7, v24
      v_lshrrev_b32 v25, 3, v26
      v_lshl_add_u32 v24, v25, 10, v24
      s_lshr_b32 s42, s{sWV}, 2
      s_lshl_b32 s42, s42, 14
      s_add_u32 s42, s42, {KV}
      v_add_u32 v164, s42, v24
      v_add_u32 v165, 0x10000, v164
      v_lshrrev_b32 v24, 1, v{vN}             ; xi
      v_and_b32 v25, 4, v24
      v_lshl_or_b32 v25, v25, 1, v24          ; sigma
      s_lshl_b32 s42, s{sWV}, 1
      v_xor_b32 v25, s42, v25
      v_lshlrev_b32 v25, 4, v25
      v_lshl_add_u32 v25, v24, 8, v25         ; + xi*256
      v_lshl_add_u32 v25, v{vKG}, 11, v25     ; + (l>>4)*2048
      v_and_b32 v24, 1, v{LANE}
      v_lshl_add_u32 v28, v24, 3, v25
      v_xor_b32 v29, 16, v28
      v_xor_b32 v30, v{vN}, v{vKG}
      v_lshlrev_b32 v30, 4, v30
      v_lshl_add_u32 v30, v{vKG}, 8, v30
      v_xor_b32 v31, {12*16}, v30             ; odd s
      v_lshlrev_b32 v166, 4, v{LANE}          ; lane*16""")
g(f"s_cmp_ge_u32 s{sWV}, 5\ns_cbranch_scc1 L_A_q2")
for p in range(4):
    g(f"s_waitcnt vmcnt({6-2*p})")
    if p == 0 and (OPT['ukgate'] or 0 < OPT['gate'] < 10): lds_inc(F_WQ)
    e = 2 * p
    for d in range(2):
        g(f"v_perm_b32 v{48+8*d+p}, v{32+2*(e+1)+d}, v{32+2*e+d}, s{sPLO}")
        g(f"v_perm_b32 v{48+8*d+4+p}, v{32+2*(e+1)+d}, v{32+2*e+d}, s{sPHI}")
stamp(18)
lds_wait(F_XN, 1, 19, extra=f"ds_read_b128 v[116:119], v112 offset:{XNL}")
for t in range(4): mfma(64 + 4 * t, 116, 48 + 4 * t, True)
g(f"""s_nop 6
      v_mov_b32 v65, v68
      v_mov_b32 v66, v72
      v_mov_b32 v67, v76
      s_mov_b64 exec, 0xffff
      ds_write_b128 v113, v[64:67] offset:{REDQ}
      s_mov_b64 exec, 1
      ds_add_u32 v{VZ}, v{VONE} offset:{F_Q}
      s_mov_b64 exec, -1""")
g.label("L_A_q2")
stamp(2)
get_tag(7)
g(f"s_lshl_b32 s18, s{sTAG}, 5              ; 32*TAG")
if OPT["uk6"]:
    g(f"""s_cmp_eq_u32 s{sWV}, 6
          s_cbranch_scc0 L_nouk
          s_waitcnt vmcnt(0)
          ds_write_b32 v{VZ}, v{VONE} offset:{F_UK}""")
    stamp(17)
    g.label("L_nouk")
def wreads():
    for e in range(8):
        if e: g(f"v_xor_b32 v7, {e*16}, v6")
        g(f"ds_read_b128 {vr(W+4*e,4)}, v{6 if e == 0 else 7} offset:{QL}")
lds_wait(F_QP, 1, 19, sleep=1)
if OPT["d1"]: g(f"s_sleep {OPT['d1']}")
g(f"""ds_read_b32 v{VT}, v{VZ} offset:{F_UK}
      s_waitcnt lgkmcnt(0)
      v_readfirstlane_b32 s24, v{VT}
      s_nop 0
      s_cmp_eq_u32 s24, 0
      s_cbranch_scc1 L_now""")
wreads()
g.label("L_now")
stamp(3)
L, Lo = g.nl("h1"), g.nl("h1o")
g(f"s_mov_b32 s{sCNT}, {LIM_MEM}")
g.label(L)
if OPT["fast1"]:
    Lg, Lc = g.nl("h1g"), g.nl("h1c")
    g(f"s_cmp_le_u32 s{sCNT}, {LIM_MEM-8}\ns_cbranch_scc1 {Lg}")
    for k in range(4):
        g(f"s_load_dwordx16 {sr(36+16*k,16)}, s[8:9], {64*k}")
    g(f"s_add_u32 s8, s8, 256\ns_addc_u32 s9, s9, 0\ns_branch {Lc}")
    g.label(Lg)
for k in range(4):
    g(f"s_load_dwordx16 {sr(36+16*k,16)}, s[32:33], {64*k} glc")
if OPT["fast1"]: g.label(Lc)
g(f"""s_sub_u32 s{sCNT}, s{sCNT}, 1
      s_cbranch_scc1 {Lo}
      s_waitcnt lgkmcnt(0)
      s_cmp_eq_u32 s99, s{sTAG}
      s_cbranch_scc0 {L}
      s_add_u32 s19, s37, s39""")
for k in range(2, 32):
    g(f"s_add_u32 s19, s19, s{37+2*k}")
g(f"s_cmp_eq_u32 s19, s18\ns_cbranch_scc0 {L}")
g.label(Lo)
cnt(23, sCNT)
stamp(1)
g(f"""s_cmp_eq_u32 s24, 0
      s_cbranch_scc0 L_havew""")
lds_wait(F_UK, 1, 19)
wreads()
g.label("L_havew")
for k in range(32):
    if k % 4 == 0: g(f"s_waitcnt lgkmcnt({7 - k//4})")
    g(f"v_dot2c_f32_bf16 v{8+(k&1)}, s{36+2*k}, v{W+k}")
g(f"""s_nop 2
      v_add_f32 v8, v8, v9
      ds_write_b32 v10, v8 offset:{REDQA}""")
lds_inc(F_QA)
stamp(4)
def qka_reads():
    for s in range(16):
        cb = s >> 1
        a = 160 + (s & 1) + (2 if cb >= 4 else 0)
        g(f"ds_read_b128 {vr(QKA+4*s,4)}, v{a} offset:{(cb&3)*16384}")
def pva_reads(u):
    for i in range(4):
        for hh in range(2):
            T = 2 * u + hh
            g(f"ds_read_b64_tr_b16 {vr(PVA+16*i+4*u+2*hh,2)}, v{164+(i>>1)} offset:{(i&1)*32768+T*2048}")
h2_loads = "\n".join(f"buffer_load_dwordx4 {vr(8+4*n,4)}, v{VL16}, {sr(WS,4)}, s20 offen offset:{1024*n} sc1" for n in range(4))
g(f"""s_lshr_b32 s42, s{sWV}, 1
      s_lshl_b32 s48, s42, 2
      s_lshl_b32 s48, 1, s48
      s_add_u32 s49, s48, 0x10000
      s_mov_b32 s50, {hex(f32(OPT["rng"]))}
      s_lshl_b32 s42, s42, 10
      s_and_b32 s43, s{sWV}, 1
      s_lshl_b32 s43, s43, 3
      s_add_u32 s42, s42, s43
      v_add_u32 v7, s42, v{VL16}
      v_add_u32 v28, {QL}, v28
      v_add_u32 v29, {QL}, v29
      v_add_u32 v26, 8192, v28
      v_add_u32 v27, 8192, v29
      s_and_b32 s45, s{sTAG}, 1
      s_mul_i32 s45, s45, 0x55555555
      s_and_b32 s44, s{sTAG}, 0xaaaaaaaa
      s_or_b32 s45, s45, s44
      s_mov_b32 s44, 0x00010001""")
lds_wait(F_QAP, 1, 42)
if OPT["d2"]: g(f"s_sleep {OPT['d2']}")
def h2_issue(lv):
    if OPT["h2land"] == lv:
        g(h2_loads)
        if OPT['uvgate'] == 1: lds_inc(F_H2I)
        stamp(5)
h2_issue(0)
land_wait(2, 42, 24, sleep=1)
h2_issue(2)
pva_reads(0); pva_reads(1)
land_wait(3, 42, 24, sleep=1)
h2_issue(3)
pva_reads(2)
g(f"s_cmp_lt_u32 s{sWV}, 6\ns_cbranch_scc1 L_qka")
land_wait(4, 42, 24)
g.label("L_qka")
qka_reads()
stamp(6)
L, Lo = g.nl("h2c"), g.nl("h2co")
g(f"s_mov_b32 s43, {LIM_MEM}")
g.label(L)
g("s_waitcnt vmcnt(0)")
tagcheck([9, 11, 13, 15, 17, 19, 21, 23], 24)
g(f"""s_cbranch_vccz {Lo}
      s_sub_u32 s43, s43, 1
      s_cbranch_scc1 {Lo}
      s_sleep {OPT["bk2"]}
      s_mov_b64 exec, vcc""")
g(h2_loads)
g(f"s_mov_b64 exec, -1\ns_branch {L}")
g.label(Lo)
cnt(24, 43)
stamp(7)
for n in range(4):
    g(f"ds_write2_b32 v{[28, 26, 29, 27][n]}, v{8+4*n}, v{10+4*n} offset0:0 offset1:1")
lds_inc(F_STG)
def bread(s): return f"ds_read_b128 {vr(8+4*(s&3),4)}, v{30+(s&1)} offset:{QL+s*1024}"
lds_wait(F_STG, 8, 42)
stamp(8)
g("\n".join(bread(s) for s in range(4)))
SA = 24
for s in range(16):
    g(f"s_waitcnt lgkmcnt({min(3, 15-s)})")
    mfma(SA, QKA + 4 * s, 8 + 4 * (s & 3), s == 0)
    if s + 4 < 16: g(bread(s + 4))
VM = 10
PF, OA = 32, 48
def pread(u): return f"ds_read_b128 {vr(PF+4*u,4)}, v{VL16} offset:{PL+1024*u}"
g("s_nop 7")
for r in range(4): g(f"v_exp_f32 v{12+r}, v{SA+r}")
g(f"""v_max3_f32 v9, v{SA}, v{SA+1}, v{SA+2}
      v_cvt_pk_bf16_f32 v16, v12, v13
      v_cvt_pk_bf16_f32 v17, v14, v15
      v_max_f32 v9, v9, v{SA+3}
      ds_write_b64 v7, v[16:17] offset:{PL}
      v_cmp_nle_f32 vcc, abs(v9), s50
      s_cmp_lg_u64 vcc, 0
      s_cselect_b32 s48, s49, s48
      s_mov_b64 exec, 1
      v_mov_b32 v8, s48
      ds_add_u32 v{VZ}, v8 offset:{F_PC}
      s_mov_b64 exec, -1""")
pva_reads(3)
stamp(15)
TP, IBV = 80, 84
fill = [f"v_lshrrev_b32 v12, 3, v{vN}",
        f"v_lshl_add_u32 v12, v{vKG}, 2, v12      ; head = 4q + (j>>3)",
        f"v_lshlrev_b32 v{IBV}, 17, v12",
        f"v_and_b32 v12, 7, v{vN}",
        f"v_lshl_add_u32 v{IBV}, v12, 4, v{IBV}",
        f"v_and_b32 v12, 3, v{LANE}",
        f"v_lshlrev_b32 v12, 3, v12",
        f"v_lshrrev_b32 v12, v12, s45",
        f"v_and_b32 v13, 0xff, v12", f"v_lshlrev_b32 v12, 15, v13", f"v_or_b32 v12, v12, v13"]
for d in range(4): fill += [f"v_lshrrev_b32 v13, {2*d}, v12", f"v_and_b32 v{TP+d}, s44, v13"]
S1 = 2
for _ in range(3): g(fill.pop(0))
pc_wait(0xff, 0x22, 42, 48)
g("\n".join(pread(u) for u in range(S1)))
for u in range(S1):
    g(f"s_waitcnt lgkmcnt({S1-1-u})")
    for i in range(4):
        mfma(OA + 4 * i, PF + 4 * u, PVA + 16 * i + 4 * u, u == 0)
        for _ in range(2): g(fill.pop(0))
assert not fill
pc_wait(0xffff, 0x2222, 42, 48)
g("\n".join(pread(u) for u in range(S1, 4)))
g(f"s_cmp_lg_u32 s42, 0x2222\ns_cbranch_scc1 L_slow")
stamp(9)
for u in range(S1, 4):
    g(f"s_waitcnt lgkmcnt({3-u})")
    for i in range(4): mfma(OA + 4 * i, PF + 4 * u, PVA + 16 * i + 4 * u, u == 0)
g.label("L_pv2")
GR = 64
g("s_nop 6")
for a in range(2):
    A0, B0, T0 = GR + 4 * a, GR + 4 * a + 2, 72
    for d in range(2):
        g(f"v_perm_b32 v{A0+d}, v{OA+8*d+4+2*a}, v{OA+8*d+2*a}, s{sPHI}")
        g(f"v_perm_b32 v{B0+d}, v{OA+8*d+4+2*a+1}, v{OA+8*d+2*a+1}, s{sPHI}")
    g("s_nop 0")
    for d in range(2): g(f"v_mov_b32_dpp v{T0+d}, v{A0+d} row_ror:8 {DPPM}")
    for d in range(2): g(f"v_mov_b32_dpp v{A0+d}, v{B0+d} row_ror:8 row_mask:0xf bank_mask:0xc")
    for d in range(2): g(f"v_mov_b32_dpp v{B0+d}, v{T0+d} quad_perm:[0,1,2,3] row_mask:0xf bank_mask:0x3")
    for d in range(4): g(f"v_xad_u32 v{A0+d}, v{TP+d}, s44, v{A0+d}")
    for d in range(4): g(f"v_bfi_b32 v{A0+d}, s44, v{TP+d}, v{A0+d}")
    g(f"buffer_store_dwordx4 {vr(A0,4)}, v{IBV}, {sr(WS,4)}, s{26 if a == 0 else 22} offen sc1")
if OPT["wogate"] == 1 or OPT["forder"] == 5: lds_inc(F_H3)
stamp(10)
if OPT["pr0"]: g("s_setprio 0")
MK = 76
g(f"""v_and_b32 v12, 1, v{LANE}
      v_lshlrev_b32 v12, 4, v12
      v_mov_b32 v13, 0xffff
      v_lshlrev_b32 v13, v12, v13
      v_bfe_u32 v12, v{LANE}, 1, 2""")
for p in range(4):
    g(f"v_cmp_eq_u32 vcc, {p}, v12\ns_nop 1\nv_cndmask_b32 v{MK+p}, v{VZ}, v13, vcc")
g(f"""v_lshlrev_b32 v16, 2, v{vN}
      s_lshl_b32 s42, s{sWV}, 6
      v_add_u32 v16, s42, v16
      v_lshrrev_b32 v17, 3, v{LANE}
      v_lshlrev_b32 v17, 2, v17
      v_add_u32 v17, s42, v17
      v_lshrrev_b32 v18, 3, v{vN}             ; a = j>>3
      s_lshl_b32 s42, s{sWV}, 1
      v_add_u32 v19, s42, v18
      v_mul_u32_u24 v19, 144, v19
      v_and_b32 v20, 7, v{vN}
      v_lshl_add_u32 v19, v20, 4, v19
      v_and_b32 v20, 1, v{vKG}
      v_lshl_add_u32 v19, v20, 3, v19
      v_lshrrev_b32 v20, 1, v{vKG}
      v_cmp_eq_u32 s[46:47], v18, v20
      v_lshlrev_b32 v14, 3, v{LANE}           ; lane*8""")
if OPT["d3"]: g(f"s_sleep {OPT['d3']}")
stamp(22)
IR = 104
ib_loads = f"""buffer_load_dwordx4 {vr(IR,4)}, v{VL16}, {sr(WS,4)}, s30 offen sc1
      buffer_load_dwordx4 {vr(IR+4,4)}, v{VL16}, {sr(WS,4)}, s30 offen offset:1024 sc1"""
def hdr_poll(nm, off, dstoff, flag, after="", mark=False):
    L, Lo = g.nl(nm), g.nl(nm + "o")
    g(f"s_mov_b32 s43, {LIM_MEM}")
    if OPT["bkh"]:
        Lf = g.nl(nm + "f")
        g(f"s_branch {Lf}")
    g.label(L)
    if OPT["bkh"]:
        g(f"s_sleep {OPT['bkh']}")
        g.label(Lf)
    g(f"""s_load_dwordx16 s[52:67], s[24:25], {off} glc
          s_load_dwordx16 s[68:83], s[24:25], {off+64} glc
          s_sub_u32 s43, s43, 1
          s_cbranch_scc1 {Lo}
          s_waitcnt lgkmcnt(0)
          s_add_u32 s19, s53, s55""")
    for k in range(2, 16): g(f"s_add_u32 s19, s19, s{53+2*k}")
    g(f"s_cmp_eq_u32 s19, s18\ns_cbranch_scc0 {L}")
    g.label(Lo)
    g("s_waitcnt lgkmcnt(0)")
    if after: g(after)
    for k in range(16): g(f"v_writelane_b32 v24, s{52+2*k}, {k}")
    g("s_mov_b64 exec, 0xffff")
    if mark:
        g(f"""v_cmp_gt_i32 vcc, 0, v24
              s_cmp_lg_u64 vcc, 0
              s_cselect_b32 s42, 0x101, 1
              v_mov_b32 v25, s42""")
    g(f"""ds_write_b32 v16, v24 offset:{dstoff}
          s_mov_b64 exec, 1
          ds_add_u32 v{VZ}, v{25 if mark else VONE} offset:{flag}
          s_mov_b64 exec, -1""")
g(f"""s_add_u32 s24, s{WS}, s31
      s_addc_u32 s25, s{WS+1}, 0
      s_lshl_b32 s18, s{sTAG}, 4""")
for n in range(2):
    for p in range(4): g(f"v_and_b32 v{88+4*n+p}, 0x3f803f80, v{MK+p}")
if OPT["d3a"]: g(f"s_sleep {OPT['d3a']}")
if OPT["pr0"]: g("s_setprio 2")
hdr_poll("h3l", 0x8000, LT, F_LT, after=(f"s_sleep {OPT['d3b']}\n" if OPT["d3b"] else "") + ib_loads, mark=True)
cnt(25, 43)
stamp(11)
pc_wait(0xff, 8, 42, 43, off=F_LT)
g("s_cmp_lg_u32 s42, 8\ns_cbranch_scc1 L_genw")
g.label("L_genw_ret")
L, Lo = g.nl("h3d"), g.nl("h3do")
g(f"s_mov_b32 s43, {LIM_MEM}")
g.label(L)
g(f"s_waitcnt vmcnt(0)\nv_xor_b32 v{VT}, v{IR}, v{TP}")
for k in range(1, 8): g(f"v_bitop3_b32 v{VT}, v{IR+k}, v{TP+(k&3)}, v{VT} bitop3:0xbe")
g(f"""v_and_b32 v{VT}, s44, v{VT}
      v_cmp_ne_u32 vcc, 0, v{VT}
      s_cbranch_vccz {Lo}
      s_sub_u32 s43, s43, 1
      s_cbranch_scc1 {Lo}
      s_lshr_b64 s[48:49], vcc, 4
      s_or_b64 vcc, vcc, s[48:49]
      s_lshr_b64 s[48:49], vcc, 2
      s_or_b64 vcc, vcc, s[48:49]
      s_lshr_b64 s[48:49], vcc, 1
      s_or_b64 vcc, vcc, s[48:49]
      s_and_b32 s48, vcc_lo, 0x01010101
      s_and_b32 s49, vcc_hi, 0x01010101
      s_mul_i32 exec_lo, s48, 0xff
      s_mul_i32 exec_hi, s49, 0xff
      s_sleep {OPT["bk3"]}
      {ib_loads}
      s_branch {L}""")
g.label(Lo)
g("s_mov_b64 exec, -1")
cnt(26, 43)
stamp(12)
mfma(96, 88, IR, True)
mfma(96, 92, IR + 4, False)
g(f"""s_nop 7
      v_cvt_pk_bf16_f32 v100, v96, v97
      v_cvt_pk_bf16_f32 v101, v98, v99
      s_mov_b64 exec, s[46:47]
      ds_write_b64 v19, v[100:101] offset:{RIB}
      s_mov_b64 exec, 1
      ds_add_u32 v{VZ}, v{VONE} offset:{F_IB}
      s_mov_b64 exec, -1""")
stamp(13)
g(f"""s_cmp_lt_u32 s{sWG}, 20
      s_cbranch_scc0 L_A_end
      s_lshl_b32 s41, s{sWG}, 14
      s_lshl_b32 s42, s{sWV}, 11
      s_add_u32 s41, s41, s42
      s_add_u32 s41, s41, {SM}
      v_and_b32 v7, 7, v{LANE}
      v_lshlrev_b32 v7, 2, v7
      v_lshrrev_b32 v6, 5, v{LANE}
      v_lshl_add_u32 v7, v6, 1, v7
      v_and_b32 v6, 1, v{vKG}
      v_add_u32 v7, v7, v6
      v_lshlrev_b32 v18, 5, v7
      s_lshl_b32 s42, s{sWV}, 2
      v_add_u32 v6, s42, v18
      v_lshlrev_b32 v7, 1, v7
      s_lshl_b32 s55, s{sWG}, 6""")
tagbytes()
def red8(b):
    g(f"""s_nop 1
          v_permlane32_swap_b32 v{b}, v{b+2}
          v_permlane32_swap_b32 v{b+1}, v{b+3}
          v_pk_add_f32 {vr(b,2)}, {vr(b,2)}, {vr(b+2,2)}
          s_nop 1
          v_permlane16_swap_b32 v{b}, v{b+1}
          v_add_f32 v{b}, v{b}, v{b+1}
          s_nop 1
          v_add_f32_dpp v{b}, v{b}, v{b} row_ror:8 {DPPM}""")
g(f"""s_cmp_eq_u32 s{sWV}, 0
      s_cbranch_scc0 L_fin_s""")
srd(SR, P_X, 1280)
g(f"""buffer_load_ushort v16, v7, {sr(SR,4)}, s55 offen
      s_lshl_b32 s40, s{sWG}, 12
      s_add_u32 s40, s40, {YM}""")
for d in range(4): g(f"v_mov_b32 v{60+d}, s{sTB+d}\nv_and_b32 v{60+d}, 0xff, v{60+d}")
poll_loads("h7", f"""buffer_load_dwordx4 v[48:51], v{VL16}, {sr(WS,4)}, s40 offen sc1
      buffer_load_dwordx4 v[52:55], v{VL16}, {sr(WS,4)}, s40 offen offset:1024 sc1
      buffer_load_dwordx4 v[56:59], v{VL16}, {sr(WS,4)}, s40 offen offset:2048 sc1
      s_mov_b64 exec, 0xffffff
      buffer_load_dwordx4 v[60:63], v{VL16}, {sr(WS,4)}, s40 offen offset:3072 sc1
      s_mov_b64 exec, -1""", [48, 52, 56, 60], 43, sleep=4, mask=False, b8=True)
sum_groups(48, 4)
red8(48)
rne(48)
g(f"""v_mul_f32 v49, {hex(f32(-math.log2(math.e)))}, v48
      v_exp_f32 v49, v49
      s_nop 0
      v_add_f32 v49, 1.0, v49
      v_rcp_f32 v49, v49
      s_nop 0
      v_mul_f32 v48, v48, v49""")
rne(48)
g("v_lshlrev_b32 v20, 16, v16")
stamp(19)
g.label("L_fin_s")
lds_wait(F_SD, 4 - OPT["w8x3"], 42, sleep=1)
if OPT["d5"]: g(f"s_sleep {OPT['d5']}")
poll_loads("h5", f"""buffer_load_dwordx4 v[32:35], v{VL16}, {sr(WS,4)}, s41 offen sc1
      buffer_load_dwordx4 v[36:39], v{VL16}, {sr(WS,4)}, s41 offen offset:1024 sc1""", [32, 36], 43, sleep=OPT["bk5"], b8=True)
cnt(27, 43)
stamp(20)
sum_groups(32, 2)
red8(32)
g(f"""ds_write_b32 v6, v32 offset:{RFIN}
      s_mov_b64 exec, 1
      ds_add_u32 v{VZ}, v{VONE} offset:{F_FIN}
      s_mov_b64 exec, -1
      s_cmp_eq_u32 s{sWV}, 0
      s_cbranch_scc0 L_A_end""")
srd(44, P_OUT, 1280)
lds_wait(F_FIN, 8, 42, extra=f"ds_read_b128 v[32:35], v18 offset:{RFIN}\nds_read_b128 v[36:39], v18 offset:{RFIN+16}")
sum_groups(32, 2)
g("v_pk_add_f32 v[32:33], v[32:33], v[34:35]\nv_add_f32 v32, v32, v33")
rne(32)
g("v_mul_f32 v32, v32, v48")
rne(32)
g(f"""v_add_f32 v32, v32, v20
      v_cvt_pk_bf16_f32 v32, v32, v32
      buffer_store_short v32, v7, {sr(44,4)}, s55 offen {'sc1' if OPT['osc'] else ''}
      s_cmp_eq_u32 s{sWG}, 0
      s_cbranch_scc0 L_noep
      s_mov_b64 exec, 1
      v_mov_b32 v13, s{sTAG}
      buffer_store_dword v13, v{VZ}, {sr(WS,4)}, 0 offen offset:{EPOCH} sc1""")
g.label("L_noep")
stamp(21)
g.label("L_A_end")
ts_flush()
g("s_endpgm")
g.label("L_genw")
hdr_poll("h3m", 0, MLT, F_ML)
lds_wait(F_ML, 8, 42)
g(f"""ds_read_b64 v[24:25], v14 offset:{MLT}
      ds_read_b32 v8, v17 offset:{MLT}
      ds_read_b32 v9, v17 offset:{MLT+32}
      s_waitcnt lgkmcnt(0)""")
global_max(22, 24)
g(f"""v_sub_f32 v8, v8, v22
      v_sub_f32 v9, v9, v22
      v_exp_f32 v8, v8
      v_exp_f32 v9, v9
      s_nop 0
      v_cvt_pk_bf16_f32 v8, v8, v8
      v_cvt_pk_bf16_f32 v9, v9, v9""")
for n in range(2):
    for p in range(4): g(f"v_and_b32 v{88+4*n+p}, v{8+n}, v{MK+p}")
g("s_branch L_genw_ret")
g.label("L_slow")
g(f"""v_mov_b32 v8, v9
      v_lshlrev_b32 v6, 5, v{vN}
      s_lshl_b32 s42, s{sWV}, 2
      v_add_u32 v29, s42, v6
      s_mov_b32 s43, 0x3f803f80
      v_permlane16_swap_b32 v9, v8
      v_max_f32 v9, v9, v8
      v_mov_b32 v8, v9
      s_nop 1
      v_permlane32_swap_b32 v9, v8
      v_max_f32 v9, v9, v8
      s_mov_b64 exec, 0xffff
      ds_write_b32 v29, v9 offset:{RMX}
      s_mov_b64 exec, 1
      ds_add_u32 v{VZ}, v{VONE} offset:{F_MAX}
      s_mov_b64 exec, -1""")
lds_wait(F_MAX, 8, 42, extra=f"ds_read_b128 v[12:15], v6 offset:{RMX}\nds_read_b128 v[16:19], v6 offset:{RMX+16}")
g(f"""v_max3_f32 v{VM}, v12, v13, v14
      v_max3_f32 v16, v15, v16, v17
      v_max3_f32 v{VM}, v{VM}, v18, v19
      v_max_f32 v{VM}, v{VM}, v16""")
for r in range(4): g(f"v_sub_f32 v{SA+r}, v{SA+r}, v{VM}")
for r in range(4): g(f"v_exp_f32 v{SA+r}, v{SA+r}")
g(f"""v_lshlrev_b32 v15, 10, v{vN}
      v_cvt_pk_bf16_f32 v12, v{SA}, v{SA+1}
      v_cvt_pk_bf16_f32 v13, v{SA+2}, v{SA+3}
      ds_write_b64 v7, v[12:13] offset:{PL}""")
lds_inc(F_P)
lds_wait(F_P, 8, 42)
g("\n".join(pread(u) for u in range(4)))
g("v_mov_b32 v12, 0\nv_mov_b32 v14, 0\ns_waitcnt lgkmcnt(0)")
for u in range(4):
    for i in range(4):
        mfma(OA + 4 * i, PF + 4 * u, PVA + 16 * i + 4 * u, u == 0)
        g(f"v_dot2c_f32_bf16 v{12+2*(i&1)}, s43, v{PF+4*u+i}")
def lsum():
    g(f"""v_mov_b32 v13, s{sTAG}
          v_mov_b32 v11, s{sTAG}
          s_nop 0
          v_add_f32 v12, v12, v14
          v_mov_b32 v14, v12
          s_nop 1
          v_permlane16_swap_b32 v12, v14
          v_add_f32 v12, v12, v14
          v_mov_b32 v14, v12
          s_nop 1
          v_permlane32_swap_b32 v12, v14
          v_add_f32 v12, v12, v14""")
lsum()
g(f"""v_or_b32 v12, 0x80000000, v12
      s_cmp_eq_u32 s{sWV}, 0
      s_cbranch_scc0 L_pv2
      s_mov_b64 exec, 0xffff
      buffer_store_dwordx2 v[10:11], v15, {sr(WS,4)}, s27 offen sc1
      buffer_store_dwordx2 v[12:13], v15, {sr(WS,4)}, s23 offen sc1
      s_mov_b64 exec, -1
      s_branch L_pv2""")

KORD = (0, 2, 1, 3)
TH = OPT["gthr"]
def wo_setup():
    g(f"""v_mul_u32_u24 v6, {8*1280}, v{vKG}
          v_lshl_add_u32 v6, v{vN}, 3, v6
          s_lshl_b32 s40, s{sHF}, 7
          s_lshr_b32 s41, s{sJ}, 1
          s_lshl_b32 s41, s41, 5
          s_add_u32 s40, s40, s41
          s_mul_i32 s40, s40, 1280
          s_and_b32 s41, s{sJ}, 1
          s_mul_i32 s41, s41, 640
          s_add_u32 s48, s40, s41""")
    srd(44, P_WO, 5242880)

def wo_gate():
    if OPT["wogate"] == 1: lds_wait(F_H3, 8, 40, sleep=1)
    elif OPT["wogate"] == 2: lds_wait(F_IB, 1, 40, sleep=2)

def h4_setup():
    g(f"""v_and_b32 v31, 7, v{vN}
          v_lshlrev_b32 v29, 7, v31
          v_lshl_add_u32 v29, v{vKG}, 5, v29
          s_lshl_b32 s50, s{sHF}, 2
          s_lshr_b32 s51, s{sJ}, 1
          s_add_u32 s50, s50, s51                 ; p = h*4+dq
          s_lshl_b32 s61, s50, 10
          s_add_u32 s61, s61, {CXM}
          v_lshrrev_b32 v30, 3, v{vN}
          v_lshlrev_b32 v30, 14, v30
          v_lshl_add_u32 v30, v31, 4, v30         ; (n>>3)*16K + (n&7)*16
          v_mov_b32 v31, 0xff
          s_and_b32 s41, s{sJ}, 1
          s_mul_i32 s41, s41, {10*16384}
          s_lshl_b32 s50, s50, 7
          s_add_u32 s50, s50, s41
          s_add_u32 s50, s50, {SM}""")
    tagbytes()

def h4_warm(A, cbks):
    g(f"buffer_load_dwordx4 {vr(A,4)}, v29, {sr(WS,4)}, s61 offen sc1")
    for cbk in cbks:
        g(f"""s_add_u32 s51, s50, {cbk*2*16384}
              buffer_load_dwordx4 {vr(A+4,4)}, v30, {sr(WS,4)}, s51 offen sc1""")

def h4_wait(A, late=""):
    Ls = g.nl("h4s")
    onfail = f"""s_cmp_lg_u32 s43, {LIM_MEM-32}
          s_cbranch_scc1 {Ls}
          {late}
          {Ls}:""" if (OPT["fast4"] and late) else ""
    poll_loads("h4", f"""buffer_load_dwordx4 {vr(A,4)}, v29, {sr(WS,4)}, s61 offen sc1
          buffer_load_dwordx4 {vr(A+4,4)}, v29, {sr(WS,4)}, s61 offen offset:16 sc1""", [A+1, A+3, A+5, A+7], 43, sleep=OPT["bk4"], onfail=onfail)
    g(f"v_mov_b32 v{A+1}, v{A+4}\nv_mov_b32 v{A+3}, v{A+6}\ns_nop 1")

def rl_wait():
    lds_wait(F_RLV, 1, 40, extra=f"ds_read_b32 v28, v{VZ} offset:{RLINV}")

def wo_compute(A, frags, cbks, D):
    for bi, fr in enumerate(frags):
        for t in range(4): mfma(D + 16 * bi + 4 * t, A, fr + 4 * t, True)
    g("s_nop 4" if len(frags) == 1 else "s_nop 0")
    for bi, cbk in enumerate(cbks):
        d = D + 16 * bi
        for t in range(4): g(f"v_pk_add_f32 {vr(d+4*t,2)}, {vr(d+4*t,2)}, {vr(d+4*t+2,2)}")
        for t in range(4): g(f"v_add_f32 v{16+t}, v{d+4*t}, v{d+4*t+1}")
        for t in range(4): g(f"v_mov_b32 v{20+t}, v{16+t}")
        g(f"s_add_u32 s51, s50, {cbk*2*16384}")
        for t in range(4): g(f"v_permlane16_swap_b32 v{16+t}, v{20+t}")
        g("v_pk_add_f32 v[16:17], v[16:17], v[20:21]\nv_pk_add_f32 v[18:19], v[18:19], v[22:23]")
        for t in range(4): g(f"v_mul_f32 v{d+t}, v{16+t}, v28")
        tagput([d, d+1, d+2, d+3], 31)
        g(f"""s_mov_b64 exec, 0xffff
              buffer_store_dwordx4 {vr(d,4)}, v30, {sr(WS,4)}, s51 offen sc1
              s_mov_b64 exec, -1""")
    lds_inc(F_SD)

def b1_gate():
    if OPT["b1gate"]:
        land_flush()
        lds_wait(F_STG, OPT['b1gate'], 40, sleep=2)

g.label("L_G")
if OPT["ldw"]: g(f"s_sleep {OPT['ldw']}")
get_tag(6)
g(f"""s_cmp_eq_u32 s{sWV}, 10
      s_cbranch_scc1 L_G_uv10""")
LD.pending = False
wo_setup(); h4_setup()
b1_gate()
if OPT["wogate"]: land_flush()
wo_gate()
stamp(4)
load_block(32, 6, 44, 48, 42, 1280, TH)
g("s_add_u32 s49, s48, 128")
load_block(48, 6, 44, 49, 42, 1280, TH)
X3 = OPT["w8x3"]
if X3:
    g("s_add_u32 s49, s48, 512")
    load_block(144, 6, 44, 49, 42, 1280, TH)
land_flush()
g(f"s_waitcnt vmcnt({8+8*X3})")
perm_block(32, 64, KORD)
g(f"s_waitcnt vmcnt({8*X3})")
perm_block(48, 80, KORD)
if X3:
    g("s_waitcnt vmcnt(0)")
    perm_block(144, 32, KORD)
h4_warm(8, [0, 1] + [4] * X3)
stamp(5)
g(f"""v_lshlrev_b32 v16, 3, v{LANE}
""")
g("v_mov_b32 v20, 1.0\nv_mov_b32 v21, 1.0")
lds_wait(F_LT, 1, 40, sleep=1)
g("s_setprio 2")
pc_wait(0xff, 8, 40, 41, off=F_LT, extra=f"ds_read_b64 v[24:25], v16 offset:{LT}")
g("s_cmp_eq_u32 s40, 8\ns_cbranch_scc1 L_unitw")
lds_wait(F_ML, 8, 40)
g(f"ds_read_b64 v[20:21], v16 offset:{MLT}\ns_waitcnt lgkmcnt(0)")
global_max(22, 20)
g(f"""v_sub_f32 v20, v20, v22
      v_sub_f32 v21, v21, v22
      v_exp_f32 v20, v20
      v_exp_f32 v21, v21
      s_nop 0""")
rne(20); rne(21)
g.label("L_unitw")
g("v_mul_f32 v24, abs(v24), v20\nv_fma_f32 v24, abs(v25), v21, v24")
wave_sum(24, 40)
g(f"""s_nop 1
      v_rcp_f32 v24, s40
      s_nop 0
      ds_write_b32 v{VZ}, v24 offset:{RLINV}
      ds_write_b32 v{VZ}, v{VONE} offset:{F_RLV}
      v_mov_b32 v28, v24""")
lds_wait(F_IB, 8, 40, sleep=1)
h4_wait(8)
stamp(6)
wo_compute(8, [64, 80] + [32] * X3, [0, 1] + [4] * X3, 96)
stamp(7)
g("s_branch L_G_end")

def uv_loads():
    g(f"""v_lshlrev_b32 v7, 13, v{vKG}
          v_lshl_add_u32 v7, v{vN}, 3, v7
          s_lshl_b32 s56, s{sJ}, 17               ; 16j rows
          s_lshl_b32 s41, s{sHF}, 8
          s_add_u32 s56, s56, s41
          s_sub_u32 s52, s{sWV}, 9                ; colhalf
          s_lshl_b32 s41, s52, 7
          s_add_u32 s56, s56, s41
          s_add_u32 s57, s56, {4*8192}""")
    srd(SR, P_WUV, 4194304)
    b1_gate()
    stamp(4)
    rows = [128 * (e & 3) + 8 * (e >> 2) for e in range(8)]
    load_block(32, 7, SR, 56, 42, 8192, TH, rows)
    load_block(48, 7, SR, 57, 42, 8192, TH, rows)
g.label("L_G_uv10")
g.label("L_G_uv9")
LD.pending = False
uv_loads()
g.label("L_G_uv")
wo_setup(); h4_setup()
g(f"""s_add_u32 s49, s52, 2
      s_mul_i32 s53, s49, {2*16384}
      s_add_u32 s50, s50, s53
      s_lshl_b32 s49, s49, 7
      s_add_u32 s49, s49, s48
      v_and_b32 v7, 7, v{vN}
      v_mul_u32_u24 v8, 144, v{vN}
      v_lshl_add_u32 v8, v{vKG}, 4, v8
      v_lshlrev_b32 v9, 4, v{LANE}
      v_lshrrev_b32 v11, 3, v{vN}
      v_lshlrev_b32 v11, 10, v11
      v_lshl_add_u32 v11, v7, 4, v11          ; (n>>3)*1024 + (n&7)*16
      s_lshl_b32 s40, s{sHF}, 2
      s_lshl_b32 s41, s52, 1
      s_add_u32 s40, s40, s41
      s_lshl_b32 s40, s40, 3
      s_add_u32 s40, s40, s{sJ}
      s_lshl_b32 s40, s40, 7
      s_add_u32 s54, s40, {CXM}""")
if not OPT["wogate"]:
    load_block(64, 6, 44, 49, 42, 1280, TH)
    h4_warm(16, [0])
g(f"""s_cmp_eq_u32 s{sWV}, 9
      s_cbranch_scc0 L_nohd
      s_and_b32 s56, s{sSLOT}, 1
      s_lshl_b32 s56, s56, 7
      s_add_u32 s56, s56, s{sXCD}
      s_lshl_b32 s56, s56, 4
      s_lshr_b32 s57, s{sSLOT}, 1
      s_add_u32 s56, s56, s57
      s_lshl_b32 s56, s56, 3
      s_add_u32 s56, s56, {HD}
      s_add_u32 s57, s56, 0x8000
      v_lshlrev_b32 v15, 10, v{vN}
      v_mov_b32 v24, 0
      v_mov_b32 v25, s{sTAG}
      v_mov_b32 v12, 0
      v_mov_b32 v14, 0
      v_mov_b32 v26, v11
      s_mov_b32 s58, 0x3f803f80""")
pc_wait(0xfff, 0x222, 40, 41, sleep=1)
g(f"s_setprio {OPT['hp']}")
pc_wait(0xffff, 0x2222, 40, 41)
g(f"""s_cmp_lg_u32 s40, 0x2222
      s_cbranch_scc1 L_nohd2""")
g("\n".join(f"ds_read_b128 {vr(128+4*u,4)}, v9 offset:{PL+1024*u}" for u in range(4)))
for u in range(4):
    g(f"s_waitcnt lgkmcnt({3-u})")
    for i in range(4): g(f"v_dot2c_f32_bf16 v{12+2*(i&1)}, s58, v{128+4*u+i}")
lsum()
if OPT["dl"]: g(f"s_sleep {OPT['dl']}")
g(f"""s_mov_b64 exec, 0xffff
      buffer_store_dwordx2 v[12:13], v15, {sr(WS,4)}, s57 offen sc1
      buffer_store_dwordx2 v[24:25], v15, {sr(WS,4)}, s56 offen sc1
      s_mov_b64 exec, -1""")
stamp(10)
g.label("L_nohd2")
g(f"""v_mov_b32 v11, v26
      s_setprio 0
      {"s_waitcnt vmcnt(2)" if not OPT["wogate"] else ""}""")
g.label("L_nohd")
if OPT["wogate"]:
    wo_gate()
    load_block(64, 6, 44, 49, 42, 1280, TH)
    h4_warm(16, [0])
g("s_waitcnt vmcnt(18)")
perm_block(32, 80)
g("s_waitcnt vmcnt(10)")
perm_block(48, 96)
g(f"v_mov_b32 v61, s{sTAG}\nv_mov_b32 v63, s{sTAG}")
g("s_waitcnt vmcnt(0)")
perm_block(64, 112, KORD)
stamp(5)
lds_wait(F_LT, 8, 40, sleep=2)
rl_wait()
g("s_setprio 3")
lds_wait(F_IB, 8, 40)
g(f"""ds_read_b128 v[32:35], v8 offset:{RIB}
      ds_read_b128 v[36:39], v8 offset:{RIB+64}""")
stamp(6)
D = 128
for blk in range(2):
    g(f"s_waitcnt lgkmcnt({1-blk})")
    for t in range(4): mfma(D + 4 * t, 32 + 4 * blk, 80 + 16 * blk + 4 * t, blk == 0)
g("s_nop 4")
for t in range(4): g(f"v_pk_add_f32 {vr(D+4*t,2)}, {vr(D+4*t,2)}, {vr(D+4*t+2,2)}")
for t in range(4): g(f"v_add_f32 v{16+t}, v{D+4*t}, v{D+4*t+1}")
g(f"""s_nop 0
      v_permlane32_swap_b32 v16, v18
      v_permlane32_swap_b32 v17, v19
      v_pk_add_f32 v[16:17], v[16:17], v[18:19]
      v_mov_b32 v18, v16
      v_mov_b32 v19, v17
      s_nop 0
      v_permlane16_swap_b32 v16, v18
      v_permlane16_swap_b32 v17, v19
      v_pk_add_f32 v[16:17], v[16:17], v[18:19]
      v_cvt_pk_bf16_f32 v60, v16, v17
      v_mov_b32 v62, v60
      s_nop 1
      v_permlane32_swap_b32 v60, v62""")
g(f"""s_mov_b64 exec, 0xffff
      buffer_store_dwordx4 v[60:63], v11, {sr(WS,4)}, {"s54 offen" if OPT["fast4"] else "s54 offen sc1"}
      s_mov_b64 exec, -1""")
stamp(7)
late = f"s_mov_b64 exec, 0xffff\nbuffer_store_dwordx4 v[60:63], v11, {sr(WS,4)}, s54 offen sc1"
h4_wait(32, late)
stamp(8)
wo_compute(32, [112], [0], 128)
if OPT["fast4"]: g(f"s_sleep {OPT['d4']}\n" + late + "\ns_mov_b64 exec, -1")
stamp(9)
g("s_branch L_G_end")

g.label("L_FFNb")
PEND = OPT["fgate"] != 9 and not OPT["uk6"]
if OPT["remap"]:
    g(f"""s_and_b32 s40, s{sXCD}, 1
          s_lshl_b32 s62, s{sSLOT}, 1
          s_add_u32 s62, s62, s40                 ; u in 0..63
          s_lshr_b32 s63, s{sXCD}, 1              ; mq""")
else:
    g(f"""s_lshr_b32 s40, s{sSLOT}, 3             ; hq
      s_lshl_b32 s40, s40, 1
      s_and_b32 s41, s{sJ}, 1
      s_add_u32 s40, s40, s41
      s_lshl_b32 s40, s40, 3
      s_add_u32 s62, s40, s{sXCD}             ; u in 0..63
      s_lshr_b32 s63, s{sJ}, 1                ; mq""")
g(f"""v_and_b32 v31, 1, v{vKG}
      v_cmp_eq_u32 s[56:57], 1, v31
      s_cmp_lt_u32 s62, 27
      s_cbranch_scc0 L_FFN2""")
LD.pending = PEND; LD.n = 0
g(f"""v_mul_u32_u24 v28, {8*3456}, v{vKG}
      v_lshl_add_u32 v28, v{vN}, 3, v28
      v_lshlrev_b32 v7, 4, v{vKG}
      s_mul_i32 s58, s63, 320
      v_add_u32 v7, s58, v7
      s_mul_i32 s58, s63, {160*3456}
      s_lshl_b32 s41, s62, 7
      s_add_u32 s58, s58, s41""")
srd(SR, P_W1, 2211840)
stamp(4)
for b in range(5):
    if b: g(f"s_add_u32 s58, s58, {32*3456}")
    load_block(48 + 16 * b, 28, SR, 58, 42, 3456, OPT['fthr'])
land_flush()
D = 144
get_tag(6)
lds_wait(F_XN, 1, 40)
for b in range(5): g(f"ds_read_b128 {vr(XF+4*b,4)}, v7 offset:{XNL+64*b}")
g("s_waitcnt lgkmcnt(0)")
for b in range(5):
    g(f"s_waitcnt vmcnt({8*(4-b)})")
    perm_block(48 + 16 * b, 32 + 16 * b)
    g("s_nop 1")
    for t in range(4): mfma(D + 4 * t, XF + 4 * b, 32 + 16 * b + 4 * t, b == 0)
g(f"""v_lshlrev_b32 v28, 4, v{LANE}
      s_nop 0
      s_lshl_b32 s40, s62, 2
      s_add_u32 s40, s40, s63
      s_lshl_b32 s40, s40, 9
      s_add_u32 s40, s40, {HM}
      v_mov_b32 v9, s{sTAG}
      v_mov_b32 v11, s{sTAG}
      s_nop 1
      v_cndmask_b32 v8, v{D}, v{D+8}, s[56:57]
      v_cndmask_b32 v10, v{D+4}, v{D+12}, s[56:57]
      s_mov_b32 exec_hi, 0
      buffer_store_dwordx4 v[8:11], v28, {sr(WS,4)}, s40 offen sc1
      s_mov_b64 exec, -1
      s_branch L_FFNe""")
g.label("L_FFN2")
g(f"""s_mul_i32 s40, s63, 37
      s_add_u32 s40, s40, s62
      s_sub_u32 s58, s40, 27
      s_cmp_lt_u32 s58, 135
      s_cbranch_scc1 L_FFN2a""")
LD.pending = PEND; LD.n = 0
land_flush()
get_tag(6)
g("s_branch L_FFNe")
g.label("L_FFN2a")
LD.pending = PEND; LD.n = 0
g(f"""s_mul_i32 s59, s58, 205
      s_lshr_b32 s59, s59, 10                 ; fb = v/5
      s_mul_i32 s60, s59, 5
      s_sub_u32 s60, s58, s60                 ; mb
      v_mul_u32_u24 v28, {8*1280}, v{vKG}
      v_lshl_add_u32 v28, v{vN}, 3, v28
      s_mul_i32 s58, s59, {64*1280}
      s_lshl_b32 s41, s60, 8
      s_add_u32 s58, s58, s41""")
srd(SR, P_W2, 2211840)
if OPT["forder"] >= 2:
    land_flush()
    if OPT["forder"] == 2: lds_wait(F_ISS, 2, 40, sleep=2)
    if OPT["forder"] == 3: lds_wait(F_STG, 8, 40, sleep=2)
    if OPT["forder"] == 4: pc_wait(0xff, 8, 40, 41, off=F_LT, sleep=2)
stamp(4)
for ch in range(2):
    for blk in range(2):
        g(f"s_add_u32 s41, s58, {blk*32*1280 + ch*128}")
        load_block(48 + 16 * (2 * ch + blk), 28, SR, 41, 42, 1280, OPT['fthr2'])
land_flush()
get_tag(6)
for b in range(4):
    g(f"s_waitcnt vmcnt({8*(3-b)})")
    perm_block(48 + 16 * b, 32 + 16 * b)
g(f"""v_lshrrev_b32 v28, 2, v{vN}
      v_lshlrev_b32 v28, 9, v28
      v_lshl_add_u32 v28, v{vKG}, 5, v28
      v_bfe_u32 v29, v{vN}, 1, 1
      v_lshl_add_u32 v28, v29, 4, v28
      v_and_b32 v29, 1, v{vN}
      v_lshl_add_u32 v28, v29, 8, v28
      s_lshl_b32 s40, s59, 11
      s_add_u32 s40, s40, {HM}""")
poll_loads("h6", f"""buffer_load_dwordx4 v[8:11], v28, {sr(WS,4)}, s40 offen sc1
      buffer_load_dwordx4 v[12:15], v28, {sr(WS,4)}, s40 offen offset:128 sc1""", [9, 11, 13, 15], 43, sleep=6)
for mod in ("row_ror:4", "row_ror:8"):
    for r in (8, 10, 12, 14): g(f"v_add_f32_dpp v{r}, v{r}, v{r} {mod} {DPPM}")
for r in (8, 10, 12, 14): g(f"v_max_f32 v{r}, 0, v{r}")
g("v_cvt_pk_bf16_f32 v8, v8, v10\nv_cvt_pk_bf16_f32 v12, v12, v14\ns_nop 1")
for blk in range(2):
    for p in range(4):
        g(f"v_mov_b32_dpp v{16+4*blk+p}, v{8+4*blk} quad_perm:[{p},{p},{p},{p}] {DPPM}")
g("s_nop 1")
D = 96
for ch in range(2):
    for blk in range(2):
        for t in range(4): mfma(D + 16 * ch + 4 * t, 16 + 4 * blk, 32 + 16 * (2 * ch + blk) + 4 * t, blk == 0)
g(f"""v_lshrrev_b32 v28, 3, v{vN}
      v_lshlrev_b32 v28, 12, v28
      v_and_b32 v29, 7, v{vN}
      v_lshl_add_u32 v28, v29, 4, v28
      v_mov_b32 v29, 0xff
      s_lshl_b32 s40, s60, 14
      s_lshl_b32 s41, s59, 7
      s_add_u32 s40, s40, s41
      s_add_u32 s40, s40, {YM}
      s_add_u32 s41, s40, {2*4096}""")
tagbytes()
for ch in range(2):
    for t in range(4): g(f"v_bfi_b32 v{8+4*ch+t}, v29, s{sTB+t}, v{D+16*ch+4*t}")
g(f"""s_mov_b64 exec, 0xffff
      buffer_store_dwordx4 v[8:11], v28, {sr(WS,4)}, s40 offen sc1
      buffer_store_dwordx4 v[12:15], v28, {sr(WS,4)}, s41 offen sc1
      s_mov_b64 exec, -1""")
g.label("L_FFNe")
stamp(5)
if OPT["w8x3"]: g("s_branch L_G_end")
wo_setup(); h4_setup()
g("s_add_u32 s49, s48, 512")
if OPT["uvgate"] == 3: land_wait(4, 40, 24, sleep=1)
else: lds_wait(F_ISS, 2, 40, sleep=2)
b1_gate()
wo_gate()
load_block(128, 6, 44, 49, 42, 1280, TH)
g("s_waitcnt vmcnt(0)")
perm_block(128, 32, KORD)
h4_warm(8, [4])
lds_wait(F_LT, 8, 40, sleep=2)
rl_wait()
lds_wait(F_IB, 8, 40, sleep=1)
g("s_setprio 2")
h4_wait(8)
stamp(6)
wo_compute(8, [32], [4], 48)
stamp(7)
g.label("L_G_end")
if OPT["pad"]:
    g(f"""v_readfirstlane_b32 s40, v{VTS}
          s_cmp_lt_u32 s{sWG}, 8
          s_cbranch_scc0 L_END
          s_add_u32 s40, s40, {OPT["pad"]}""")
    if OPT["padmin"]:
        g(f"""s_load_dwordx2 s[44:45], s[0:1], 80
          s_mov_b32 s46, 256
          s_mov_b32 s47, 0x20000
          v_not_b32 v8, v{VTS}
          s_mov_b64 exec, 1
          s_waitcnt lgkmcnt(0)
          buffer_atomic_umax v8, v{VZ}, s[44:47], 0 offen
          s_waitcnt vmcnt(0)
          s_sleep 100
          buffer_load_dword v8, v{VZ}, s[44:47], 0 offen sc1
          s_waitcnt vmcnt(0)
          v_not_b32 v8, v8
          s_nop 1
          v_readfirstlane_b32 s40, v8
          s_nop 3
          s_add_u32 s40, s40, {OPT["pad"]}""")
    g(f"""L_padl:
          s_memrealtime s[42:43]
          s_waitcnt lgkmcnt(0)
          s_sub_u32 s41, s42, s40
          s_cmp_lt_i32 s41, 0
          s_cbranch_scc1 L_padl""")
ts_flush("G")
g.label("L_END")
g("s_endpgm")
g.l.append(".p2align 12")
g.label("L_CODE_END")

s = file_head([f"; @launch grid=(256,1,1) block=(768,1,1) lds={LDS_BYTES}"])
s += f""".text
.globl {K}
.p2align 12
.type {K},@function
{K}:
"""
s += g.text()
s += kernel_desc(K, 168, 102)
open(OUT, "w").write(s)
print(OUT, "lines", len(g.l), "ws_end", hex(WS_END))
```

```python
import sys, math, struct
from asmlib import *

OPT = dict(ts=0, stop=99, inflight=16, gate=12, ksmap=1, gthr=32, wogate=0, b1gate=0, pol=1, h2iss=2, amax=0, bk2=4, bk3=2, dbg=0, bk4=0, bk5=3, d3=0, d3b=0, d1=8, d5=8, fast4=1, warm=1, pad=0, padmin=0, padat=-1, padw=0, tlb=0, remap=1, qs=14, kvt=0, uk6=1, vt=0, pr0=1, hp=3, inf2=0, split=2, w8x3=0, pkv=-1, pwq=-1, puk=-1, puv=-1, pwo=-1, pw1=-1, pw2=-1, d2=8, fgate=2, fthr=32, ukgate=0, h2land=3, forder=0, fast1=0, dh=8, ldw=0, d3a=12, hl=0, rng=64, dl=8, uvgate=0, bkh=4, st1=2, osc=1, d4=14, recl=1, rot=5, fthr2=32)
for a in sys.argv[2:]:
    k, v = a.split("=")
    assert k in OPT and k != "fast1", k
    OPT[k] = int(v)
OUT = sys.argv[1] if len(sys.argv) > 1 else "k.s"
POLS = {0: "", 1: "nt", 2: "sc1", 3: "sc1 nt", 4: "sc0 sc1", 5: "sc0 sc1 nt", 6: "sc0", 7: "sc0 nt"}
def pol(name): return POLS[OPT[name] if OPT[name] >= 0 else OPT["pol"]]
CUR = {"p": "pwq"}

def f32(x): return struct.unpack("<I", struct.pack("<f", x))[0]

EPOCH = 0
QM   = 0x1000
QS = OPT["qs"]
if QS == 14:
    HD, HS, LOFF = QM + 0x80000, 10, 0x8000
    QAM = HD + 0x10000
else:
    HD, HS, LOFF = QM + 0x4000, QS, 0x400
    QAM = QM + (32 << QS)
CXM  = QAM + 0x10000
HM   = CXM + 0x20000
YM   = HM + 0x10000
SM   = YM + 20 * 4096
IB   = SM + 20 * 16384
WS_END = IB + 256 * 8 * 2048
TSOFF = 0x1000000
WS_REC = 0x2000000 if (OPT["ts"] and not OPT["dbg"]) else WS_END

(F_Q, F_QA, F_LAND, F_ISS, F_H2I, F_STG, F_MAX, F_P, F_IB, F_UK, F_TAG, F_TAGV, F_QP, F_QI, F_SD, F_FIN) = [4 * i for i in range(16)]
RMAX = 0x40
RL   = 0x80
F_H3, F_ML, F_QAP, F_XN, F_L, F_RLV, RLINV, F_LT, F_LA, F_LB, F_WQ, F_PC = 0xC0, 0xC4, 0xC8, 0xCC, 0xD0, 0xD4, 0xD8, 0xDC, 0xE0, 0xE4, 0xE8, 0xEC
REDQ = 0x100
REDQA = 0x600
PL   = 0x1000
RIB  = 0x2000
RFIN = PL
MLT  = 0x2A00
LT   = 0x2C00
RMX  = 0x2E00
RLP  = REDQ
XNL  = 0x3000
QL   = 0x3800
KV   = 0x7800
LDS_BYTES = KV + 0x20000

SCALE = (128 ** -0.5) * math.log2(math.e)
LIM_LDS = 1 << 16
LIM_MEM = 1 << 13

class G:
    def __init__(s): s.l = []; s.n = 0
    def __call__(s, x):
        for ln in x.strip("\n").split("\n"):
            if ln.strip(): s.l.append("  " + ln.strip())
    def label(s, x): s.l.append(x + ":")
    def nl(s, p): s.n += 1; return f"L_{p}_{s.n}"
    def text(s): return "\n".join(s.l) + "\n"
g = G()

def vr(a, n): return f"v[{a}:{a+n-1}]"
def sr(a, n): return f"s[{a}:{a+n-1}]"

LANE, VZ, VONE, VT, vN, vKG = 0, 1, 2, 3, 4, 5
VTS = 167
VL16 = 166
sWG, sWV = 2, 3
WS = 4
SR = 8
sXCD, sSLOT, sHF, sJ = 12, 13, 14, 15
P_X, P_KV, P_WQ, P_WUK, P_WUV, P_WO, P_BX, P_W1, P_W2, P_OUT, P_DBG, P_WS = [16 + 2 * i for i in range(12)]
sHA, sCA = (sSLOT, sXCD) if OPT['remap'] else (sHF, sJ)
sTAG, sCNT = 28, 29
sPLO, sPHI = 100, 101
DPPM = "row_mask:0xf bank_mask:0xf"

def srd(base, ptr, nbytes):
    g(f"""s_mov_b32 s{base}, s{ptr}
          s_mov_b32 s{base+1}, s{ptr+1}
          s_mov_b32 s{base+2}, {nbytes}
          s_mov_b32 s{base+3}, 0x20000""")

def stamp(k):
    if OPT["padat"] == k:
        g(f"s_memrealtime vcc\ns_waitcnt lgkmcnt(0)\nv_writelane_b32 v{VTS}, vcc_lo, 0")
    if not OPT["ts"]: return
    g(f"""s_memrealtime vcc
          s_waitcnt lgkmcnt(0)
          v_writelane_b32 v{VTS}, vcc_lo, {k}""")

def cnt(k, sreg):
    if OPT["ts"]: g(f"v_writelane_b32 v{VTS}, s{sreg}, {k}")

def ts_flush(role="A"):
    if OPT["padat"] >= 0:
        Lp, Le = g.nl("pad"), g.nl("pade")
        g(f"s_nop 4\nv_readlane_b32 s40, v{VTS}, 0")
        g("s_nop 4")
        if OPT["padw"] >= 8: g(f"s_cmp_eq_u32 s{sWV}, {OPT['padw'] % 100}")
        else: g(f"s_cmp_lt_u32 s{sWV}, 8")
        g(f"""s_cbranch_scc0 {Le}
              s_cmp_eq_u32 s40, 0
              s_cbranch_scc1 {Le}
              s_add_u32 s40, s40, 3000
              {Lp}:
              s_sleep 8
              s_memrealtime s[42:43]
              s_waitcnt lgkmcnt(0)
              s_sub_u32 s41, s42, s40
              s_cmp_lt_i32 s41, -40
              s_cbranch_scc1 {Lp}
              {Lp}b:
              s_memrealtime s[42:43]
              s_waitcnt lgkmcnt(0)
              s_sub_u32 s41, s42, s40
              s_cmp_lt_i32 s41, 0
              s_cbranch_scc1 {Lp}b
              {Le}:""")
    if not OPT["ts"]: return
    if OPT["dbg"]:
        sel = {"A": {1: 0, 2: 16, 6: 6, 7: 8, 8: 10, 9: 22, 10: 11, 11: 13, 14: 20, 15: 21}, "G": {3: 1, 4: 2, 5: 3, 12: 7, 13: 9}}[role]
        Ls = g.nl("dbg")
        g(f"""s_cmp_eq_u32 s{sWV}, {0 if role == "A" else 9}
              s_cbranch_scc0 {Ls}
              s_load_dwordx2 s[40:41], s[0:1], 80
              s_mov_b64 exec, -1
              v_mov_b32 v8, 0
              s_mov_b32 s42, 256
              s_mov_b32 s43, 0x20000""")
        for dst, src in sel.items():
            g(f"v_readlane_b32 s44, v{VTS}, {src}\ns_nop 3\nv_writelane_b32 v8, s44, {dst}")
        if role == "A":
            g(f"v_readlane_b32 s44, v{VTS}, 0\ns_nop 3\ns_not_b32 s44, s44\nv_writelane_b32 v8, s44, 0")
        g(f"""v_lshlrev_b32 v{VT}, 2, v{LANE}
              s_mov_b64 exec, 0xffff
              s_waitcnt lgkmcnt(0)
              buffer_atomic_umax v8, v{VT}, s[40:43], 0 offen""")
        g.label(Ls)
        return
    g(f"""s_mul_i32 s{sCNT}, s{sWG}, 12
          s_add_u32 s{sCNT}, s{sCNT}, s{sWV}
          s_lshl_b32 s{sCNT}, s{sCNT}, 7
          s_add_u32 s{sCNT}, s{sCNT}, {TSOFF}
          s_mov_b64 exec, -1
          s_mov_b32 exec_hi, 0
          v_lshlrev_b32 v{VT}, 2, v{LANE}
          buffer_store_dword v{VTS}, v{VT}, {sr(WS,4)}, s{sCNT} offen""")

def lds_wait(off, target, st, extra="", sleep=0):
    L, Lo = g.nl("w"), g.nl("wo")
    g(f"s_mov_b32 s{sCNT}, {LIM_LDS}")
    if sleep:
        Lf = g.nl("wf")
        g(f"s_branch {Lf}")
    g.label(L)
    if sleep:
        g(f"s_sleep {sleep}")
        g.label(Lf)
    g(f"ds_read_b32 v{VT}, v{VZ} offset:{off}")
    if extra: g(extra)
    g(f"""s_waitcnt lgkmcnt(0)
          v_readfirstlane_b32 s{st}, v{VT}
          s_sub_u32 s{sCNT}, s{sCNT}, 1
          s_cbranch_scc1 {Lo}
          s_cmp_ge_u32 s{st}, {target}
          s_cbranch_scc0 {L}""")
    g.label(Lo)

def pc_wait(mask, val, st, st2, extra="", sleep=0, off=None):
    L, Lo = g.nl("pw"), g.nl("pwo")
    g(f"s_mov_b32 s{sCNT}, {LIM_LDS}")
    g.label(L)
    if sleep: g(f"s_sleep {sleep}")
    g(f"ds_read_b32 v{VT}, v{VZ} offset:{F_PC if off is None else off}")
    if extra: g(extra)
    g(f"""s_waitcnt lgkmcnt(0)
          v_readfirstlane_b32 s{st}, v{VT}
          s_sub_u32 s{sCNT}, s{sCNT}, 1
          s_cbranch_scc1 {Lo}
          s_and_b32 s{st2}, s{st}, {hex(mask)}
          s_cmp_eq_u32 s{st2}, {hex(val)}
          s_cbranch_scc0 {L}""")
    g.label(Lo)

def land_wait(target, st, vt2, sleep=0):
    L, Lo = g.nl("lw"), g.nl("lwo")
    g(f"s_mov_b32 s{sCNT}, {LIM_LDS}")
    g.label(L)
    g(f"""ds_read_b64 {vr(vt2,2)}, v{VZ} offset:{F_LA}
          s_waitcnt lgkmcnt(0)
          v_min_u32 v{vt2}, v{vt2}, v{vt2+1}
          s_sub_u32 s{sCNT}, s{sCNT}, 1
          v_readfirstlane_b32 s{st}, v{vt2}
          s_cbranch_scc1 {Lo}
          s_cmp_ge_u32 s{st}, {target}
          s_cbranch_scc1 {Lo}""")
    if sleep: g(f"s_sleep {sleep}")
    g(f"s_branch {L}")
    g.label(Lo)

def lds_inc(off):
    g(f"""s_mov_b64 exec, 1
          ds_add_u32 v{VZ}, v{VONE} offset:{off}
          s_mov_b64 exec, -1""")

def get_tag(vtmp):
    lds_wait(F_TAGV, 1, sTAG, extra=f"ds_read_b32 v{vtmp}, v{VZ} offset:{F_TAG}")
    g(f"v_readfirstlane_b32 s{sTAG}, v{vtmp}")

def wave_sum(v, sdst):
    for mod in ("quad_perm:[1,0,3,2]", "quad_perm:[2,3,0,1]", "row_half_mirror", "row_mirror"):
        g(f"s_nop 1\nv_add_f32_dpp v{v}, v{v}, v{v} {mod} {DPPM}")
    g(f"s_nop 1\nv_add_f32_dpp v{v}, v{v}, v{v} row_bcast:15 row_mask:0xa bank_mask:0xf")
    g(f"s_nop 1\nv_add_f32_dpp v{v}, v{v}, v{v} row_bcast:31 row_mask:0xc bank_mask:0xf")
    g(f"s_nop 1\nv_readlane_b32 s{sdst}, v{v}, 63")

def rne(v):
    g(f"v_cvt_pk_bf16_f32 v{v}, v{v}, v{v}\nv_and_b32 v{v}, 0xffff0000, v{v}")

def ln_stats(x5, tmp, sA, sB, vM, vR):
    u = tmp
    for k in range(5):
        g(f"v_lshlrev_b32 v{u+2*k}, 16, v{x5+k}\nv_and_b32 v{u+2*k+1}, 0xffff0000, v{x5+k}")
    a = u + 10
    g(f"v_add_f32 v{a}, v{u}, v{u+1}")
    for k in range(2, 10): g(f"v_add_f32 v{a}, v{a}, v{u+k}")
    wave_sum(a, sA)
    g(f"s_nop 1\nv_mov_b32 v{vM}, s{sA}\nv_mul_f32 v{vM}, {hex(f32(1.0/640))}, v{vM}")
    for k in range(10): g(f"v_sub_f32 v{u+k}, v{u+k}, v{vM}")
    g(f"v_mul_f32 v{a}, v{u}, v{u}")
    for k in range(1, 10): g(f"v_fmac_f32 v{a}, v{u+k}, v{u+k}")
    wave_sum(a, sB)
    g(f"s_nop 1\nv_mov_b32 v{vR}, s{sB}\nv_mul_f32 v{vR}, {hex(f32(1.0/640))}, v{vR}")
    rne(vR)
    g(f"v_add_f32 v{vR}, {hex(f32(1e-5))}, v{vR}")
    rne(vR)
    g(f"v_sqrt_f32 v{vR}, v{vR}\ns_nop 0")
    rne(vR)
    g(f"v_rcp_f32 v{vR}, v{vR}")
    rne(vM)

def ln_frag(src, dst, t0, vM, vR):
    for k in range(4):
        g(f"""v_lshlrev_b32 v{t0}, 16, v{src+k}
              v_and_b32 v{t0+1}, 0xffff0000, v{src+k}
              v_sub_f32 v{t0}, v{t0}, v{vM}
              v_sub_f32 v{t0+1}, v{t0+1}, v{vM}
              v_cvt_pk_bf16_f32 v{t0+1}, v{t0}, v{t0+1}
              v_lshlrev_b32 v{t0}, 16, v{t0+1}
              v_and_b32 v{t0+1}, 0xffff0000, v{t0+1}
              v_mul_f32 v{t0}, v{t0}, v{vR}
              v_mul_f32 v{t0+1}, v{t0+1}, v{vR}
              v_cvt_pk_bf16_f32 v{dst+k}, v{t0}, v{t0+1}""")

def perm_block(raw, out, order=(0, 1, 2, 3)):
    for p in range(4):
        e = 2 * order[p]
        for d in range(2):
            g(f"v_perm_b32 v{out+4*(2*d)+p}, v{raw+2*(e+1)+d}, v{raw+2*e+d}, s{sPLO}")
            g(f"v_perm_b32 v{out+4*(2*d+1)+p}, v{raw+2*(e+1)+d}, v{raw+2*e+d}, s{sPHI}")

class Landing:
    pending = False
    n = 0
LD = Landing()

def load_block(raw, voff, srdb, sbase, stmp, rowbytes, thr=0, rows=None):
    CUR["p"] = {3456: "pw1", 8192: ("puv" if rows else "pwq"), 1280: ("pw2" if srdb == SR else "pwo")}[rowbytes]
    per = 4095 // rowbytes + 1
    cur = None
    for e in range(8):
        grp, rem = divmod(e, per)
        if grp != cur:
            if grp == 0: so = sbase
            else:
                g(f"s_add_u32 s{stmp}, s{sbase}, {(rows[e] if rows else grp*per)*rowbytes}"); so = stmp
            cur = grp
        if thr:
            g(f"s_waitcnt vmcnt({thr-1})")
            if LD.pending and LD.n >= thr - 1:
                land_now()
        off = f" offset:{rem*rowbytes}" if rem else ""
        g(f"buffer_load_dwordx2 {vr(raw+2*e,2)}, v{voff}, {sr(srdb,4)}, s{so} offen{off} {pol(CUR['p'])}")
        LD.n += 1

def land_now():
    g(f"ds_write_b32 v{VZ}, v{VONE} offset:{F_UK}")
    stamp(2)
    LD.pending = False

def land_flush():
    if LD.pending:
        g(f"s_waitcnt vmcnt({LD.n})")
        land_now()

def tagcheck(regs, acc):
    g(f"v_xor_b32 v{acc}, s{sTAG}, v{regs[0]}")
    for r in regs[1:]:
        g(f"v_bitop3_b32 v{acc}, v{r}, s{sTAG}, v{acc} bitop3:0xbe")
    g(f"v_cmp_ne_u32 vcc, 0, v{acc}")

def poll_loads(nm, loads, tags, scnt, acc=VT, sleep=0, mask=True, b8=False, onfail=""):
    L, Lo = g.nl(nm), g.nl(nm + "o")
    g(f"s_mov_b32 s{scnt}, {LIM_MEM}")
    g.label(L)
    g(loads)
    g("s_waitcnt vmcnt(0)")
    (tagcheck8 if b8 else tagcheck)(tags, acc)
    g(f"s_cbranch_vccz {Lo}")
    if onfail: g(onfail)
    if mask: g("s_mov_b64 exec, vcc")
    if sleep: g(f"s_sleep {sleep}")
    g(f"""s_sub_u32 s{scnt}, s{scnt}, 1
          s_cbranch_scc0 {L}""")
    g.label(Lo)
    if mask: g("s_mov_b64 exec, -1")

def flag16_wait(nm, ap):
    L, Lo = g.nl(nm), g.nl(nm + "o")
    g(f"s_mov_b32 s{sCNT}, {LIM_MEM}\ns_lshl_b32 s18, s{sTAG}, 4")
    g.label(L)
    g(f"""s_load_dwordx16 s[48:63], s[{ap}:{ap+1}], 0 glc
          s_sub_u32 s{sCNT}, s{sCNT}, 1
          s_cbranch_scc1 {Lo}
          s_waitcnt lgkmcnt(0)
          s_add_u32 s19, s48, s49""")
    for k in range(2, 16): g(f"s_add_u32 s19, s19, s{48+k}")
    g(f"s_cmp_eq_u32 s19, s18\ns_cbranch_scc0 {L}")
    g.label(Lo)
    g("s_waitcnt lgkmcnt(0)")

sTB = 66
def tagbytes():
    g(f"""s_and_b32 s{sTB}, s{sTAG}, 1
          s_mul_i32 s{sTB}, s{sTB}, 0x01010101
          s_and_b32 s{sTB+1}, s{sTAG}, 0xfefefefe
          s_or_b32 s{sTB}, s{sTB}, s{sTB+1}
          s_lshr_b32 s{sTB+1}, s{sTB}, 8
          s_lshr_b32 s{sTB+2}, s{sTB}, 16
          s_lshr_b32 s{sTB+3}, s{sTB}, 24""")
def tagput(regs, vmask):
    for d, r in enumerate(regs): g(f"v_bfi_b32 v{r}, v{vmask}, s{sTB+d}, v{r}")
def tagcheck8(bases, acc):
    first = True
    for b in bases:
        for d in range(4):
            if first: g(f"v_xor_b32 v{acc}, s{sTB+d}, v{b+d}"); first = False
            else: g(f"v_bitop3_b32 v{acc}, v{b+d}, s{sTB+d}, v{acc} bitop3:0xbe")
    g(f"v_and_b32 v{acc}, 0xff, v{acc}\nv_cmp_ne_u32 vcc, 0, v{acc}")

def fswz(dst, i, t):
    g(f"""v_lshrrev_b32 v{t}, 1, v{i}
          v_xor_b32 v{dst}, v{t}, v{i}
          v_and_b32 v{dst}, 4, v{dst}
          v_and_or_b32 v{dst}, v{i}, 2, v{dst}
          v_bfe_u32 v{t}, v{i}, 3, 1
          v_or_b32 v{dst}, v{dst}, v{t}""")

def sum_groups(base, n):
    step = 1
    while step < n:
        for a in range(0, n - step, 2 * step):
            g(f"v_pk_add_f32 {vr(base+4*a,2)}, {vr(base+4*a,2)}, {vr(base+4*(a+step),2)}")
            g(f"v_pk_add_f32 {vr(base+4*a+2,2)}, {vr(base+4*a+2,2)}, {vr(base+4*(a+step)+2,2)}")
        step *= 2

def red16(regs, full=True):
    for mod in ("row_ror:4", "row_ror:8"):
        g("s_nop 1")
        for r in regs: g(f"v_add_f32_dpp v{r}, v{r}, v{r} {mod} {DPPM}")
    for sw in (("v_permlane16_swap_b32", "v_permlane32_swap_b32") if full else ("v_permlane16_swap_b32",)):
        for r in regs: g(f"v_mov_b32 v{r+1}, v{r}")
        g("s_nop 1")
        for r in regs: g(f"{sw} v{r}, v{r+1}")
        for r in regs: g(f"v_add_f32 v{r}, v{r}, v{r+1}")

def global_max(dst, t0):
    g(f"""v_max_f32 v{dst}, v{t0}, v{t0+1}""")
    for mod in ("quad_perm:[1,0,3,2]", "quad_perm:[2,3,0,1]", "row_half_mirror", "row_mirror"):
        g(f"s_nop 1\nv_max_f32_dpp v{dst}, v{dst}, v{dst} {mod} {DPPM}")
    for sw in ("v_permlane16_swap_b32", "v_permlane32_swap_b32"):
        g(f"v_mov_b32 v{dst+1}, v{dst}\ns_nop 1\n{sw} v{dst}, v{dst+1}\nv_max_f32 v{dst}, v{dst}, v{dst+1}")

def mfma(d, a, b, first):
    g(f"v_mfma_f32_16x16x32_bf16 {vr(d,4)}, {vr(a,4)}, {vr(b,4)}, {'0' if first else vr(d,4)}")

K = NAME + "_kernel"
g(f"""s_load_dwordx16 s[16:31], s[0:1], 0
      s_load_dwordx8 s[32:39], s[0:1], 64
      s_cmp_ge_u32 s{sWG}, 256
      s_cbranch_scc1 L_END
      v_lshrrev_b32 v{VT}, 6, v0
      v_and_b32 v{LANE}, 63, v0
      v_readfirstlane_b32 s{sWV}, v{VT}
      v_mov_b32 v{VZ}, 0
      v_lshrrev_b32 v{vKG}, 4, v{LANE}
      s_cmp_eq_u32 s{sWV}, 7
      s_cbranch_scc0 L_nopf
      s_getpc_b64 s[44:45]
      L_pc:
      s_sub_u32 s44, s44, L_pc-{K}
      s_subb_u32 s45, s45, 0
      s_and_b32 s41, s{sWG}, 0xf8
      v_add_u32 v10, s41, v{LANE}
      v_lshlrev_b32 v10, 7, v10
      v_cmp_gt_u32 vcc, L_CODE_END-{K}, v10
      s_and_b64 exec, vcc, 0xff
      s_cbranch_execz L_nopf2
      global_load_dword v159, v10, s[44:45]
      L_nopf2:
      s_mov_b64 exec, -1
      L_nopf:
      v_mov_b32 v{VONE}, 1
      v_and_b32 v{vN}, 15, v{LANE}
      s_and_b32 s{sXCD}, s{sWG}, 7
      s_lshr_b32 s{sSLOT}, s{sWG}, 3
      s_lshr_b32 s{sHF}, s{sSLOT}, 3
      s_lshl_b32 s{sJ}, s{sXCD}, 2
      s_add_u32 s{sHF}, s{sHF}, s{sJ}
      s_and_b32 s{sJ}, s{sSLOT}, 7
      s_mov_b32 s{sPLO}, 0x05040100
      s_mov_b32 s{sPHI}, 0x07060302""")
if OPT["ts"] or OPT["padat"] >= 0:
    g(f"v_mov_b32 v{VTS}, 0")
    stamp(0)
if OPT["pad"]:
    g(f"s_memrealtime vcc\ns_waitcnt lgkmcnt(0)\nv_mov_b32 v{VTS}, vcc_lo")
g(f"""s_cmp_ge_u32 s{sWV}, 6
      s_cbranch_scc1 L_OTH
      s_setprio 2
      v_lshlrev_b32 v24, 16, v{vKG}
      v_lshl_add_u32 v24, v{vN}, 3, v24       ; + n*8
      v_mul_u32_u24 v6, 20, v{LANE}
      s_lshr_b32 s40, s{sXCD if OPT["remap"] else sJ}, 1   ; mq
      s_mul_i32 s40, s40, 160
      s_lshl_b32 s41, s{sWV}, 5
      s_add_u32 s40, s40, s41
      s_lshl_b32 s41, s40, 13                 ; row0*8192
      {f"s_lshl_b32 s42, s{sSLOT}, 7" if OPT["remap"] else f"s_lshl_b32 s42, s{sHF}, 8"}
      s_add_u32 s41, s41, s42
      s_and_b32 s42, s{sXCD if OPT["remap"] else sJ}, 1
      s_lshl_b32 s42, s42, {12 if OPT["remap"] else 7}
      s_add_u32 s41, s41, s42                 ; w_q soffset
      s_mov_b32 s46, 5242880
      s_mov_b32 s47, 0x20000
      s_mov_b32 s{SR+2}, 1280
      s_mov_b32 s{SR+3}, 0x20000
      s_cmp_eq_u32 s{sWV}, 5
      s_cbranch_scc0 L_A
      s_setprio 3
      s_waitcnt lgkmcnt(0)
      s_mov_b32 s{SR}, s{P_X}
      s_mov_b32 s{SR+1}, s{P_X+1}
      buffer_load_dwordx4 v[8:11], v6, {sr(SR,4)}, 0 offen
      buffer_load_dword v12, v6, {sr(SR,4)}, 0 offen offset:16
      s_barrier
      s_branch L_LN""")
g.label("L_A")
g(f"""s_waitcnt lgkmcnt(0)
      s_mov_b32 s44, s{P_WQ}
      s_mov_b32 s45, s{P_WQ+1}
      s_nop 1""")
load_block(32, 24, 44, 41, 42, 8192)
g("s_barrier")
lds_inc(F_QI)
srd(WS, P_WS, WS_REC)
g(f"""s_lshl_b32 s40, s40, 1
      v_lshlrev_b32 v112, 4, v{vKG}
      v_add_u32 v112, s40, v112
      v_lshlrev_b32 v113, 4, v{vN}
      s_lshl_b32 s40, s{sWV}, 8
      v_add_u32 v113, s40, v113
      s_branch L_A_q""")
g.label("L_LN")
srd(WS, P_WS, WS_REC)
g(f"v_add_u32 v6, {XNL}, v6\ns_waitcnt vmcnt(0)")
stamp(16)
U, E, Dd = 32, 44, 56
for k in range(5):
    g(f"v_lshlrev_b32 v{U+2*k}, 16, v{8+k}\nv_and_b32 v{U+2*k+1}, 0xffff0000, v{8+k}")
g(f"""v_pk_add_f32 v[14:15], {vr(U,2)}, {vr(U+2,2)}
      v_pk_add_f32 v[16:17], {vr(U+4,2)}, {vr(U+6,2)}
      v_pk_add_f32 v[14:15], v[14:15], {vr(U+8,2)}
      v_pk_add_f32 v[14:15], v[14:15], v[16:17]
      v_add_f32 v14, v14, v15""")
wave_sum(14, 40)
g(f"""s_nop 1
      v_mov_b32 v18, {hex(f32(-1.0/640))}
      v_mul_f32 v18, s40, v18                 ; -mean
      v_mov_b32 v19, v18""")
for k in range(5): g(f"v_pk_add_f32 {vr(E+2*k,2)}, {vr(U+2*k,2)}, v[18:19]")
g(f"v_pk_mul_f32 v[14:15], {vr(E,2)}, {vr(E,2)}")
for k in range(1, 5): g(f"v_pk_fma_f32 v[14:15], {vr(E+2*k,2)}, {vr(E+2*k,2)}, v[14:15]")
g(f"""v_cvt_pk_bf16_f32 v20, v18, v18
      v_add_f32 v14, v14, v15
      v_and_b32 v20, 0xffff0000, v20
      v_mov_b32 v21, v20""")
fill = [f"v_pk_add_f32 {vr(E+2*k,2)}, {vr(U+2*k,2)}, v[20:21]" for k in range(5)]
fill += [f"v_cvt_pk_bf16_f32 v{8+k}, v{E+2*k}, v{E+2*k+1}" for k in range(5)]
fill += [x for k in range(5) for x in (f"v_lshlrev_b32 v{Dd+2*k}, 16, v{8+k}", f"v_and_b32 v{Dd+2*k+1}, 0xffff0000, v{8+k}")]
steps = [f"v_add_f32_dpp v14, v14, v14 {m} {DPPM}" for m in ("quad_perm:[1,0,3,2]", "quad_perm:[2,3,0,1]", "row_half_mirror", "row_mirror")]
steps += ["v_add_f32_dpp v14, v14, v14 row_bcast:15 row_mask:0xa bank_mask:0xf", "v_add_f32_dpp v14, v14, v14 row_bcast:31 row_mask:0xc bank_mask:0xf", "v_readlane_b32 s42, v14, 63"]
for st_ in steps:
    g(st_); g(fill.pop(0)); g(fill.pop(0))
g(f"""v_mov_b32 v22, {hex(f32(1.0/640))}
      v_mul_f32 v22, s42, v22""")
rne(22)
g(f"v_add_f32 v22, {hex(f32(1e-5))}, v22")
rne(22)
g("v_sqrt_f32 v22, v22"); g(fill.pop(0))
rne(22)
g("v_rcp_f32 v22, v22")
while fill: g(fill.pop(0))
g("v_mov_b32 v23, v22")
for k in range(5): g(f"v_pk_mul_f32 {vr(Dd+2*k,2)}, {vr(Dd+2*k,2)}, v[22:23]")
for k in range(5): g(f"v_cvt_pk_bf16_f32 v{8+k}, v{Dd+2*k}, v{Dd+2*k+1}")
g(f"""ds_write2_b32 v6, v8, v9 offset0:0 offset1:1
      ds_write2_b32 v6, v10, v11 offset0:2 offset1:3
      ds_write_b32 v6, v12 offset:16
      ds_write_b32 v{VZ}, v{VONE} offset:{F_XN}""")
stamp(17)
g("s_branch L_A_q")
g.label("L_OTH")
g(f"""s_cmp_eq_u32 s{sWV}, 6
      s_cbranch_scc0 L_noinit
      v_lshlrev_b32 v8, 2, v{LANE}
      ds_write_b32 v8, v{VZ}
      s_waitcnt lgkmcnt(0)
      L_noinit:
      s_cmp_eq_u32 s{sWV}, 9
      s_cbranch_scc1 L_G9
      s_barrier
      {f"s_cmp_eq_u32 s{sWV}, 6" if OPT["uk6"] else ""}
      {"s_cbranch_scc1 L_FFN" if OPT["uk6"] else ""}
      s_cmp_lt_u32 s{sWV}, 8
      s_cbranch_scc0 L_OTH2
      s_waitcnt lgkmcnt(0)""")
srd(WS, P_WS, WS_REC)
if OPT["tlb"]:
    g(f"""s_cmp_eq_u32 s{sWV}, 7
          s_cbranch_scc0 L_A_q
          s_and_b32 s40, s{sSLOT}, 7
          s_lshl_b32 s40, s40, 6
          s_lshr_b32 s41, s{sSLOT}, 3             ; 0..3
          s_lshl_b32 s42, s41, 20
          s_add_u32 s42, s42, s40
          s_and_b32 s43, s41, 1
          s_lshl_b32 s43, s43, 20
          s_add_u32 s43, s43, s40
          s_lshl_b32 s44, s{sXCD}, 21
          s_add_u32 s44, s44, s43
          s_add_u32 s45, s40, 0x400000
          s_add_u32 s46, s40, 0x200000
          s_add_u32 s47, s43, 0x400000""")
    if OPT["tlb"] == 2: lds_wait(F_XN, 1, 41, sleep=1)
    if OPT["tlb"] in (1, 3):
        g(f"""s_load_dword s52, s[{P_KV}:{P_KV+1}], s44
          s_load_dword s53, s[{P_WUK}:{P_WUK+1}], s42
          s_load_dword s54, s[{P_W1}:{P_W1+1}], s43
          s_load_dword s55, s[{P_W2}:{P_W2+1}], s43
          s_load_dword s60, s[{P_W1}:{P_W1+1}], s46
          s_load_dword s61, s[{P_W2}:{P_W2+1}], s46""")
    if OPT["tlb"] == 3: lds_wait(F_XN, 1, 41, sleep=1)
    g(f"""s_load_dword s56, s[{P_WS}:{P_WS+1}], s42
          s_load_dword s57, s[{P_WUV}:{P_WUV+1}], s42
          s_load_dword s58, s[{P_WO}:{P_WO+1}], s42
          s_load_dword s59, s[{P_WO}:{P_WO+1}], s45
          s_load_dword s62, s[{P_WS}:{P_WS+1}], s47
          s_load_dword s63, s[{P_OUT}:{P_OUT+1}], 0
          s_waitcnt lgkmcnt(0)""")
g("s_branch L_A_q")
g.label("L_OTH2")
g(f"""      s_cmp_eq_u32 s{sWV}, 9
      s_cbranch_scc1 L_G9
      s_cmp_eq_u32 s{sWV}, 11
      s_cbranch_scc1 L_FFN""")
g(f"v_lshrrev_b32 v32, 3, v{LANE}")
fswz(33, 32, 34)
g(f"""v_and_b32 v34, 7, v{LANE}
      v_xor_b32 v33, v33, v34
      v_lshlrev_b32 v33, 4, v33
      v_lshl_add_u32 v36, v32, 10, v33
      s_bfe_u32 s43, s{sWV}, 0x10001
      s_and_b32 s40, s43, 1
      s_mul_i32 s40, s40, 80
      v_xor_b32 v36, s40, v36
      s_lshr_b32 s41, s{sSLOT}, 1""")
if OPT["ksmap"] == 0:
    g(f"s_lshl_b32 s41, s41, 3\ns_add_u32 s41, s41, s{sXCD}             ; ks")
else:
    g(f"s_lshl_b32 s42, s{sXCD}, 4\ns_add_u32 s41, s41, s42             ; ks")
g(f"""s_mul_i32 s51, s41, {OPT["rot"]}
      s_add_u32 s51, s51, s43
      s_lshl_b32 s51, s51, 13
      s_and_b32 s51, s51, 0x1ffff
      s_lshl_b32 s52, s41, 17                 ; ks*128KB
      s_add_u32 s41, s52, s51
      s_lshl_b32 s42, s43, 10
      s_add_u32 s42, s42, {KV}
      s_waitcnt lgkmcnt(0)""")
srd(44, P_KV, 16777216)
srd(WS, P_WS, WS_REC)
if OPT["kvt"]:
    n = OPT["kvt"]; step = 131072 // n
    g(f"s_lshl_b32 s49, s43, 16\ns_add_u32 s49, s49, s52")
    for k in range(n // 2):
        g(f"s_add_u32 s50, s49, {k*step}\ns_load_dword s{56+(k&7)}, s[{P_KV}:{P_KV+1}], s50")
if OPT["vt"]:
    lds_wait(F_QI, 5, 40)
    g(f"""s_mov_b64 exec, 1
          buffer_load_dword v40, v{VZ}, {sr(44,4)}, s41 offen {pol('pkv')}
          s_mov_b64 exec, -1""")
if OPT["gate"] >= 20: lds_wait(F_QP, 1, 40)
elif OPT["gate"]:
    lds_wait(F_WQ if OPT["gate"] < 10 else F_Q, OPT["gate"] % 10, 40, sleep=1)
stamp(8)
NI = OPT["inflight"]
assert 1 <= NI <= 32
g(f"""s_lshl_b32 s48, s43, 2
      v_mov_b32 v37, s48
      s_mov_b32 s43, 0""")
def ld_loop(lab, NI, end):
    g.label(lab)
    for k in range(16):
        cb, hi = k & 7, k >> 3
        g(f"s_add_u32 m0, s42, {cb*(16384-128) + hi*2048}")
        if k == 8: g(f"s_add_u32 s51, s51, {2*8192}\ns_and_b32 s51, s51, 0x1ffff\ns_add_u32 s41, s52, s51")
        g(f"s_waitcnt vmcnt({NI-1})")
        if k == (NI - 1) % 16:
            g(f"""s_sub_u32 s48, s43, {(NI - 1) // 16}
                  s_max_i32 s48, s48, 0
                  v_mov_b32 v38, s48
                  ds_write_b32 v37, v38 offset:{F_LA}""")
        g(f"buffer_load_dwordx4 v36, {sr(44,4)}, s41 offen offset:{cb*128} {pol('pkv')} lds")
    g(f"""s_add_u32 s51, s51, {2*8192}
          s_and_b32 s51, s51, 0x1ffff
          s_add_u32 s41, s52, s51
          s_add_u32 s42, s42, {4*1024}
          s_add_u32 s43, s43, 1""")
    if OPT["ts"] == 2:
        g(f"""s_memrealtime vcc
              s_add_u32 s49, s43, 11
              s_mov_b32 m0, s49
              s_waitcnt lgkmcnt(0)
              v_writelane_b32 v{VTS}, vcc_lo, m0""")
    g(f"""s_cmp_lt_u32 s43, {end}
          s_cbranch_scc1 {lab}""")
if OPT["inf2"]:
    ld_loop("L_ld", NI, OPT["split"])
    ld_loop("L_ld2", OPT["inf2"], 4)
else:
    ld_loop("L_ld", NI, 4)
lds_inc(F_ISS)
stamp(1)
g(f"""v_mov_b32 v38, 3
      v_mov_b32 v39, 4
      s_waitcnt vmcnt(16)
      ds_write_b32 v37, v38 offset:{F_LA}
      s_waitcnt vmcnt(0)
      ds_write_b32 v37, v39 offset:{F_LA}""")
stamp(2)
g("s_branch L_G")
g.label("L_FFN")
XF = 8
g("s_waitcnt lgkmcnt(0)")
srd(WS, P_WS, WS_REC)
if OPT["uk6"]: g(f"s_cmp_eq_u32 s{sWV}, 11\ns_cbranch_scc1 L_FFNa")
srd(SR, P_WUK, 4194304)
g(f"""v_xor_b32 v8, v{vN}, v{vKG}
      v_lshlrev_b32 v8, 4, v8
      v_lshl_add_u32 v8, v{vKG}, 13, v8
      v_xor_b32 v9, 64, v8
      v_xor_b32 v10, 128, v8
      v_xor_b32 v11, 192, v8
      s_lshl_b32 s48, s{sCA}, 19
      s_lshl_b32 s49, s{sHA}, 8
      s_add_u32 s48, s48, s49""")
if OPT["ukgate"]: lds_wait(F_WQ, OPT["ukgate"], 40)
else: lds_wait(F_QI, 5, 40)
for u in range(16):
    g(f"s_mov_b32 m0, {QL + u*1024}")
    g(f"s_add_u32 s49, s48, {u*4*8192}")
    g(f"buffer_load_dwordx4 v{8+(u&3)}, {sr(SR,4)}, s49 offen {pol('puk')} lds")
if OPT["uk6"]:
    g("s_branch L_A_q")
    g.label("L_FFNa")
    if OPT["fgate"] == 0: lds_wait(F_QI, 5, 40)
if OPT["fgate"] == 9:
    g("s_waitcnt vmcnt(0)"); land_now()
elif OPT["fgate"] == 8:
    lds_wait(F_QP, 1, 40, sleep=1)
elif OPT["fgate"]:
    lds_wait(F_Q, OPT["fgate"], 40, sleep=1)
if OPT["forder"] == 1: lds_wait(F_ISS, 2, 40, sleep=2)
if OPT["forder"] == 5: lds_wait(F_H3, 8, 40, sleep=2)
if OPT["forder"] == 6: lds_wait(F_STG, 8, 40, sleep=2)
g("s_branch L_FFNb")
FFN_EARLY_END = True
g.label("L_G9")
g(f"""s_setprio 3
      s_waitcnt lgkmcnt(0)
      s_load_dword s40, s[{P_WS}:{P_WS+1}], {EPOCH}
      s_barrier""")
srd(WS, P_WS, WS_REC)
g(f"""v_lshlrev_b32 v8, 4, v{vN}              ; n*16
      s_lshl_b32 s41, s{sHA}, 3
      s_add_u32 s41, s41, s{sCA}
      s_lshl_b32 s41, s41, 8
      s_add_u32 s43, s41, {QAM}""")
if OPT["remap"]:
    g(f"""s_and_b32 s42, s{sXCD}, 1
          s_lshl_b32 s42, s42, 4
          s_lshr_b32 s41, s{sSLOT}, 1
          s_add_u32 s42, s42, s41                 ; hQ
          s_lshl_b32 s42, s42, {QS}
          s_and_b32 s41, s{sXCD}, 6
          s_and_b32 s45, s{sSLOT}, 1
          s_add_u32 s41, s41, s45
          s_lshl_b32 s41, s41, 8""")
else:
    g(f"s_lshl_b32 s42, s{sHF}, {QS}\ns_lshl_b32 s41, s{sJ}, 8")
g(f"""
      s_add_u32 s42, s42, s41
      s_add_u32 s42, s42, {QM}
      s_add_u32 s45, s42, 8192
      v_lshl_add_u32 v7, v{vKG}, 11, v8

      v_mov_b32 v11, 1
      s_waitcnt lgkmcnt(0)
      s_mul_i32 s{sTAG}, s40, 1664525
      s_add_u32 s{sTAG}, s{sTAG}, 1013904223
      v_mov_b32 v10, s{sTAG}
      v_mov_b32 v13, s{sTAG}
      v_mov_b32 v15, s{sTAG}
      ds_write_b64 v{VZ}, v[10:11] offset:{F_TAG}""")
stamp(1)
if OPT["warm"]:
    g(f"""s_and_b32 s46, s{sSLOT}, 1
          s_lshl_b32 s46, s46, {HS-3}
          s_add_u32 s46, s46, s{sXCD}
          s_lshl_b32 s46, s46, 7
          s_add_u32 s46, s46, {HD}
          v_lshlrev_b32 v9, {HS}, v{vN}
          v_and_b32 v16, 1, v{vKG}
          v_lshl_add_u32 v9, v16, {int(math.log2(LOFF))}, v9""")
    lds_wait(F_QI, 5, 40)
    if OPT["fast1"]:
        g(f"""buffer_load_dwordx4 v[16:19], v6, {sr(WS,4)}, s47 offen sc1
              buffer_load_dwordx4 v[16:19], v6, {sr(WS,4)}, s47 offen offset:1024 sc1""")
    g(f"""buffer_load_dwordx4 v[16:19], v7, {sr(WS,4)}, s42 offen sc1
          buffer_load_dwordx4 v[16:19], v7, {sr(WS,4)}, s45 offen sc1
          buffer_load_dwordx4 v[16:19], v8, {sr(WS,4)}, s43 offen sc1
          buffer_load_dword v16, v9, {sr(WS,4)}, s46 offen sc1""")
lds_wait(F_Q, 5, 40)
g("\n".join(f"ds_read_b128 {vr(32+4*b,4)}, v8 offset:{REDQ+256*b}" for b in range(5)))
g("s_waitcnt lgkmcnt(0)")
sum_groups(32, 5)
g(f"""v_cvt_pk_bf16_f32 v12, v32, v33
      v_cvt_pk_bf16_f32 v14, v34, v35""")
if OPT["fast1"]:
    g(f"""buffer_store_dwordx4 v[12:15], v6, {sr(WS,4)}, s47 offen
          ds_write_b32 v{VZ}, v{VONE} offset:{F_QP}
          buffer_store_dwordx4 v[12:15], v6, {sr(WS,4)}, s47 offen offset:1024""")
g(f"""buffer_store_dwordx4 v[12:15], v7, {sr(WS,4)}, s42 offen sc1
      buffer_store_dwordx4 v[12:15], v7, {sr(WS,4)}, s45 offen sc1
      ds_write_b32 v{VZ}, v{VONE} offset:{F_QP}
      s_mov_b64 exec, 0xffff""")
stamp(2)
lds_wait(F_QA, 8, 40)
g("\n".join(f"ds_read_b128 {vr(32+4*b,4)}, v8 offset:{REDQA+256*b}" for b in range(8)))
g("s_waitcnt lgkmcnt(0)")
sum_groups(32, 8)
for r in range(4): g(f"v_mul_f32 v{32+r}, {hex(f32(SCALE))}, v{32+r}")
g(f"""v_cvt_pk_bf16_f32 v12, v32, v33
      v_cvt_pk_bf16_f32 v14, v34, v35
      buffer_store_dwordx4 v[12:15], v8, {sr(WS,4)}, s43 offen sc1
      ds_write_b32 v{VZ}, v{VONE} offset:{F_QAP}
      s_mov_b64 exec, -1
      s_setprio 0""")
stamp(3)
if OPT["uvgate"] < 2: lds_wait(F_H2I if OPT["uvgate"] else F_ISS, 8 if OPT["uvgate"] else 2, 40, sleep=1)
elif OPT["uvgate"] == 3: land_wait(4, 40, 24, sleep=1)
else: g("s_sleep 16")
if OPT["fast1"] and OPT["recl"]:
    g(f"""buffer_store_dwordx4 v[20:23], v6, {sr(WS,4)}, s47 offen sc1
          buffer_store_dwordx4 v[20:23], v6, {sr(WS,4)}, s47 offen offset:1024 sc1""")
g("s_branch L_G_uv9")

g.label("L_A_q")
g("s_setprio 2")
g(f"""s_and_b32 s40, s{sSLOT}, 1              ; g
      s_lshl_b32 s41, s40, 4
      s_lshl_b32 s42, s{sWV}, 1
      s_add_u32 s41, s41, s42                 ; 16g+2w
      s_lshl_b32 s41, s41, 11
      s_add_u32 s20, s41, {QAM}
      s_lshr_b32 s21, s{sSLOT}, 1             ; mi 0..15
      s_lshl_b32 s42, s40, 7                  ; 16g*8
      s_add_u32 s42, s42, s{sWV}
      s_lshl_b32 s42, s42, 3
      s_add_u32 s42, s42, s{sXCD}
      s_lshl_b32 s42, s42, 4
      s_add_u32 s42, s42, s21
      s_lshl_b32 s42, s42, 7
      s_add_u32 s26, s42, {IB}
      s_add_u32 s22, s26, {2*8*8*2048}
      s_lshl_b32 s42, s40, {HS-3}
      s_add_u32 s42, s42, s{sXCD}
      s_lshl_b32 s42, s42, 4
      s_add_u32 s42, s42, s21
      s_lshl_b32 s42, s42, 3
      s_add_u32 s27, s42, {HD}
      s_add_u32 s23, s27, {LOFF}
      s_lshl_b32 s42, s{sHF}, {HS-7}
      s_add_u32 s42, s42, s{sWV}
      s_lshl_b32 s42, s42, 7
      s_add_u32 s31, s42, {HD}
      s_lshl_b32 s42, s{sHF}, 3
      s_add_u32 s42, s42, s{sJ}
      s_lshl_b32 s42, s42, 3
      s_add_u32 s42, s42, s{sWV}              ; (h*8+j)*8+w
      s_lshl_b32 s30, s42, 11
      s_add_u32 s30, s30, {IB}
      s_lshl_b32 s42, s{sHA}, {QS-11}
      s_add_u32 s42, s42, s{sCA}
      s_lshl_b32 s42, s42, 3
      s_add_u32 s42, s42, s{sWV}
      s_lshl_b32 s42, s42, 8
      s_add_u32 s42, s42, {QM}
      s_add_u32 s32, s{WS}, s42
      s_addc_u32 s33, s{WS+1}, 0
      s_and_b32 s40, s{sWV}, 1
      s_lshl_b32 s40, s40, 3                  ; 8*dhalf'
      v_xor_b32 v6, s40, v{vN}
      v_lshlrev_b32 v6, 4, v6
      v_lshl_add_u32 v6, v{LANE}, 8, v6       ; row*256 + ...
      v_lshlrev_b32 v10, 2, v{LANE}
      s_lshl_b32 s40, s{sWV}, 8
      v_add_u32 v10, s40, v10
      v_mov_b32 v8, 0
      v_mov_b32 v9, 0""")
W = 80
QKA, PVA = 32, 96
fswz(24, vN, 25)
g(f"""v_xor_b32 v24, v24, v{vKG}
      v_lshlrev_b32 v24, 4, v24
      v_and_b32 v25, 7, v{vN}
      v_lshl_add_u32 v24, v25, 7, v24         ; + (i&7)*128
      v_lshrrev_b32 v25, 3, v{vN}
      v_lshl_add_u32 v24, v25, 10, v24        ; + (i>>3)*1024
      s_lshl_b32 s42, s{sWV}, 11
      s_add_u32 s42, s42, {KV}
      v_add_u32 v160, s42, v24
      v_xor_b32 v161, 64, v160
      v_add_u32 v162, 0x10000, v160
      v_add_u32 v163, 0x10000, v161
      v_lshrrev_b32 v26, 2, v{LANE}           ; i16""")
fswz(24, 26, 25)
g(f"""s_and_b32 s42, s{sWV}, 3
      s_lshl_b32 s42, s42, 1
      v_bfe_u32 v25, v{LANE}, 1, 1
      v_or_b32 v25, s42, v25                  ; xi = 2(w&3) + (c'>>1)
      v_xor_b32 v24, v24, v25
      v_lshlrev_b32 v24, 4, v24
      v_and_b32 v25, 1, v{LANE}
      v_lshl_add_u32 v24, v25, 3, v24
      v_and_b32 v25, 7, v26
      v_lshl_add_u32 v24, v25, 7, v24
      v_lshrrev_b32 v25, 3, v26
      v_lshl_add_u32 v24, v25, 10, v24
      s_lshr_b32 s42, s{sWV}, 2
      s_lshl_b32 s42, s42, 14
      s_add_u32 s42, s42, {KV}
      v_add_u32 v164, s42, v24
      v_add_u32 v165, 0x10000, v164
      v_lshrrev_b32 v24, 1, v{vN}             ; xi
      v_and_b32 v25, 4, v24
      v_lshl_or_b32 v25, v25, 1, v24          ; sigma
      s_lshl_b32 s42, s{sWV}, 1
      v_xor_b32 v25, s42, v25
      v_lshlrev_b32 v25, 4, v25
      v_lshl_add_u32 v25, v24, 8, v25         ; + xi*256
      v_lshl_add_u32 v25, v{vKG}, 11, v25     ; + (l>>4)*2048
      v_and_b32 v24, 1, v{LANE}
      v_lshl_add_u32 v28, v24, 3, v25
      v_xor_b32 v29, 16, v28
      v_xor_b32 v30, v{vN}, v{vKG}
      v_lshlrev_b32 v30, 4, v30
      v_lshl_add_u32 v30, v{vKG}, 8, v30
      v_xor_b32 v31, {12*16}, v30             ; odd s
      v_lshlrev_b32 v166, 4, v{LANE}          ; lane*16""")
g(f"s_cmp_ge_u32 s{sWV}, 5\ns_cbranch_scc1 L_A_q2")
for p in range(4):
    g(f"s_waitcnt vmcnt({6-2*p})")
    if p == 0 and (OPT['ukgate'] or 0 < OPT['gate'] < 10): lds_inc(F_WQ)
    e = 2 * p
    for d in range(2):
        g(f"v_perm_b32 v{48+8*d+p}, v{32+2*(e+1)+d}, v{32+2*e+d}, s{sPLO}")
        g(f"v_perm_b32 v{48+8*d+4+p}, v{32+2*(e+1)+d}, v{32+2*e+d}, s{sPHI}")
stamp(18)
lds_wait(F_XN, 1, 19, extra=f"ds_read_b128 v[116:119], v112 offset:{XNL}")
for t in range(4): mfma(64 + 4 * t, 116, 48 + 4 * t, True)
g(f"""s_nop 6
      v_mov_b32 v65, v68
      v_mov_b32 v66, v72
      v_mov_b32 v67, v76
      s_mov_b64 exec, 0xffff
      ds_write_b128 v113, v[64:67] offset:{REDQ}
      s_mov_b64 exec, 1
      ds_add_u32 v{VZ}, v{VONE} offset:{F_Q}
      s_mov_b64 exec, -1""")
g.label("L_A_q2")
stamp(2)
get_tag(7)
g(f"s_lshl_b32 s18, s{sTAG}, 5              ; 32*TAG")
if OPT["uk6"]:
    g(f"""s_cmp_eq_u32 s{sWV}, 6
          s_cbranch_scc0 L_nouk
          s_waitcnt vmcnt(0)
          ds_write_b32 v{VZ}, v{VONE} offset:{F_UK}""")
    stamp(17)
    g.label("L_nouk")
def wreads():
    for e in range(8):
        if e: g(f"v_xor_b32 v7, {e*16}, v6")
        g(f"ds_read_b128 {vr(W+4*e,4)}, v{6 if e == 0 else 7} offset:{QL}")
lds_wait(F_QP, 1, 19, sleep=1)
if OPT["d1"]: g(f"s_sleep {OPT['d1']}")
g(f"""ds_read_b32 v{VT}, v{VZ} offset:{F_UK}
      s_waitcnt lgkmcnt(0)
      v_readfirstlane_b32 s24, v{VT}
      s_nop 0
      s_cmp_eq_u32 s24, 0
      s_cbranch_scc1 L_now""")
wreads()
g.label("L_now")
stamp(3)
L, Lo = g.nl("h1"), g.nl("h1o")
g(f"s_mov_b32 s{sCNT}, {LIM_MEM}")
g.label(L)
if OPT["fast1"]:
    Lg, Lc = g.nl("h1g"), g.nl("h1c")
    g(f"s_cmp_le_u32 s{sCNT}, {LIM_MEM-8}\ns_cbranch_scc1 {Lg}")
    for k in range(4):
        g(f"s_load_dwordx16 {sr(36+16*k,16)}, s[8:9], {64*k}")
    g(f"s_add_u32 s8, s8, 256\ns_addc_u32 s9, s9, 0\ns_branch {Lc}")
    g.label(Lg)
for k in range(4):
    g(f"s_load_dwordx16 {sr(36+16*k,16)}, s[32:33], {64*k} glc")
if OPT["fast1"]: g.label(Lc)
g(f"""s_sub_u32 s{sCNT}, s{sCNT}, 1
      s_cbranch_scc1 {Lo}
      s_waitcnt lgkmcnt(0)
      s_cmp_eq_u32 s99, s{sTAG}
      s_cbranch_scc0 {L}
      s_add_u32 s19, s37, s39""")
for k in range(2, 32):
    g(f"s_add_u32 s19, s19, s{37+2*k}")
g(f"s_cmp_eq_u32 s19, s18\ns_cbranch_scc0 {L}")
g.label(Lo)
cnt(23, sCNT)
stamp(1)
g(f"""s_cmp_eq_u32 s24, 0
      s_cbranch_scc0 L_havew""")
lds_wait(F_UK, 1, 19)
wreads()
g.label("L_havew")
for k in range(32):
    if k % 4 == 0: g(f"s_waitcnt lgkmcnt({7 - k//4})")
    g(f"v_dot2c_f32_bf16 v{8+(k&1)}, s{36+2*k}, v{W+k}")
g(f"""s_nop 2
      v_add_f32 v8, v8, v9
      ds_write_b32 v10, v8 offset:{REDQA}""")
lds_inc(F_QA)
stamp(4)
def qka_reads():
    for s in range(16):
        cb = s >> 1
        a = 160 + (s & 1) + (2 if cb >= 4 else 0)
        g(f"ds_read_b128 {vr(QKA+4*s,4)}, v{a} offset:{(cb&3)*16384}")
def pva_reads(u):
    for i in range(4):
        for hh in range(2):
            T = 2 * u + hh
            g(f"ds_read_b64_tr_b16 {vr(PVA+16*i+4*u+2*hh,2)}, v{164+(i>>1)} offset:{(i&1)*32768+T*2048}")
h2_loads = "\n".join(f"buffer_load_dwordx4 {vr(8+4*n,4)}, v{VL16}, {sr(WS,4)}, s20 offen offset:{1024*n} sc1" for n in range(4))
g(f"""s_lshr_b32 s42, s{sWV}, 1
      s_lshl_b32 s48, s42, 2
      s_lshl_b32 s48, 1, s48
      s_add_u32 s49, s48, 0x10000
      s_mov_b32 s50, {hex(f32(OPT["rng"]))}
      s_lshl_b32 s42, s42, 10
      s_and_b32 s43, s{sWV}, 1
      s_lshl_b32 s43, s43, 3
      s_add_u32 s42, s42, s43
      v_add_u32 v7, s42, v{VL16}
      v_add_u32 v28, {QL}, v28
      v_add_u32 v29, {QL}, v29
      v_add_u32 v26, 8192, v28
      v_add_u32 v27, 8192, v29
      s_and_b32 s45, s{sTAG}, 1
      s_mul_i32 s45, s45, 0x55555555
      s_and_b32 s44, s{sTAG}, 0xaaaaaaaa
      s_or_b32 s45, s45, s44
      s_mov_b32 s44, 0x00010001""")
lds_wait(F_QAP, 1, 42)
if OPT["d2"]: g(f"s_sleep {OPT['d2']}")
def h2_issue(lv):
    if OPT["h2land"] == lv:
        g(h2_loads)
        if OPT['uvgate'] == 1: lds_inc(F_H2I)
        stamp(5)
h2_issue(0)
land_wait(2, 42, 24, sleep=1)
h2_issue(2)
pva_reads(0); pva_reads(1)
land_wait(3, 42, 24, sleep=1)
h2_issue(3)
pva_reads(2)
g(f"s_cmp_lt_u32 s{sWV}, 6\ns_cbranch_scc1 L_qka")
land_wait(4, 42, 24)
g.label("L_qka")
qka_reads()
stamp(6)
L, Lo = g.nl("h2c"), g.nl("h2co")
g(f"s_mov_b32 s43, {LIM_MEM}")
g.label(L)
g("s_waitcnt vmcnt(0)")
tagcheck([9, 11, 13, 15, 17, 19, 21, 23], 24)
g(f"""s_cbranch_vccz {Lo}
      s_sub_u32 s43, s43, 1
      s_cbranch_scc1 {Lo}
      s_sleep {OPT["bk2"]}
      s_mov_b64 exec, vcc""")
g(h2_loads)
g(f"s_mov_b64 exec, -1\ns_branch {L}")
g.label(Lo)
cnt(24, 43)
stamp(7)
for n in range(4):
    g(f"ds_write2_b32 v{[28, 26, 29, 27][n]}, v{8+4*n}, v{10+4*n} offset0:0 offset1:1")
lds_inc(F_STG)
def bread(s): return f"ds_read_b128 {vr(8+4*(s&3),4)}, v{30+(s&1)} offset:{QL+s*1024}"
lds_wait(F_STG, 8, 42)
stamp(8)
g("\n".join(bread(s) for s in range(4)))
SA = 24
for s in range(16):
    g(f"s_waitcnt lgkmcnt({min(3, 15-s)})")
    mfma(SA, QKA + 4 * s, 8 + 4 * (s & 3), s == 0)
    if s + 4 < 16: g(bread(s + 4))
VM = 10
PF, OA = 32, 48
def pread(u): return f"ds_read_b128 {vr(PF+4*u,4)}, v{VL16} offset:{PL+1024*u}"
g("s_nop 7")
for r in range(4): g(f"v_exp_f32 v{12+r}, v{SA+r}")
g(f"""v_max3_f32 v9, v{SA}, v{SA+1}, v{SA+2}
      v_cvt_pk_bf16_f32 v16, v12, v13
      v_cvt_pk_bf16_f32 v17, v14, v15
      v_max_f32 v9, v9, v{SA+3}
      ds_write_b64 v7, v[16:17] offset:{PL}
      v_cmp_nle_f32 vcc, abs(v9), s50
      s_cmp_lg_u64 vcc, 0
      s_cselect_b32 s48, s49, s48
      s_mov_b64 exec, 1
      v_mov_b32 v8, s48
      ds_add_u32 v{VZ}, v8 offset:{F_PC}
      s_mov_b64 exec, -1""")
pva_reads(3)
stamp(15)
TP, IBV = 80, 84
fill = [f"v_lshrrev_b32 v12, 3, v{vN}",
        f"v_lshl_add_u32 v12, v{vKG}, 2, v12      ; head = 4q + (j>>3)",
        f"v_lshlrev_b32 v{IBV}, 17, v12",
        f"v_and_b32 v12, 7, v{vN}",
        f"v_lshl_add_u32 v{IBV}, v12, 4, v{IBV}",
        f"v_and_b32 v12, 3, v{LANE}",
        f"v_lshlrev_b32 v12, 3, v12",
        f"v_lshrrev_b32 v12, v12, s45",
        f"v_and_b32 v13, 0xff, v12", f"v_lshlrev_b32 v12, 15, v13", f"v_or_b32 v12, v12, v13"]
for d in range(4): fill += [f"v_lshrrev_b32 v13, {2*d}, v12", f"v_and_b32 v{TP+d}, s44, v13"]
S1 = 2
for _ in range(3): g(fill.pop(0))
pc_wait(0xff, 0x22, 42, 48)
g("\n".join(pread(u) for u in range(S1)))
for u in range(S1):
    g(f"s_waitcnt lgkmcnt({S1-1-u})")
    for i in range(4):
        mfma(OA + 4 * i, PF + 4 * u, PVA + 16 * i + 4 * u, u == 0)
        for _ in range(2): g(fill.pop(0))
assert not fill
pc_wait(0xffff, 0x2222, 42, 48)
g("\n".join(pread(u) for u in range(S1, 4)))
g(f"s_cmp_lg_u32 s42, 0x2222\ns_cbranch_scc1 L_slow")
stamp(9)
for u in range(S1, 4):
    g(f"s_waitcnt lgkmcnt({3-u})")
    for i in range(4): mfma(OA + 4 * i, PF + 4 * u, PVA + 16 * i + 4 * u, u == 0)
g.label("L_pv2")
GR = 64
g("s_nop 6")
for a in range(2):
    A0, B0, T0 = GR + 4 * a, GR + 4 * a + 2, 72
    for d in range(2):
        g(f"v_perm_b32 v{A0+d}, v{OA+8*d+4+2*a}, v{OA+8*d+2*a}, s{sPHI}")
        g(f"v_perm_b32 v{B0+d}, v{OA+8*d+4+2*a+1}, v{OA+8*d+2*a+1}, s{sPHI}")
    g("s_nop 0")
    for d in range(2): g(f"v_mov_b32_dpp v{T0+d}, v{A0+d} row_ror:8 {DPPM}")
    for d in range(2): g(f"v_mov_b32_dpp v{A0+d}, v{B0+d} row_ror:8 row_mask:0xf bank_mask:0xc")
    for d in range(2): g(f"v_mov_b32_dpp v{B0+d}, v{T0+d} quad_perm:[0,1,2,3] row_mask:0xf bank_mask:0x3")
    for d in range(4): g(f"v_xad_u32 v{A0+d}, v{TP+d}, s44, v{A0+d}")
    for d in range(4): g(f"v_bfi_b32 v{A0+d}, s44, v{TP+d}, v{A0+d}")
    g(f"buffer_store_dwordx4 {vr(A0,4)}, v{IBV}, {sr(WS,4)}, s{26 if a == 0 else 22} offen sc1")
if OPT["wogate"] == 1 or OPT["forder"] == 5: lds_inc(F_H3)
stamp(10)
if OPT["pr0"]: g("s_setprio 0")
MK = 76
g(f"""v_and_b32 v12, 1, v{LANE}
      v_lshlrev_b32 v12, 4, v12
      v_mov_b32 v13, 0xffff
      v_lshlrev_b32 v13, v12, v13
      v_bfe_u32 v12, v{LANE}, 1, 2""")
for p in range(4):
    g(f"v_cmp_eq_u32 vcc, {p}, v12\ns_nop 1\nv_cndmask_b32 v{MK+p}, v{VZ}, v13, vcc")
g(f"""v_lshlrev_b32 v16, 2, v{vN}
      s_lshl_b32 s42, s{sWV}, 6
      v_add_u32 v16, s42, v16
      v_lshrrev_b32 v17, 3, v{LANE}
      v_lshlrev_b32 v17, 2, v17
      v_add_u32 v17, s42, v17
      v_lshrrev_b32 v18, 3, v{vN}             ; a = j>>3
      s_lshl_b32 s42, s{sWV}, 1
      v_add_u32 v19, s42, v18
      v_mul_u32_u24 v19, 144, v19
      v_and_b32 v20, 7, v{vN}
      v_lshl_add_u32 v19, v20, 4, v19
      v_and_b32 v20, 1, v{vKG}
      v_lshl_add_u32 v19, v20, 3, v19
      v_lshrrev_b32 v20, 1, v{vKG}
      v_cmp_eq_u32 s[46:47], v18, v20
      v_lshlrev_b32 v14, 3, v{LANE}           ; lane*8""")
if OPT["d3"]: g(f"s_sleep {OPT['d3']}")
stamp(22)
IR = 104
ib_loads = f"""buffer_load_dwordx4 {vr(IR,4)}, v{VL16}, {sr(WS,4)}, s30 offen sc1
      buffer_load_dwordx4 {vr(IR+4,4)}, v{VL16}, {sr(WS,4)}, s30 offen offset:1024 sc1"""
def hdr_poll(nm, off, dstoff, flag, after="", mark=False):
    L, Lo = g.nl(nm), g.nl(nm + "o")
    g(f"s_mov_b32 s43, {LIM_MEM}")
    if OPT["bkh"]:
        Lf = g.nl(nm + "f")
        g(f"s_branch {Lf}")
    g.label(L)
    if OPT["bkh"]:
        g(f"s_sleep {OPT['bkh']}")
        g.label(Lf)
    g(f"""s_load_dwordx16 s[52:67], s[24:25], {off} glc
          s_load_dwordx16 s[68:83], s[24:25], {off+64} glc
          s_sub_u32 s43, s43, 1
          s_cbranch_scc1 {Lo}
          s_waitcnt lgkmcnt(0)
          s_add_u32 s19, s53, s55""")
    for k in range(2, 16): g(f"s_add_u32 s19, s19, s{53+2*k}")
    g(f"s_cmp_eq_u32 s19, s18\ns_cbranch_scc0 {L}")
    g.label(Lo)
    g("s_waitcnt lgkmcnt(0)")
    if after: g(after)
    for k in range(16): g(f"v_writelane_b32 v24, s{52+2*k}, {k}")
    g("s_mov_b64 exec, 0xffff")
    if mark:
        g(f"""v_cmp_gt_i32 vcc, 0, v24
              s_cmp_lg_u64 vcc, 0
              s_cselect_b32 s42, 0x101, 1
              v_mov_b32 v25, s42""")
    g(f"""ds_write_b32 v16, v24 offset:{dstoff}
          s_mov_b64 exec, 1
          ds_add_u32 v{VZ}, v{25 if mark else VONE} offset:{flag}
          s_mov_b64 exec, -1""")
g(f"""s_add_u32 s24, s{WS}, s31
      s_addc_u32 s25, s{WS+1}, 0
      s_lshl_b32 s18, s{sTAG}, 4""")
for n in range(2):
    for p in range(4): g(f"v_and_b32 v{88+4*n+p}, 0x3f803f80, v{MK+p}")
if OPT["d3a"]: g(f"s_sleep {OPT['d3a']}")
if OPT["pr0"]: g("s_setprio 2")
hdr_poll("h3l", LOFF, LT, F_LT, after=(f"s_sleep {OPT['d3b']}\n" if OPT["d3b"] else "") + ib_loads, mark=True)
cnt(25, 43)
stamp(11)
pc_wait(0xff, 8, 42, 43, off=F_LT)
g("s_cmp_lg_u32 s42, 8\ns_cbranch_scc1 L_genw")
g.label("L_genw_ret")
L, Lo = g.nl("h3d"), g.nl("h3do")
g(f"s_mov_b32 s43, {LIM_MEM}")
g.label(L)
g(f"s_waitcnt vmcnt(0)\nv_xor_b32 v{VT}, v{IR}, v{TP}")
for k in range(1, 8): g(f"v_bitop3_b32 v{VT}, v{IR+k}, v{TP+(k&3)}, v{VT} bitop3:0xbe")
g(f"""v_and_b32 v{VT}, s44, v{VT}
      v_cmp_ne_u32 vcc, 0, v{VT}
      s_cbranch_vccz {Lo}
      s_sub_u32 s43, s43, 1
      s_cbranch_scc1 {Lo}
      s_lshr_b64 s[48:49], vcc, 4
      s_or_b64 vcc, vcc, s[48:49]
      s_lshr_b64 s[48:49], vcc, 2
      s_or_b64 vcc, vcc, s[48:49]
      s_lshr_b64 s[48:49], vcc, 1
      s_or_b64 vcc, vcc, s[48:49]
      s_and_b32 s48, vcc_lo, 0x01010101
      s_and_b32 s49, vcc_hi, 0x01010101
      s_mul_i32 exec_lo, s48, 0xff
      s_mul_i32 exec_hi, s49, 0xff
      s_sleep {OPT["bk3"]}
      {ib_loads}
      s_branch {L}""")
g.label(Lo)
g("s_mov_b64 exec, -1")
cnt(26, 43)
stamp(12)
mfma(96, 88, IR, True)
mfma(96, 92, IR + 4, False)
g(f"""s_nop 7
      v_cvt_pk_bf16_f32 v100, v96, v97
      v_cvt_pk_bf16_f32 v101, v98, v99
      s_mov_b64 exec, s[46:47]
      ds_write_b64 v19, v[100:101] offset:{RIB}
      s_mov_b64 exec, 1
      ds_add_u32 v{VZ}, v{VONE} offset:{F_IB}
      s_mov_b64 exec, -1""")
stamp(13)
g(f"""s_cmp_lt_u32 s{sWG}, 20
      s_cbranch_scc0 L_A_end
      s_lshl_b32 s41, s{sWG}, 14
      s_lshl_b32 s42, s{sWV}, 11
      s_add_u32 s41, s41, s42
      s_add_u32 s41, s41, {SM}
      v_and_b32 v7, 7, v{LANE}
      v_lshlrev_b32 v7, 2, v7
      v_lshrrev_b32 v6, 5, v{LANE}
      v_lshl_add_u32 v7, v6, 1, v7
      v_and_b32 v6, 1, v{vKG}
      v_add_u32 v7, v7, v6
      v_lshlrev_b32 v18, 5, v7
      s_lshl_b32 s42, s{sWV}, 2
      v_add_u32 v6, s42, v18
      v_lshlrev_b32 v7, 1, v7
      s_lshl_b32 s55, s{sWG}, 6""")
tagbytes()
def red8(b):
    g(f"""s_nop 1
          v_permlane32_swap_b32 v{b}, v{b+2}
          v_permlane32_swap_b32 v{b+1}, v{b+3}
          v_pk_add_f32 {vr(b,2)}, {vr(b,2)}, {vr(b+2,2)}
          s_nop 1
          v_permlane16_swap_b32 v{b}, v{b+1}
          v_add_f32 v{b}, v{b}, v{b+1}
          s_nop 1
          v_add_f32_dpp v{b}, v{b}, v{b} row_ror:8 {DPPM}""")
g(f"""s_cmp_eq_u32 s{sWV}, 0
      s_cbranch_scc0 L_fin_s""")
srd(SR, P_X, 1280)
g(f"""buffer_load_ushort v16, v7, {sr(SR,4)}, s55 offen
      s_lshl_b32 s40, s{sWG}, 12
      s_add_u32 s40, s40, {YM}""")
for d in range(4): g(f"v_mov_b32 v{60+d}, s{sTB+d}\nv_and_b32 v{60+d}, 0xff, v{60+d}")
poll_loads("h7", f"""buffer_load_dwordx4 v[48:51], v{VL16}, {sr(WS,4)}, s40 offen sc1
      buffer_load_dwordx4 v[52:55], v{VL16}, {sr(WS,4)}, s40 offen offset:1024 sc1
      buffer_load_dwordx4 v[56:59], v{VL16}, {sr(WS,4)}, s40 offen offset:2048 sc1
      s_mov_b64 exec, 0xffffff
      buffer_load_dwordx4 v[60:63], v{VL16}, {sr(WS,4)}, s40 offen offset:3072 sc1
      s_mov_b64 exec, -1""", [48, 52, 56, 60], 43, sleep=4, mask=False, b8=True)
sum_groups(48, 4)
red8(48)
rne(48)
g(f"""v_mul_f32 v49, {hex(f32(-math.log2(math.e)))}, v48
      v_exp_f32 v49, v49
      s_nop 0
      v_add_f32 v49, 1.0, v49
      v_rcp_f32 v49, v49
      s_nop 0
      v_mul_f32 v48, v48, v49""")
rne(48)
g("v_lshlrev_b32 v20, 16, v16")
stamp(19)
g.label("L_fin_s")
lds_wait(F_SD, 4 - OPT["w8x3"], 42, sleep=1)
if OPT["d5"]: g(f"s_sleep {OPT['d5']}")
poll_loads("h5", f"""buffer_load_dwordx4 v[32:35], v{VL16}, {sr(WS,4)}, s41 offen sc1
      buffer_load_dwordx4 v[36:39], v{VL16}, {sr(WS,4)}, s41 offen offset:1024 sc1""", [32, 36], 43, sleep=OPT["bk5"], b8=True)
cnt(27, 43)
stamp(20)
sum_groups(32, 2)
red8(32)
g(f"""ds_write_b32 v6, v32 offset:{RFIN}
      s_mov_b64 exec, 1
      ds_add_u32 v{VZ}, v{VONE} offset:{F_FIN}
      s_mov_b64 exec, -1
      s_cmp_eq_u32 s{sWV}, 0
      s_cbranch_scc0 L_A_end""")
srd(44, P_OUT, 1280)
lds_wait(F_FIN, 8, 42, extra=f"ds_read_b128 v[32:35], v18 offset:{RFIN}\nds_read_b128 v[36:39], v18 offset:{RFIN+16}")
sum_groups(32, 2)
g("v_pk_add_f32 v[32:33], v[32:33], v[34:35]\nv_add_f32 v32, v32, v33")
rne(32)
g("v_mul_f32 v32, v32, v48")
rne(32)
g(f"""v_add_f32 v32, v32, v20
      v_cvt_pk_bf16_f32 v32, v32, v32
      buffer_store_short v32, v7, {sr(44,4)}, s55 offen {'sc1' if OPT['osc'] else ''}
      s_cmp_eq_u32 s{sWG}, 0
      s_cbranch_scc0 L_noep
      s_mov_b64 exec, 1
      v_mov_b32 v13, s{sTAG}
      buffer_store_dword v13, v{VZ}, {sr(WS,4)}, 0 offen offset:{EPOCH} sc1""")
g.label("L_noep")
stamp(21)
g.label("L_A_end")
ts_flush()
g("s_endpgm")
g.label("L_genw")
hdr_poll("h3m", 0, MLT, F_ML)
lds_wait(F_ML, 8, 42)
g(f"""ds_read_b64 v[24:25], v14 offset:{MLT}
      ds_read_b32 v8, v17 offset:{MLT}
      ds_read_b32 v9, v17 offset:{MLT+32}
      s_waitcnt lgkmcnt(0)""")
global_max(22, 24)
g(f"""v_sub_f32 v8, v8, v22
      v_sub_f32 v9, v9, v22
      v_exp_f32 v8, v8
      v_exp_f32 v9, v9
      s_nop 0
      v_cvt_pk_bf16_f32 v8, v8, v8
      v_cvt_pk_bf16_f32 v9, v9, v9""")
for n in range(2):
    for p in range(4): g(f"v_and_b32 v{88+4*n+p}, v{8+n}, v{MK+p}")
g("s_branch L_genw_ret")
g.label("L_slow")
g(f"""v_mov_b32 v8, v9
      v_lshlrev_b32 v6, 5, v{vN}
      s_lshl_b32 s42, s{sWV}, 2
      v_add_u32 v29, s42, v6
      s_mov_b32 s43, 0x3f803f80
      v_permlane16_swap_b32 v9, v8
      v_max_f32 v9, v9, v8
      v_mov_b32 v8, v9
      s_nop 1
      v_permlane32_swap_b32 v9, v8
      v_max_f32 v9, v9, v8
      s_mov_b64 exec, 0xffff
      ds_write_b32 v29, v9 offset:{RMX}
      s_mov_b64 exec, 1
      ds_add_u32 v{VZ}, v{VONE} offset:{F_MAX}
      s_mov_b64 exec, -1""")
lds_wait(F_MAX, 8, 42, extra=f"ds_read_b128 v[12:15], v6 offset:{RMX}\nds_read_b128 v[16:19], v6 offset:{RMX+16}")
g(f"""v_max3_f32 v{VM}, v12, v13, v14
      v_max3_f32 v16, v15, v16, v17
      v_max3_f32 v{VM}, v{VM}, v18, v19
      v_max_f32 v{VM}, v{VM}, v16""")
for r in range(4): g(f"v_sub_f32 v{SA+r}, v{SA+r}, v{VM}")
for r in range(4): g(f"v_exp_f32 v{SA+r}, v{SA+r}")
g(f"""v_lshlrev_b32 v15, {HS}, v{vN}
      v_cvt_pk_bf16_f32 v12, v{SA}, v{SA+1}
      v_cvt_pk_bf16_f32 v13, v{SA+2}, v{SA+3}
      ds_write_b64 v7, v[12:13] offset:{PL}""")
lds_inc(F_P)
lds_wait(F_P, 8, 42)
g("\n".join(pread(u) for u in range(4)))
g("v_mov_b32 v12, 0\nv_mov_b32 v14, 0\ns_waitcnt lgkmcnt(0)")
for u in range(4):
    for i in range(4):
        mfma(OA + 4 * i, PF + 4 * u, PVA + 16 * i + 4 * u, u == 0)
        g(f"v_dot2c_f32_bf16 v{12+2*(i&1)}, s43, v{PF+4*u+i}")
def lsum():
    g(f"""v_mov_b32 v13, s{sTAG}
          v_mov_b32 v11, s{sTAG}
          s_nop 0
          v_add_f32 v12, v12, v14
          v_mov_b32 v14, v12
          s_nop 1
          v_permlane16_swap_b32 v12, v14
          v_add_f32 v12, v12, v14
          v_mov_b32 v14, v12
          s_nop 1
          v_permlane32_swap_b32 v12, v14
          v_add_f32 v12, v12, v14""")
lsum()
g(f"""v_or_b32 v12, 0x80000000, v12
      s_cmp_eq_u32 s{sWV}, 0
      s_cbranch_scc0 L_pv2
      s_mov_b64 exec, 0xffff
      buffer_store_dwordx2 v[10:11], v15, {sr(WS,4)}, s27 offen sc1
      buffer_store_dwordx2 v[12:13], v15, {sr(WS,4)}, s23 offen sc1
      s_mov_b64 exec, -1
      s_branch L_pv2""")

KORD = (0, 2, 1, 3)
TH = OPT["gthr"]
def wo_setup():
    g(f"""v_mul_u32_u24 v6, {8*1280}, v{vKG}
          v_lshl_add_u32 v6, v{vN}, 3, v6
          s_lshl_b32 s40, s{sHF}, 7
          s_lshr_b32 s41, s{sJ}, 1
          s_lshl_b32 s41, s41, 5
          s_add_u32 s40, s40, s41
          s_mul_i32 s40, s40, 1280
          s_and_b32 s41, s{sJ}, 1
          s_mul_i32 s41, s41, 640
          s_add_u32 s48, s40, s41""")
    srd(44, P_WO, 5242880)

def wo_gate():
    if OPT["wogate"] == 1: lds_wait(F_H3, 8, 40, sleep=1)
    elif OPT["wogate"] == 2: lds_wait(F_IB, 1, 40, sleep=2)

def h4_setup():
    g(f"""v_and_b32 v31, 7, v{vN}
          v_lshlrev_b32 v29, 7, v31
          v_lshl_add_u32 v29, v{vKG}, 5, v29
          s_lshl_b32 s50, s{sHF}, 2
          s_lshr_b32 s51, s{sJ}, 1
          s_add_u32 s50, s50, s51                 ; p = h*4+dq
          s_lshl_b32 s61, s50, 10
          s_add_u32 s61, s61, {CXM}
          v_lshrrev_b32 v30, 3, v{vN}
          v_lshlrev_b32 v30, 14, v30
          v_lshl_add_u32 v30, v31, 4, v30         ; (n>>3)*16K + (n&7)*16
          v_mov_b32 v31, 0xff
          s_and_b32 s41, s{sJ}, 1
          s_mul_i32 s41, s41, {10*16384}
          s_lshl_b32 s50, s50, 7
          s_add_u32 s50, s50, s41
          s_add_u32 s50, s50, {SM}""")
    tagbytes()

def h4_warm(A, cbks):
    g(f"buffer_load_dwordx4 {vr(A,4)}, v29, {sr(WS,4)}, s61 offen sc1")
    for cbk in cbks:
        g(f"""s_add_u32 s51, s50, {cbk*2*16384}
              buffer_load_dwordx4 {vr(A+4,4)}, v30, {sr(WS,4)}, s51 offen sc1""")

def h4_wait(A, late=""):
    Ls = g.nl("h4s")
    onfail = f"""s_cmp_lg_u32 s43, {LIM_MEM-32}
          s_cbranch_scc1 {Ls}
          {late}
          {Ls}:""" if (OPT["fast4"] and late) else ""
    poll_loads("h4", f"""buffer_load_dwordx4 {vr(A,4)}, v29, {sr(WS,4)}, s61 offen sc1
          buffer_load_dwordx4 {vr(A+4,4)}, v29, {sr(WS,4)}, s61 offen offset:16 sc1""", [A+1, A+3, A+5, A+7], 43, sleep=OPT["bk4"], onfail=onfail)
    g(f"v_mov_b32 v{A+1}, v{A+4}\nv_mov_b32 v{A+3}, v{A+6}\ns_nop 1")

def rl_wait():
    lds_wait(F_RLV, 1, 40, extra=f"ds_read_b32 v28, v{VZ} offset:{RLINV}")

def wo_compute(A, frags, cbks, D):
    for bi, fr in enumerate(frags):
        for t in range(4): mfma(D + 16 * bi + 4 * t, A, fr + 4 * t, True)
    g("s_nop 4" if len(frags) == 1 else "s_nop 0")
    for bi, cbk in enumerate(cbks):
        d = D + 16 * bi
        for t in range(4): g(f"v_pk_add_f32 {vr(d+4*t,2)}, {vr(d+4*t,2)}, {vr(d+4*t+2,2)}")
        for t in range(4): g(f"v_add_f32 v{16+t}, v{d+4*t}, v{d+4*t+1}")
        for t in range(4): g(f"v_mov_b32 v{20+t}, v{16+t}")
        g(f"s_add_u32 s51, s50, {cbk*2*16384}")
        for t in range(4): g(f"v_permlane16_swap_b32 v{16+t}, v{20+t}")
        g("v_pk_add_f32 v[16:17], v[16:17], v[20:21]\nv_pk_add_f32 v[18:19], v[18:19], v[22:23]")
        for t in range(4): g(f"v_mul_f32 v{d+t}, v{16+t}, v28")
        tagput([d, d+1, d+2, d+3], 31)
        g(f"""s_mov_b64 exec, 0xffff
              buffer_store_dwordx4 {vr(d,4)}, v30, {sr(WS,4)}, s51 offen sc1
              s_mov_b64 exec, -1""")
    lds_inc(F_SD)

def b1_gate():
    if OPT["b1gate"]:
        land_flush()
        lds_wait(F_STG, OPT['b1gate'], 40, sleep=2)

g.label("L_G")
if OPT["ldw"]: g(f"s_sleep {OPT['ldw']}")
get_tag(6)
g(f"""s_cmp_eq_u32 s{sWV}, 10
      s_cbranch_scc1 L_G_uv10""")
LD.pending = False
wo_setup(); h4_setup()
b1_gate()
if OPT["wogate"]: land_flush()
wo_gate()
stamp(4)
load_block(32, 6, 44, 48, 42, 1280, TH)
g("s_add_u32 s49, s48, 128")
load_block(48, 6, 44, 49, 42, 1280, TH)
X3 = OPT["w8x3"]
if X3:
    g("s_add_u32 s49, s48, 512")
    load_block(144, 6, 44, 49, 42, 1280, TH)
land_flush()
g(f"s_waitcnt vmcnt({8+8*X3})")
perm_block(32, 64, KORD)
g(f"s_waitcnt vmcnt({8*X3})")
perm_block(48, 80, KORD)
if X3:
    g("s_waitcnt vmcnt(0)")
    perm_block(144, 32, KORD)
h4_warm(8, [0, 1] + [4] * X3)
stamp(5)
g(f"""v_lshlrev_b32 v16, 3, v{LANE}
""")
g("v_mov_b32 v20, 1.0\nv_mov_b32 v21, 1.0")
lds_wait(F_LT, 1, 40, sleep=1)
g("s_setprio 2")
pc_wait(0xff, 8, 40, 41, off=F_LT, extra=f"ds_read_b64 v[24:25], v16 offset:{LT}")
g("s_cmp_eq_u32 s40, 8\ns_cbranch_scc1 L_unitw")
lds_wait(F_ML, 8, 40)
g(f"ds_read_b64 v[20:21], v16 offset:{MLT}\ns_waitcnt lgkmcnt(0)")
global_max(22, 20)
g(f"""v_sub_f32 v20, v20, v22
      v_sub_f32 v21, v21, v22
      v_exp_f32 v20, v20
      v_exp_f32 v21, v21
      s_nop 0""")
rne(20); rne(21)
g.label("L_unitw")
g("v_mul_f32 v24, abs(v24), v20\nv_fma_f32 v24, abs(v25), v21, v24")
wave_sum(24, 40)
g(f"""s_nop 1
      v_rcp_f32 v24, s40
      s_nop 0
      ds_write_b32 v{VZ}, v24 offset:{RLINV}
      ds_write_b32 v{VZ}, v{VONE} offset:{F_RLV}
      v_mov_b32 v28, v24""")
lds_wait(F_IB, 8, 40, sleep=1)
h4_wait(8)
stamp(6)
wo_compute(8, [64, 80] + [32] * X3, [0, 1] + [4] * X3, 96)
stamp(7)
g("s_branch L_G_end")

def uv_loads():
    g(f"""v_lshlrev_b32 v7, 13, v{vKG}
          v_lshl_add_u32 v7, v{vN}, 3, v7
          s_lshl_b32 s56, s{sJ}, 17               ; 16j rows
          s_lshl_b32 s41, s{sHF}, 8
          s_add_u32 s56, s56, s41
          s_sub_u32 s52, s{sWV}, 9                ; colhalf
          s_lshl_b32 s41, s52, 7
          s_add_u32 s56, s56, s41
          s_add_u32 s57, s56, {4*8192}""")
    srd(SR, P_WUV, 4194304)
    b1_gate()
    stamp(4)
    rows = [128 * (e & 3) + 8 * (e >> 2) for e in range(8)]
    load_block(32, 7, SR, 56, 42, 8192, TH, rows)
    load_block(48, 7, SR, 57, 42, 8192, TH, rows)
g.label("L_G_uv10")
g.label("L_G_uv9")
LD.pending = False
uv_loads()
g.label("L_G_uv")
wo_setup(); h4_setup()
g(f"""s_add_u32 s49, s52, 2
      s_mul_i32 s53, s49, {2*16384}
      s_add_u32 s50, s50, s53
      s_lshl_b32 s49, s49, 7
      s_add_u32 s49, s49, s48
      v_and_b32 v7, 7, v{vN}
      v_mul_u32_u24 v8, 144, v{vN}
      v_lshl_add_u32 v8, v{vKG}, 4, v8
      v_lshlrev_b32 v9, 4, v{LANE}
      v_lshrrev_b32 v11, 3, v{vN}
      v_lshlrev_b32 v11, 10, v11
      v_lshl_add_u32 v11, v7, 4, v11          ; (n>>3)*1024 + (n&7)*16
      s_lshl_b32 s40, s{sHF}, 2
      s_lshl_b32 s41, s52, 1
      s_add_u32 s40, s40, s41
      s_lshl_b32 s40, s40, 3
      s_add_u32 s40, s40, s{sJ}
      s_lshl_b32 s40, s40, 7
      s_add_u32 s54, s40, {CXM}""")
if not OPT["wogate"]:
    load_block(64, 6, 44, 49, 42, 1280, TH)
    h4_warm(16, [0])
g(f"""s_cmp_eq_u32 s{sWV}, 9
      s_cbranch_scc0 L_nohd
      s_and_b32 s56, s{sSLOT}, 1
      s_lshl_b32 s56, s56, {HS-3}
      s_add_u32 s56, s56, s{sXCD}
      s_lshl_b32 s56, s56, 4
      s_lshr_b32 s57, s{sSLOT}, 1
      s_add_u32 s56, s56, s57
      s_lshl_b32 s56, s56, 3
      s_add_u32 s56, s56, {HD}
      s_add_u32 s57, s56, {LOFF}
      v_lshlrev_b32 v15, {HS}, v{vN}
      v_mov_b32 v24, 0
      v_mov_b32 v25, s{sTAG}
      v_mov_b32 v12, 0
      v_mov_b32 v14, 0
      v_mov_b32 v26, v11
      s_mov_b32 s58, 0x3f803f80""")
pc_wait(0xfff, 0x222, 40, 41, sleep=1)
g(f"s_setprio {OPT['hp']}")
pc_wait(0xffff, 0x2222, 40, 41)
g(f"""s_cmp_lg_u32 s40, 0x2222
      s_cbranch_scc1 L_nohd2""")
g("\n".join(f"ds_read_b128 {vr(128+4*u,4)}, v9 offset:{PL+1024*u}" for u in range(4)))
for u in range(4):
    g(f"s_waitcnt lgkmcnt({3-u})")
    for i in range(4): g(f"v_dot2c_f32_bf16 v{12+2*(i&1)}, s58, v{128+4*u+i}")
lsum()
if OPT["dl"]: g(f"s_sleep {OPT['dl']}")
g(f"""s_mov_b64 exec, 0xffff
      buffer_store_dwordx2 v[12:13], v15, {sr(WS,4)}, s57 offen sc1
      buffer_store_dwordx2 v[24:25], v15, {sr(WS,4)}, s56 offen sc1
      s_mov_b64 exec, -1""")
stamp(10)
g.label("L_nohd2")
g(f"""v_mov_b32 v11, v26
      s_setprio 0
      {"s_waitcnt vmcnt(2)" if not OPT["wogate"] else ""}""")
g.label("L_nohd")
if OPT["wogate"]:
    wo_gate()
    load_block(64, 6, 44, 49, 42, 1280, TH)
    h4_warm(16, [0])
g("s_waitcnt vmcnt(18)")
perm_block(32, 80)
g("s_waitcnt vmcnt(10)")
perm_block(48, 96)
g(f"v_mov_b32 v61, s{sTAG}\nv_mov_b32 v63, s{sTAG}")
g("s_waitcnt vmcnt(0)")
perm_block(64, 112, KORD)
stamp(5)
lds_wait(F_LT, 8, 40, sleep=2)
rl_wait()
g("s_setprio 3")
lds_wait(F_IB, 8, 40)
g(f"""ds_read_b128 v[32:35], v8 offset:{RIB}
      ds_read_b128 v[36:39], v8 offset:{RIB+64}""")
stamp(6)
D = 128
for blk in range(2):
    g(f"s_waitcnt lgkmcnt({1-blk})")
    for t in range(4): mfma(D + 4 * t, 32 + 4 * blk, 80 + 16 * blk + 4 * t, blk == 0)
g("s_nop 4")
for t in range(4): g(f"v_pk_add_f32 {vr(D+4*t,2)}, {vr(D+4*t,2)}, {vr(D+4*t+2,2)}")
for t in range(4): g(f"v_add_f32 v{16+t}, v{D+4*t}, v{D+4*t+1}")
g(f"""s_nop 0
      v_permlane32_swap_b32 v16, v18
      v_permlane32_swap_b32 v17, v19
      v_pk_add_f32 v[16:17], v[16:17], v[18:19]
      v_mov_b32 v18, v16
      v_mov_b32 v19, v17
      s_nop 0
      v_permlane16_swap_b32 v16, v18
      v_permlane16_swap_b32 v17, v19
      v_pk_add_f32 v[16:17], v[16:17], v[18:19]
      v_cvt_pk_bf16_f32 v60, v16, v17
      v_mov_b32 v62, v60
      s_nop 1
      v_permlane32_swap_b32 v60, v62""")
g(f"""s_mov_b64 exec, 0xffff
      buffer_store_dwordx4 v[60:63], v11, {sr(WS,4)}, {"s54 offen" if OPT["fast4"] else "s54 offen sc1"}
      s_mov_b64 exec, -1""")
stamp(7)
late = f"s_mov_b64 exec, 0xffff\nbuffer_store_dwordx4 v[60:63], v11, {sr(WS,4)}, s54 offen sc1"
h4_wait(32, late)
stamp(8)
wo_compute(32, [112], [0], 128)
if OPT["fast4"]: g(f"s_sleep {OPT['d4']}\n" + late + "\ns_mov_b64 exec, -1")
stamp(9)
g("s_branch L_G_end")

g.label("L_FFNb")
PEND = OPT["fgate"] != 9 and not OPT["uk6"]
if OPT["remap"]:
    g(f"""s_and_b32 s40, s{sXCD}, 1
          s_lshl_b32 s62, s{sSLOT}, 1
          s_add_u32 s62, s62, s40                 ; u in 0..63
          s_lshr_b32 s63, s{sXCD}, 1              ; mq""")
else:
    g(f"""s_lshr_b32 s40, s{sSLOT}, 3             ; hq
      s_lshl_b32 s40, s40, 1
      s_and_b32 s41, s{sJ}, 1
      s_add_u32 s40, s40, s41
      s_lshl_b32 s40, s40, 3
      s_add_u32 s62, s40, s{sXCD}             ; u in 0..63
      s_lshr_b32 s63, s{sJ}, 1                ; mq""")
g(f"""v_and_b32 v31, 1, v{vKG}
      v_cmp_eq_u32 s[56:57], 1, v31
      s_cmp_lt_u32 s62, 27
      s_cbranch_scc0 L_FFN2""")
LD.pending = PEND; LD.n = 0
g(f"""v_mul_u32_u24 v28, {8*3456}, v{vKG}
      v_lshl_add_u32 v28, v{vN}, 3, v28
      v_lshlrev_b32 v7, 4, v{vKG}
      s_mul_i32 s58, s63, 320
      v_add_u32 v7, s58, v7
      s_mul_i32 s58, s63, {160*3456}
      s_lshl_b32 s41, s62, 7
      s_add_u32 s58, s58, s41""")
srd(SR, P_W1, 2211840)
stamp(4)
for b in range(5):
    if b: g(f"s_add_u32 s58, s58, {32*3456}")
    load_block(48 + 16 * b, 28, SR, 58, 42, 3456, OPT['fthr'])
land_flush()
D = 144
get_tag(6)
lds_wait(F_XN, 1, 40)
for b in range(5): g(f"ds_read_b128 {vr(XF+4*b,4)}, v7 offset:{XNL+64*b}")
g("s_waitcnt lgkmcnt(0)")
for b in range(5):
    g(f"s_waitcnt vmcnt({8*(4-b)})")
    perm_block(48 + 16 * b, 32 + 16 * b)
    g("s_nop 1")
    for t in range(4): mfma(D + 4 * t, XF + 4 * b, 32 + 16 * b + 4 * t, b == 0)
g(f"""v_lshlrev_b32 v28, 4, v{LANE}
      s_nop 0
      s_lshl_b32 s40, s62, 2
      s_add_u32 s40, s40, s63
      s_lshl_b32 s40, s40, 9
      s_add_u32 s40, s40, {HM}
      v_mov_b32 v9, s{sTAG}
      v_mov_b32 v11, s{sTAG}
      s_nop 1
      v_cndmask_b32 v8, v{D}, v{D+8}, s[56:57]
      v_cndmask_b32 v10, v{D+4}, v{D+12}, s[56:57]
      s_mov_b32 exec_hi, 0
      buffer_store_dwordx4 v[8:11], v28, {sr(WS,4)}, s40 offen sc1
      s_mov_b64 exec, -1
      s_branch L_FFNe""")
g.label("L_FFN2")
g(f"""s_mul_i32 s40, s63, 37
      s_add_u32 s40, s40, s62
      s_sub_u32 s58, s40, 27
      s_cmp_lt_u32 s58, 135
      s_cbranch_scc1 L_FFN2a""")
LD.pending = PEND; LD.n = 0
land_flush()
get_tag(6)
g("s_branch L_FFNe")
g.label("L_FFN2a")
LD.pending = PEND; LD.n = 0
g(f"""s_mul_i32 s59, s58, 205
      s_lshr_b32 s59, s59, 10                 ; fb = v/5
      s_mul_i32 s60, s59, 5
      s_sub_u32 s60, s58, s60                 ; mb
      v_mul_u32_u24 v28, {8*1280}, v{vKG}
      v_lshl_add_u32 v28, v{vN}, 3, v28
      s_mul_i32 s58, s59, {64*1280}
      s_lshl_b32 s41, s60, 8
      s_add_u32 s58, s58, s41""")
srd(SR, P_W2, 2211840)
if OPT["forder"] >= 2:
    land_flush()
    if OPT["forder"] == 2: lds_wait(F_ISS, 2, 40, sleep=2)
    if OPT["forder"] == 3: lds_wait(F_STG, 8, 40, sleep=2)
    if OPT["forder"] == 4: pc_wait(0xff, 8, 40, 41, off=F_LT, sleep=2)
stamp(4)
for ch in range(2):
    for blk in range(2):
        g(f"s_add_u32 s41, s58, {blk*32*1280 + ch*128}")
        load_block(48 + 16 * (2 * ch + blk), 28, SR, 41, 42, 1280, OPT['fthr2'])
land_flush()
get_tag(6)
for b in range(4):
    g(f"s_waitcnt vmcnt({8*(3-b)})")
    perm_block(48 + 16 * b, 32 + 16 * b)
g(f"""v_lshrrev_b32 v28, 2, v{vN}
      v_lshlrev_b32 v28, 9, v28
      v_lshl_add_u32 v28, v{vKG}, 5, v28
      v_bfe_u32 v29, v{vN}, 1, 1
      v_lshl_add_u32 v28, v29, 4, v28
      v_and_b32 v29, 1, v{vN}
      v_lshl_add_u32 v28, v29, 8, v28
      s_lshl_b32 s40, s59, 11
      s_add_u32 s40, s40, {HM}""")
poll_loads("h6", f"""buffer_load_dwordx4 v[8:11], v28, {sr(WS,4)}, s40 offen sc1
      buffer_load_dwordx4 v[12:15], v28, {sr(WS,4)}, s40 offen offset:128 sc1""", [9, 11, 13, 15], 43, sleep=6)
for mod in ("row_ror:4", "row_ror:8"):
    for r in (8, 10, 12, 14): g(f"v_add_f32_dpp v{r}, v{r}, v{r} {mod} {DPPM}")
for r in (8, 10, 12, 14): g(f"v_max_f32 v{r}, 0, v{r}")
g("v_cvt_pk_bf16_f32 v8, v8, v10\nv_cvt_pk_bf16_f32 v12, v12, v14\ns_nop 1")
for blk in range(2):
    for p in range(4):
        g(f"v_mov_b32_dpp v{16+4*blk+p}, v{8+4*blk} quad_perm:[{p},{p},{p},{p}] {DPPM}")
g("s_nop 1")
D = 96
for ch in range(2):
    for blk in range(2):
        for t in range(4): mfma(D + 16 * ch + 4 * t, 16 + 4 * blk, 32 + 16 * (2 * ch + blk) + 4 * t, blk == 0)
g(f"""v_lshrrev_b32 v28, 3, v{vN}
      v_lshlrev_b32 v28, 12, v28
      v_and_b32 v29, 7, v{vN}
      v_lshl_add_u32 v28, v29, 4, v28
      v_mov_b32 v29, 0xff
      s_lshl_b32 s40, s60, 14
      s_lshl_b32 s41, s59, 7
      s_add_u32 s40, s40, s41
      s_add_u32 s40, s40, {YM}
      s_add_u32 s41, s40, {2*4096}""")
tagbytes()
for ch in range(2):
    for t in range(4): g(f"v_bfi_b32 v{8+4*ch+t}, v29, s{sTB+t}, v{D+16*ch+4*t}")
g(f"""s_mov_b64 exec, 0xffff
      buffer_store_dwordx4 v[8:11], v28, {sr(WS,4)}, s40 offen sc1
      buffer_store_dwordx4 v[12:15], v28, {sr(WS,4)}, s41 offen sc1
      s_mov_b64 exec, -1""")
g.label("L_FFNe")
stamp(5)
if OPT["w8x3"]: g("s_branch L_G_end")
wo_setup(); h4_setup()
g("s_add_u32 s49, s48, 512")
if OPT["uvgate"] == 3: land_wait(4, 40, 24, sleep=1)
else: lds_wait(F_ISS, 2, 40, sleep=2)
b1_gate()
wo_gate()
load_block(128, 6, 44, 49, 42, 1280, TH)
g("s_waitcnt vmcnt(0)")
perm_block(128, 32, KORD)
h4_warm(8, [4])
lds_wait(F_LT, 8, 40, sleep=2)
rl_wait()
lds_wait(F_IB, 8, 40, sleep=1)
g("s_setprio 2")
h4_wait(8)
stamp(6)
wo_compute(8, [32], [4], 48)
stamp(7)
g.label("L_G_end")
if OPT["pad"]:
    g(f"""v_readfirstlane_b32 s40, v{VTS}
          s_cmp_lt_u32 s{sWG}, 8
          s_cbranch_scc0 L_END
          s_add_u32 s40, s40, {OPT["pad"]}""")
    if OPT["padmin"]:
        g(f"""s_load_dwordx2 s[44:45], s[0:1], 80
          s_mov_b32 s46, 256
          s_mov_b32 s47, 0x20000
          v_not_b32 v8, v{VTS}
          s_mov_b64 exec, 1
          s_waitcnt lgkmcnt(0)
          buffer_atomic_umax v8, v{VZ}, s[44:47], 0 offen
          s_waitcnt vmcnt(0)
          s_sleep 100
          buffer_load_dword v8, v{VZ}, s[44:47], 0 offen sc1
          s_waitcnt vmcnt(0)
          v_not_b32 v8, v8
          s_nop 1
          v_readfirstlane_b32 s40, v8
          s_nop 3
          s_add_u32 s40, s40, {OPT["pad"]}""")
    g(f"""L_padl:
          s_memrealtime s[42:43]
          s_waitcnt lgkmcnt(0)
          s_sub_u32 s41, s42, s40
          s_cmp_lt_i32 s41, 0
          s_cbranch_scc1 L_padl""")
ts_flush("G")
g.label("L_END")
g("s_endpgm")
g.l.append(".p2align 12")
g.label("L_CODE_END")

s = file_head([f"; @launch grid=(256,1,1) block=(768,1,1) lds={LDS_BYTES}"])
s += f""".text
.globl {K}
.p2align 12
.type {K},@function
{K}:
"""
s += g.text()
s += kernel_desc(K, 168, 102)
open(OUT, "w").write(s)
print(OUT, "lines", len(g.l), "ws_end", hex(WS_END))
```

```python
import sys, math, struct
from asmlib import *

OPT = dict(ts=0, stop=99, inflight=16, gate=12, ksmap=1, gthr=32, wogate=0, b1gate=0, pol=1, h2iss=2, amax=0, bk2=4, bk3=2, dbg=0, bk4=0, bk5=3, d3=0, d3b=0, d1=8, d5=8, fast4=1, warm=1, pad=0, padmin=0, padat=-1, padw=0, tlb=0, remap=1, nrep=4, qs=14, kvt=0, uk6=1, vt=0, pr0=1, hp=3, inf2=0, split=2, w8x3=0, pkv=-1, pwq=-1, puk=-1, puv=-1, pwo=-1, pw1=-1, pw2=-1, d2=8, fgate=2, fthr=32, ukgate=0, h2land=3, forder=0, fast1=0, dh=8, ldw=0, d3a=12, hl=0, rng=64, dl=8, uvgate=0, bkh=4, st1=2, osc=1, d4=14, recl=1, rot=5, fthr2=32)
for a in sys.argv[2:]:
    k, v = a.split("=")
    assert k in OPT and k != "fast1", k
    OPT[k] = int(v)
OUT = sys.argv[1] if len(sys.argv) > 1 else "k.s"
POLS = {0: "", 1: "nt", 2: "sc1", 3: "sc1 nt", 4: "sc0 sc1", 5: "sc0 sc1 nt", 6: "sc0", 7: "sc0 nt"}
def pol(name): return POLS[OPT[name] if OPT[name] >= 0 else OPT["pol"]]
CUR = {"p": "pwq"}

def f32(x): return struct.unpack("<I", struct.pack("<f", x))[0]

EPOCH = 0
QM   = 0x1000
QS = OPT["qs"]
if QS == 14:
    HD, HS, LOFF = QM + 0x80000, 10, 0x8000
    QAM = HD + 0x10000
else:
    HD, HS, LOFF = QM + 0x4000, QS, 0x400
    QAM = QM + (32 << QS)
CXM  = QAM + 0x10000
HM   = CXM + 0x20000
YM   = HM + 0x10000
SM   = YM + 20 * 4096
IB   = SM + 20 * 16384
WS_END = IB + 256 * 8 * 2048
TSOFF = 0x1000000
WS_REC = 0x2000000 if (OPT["ts"] and not OPT["dbg"]) else WS_END

(F_Q, F_QA, F_LAND, F_ISS, F_H2I, F_STG, F_MAX, F_P, F_IB, F_UK, F_TAG, F_TAGV, F_QP, F_QI, F_SD, F_FIN) = [4 * i for i in range(16)]
RMAX = 0x40
RL   = 0x80
F_H3, F_ML, F_QAP, F_XN, F_L, F_RLV, RLINV, F_LT, F_LA, F_LB, F_WQ, F_PC = 0xC0, 0xC4, 0xC8, 0xCC, 0xD0, 0xD4, 0xD8, 0xDC, 0xE0, 0xE4, 0xE8, 0xEC
REDQ = 0x100
REDQA = 0x600
PL   = 0x1000
RIB  = 0x2000
RFIN = PL
MLT  = 0x2A00
LT   = 0x2C00
RMX  = 0x2E00
RLP  = REDQ
XNL  = 0x3000
QL   = 0x3800
KV   = 0x7800
LDS_BYTES = KV + 0x20000

SCALE = (128 ** -0.5) * math.log2(math.e)
LIM_LDS = 1 << 16
LIM_MEM = 1 << 13

class G:
    def __init__(s): s.l = []; s.n = 0
    def __call__(s, x):
        for ln in x.strip("\n").split("\n"):
            if ln.strip(): s.l.append("  " + ln.strip())
    def label(s, x): s.l.append(x + ":")
    def nl(s, p): s.n += 1; return f"L_{p}_{s.n}"
    def text(s): return "\n".join(s.l) + "\n"
g = G()

def vr(a, n): return f"v[{a}:{a+n-1}]"
def sr(a, n): return f"s[{a}:{a+n-1}]"

LANE, VZ, VONE, VT, vN, vKG = 0, 1, 2, 3, 4, 5
VTS = 167
VL16 = 166
sWG, sWV = 2, 3
WS = 4
SR = 8
sXCD, sSLOT, sHF, sJ = 12, 13, 14, 15
P_X, P_KV, P_WQ, P_WUK, P_WUV, P_WO, P_BX, P_W1, P_W2, P_OUT, P_DBG, P_WS = [16 + 2 * i for i in range(12)]
sHA, sCA = (sSLOT, sXCD) if OPT['remap'] else (sHF, sJ)
sTAG, sCNT = 28, 29
sPLO, sPHI = 100, 101
DPPM = "row_mask:0xf bank_mask:0xf"

def srd(base, ptr, nbytes):
    g(f"""s_mov_b32 s{base}, s{ptr}
          s_mov_b32 s{base+1}, s{ptr+1}
          s_mov_b32 s{base+2}, {nbytes}
          s_mov_b32 s{base+3}, 0x20000""")

def stamp(k):
    if OPT["padat"] == k:
        g(f"s_memrealtime vcc\ns_waitcnt lgkmcnt(0)\nv_writelane_b32 v{VTS}, vcc_lo, 0")
    if not OPT["ts"]: return
    g(f"""s_memrealtime vcc
          s_waitcnt lgkmcnt(0)
          v_writelane_b32 v{VTS}, vcc_lo, {k}""")

def cnt(k, sreg):
    if OPT["ts"]: g(f"v_writelane_b32 v{VTS}, s{sreg}, {k}")

def ts_flush(role="A"):
    if OPT["padat"] >= 0:
        Lp, Le = g.nl("pad"), g.nl("pade")
        g(f"s_nop 4\nv_readlane_b32 s40, v{VTS}, 0")
        g("s_nop 4")
        if OPT["padw"] >= 8: g(f"s_cmp_eq_u32 s{sWV}, {OPT['padw'] % 100}")
        else: g(f"s_cmp_lt_u32 s{sWV}, 8")
        g(f"""s_cbranch_scc0 {Le}
              s_cmp_eq_u32 s40, 0
              s_cbranch_scc1 {Le}
              s_add_u32 s40, s40, 3000
              {Lp}:
              s_sleep 8
              s_memrealtime s[42:43]
              s_waitcnt lgkmcnt(0)
              s_sub_u32 s41, s42, s40
              s_cmp_lt_i32 s41, -40
              s_cbranch_scc1 {Lp}
              {Lp}b:
              s_memrealtime s[42:43]
              s_waitcnt lgkmcnt(0)
              s_sub_u32 s41, s42, s40
              s_cmp_lt_i32 s41, 0
              s_cbranch_scc1 {Lp}b
              {Le}:""")
    if not OPT["ts"]: return
    if OPT["dbg"]:
        sel = {"A": {1: 0, 2: 16, 6: 6, 7: 8, 8: 10, 9: 22, 10: 11, 11: 13, 14: 20, 15: 21}, "G": {3: 1, 4: 2, 5: 3, 12: 7, 13: 9}}[role]
        Ls = g.nl("dbg")
        g(f"""s_cmp_eq_u32 s{sWV}, {0 if role == "A" else 9}
              s_cbranch_scc0 {Ls}
              s_load_dwordx2 s[40:41], s[0:1], 80
              s_mov_b64 exec, -1
              v_mov_b32 v8, 0
              s_mov_b32 s42, 256
              s_mov_b32 s43, 0x20000""")
        for dst, src in sel.items():
            g(f"v_readlane_b32 s44, v{VTS}, {src}\ns_nop 3\nv_writelane_b32 v8, s44, {dst}")
        if role == "A":
            g(f"v_readlane_b32 s44, v{VTS}, 0\ns_nop 3\ns_not_b32 s44, s44\nv_writelane_b32 v8, s44, 0")
        g(f"""v_lshlrev_b32 v{VT}, 2, v{LANE}
              s_mov_b64 exec, 0xffff
              s_waitcnt lgkmcnt(0)
              buffer_atomic_umax v8, v{VT}, s[40:43], 0 offen""")
        g.label(Ls)
        return
    g(f"""s_mul_i32 s{sCNT}, s{sWG}, 12
          s_add_u32 s{sCNT}, s{sCNT}, s{sWV}
          s_lshl_b32 s{sCNT}, s{sCNT}, 7
          s_add_u32 s{sCNT}, s{sCNT}, {TSOFF}
          s_mov_b64 exec, -1
          s_mov_b32 exec_hi, 0
          v_lshlrev_b32 v{VT}, 2, v{LANE}
          buffer_store_dword v{VTS}, v{VT}, {sr(WS,4)}, s{sCNT} offen""")

def lds_wait(off, target, st, extra="", sleep=0):
    L, Lo = g.nl("w"), g.nl("wo")
    g(f"s_mov_b32 s{sCNT}, {LIM_LDS}")
    if sleep:
        Lf = g.nl("wf")
        g(f"s_branch {Lf}")
    g.label(L)
    if sleep:
        g(f"s_sleep {sleep}")
        g.label(Lf)
    g(f"ds_read_b32 v{VT}, v{VZ} offset:{off}")
    if extra: g(extra)
    g(f"""s_waitcnt lgkmcnt(0)
          v_readfirstlane_b32 s{st}, v{VT}
          s_sub_u32 s{sCNT}, s{sCNT}, 1
          s_cbranch_scc1 {Lo}
          s_cmp_ge_u32 s{st}, {target}
          s_cbranch_scc0 {L}""")
    g.label(Lo)

def pc_wait(mask, val, st, st2, extra="", sleep=0, off=None):
    L, Lo = g.nl("pw"), g.nl("pwo")
    g(f"s_mov_b32 s{sCNT}, {LIM_LDS}")
    g.label(L)
    if sleep: g(f"s_sleep {sleep}")
    g(f"ds_read_b32 v{VT}, v{VZ} offset:{F_PC if off is None else off}")
    if extra: g(extra)
    g(f"""s_waitcnt lgkmcnt(0)
          v_readfirstlane_b32 s{st}, v{VT}
          s_sub_u32 s{sCNT}, s{sCNT}, 1
          s_cbranch_scc1 {Lo}
          s_and_b32 s{st2}, s{st}, {hex(mask)}
          s_cmp_eq_u32 s{st2}, {hex(val)}
          s_cbranch_scc0 {L}""")
    g.label(Lo)

def land_wait(target, st, vt2, sleep=0):
    L, Lo = g.nl("lw"), g.nl("lwo")
    g(f"s_mov_b32 s{sCNT}, {LIM_LDS}")
    g.label(L)
    g(f"""ds_read_b64 {vr(vt2,2)}, v{VZ} offset:{F_LA}
          s_waitcnt lgkmcnt(0)
          v_min_u32 v{vt2}, v{vt2}, v{vt2+1}
          s_sub_u32 s{sCNT}, s{sCNT}, 1
          v_readfirstlane_b32 s{st}, v{vt2}
          s_cbranch_scc1 {Lo}
          s_cmp_ge_u32 s{st}, {target}
          s_cbranch_scc1 {Lo}""")
    if sleep: g(f"s_sleep {sleep}")
    g(f"s_branch {L}")
    g.label(Lo)

def lds_inc(off):
    g(f"""s_mov_b64 exec, 1
          ds_add_u32 v{VZ}, v{VONE} offset:{off}
          s_mov_b64 exec, -1""")

def get_tag(vtmp):
    lds_wait(F_TAGV, 1, sTAG, extra=f"ds_read_b32 v{vtmp}, v{VZ} offset:{F_TAG}")
    g(f"v_readfirstlane_b32 s{sTAG}, v{vtmp}")

def wave_sum(v, sdst):
    for mod in ("quad_perm:[1,0,3,2]", "quad_perm:[2,3,0,1]", "row_half_mirror", "row_mirror"):
        g(f"s_nop 1\nv_add_f32_dpp v{v}, v{v}, v{v} {mod} {DPPM}")
    g(f"s_nop 1\nv_add_f32_dpp v{v}, v{v}, v{v} row_bcast:15 row_mask:0xa bank_mask:0xf")
    g(f"s_nop 1\nv_add_f32_dpp v{v}, v{v}, v{v} row_bcast:31 row_mask:0xc bank_mask:0xf")
    g(f"s_nop 1\nv_readlane_b32 s{sdst}, v{v}, 63")

def rne(v):
    g(f"v_cvt_pk_bf16_f32 v{v}, v{v}, v{v}\nv_and_b32 v{v}, 0xffff0000, v{v}")

def ln_stats(x5, tmp, sA, sB, vM, vR):
    u = tmp
    for k in range(5):
        g(f"v_lshlrev_b32 v{u+2*k}, 16, v{x5+k}\nv_and_b32 v{u+2*k+1}, 0xffff0000, v{x5+k}")
    a = u + 10
    g(f"v_add_f32 v{a}, v{u}, v{u+1}")
    for k in range(2, 10): g(f"v_add_f32 v{a}, v{a}, v{u+k}")
    wave_sum(a, sA)
    g(f"s_nop 1\nv_mov_b32 v{vM}, s{sA}\nv_mul_f32 v{vM}, {hex(f32(1.0/640))}, v{vM}")
    for k in range(10): g(f"v_sub_f32 v{u+k}, v{u+k}, v{vM}")
    g(f"v_mul_f32 v{a}, v{u}, v{u}")
    for k in range(1, 10): g(f"v_fmac_f32 v{a}, v{u+k}, v{u+k}")
    wave_sum(a, sB)
    g(f"s_nop 1\nv_mov_b32 v{vR}, s{sB}\nv_mul_f32 v{vR}, {hex(f32(1.0/640))}, v{vR}")
    rne(vR)
    g(f"v_add_f32 v{vR}, {hex(f32(1e-5))}, v{vR}")
    rne(vR)
    g(f"v_sqrt_f32 v{vR}, v{vR}\ns_nop 0")
    rne(vR)
    g(f"v_rcp_f32 v{vR}, v{vR}")
    rne(vM)

def ln_frag(src, dst, t0, vM, vR):
    for k in range(4):
        g(f"""v_lshlrev_b32 v{t0}, 16, v{src+k}
              v_and_b32 v{t0+1}, 0xffff0000, v{src+k}
              v_sub_f32 v{t0}, v{t0}, v{vM}
              v_sub_f32 v{t0+1}, v{t0+1}, v{vM}
              v_cvt_pk_bf16_f32 v{t0+1}, v{t0}, v{t0+1}
              v_lshlrev_b32 v{t0}, 16, v{t0+1}
              v_and_b32 v{t0+1}, 0xffff0000, v{t0+1}
              v_mul_f32 v{t0}, v{t0}, v{vR}
              v_mul_f32 v{t0+1}, v{t0+1}, v{vR}
              v_cvt_pk_bf16_f32 v{dst+k}, v{t0}, v{t0+1}""")

def perm_block(raw, out, order=(0, 1, 2, 3)):
    for p in range(4):
        e = 2 * order[p]
        for d in range(2):
            g(f"v_perm_b32 v{out+4*(2*d)+p}, v{raw+2*(e+1)+d}, v{raw+2*e+d}, s{sPLO}")
            g(f"v_perm_b32 v{out+4*(2*d+1)+p}, v{raw+2*(e+1)+d}, v{raw+2*e+d}, s{sPHI}")

class Landing:
    pending = False
    n = 0
LD = Landing()

def load_block(raw, voff, srdb, sbase, stmp, rowbytes, thr=0, rows=None):
    CUR["p"] = {3456: "pw1", 8192: ("puv" if rows else "pwq"), 1280: ("pw2" if srdb == SR else "pwo")}[rowbytes]
    per = 4095 // rowbytes + 1
    cur = None
    for e in range(8):
        grp, rem = divmod(e, per)
        if grp != cur:
            if grp == 0: so = sbase
            else:
                g(f"s_add_u32 s{stmp}, s{sbase}, {(rows[e] if rows else grp*per)*rowbytes}"); so = stmp
            cur = grp
        if thr:
            g(f"s_waitcnt vmcnt({thr-1})")
            if LD.pending and LD.n >= thr - 1:
                land_now()
        off = f" offset:{rem*rowbytes}" if rem else ""
        g(f"buffer_load_dwordx2 {vr(raw+2*e,2)}, v{voff}, {sr(srdb,4)}, s{so} offen{off} {pol(CUR['p'])}")
        LD.n += 1

def land_now():
    g(f"ds_write_b32 v{VZ}, v{VONE} offset:{F_UK}")
    stamp(2)
    LD.pending = False

def land_flush():
    if LD.pending:
        g(f"s_waitcnt vmcnt({LD.n})")
        land_now()

def tagcheck(regs, acc):
    g(f"v_xor_b32 v{acc}, s{sTAG}, v{regs[0]}")
    for r in regs[1:]:
        g(f"v_bitop3_b32 v{acc}, v{r}, s{sTAG}, v{acc} bitop3:0xbe")
    g(f"v_cmp_ne_u32 vcc, 0, v{acc}")

def poll_loads(nm, loads, tags, scnt, acc=VT, sleep=0, mask=True, b8=False, onfail=""):
    L, Lo = g.nl(nm), g.nl(nm + "o")
    g(f"s_mov_b32 s{scnt}, {LIM_MEM}")
    g.label(L)
    g(loads)
    g("s_waitcnt vmcnt(0)")
    (tagcheck8 if b8 else tagcheck)(tags, acc)
    g(f"s_cbranch_vccz {Lo}")
    if onfail: g(onfail)
    if mask: g("s_mov_b64 exec, vcc")
    if sleep: g(f"s_sleep {sleep}")
    g(f"""s_sub_u32 s{scnt}, s{scnt}, 1
          s_cbranch_scc0 {L}""")
    g.label(Lo)
    if mask: g("s_mov_b64 exec, -1")

def flag16_wait(nm, ap):
    L, Lo = g.nl(nm), g.nl(nm + "o")
    g(f"s_mov_b32 s{sCNT}, {LIM_MEM}\ns_lshl_b32 s18, s{sTAG}, 4")
    g.label(L)
    g(f"""s_load_dwordx16 s[48:63], s[{ap}:{ap+1}], 0 glc
          s_sub_u32 s{sCNT}, s{sCNT}, 1
          s_cbranch_scc1 {Lo}
          s_waitcnt lgkmcnt(0)
          s_add_u32 s19, s48, s49""")
    for k in range(2, 16): g(f"s_add_u32 s19, s19, s{48+k}")
    g(f"s_cmp_eq_u32 s19, s18\ns_cbranch_scc0 {L}")
    g.label(Lo)
    g("s_waitcnt lgkmcnt(0)")

sTB = 66
def tagbytes():
    g(f"""s_and_b32 s{sTB}, s{sTAG}, 1
          s_mul_i32 s{sTB}, s{sTB}, 0x01010101
          s_and_b32 s{sTB+1}, s{sTAG}, 0xfefefefe
          s_or_b32 s{sTB}, s{sTB}, s{sTB+1}
          s_lshr_b32 s{sTB+1}, s{sTB}, 8
          s_lshr_b32 s{sTB+2}, s{sTB}, 16
          s_lshr_b32 s{sTB+3}, s{sTB}, 24""")
def tagput(regs, vmask):
    for d, r in enumerate(regs): g(f"v_bfi_b32 v{r}, v{vmask}, s{sTB+d}, v{r}")
def tagcheck8(bases, acc):
    first = True
    for b in bases:
        for d in range(4):
            if first: g(f"v_xor_b32 v{acc}, s{sTB+d}, v{b+d}"); first = False
            else: g(f"v_bitop3_b32 v{acc}, v{b+d}, s{sTB+d}, v{acc} bitop3:0xbe")
    g(f"v_and_b32 v{acc}, 0xff, v{acc}\nv_cmp_ne_u32 vcc, 0, v{acc}")

def fswz(dst, i, t):
    g(f"""v_lshrrev_b32 v{t}, 1, v{i}
          v_xor_b32 v{dst}, v{t}, v{i}
          v_and_b32 v{dst}, 4, v{dst}
          v_and_or_b32 v{dst}, v{i}, 2, v{dst}
          v_bfe_u32 v{t}, v{i}, 3, 1
          v_or_b32 v{dst}, v{dst}, v{t}""")

def sum_groups(base, n):
    step = 1
    while step < n:
        for a in range(0, n - step, 2 * step):
            g(f"v_pk_add_f32 {vr(base+4*a,2)}, {vr(base+4*a,2)}, {vr(base+4*(a+step),2)}")
            g(f"v_pk_add_f32 {vr(base+4*a+2,2)}, {vr(base+4*a+2,2)}, {vr(base+4*(a+step)+2,2)}")
        step *= 2

def red16(regs, full=True):
    for mod in ("row_ror:4", "row_ror:8"):
        g("s_nop 1")
        for r in regs: g(f"v_add_f32_dpp v{r}, v{r}, v{r} {mod} {DPPM}")
    for sw in (("v_permlane16_swap_b32", "v_permlane32_swap_b32") if full else ("v_permlane16_swap_b32",)):
        for r in regs: g(f"v_mov_b32 v{r+1}, v{r}")
        g("s_nop 1")
        for r in regs: g(f"{sw} v{r}, v{r+1}")
        for r in regs: g(f"v_add_f32 v{r}, v{r}, v{r+1}")

def global_max(dst, t0):
    g(f"""v_max_f32 v{dst}, v{t0}, v{t0+1}""")
    for mod in ("quad_perm:[1,0,3,2]", "quad_perm:[2,3,0,1]", "row_half_mirror", "row_mirror"):
        g(f"s_nop 1\nv_max_f32_dpp v{dst}, v{dst}, v{dst} {mod} {DPPM}")
    for sw in ("v_permlane16_swap_b32", "v_permlane32_swap_b32"):
        g(f"v_mov_b32 v{dst+1}, v{dst}\ns_nop 1\n{sw} v{dst}, v{dst+1}\nv_max_f32 v{dst}, v{dst}, v{dst+1}")

def mfma(d, a, b, first):
    g(f"v_mfma_f32_16x16x32_bf16 {vr(d,4)}, {vr(a,4)}, {vr(b,4)}, {'0' if first else vr(d,4)}")

K = NAME + "_kernel"
g(f"""s_load_dwordx16 s[16:31], s[0:1], 0
      s_load_dwordx8 s[32:39], s[0:1], 64
      s_cmp_ge_u32 s{sWG}, 256
      s_cbranch_scc1 L_END
      v_lshrrev_b32 v{VT}, 6, v0
      v_and_b32 v{LANE}, 63, v0
      v_readfirstlane_b32 s{sWV}, v{VT}
      v_mov_b32 v{VZ}, 0
      v_lshrrev_b32 v{vKG}, 4, v{LANE}
      s_cmp_eq_u32 s{sWV}, 7
      s_cbranch_scc0 L_nopf
      s_getpc_b64 s[44:45]
      L_pc:
      s_sub_u32 s44, s44, L_pc-{K}
      s_subb_u32 s45, s45, 0
      s_and_b32 s41, s{sWG}, 0xf8
      v_add_u32 v10, s41, v{LANE}
      v_lshlrev_b32 v10, 7, v10
      v_cmp_gt_u32 vcc, L_CODE_END-{K}, v10
      s_and_b64 exec, vcc, 0xff
      s_cbranch_execz L_nopf2
      global_load_dword v159, v10, s[44:45]
      L_nopf2:
      s_mov_b64 exec, -1
      L_nopf:
      v_mov_b32 v{VONE}, 1
      v_and_b32 v{vN}, 15, v{LANE}
      s_and_b32 s{sXCD}, s{sWG}, 7
      s_lshr_b32 s{sSLOT}, s{sWG}, 3
      s_lshr_b32 s{sHF}, s{sSLOT}, 3
      s_lshl_b32 s{sJ}, s{sXCD}, 2
      s_add_u32 s{sHF}, s{sHF}, s{sJ}
      s_and_b32 s{sJ}, s{sSLOT}, 7
      s_mov_b32 s{sPLO}, 0x05040100
      s_mov_b32 s{sPHI}, 0x07060302""")
if OPT["ts"] or OPT["padat"] >= 0:
    g(f"v_mov_b32 v{VTS}, 0")
    stamp(0)
if OPT["pad"]:
    g(f"s_memrealtime vcc\ns_waitcnt lgkmcnt(0)\nv_mov_b32 v{VTS}, vcc_lo")
g(f"""s_cmp_ge_u32 s{sWV}, 6
      s_cbranch_scc1 L_OTH
      s_setprio 2
      v_lshlrev_b32 v24, 16, v{vKG}
      v_lshl_add_u32 v24, v{vN}, 3, v24       ; + n*8
      v_mul_u32_u24 v6, 20, v{LANE}
      s_lshr_b32 s40, s{sXCD if OPT["remap"] else sJ}, 1   ; mq
      s_mul_i32 s40, s40, 160
      s_lshl_b32 s41, s{sWV}, 5
      s_add_u32 s40, s40, s41
      s_lshl_b32 s41, s40, 13                 ; row0*8192
      {f"s_lshl_b32 s42, s{sSLOT}, 7" if OPT["remap"] else f"s_lshl_b32 s42, s{sHF}, 8"}
      s_add_u32 s41, s41, s42
      s_and_b32 s42, s{sXCD if OPT["remap"] else sJ}, 1
      s_lshl_b32 s42, s42, {12 if OPT["remap"] else 7}
      s_add_u32 s41, s41, s42                 ; w_q soffset
      s_mov_b32 s46, 5242880
      s_mov_b32 s47, 0x20000
      s_mov_b32 s{SR+2}, 1280
      s_mov_b32 s{SR+3}, 0x20000
      s_cmp_eq_u32 s{sWV}, 5
      s_cbranch_scc0 L_A
      s_setprio 3
      s_waitcnt lgkmcnt(0)
      s_mov_b32 s{SR}, s{P_X}
      s_mov_b32 s{SR+1}, s{P_X+1}
      buffer_load_dwordx4 v[8:11], v6, {sr(SR,4)}, 0 offen
      buffer_load_dword v12, v6, {sr(SR,4)}, 0 offen offset:16
      s_barrier
      s_branch L_LN""")
g.label("L_A")
g(f"""s_waitcnt lgkmcnt(0)
      s_mov_b32 s44, s{P_WQ}
      s_mov_b32 s45, s{P_WQ+1}
      s_nop 1""")
load_block(32, 24, 44, 41, 42, 8192)
g("s_barrier")
lds_inc(F_QI)
srd(WS, P_WS, WS_REC)
g(f"""s_lshl_b32 s40, s40, 1
      v_lshlrev_b32 v112, 4, v{vKG}
      v_add_u32 v112, s40, v112
      v_lshlrev_b32 v113, 4, v{vN}
      s_lshl_b32 s40, s{sWV}, 8
      v_add_u32 v113, s40, v113
      s_branch L_A_q""")
g.label("L_LN")
srd(WS, P_WS, WS_REC)
g(f"v_add_u32 v6, {XNL}, v6\ns_waitcnt vmcnt(0)")
stamp(16)
U, E, Dd = 32, 44, 56
for k in range(5):
    g(f"v_lshlrev_b32 v{U+2*k}, 16, v{8+k}\nv_and_b32 v{U+2*k+1}, 0xffff0000, v{8+k}")
g(f"""v_pk_add_f32 v[14:15], {vr(U,2)}, {vr(U+2,2)}
      v_pk_add_f32 v[16:17], {vr(U+4,2)}, {vr(U+6,2)}
      v_pk_add_f32 v[14:15], v[14:15], {vr(U+8,2)}
      v_pk_add_f32 v[14:15], v[14:15], v[16:17]
      v_add_f32 v14, v14, v15""")
wave_sum(14, 40)
g(f"""s_nop 1
      v_mov_b32 v18, {hex(f32(-1.0/640))}
      v_mul_f32 v18, s40, v18                 ; -mean
      v_mov_b32 v19, v18""")
for k in range(5): g(f"v_pk_add_f32 {vr(E+2*k,2)}, {vr(U+2*k,2)}, v[18:19]")
g(f"v_pk_mul_f32 v[14:15], {vr(E,2)}, {vr(E,2)}")
for k in range(1, 5): g(f"v_pk_fma_f32 v[14:15], {vr(E+2*k,2)}, {vr(E+2*k,2)}, v[14:15]")
g(f"""v_cvt_pk_bf16_f32 v20, v18, v18
      v_add_f32 v14, v14, v15
      v_and_b32 v20, 0xffff0000, v20
      v_mov_b32 v21, v20""")
fill = [f"v_pk_add_f32 {vr(E+2*k,2)}, {vr(U+2*k,2)}, v[20:21]" for k in range(5)]
fill += [f"v_cvt_pk_bf16_f32 v{8+k}, v{E+2*k}, v{E+2*k+1}" for k in range(5)]
fill += [x for k in range(5) for x in (f"v_lshlrev_b32 v{Dd+2*k}, 16, v{8+k}", f"v_and_b32 v{Dd+2*k+1}, 0xffff0000, v{8+k}")]
steps = [f"v_add_f32_dpp v14, v14, v14 {m} {DPPM}" for m in ("quad_perm:[1,0,3,2]", "quad_perm:[2,3,0,1]", "row_half_mirror", "row_mirror")]
steps += ["v_add_f32_dpp v14, v14, v14 row_bcast:15 row_mask:0xa bank_mask:0xf", "v_add_f32_dpp v14, v14, v14 row_bcast:31 row_mask:0xc bank_mask:0xf", "v_readlane_b32 s42, v14, 63"]
for st_ in steps:
    g(st_); g(fill.pop(0)); g(fill.pop(0))
g(f"""v_mov_b32 v22, {hex(f32(1.0/640))}
      v_mul_f32 v22, s42, v22""")
rne(22)
g(f"v_add_f32 v22, {hex(f32(1e-5))}, v22")
rne(22)
g("v_sqrt_f32 v22, v22"); g(fill.pop(0))
rne(22)
g("v_rcp_f32 v22, v22")
while fill: g(fill.pop(0))
g("v_mov_b32 v23, v22")
for k in range(5): g(f"v_pk_mul_f32 {vr(Dd+2*k,2)}, {vr(Dd+2*k,2)}, v[22:23]")
for k in range(5): g(f"v_cvt_pk_bf16_f32 v{8+k}, v{Dd+2*k}, v{Dd+2*k+1}")
g(f"""ds_write2_b32 v6, v8, v9 offset0:0 offset1:1
      ds_write2_b32 v6, v10, v11 offset0:2 offset1:3
      ds_write_b32 v6, v12 offset:16
      ds_write_b32 v{VZ}, v{VONE} offset:{F_XN}""")
stamp(17)
g("s_branch L_A_q")
g.label("L_OTH")
g(f"""s_cmp_eq_u32 s{sWV}, 6
      s_cbranch_scc0 L_noinit
      v_lshlrev_b32 v8, 2, v{LANE}
      ds_write_b32 v8, v{VZ}
      s_waitcnt lgkmcnt(0)
      L_noinit:
      s_cmp_eq_u32 s{sWV}, 9
      s_cbranch_scc1 L_G9
      s_barrier
      {f"s_cmp_eq_u32 s{sWV}, 6" if OPT["uk6"] else ""}
      {"s_cbranch_scc1 L_FFN" if OPT["uk6"] else ""}
      s_cmp_lt_u32 s{sWV}, 8
      s_cbranch_scc0 L_OTH2
      s_waitcnt lgkmcnt(0)""")
srd(WS, P_WS, WS_REC)
if OPT["tlb"]:
    g(f"""s_cmp_eq_u32 s{sWV}, 7
          s_cbranch_scc0 L_A_q
          s_and_b32 s40, s{sSLOT}, 7
          s_lshl_b32 s40, s40, 6
          s_lshr_b32 s41, s{sSLOT}, 3             ; 0..3
          s_lshl_b32 s42, s41, 20
          s_add_u32 s42, s42, s40
          s_and_b32 s43, s41, 1
          s_lshl_b32 s43, s43, 20
          s_add_u32 s43, s43, s40
          s_lshl_b32 s44, s{sXCD}, 21
          s_add_u32 s44, s44, s43
          s_add_u32 s45, s40, 0x400000
          s_add_u32 s46, s40, 0x200000
          s_add_u32 s47, s43, 0x400000""")
    if OPT["tlb"] == 2: lds_wait(F_XN, 1, 41, sleep=1)
    if OPT["tlb"] in (1, 3):
        g(f"""s_load_dword s52, s[{P_KV}:{P_KV+1}], s44
          s_load_dword s53, s[{P_WUK}:{P_WUK+1}], s42
          s_load_dword s54, s[{P_W1}:{P_W1+1}], s43
          s_load_dword s55, s[{P_W2}:{P_W2+1}], s43
          s_load_dword s60, s[{P_W1}:{P_W1+1}], s46
          s_load_dword s61, s[{P_W2}:{P_W2+1}], s46""")
    if OPT["tlb"] == 3: lds_wait(F_XN, 1, 41, sleep=1)
    g(f"""s_load_dword s56, s[{P_WS}:{P_WS+1}], s42
          s_load_dword s57, s[{P_WUV}:{P_WUV+1}], s42
          s_load_dword s58, s[{P_WO}:{P_WO+1}], s42
          s_load_dword s59, s[{P_WO}:{P_WO+1}], s45
          s_load_dword s62, s[{P_WS}:{P_WS+1}], s47
          s_load_dword s63, s[{P_OUT}:{P_OUT+1}], 0
          s_waitcnt lgkmcnt(0)""")
g("s_branch L_A_q")
g.label("L_OTH2")
g(f"""      s_cmp_eq_u32 s{sWV}, 9
      s_cbranch_scc1 L_G9
      s_cmp_eq_u32 s{sWV}, 11
      s_cbranch_scc1 L_FFN""")
g(f"v_lshrrev_b32 v32, 3, v{LANE}")
fswz(33, 32, 34)
g(f"""v_and_b32 v34, 7, v{LANE}
      v_xor_b32 v33, v33, v34
      v_lshlrev_b32 v33, 4, v33
      v_lshl_add_u32 v36, v32, 10, v33
      s_bfe_u32 s43, s{sWV}, 0x10001
      s_and_b32 s40, s43, 1
      s_mul_i32 s40, s40, 80
      v_xor_b32 v36, s40, v36
      s_lshr_b32 s41, s{sSLOT}, 1""")
if OPT["ksmap"] == 0:
    g(f"s_lshl_b32 s41, s41, 3\ns_add_u32 s41, s41, s{sXCD}             ; ks")
else:
    g(f"s_lshl_b32 s42, s{sXCD}, 4\ns_add_u32 s41, s41, s42             ; ks")
g(f"""s_mul_i32 s51, s41, {OPT["rot"]}
      s_add_u32 s51, s51, s43
      s_lshl_b32 s51, s51, 13
      s_and_b32 s51, s51, 0x1ffff
      s_lshl_b32 s52, s41, 17                 ; ks*128KB
      s_add_u32 s41, s52, s51
      s_lshl_b32 s42, s43, 10
      s_add_u32 s42, s42, {KV}
      s_waitcnt lgkmcnt(0)""")
srd(44, P_KV, 16777216)
srd(WS, P_WS, WS_REC)
if OPT["kvt"]:
    n = OPT["kvt"]; step = 131072 // n
    g(f"s_lshl_b32 s49, s43, 16\ns_add_u32 s49, s49, s52")
    for k in range(n // 2):
        g(f"s_add_u32 s50, s49, {k*step}\ns_load_dword s{56+(k&7)}, s[{P_KV}:{P_KV+1}], s50")
if OPT["vt"]:
    lds_wait(F_QI, 5, 40)
    g(f"""s_mov_b64 exec, 1
          buffer_load_dword v40, v{VZ}, {sr(44,4)}, s41 offen {pol('pkv')}
          s_mov_b64 exec, -1""")
if OPT["gate"] >= 20: lds_wait(F_QP, 1, 40)
elif OPT["gate"]:
    lds_wait(F_WQ if OPT["gate"] < 10 else F_Q, OPT["gate"] % 10, 40, sleep=1)
stamp(8)
NI = OPT["inflight"]
assert 1 <= NI <= 32
g(f"""s_lshl_b32 s48, s43, 2
      v_mov_b32 v37, s48
      s_mov_b32 s43, 0""")
def ld_loop(lab, NI, end):
    g.label(lab)
    for k in range(16):
        cb, hi = k & 7, k >> 3
        g(f"s_add_u32 m0, s42, {cb*(16384-128) + hi*2048}")
        if k == 8: g(f"s_add_u32 s51, s51, {2*8192}\ns_and_b32 s51, s51, 0x1ffff\ns_add_u32 s41, s52, s51")
        g(f"s_waitcnt vmcnt({NI-1})")
        if k == (NI - 1) % 16:
            g(f"""s_sub_u32 s48, s43, {(NI - 1) // 16}
                  s_max_i32 s48, s48, 0
                  v_mov_b32 v38, s48
                  ds_write_b32 v37, v38 offset:{F_LA}""")
        g(f"buffer_load_dwordx4 v36, {sr(44,4)}, s41 offen offset:{cb*128} {pol('pkv')} lds")
    g(f"""s_add_u32 s51, s51, {2*8192}
          s_and_b32 s51, s51, 0x1ffff
          s_add_u32 s41, s52, s51
          s_add_u32 s42, s42, {4*1024}
          s_add_u32 s43, s43, 1""")
    if OPT["ts"] == 2:
        g(f"""s_memrealtime vcc
              s_add_u32 s49, s43, 11
              s_mov_b32 m0, s49
              s_waitcnt lgkmcnt(0)
              v_writelane_b32 v{VTS}, vcc_lo, m0""")
    g(f"""s_cmp_lt_u32 s43, {end}
          s_cbranch_scc1 {lab}""")
if OPT["inf2"]:
    ld_loop("L_ld", NI, OPT["split"])
    ld_loop("L_ld2", OPT["inf2"], 4)
else:
    ld_loop("L_ld", NI, 4)
lds_inc(F_ISS)
stamp(1)
g(f"""v_mov_b32 v38, 3
      v_mov_b32 v39, 4
      s_waitcnt vmcnt(16)
      ds_write_b32 v37, v38 offset:{F_LA}
      s_waitcnt vmcnt(0)
      ds_write_b32 v37, v39 offset:{F_LA}""")
stamp(2)
g("s_branch L_G")
g.label("L_FFN")
XF = 8
g("s_waitcnt lgkmcnt(0)")
srd(WS, P_WS, WS_REC)
if OPT["uk6"]: g(f"s_cmp_eq_u32 s{sWV}, 11\ns_cbranch_scc1 L_FFNa")
srd(SR, P_WUK, 4194304)
g(f"""v_xor_b32 v8, v{vN}, v{vKG}
      v_lshlrev_b32 v8, 4, v8
      v_lshl_add_u32 v8, v{vKG}, 13, v8
      v_xor_b32 v9, 64, v8
      v_xor_b32 v10, 128, v8
      v_xor_b32 v11, 192, v8
      s_lshl_b32 s48, s{sCA}, 19
      s_lshl_b32 s49, s{sHA}, 8
      s_add_u32 s48, s48, s49""")
if OPT["ukgate"]: lds_wait(F_WQ, OPT["ukgate"], 40)
else: lds_wait(F_QI, 5, 40)
for u in range(16):
    g(f"s_mov_b32 m0, {QL + u*1024}")
    g(f"s_add_u32 s49, s48, {u*4*8192}")
    g(f"buffer_load_dwordx4 v{8+(u&3)}, {sr(SR,4)}, s49 offen {pol('puk')} lds")
if OPT["uk6"]:
    g("s_branch L_A_q")
    g.label("L_FFNa")
    if OPT["fgate"] == 0: lds_wait(F_QI, 5, 40)
if OPT["fgate"] == 9:
    g("s_waitcnt vmcnt(0)"); land_now()
elif OPT["fgate"] == 8:
    lds_wait(F_QP, 1, 40, sleep=1)
elif OPT["fgate"]:
    lds_wait(F_Q, OPT["fgate"], 40, sleep=1)
if OPT["forder"] == 1: lds_wait(F_ISS, 2, 40, sleep=2)
if OPT["forder"] == 5: lds_wait(F_H3, 8, 40, sleep=2)
if OPT["forder"] == 6: lds_wait(F_STG, 8, 40, sleep=2)
g("s_branch L_FFNb")
FFN_EARLY_END = True
g.label("L_G9")
g(f"""s_setprio 3
      s_waitcnt lgkmcnt(0)
      s_load_dword s40, s[{P_WS}:{P_WS+1}], {EPOCH}
      s_barrier""")
srd(WS, P_WS, WS_REC)
g(f"""v_lshlrev_b32 v8, 4, v{vN}              ; n*16
      s_lshl_b32 s41, s{sHA}, 3
      s_add_u32 s41, s41, s{sCA}
      s_lshl_b32 s41, s41, 8
      s_add_u32 s43, s41, {QAM}""")
if OPT["remap"]:
    g(f"""s_and_b32 s42, s{sXCD}, 1
          s_lshl_b32 s42, s42, 4
          s_lshr_b32 s41, s{sSLOT}, 1
          s_add_u32 s42, s42, s41                 ; hQ
          s_lshl_b32 s42, s42, {QS}
          s_and_b32 s41, s{sXCD}, 6
          s_and_b32 s45, s{sSLOT}, 1
          s_add_u32 s41, s41, s45
          s_lshl_b32 s41, s41, 8""")
else:
    g(f"s_lshl_b32 s42, s{sHF}, {QS}\ns_lshl_b32 s41, s{sJ}, 8")
g(f"""
      s_add_u32 s42, s42, s41
      s_add_u32 s42, s42, {QM}
      s_add_u32 s45, s42, 8192
      v_lshl_add_u32 v7, v{vKG}, 11, v8

      v_mov_b32 v11, 1
      s_waitcnt lgkmcnt(0)
      s_mul_i32 s{sTAG}, s40, 1664525
      s_add_u32 s{sTAG}, s{sTAG}, 1013904223
      v_mov_b32 v10, s{sTAG}
      v_mov_b32 v13, s{sTAG}
      v_mov_b32 v15, s{sTAG}
      ds_write_b64 v{VZ}, v[10:11] offset:{F_TAG}""")
stamp(1)
if OPT["warm"]:
    g(f"""s_and_b32 s46, s{sSLOT}, 1
          s_lshl_b32 s46, s46, {HS-3}
          s_add_u32 s46, s46, s{sXCD}
          s_lshl_b32 s46, s46, 7
          s_add_u32 s46, s46, {HD}
          v_lshlrev_b32 v9, {HS}, v{vN}
          v_and_b32 v16, 1, v{vKG}
          v_lshl_add_u32 v9, v16, {int(math.log2(LOFF))}, v9""")
    lds_wait(F_QI, 5, 40)
    if OPT["fast1"]:
        g(f"""buffer_load_dwordx4 v[16:19], v6, {sr(WS,4)}, s47 offen sc1
              buffer_load_dwordx4 v[16:19], v6, {sr(WS,4)}, s47 offen offset:1024 sc1""")
    NR = OPT["nrep"]
    EXM = {1: "s_mov_b64 exec, 0xffff", 2: "s_mov_b32 exec_hi, 0", 4: "", 8: ""}[NR]
    g(f"""{EXM}
          buffer_load_dwordx4 v[16:19], v7, {sr(WS,4)}, s42 offen sc1
          s_mov_b64 exec, -1
          {f"buffer_load_dwordx4 v[16:19], v7, {sr(WS,4)}, s45 offen sc1" if NR == 8 else ""}
          buffer_load_dwordx4 v[16:19], v8, {sr(WS,4)}, s43 offen sc1
          buffer_load_dword v16, v9, {sr(WS,4)}, s46 offen sc1""")
lds_wait(F_Q, 5, 40)
g("\n".join(f"ds_read_b128 {vr(32+4*b,4)}, v8 offset:{REDQ+256*b}" for b in range(5)))
g("s_waitcnt lgkmcnt(0)")
sum_groups(32, 5)
g(f"""v_cvt_pk_bf16_f32 v12, v32, v33
      v_cvt_pk_bf16_f32 v14, v34, v35""")
if OPT["fast1"]:
    g(f"""buffer_store_dwordx4 v[12:15], v6, {sr(WS,4)}, s47 offen
          ds_write_b32 v{VZ}, v{VONE} offset:{F_QP}
          buffer_store_dwordx4 v[12:15], v6, {sr(WS,4)}, s47 offen offset:1024""")
NR = OPT["nrep"]
EXM = {1: "s_mov_b64 exec, 0xffff", 2: "s_mov_b32 exec_hi, 0", 4: "", 8: ""}[NR]
g(f"""{EXM}
      buffer_store_dwordx4 v[12:15], v7, {sr(WS,4)}, s42 offen sc1
      {f"buffer_store_dwordx4 v[12:15], v7, {sr(WS,4)}, s45 offen sc1" if NR == 8 else ""}
      ds_write_b32 v{VZ}, v{VONE} offset:{F_QP}
      s_mov_b64 exec, 0xffff""")
stamp(2)
lds_wait(F_QA, 8, 40)
g("\n".join(f"ds_read_b128 {vr(32+4*b,4)}, v8 offset:{REDQA+256*b}" for b in range(8)))
g("s_waitcnt lgkmcnt(0)")
sum_groups(32, 8)
for r in range(4): g(f"v_mul_f32 v{32+r}, {hex(f32(SCALE))}, v{32+r}")
g(f"""v_cvt_pk_bf16_f32 v12, v32, v33
      v_cvt_pk_bf16_f32 v14, v34, v35
      buffer_store_dwordx4 v[12:15], v8, {sr(WS,4)}, s43 offen sc1
      ds_write_b32 v{VZ}, v{VONE} offset:{F_QAP}
      s_mov_b64 exec, -1
      s_setprio 0""")
stamp(3)
if OPT["uvgate"] < 2: lds_wait(F_H2I if OPT["uvgate"] else F_ISS, 8 if OPT["uvgate"] else 2, 40, sleep=1)
elif OPT["uvgate"] == 3: land_wait(4, 40, 24, sleep=1)
else: g("s_sleep 16")
if OPT["fast1"] and OPT["recl"]:
    g(f"""buffer_store_dwordx4 v[20:23], v6, {sr(WS,4)}, s47 offen sc1
          buffer_store_dwordx4 v[20:23], v6, {sr(WS,4)}, s47 offen offset:1024 sc1""")
g("s_branch L_G_uv9")

g.label("L_A_q")
g("s_setprio 2")
g(f"""s_and_b32 s40, s{sSLOT}, 1              ; g
      s_lshl_b32 s41, s40, 4
      s_lshl_b32 s42, s{sWV}, 1
      s_add_u32 s41, s41, s42                 ; 16g+2w
      s_lshl_b32 s41, s41, 11
      s_add_u32 s20, s41, {QAM}
      s_lshr_b32 s21, s{sSLOT}, 1             ; mi 0..15
      s_lshl_b32 s42, s40, 7                  ; 16g*8
      s_add_u32 s42, s42, s{sWV}
      s_lshl_b32 s42, s42, 3
      s_add_u32 s42, s42, s{sXCD}
      s_lshl_b32 s42, s42, 4
      s_add_u32 s42, s42, s21
      s_lshl_b32 s42, s42, 7
      s_add_u32 s26, s42, {IB}
      s_add_u32 s22, s26, {2*8*8*2048}
      s_lshl_b32 s42, s40, {HS-3}
      s_add_u32 s42, s42, s{sXCD}
      s_lshl_b32 s42, s42, 4
      s_add_u32 s42, s42, s21
      s_lshl_b32 s42, s42, 3
      s_add_u32 s27, s42, {HD}
      s_add_u32 s23, s27, {LOFF}
      s_lshl_b32 s42, s{sHF}, {HS-7}
      s_add_u32 s42, s42, s{sWV}
      s_lshl_b32 s42, s42, 7
      s_add_u32 s31, s42, {HD}
      s_lshl_b32 s42, s{sHF}, 3
      s_add_u32 s42, s42, s{sJ}
      s_lshl_b32 s42, s42, 3
      s_add_u32 s42, s42, s{sWV}              ; (h*8+j)*8+w
      s_lshl_b32 s30, s42, 11
      s_add_u32 s30, s30, {IB}
      s_lshl_b32 s42, s{sHA}, {QS-11}
      s_and_b32 s43, s{sCA}, {OPT["nrep"]-1}
      s_add_u32 s42, s42, s43
      s_lshl_b32 s42, s42, 3
      s_add_u32 s42, s42, s{sWV}
      s_lshl_b32 s42, s42, 8
      s_add_u32 s42, s42, {QM}
      s_add_u32 s32, s{WS}, s42
      s_addc_u32 s33, s{WS+1}, 0
      s_and_b32 s40, s{sWV}, 1
      s_lshl_b32 s40, s40, 3                  ; 8*dhalf'
      v_xor_b32 v6, s40, v{vN}
      v_lshlrev_b32 v6, 4, v6
      v_lshl_add_u32 v6, v{LANE}, 8, v6       ; row*256 + ...
      v_lshlrev_b32 v10, 2, v{LANE}
      s_lshl_b32 s40, s{sWV}, 8
      v_add_u32 v10, s40, v10
      v_mov_b32 v8, 0
      v_mov_b32 v9, 0""")
W = 80
QKA, PVA = 32, 96
fswz(24, vN, 25)
g(f"""v_xor_b32 v24, v24, v{vKG}
      v_lshlrev_b32 v24, 4, v24
      v_and_b32 v25, 7, v{vN}
      v_lshl_add_u32 v24, v25, 7, v24         ; + (i&7)*128
      v_lshrrev_b32 v25, 3, v{vN}
      v_lshl_add_u32 v24, v25, 10, v24        ; + (i>>3)*1024
      s_lshl_b32 s42, s{sWV}, 11
      s_add_u32 s42, s42, {KV}
      v_add_u32 v160, s42, v24
      v_xor_b32 v161, 64, v160
      v_add_u32 v162, 0x10000, v160
      v_add_u32 v163, 0x10000, v161
      v_lshrrev_b32 v26, 2, v{LANE}           ; i16""")
fswz(24, 26, 25)
g(f"""s_and_b32 s42, s{sWV}, 3
      s_lshl_b32 s42, s42, 1
      v_bfe_u32 v25, v{LANE}, 1, 1
      v_or_b32 v25, s42, v25                  ; xi = 2(w&3) + (c'>>1)
      v_xor_b32 v24, v24, v25
      v_lshlrev_b32 v24, 4, v24
      v_and_b32 v25, 1, v{LANE}
      v_lshl_add_u32 v24, v25, 3, v24
      v_and_b32 v25, 7, v26
      v_lshl_add_u32 v24, v25, 7, v24
      v_lshrrev_b32 v25, 3, v26
      v_lshl_add_u32 v24, v25, 10, v24
      s_lshr_b32 s42, s{sWV}, 2
      s_lshl_b32 s42, s42, 14
      s_add_u32 s42, s42, {KV}
      v_add_u32 v164, s42, v24
      v_add_u32 v165, 0x10000, v164
      v_lshrrev_b32 v24, 1, v{vN}             ; xi
      v_and_b32 v25, 4, v24
      v_lshl_or_b32 v25, v25, 1, v24          ; sigma
      s_lshl_b32 s42, s{sWV}, 1
      v_xor_b32 v25, s42, v25
      v_lshlrev_b32 v25, 4, v25
      v_lshl_add_u32 v25, v24, 8, v25         ; + xi*256
      v_lshl_add_u32 v25, v{vKG}, 11, v25     ; + (l>>4)*2048
      v_and_b32 v24, 1, v{LANE}
      v_lshl_add_u32 v28, v24, 3, v25
      v_xor_b32 v29, 16, v28
      v_xor_b32 v30, v{vN}, v{vKG}
      v_lshlrev_b32 v30, 4, v30
      v_lshl_add_u32 v30, v{vKG}, 8, v30
      v_xor_b32 v31, {12*16}, v30             ; odd s
      v_lshlrev_b32 v166, 4, v{LANE}          ; lane*16""")
g(f"s_cmp_ge_u32 s{sWV}, 5\ns_cbranch_scc1 L_A_q2")
for p in range(4):
    g(f"s_waitcnt vmcnt({6-2*p})")
    if p == 0 and (OPT['ukgate'] or 0 < OPT['gate'] < 10): lds_inc(F_WQ)
    e = 2 * p
    for d in range(2):
        g(f"v_perm_b32 v{48+8*d+p}, v{32+2*(e+1)+d}, v{32+2*e+d}, s{sPLO}")
        g(f"v_perm_b32 v{48+8*d+4+p}, v{32+2*(e+1)+d}, v{32+2*e+d}, s{sPHI}")
stamp(18)
lds_wait(F_XN, 1, 19, extra=f"ds_read_b128 v[116:119], v112 offset:{XNL}")
for t in range(4): mfma(64 + 4 * t, 116, 48 + 4 * t, True)
g(f"""s_nop 6
      v_mov_b32 v65, v68
      v_mov_b32 v66, v72
      v_mov_b32 v67, v76
      s_mov_b64 exec, 0xffff
      ds_write_b128 v113, v[64:67] offset:{REDQ}
      s_mov_b64 exec, 1
      ds_add_u32 v{VZ}, v{VONE} offset:{F_Q}
      s_mov_b64 exec, -1""")
g.label("L_A_q2")
stamp(2)
get_tag(7)
g(f"s_lshl_b32 s18, s{sTAG}, 5              ; 32*TAG")
if OPT["uk6"]:
    g(f"""s_cmp_eq_u32 s{sWV}, 6
          s_cbranch_scc0 L_nouk
          s_waitcnt vmcnt(0)
          ds_write_b32 v{VZ}, v{VONE} offset:{F_UK}""")
    stamp(17)
    g.label("L_nouk")
def wreads():
    for e in range(8):
        if e: g(f"v_xor_b32 v7, {e*16}, v6")
        g(f"ds_read_b128 {vr(W+4*e,4)}, v{6 if e == 0 else 7} offset:{QL}")
lds_wait(F_QP, 1, 19, sleep=1)
if OPT["d1"]: g(f"s_sleep {OPT['d1']}")
g(f"""ds_read_b32 v{VT}, v{VZ} offset:{F_UK}
      s_waitcnt lgkmcnt(0)
      v_readfirstlane_b32 s24, v{VT}
      s_nop 0
      s_cmp_eq_u32 s24, 0
      s_cbranch_scc1 L_now""")
wreads()
g.label("L_now")
stamp(3)
L, Lo = g.nl("h1"), g.nl("h1o")
g(f"s_mov_b32 s{sCNT}, {LIM_MEM}")
g.label(L)
if OPT["fast1"]:
    Lg, Lc = g.nl("h1g"), g.nl("h1c")
    g(f"s_cmp_le_u32 s{sCNT}, {LIM_MEM-8}\ns_cbranch_scc1 {Lg}")
    for k in range(4):
        g(f"s_load_dwordx16 {sr(36+16*k,16)}, s[8:9], {64*k}")
    g(f"s_add_u32 s8, s8, 256\ns_addc_u32 s9, s9, 0\ns_branch {Lc}")
    g.label(Lg)
for k in range(4):
    g(f"s_load_dwordx16 {sr(36+16*k,16)}, s[32:33], {64*k} glc")
if OPT["fast1"]: g.label(Lc)
g(f"""s_sub_u32 s{sCNT}, s{sCNT}, 1
      s_cbranch_scc1 {Lo}
      s_waitcnt lgkmcnt(0)
      s_cmp_eq_u32 s99, s{sTAG}
      s_cbranch_scc0 {L}
      s_add_u32 s19, s37, s39""")
for k in range(2, 32):
    g(f"s_add_u32 s19, s19, s{37+2*k}")
g(f"s_cmp_eq_u32 s19, s18\ns_cbranch_scc0 {L}")
g.label(Lo)
cnt(23, sCNT)
stamp(1)
g(f"""s_cmp_eq_u32 s24, 0
      s_cbranch_scc0 L_havew""")
lds_wait(F_UK, 1, 19)
wreads()
g.label("L_havew")
for k in range(32):
    if k % 4 == 0: g(f"s_waitcnt lgkmcnt({7 - k//4})")
    g(f"v_dot2c_f32_bf16 v{8+(k&1)}, s{36+2*k}, v{W+k}")
g(f"""s_nop 2
      v_add_f32 v8, v8, v9
      ds_write_b32 v10, v8 offset:{REDQA}""")
lds_inc(F_QA)
stamp(4)
def qka_reads():
    for s in range(16):
        cb = s >> 1
        a = 160 + (s & 1) + (2 if cb >= 4 else 0)
        g(f"ds_read_b128 {vr(QKA+4*s,4)}, v{a} offset:{(cb&3)*16384}")
def pva_reads(u):
    for i in range(4):
        for hh in range(2):
            T = 2 * u + hh
            g(f"ds_read_b64_tr_b16 {vr(PVA+16*i+4*u+2*hh,2)}, v{164+(i>>1)} offset:{(i&1)*32768+T*2048}")
h2_loads = "\n".join(f"buffer_load_dwordx4 {vr(8+4*n,4)}, v{VL16}, {sr(WS,4)}, s20 offen offset:{1024*n} sc1" for n in range(4))
g(f"""s_lshr_b32 s42, s{sWV}, 1
      s_lshl_b32 s48, s42, 2
      s_lshl_b32 s48, 1, s48
      s_add_u32 s49, s48, 0x10000
      s_mov_b32 s50, {hex(f32(OPT["rng"]))}
      s_lshl_b32 s42, s42, 10
      s_and_b32 s43, s{sWV}, 1
      s_lshl_b32 s43, s43, 3
      s_add_u32 s42, s42, s43
      v_add_u32 v7, s42, v{VL16}
      v_add_u32 v28, {QL}, v28
      v_add_u32 v29, {QL}, v29
      v_add_u32 v26, 8192, v28
      v_add_u32 v27, 8192, v29
      s_and_b32 s45, s{sTAG}, 1
      s_mul_i32 s45, s45, 0x55555555
      s_and_b32 s44, s{sTAG}, 0xaaaaaaaa
      s_or_b32 s45, s45, s44
      s_mov_b32 s44, 0x00010001""")
lds_wait(F_QAP, 1, 42)
if OPT["d2"]: g(f"s_sleep {OPT['d2']}")
def h2_issue(lv):
    if OPT["h2land"] == lv:
        g(h2_loads)
        if OPT['uvgate'] == 1: lds_inc(F_H2I)
        stamp(5)
h2_issue(0)
land_wait(2, 42, 24, sleep=1)
h2_issue(2)
pva_reads(0); pva_reads(1)
land_wait(3, 42, 24, sleep=1)
h2_issue(3)
pva_reads(2)
g(f"s_cmp_lt_u32 s{sWV}, 6\ns_cbranch_scc1 L_qka")
land_wait(4, 42, 24)
g.label("L_qka")
qka_reads()
stamp(6)
L, Lo = g.nl("h2c"), g.nl("h2co")
g(f"s_mov_b32 s43, {LIM_MEM}")
g.label(L)
g("s_waitcnt vmcnt(0)")
tagcheck([9, 11, 13, 15, 17, 19, 21, 23], 24)
g(f"""s_cbranch_vccz {Lo}
      s_sub_u32 s43, s43, 1
      s_cbranch_scc1 {Lo}
      s_sleep {OPT["bk2"]}
      s_mov_b64 exec, vcc""")
g(h2_loads)
g(f"s_mov_b64 exec, -1\ns_branch {L}")
g.label(Lo)
cnt(24, 43)
stamp(7)
for n in range(4):
    g(f"ds_write2_b32 v{[28, 26, 29, 27][n]}, v{8+4*n}, v{10+4*n} offset0:0 offset1:1")
lds_inc(F_STG)
def bread(s): return f"ds_read_b128 {vr(8+4*(s&3),4)}, v{30+(s&1)} offset:{QL+s*1024}"
lds_wait(F_STG, 8, 42)
stamp(8)
g("\n".join(bread(s) for s in range(4)))
SA = 24
for s in range(16):
    g(f"s_waitcnt lgkmcnt({min(3, 15-s)})")
    mfma(SA, QKA + 4 * s, 8 + 4 * (s & 3), s == 0)
    if s + 4 < 16: g(bread(s + 4))
VM = 10
PF, OA = 32, 48
def pread(u): return f"ds_read_b128 {vr(PF+4*u,4)}, v{VL16} offset:{PL+1024*u}"
g("s_nop 7")
for r in range(4): g(f"v_exp_f32 v{12+r}, v{SA+r}")
g(f"""v_max3_f32 v9, v{SA}, v{SA+1}, v{SA+2}
      v_cvt_pk_bf16_f32 v16, v12, v13
      v_cvt_pk_bf16_f32 v17, v14, v15
      v_max_f32 v9, v9, v{SA+3}
      ds_write_b64 v7, v[16:17] offset:{PL}
      v_cmp_nle_f32 vcc, abs(v9), s50
      s_cmp_lg_u64 vcc, 0
      s_cselect_b32 s48, s49, s48
      s_mov_b64 exec, 1
      v_mov_b32 v8, s48
      ds_add_u32 v{VZ}, v8 offset:{F_PC}
      s_mov_b64 exec, -1""")
pva_reads(3)
stamp(15)
TP, IBV = 80, 84
fill = [f"v_lshrrev_b32 v12, 3, v{vN}",
        f"v_lshl_add_u32 v12, v{vKG}, 2, v12      ; head = 4q + (j>>3)",
        f"v_lshlrev_b32 v{IBV}, 17, v12",
        f"v_and_b32 v12, 7, v{vN}",
        f"v_lshl_add_u32 v{IBV}, v12, 4, v{IBV}",
        f"v_and_b32 v12, 3, v{LANE}",
        f"v_lshlrev_b32 v12, 3, v12",
        f"v_lshrrev_b32 v12, v12, s45",
        f"v_and_b32 v13, 0xff, v12", f"v_lshlrev_b32 v12, 15, v13", f"v_or_b32 v12, v12, v13"]
for d in range(4): fill += [f"v_lshrrev_b32 v13, {2*d}, v12", f"v_and_b32 v{TP+d}, s44, v13"]
S1 = 2
for _ in range(3): g(fill.pop(0))
pc_wait(0xff, 0x22, 42, 48)
g("\n".join(pread(u) for u in range(S1)))
for u in range(S1):
    g(f"s_waitcnt lgkmcnt({S1-1-u})")
    for i in range(4):
        mfma(OA + 4 * i, PF + 4 * u, PVA + 16 * i + 4 * u, u == 0)
        for _ in range(2): g(fill.pop(0))
assert not fill
pc_wait(0xffff, 0x2222, 42, 48)
g("\n".join(pread(u) for u in range(S1, 4)))
g(f"s_cmp_lg_u32 s42, 0x2222\ns_cbranch_scc1 L_slow")
stamp(9)
for u in range(S1, 4):
    g(f"s_waitcnt lgkmcnt({3-u})")
    for i in range(4): mfma(OA + 4 * i, PF + 4 * u, PVA + 16 * i + 4 * u, u == 0)
g.label("L_pv2")
GR = 64
g("s_nop 6")
for a in range(2):
    A0, B0, T0 = GR + 4 * a, GR + 4 * a + 2, 72
    for d in range(2):
        g(f"v_perm_b32 v{A0+d}, v{OA+8*d+4+2*a}, v{OA+8*d+2*a}, s{sPHI}")
        g(f"v_perm_b32 v{B0+d}, v{OA+8*d+4+2*a+1}, v{OA+8*d+2*a+1}, s{sPHI}")
    g("s_nop 0")
    for d in range(2): g(f"v_mov_b32_dpp v{T0+d}, v{A0+d} row_ror:8 {DPPM}")
    for d in range(2): g(f"v_mov_b32_dpp v{A0+d}, v{B0+d} row_ror:8 row_mask:0xf bank_mask:0xc")
    for d in range(2): g(f"v_mov_b32_dpp v{B0+d}, v{T0+d} quad_perm:[0,1,2,3] row_mask:0xf bank_mask:0x3")
    for d in range(4): g(f"v_xad_u32 v{A0+d}, v{TP+d}, s44, v{A0+d}")
    for d in range(4): g(f"v_bfi_b32 v{A0+d}, s44, v{TP+d}, v{A0+d}")
    g(f"buffer_store_dwordx4 {vr(A0,4)}, v{IBV}, {sr(WS,4)}, s{26 if a == 0 else 22} offen sc1")
if OPT["wogate"] == 1 or OPT["forder"] == 5: lds_inc(F_H3)
stamp(10)
if OPT["pr0"]: g("s_setprio 0")
MK = 76
g(f"""v_and_b32 v12, 1, v{LANE}
      v_lshlrev_b32 v12, 4, v12
      v_mov_b32 v13, 0xffff
      v_lshlrev_b32 v13, v12, v13
      v_bfe_u32 v12, v{LANE}, 1, 2""")
for p in range(4):
    g(f"v_cmp_eq_u32 vcc, {p}, v12\ns_nop 1\nv_cndmask_b32 v{MK+p}, v{VZ}, v13, vcc")
g(f"""v_lshlrev_b32 v16, 2, v{vN}
      s_lshl_b32 s42, s{sWV}, 6
      v_add_u32 v16, s42, v16
      v_lshrrev_b32 v17, 3, v{LANE}
      v_lshlrev_b32 v17, 2, v17
      v_add_u32 v17, s42, v17
      v_lshrrev_b32 v18, 3, v{vN}             ; a = j>>3
      s_lshl_b32 s42, s{sWV}, 1
      v_add_u32 v19, s42, v18
      v_mul_u32_u24 v19, 144, v19
      v_and_b32 v20, 7, v{vN}
      v_lshl_add_u32 v19, v20, 4, v19
      v_and_b32 v20, 1, v{vKG}
      v_lshl_add_u32 v19, v20, 3, v19
      v_lshrrev_b32 v20, 1, v{vKG}
      v_cmp_eq_u32 s[46:47], v18, v20
      v_lshlrev_b32 v14, 3, v{LANE}           ; lane*8""")
if OPT["d3"]: g(f"s_sleep {OPT['d3']}")
stamp(22)
IR = 104
ib_loads = f"""buffer_load_dwordx4 {vr(IR,4)}, v{VL16}, {sr(WS,4)}, s30 offen sc1
      buffer_load_dwordx4 {vr(IR+4,4)}, v{VL16}, {sr(WS,4)}, s30 offen offset:1024 sc1"""
def hdr_poll(nm, off, dstoff, flag, after="", mark=False):
    L, Lo = g.nl(nm), g.nl(nm + "o")
    g(f"s_mov_b32 s43, {LIM_MEM}")
    if OPT["bkh"]:
        Lf = g.nl(nm + "f")
        g(f"s_branch {Lf}")
    g.label(L)
    if OPT["bkh"]:
        g(f"s_sleep {OPT['bkh']}")
        g.label(Lf)
    g(f"""s_load_dwordx16 s[52:67], s[24:25], {off} glc
          s_load_dwordx16 s[68:83], s[24:25], {off+64} glc
          s_sub_u32 s43, s43, 1
          s_cbranch_scc1 {Lo}
          s_waitcnt lgkmcnt(0)
          s_add_u32 s19, s53, s55""")
    for k in range(2, 16): g(f"s_add_u32 s19, s19, s{53+2*k}")
    g(f"s_cmp_eq_u32 s19, s18\ns_cbranch_scc0 {L}")
    g.label(Lo)
    g("s_waitcnt lgkmcnt(0)")
    if after: g(after)
    for k in range(16): g(f"v_writelane_b32 v24, s{52+2*k}, {k}")
    g("s_mov_b64 exec, 0xffff")
    if mark:
        g(f"""v_cmp_gt_i32 vcc, 0, v24
              s_cmp_lg_u64 vcc, 0
              s_cselect_b32 s42, 0x101, 1
              v_mov_b32 v25, s42""")
    g(f"""ds_write_b32 v16, v24 offset:{dstoff}
          s_mov_b64 exec, 1
          ds_add_u32 v{VZ}, v{25 if mark else VONE} offset:{flag}
          s_mov_b64 exec, -1""")
g(f"""s_add_u32 s24, s{WS}, s31
      s_addc_u32 s25, s{WS+1}, 0
      s_lshl_b32 s18, s{sTAG}, 4""")
for n in range(2):
    for p in range(4): g(f"v_and_b32 v{88+4*n+p}, 0x3f803f80, v{MK+p}")
if OPT["d3a"]: g(f"s_sleep {OPT['d3a']}")
if OPT["pr0"]: g("s_setprio 2")
hdr_poll("h3l", LOFF, LT, F_LT, after=(f"s_sleep {OPT['d3b']}\n" if OPT["d3b"] else "") + ib_loads, mark=True)
cnt(25, 43)
stamp(11)
pc_wait(0xff, 8, 42, 43, off=F_LT)
g("s_cmp_lg_u32 s42, 8\ns_cbranch_scc1 L_genw")
g.label("L_genw_ret")
L, Lo = g.nl("h3d"), g.nl("h3do")
g(f"s_mov_b32 s43, {LIM_MEM}")
g.label(L)
g(f"s_waitcnt vmcnt(0)\nv_xor_b32 v{VT}, v{IR}, v{TP}")
for k in range(1, 8): g(f"v_bitop3_b32 v{VT}, v{IR+k}, v{TP+(k&3)}, v{VT} bitop3:0xbe")
g(f"""v_and_b32 v{VT}, s44, v{VT}
      v_cmp_ne_u32 vcc, 0, v{VT}
      s_cbranch_vccz {Lo}
      s_sub_u32 s43, s43, 1
      s_cbranch_scc1 {Lo}
      s_lshr_b64 s[48:49], vcc, 4
      s_or_b64 vcc, vcc, s[48:49]
      s_lshr_b64 s[48:49], vcc, 2
      s_or_b64 vcc, vcc, s[48:49]
      s_lshr_b64 s[48:49], vcc, 1
      s_or_b64 vcc, vcc, s[48:49]
      s_and_b32 s48, vcc_lo, 0x01010101
      s_and_b32 s49, vcc_hi, 0x01010101
      s_mul_i32 exec_lo, s48, 0xff
      s_mul_i32 exec_hi, s49, 0xff
      s_sleep {OPT["bk3"]}
      {ib_loads}
      s_branch {L}""")
g.label(Lo)
g("s_mov_b64 exec, -1")
cnt(26, 43)
stamp(12)
mfma(96, 88, IR, True)
mfma(96, 92, IR + 4, False)
g(f"""s_nop 7
      v_cvt_pk_bf16_f32 v100, v96, v97
      v_cvt_pk_bf16_f32 v101, v98, v99
      s_mov_b64 exec, s[46:47]
      ds_write_b64 v19, v[100:101] offset:{RIB}
      s_mov_b64 exec, 1
      ds_add_u32 v{VZ}, v{VONE} offset:{F_IB}
      s_mov_b64 exec, -1""")
stamp(13)
g(f"""s_cmp_lt_u32 s{sWG}, 20
      s_cbranch_scc0 L_A_end
      s_lshl_b32 s41, s{sWG}, 14
      s_lshl_b32 s42, s{sWV}, 11
      s_add_u32 s41, s41, s42
      s_add_u32 s41, s41, {SM}
      v_and_b32 v7, 7, v{LANE}
      v_lshlrev_b32 v7, 2, v7
      v_lshrrev_b32 v6, 5, v{LANE}
      v_lshl_add_u32 v7, v6, 1, v7
      v_and_b32 v6, 1, v{vKG}
      v_add_u32 v7, v7, v6
      v_lshlrev_b32 v18, 5, v7
      s_lshl_b32 s42, s{sWV}, 2
      v_add_u32 v6, s42, v18
      v_lshlrev_b32 v7, 1, v7
      s_lshl_b32 s55, s{sWG}, 6""")
tagbytes()
def red8(b):
    g(f"""s_nop 1
          v_permlane32_swap_b32 v{b}, v{b+2}
          v_permlane32_swap_b32 v{b+1}, v{b+3}
          v_pk_add_f32 {vr(b,2)}, {vr(b,2)}, {vr(b+2,2)}
          s_nop 1
          v_permlane16_swap_b32 v{b}, v{b+1}
          v_add_f32 v{b}, v{b}, v{b+1}
          s_nop 1
          v_add_f32_dpp v{b}, v{b}, v{b} row_ror:8 {DPPM}""")
g(f"""s_cmp_eq_u32 s{sWV}, 0
      s_cbranch_scc0 L_fin_s""")
srd(SR, P_X, 1280)
g(f"""buffer_load_ushort v16, v7, {sr(SR,4)}, s55 offen
      s_lshl_b32 s40, s{sWG}, 12
      s_add_u32 s40, s40, {YM}""")
for d in range(4): g(f"v_mov_b32 v{60+d}, s{sTB+d}\nv_and_b32 v{60+d}, 0xff, v{60+d}")
poll_loads("h7", f"""buffer_load_dwordx4 v[48:51], v{VL16}, {sr(WS,4)}, s40 offen sc1
      buffer_load_dwordx4 v[52:55], v{VL16}, {sr(WS,4)}, s40 offen offset:1024 sc1
      buffer_load_dwordx4 v[56:59], v{VL16}, {sr(WS,4)}, s40 offen offset:2048 sc1
      s_mov_b64 exec, 0xffffff
      buffer_load_dwordx4 v[60:63], v{VL16}, {sr(WS,4)}, s40 offen offset:3072 sc1
      s_mov_b64 exec, -1""", [48, 52, 56, 60], 43, sleep=4, mask=False, b8=True)
sum_groups(48, 4)
red8(48)
rne(48)
g(f"""v_mul_f32 v49, {hex(f32(-math.log2(math.e)))}, v48
      v_exp_f32 v49, v49
      s_nop 0
      v_add_f32 v49, 1.0, v49
      v_rcp_f32 v49, v49
      s_nop 0
      v_mul_f32 v48, v48, v49""")
rne(48)
g("v_lshlrev_b32 v20, 16, v16")
stamp(19)
g.label("L_fin_s")
lds_wait(F_SD, 4 - OPT["w8x3"], 42, sleep=1)
if OPT["d5"]: g(f"s_sleep {OPT['d5']}")
poll_loads("h5", f"""buffer_load_dwordx4 v[32:35], v{VL16}, {sr(WS,4)}, s41 offen sc1
      buffer_load_dwordx4 v[36:39], v{VL16}, {sr(WS,4)}, s41 offen offset:1024 sc1""", [32, 36], 43, sleep=OPT["bk5"], b8=True)
cnt(27, 43)
stamp(20)
sum_groups(32, 2)
red8(32)
g(f"""ds_write_b32 v6, v32 offset:{RFIN}
      s_mov_b64 exec, 1
      ds_add_u32 v{VZ}, v{VONE} offset:{F_FIN}
      s_mov_b64 exec, -1
      s_cmp_eq_u32 s{sWV}, 0
      s_cbranch_scc0 L_A_end""")
srd(44, P_OUT, 1280)
lds_wait(F_FIN, 8, 42, extra=f"ds_read_b128 v[32:35], v18 offset:{RFIN}\nds_read_b128 v[36:39], v18 offset:{RFIN+16}")
sum_groups(32, 2)
g("v_pk_add_f32 v[32:33], v[32:33], v[34:35]\nv_add_f32 v32, v32, v33")
rne(32)
g("v_mul_f32 v32, v32, v48")
rne(32)
g(f"""v_add_f32 v32, v32, v20
      v_cvt_pk_bf16_f32 v32, v32, v32
      buffer_store_short v32, v7, {sr(44,4)}, s55 offen {'sc1' if OPT['osc'] else ''}
      s_cmp_eq_u32 s{sWG}, 0
      s_cbranch_scc0 L_noep
      s_mov_b64 exec, 1
      v_mov_b32 v13, s{sTAG}
      buffer_store_dword v13, v{VZ}, {sr(WS,4)}, 0 offen offset:{EPOCH} sc1""")
g.label("L_noep")
stamp(21)
g.label("L_A_end")
ts_flush()
g("s_endpgm")
g.label("L_genw")
hdr_poll("h3m", 0, MLT, F_ML)
lds_wait(F_ML, 8, 42)
g(f"""ds_read_b64 v[24:25], v14 offset:{MLT}
      ds_read_b32 v8, v17 offset:{MLT}
      ds_read_b32 v9, v17 offset:{MLT+32}
      s_waitcnt lgkmcnt(0)""")
global_max(22, 24)
g(f"""v_sub_f32 v8, v8, v22
      v_sub_f32 v9, v9, v22
      v_exp_f32 v8, v8
      v_exp_f32 v9, v9
      s_nop 0
      v_cvt_pk_bf16_f32 v8, v8, v8
      v_cvt_pk_bf16_f32 v9, v9, v9""")
for n in range(2):
    for p in range(4): g(f"v_and_b32 v{88+4*n+p}, v{8+n}, v{MK+p}")
g("s_branch L_genw_ret")
g.label("L_slow")
g(f"""v_mov_b32 v8, v9
      v_lshlrev_b32 v6, 5, v{vN}
      s_lshl_b32 s42, s{sWV}, 2
      v_add_u32 v29, s42, v6
      s_mov_b32 s43, 0x3f803f80
      v_permlane16_swap_b32 v9, v8
      v_max_f32 v9, v9, v8
      v_mov_b32 v8, v9
      s_nop 1
      v_permlane32_swap_b32 v9, v8
      v_max_f32 v9, v9, v8
      s_mov_b64 exec, 0xffff
      ds_write_b32 v29, v9 offset:{RMX}
      s_mov_b64 exec, 1
      ds_add_u32 v{VZ}, v{VONE} offset:{F_MAX}
      s_mov_b64 exec, -1""")
lds_wait(F_MAX, 8, 42, extra=f"ds_read_b128 v[12:15], v6 offset:{RMX}\nds_read_b128 v[16:19], v6 offset:{RMX+16}")
g(f"""v_max3_f32 v{VM}, v12, v13, v14
      v_max3_f32 v16, v15, v16, v17
      v_max3_f32 v{VM}, v{VM}, v18, v19
      v_max_f32 v{VM}, v{VM}, v16""")
for r in range(4): g(f"v_sub_f32 v{SA+r}, v{SA+r}, v{VM}")
for r in range(4): g(f"v_exp_f32 v{SA+r}, v{SA+r}")
g(f"""v_lshlrev_b32 v15, {HS}, v{vN}
      v_cvt_pk_bf16_f32 v12, v{SA}, v{SA+1}
      v_cvt_pk_bf16_f32 v13, v{SA+2}, v{SA+3}
      ds_write_b64 v7, v[12:13] offset:{PL}""")
lds_inc(F_P)
lds_wait(F_P, 8, 42)
g("\n".join(pread(u) for u in range(4)))
g("v_mov_b32 v12, 0\nv_mov_b32 v14, 0\ns_waitcnt lgkmcnt(0)")
for u in range(4):
    for i in range(4):
        mfma(OA + 4 * i, PF + 4 * u, PVA + 16 * i + 4 * u, u == 0)
        g(f"v_dot2c_f32_bf16 v{12+2*(i&1)}, s43, v{PF+4*u+i}")
def lsum():
    g(f"""v_mov_b32 v13, s{sTAG}
          v_mov_b32 v11, s{sTAG}
          s_nop 0
          v_add_f32 v12, v12, v14
          v_mov_b32 v14, v12
          s_nop 1
          v_permlane16_swap_b32 v12, v14
          v_add_f32 v12, v12, v14
          v_mov_b32 v14, v12
          s_nop 1
          v_permlane32_swap_b32 v12, v14
          v_add_f32 v12, v12, v14""")
lsum()
g(f"""v_or_b32 v12, 0x80000000, v12
      s_cmp_eq_u32 s{sWV}, 0
      s_cbranch_scc0 L_pv2
      s_mov_b64 exec, 0xffff
      buffer_store_dwordx2 v[10:11], v15, {sr(WS,4)}, s27 offen sc1
      buffer_store_dwordx2 v[12:13], v15, {sr(WS,4)}, s23 offen sc1
      s_mov_b64 exec, -1
      s_branch L_pv2""")

KORD = (0, 2, 1, 3)
TH = OPT["gthr"]
def wo_setup():
    g(f"""v_mul_u32_u24 v6, {8*1280}, v{vKG}
          v_lshl_add_u32 v6, v{vN}, 3, v6
          s_lshl_b32 s40, s{sHF}, 7
          s_lshr_b32 s41, s{sJ}, 1
          s_lshl_b32 s41, s41, 5
          s_add_u32 s40, s40, s41
          s_mul_i32 s40, s40, 1280
          s_and_b32 s41, s{sJ}, 1
          s_mul_i32 s41, s41, 640
          s_add_u32 s48, s40, s41""")
    srd(44, P_WO, 5242880)

def wo_gate():
    if OPT["wogate"] == 1: lds_wait(F_H3, 8, 40, sleep=1)
    elif OPT["wogate"] == 2: lds_wait(F_IB, 1, 40, sleep=2)

def h4_setup():
    g(f"""v_and_b32 v31, 7, v{vN}
          v_lshlrev_b32 v29, 7, v31
          v_lshl_add_u32 v29, v{vKG}, 5, v29
          s_lshl_b32 s50, s{sHF}, 2
          s_lshr_b32 s51, s{sJ}, 1
          s_add_u32 s50, s50, s51                 ; p = h*4+dq
          s_lshl_b32 s61, s50, 10
          s_add_u32 s61, s61, {CXM}
          v_lshrrev_b32 v30, 3, v{vN}
          v_lshlrev_b32 v30, 14, v30
          v_lshl_add_u32 v30, v31, 4, v30         ; (n>>3)*16K + (n&7)*16
          v_mov_b32 v31, 0xff
          s_and_b32 s41, s{sJ}, 1
          s_mul_i32 s41, s41, {10*16384}
          s_lshl_b32 s50, s50, 7
          s_add_u32 s50, s50, s41
          s_add_u32 s50, s50, {SM}""")
    tagbytes()

def h4_warm(A, cbks):
    g(f"buffer_load_dwordx4 {vr(A,4)}, v29, {sr(WS,4)}, s61 offen sc1")
    for cbk in cbks:
        g(f"""s_add_u32 s51, s50, {cbk*2*16384}
              buffer_load_dwordx4 {vr(A+4,4)}, v30, {sr(WS,4)}, s51 offen sc1""")

def h4_wait(A, late=""):
    Ls = g.nl("h4s")
    onfail = f"""s_cmp_lg_u32 s43, {LIM_MEM-32}
          s_cbranch_scc1 {Ls}
          {late}
          {Ls}:""" if (OPT["fast4"] and late) else ""
    poll_loads("h4", f"""buffer_load_dwordx4 {vr(A,4)}, v29, {sr(WS,4)}, s61 offen sc1
          buffer_load_dwordx4 {vr(A+4,4)}, v29, {sr(WS,4)}, s61 offen offset:16 sc1""", [A+1, A+3, A+5, A+7], 43, sleep=OPT["bk4"], onfail=onfail)
    g(f"v_mov_b32 v{A+1}, v{A+4}\nv_mov_b32 v{A+3}, v{A+6}\ns_nop 1")

def rl_wait():
    lds_wait(F_RLV, 1, 40, extra=f"ds_read_b32 v28, v{VZ} offset:{RLINV}")

def wo_compute(A, frags, cbks, D):
    for bi, fr in enumerate(frags):
        for t in range(4): mfma(D + 16 * bi + 4 * t, A, fr + 4 * t, True)
    g("s_nop 4" if len(frags) == 1 else "s_nop 0")
    for bi, cbk in enumerate(cbks):
        d = D + 16 * bi
        for t in range(4): g(f"v_pk_add_f32 {vr(d+4*t,2)}, {vr(d+4*t,2)}, {vr(d+4*t+2,2)}")
        for t in range(4): g(f"v_add_f32 v{16+t}, v{d+4*t}, v{d+4*t+1}")
        for t in range(4): g(f"v_mov_b32 v{20+t}, v{16+t}")
        g(f"s_add_u32 s51, s50, {cbk*2*16384}")
        for t in range(4): g(f"v_permlane16_swap_b32 v{16+t}, v{20+t}")
        g("v_pk_add_f32 v[16:17], v[16:17], v[20:21]\nv_pk_add_f32 v[18:19], v[18:19], v[22:23]")
        for t in range(4): g(f"v_mul_f32 v{d+t}, v{16+t}, v28")
        tagput([d, d+1, d+2, d+3], 31)
        g(f"""s_mov_b64 exec, 0xffff
              buffer_store_dwordx4 {vr(d,4)}, v30, {sr(WS,4)}, s51 offen sc1
              s_mov_b64 exec, -1""")
    lds_inc(F_SD)

def b1_gate():
    if OPT["b1gate"]:
        land_flush()
        lds_wait(F_STG, OPT['b1gate'], 40, sleep=2)

g.label("L_G")
if OPT["ldw"]: g(f"s_sleep {OPT['ldw']}")
get_tag(6)
g(f"""s_cmp_eq_u32 s{sWV}, 10
      s_cbranch_scc1 L_G_uv10""")
LD.pending = False
wo_setup(); h4_setup()
b1_gate()
if OPT["wogate"]: land_flush()
wo_gate()
stamp(4)
load_block(32, 6, 44, 48, 42, 1280, TH)
g("s_add_u32 s49, s48, 128")
load_block(48, 6, 44, 49, 42, 1280, TH)
X3 = OPT["w8x3"]
if X3:
    g("s_add_u32 s49, s48, 512")
    load_block(144, 6, 44, 49, 42, 1280, TH)
land_flush()
g(f"s_waitcnt vmcnt({8+8*X3})")
perm_block(32, 64, KORD)
g(f"s_waitcnt vmcnt({8*X3})")
perm_block(48, 80, KORD)
if X3:
    g("s_waitcnt vmcnt(0)")
    perm_block(144, 32, KORD)
h4_warm(8, [0, 1] + [4] * X3)
stamp(5)
g(f"""v_lshlrev_b32 v16, 3, v{LANE}
""")
g("v_mov_b32 v20, 1.0\nv_mov_b32 v21, 1.0")
lds_wait(F_LT, 1, 40, sleep=1)
g("s_setprio 2")
pc_wait(0xff, 8, 40, 41, off=F_LT, extra=f"ds_read_b64 v[24:25], v16 offset:{LT}")
g("s_cmp_eq_u32 s40, 8\ns_cbranch_scc1 L_unitw")
lds_wait(F_ML, 8, 40)
g(f"ds_read_b64 v[20:21], v16 offset:{MLT}\ns_waitcnt lgkmcnt(0)")
global_max(22, 20)
g(f"""v_sub_f32 v20, v20, v22
      v_sub_f32 v21, v21, v22
      v_exp_f32 v20, v20
      v_exp_f32 v21, v21
      s_nop 0""")
rne(20); rne(21)
g.label("L_unitw")
g("v_mul_f32 v24, abs(v24), v20\nv_fma_f32 v24, abs(v25), v21, v24")
wave_sum(24, 40)
g(f"""s_nop 1
      v_rcp_f32 v24, s40
      s_nop 0
      ds_write_b32 v{VZ}, v24 offset:{RLINV}
      ds_write_b32 v{VZ}, v{VONE} offset:{F_RLV}
      v_mov_b32 v28, v24""")
lds_wait(F_IB, 8, 40, sleep=1)
h4_wait(8)
stamp(6)
wo_compute(8, [64, 80] + [32] * X3, [0, 1] + [4] * X3, 96)
stamp(7)
g("s_branch L_G_end")

def uv_loads():
    g(f"""v_lshlrev_b32 v7, 13, v{vKG}
          v_lshl_add_u32 v7, v{vN}, 3, v7
          s_lshl_b32 s56, s{sJ}, 17               ; 16j rows
          s_lshl_b32 s41, s{sHF}, 8
          s_add_u32 s56, s56, s41
          s_sub_u32 s52, s{sWV}, 9                ; colhalf
          s_lshl_b32 s41, s52, 7
          s_add_u32 s56, s56, s41
          s_add_u32 s57, s56, {4*8192}""")
    srd(SR, P_WUV, 4194304)
    b1_gate()
    stamp(4)
    rows = [128 * (e & 3) + 8 * (e >> 2) for e in range(8)]
    load_block(32, 7, SR, 56, 42, 8192, TH, rows)
    load_block(48, 7, SR, 57, 42, 8192, TH, rows)
g.label("L_G_uv10")
g.label("L_G_uv9")
LD.pending = False
uv_loads()
g.label("L_G_uv")
wo_setup(); h4_setup()
g(f"""s_add_u32 s49, s52, 2
      s_mul_i32 s53, s49, {2*16384}
      s_add_u32 s50, s50, s53
      s_lshl_b32 s49, s49, 7
      s_add_u32 s49, s49, s48
      v_and_b32 v7, 7, v{vN}
      v_mul_u32_u24 v8, 144, v{vN}
      v_lshl_add_u32 v8, v{vKG}, 4, v8
      v_lshlrev_b32 v9, 4, v{LANE}
      v_lshrrev_b32 v11, 3, v{vN}
      v_lshlrev_b32 v11, 10, v11
      v_lshl_add_u32 v11, v7, 4, v11          ; (n>>3)*1024 + (n&7)*16
      s_lshl_b32 s40, s{sHF}, 2
      s_lshl_b32 s41, s52, 1
      s_add_u32 s40, s40, s41
      s_lshl_b32 s40, s40, 3
      s_add_u32 s40, s40, s{sJ}
      s_lshl_b32 s40, s40, 7
      s_add_u32 s54, s40, {CXM}""")
if not OPT["wogate"]:
    load_block(64, 6, 44, 49, 42, 1280, TH)
    h4_warm(16, [0])
g(f"""s_cmp_eq_u32 s{sWV}, 9
      s_cbranch_scc0 L_nohd
      s_and_b32 s56, s{sSLOT}, 1
      s_lshl_b32 s56, s56, {HS-3}
      s_add_u32 s56, s56, s{sXCD}
      s_lshl_b32 s56, s56, 4
      s_lshr_b32 s57, s{sSLOT}, 1
      s_add_u32 s56, s56, s57
      s_lshl_b32 s56, s56, 3
      s_add_u32 s56, s56, {HD}
      s_add_u32 s57, s56, {LOFF}
      v_lshlrev_b32 v15, {HS}, v{vN}
      v_mov_b32 v24, 0
      v_mov_b32 v25, s{sTAG}
      v_mov_b32 v12, 0
      v_mov_b32 v14, 0
      v_mov_b32 v26, v11
      s_mov_b32 s58, 0x3f803f80""")
pc_wait(0xfff, 0x222, 40, 41, sleep=1)
g(f"s_setprio {OPT['hp']}")
pc_wait(0xffff, 0x2222, 40, 41)
g(f"""s_cmp_lg_u32 s40, 0x2222
      s_cbranch_scc1 L_nohd2""")
g("\n".join(f"ds_read_b128 {vr(128+4*u,4)}, v9 offset:{PL+1024*u}" for u in range(4)))
for u in range(4):
    g(f"s_waitcnt lgkmcnt({3-u})")
    for i in range(4): g(f"v_dot2c_f32_bf16 v{12+2*(i&1)}, s58, v{128+4*u+i}")
lsum()
if OPT["dl"]: g(f"s_sleep {OPT['dl']}")
g(f"""s_mov_b64 exec, 0xffff
      buffer_store_dwordx2 v[12:13], v15, {sr(WS,4)}, s57 offen sc1
      buffer_store_dwordx2 v[24:25], v15, {sr(WS,4)}, s56 offen sc1
      s_mov_b64 exec, -1""")
stamp(10)
g.label("L_nohd2")
g(f"""v_mov_b32 v11, v26
      s_setprio 0
      {"s_waitcnt vmcnt(2)" if not OPT["wogate"] else ""}""")
g.label("L_nohd")
if OPT["wogate"]:
    wo_gate()
    load_block(64, 6, 44, 49, 42, 1280, TH)
    h4_warm(16, [0])
g("s_waitcnt vmcnt(18)")
perm_block(32, 80)
g("s_waitcnt vmcnt(10)")
perm_block(48, 96)
g(f"v_mov_b32 v61, s{sTAG}\nv_mov_b32 v63, s{sTAG}")
g("s_waitcnt vmcnt(0)")
perm_block(64, 112, KORD)
stamp(5)
lds_wait(F_LT, 8, 40, sleep=2)
rl_wait()
g("s_setprio 3")
lds_wait(F_IB, 8, 40)
g(f"""ds_read_b128 v[32:35], v8 offset:{RIB}
      ds_read_b128 v[36:39], v8 offset:{RIB+64}""")
stamp(6)
D = 128
for blk in range(2):
    g(f"s_waitcnt lgkmcnt({1-blk})")
    for t in range(4): mfma(D + 4 * t, 32 + 4 * blk, 80 + 16 * blk + 4 * t, blk == 0)
g("s_nop 4")
for t in range(4): g(f"v_pk_add_f32 {vr(D+4*t,2)}, {vr(D+4*t,2)}, {vr(D+4*t+2,2)}")
for t in range(4): g(f"v_add_f32 v{16+t}, v{D+4*t}, v{D+4*t+1}")
g(f"""s_nop 0
      v_permlane32_swap_b32 v16, v18
      v_permlane32_swap_b32 v17, v19
      v_pk_add_f32 v[16:17], v[16:17], v[18:19]
      v_mov_b32 v18, v16
      v_mov_b32 v19, v17
      s_nop 0
      v_permlane16_swap_b32 v16, v18
      v_permlane16_swap_b32 v17, v19
      v_pk_add_f32 v[16:17], v[16:17], v[18:19]
      v_cvt_pk_bf16_f32 v60, v16, v17
      v_mov_b32 v62, v60
      s_nop 1
      v_permlane32_swap_b32 v60, v62""")
g(f"""s_mov_b64 exec, 0xffff
      buffer_store_dwordx4 v[60:63], v11, {sr(WS,4)}, {"s54 offen" if OPT["fast4"] else "s54 offen sc1"}
      s_mov_b64 exec, -1""")
stamp(7)
late = f"s_mov_b64 exec, 0xffff\nbuffer_store_dwordx4 v[60:63], v11, {sr(WS,4)}, s54 offen sc1"
h4_wait(32, late)
stamp(8)
wo_compute(32, [112], [0], 128)
if OPT["fast4"]: g(f"s_sleep {OPT['d4']}\n" + late + "\ns_mov_b64 exec, -1")
stamp(9)
g("s_branch L_G_end")

g.label("L_FFNb")
PEND = OPT["fgate"] != 9 and not OPT["uk6"]
if OPT["remap"]:
    g(f"""s_and_b32 s40, s{sXCD}, 1
          s_lshl_b32 s62, s{sSLOT}, 1
          s_add_u32 s62, s62, s40                 ; u in 0..63
          s_lshr_b32 s63, s{sXCD}, 1              ; mq""")
else:
    g(f"""s_lshr_b32 s40, s{sSLOT}, 3             ; hq
      s_lshl_b32 s40, s40, 1
      s_and_b32 s41, s{sJ}, 1
      s_add_u32 s40, s40, s41
      s_lshl_b32 s40, s40, 3
      s_add_u32 s62, s40, s{sXCD}             ; u in 0..63
      s_lshr_b32 s63, s{sJ}, 1                ; mq""")
g(f"""v_and_b32 v31, 1, v{vKG}
      v_cmp_eq_u32 s[56:57], 1, v31
      s_cmp_lt_u32 s62, 27
      s_cbranch_scc0 L_FFN2""")
LD.pending = PEND; LD.n = 0
g(f"""v_mul_u32_u24 v28, {8*3456}, v{vKG}
      v_lshl_add_u32 v28, v{vN}, 3, v28
      v_lshlrev_b32 v7, 4, v{vKG}
      s_mul_i32 s58, s63, 320
      v_add_u32 v7, s58, v7
      s_mul_i32 s58, s63, {160*3456}
      s_lshl_b32 s41, s62, 7
      s_add_u32 s58, s58, s41""")
srd(SR, P_W1, 2211840)
stamp(4)
for b in range(5):
    if b: g(f"s_add_u32 s58, s58, {32*3456}")
    load_block(48 + 16 * b, 28, SR, 58, 42, 3456, OPT['fthr'])
land_flush()
D = 144
get_tag(6)
lds_wait(F_XN, 1, 40)
for b in range(5): g(f"ds_read_b128 {vr(XF+4*b,4)}, v7 offset:{XNL+64*b}")
g("s_waitcnt lgkmcnt(0)")
for b in range(5):
    g(f"s_waitcnt vmcnt({8*(4-b)})")
    perm_block(48 + 16 * b, 32 + 16 * b)
    g("s_nop 1")
    for t in range(4): mfma(D + 4 * t, XF + 4 * b, 32 + 16 * b + 4 * t, b == 0)
g(f"""v_lshlrev_b32 v28, 4, v{LANE}
      s_nop 0
      s_lshl_b32 s40, s62, 2
      s_add_u32 s40, s40, s63
      s_lshl_b32 s40, s40, 9
      s_add_u32 s40, s40, {HM}
      v_mov_b32 v9, s{sTAG}
      v_mov_b32 v11, s{sTAG}
      s_nop 1
      v_cndmask_b32 v8, v{D}, v{D+8}, s[56:57]
      v_cndmask_b32 v10, v{D+4}, v{D+12}, s[56:57]
      s_mov_b32 exec_hi, 0
      buffer_store_dwordx4 v[8:11], v28, {sr(WS,4)}, s40 offen sc1
      s_mov_b64 exec, -1
      s_branch L_FFNe""")
g.label("L_FFN2")
g(f"""s_mul_i32 s40, s63, 37
      s_add_u32 s40, s40, s62
      s_sub_u32 s58, s40, 27
      s_cmp_lt_u32 s58, 135
      s_cbranch_scc1 L_FFN2a""")
LD.pending = PEND; LD.n = 0
land_flush()
get_tag(6)
g("s_branch L_FFNe")
g.label("L_FFN2a")
LD.pending = PEND; LD.n = 0
g(f"""s_mul_i32 s59, s58, 205
      s_lshr_b32 s59, s59, 10                 ; fb = v/5
      s_mul_i32 s60, s59, 5
      s_sub_u32 s60, s58, s60                 ; mb
      v_mul_u32_u24 v28, {8*1280}, v{vKG}
      v_lshl_add_u32 v28, v{vN}, 3, v28
      s_mul_i32 s58, s59, {64*1280}
      s_lshl_b32 s41, s60, 8
      s_add_u32 s58, s58, s41""")
srd(SR, P_W2, 2211840)
if OPT["forder"] >= 2:
    land_flush()
    if OPT["forder"] == 2: lds_wait(F_ISS, 2, 40, sleep=2)
    if OPT["forder"] == 3: lds_wait(F_STG, 8, 40, sleep=2)
    if OPT["forder"] == 4: pc_wait(0xff, 8, 40, 41, off=F_LT, sleep=2)
stamp(4)
for ch in range(2):
    for blk in range(2):
        g(f"s_add_u32 s41, s58, {blk*32*1280 + ch*128}")
        load_block(48 + 16 * (2 * ch + blk), 28, SR, 41, 42, 1280, OPT['fthr2'])
land_flush()
get_tag(6)
for b in range(4):
    g(f"s_waitcnt vmcnt({8*(3-b)})")
    perm_block(48 + 16 * b, 32 + 16 * b)
g(f"""v_lshrrev_b32 v28, 2, v{vN}
      v_lshlrev_b32 v28, 9, v28
      v_lshl_add_u32 v28, v{vKG}, 5, v28
      v_bfe_u32 v29, v{vN}, 1, 1
      v_lshl_add_u32 v28, v29, 4, v28
      v_and_b32 v29, 1, v{vN}
      v_lshl_add_u32 v28, v29, 8, v28
      s_lshl_b32 s40, s59, 11
      s_add_u32 s40, s40, {HM}""")
poll_loads("h6", f"""buffer_load_dwordx4 v[8:11], v28, {sr(WS,4)}, s40 offen sc1
      buffer_load_dwordx4 v[12:15], v28, {sr(WS,4)}, s40 offen offset:128 sc1""", [9, 11, 13, 15], 43, sleep=6)
for mod in ("row_ror:4", "row_ror:8"):
    for r in (8, 10, 12, 14): g(f"v_add_f32_dpp v{r}, v{r}, v{r} {mod} {DPPM}")
for r in (8, 10, 12, 14): g(f"v_max_f32 v{r}, 0, v{r}")
g("v_cvt_pk_bf16_f32 v8, v8, v10\nv_cvt_pk_bf16_f32 v12, v12, v14\ns_nop 1")
for blk in range(2):
    for p in range(4):
        g(f"v_mov_b32_dpp v{16+4*blk+p}, v{8+4*blk} quad_perm:[{p},{p},{p},{p}] {DPPM}")
g("s_nop 1")
D = 96
for ch in range(2):
    for blk in range(2):
        for t in range(4): mfma(D + 16 * ch + 4 * t, 16 + 4 * blk, 32 + 16 * (2 * ch + blk) + 4 * t, blk == 0)
g(f"""v_lshrrev_b32 v28, 3, v{vN}
      v_lshlrev_b32 v28, 12, v28
      v_and_b32 v29, 7, v{vN}
      v_lshl_add_u32 v28, v29, 4, v28
      v_mov_b32 v29, 0xff
      s_lshl_b32 s40, s60, 14
      s_lshl_b32 s41, s59, 7
      s_add_u32 s40, s40, s41
      s_add_u32 s40, s40, {YM}
      s_add_u32 s41, s40, {2*4096}""")
tagbytes()
for ch in range(2):
    for t in range(4): g(f"v_bfi_b32 v{8+4*ch+t}, v29, s{sTB+t}, v{D+16*ch+4*t}")
g(f"""s_mov_b64 exec, 0xffff
      buffer_store_dwordx4 v[8:11], v28, {sr(WS,4)}, s40 offen sc1
      buffer_store_dwordx4 v[12:15], v28, {sr(WS,4)}, s41 offen sc1
      s_mov_b64 exec, -1""")
g.label("L_FFNe")
stamp(5)
if OPT["w8x3"]: g("s_branch L_G_end")
wo_setup(); h4_setup()
g("s_add_u32 s49, s48, 512")
if OPT["uvgate"] == 3: land_wait(4, 40, 24, sleep=1)
else: lds_wait(F_ISS, 2, 40, sleep=2)
b1_gate()
wo_gate()
load_block(128, 6, 44, 49, 42, 1280, TH)
g("s_waitcnt vmcnt(0)")
perm_block(128, 32, KORD)
h4_warm(8, [4])
lds_wait(F_LT, 8, 40, sleep=2)
rl_wait()
lds_wait(F_IB, 8, 40, sleep=1)
g("s_setprio 2")
h4_wait(8)
stamp(6)
wo_compute(8, [32], [4], 48)
stamp(7)
g.label("L_G_end")
if OPT["pad"]:
    g(f"""v_readfirstlane_b32 s40, v{VTS}
          s_cmp_lt_u32 s{sWG}, 8
          s_cbranch_scc0 L_END
          s_add_u32 s40, s40, {OPT["pad"]}""")
    if OPT["padmin"]:
        g(f"""s_load_dwordx2 s[44:45], s[0:1], 80
          s_mov_b32 s46, 256
          s_mov_b32 s47, 0x20000
          v_not_b32 v8, v{VTS}
          s_mov_b64 exec, 1
          s_waitcnt lgkmcnt(0)
          buffer_atomic_umax v8, v{VZ}, s[44:47], 0 offen
          s_waitcnt vmcnt(0)
          s_sleep 100
          buffer_load_dword v8, v{VZ}, s[44:47], 0 offen sc1
          s_waitcnt vmcnt(0)
          v_not_b32 v8, v8
          s_nop 1
          v_readfirstlane_b32 s40, v8
          s_nop 3
          s_add_u32 s40, s40, {OPT["pad"]}""")
    g(f"""L_padl:
          s_memrealtime s[42:43]
          s_waitcnt lgkmcnt(0)
          s_sub_u32 s41, s42, s40
          s_cmp_lt_i32 s41, 0
          s_cbranch_scc1 L_padl""")
ts_flush("G")
g.label("L_END")
g("s_endpgm")
g.l.append(".p2align 12")
g.label("L_CODE_END")

s = file_head([f"; @launch grid=(256,1,1) block=(768,1,1) lds={LDS_BYTES}"])
s += """// ---------------------------------------------------------------------------------------------
// group maximum inside +-64 (log2 units); otherwise the workgroup redoes it with the true maximum and
// ---------------------------------------------------------------------------------------------
"""
s += f""".text
.globl {K}
.p2align 12
.type {K},@function
{K}:
"""
s += g.text()
s += kernel_desc(K, 168, 102)
open(OUT, "w").write(s)
print(OUT, "lines", len(g.l), "ws_end", hex(WS_END))
```

```python
import sys, math, struct
from asmlib import *

OPT = dict(ts=0, stop=99, inflight=16, gate=12, ksmap=1, gthr=32, wogate=0, b1gate=0, pol=1, h2iss=2, amax=0, bk2=4, bk3=2, dbg=0, bk4=0, bk5=3, d3=0, d3b=0, d1=8, d5=8, fast4=1, warm=1, pad=0, padmin=0, padat=-1, padw=0, tlb=0, remap=1, dec=1, hk=4, hrep=1, mg1=1, mg2=1, mg3=0, mg4=0, nrep=4, qs=14, kvt=0, uk6=1, vt=0, pr0=1, hp=1, inf2=0, split=2, w8x3=0, pkv=-1, pwq=-1, puk=-1, puv=-1, pwo=-1, pw1=-1, pw2=-1, d2=0, fgate=2, fthr=32, ukgate=0, h2land=3, forder=0, fast1=0, dh=8, ldw=0, d3a=12, hl=0, rng=64, dl=8, uvgate=0, bkh=4, st1=2, osc=1, d4=0, recl=1, rot=5, fthr2=32)
for a in sys.argv[2:]:
    k, v = a.split("=")
    assert k in OPT and k != "fast1", k
    OPT[k] = int(v)
OUT = sys.argv[1] if len(sys.argv) > 1 else "k.s"
POLS = {0: "", 1: "nt", 2: "sc1", 3: "sc1 nt", 4: "sc0 sc1", 5: "sc0 sc1 nt", 6: "sc0", 7: "sc0 nt"}
def pol(name): return POLS[OPT[name] if OPT[name] >= 0 else OPT["pol"]]
CUR = {"p": "pwq"}

def f32(x): return struct.unpack("<I", struct.pack("<f", x))[0]

EPOCH = 0
QM   = 0x1000
QS = OPT["qs"]
if QS == 14:
    HD, HS, LOFF = QM + 0x80000, 10, 0x8000
    QAM = HD + 0x8000 * (1 + OPT['hrep'])
else:
    HD, HS, LOFF = QM + 0x4000, QS, 0x400
    QAM = QM + (32 << QS)
CXM  = QAM + 0x10000
HM   = CXM + 0x20000
YM   = HM + 0x10000
SM   = YM + 20 * 4096
IB   = SM + 20 * 16384
WS_END = IB + 256 * 8 * 2048
TSOFF = 0x1000000
WS_REC = 0x2000000 if (OPT["ts"] and not OPT["dbg"]) else WS_END

(F_Q, F_QA, F_LAND, F_ISS, F_H2I, F_STG, F_MAX, F_P, F_IB, F_UK, F_TAG, F_TAGV, F_QP, F_QI, F_SD, F_FIN) = [4 * i for i in range(16)]
RMAX = 0x40
RL   = 0x80
F_H3, F_ML, F_QAP, F_XN, F_L, F_RLV, RLINV, F_LT, F_LA, F_LB, F_WQ, F_PC = 0xC0, 0xC4, 0xC8, 0xCC, 0xD0, 0xD4, 0xD8, 0xDC, 0xE0, 0xE4, 0xE8, 0xEC
REDQ = 0x100
REDQA = 0x600
PL   = 0x1000
RIB  = 0x2000
RFIN = PL
MLT  = 0x2A00
LT   = 0x2C00
RMX  = 0x2E00
RLP  = REDQ
XNL  = 0x3000
QL   = 0x3800
KV   = 0x7800
LDS_BYTES = KV + 0x20000

SCALE = (128 ** -0.5) * math.log2(math.e)
LIM_LDS = 1 << 16
LIM_MEM = 1 << 13

class G:
    def __init__(s): s.l = []; s.n = 0
    def __call__(s, x):
        for ln in x.strip("\n").split("\n"):
            if ln.strip(): s.l.append("  " + ln.strip())
    def label(s, x): s.l.append(x + ":")
    def nl(s, p): s.n += 1; return f"L_{p}_{s.n}"
    def text(s): return "\n".join(s.l) + "\n"
g = G()

def vr(a, n): return f"v[{a}:{a+n-1}]"
def sr(a, n): return f"s[{a}:{a+n-1}]"

LANE, VZ, VONE, VT, vN, vKG = 0, 1, 2, 3, 4, 5
VTS = 167
VL16 = 166
sWG, sWV = 2, 3
WS = 4
SR = 8
sXCD, sSLOT, sHF, sJ = 12, 13, 14, 15
P_X, P_KV, P_WQ, P_WUK, P_WUV, P_WO, P_BX, P_W1, P_W2, P_OUT, P_DBG, P_WS = [16 + 2 * i for i in range(12)]
sHA, sCA = (sSLOT, sXCD) if OPT['remap'] else (sHF, sJ)
sTAG, sCNT = 28, 29
sPLO, sPHI = 100, 101
DPPM = "row_mask:0xf bank_mask:0xf"

def srd(base, ptr, nbytes):
    g(f"""s_mov_b32 s{base}, s{ptr}
          s_mov_b32 s{base+1}, s{ptr+1}
          s_mov_b32 s{base+2}, {nbytes}
          s_mov_b32 s{base+3}, 0x20000""")

def stamp(k):
    if OPT["padat"] == k:
        g(f"s_memrealtime vcc\ns_waitcnt lgkmcnt(0)\nv_writelane_b32 v{VTS}, vcc_lo, 0")
    if not OPT["ts"]: return
    g(f"""s_memrealtime vcc
          s_waitcnt lgkmcnt(0)
          v_writelane_b32 v{VTS}, vcc_lo, {k}""")

def cnt(k, sreg):
    if OPT["ts"]: g(f"v_writelane_b32 v{VTS}, s{sreg}, {k}")

def ts_flush(role="A"):
    if OPT["padat"] >= 0:
        Lp, Le = g.nl("pad"), g.nl("pade")
        g(f"s_nop 4\nv_readlane_b32 s40, v{VTS}, 0")
        g("s_nop 4")
        if OPT["padw"] >= 8: g(f"s_cmp_eq_u32 s{sWV}, {OPT['padw'] % 100}")
        else: g(f"s_cmp_lt_u32 s{sWV}, 8")
        g(f"""s_cbranch_scc0 {Le}
              s_cmp_eq_u32 s40, 0
              s_cbranch_scc1 {Le}
              s_add_u32 s40, s40, 3000
              {Lp}:
              s_sleep 8
              s_memrealtime s[42:43]
              s_waitcnt lgkmcnt(0)
              s_sub_u32 s41, s42, s40
              s_cmp_lt_i32 s41, -40
              s_cbranch_scc1 {Lp}
              {Lp}b:
              s_memrealtime s[42:43]
              s_waitcnt lgkmcnt(0)
              s_sub_u32 s41, s42, s40
              s_cmp_lt_i32 s41, 0
              s_cbranch_scc1 {Lp}b
              {Le}:""")
    if not OPT["ts"]: return
    if OPT["dbg"]:
        sel = {"A": {1: 0, 2: 16, 6: 6, 7: 8, 8: 10, 9: 22, 10: 11, 11: 13, 14: 20, 15: 21}, "G": {3: 1, 4: 2, 5: 3, 12: 7, 13: 9}}[role]
        Ls = g.nl("dbg")
        g(f"""s_cmp_eq_u32 s{sWV}, {0 if role == "A" else 9}
              s_cbranch_scc0 {Ls}
              s_load_dwordx2 s[40:41], s[0:1], 80
              s_mov_b64 exec, -1
              v_mov_b32 v8, 0
              s_mov_b32 s42, 256
              s_mov_b32 s43, 0x20000""")
        for dst, src in sel.items():
            g(f"v_readlane_b32 s44, v{VTS}, {src}\ns_nop 3\nv_writelane_b32 v8, s44, {dst}")
        if role == "A":
            g(f"v_readlane_b32 s44, v{VTS}, 0\ns_nop 3\ns_not_b32 s44, s44\nv_writelane_b32 v8, s44, 0")
        g(f"""v_lshlrev_b32 v{VT}, 2, v{LANE}
              s_mov_b64 exec, 0xffff
              s_waitcnt lgkmcnt(0)
              buffer_atomic_umax v8, v{VT}, s[40:43], 0 offen""")
        g.label(Ls)
        return
    g(f"""s_mul_i32 s{sCNT}, s{sWG}, 12
          s_add_u32 s{sCNT}, s{sCNT}, s{sWV}
          s_lshl_b32 s{sCNT}, s{sCNT}, 7
          s_add_u32 s{sCNT}, s{sCNT}, {TSOFF}
          s_mov_b64 exec, -1
          s_mov_b32 exec_hi, 0
          v_lshlrev_b32 v{VT}, 2, v{LANE}
          buffer_store_dword v{VTS}, v{VT}, {sr(WS,4)}, s{sCNT} offen""")

def lds_wait(off, target, st, extra="", sleep=0):
    L, Lo = g.nl("w"), g.nl("wo")
    g(f"s_mov_b32 s{sCNT}, {LIM_LDS}")
    if sleep:
        Lf = g.nl("wf")
        g(f"s_branch {Lf}")
    g.label(L)
    if sleep:
        g(f"s_sleep {sleep}")
        g.label(Lf)
    g(f"ds_read_b32 v{VT}, v{VZ} offset:{off}")
    if extra: g(extra)
    g(f"""s_waitcnt lgkmcnt(0)
          v_readfirstlane_b32 s{st}, v{VT}
          s_sub_u32 s{sCNT}, s{sCNT}, 1
          s_cbranch_scc1 {Lo}
          s_cmp_ge_u32 s{st}, {target}
          s_cbranch_scc0 {L}""")
    g.label(Lo)

def pc_wait(mask, val, st, st2, extra="", sleep=0, off=None):
    L, Lo = g.nl("pw"), g.nl("pwo")
    g(f"s_mov_b32 s{sCNT}, {LIM_LDS}")
    g.label(L)
    if sleep: g(f"s_sleep {sleep}")
    g(f"ds_read_b32 v{VT}, v{VZ} offset:{F_PC if off is None else off}")
    if extra: g(extra)
    g(f"""s_waitcnt lgkmcnt(0)
          v_readfirstlane_b32 s{st}, v{VT}
          s_sub_u32 s{sCNT}, s{sCNT}, 1
          s_cbranch_scc1 {Lo}
          s_and_b32 s{st2}, s{st}, {hex(mask)}
          s_cmp_eq_u32 s{st2}, {hex(val)}
          s_cbranch_scc0 {L}""")
    g.label(Lo)

def land_wait(target, st, vt2, sleep=0):
    L, Lo = g.nl("lw"), g.nl("lwo")
    g(f"s_mov_b32 s{sCNT}, {LIM_LDS}")
    g.label(L)
    g(f"""ds_read_b64 {vr(vt2,2)}, v{VZ} offset:{F_LA}
          s_waitcnt lgkmcnt(0)
          v_min_u32 v{vt2}, v{vt2}, v{vt2+1}
          s_sub_u32 s{sCNT}, s{sCNT}, 1
          v_readfirstlane_b32 s{st}, v{vt2}
          s_cbranch_scc1 {Lo}
          s_cmp_ge_u32 s{st}, {target}
          s_cbranch_scc1 {Lo}""")
    if sleep: g(f"s_sleep {sleep}")
    g(f"s_branch {L}")
    g.label(Lo)

def lds_inc(off):
    g(f"""s_mov_b64 exec, 1
          ds_add_u32 v{VZ}, v{VONE} offset:{off}
          s_mov_b64 exec, -1""")

def get_tag(vtmp):
    lds_wait(F_TAGV, 1, sTAG, extra=f"ds_read_b32 v{vtmp}, v{VZ} offset:{F_TAG}")
    g(f"v_readfirstlane_b32 s{sTAG}, v{vtmp}")

def wave_sum(v, sdst):
    for mod in ("quad_perm:[1,0,3,2]", "quad_perm:[2,3,0,1]", "row_half_mirror", "row_mirror"):
        g(f"s_nop 1\nv_add_f32_dpp v{v}, v{v}, v{v} {mod} {DPPM}")
    g(f"s_nop 1\nv_add_f32_dpp v{v}, v{v}, v{v} row_bcast:15 row_mask:0xa bank_mask:0xf")
    g(f"s_nop 1\nv_add_f32_dpp v{v}, v{v}, v{v} row_bcast:31 row_mask:0xc bank_mask:0xf")
    g(f"s_nop 1\nv_readlane_b32 s{sdst}, v{v}, 63")

def rne(v):
    g(f"v_cvt_pk_bf16_f32 v{v}, v{v}, v{v}\nv_and_b32 v{v}, 0xffff0000, v{v}")

def ln_stats(x5, tmp, sA, sB, vM, vR):
    u = tmp
    for k in range(5):
        g(f"v_lshlrev_b32 v{u+2*k}, 16, v{x5+k}\nv_and_b32 v{u+2*k+1}, 0xffff0000, v{x5+k}")
    a = u + 10
    g(f"v_add_f32 v{a}, v{u}, v{u+1}")
    for k in range(2, 10): g(f"v_add_f32 v{a}, v{a}, v{u+k}")
    wave_sum(a, sA)
    g(f"s_nop 1\nv_mov_b32 v{vM}, s{sA}\nv_mul_f32 v{vM}, {hex(f32(1.0/640))}, v{vM}")
    for k in range(10): g(f"v_sub_f32 v{u+k}, v{u+k}, v{vM}")
    g(f"v_mul_f32 v{a}, v{u}, v{u}")
    for k in range(1, 10): g(f"v_fmac_f32 v{a}, v{u+k}, v{u+k}")
    wave_sum(a, sB)
    g(f"s_nop 1\nv_mov_b32 v{vR}, s{sB}\nv_mul_f32 v{vR}, {hex(f32(1.0/640))}, v{vR}")
    rne(vR)
    g(f"v_add_f32 v{vR}, {hex(f32(1e-5))}, v{vR}")
    rne(vR)
    g(f"v_sqrt_f32 v{vR}, v{vR}\ns_nop 0")
    rne(vR)
    g(f"v_rcp_f32 v{vR}, v{vR}")
    rne(vM)

def ln_frag(src, dst, t0, vM, vR):
    for k in range(4):
        g(f"""v_lshlrev_b32 v{t0}, 16, v{src+k}
              v_and_b32 v{t0+1}, 0xffff0000, v{src+k}
              v_sub_f32 v{t0}, v{t0}, v{vM}
              v_sub_f32 v{t0+1}, v{t0+1}, v{vM}
              v_cvt_pk_bf16_f32 v{t0+1}, v{t0}, v{t0+1}
              v_lshlrev_b32 v{t0}, 16, v{t0+1}
              v_and_b32 v{t0+1}, 0xffff0000, v{t0+1}
              v_mul_f32 v{t0}, v{t0}, v{vR}
              v_mul_f32 v{t0+1}, v{t0+1}, v{vR}
              v_cvt_pk_bf16_f32 v{dst+k}, v{t0}, v{t0+1}""")

def perm_block(raw, out, order=(0, 1, 2, 3)):
    for p in range(4):
        e = 2 * order[p]
        for d in range(2):
            g(f"v_perm_b32 v{out+4*(2*d)+p}, v{raw+2*(e+1)+d}, v{raw+2*e+d}, s{sPLO}")
            g(f"v_perm_b32 v{out+4*(2*d+1)+p}, v{raw+2*(e+1)+d}, v{raw+2*e+d}, s{sPHI}")

class Landing:
    pending = False
    n = 0
LD = Landing()

def load_block(raw, voff, srdb, sbase, stmp, rowbytes, thr=0, rows=None):
    CUR["p"] = {3456: "pw1", 8192: ("puv" if rows else "pwq"), 1280: ("pw2" if srdb == SR else "pwo")}[rowbytes]
    per = 4095 // rowbytes + 1
    cur = None
    for e in range(8):
        grp, rem = divmod(e, per)
        if grp != cur:
            if grp == 0: so = sbase
            else:
                g(f"s_add_u32 s{stmp}, s{sbase}, {(rows[e] if rows else grp*per)*rowbytes}"); so = stmp
            cur = grp
        if thr:
            g(f"s_waitcnt vmcnt({thr-1})")
            if LD.pending and LD.n >= thr - 1:
                land_now()
        off = f" offset:{rem*rowbytes}" if rem else ""
        g(f"buffer_load_dwordx2 {vr(raw+2*e,2)}, v{voff}, {sr(srdb,4)}, s{so} offen{off} {pol(CUR['p'])}")
        LD.n += 1

def land_now():
    g(f"ds_write_b32 v{VZ}, v{VONE} offset:{F_UK}")
    stamp(2)
    LD.pending = False

def land_flush():
    if LD.pending:
        g(f"s_waitcnt vmcnt({LD.n})")
        land_now()

def tagcheck(regs, acc):
    g(f"v_xor_b32 v{acc}, s{sTAG}, v{regs[0]}")
    for r in regs[1:]:
        g(f"v_bitop3_b32 v{acc}, v{r}, s{sTAG}, v{acc} bitop3:0xbe")
    g(f"v_cmp_ne_u32 vcc, 0, v{acc}")

def poll_loads(nm, loads, tags, scnt, acc=VT, sleep=0, mask=True, b8=False, onfail=""):
    L, Lo = g.nl(nm), g.nl(nm + "o")
    g(f"s_mov_b32 s{scnt}, {LIM_MEM}")
    g.label(L)
    g(loads)
    g("s_waitcnt vmcnt(0)")
    (tagcheck8 if b8 else tagcheck)(tags, acc)
    g(f"s_cbranch_vccz {Lo}")
    if onfail: g(onfail)
    if mask: g("s_mov_b64 exec, vcc")
    if sleep: g(f"s_sleep {sleep}")
    g(f"""s_sub_u32 s{scnt}, s{scnt}, 1
          s_cbranch_scc0 {L}""")
    g.label(Lo)
    if mask: g("s_mov_b64 exec, -1")

def flag16_wait(nm, ap):
    L, Lo = g.nl(nm), g.nl(nm + "o")
    g(f"s_mov_b32 s{sCNT}, {LIM_MEM}\ns_lshl_b32 s18, s{sTAG}, 4")
    g.label(L)
    g(f"""s_load_dwordx16 s[48:63], s[{ap}:{ap+1}], 0 glc
          s_sub_u32 s{sCNT}, s{sCNT}, 1
          s_cbranch_scc1 {Lo}
          s_waitcnt lgkmcnt(0)
          s_add_u32 s19, s48, s49""")
    for k in range(2, 16): g(f"s_add_u32 s19, s19, s{48+k}")
    g(f"s_cmp_eq_u32 s19, s18\ns_cbranch_scc0 {L}")
    g.label(Lo)
    g("s_waitcnt lgkmcnt(0)")

sTB = 66
def tagbytes():
    g(f"""s_and_b32 s{sTB}, s{sTAG}, 1
          s_mul_i32 s{sTB}, s{sTB}, 0x01010101
          s_and_b32 s{sTB+1}, s{sTAG}, 0xfefefefe
          s_or_b32 s{sTB}, s{sTB}, s{sTB+1}
          s_bfe_u32 s{sTB+1}, s{sTB}, 0x80008
          s_bfe_u32 s{sTB+2}, s{sTB}, 0x80010
          s_lshr_b32 s{sTB+3}, s{sTB}, 24
          s_and_b32 s{sTB}, s{sTB}, 0xff""")
def tagput(regs, vmask):
    for d, r in enumerate(regs): g(f"v_bfi_b32 v{r}, v{vmask}, s{sTB+d}, v{r}")
def tagcheck8(bases, acc):
    rs = [b + d for b in bases for d in range(4)]
    for b in bases:
        for d in range(4): g(f"v_xor_b32 v{b+d}, s{sTB+d}, v{b+d}")
    g(f"v_or_b32 v{acc}, v{rs[0]}, v{rs[1]}")
    for k in range(2, len(rs), 2): g(f"v_or3_b32 v{acc}, v{acc}, v{rs[k]}, v{rs[k+1]}")
    g(f"v_and_b32 v{acc}, 0xff, v{acc}\nv_cmp_ne_u32 vcc, 0, v{acc}")

def fswz(dst, i, t):
    g(f"""v_lshrrev_b32 v{t}, 1, v{i}
          v_xor_b32 v{dst}, v{t}, v{i}
          v_and_b32 v{dst}, 4, v{dst}
          v_and_or_b32 v{dst}, v{i}, 2, v{dst}
          v_bfe_u32 v{t}, v{i}, 3, 1
          v_or_b32 v{dst}, v{dst}, v{t}""")

def sum_groups(base, n):
    step = 1
    while step < n:
        for a in range(0, n - step, 2 * step):
            g(f"v_pk_add_f32 {vr(base+4*a,2)}, {vr(base+4*a,2)}, {vr(base+4*(a+step),2)}")
            g(f"v_pk_add_f32 {vr(base+4*a+2,2)}, {vr(base+4*a+2,2)}, {vr(base+4*(a+step)+2,2)}")
        step *= 2

def red16(regs, full=True):
    for mod in ("row_ror:4", "row_ror:8"):
        g("s_nop 1")
        for r in regs: g(f"v_add_f32_dpp v{r}, v{r}, v{r} {mod} {DPPM}")
    for sw in (("v_permlane16_swap_b32", "v_permlane32_swap_b32") if full else ("v_permlane16_swap_b32",)):
        for r in regs: g(f"v_mov_b32 v{r+1}, v{r}")
        g("s_nop 1")
        for r in regs: g(f"{sw} v{r}, v{r+1}")
        for r in regs: g(f"v_add_f32 v{r}, v{r}, v{r+1}")

def global_max(dst, t0):
    g(f"""v_max_f32 v{dst}, v{t0}, v{t0+1}""")
    for mod in ("quad_perm:[1,0,3,2]", "quad_perm:[2,3,0,1]", "row_half_mirror", "row_mirror"):
        g(f"s_nop 1\nv_max_f32_dpp v{dst}, v{dst}, v{dst} {mod} {DPPM}")
    for sw in ("v_permlane16_swap_b32", "v_permlane32_swap_b32"):
        g(f"v_mov_b32 v{dst+1}, v{dst}\ns_nop 1\n{sw} v{dst}, v{dst+1}\nv_max_f32 v{dst}, v{dst}, v{dst+1}")

def mfma(d, a, b, first):
    g(f"v_mfma_f32_16x16x32_bf16 {vr(d,4)}, {vr(a,4)}, {vr(b,4)}, {'0' if first else vr(d,4)}")

K = NAME + "_kernel"
g(f"""s_load_dwordx16 s[16:31], s[0:1], 0
      s_load_dwordx8 s[32:39], s[0:1], 64
      s_cmp_ge_u32 s{sWG}, 256
      s_cbranch_scc1 L_END
      v_lshrrev_b32 v{VT}, 6, v0
      v_and_b32 v{LANE}, 63, v0
      v_readfirstlane_b32 s{sWV}, v{VT}
      v_mov_b32 v{VZ}, 0
      v_lshrrev_b32 v{vKG}, 4, v{LANE}
      s_cmp_eq_u32 s{sWV}, 7
      s_cbranch_scc0 L_nopf
      s_getpc_b64 s[44:45]
      L_pc:
      s_sub_u32 s44, s44, L_pc-{K}
      s_subb_u32 s45, s45, 0
      s_and_b32 s41, s{sWG}, 0xf8
      v_add_u32 v10, s41, v{LANE}
      v_lshlrev_b32 v10, 7, v10
      v_cmp_gt_u32 vcc, L_CODE_END-{K}, v10
      s_and_b64 exec, vcc, 0xff
      s_cbranch_execz L_nopf2
      global_load_dword v159, v10, s[44:45]
      L_nopf2:
      s_mov_b64 exec, -1
      L_nopf:
      v_mov_b32 v{VONE}, 1
      v_and_b32 v{vN}, 15, v{LANE}
      s_and_b32 s{sXCD}, s{sWG}, 7
      s_lshr_b32 s{sSLOT}, s{sWG}, 3
      s_lshr_b32 s{sHF}, s{sSLOT}, 3
      s_lshl_b32 s{sJ}, s{sXCD}, 2
      s_add_u32 s{sHF}, s{sHF}, s{sJ}
      s_and_b32 s{sJ}, s{sSLOT}, 7
      s_mov_b32 s{sPLO}, 0x05040100
      s_mov_b32 s{sPHI}, 0x07060302""")
if OPT["ts"] or OPT["padat"] >= 0:
    g(f"v_mov_b32 v{VTS}, 0")
    stamp(0)
if OPT["pad"]:
    g(f"s_memrealtime vcc\ns_waitcnt lgkmcnt(0)\nv_mov_b32 v{VTS}, vcc_lo")
g(f"""s_cmp_ge_u32 s{sWV}, 6
      s_cbranch_scc1 L_OTH
      s_setprio 2
      v_lshlrev_b32 v24, 16, v{vKG}
      v_lshl_add_u32 v24, v{vN}, 3, v24       ; + n*8
      v_mul_u32_u24 v6, 20, v{LANE}
      s_lshr_b32 s40, s{sXCD if OPT["remap"] else sJ}, 1   ; mq
      s_mul_i32 s40, s40, 160
      s_lshl_b32 s41, s{sWV}, 5
      s_add_u32 s40, s40, s41
      s_lshl_b32 s41, s40, 13                 ; row0*8192
      {f"s_lshl_b32 s42, s{sSLOT}, 7" if OPT["remap"] else f"s_lshl_b32 s42, s{sHF}, 8"}
      s_add_u32 s41, s41, s42
      s_and_b32 s42, s{sXCD if OPT["remap"] else sJ}, 1
      s_lshl_b32 s42, s42, {12 if OPT["remap"] else 7}
      s_add_u32 s41, s41, s42                 ; w_q soffset
      s_mov_b32 s46, 5242880
      s_mov_b32 s47, 0x20000
      s_mov_b32 s{SR+2}, 1280
      s_mov_b32 s{SR+3}, 0x20000
      s_cmp_eq_u32 s{sWV}, 5
      s_cbranch_scc0 L_A
      s_setprio 3
      s_waitcnt lgkmcnt(0)
      s_mov_b32 s{SR}, s{P_X}
      s_mov_b32 s{SR+1}, s{P_X+1}
      buffer_load_dwordx4 v[8:11], v6, {sr(SR,4)}, 0 offen
      buffer_load_dword v12, v6, {sr(SR,4)}, 0 offen offset:16
      s_barrier
      s_branch L_LN""")
g.label("L_A")
g(f"""s_waitcnt lgkmcnt(0)
      s_mov_b32 s44, s{P_WQ}
      s_mov_b32 s45, s{P_WQ+1}
      s_nop 1""")
load_block(32, 24, 44, 41, 42, 8192)
g("s_barrier")
lds_inc(F_QI)
srd(WS, P_WS, WS_REC)
g(f"""s_lshl_b32 s40, s40, 1
      v_lshlrev_b32 v112, 4, v{vKG}
      v_add_u32 v112, s40, v112
      v_lshlrev_b32 v113, 4, v{vN}
      s_lshl_b32 s40, s{sWV}, 8
      v_add_u32 v113, s40, v113
      s_branch L_A_q""")
g.label("L_LN")
srd(WS, P_WS, WS_REC)
g(f"v_add_u32 v6, {XNL}, v6\ns_waitcnt vmcnt(0)")
stamp(16)
U, E, Dd = 32, 44, 56
for k in range(5):
    g(f"v_lshlrev_b32 v{U+2*k}, 16, v{8+k}\nv_and_b32 v{U+2*k+1}, 0xffff0000, v{8+k}")
g(f"""v_pk_add_f32 v[14:15], {vr(U,2)}, {vr(U+2,2)}
      v_pk_add_f32 v[16:17], {vr(U+4,2)}, {vr(U+6,2)}
      v_pk_add_f32 v[14:15], v[14:15], {vr(U+8,2)}
      v_pk_add_f32 v[14:15], v[14:15], v[16:17]
      v_add_f32 v14, v14, v15""")
wave_sum(14, 40)
g(f"""s_nop 1
      v_mov_b32 v18, {hex(f32(-1.0/640))}
      v_mul_f32 v18, s40, v18                 ; -mean
      v_mov_b32 v19, v18""")
for k in range(5): g(f"v_pk_add_f32 {vr(E+2*k,2)}, {vr(U+2*k,2)}, v[18:19]")
g(f"v_pk_mul_f32 v[14:15], {vr(E,2)}, {vr(E,2)}")
for k in range(1, 5): g(f"v_pk_fma_f32 v[14:15], {vr(E+2*k,2)}, {vr(E+2*k,2)}, v[14:15]")
g(f"""v_cvt_pk_bf16_f32 v20, v18, v18
      v_add_f32 v14, v14, v15
      v_and_b32 v20, 0xffff0000, v20
      v_mov_b32 v21, v20""")
fill = [f"v_pk_add_f32 {vr(E+2*k,2)}, {vr(U+2*k,2)}, v[20:21]" for k in range(5)]
fill += [f"v_cvt_pk_bf16_f32 v{8+k}, v{E+2*k}, v{E+2*k+1}" for k in range(5)]
fill += [x for k in range(5) for x in (f"v_lshlrev_b32 v{Dd+2*k}, 16, v{8+k}", f"v_and_b32 v{Dd+2*k+1}, 0xffff0000, v{8+k}")]
steps = [f"v_add_f32_dpp v14, v14, v14 {m} {DPPM}" for m in ("quad_perm:[1,0,3,2]", "quad_perm:[2,3,0,1]", "row_half_mirror", "row_mirror")]
steps += ["v_add_f32_dpp v14, v14, v14 row_bcast:15 row_mask:0xa bank_mask:0xf", "v_add_f32_dpp v14, v14, v14 row_bcast:31 row_mask:0xc bank_mask:0xf", "v_readlane_b32 s42, v14, 63"]
for st_ in steps:
    g(st_); g(fill.pop(0)); g(fill.pop(0))
g(f"""v_mov_b32 v22, {hex(f32(1.0/640))}
      v_mul_f32 v22, s42, v22""")
rne(22)
g(f"v_add_f32 v22, {hex(f32(1e-5))}, v22")
rne(22)
g("v_sqrt_f32 v22, v22"); g(fill.pop(0))
rne(22)
g("v_rcp_f32 v22, v22")
while fill: g(fill.pop(0))
g("v_mov_b32 v23, v22")
for k in range(5): g(f"v_pk_mul_f32 {vr(Dd+2*k,2)}, {vr(Dd+2*k,2)}, v[22:23]")
for k in range(5): g(f"v_cvt_pk_bf16_f32 v{8+k}, v{Dd+2*k}, v{Dd+2*k+1}")
g(f"""ds_write2_b32 v6, v8, v9 offset0:0 offset1:1
      ds_write2_b32 v6, v10, v11 offset0:2 offset1:3
      ds_write_b32 v6, v12 offset:16
      ds_write_b32 v{VZ}, v{VONE} offset:{F_XN}""")
stamp(17)
g("s_branch L_A_q")
g.label("L_OTH")
g(f"""s_cmp_eq_u32 s{sWV}, 6
      s_cbranch_scc0 L_noinit
      v_lshlrev_b32 v8, 2, v{LANE}
      ds_write_b32 v8, v{VZ}
      s_waitcnt lgkmcnt(0)
      L_noinit:
      s_cmp_eq_u32 s{sWV}, 9
      s_cbranch_scc1 L_G9
      s_barrier
      {f"s_cmp_eq_u32 s{sWV}, 6" if OPT["uk6"] else ""}
      {"s_cbranch_scc1 L_FFN" if OPT["uk6"] else ""}
      s_cmp_lt_u32 s{sWV}, 8
      s_cbranch_scc0 L_OTH2
      s_waitcnt lgkmcnt(0)""")
srd(WS, P_WS, WS_REC)
if OPT["tlb"]:
    g(f"""s_cmp_eq_u32 s{sWV}, 7
          s_cbranch_scc0 L_A_q
          s_and_b32 s40, s{sSLOT}, 7
          s_lshl_b32 s40, s40, 6
          s_lshr_b32 s41, s{sSLOT}, 3             ; 0..3
          s_lshl_b32 s42, s41, 20
          s_add_u32 s42, s42, s40
          s_and_b32 s43, s41, 1
          s_lshl_b32 s43, s43, 20
          s_add_u32 s43, s43, s40
          s_lshl_b32 s44, s{sXCD}, 21
          s_add_u32 s44, s44, s43
          s_add_u32 s45, s40, 0x400000
          s_add_u32 s46, s40, 0x200000
          s_add_u32 s47, s43, 0x400000""")
    if OPT["tlb"] == 2: lds_wait(F_XN, 1, 41, sleep=1)
    if OPT["tlb"] in (1, 3):
        g(f"""s_load_dword s52, s[{P_KV}:{P_KV+1}], s44
          s_load_dword s53, s[{P_WUK}:{P_WUK+1}], s42
          s_load_dword s54, s[{P_W1}:{P_W1+1}], s43
          s_load_dword s55, s[{P_W2}:{P_W2+1}], s43
          s_load_dword s60, s[{P_W1}:{P_W1+1}], s46
          s_load_dword s61, s[{P_W2}:{P_W2+1}], s46""")
    if OPT["tlb"] == 3: lds_wait(F_XN, 1, 41, sleep=1)
    g(f"""s_load_dword s56, s[{P_WS}:{P_WS+1}], s42
          s_load_dword s57, s[{P_WUV}:{P_WUV+1}], s42
          s_load_dword s58, s[{P_WO}:{P_WO+1}], s42
          s_load_dword s59, s[{P_WO}:{P_WO+1}], s45
          s_load_dword s62, s[{P_WS}:{P_WS+1}], s47
          s_load_dword s63, s[{P_OUT}:{P_OUT+1}], 0
          s_waitcnt lgkmcnt(0)""")
g("s_branch L_A_q")
g.label("L_OTH2")
g(f"""      s_cmp_eq_u32 s{sWV}, 9
      s_cbranch_scc1 L_G9
      s_cmp_eq_u32 s{sWV}, 11
      s_cbranch_scc1 L_FFN""")
g(f"v_lshrrev_b32 v32, 3, v{LANE}")
fswz(33, 32, 34)
g(f"""v_and_b32 v34, 7, v{LANE}
      v_xor_b32 v33, v33, v34
      v_lshlrev_b32 v33, 4, v33
      v_lshl_add_u32 v36, v32, 10, v33
      s_bfe_u32 s43, s{sWV}, 0x10001
      s_and_b32 s40, s43, 1
      s_mul_i32 s40, s40, 80
      v_xor_b32 v36, s40, v36
      s_lshr_b32 s41, s{sSLOT}, 1""")
if OPT["ksmap"] == 0:
    g(f"s_lshl_b32 s41, s41, 3\ns_add_u32 s41, s41, s{sXCD}             ; ks")
else:
    g(f"s_lshl_b32 s42, s{sXCD}, 4\ns_add_u32 s41, s41, s42             ; ks")
g(f"""s_mul_i32 s51, s41, {OPT["rot"]}
      s_add_u32 s51, s51, s43
      s_lshl_b32 s51, s51, 13
      s_and_b32 s51, s51, 0x1ffff
      s_lshl_b32 s52, s41, 17                 ; ks*128KB
      s_add_u32 s41, s52, s51
      s_lshl_b32 s42, s43, 10
      s_add_u32 s42, s42, {KV}
      s_waitcnt lgkmcnt(0)""")
srd(44, P_KV, 16777216)
srd(WS, P_WS, WS_REC)
if OPT["kvt"]:
    n = OPT["kvt"]; step = 131072 // n
    g(f"s_lshl_b32 s49, s43, 16\ns_add_u32 s49, s49, s52")
    for k in range(n // 2):
        g(f"s_add_u32 s50, s49, {k*step}\ns_load_dword s{56+(k&7)}, s[{P_KV}:{P_KV+1}], s50")
if OPT["vt"]:
    lds_wait(F_QI, 5, 40)
    g(f"""s_mov_b64 exec, 1
          buffer_load_dword v40, v{VZ}, {sr(44,4)}, s41 offen {pol('pkv')}
          s_mov_b64 exec, -1""")
if OPT["gate"] >= 20: lds_wait(F_QP, 1, 40)
elif OPT["gate"]:
    lds_wait(F_WQ if OPT["gate"] < 10 else F_Q, OPT["gate"] % 10, 40, sleep=1)
stamp(8)
NI = OPT["inflight"]
assert 1 <= NI <= 32
g(f"""s_lshl_b32 s48, s43, 2
      v_mov_b32 v37, s48
      s_mov_b32 s43, 0""")
def ld_loop(lab, NI, end):
    g.label(lab)
    for k in range(16):
        cb, hi = k & 7, k >> 3
        g(f"s_add_u32 m0, s42, {cb*(16384-128) + hi*2048}")
        if k == 8: g(f"s_add_u32 s51, s51, {2*8192}\ns_and_b32 s51, s51, 0x1ffff\ns_add_u32 s41, s52, s51")
        g(f"s_waitcnt vmcnt({NI-1})")
        if k == (NI - 1) % 16:
            g(f"""s_sub_u32 s48, s43, {(NI - 1) // 16}
                  s_max_i32 s48, s48, 0
                  v_mov_b32 v38, s48
                  ds_write_b32 v37, v38 offset:{F_LA}""")
        g(f"buffer_load_dwordx4 v36, {sr(44,4)}, s41 offen offset:{cb*128} {pol('pkv')} lds")
    g(f"""s_add_u32 s51, s51, {2*8192}
          s_and_b32 s51, s51, 0x1ffff
          s_add_u32 s41, s52, s51
          s_add_u32 s42, s42, {4*1024}
          s_add_u32 s43, s43, 1""")
    if OPT["ts"] == 2:
        g(f"""s_memrealtime vcc
              s_add_u32 s49, s43, 11
              s_mov_b32 m0, s49
              s_waitcnt lgkmcnt(0)
              v_writelane_b32 v{VTS}, vcc_lo, m0""")
    g(f"""s_cmp_lt_u32 s43, {end}
          s_cbranch_scc1 {lab}""")
if OPT["inf2"]:
    ld_loop("L_ld", NI, OPT["split"])
    ld_loop("L_ld2", OPT["inf2"], 4)
else:
    ld_loop("L_ld", NI, 4)
lds_inc(F_ISS)
stamp(1)
g(f"""v_mov_b32 v38, 3
      v_mov_b32 v39, 4
      s_waitcnt vmcnt(16)
      ds_write_b32 v37, v38 offset:{F_LA}
      s_waitcnt vmcnt(0)
      ds_write_b32 v37, v39 offset:{F_LA}""")
stamp(2)
g("s_branch L_G")
g.label("L_FFN")
XF = 8
g("s_waitcnt lgkmcnt(0)")
srd(WS, P_WS, WS_REC)
if OPT["uk6"]: g(f"s_cmp_eq_u32 s{sWV}, 11\ns_cbranch_scc1 L_FFNa")
srd(SR, P_WUK, 4194304)
g(f"""v_xor_b32 v8, v{vN}, v{vKG}
      v_lshlrev_b32 v8, 4, v8
      v_lshl_add_u32 v8, v{vKG}, 13, v8
      v_xor_b32 v9, 64, v8
      v_xor_b32 v10, 128, v8
      v_xor_b32 v11, 192, v8
      s_lshl_b32 s48, s{sCA}, 19
      s_lshl_b32 s49, s{sHA}, 8
      s_add_u32 s48, s48, s49""")
if OPT["ukgate"]: lds_wait(F_WQ, OPT["ukgate"], 40)
else: lds_wait(F_QI, 5, 40)
for u in range(16):
    g(f"s_mov_b32 m0, {QL + u*1024}")
    g(f"s_add_u32 s49, s48, {u*4*8192}")
    g(f"buffer_load_dwordx4 v{8+(u&3)}, {sr(SR,4)}, s49 offen {pol('puk')} lds")
if OPT["uk6"]:
    g("s_branch L_A_q")
    g.label("L_FFNa")
    if OPT["fgate"] == 0: lds_wait(F_QI, 5, 40)
if OPT["fgate"] == 9:
    g("s_waitcnt vmcnt(0)"); land_now()
elif OPT["fgate"] == 8:
    lds_wait(F_QP, 1, 40, sleep=1)
elif OPT["fgate"]:
    lds_wait(F_Q, OPT["fgate"], 40, sleep=1)
if OPT["forder"] == 1: lds_wait(F_ISS, 2, 40, sleep=2)
if OPT["forder"] == 5: lds_wait(F_H3, 8, 40, sleep=2)
if OPT["forder"] == 6: lds_wait(F_STG, 8, 40, sleep=2)
g("s_branch L_FFNb")
FFN_EARLY_END = True
g.label("L_G9")
g(f"""s_setprio 3
      s_waitcnt lgkmcnt(0)
      s_load_dword s40, s[{P_WS}:{P_WS+1}], {EPOCH}
      s_barrier""")
srd(WS, P_WS, WS_REC)
g(f"""v_lshlrev_b32 v8, 4, v{vN}              ; n*16
      s_lshl_b32 s41, s{sHA}, 3
      s_add_u32 s41, s41, s{sCA}
      s_lshl_b32 s41, s41, 8
      s_add_u32 s43, s41, {QAM}""")
if OPT["remap"]:
    g(f"""s_and_b32 s42, s{sXCD}, 1
          s_lshl_b32 s42, s42, 4
          s_lshr_b32 s41, s{sSLOT}, 1
          s_add_u32 s42, s42, s41                 ; hQ
          s_lshl_b32 s42, s42, {QS}
          s_and_b32 s41, s{sXCD}, 6
          s_and_b32 s45, s{sSLOT}, 1
          s_add_u32 s41, s41, s45
          s_lshl_b32 s41, s41, 8""")
else:
    g(f"s_lshl_b32 s42, s{sHF}, {QS}\ns_lshl_b32 s41, s{sJ}, 8")
g(f"""
      s_add_u32 s42, s42, s41
      s_add_u32 s42, s42, {QM}
      s_add_u32 s45, s42, 8192
      v_lshl_add_u32 v7, v{vKG}, 11, v8

      v_mov_b32 v11, 1
      s_waitcnt lgkmcnt(0)
      s_mul_i32 s{sTAG}, s40, 1664525
      s_add_u32 s{sTAG}, s{sTAG}, 1013904223
      v_mov_b32 v10, s{sTAG}
      v_mov_b32 v13, s{sTAG}
      v_mov_b32 v15, s{sTAG}
      ds_write_b64 v{VZ}, v[10:11] offset:{F_TAG}""")
stamp(1)
if OPT["warm"]:
    g(f"""s_and_b32 s46, s{sSLOT}, 1
          s_lshl_b32 s46, s46, {HS-3}
          s_add_u32 s46, s46, s{sXCD}
          s_lshl_b32 s46, s46, 7
          s_add_u32 s46, s46, {HD}
          v_lshlrev_b32 v9, {HS}, v{vN}
          v_and_b32 v16, {min(OPT["hrep"],4)-1}, v{vKG}
          v_lshl_add_u32 v9, v16, 15, v9
          s_add_u32 s46, s46, {LOFF}""")
    lds_wait(F_QI, 5, 40)
    if OPT["fast1"]:
        g(f"""buffer_load_dwordx4 v[16:19], v6, {sr(WS,4)}, s47 offen sc1
              buffer_load_dwordx4 v[16:19], v6, {sr(WS,4)}, s47 offen offset:1024 sc1""")
    NR = OPT["nrep"]
    EXM = {1: "s_mov_b64 exec, 0xffff", 2: "s_mov_b32 exec_hi, 0", 4: "", 8: ""}[NR]
    g(f"""{EXM}
          buffer_load_dwordx4 v[16:19], v7, {sr(WS,4)}, s42 offen sc1
          s_mov_b64 exec, -1
          {f"buffer_load_dwordx4 v[16:19], v7, {sr(WS,4)}, s45 offen sc1" if NR == 8 else ""}
          buffer_load_dwordx4 v[16:19], v8, {sr(WS,4)}, s43 offen sc1
          buffer_load_dword v16, v9, {sr(WS,4)}, s46 offen sc1""")
    if OPT["hrep"] == 8: g(f"s_add_u32 s46, s46, 0x20000\nbuffer_load_dword v16, v9, {sr(WS,4)}, s46 offen sc1")
rr = "\n".join(f"ds_read_b128 {vr(32+4*b,4)}, v8 offset:{REDQ+256*b}" for b in range(5))
if OPT["mg2"]: lds_wait(F_Q, 5, 40, extra=rr)
else:
    lds_wait(F_Q, 5, 40); g(rr); g("s_waitcnt lgkmcnt(0)")
sum_groups(32, 5)
g(f"""v_cvt_pk_bf16_f32 v12, v32, v33
      v_cvt_pk_bf16_f32 v14, v34, v35""")
if OPT["fast1"]:
    g(f"""buffer_store_dwordx4 v[12:15], v6, {sr(WS,4)}, s47 offen
          ds_write_b32 v{VZ}, v{VONE} offset:{F_QP}
          buffer_store_dwordx4 v[12:15], v6, {sr(WS,4)}, s47 offen offset:1024""")
NR = OPT["nrep"]
EXM = {1: "s_mov_b64 exec, 0xffff", 2: "s_mov_b32 exec_hi, 0", 4: "", 8: ""}[NR]
g(f"""{EXM}
      buffer_store_dwordx4 v[12:15], v7, {sr(WS,4)}, s42 offen sc1
      {f"buffer_store_dwordx4 v[12:15], v7, {sr(WS,4)}, s45 offen sc1" if NR == 8 else ""}
      ds_write_b32 v{VZ}, v{VONE} offset:{F_QP}
      s_mov_b64 exec, 0xffff""")
stamp(2)
rr = "\n".join(f"ds_read_b128 {vr(32+4*b,4)}, v8 offset:{REDQA+256*b}" for b in range(8))
if OPT["mg2"]:
    lds_wait(F_QA, 6, 40); lds_wait(F_QA, 8, 40, extra=rr)
else:
    lds_wait(F_QA, 8, 40); g(rr); g("s_waitcnt lgkmcnt(0)")
sum_groups(32, 8)
for r in range(4): g(f"v_mul_f32 v{32+r}, {hex(f32(SCALE))}, v{32+r}")
g(f"""v_cvt_pk_bf16_f32 v12, v32, v33
      v_cvt_pk_bf16_f32 v14, v34, v35
      buffer_store_dwordx4 v[12:15], v8, {sr(WS,4)}, s43 offen sc1
      ds_write_b32 v{VZ}, v{VONE} offset:{F_QAP}
      s_mov_b64 exec, -1
      s_setprio 0""")
stamp(3)
if OPT["uvgate"] < 2: lds_wait(F_H2I if OPT["uvgate"] else F_ISS, 8 if OPT["uvgate"] else 2, 40, sleep=1)
elif OPT["uvgate"] == 3: land_wait(4, 40, 24, sleep=1)
else: g("s_sleep 16")
if OPT["fast1"] and OPT["recl"]:
    g(f"""buffer_store_dwordx4 v[20:23], v6, {sr(WS,4)}, s47 offen sc1
          buffer_store_dwordx4 v[20:23], v6, {sr(WS,4)}, s47 offen offset:1024 sc1""")
g("s_branch L_G_uv9")

g.label("L_A_q")
g("s_setprio 2")
g(f"""s_and_b32 s40, s{sSLOT}, 1              ; g
      s_lshl_b32 s41, s40, 4
      s_lshl_b32 s42, s{sWV}, 1
      s_add_u32 s41, s41, s42                 ; 16g+2w
      s_lshl_b32 s41, s41, 11
      s_add_u32 s20, s41, {QAM}
      s_lshr_b32 s21, s{sSLOT}, 1             ; mi 0..15
      s_lshl_b32 s42, s40, 7                  ; 16g*8
      s_add_u32 s42, s42, s{sWV}
      s_lshl_b32 s42, s42, 3
      s_add_u32 s42, s42, s{sXCD}
      s_lshl_b32 s42, s42, 4
      s_add_u32 s42, s42, s21
      s_lshl_b32 s42, s42, 7
      s_add_u32 s26, s42, {IB}
      s_add_u32 s22, s26, {2*8*8*2048}
      s_lshl_b32 s42, s40, {HS-3}
      s_add_u32 s42, s42, s{sXCD}
      s_lshl_b32 s42, s42, 4
      s_add_u32 s42, s42, s21
      s_lshl_b32 s42, s42, 3
      s_add_u32 s27, s42, {HD}
      s_add_u32 s23, s27, {LOFF}
      s_lshl_b32 s42, s{sHF}, {HS-7}
      s_add_u32 s42, s42, s{sWV}
      s_lshl_b32 s42, s42, 7
      s_add_u32 s31, s42, {HD}
      s_lshl_b32 s42, s{sHF}, 3
      s_add_u32 s42, s42, s{sJ}
      s_lshl_b32 s42, s42, 3
      s_add_u32 s42, s42, s{sWV}              ; (h*8+j)*8+w
      s_lshl_b32 s30, s42, 11
      s_add_u32 s30, s30, {IB}
      s_lshl_b32 s42, s{sHA}, {QS-11}
      s_and_b32 s43, s{sCA}, {OPT["nrep"]-1}
      s_add_u32 s42, s42, s43
      s_lshl_b32 s42, s42, 3
      s_add_u32 s42, s42, s{sWV}
      s_lshl_b32 s42, s42, 8
      s_add_u32 s42, s42, {QM}
      s_add_u32 s32, s{WS}, s42
      s_addc_u32 s33, s{WS+1}, 0
      s_and_b32 s40, s{sWV}, 1
      s_lshl_b32 s40, s40, 3                  ; 8*dhalf'
      v_xor_b32 v6, s40, v{vN}
      v_lshlrev_b32 v6, 4, v6
      v_lshl_add_u32 v6, v{LANE}, 8, v6       ; row*256 + ...
      v_lshlrev_b32 v10, 2, v{LANE}
      s_lshl_b32 s40, s{sWV}, 8
      v_add_u32 v10, s40, v10
      v_mov_b32 v8, 0
      v_mov_b32 v9, 0""")
W = 80
QKA, PVA = 32, 96
fswz(24, vN, 25)
g(f"""v_xor_b32 v24, v24, v{vKG}
      v_lshlrev_b32 v24, 4, v24
      v_and_b32 v25, 7, v{vN}
      v_lshl_add_u32 v24, v25, 7, v24         ; + (i&7)*128
      v_lshrrev_b32 v25, 3, v{vN}
      v_lshl_add_u32 v24, v25, 10, v24        ; + (i>>3)*1024
      s_lshl_b32 s42, s{sWV}, 11
      s_add_u32 s42, s42, {KV}
      v_add_u32 v160, s42, v24
      v_xor_b32 v161, 64, v160
      v_add_u32 v162, 0x10000, v160
      v_add_u32 v163, 0x10000, v161
      v_lshrrev_b32 v26, 2, v{LANE}           ; i16""")
fswz(24, 26, 25)
g(f"""s_and_b32 s42, s{sWV}, 3
      s_lshl_b32 s42, s42, 1
      v_bfe_u32 v25, v{LANE}, 1, 1
      v_or_b32 v25, s42, v25                  ; xi = 2(w&3) + (c'>>1)
      v_xor_b32 v24, v24, v25
      v_lshlrev_b32 v24, 4, v24
      v_and_b32 v25, 1, v{LANE}
      v_lshl_add_u32 v24, v25, 3, v24
      v_and_b32 v25, 7, v26
      v_lshl_add_u32 v24, v25, 7, v24
      v_lshrrev_b32 v25, 3, v26
      v_lshl_add_u32 v24, v25, 10, v24
      s_lshr_b32 s42, s{sWV}, 2
      s_lshl_b32 s42, s42, 14
      s_add_u32 s42, s42, {KV}
      v_add_u32 v164, s42, v24
      v_add_u32 v165, 0x10000, v164
      v_lshrrev_b32 v24, 1, v{vN}             ; xi
      v_and_b32 v25, 4, v24
      v_lshl_or_b32 v25, v25, 1, v24          ; sigma
      s_lshl_b32 s42, s{sWV}, 1
      v_xor_b32 v25, s42, v25
      v_lshlrev_b32 v25, 4, v25
      v_lshl_add_u32 v25, v24, 8, v25         ; + xi*256
      v_lshl_add_u32 v25, v{vKG}, 11, v25     ; + (l>>4)*2048
      v_and_b32 v24, 1, v{LANE}
      v_lshl_add_u32 v28, v24, 3, v25
      v_xor_b32 v29, 16, v28
      v_xor_b32 v30, v{vN}, v{vKG}
      v_lshlrev_b32 v30, 4, v30
      v_lshl_add_u32 v30, v{vKG}, 8, v30
      v_xor_b32 v31, {12*16}, v30             ; odd s
      v_lshlrev_b32 v166, 4, v{LANE}          ; lane*16""")
g(f"s_cmp_ge_u32 s{sWV}, 5\ns_cbranch_scc1 L_A_q2")
for p in range(4):
    g(f"s_waitcnt vmcnt({6-2*p})")
    if p == 0 and (OPT['ukgate'] or 0 < OPT['gate'] < 10): lds_inc(F_WQ)
    e = 2 * p
    for d in range(2):
        g(f"v_perm_b32 v{48+8*d+p}, v{32+2*(e+1)+d}, v{32+2*e+d}, s{sPLO}")
        g(f"v_perm_b32 v{48+8*d+4+p}, v{32+2*(e+1)+d}, v{32+2*e+d}, s{sPHI}")
stamp(18)
lds_wait(F_XN, 1, 19, extra=f"ds_read_b128 v[116:119], v112 offset:{XNL}")
for t in range(4): mfma(64 + 4 * t, 116, 48 + 4 * t, True)
g(f"""s_nop 6
      v_mov_b32 v65, v68
      v_mov_b32 v66, v72
      v_mov_b32 v67, v76
      s_mov_b64 exec, 0xffff
      ds_write_b128 v113, v[64:67] offset:{REDQ}
      s_mov_b64 exec, 1
      ds_add_u32 v{VZ}, v{VONE} offset:{F_Q}
      s_mov_b64 exec, -1""")
g.label("L_A_q2")
stamp(2)
get_tag(7)
g(f"s_lshl_b32 s18, s{sTAG}, 5              ; 32*TAG")
if OPT["uk6"]:
    g(f"""s_cmp_eq_u32 s{sWV}, 6
          s_cbranch_scc0 L_nouk
          s_waitcnt vmcnt(0)
          ds_write_b32 v{VZ}, v{VONE} offset:{F_UK}""")
    stamp(17)
    g.label("L_nouk")
def wreads():
    for e in range(8):
        if e: g(f"v_xor_b32 v7, {e*16}, v6")
        g(f"ds_read_b128 {vr(W+4*e,4)}, v{6 if e == 0 else 7} offset:{QL}")
lds_wait(F_QP, 1, 19, sleep=1)
if OPT["d1"]: g(f"s_sleep {OPT['d1']}")
g(f"""ds_read_b32 v{VT}, v{VZ} offset:{F_UK}
      s_waitcnt lgkmcnt(0)
      v_readfirstlane_b32 s24, v{VT}
      s_nop 0
      s_cmp_eq_u32 s24, 0
      s_cbranch_scc1 L_now""")
wreads()
g.label("L_now")
stamp(3)
L, Lo = g.nl("h1"), g.nl("h1o")
g(f"s_mov_b32 s{sCNT}, {LIM_MEM}")
g.label(L)
if OPT["fast1"]:
    Lg, Lc = g.nl("h1g"), g.nl("h1c")
    g(f"s_cmp_le_u32 s{sCNT}, {LIM_MEM-8}\ns_cbranch_scc1 {Lg}")
    for k in range(4):
        g(f"s_load_dwordx16 {sr(36+16*k,16)}, s[8:9], {64*k}")
    g(f"s_add_u32 s8, s8, 256\ns_addc_u32 s9, s9, 0\ns_branch {Lc}")
    g.label(Lg)
for k in range(4):
    g(f"s_load_dwordx16 {sr(36+16*k,16)}, s[32:33], {64*k} glc")
if OPT["fast1"]: g.label(Lc)
g(f"""s_sub_u32 s{sCNT}, s{sCNT}, 1
      s_cbranch_scc1 {Lo}
      s_waitcnt lgkmcnt(0)
      s_cmp_eq_u32 s99, s{sTAG}
      s_cbranch_scc0 {L}
      s_add_u32 s19, s37, s39""")
for k in range(2, 32):
    g(f"s_add_u32 s19, s19, s{37+2*k}")
g(f"s_cmp_eq_u32 s19, s18\ns_cbranch_scc0 {L}")
g.label(Lo)
cnt(23, sCNT)
stamp(1)
g(f"""s_cmp_eq_u32 s24, 0
      s_cbranch_scc0 L_havew""")
lds_wait(F_UK, 1, 19)
wreads()
g.label("L_havew")
for k in range(32):
    if k % 4 == 0: g(f"s_waitcnt lgkmcnt({7 - k//4})")
    g(f"v_dot2c_f32_bf16 v{8+(k&1)}, s{36+2*k}, v{W+k}")
g(f"""s_nop 2
      v_add_f32 v8, v8, v9
      ds_write_b32 v10, v8 offset:{REDQA}""")
lds_inc(F_QA)
stamp(4)
def qka_reads():
    for s in range(16):
        cb = s >> 1
        a = 160 + (s & 1) + (2 if cb >= 4 else 0)
        g(f"ds_read_b128 {vr(QKA+4*s,4)}, v{a} offset:{(cb&3)*16384}")
def pva_reads(u):
    for i in range(4):
        for hh in range(2):
            T = 2 * u + hh
            g(f"ds_read_b64_tr_b16 {vr(PVA+16*i+4*u+2*hh,2)}, v{164+(i>>1)} offset:{(i&1)*32768+T*2048}")
h2_loads = "\n".join(f"buffer_load_dwordx4 {vr(8+4*n,4)}, v{VL16}, {sr(WS,4)}, s20 offen offset:{1024*n} sc1" for n in range(4))
g(f"""s_lshr_b32 s42, s{sWV}, 1
      s_lshl_b32 s48, s42, 2
      s_lshl_b32 s48, 1, s48
      s_add_u32 s49, s48, 0x10000
      s_mov_b32 s50, {hex(f32(OPT["rng"]))}
      s_lshl_b32 s42, s42, 10
      s_and_b32 s43, s{sWV}, 1
      s_lshl_b32 s43, s43, 3
      s_add_u32 s42, s42, s43
      v_add_u32 v7, s42, v{VL16}
      v_add_u32 v28, {QL}, v28
      v_add_u32 v29, {QL}, v29
      v_add_u32 v26, 8192, v28
      v_add_u32 v27, 8192, v29
      s_and_b32 s45, s{sTAG}, 1
      s_mul_i32 s45, s45, 0x55555555
      s_and_b32 s44, s{sTAG}, 0xaaaaaaaa
      s_or_b32 s45, s45, s44
      s_mov_b32 s44, 0x00010001""")
lds_wait(F_QAP, 1, 42)
if OPT["d2"]: g(f"s_sleep {OPT['d2']}")
def h2_issue(lv):
    if OPT["h2land"] == lv:
        g(h2_loads)
        if OPT['uvgate'] == 1: lds_inc(F_H2I)
        stamp(5)
h2_issue(0)
land_wait(2, 42, 24, sleep=1)
h2_issue(2)
pva_reads(0); pva_reads(1)
land_wait(3, 42, 24, sleep=1)
h2_issue(3)
pva_reads(2)
g(f"s_cmp_lt_u32 s{sWV}, 6\ns_cbranch_scc1 L_qka")
land_wait(4, 42, 24)
g.label("L_qka")
qka_reads()
stamp(6)
L, Lo = g.nl("h2c"), g.nl("h2co")
g(f"s_mov_b32 s43, {LIM_MEM}")
g.label(L)
g("s_waitcnt vmcnt(0)")
tagcheck([9, 11, 13, 15, 17, 19, 21, 23], 24)
g(f"""s_cbranch_vccz {Lo}
      s_sub_u32 s43, s43, 1
      s_cbranch_scc1 {Lo}
      s_sleep {OPT["bk2"]}
      s_mov_b64 exec, vcc""")
g(h2_loads)
g(f"s_mov_b64 exec, -1\ns_branch {L}")
g.label(Lo)
cnt(24, 43)
stamp(7)
for n in range(4):
    g(f"ds_write2_b32 v{[28, 26, 29, 27][n]}, v{8+4*n}, v{10+4*n} offset0:0 offset1:1")
lds_inc(F_STG)
def bread(s): return f"ds_read_b128 {vr(8+4*(s&3),4)}, v{30+(s&1)} offset:{QL+s*1024}"
if OPT["mg4"]: lds_wait(F_STG, 8, 42, extra="\n".join(bread(s) for s in range(4)))
else: lds_wait(F_STG, 8, 42)
stamp(8)
if not OPT["mg4"]: g("\n".join(bread(s) for s in range(4)))
SA = 24
for s in range(16):
    g(f"s_waitcnt lgkmcnt({min(3, 15-s)})")
    mfma(SA, QKA + 4 * s, 8 + 4 * (s & 3), s == 0)
    if s + 4 < 16: g(bread(s + 4))
VM = 10
PF, OA = 32, 48
def pread(u): return f"ds_read_b128 {vr(PF+4*u,4)}, v{VL16} offset:{PL+1024*u}"
g("s_nop 7")
for r in range(4): g(f"v_exp_f32 v{12+r}, v{SA+r}")
g(f"""v_max3_f32 v9, v{SA}, v{SA+1}, v{SA+2}
      v_cvt_pk_bf16_f32 v16, v12, v13
      v_cvt_pk_bf16_f32 v17, v14, v15
      v_max_f32 v9, v9, v{SA+3}
      ds_write_b64 v7, v[16:17] offset:{PL}
      v_cmp_nle_f32 vcc, abs(v9), s50
      s_cmp_lg_u64 vcc, 0
      s_cselect_b32 s48, s49, s48
      s_mov_b64 exec, 1
      v_mov_b32 v8, s48
      ds_add_u32 v{VZ}, v8 offset:{F_PC}
      s_mov_b64 exec, -1""")
pva_reads(3)
stamp(15)
TP, IBV = 80, 84
fill = [f"v_lshrrev_b32 v12, 3, v{vN}",
        f"v_lshl_add_u32 v12, v{vKG}, 2, v12      ; head = 4q + (j>>3)",
        f"v_lshlrev_b32 v{IBV}, 17, v12",
        f"v_and_b32 v12, 7, v{vN}",
        f"v_lshl_add_u32 v{IBV}, v12, 4, v{IBV}",
        f"v_and_b32 v12, 3, v{LANE}",
        f"v_lshlrev_b32 v12, 3, v12",
        f"v_lshrrev_b32 v12, v12, s45",
        f"v_and_b32 v13, 0xff, v12", f"v_lshlrev_b32 v12, 15, v13", f"v_or_b32 v12, v12, v13"]
for d in range(4): fill += [f"v_lshrrev_b32 v13, {2*d}, v12", f"v_and_b32 v{TP+d}, s44, v13"]
S1 = 2
for _ in range(3): g(fill.pop(0))
if OPT["mg3"]: pc_wait(0xff, 0x22, 42, 48, extra="\n".join(pread(u) for u in range(S1)))
else:
    pc_wait(0xff, 0x22, 42, 48)
    g("\n".join(pread(u) for u in range(S1)))
for u in range(S1):
    g(f"s_waitcnt lgkmcnt({S1-1-u})")
    for i in range(4):
        mfma(OA + 4 * i, PF + 4 * u, PVA + 16 * i + 4 * u, u == 0)
        for _ in range(2): g(fill.pop(0))
assert not fill
if OPT["mg3"]: pc_wait(0xffff, 0x2222, 42, 48, extra="\n".join(pread(u) for u in range(S1, 4)))
else:
    pc_wait(0xffff, 0x2222, 42, 48)
    g("\n".join(pread(u) for u in range(S1, 4)))
g(f"s_cmp_lg_u32 s42, 0x2222\ns_cbranch_scc1 L_slow")
stamp(9)
for u in range(S1, 4):
    g(f"s_waitcnt lgkmcnt({3-u})")
    for i in range(4): mfma(OA + 4 * i, PF + 4 * u, PVA + 16 * i + 4 * u, u == 0)
g.label("L_pv2")
GR = 64
g("s_nop 6")
for a in range(2):
    A0, B0, T0 = GR + 4 * a, GR + 4 * a + 2, 72
    for d in range(2):
        g(f"v_perm_b32 v{A0+d}, v{OA+8*d+4+2*a}, v{OA+8*d+2*a}, s{sPHI}")
        g(f"v_perm_b32 v{B0+d}, v{OA+8*d+4+2*a+1}, v{OA+8*d+2*a+1}, s{sPHI}")
    g("s_nop 0")
    for d in range(2): g(f"v_mov_b32_dpp v{T0+d}, v{A0+d} row_ror:8 {DPPM}")
    for d in range(2): g(f"v_mov_b32_dpp v{A0+d}, v{B0+d} row_ror:8 row_mask:0xf bank_mask:0xc")
    for d in range(2): g(f"v_mov_b32_dpp v{B0+d}, v{T0+d} quad_perm:[0,1,2,3] row_mask:0xf bank_mask:0x3")
    for d in range(4): g(f"v_add_u32 v{A0+d}, s44, v{A0+d}")
    for d in range(4): g(f"v_bfi_b32 v{A0+d}, s44, v{TP+d}, v{A0+d}")
    g(f"buffer_store_dwordx4 {vr(A0,4)}, v{IBV}, {sr(WS,4)}, s{26 if a == 0 else 22} offen sc1")
if OPT["wogate"] == 1 or OPT["forder"] == 5 or OPT["hk"]: lds_inc(F_H3)
stamp(10)
if OPT["pr0"]: g("s_setprio 0")
MK = 76
g(f"""v_and_b32 v12, 1, v{LANE}
      v_lshlrev_b32 v12, 4, v12
      v_mov_b32 v13, 0xffff
      v_lshlrev_b32 v13, v12, v13
      v_bfe_u32 v12, v{LANE}, 1, 2""")
for p in range(4):
    g(f"v_cmp_eq_u32 vcc, {p}, v12\ns_nop 1\nv_cndmask_b32 v{MK+p}, v{VZ}, v13, vcc")
g(f"""v_lshlrev_b32 v16, 2, v{vN}
      s_lshl_b32 s42, s{sWV}, 6
      v_add_u32 v16, s42, v16
      v_lshrrev_b32 v17, 3, v{LANE}
      v_lshlrev_b32 v17, 2, v17
      v_add_u32 v17, s42, v17
      v_lshrrev_b32 v18, 3, v{vN}             ; a = j>>3
      s_lshl_b32 s42, s{sWV}, 1
      v_add_u32 v19, s42, v18
      v_mul_u32_u24 v19, 144, v19
      v_and_b32 v20, 7, v{vN}
      v_lshl_add_u32 v19, v20, 4, v19
      v_and_b32 v20, 1, v{vKG}
      v_lshl_add_u32 v19, v20, 3, v19
      v_lshrrev_b32 v20, 1, v{vKG}
      v_cmp_eq_u32 s[46:47], v18, v20
      v_lshlrev_b32 v14, 3, v{LANE}           ; lane*8""")
if OPT["d3"]: g(f"s_sleep {OPT['d3']}")
stamp(22)
IR = 104
ib_loads = f"""buffer_load_dwordx4 {vr(IR,4)}, v{VL16}, {sr(WS,4)}, s30 offen sc1
      buffer_load_dwordx4 {vr(IR+4,4)}, v{VL16}, {sr(WS,4)}, s30 offen offset:1024 sc1"""
def hdr_poll(nm, off, dstoff, flag, after="", mark=False, ap=24):
    L, Lo = g.nl(nm), g.nl(nm + "o")
    g(f"s_mov_b32 s43, {LIM_MEM}")
    if OPT["bkh"]:
        Lf = g.nl(nm + "f")
        g(f"s_branch {Lf}")
    g.label(L)
    if OPT["bkh"]:
        g(f"s_sleep {OPT['bkh']}")
        g.label(Lf)
    g(f"""s_load_dwordx16 s[52:67], s[{ap}:{ap+1}], {off} glc
          s_load_dwordx16 s[68:83], s[{ap}:{ap+1}], {off+64} glc
          s_sub_u32 s43, s43, 1
          s_cbranch_scc1 {Lo}
          s_waitcnt lgkmcnt(0)
          s_add_u32 s19, s53, s55""")
    for k in range(2, 16): g(f"s_add_u32 s19, s19, s{53+2*k}")
    g(f"s_cmp_eq_u32 s19, s18\ns_cbranch_scc0 {L}")
    g.label(Lo)
    g("s_waitcnt lgkmcnt(0)")
    if after: g(after)
    for k in range(16): g(f"v_writelane_b32 v24, s{52+2*k}, {k}")
    g("s_mov_b64 exec, 0xffff")
    if mark:
        g(f"""v_cmp_gt_i32 vcc, 0, v24
              s_cmp_lg_u64 vcc, 0
              s_cselect_b32 s42, 0x101, 1
              v_mov_b32 v25, s42""")
    g(f"""ds_write_b32 v16, v24 offset:{dstoff}
          s_mov_b64 exec, 1
          ds_add_u32 v{VZ}, v{25 if mark else VONE} offset:{flag}
          s_mov_b64 exec, -1""")
g(f"""s_add_u32 s24, s{WS}, s31
      s_addc_u32 s25, s{WS+1}, 0
      s_and_b32 s20, s{sJ}, {OPT["hrep"]-1}
      s_lshl_b32 s20, s20, 15
      s_add_u32 s20, s20, s24
      s_addc_u32 s21, s25, 0
      s_lshl_b32 s18, s{sTAG}, 4""")
for n in range(2):
    for p in range(4): g(f"v_and_b32 v{88+4*n+p}, 0x3f803f80, v{MK+p}")
if OPT["d3a"]: g(f"s_sleep {OPT['d3a']}")
if OPT["pr0"]: g("s_setprio 2")
hdr_poll("h3l", LOFF, LT, F_LT, after=(f"s_sleep {OPT['d3b']}\n" if OPT["d3b"] else "") + ib_loads, mark=True, ap=20)
cnt(25, 43)
stamp(11)
pc_wait(0xff, 8, 42, 43, off=F_LT)
g("s_cmp_lg_u32 s42, 8\ns_cbranch_scc1 L_genw")
g.label("L_genw_ret")
L, Lo = g.nl("h3d"), g.nl("h3do")
g(f"s_mov_b32 s43, {LIM_MEM}")
g.label(L)
g("s_waitcnt vmcnt(0)")
for k in range(8): g(f"v_xor_b32 v{IR+k}, v{IR+k}, v{TP+(k&3)}")
g(f"""v_or3_b32 v{VT}, v{IR}, v{IR+1}, v{IR+2}
      v_or3_b32 v12, v{IR+3}, v{IR+4}, v{IR+5}
      v_or3_b32 v{VT}, v{VT}, v{IR+6}, v{IR+7}
      v_bitop3_b32 v{VT}, v{VT}, v12, s44 bitop3:0xa8
      v_cmp_ne_u32 vcc, 0, v{VT}
      s_cbranch_vccz {Lo}
      s_sub_u32 s43, s43, 1
      s_cbranch_scc1 {Lo}
      s_lshr_b64 s[48:49], vcc, 4
      s_or_b64 vcc, vcc, s[48:49]
      s_lshr_b64 s[48:49], vcc, 2
      s_or_b64 vcc, vcc, s[48:49]
      s_lshr_b64 s[48:49], vcc, 1
      s_or_b64 vcc, vcc, s[48:49]
      s_and_b32 s48, vcc_lo, 0x01010101
      s_and_b32 s49, vcc_hi, 0x01010101
      s_mul_i32 exec_lo, s48, 0xff
      s_mul_i32 exec_hi, s49, 0xff
      s_sleep {OPT["bk3"]}
      {ib_loads}
      s_branch {L}""")
g.label(Lo)
g("s_mov_b64 exec, -1")
cnt(26, 43)
stamp(12)
mfma(96, 88, IR, True)
mfma(96, 92, IR + 4, False)
g(f"""s_nop 7
      v_cvt_pk_bf16_f32 v100, v96, v97
      v_cvt_pk_bf16_f32 v101, v98, v99
      s_mov_b64 exec, s[46:47]
      ds_write_b64 v19, v[100:101] offset:{RIB}
      s_mov_b64 exec, 1
      ds_add_u32 v{VZ}, v{VONE} offset:{F_IB}
      s_mov_b64 exec, -1""")
stamp(13)
g(f"""s_cmp_lt_u32 s{sWG}, 20
      s_cbranch_scc0 L_A_end
      s_lshl_b32 s41, s{sWG}, 14
      s_lshl_b32 s42, s{sWV}, 11
      s_add_u32 s41, s41, s42
      s_add_u32 s41, s41, {SM}
      v_and_b32 v7, 7, v{LANE}
      v_lshlrev_b32 v7, 2, v7
      v_lshrrev_b32 v6, 5, v{LANE}
      v_lshl_add_u32 v7, v6, 1, v7
      v_and_b32 v6, 1, v{vKG}
      v_add_u32 v7, v7, v6
      v_lshlrev_b32 v18, 5, v7
      s_lshl_b32 s42, s{sWV}, 2
      v_add_u32 v6, s42, v18
      v_lshlrev_b32 v7, 1, v7
      s_lshl_b32 s55, s{sWG}, 6""")
tagbytes()
def red8(b):
    g(f"""s_nop 1
          v_permlane32_swap_b32 v{b}, v{b+2}
          v_permlane32_swap_b32 v{b+1}, v{b+3}
          v_pk_add_f32 {vr(b,2)}, {vr(b,2)}, {vr(b+2,2)}
          s_nop 1
          v_permlane16_swap_b32 v{b}, v{b+1}
          v_add_f32 v{b}, v{b}, v{b+1}
          s_nop 1
          v_add_f32_dpp v{b}, v{b}, v{b} row_ror:8 {DPPM}""")
g(f"""s_cmp_eq_u32 s{sWV}, 0
      s_cbranch_scc0 L_fin_s""")
srd(SR, P_X, 1280)
g(f"""buffer_load_ushort v16, v7, {sr(SR,4)}, s55 offen
      s_lshl_b32 s40, s{sWG}, 12
      s_add_u32 s40, s40, {YM}""")
poll_loads("h7", f"""v_mov_b32 v60, s{sTB}
      v_mov_b32 v61, s{sTB+1}
      v_mov_b32 v62, s{sTB+2}
      v_mov_b32 v63, s{sTB+3}
      buffer_load_dwordx4 v[48:51], v{VL16}, {sr(WS,4)}, s40 offen sc1
      buffer_load_dwordx4 v[52:55], v{VL16}, {sr(WS,4)}, s40 offen offset:1024 sc1
      buffer_load_dwordx4 v[56:59], v{VL16}, {sr(WS,4)}, s40 offen offset:2048 sc1
      s_mov_b64 exec, 0xffffff
      buffer_load_dwordx4 v[60:63], v{VL16}, {sr(WS,4)}, s40 offen offset:3072 sc1
      s_mov_b64 exec, -1""", [48, 52, 56, 60], 43, sleep=4, mask=False, b8=True)
sum_groups(48, 4)
red8(48)
rne(48)
g(f"""v_mul_f32 v49, {hex(f32(-math.log2(math.e)))}, v48
      v_exp_f32 v49, v49
      s_nop 0
      v_add_f32 v49, 1.0, v49
      v_rcp_f32 v49, v49
      s_nop 0
      v_mul_f32 v48, v48, v49""")
rne(48)
g("v_lshlrev_b32 v20, 16, v16")
stamp(19)
g.label("L_fin_s")
lds_wait(F_SD, 4 - OPT["w8x3"], 42, sleep=1)
if OPT["d5"]: g(f"s_sleep {OPT['d5']}")
poll_loads("h5", f"""buffer_load_dwordx4 v[32:35], v{VL16}, {sr(WS,4)}, s41 offen sc1
      buffer_load_dwordx4 v[36:39], v{VL16}, {sr(WS,4)}, s41 offen offset:1024 sc1""", [32, 36], 43, sleep=OPT["bk5"], b8=True)
cnt(27, 43)
stamp(20)
sum_groups(32, 2)
red8(32)
g(f"""ds_write_b32 v6, v32 offset:{RFIN}
      s_mov_b64 exec, 1
      ds_add_u32 v{VZ}, v{VONE} offset:{F_FIN}
      s_mov_b64 exec, -1
      s_cmp_eq_u32 s{sWV}, 0
      s_cbranch_scc0 L_A_end""")
srd(44, P_OUT, 1280)
lds_wait(F_FIN, 8, 42, extra=f"ds_read_b128 v[32:35], v18 offset:{RFIN}\nds_read_b128 v[36:39], v18 offset:{RFIN+16}")
sum_groups(32, 2)
g("v_pk_add_f32 v[32:33], v[32:33], v[34:35]\nv_add_f32 v32, v32, v33")
rne(32)
g("v_mul_f32 v32, v32, v48")
rne(32)
g(f"""v_add_f32 v32, v32, v20
      v_cvt_pk_bf16_f32 v32, v32, v32
      buffer_store_short v32, v7, {sr(44,4)}, s55 offen {'sc1' if OPT['osc'] else ''}
      s_cmp_eq_u32 s{sWG}, 0
      s_cbranch_scc0 L_noep
      s_mov_b64 exec, 1
      v_mov_b32 v13, s{sTAG}
      buffer_store_dword v13, v{VZ}, {sr(WS,4)}, 0 offen offset:{EPOCH} sc1""")
g.label("L_noep")
stamp(21)
g.label("L_A_end")
ts_flush()
g("s_endpgm")
g.label("L_genw")
hdr_poll("h3m", 0, MLT, F_ML)
lds_wait(F_ML, 8, 42)
g(f"""ds_read_b64 v[24:25], v14 offset:{MLT}
      ds_read_b32 v8, v17 offset:{MLT}
      ds_read_b32 v9, v17 offset:{MLT+32}
      s_waitcnt lgkmcnt(0)""")
global_max(22, 24)
g(f"""v_sub_f32 v8, v8, v22
      v_sub_f32 v9, v9, v22
      v_exp_f32 v8, v8
      v_exp_f32 v9, v9
      s_nop 0
      v_cvt_pk_bf16_f32 v8, v8, v8
      v_cvt_pk_bf16_f32 v9, v9, v9""")
for n in range(2):
    for p in range(4): g(f"v_and_b32 v{88+4*n+p}, v{8+n}, v{MK+p}")
g("s_branch L_genw_ret")
g.label("L_slow")
g(f"""v_mov_b32 v8, v9
      v_lshlrev_b32 v6, 5, v{vN}
      s_lshl_b32 s42, s{sWV}, 2
      v_add_u32 v29, s42, v6
      s_mov_b32 s43, 0x3f803f80
      v_permlane16_swap_b32 v9, v8
      v_max_f32 v9, v9, v8
      v_mov_b32 v8, v9
      s_nop 1
      v_permlane32_swap_b32 v9, v8
      v_max_f32 v9, v9, v8
      s_mov_b64 exec, 0xffff
      ds_write_b32 v29, v9 offset:{RMX}
      s_mov_b64 exec, 1
      ds_add_u32 v{VZ}, v{VONE} offset:{F_MAX}
      s_mov_b64 exec, -1""")
lds_wait(F_MAX, 8, 42, extra=f"ds_read_b128 v[12:15], v6 offset:{RMX}\nds_read_b128 v[16:19], v6 offset:{RMX+16}")
g(f"""v_max3_f32 v{VM}, v12, v13, v14
      v_max3_f32 v16, v15, v16, v17
      v_max3_f32 v{VM}, v{VM}, v18, v19
      v_max_f32 v{VM}, v{VM}, v16""")
for r in range(4): g(f"v_sub_f32 v{SA+r}, v{SA+r}, v{VM}")
for r in range(4): g(f"v_exp_f32 v{SA+r}, v{SA+r}")
g(f"""v_lshlrev_b32 v15, {HS}, v{vN}
      v_cvt_pk_bf16_f32 v12, v{SA}, v{SA+1}
      v_cvt_pk_bf16_f32 v13, v{SA+2}, v{SA+3}
      ds_write_b64 v7, v[12:13] offset:{PL}""")
lds_inc(F_P)
lds_wait(F_P, 8, 42)
g("\n".join(pread(u) for u in range(4)))
g("v_mov_b32 v12, 0\nv_mov_b32 v14, 0\ns_waitcnt lgkmcnt(0)")
for u in range(4):
    for i in range(4):
        mfma(OA + 4 * i, PF + 4 * u, PVA + 16 * i + 4 * u, u == 0)
        g(f"v_dot2c_f32_bf16 v{12+2*(i&1)}, s43, v{PF+4*u+i}")
def l_store(so, va):
    n = OPT["hrep"]
    g({1: "s_mov_b64 exec, 0xffff", 2: "s_mov_b32 exec_hi, 0", 4: "", 8: ""}[n])
    g(f"buffer_store_dwordx2 v[12:13], v{va}, {sr(WS,4)}, s{so} offen sc1")
    if n == 8: g(f"s_add_u32 s{so}, s{so}, 0x20000\nbuffer_store_dwordx2 v[12:13], v{va}, {sr(WS,4)}, s{so} offen sc1")
    g("s_mov_b64 exec, -1")
def lsum():
    g(f"""v_mov_b32 v13, s{sTAG}
          v_mov_b32 v11, s{sTAG}
          s_nop 0
          v_add_f32 v12, v12, v14
          v_mov_b32 v14, v12
          s_nop 1
          v_permlane16_swap_b32 v12, v14
          v_add_f32 v12, v12, v14
          v_mov_b32 v14, v12
          s_nop 1
          v_permlane32_swap_b32 v12, v14
          v_add_f32 v12, v12, v14""")
lsum()
g(f"""v_or_b32 v12, 0x80000000, v12
      s_cmp_eq_u32 s{sWV}, 0
      s_cbranch_scc0 L_pv2
      s_mov_b64 exec, 0xffff
      buffer_store_dwordx2 v[10:11], v15, {sr(WS,4)}, s27 offen sc1
      s_mov_b64 exec, -1
      v_lshl_add_u32 v14, v{vKG}, 15, v15""")
l_store(23, 14)
g("s_branch L_pv2")

KORD = (0, 2, 1, 3)
TH = OPT["gthr"]
def wo_setup():
    g(f"""v_mul_u32_u24 v6, {8*1280}, v{vKG}
          v_lshl_add_u32 v6, v{vN}, 3, v6
          s_lshl_b32 s40, s{sHF}, 7
          s_lshr_b32 s41, s{sJ}, 1
          s_lshl_b32 s41, s41, 5
          s_add_u32 s40, s40, s41
          s_mul_i32 s40, s40, 1280
          s_and_b32 s41, s{sJ}, 1
          s_mul_i32 s41, s41, 640
          s_add_u32 s48, s40, s41""")
    srd(44, P_WO, 5242880)

def wo_gate():
    if OPT["wogate"] == 1: lds_wait(F_H3, 8, 40, sleep=1)
    elif OPT["wogate"] == 2: lds_wait(F_IB, 1, 40, sleep=2)

def h4_setup():
    g(f"""v_and_b32 v31, 7, v{vN}
          v_lshlrev_b32 v29, 7, v31
          v_lshl_add_u32 v29, v{vKG}, 5, v29
          s_lshl_b32 s50, s{sHF}, 2
          s_lshr_b32 s51, s{sJ}, 1
          s_add_u32 s50, s50, s51                 ; p = h*4+dq
          s_lshl_b32 s61, s50, 10
          s_add_u32 s61, s61, {CXM}
          v_lshrrev_b32 v30, 3, v{vN}
          v_lshlrev_b32 v30, 14, v30
          v_lshl_add_u32 v30, v31, 4, v30         ; (n>>3)*16K + (n&7)*16
          v_mov_b32 v31, 0xff
          s_and_b32 s41, s{sJ}, 1
          s_mul_i32 s41, s41, {10*16384}
          s_lshl_b32 s50, s50, 7
          s_add_u32 s50, s50, s41
          s_add_u32 s50, s50, {SM}""")
    tagbytes()

def h4_warm(A, cbks):
    g(f"buffer_load_dwordx4 {vr(A,4)}, v29, {sr(WS,4)}, s61 offen sc1")
    for cbk in cbks:
        g(f"""s_add_u32 s51, s50, {cbk*2*16384}
              buffer_load_dwordx4 {vr(A+4,4)}, v30, {sr(WS,4)}, s51 offen sc1""")

def h4_wait(A, late=""):
    Ls = g.nl("h4s")
    onfail = f"""s_cmp_lg_u32 s43, {LIM_MEM-32}
          s_cbranch_scc1 {Ls}
          {late}
          {Ls}:""" if (OPT["fast4"] and late) else ""
    poll_loads("h4", f"""buffer_load_dwordx4 {vr(A,4)}, v29, {sr(WS,4)}, s61 offen sc1
          buffer_load_dwordx4 {vr(A+4,4)}, v29, {sr(WS,4)}, s61 offen offset:16 sc1""", [A+1, A+3, A+5, A+7], 43, sleep=OPT["bk4"], onfail=onfail)
    g(f"v_mov_b32 v{A+1}, v{A+4}\nv_mov_b32 v{A+3}, v{A+6}\ns_nop 1")

def rl_wait():
    lds_wait(F_RLV, 1, 40, extra=f"ds_read_b32 v28, v{VZ} offset:{RLINV}")

def wo_compute(A, frags, cbks, D):
    for bi, fr in enumerate(frags):
        for t in range(4): mfma(D + 16 * bi + 4 * t, A, fr + 4 * t, True)
    g("s_nop 4" if len(frags) == 1 else "s_nop 0")
    for bi, cbk in enumerate(cbks):
        d = D + 16 * bi
        for t in range(4): g(f"v_pk_add_f32 {vr(d+4*t,2)}, {vr(d+4*t,2)}, {vr(d+4*t+2,2)}")
        for t in range(4): g(f"v_add_f32 v{16+t}, v{d+4*t}, v{d+4*t+1}")
        for t in range(4): g(f"v_mov_b32 v{20+t}, v{16+t}")
        g(f"s_add_u32 s51, s50, {cbk*2*16384}")
        for t in range(4): g(f"v_permlane16_swap_b32 v{16+t}, v{20+t}")
        g("v_pk_add_f32 v[16:17], v[16:17], v[20:21]\nv_pk_add_f32 v[18:19], v[18:19], v[22:23]")
        for t in range(4): g(f"v_mul_f32 v{d+t}, v{16+t}, v28")
        tagput([d, d+1, d+2, d+3], 31)
        g(f"""s_mov_b64 exec, 0xffff
              buffer_store_dwordx4 {vr(d,4)}, v30, {sr(WS,4)}, s51 offen sc1
              s_mov_b64 exec, -1""")
    lds_inc(F_SD)

def b1_gate():
    if OPT["b1gate"]:
        land_flush()
        if OPT['b1gate'] == 9: pc_wait(0xffff, 0x2222, 40, 41, sleep=1)
        else: lds_wait(F_STG, OPT['b1gate'], 40, sleep=2)

g.label("L_G")
if OPT["ldw"]: g(f"s_sleep {OPT['ldw']}")
get_tag(6)
g(f"""s_cmp_eq_u32 s{sWV}, 10
      s_cbranch_scc1 L_G_uv10""")
LD.pending = False
wo_setup(); h4_setup()
if OPT["dec"]: h4_warm(8, [0, 1] + [4] * OPT["w8x3"])
b1_gate()
if OPT["wogate"]: land_flush()
wo_gate()
stamp(4)
load_block(32, 6, 44, 48, 42, 1280, TH)
g("s_add_u32 s49, s48, 128")
load_block(48, 6, 44, 49, 42, 1280, TH)
X3 = OPT["w8x3"]
if X3:
    g("s_add_u32 s49, s48, 512")
    load_block(144, 6, 44, 49, 42, 1280, TH)
land_flush()
def w8_perms():
    g(f"s_waitcnt vmcnt({8+8*X3})")
    perm_block(32, 64, KORD)
    g(f"s_waitcnt vmcnt({8*X3})")
    perm_block(48, 80, KORD)
    if X3:
        g("s_waitcnt vmcnt(0)")
        perm_block(144, 32, KORD)
if not OPT['dec']:
    w8_perms()
    h4_warm(8, [0, 1] + [4] * X3)
stamp(5)
g(f"""v_lshlrev_b32 v16, 3, v{LANE}
""")
g("v_mov_b32 v20, 1.0\nv_mov_b32 v21, 1.0")
lds_wait(F_LT, 1, 40, sleep=1)
g("s_setprio 2")
pc_wait(0xff, 8, 40, 41, off=F_LT, extra=f"ds_read_b64 v[24:25], v16 offset:{LT}")
g("s_cmp_eq_u32 s40, 8\ns_cbranch_scc1 L_unitw")
lds_wait(F_ML, 8, 40)
g(f"ds_read_b64 v[20:21], v16 offset:{MLT}\ns_waitcnt lgkmcnt(0)")
global_max(22, 20)
g(f"""v_sub_f32 v20, v20, v22
      v_sub_f32 v21, v21, v22
      v_exp_f32 v20, v20
      v_exp_f32 v21, v21
      s_nop 0""")
rne(20); rne(21)
g.label("L_unitw")
g("v_mul_f32 v24, abs(v24), v20\nv_fma_f32 v24, abs(v25), v21, v24")
wave_sum(24, 40)
g(f"""s_nop 1
      v_rcp_f32 v24, s40
      s_nop 0
      ds_write_b32 v{VZ}, v24 offset:{RLINV}
      ds_write_b32 v{VZ}, v{VONE} offset:{F_RLV}
      v_mov_b32 v28, v24""")
if OPT["dec"]: w8_perms()
lds_wait(F_IB, 8, 40, sleep=1)
h4_wait(8)
stamp(6)
wo_compute(8, [64, 80] + [32] * X3, [0, 1] + [4] * X3, 96)
stamp(7)
g("s_branch L_G_end")

def uv_loads():
    g(f"""v_lshlrev_b32 v7, 13, v{vKG}
          v_lshl_add_u32 v7, v{vN}, 3, v7
          s_lshl_b32 s56, s{sJ}, 17               ; 16j rows
          s_lshl_b32 s41, s{sHF}, 8
          s_add_u32 s56, s56, s41
          s_sub_u32 s52, s{sWV}, 9                ; colhalf
          s_lshl_b32 s41, s52, 7
          s_add_u32 s56, s56, s41
          s_add_u32 s57, s56, {4*8192}""")
    srd(SR, P_WUV, 4194304)
    b1_gate()
    stamp(4)
    rows = [128 * (e & 3) + 8 * (e >> 2) for e in range(8)]
    load_block(32, 7, SR, 56, 42, 8192, TH, rows)
    load_block(48, 7, SR, 57, 42, 8192, TH, rows)
g.label("L_G_uv10")
g.label("L_G_uv9")
LD.pending = False
uv_loads()
g.label("L_G_uv")
wo_setup(); h4_setup()
g(f"""s_add_u32 s49, s52, 2
      s_mul_i32 s53, s49, {2*16384}
      s_add_u32 s50, s50, s53
      s_lshl_b32 s49, s49, 7
      s_add_u32 s49, s49, s48
      v_and_b32 v7, 7, v{vN}
      v_mul_u32_u24 v8, 144, v{vN}
      v_lshl_add_u32 v8, v{vKG}, 4, v8
      v_lshlrev_b32 v9, 4, v{LANE}
      v_lshrrev_b32 v11, 3, v{vN}
      v_lshlrev_b32 v11, 10, v11
      v_lshl_add_u32 v11, v7, 4, v11          ; (n>>3)*1024 + (n&7)*16
      s_lshl_b32 s40, s{sHF}, 2
      s_lshl_b32 s41, s52, 1
      s_add_u32 s40, s40, s41
      s_lshl_b32 s40, s40, 3
      s_add_u32 s40, s40, s{sJ}
      s_lshl_b32 s40, s40, 7
      s_add_u32 s54, s40, {CXM}""")
if not OPT["wogate"]:
    load_block(64, 6, 44, 49, 42, 1280, TH)
    h4_warm(16, [0])
g(f"""s_cmp_eq_u32 s{sWV}, 9
      s_cbranch_scc0 L_nohd
      s_and_b32 s56, s{sSLOT}, 1
      s_lshl_b32 s56, s56, {HS-3}
      s_add_u32 s56, s56, s{sXCD}
      s_lshl_b32 s56, s56, 4
      s_lshr_b32 s57, s{sSLOT}, 1
      s_add_u32 s56, s56, s57
      s_lshl_b32 s56, s56, 3
      s_add_u32 s56, s56, {HD}
      s_add_u32 s57, s56, {LOFF}
      v_lshlrev_b32 v15, {HS}, v{vN}
      v_lshl_add_u32 v27, v{vKG}, 15, v15
      v_mov_b32 v24, 0
      v_mov_b32 v25, s{sTAG}
      v_mov_b32 v12, 0
      v_mov_b32 v14, 0
      v_mov_b32 v26, v11
      s_mov_b32 s58, 0x3f803f80""")
pc_wait(0xfff, 0x222, 40, 41, sleep=1)
g(f"s_setprio {OPT['hp']}")
pc_wait(0xffff, 0x2222, 40, 41)
g(f"""s_cmp_lg_u32 s40, 0x2222
      s_cbranch_scc1 L_nohd2""")
g("\n".join(f"ds_read_b128 {vr(128+4*u,4)}, v9 offset:{PL+1024*u}" for u in range(4)))
for u in range(4):
    g(f"s_waitcnt lgkmcnt({3-u})")
    for i in range(4): g(f"v_dot2c_f32_bf16 v{12+2*(i&1)}, s58, v{128+4*u+i}")
lsum()
if OPT["hk"]: lds_wait(F_H3, OPT["hk"], 40)
elif OPT["dl"]: g(f"s_sleep {OPT['dl']}")
l_store(57, 27)
g(f"""s_mov_b64 exec, 0xffff
      buffer_store_dwordx2 v[24:25], v15, {sr(WS,4)}, s56 offen sc1
      s_mov_b64 exec, -1""")
stamp(10)
g.label("L_nohd2")
g(f"""v_mov_b32 v11, v26
      s_setprio 0
      {"s_waitcnt vmcnt(2)" if not OPT["wogate"] else ""}""")
g.label("L_nohd")
if OPT["wogate"]:
    wo_gate()
    load_block(64, 6, 44, 49, 42, 1280, TH)
    h4_warm(144, [0])
g("s_waitcnt vmcnt(18)")
perm_block(32, 80)
g("s_waitcnt vmcnt(10)")
perm_block(48, 96)
g(f"v_mov_b32 v61, s{sTAG}\nv_mov_b32 v63, s{sTAG}")
if not OPT["wogate"]:
    g("s_waitcnt vmcnt(0)")
    perm_block(64, 112, KORD)
stamp(5)
lds_wait(F_LT, 8, 40, sleep=2)
if not OPT["dec"]: rl_wait()
g("s_setprio 3")
rr = f"ds_read_b128 v[32:35], v8 offset:{RIB}\nds_read_b128 v[36:39], v8 offset:{RIB+64}"
if OPT["mg1"]: lds_wait(F_IB, 8, 40, extra=rr)
else:
    lds_wait(F_IB, 8, 40); g(rr)
stamp(6)
D = 128
for blk in range(2):
    g(f"s_waitcnt lgkmcnt({1-blk})")
    for t in range(4): mfma(D + 4 * t, 32 + 4 * blk, 80 + 16 * blk + 4 * t, blk == 0)
g("s_nop 4")
for t in range(4): g(f"v_pk_add_f32 {vr(D+4*t,2)}, {vr(D+4*t,2)}, {vr(D+4*t+2,2)}")
for t in range(4): g(f"v_add_f32 v{16+t}, v{D+4*t}, v{D+4*t+1}")
g(f"""s_nop 0
      v_permlane32_swap_b32 v16, v18
      v_permlane32_swap_b32 v17, v19
      v_pk_add_f32 v[16:17], v[16:17], v[18:19]
      v_mov_b32 v18, v16
      v_mov_b32 v19, v17
      s_nop 0
      v_permlane16_swap_b32 v16, v18
      v_permlane16_swap_b32 v17, v19
      v_pk_add_f32 v[16:17], v[16:17], v[18:19]
      v_cvt_pk_bf16_f32 v60, v16, v17
      v_mov_b32 v62, v60
      s_nop 1
      v_permlane32_swap_b32 v60, v62""")
g(f"""s_mov_b64 exec, 0xffff
      buffer_store_dwordx4 v[60:63], v11, {sr(WS,4)}, {"s54 offen" if OPT["fast4"] else "s54 offen sc1"}
      s_mov_b64 exec, -1""")
stamp(7)
if OPT["wogate"]:
    g("s_waitcnt vmcnt(1)")
    perm_block(64, 112, KORD)
if OPT["dec"]: rl_wait()
late = f"s_mov_b64 exec, 0xffff\nbuffer_store_dwordx4 v[60:63], v11, {sr(WS,4)}, s54 offen sc1"
h4_wait(32, late)
stamp(8)
wo_compute(32, [112], [0], 128)
if OPT["fast4"]: g((f"s_sleep {OPT['d4']}\n" if OPT['d4'] else "") + late + "\ns_mov_b64 exec, -1")
stamp(9)
g("s_branch L_G_end")

g.label("L_FFNb")
PEND = OPT["fgate"] != 9 and not OPT["uk6"]
if OPT["remap"]:
    g(f"""s_and_b32 s40, s{sXCD}, 1
          s_lshl_b32 s62, s{sSLOT}, 1
          s_add_u32 s62, s62, s40                 ; u in 0..63
          s_lshr_b32 s63, s{sXCD}, 1              ; mq""")
else:
    g(f"""s_lshr_b32 s40, s{sSLOT}, 3             ; hq
      s_lshl_b32 s40, s40, 1
      s_and_b32 s41, s{sJ}, 1
      s_add_u32 s40, s40, s41
      s_lshl_b32 s40, s40, 3
      s_add_u32 s62, s40, s{sXCD}             ; u in 0..63
      s_lshr_b32 s63, s{sJ}, 1                ; mq""")
g(f"""v_and_b32 v31, 1, v{vKG}
      v_cmp_eq_u32 s[56:57], 1, v31
      s_cmp_lt_u32 s62, 27
      s_cbranch_scc0 L_FFN2""")
LD.pending = PEND; LD.n = 0
g(f"""v_mul_u32_u24 v28, {8*3456}, v{vKG}
      v_lshl_add_u32 v28, v{vN}, 3, v28
      v_lshlrev_b32 v7, 4, v{vKG}
      s_mul_i32 s58, s63, 320
      v_add_u32 v7, s58, v7
      s_mul_i32 s58, s63, {160*3456}
      s_lshl_b32 s41, s62, 7
      s_add_u32 s58, s58, s41""")
srd(SR, P_W1, 2211840)
stamp(4)
for b in range(5):
    if b: g(f"s_add_u32 s58, s58, {32*3456}")
    load_block(48 + 16 * b, 28, SR, 58, 42, 3456, OPT['fthr'])
land_flush()
D = 144
get_tag(6)
lds_wait(F_XN, 1, 40)
for b in range(5): g(f"ds_read_b128 {vr(XF+4*b,4)}, v7 offset:{XNL+64*b}")
g("s_waitcnt lgkmcnt(0)")
for b in range(5):
    g(f"s_waitcnt vmcnt({8*(4-b)})")
    perm_block(48 + 16 * b, 32 + 16 * b)
    g("s_nop 1")
    for t in range(4): mfma(D + 4 * t, XF + 4 * b, 32 + 16 * b + 4 * t, b == 0)
g(f"""v_lshlrev_b32 v28, 4, v{LANE}
      s_nop 0
      s_lshl_b32 s40, s62, 2
      s_add_u32 s40, s40, s63
      s_lshl_b32 s40, s40, 9
      s_add_u32 s40, s40, {HM}
      v_mov_b32 v9, s{sTAG}
      v_mov_b32 v11, s{sTAG}
      s_nop 1
      v_cndmask_b32 v8, v{D}, v{D+8}, s[56:57]
      v_cndmask_b32 v10, v{D+4}, v{D+12}, s[56:57]
      s_mov_b32 exec_hi, 0
      buffer_store_dwordx4 v[8:11], v28, {sr(WS,4)}, s40 offen sc1
      s_mov_b64 exec, -1
      s_branch L_FFNe""")
g.label("L_FFN2")
g(f"""s_mul_i32 s40, s63, 37
      s_add_u32 s40, s40, s62
      s_sub_u32 s58, s40, 27
      s_cmp_lt_u32 s58, 135
      s_cbranch_scc1 L_FFN2a""")
LD.pending = PEND; LD.n = 0
land_flush()
get_tag(6)
g("s_branch L_FFNe")
g.label("L_FFN2a")
LD.pending = PEND; LD.n = 0
g(f"""s_mul_i32 s59, s58, 205
      s_lshr_b32 s59, s59, 10                 ; fb = v/5
      s_mul_i32 s60, s59, 5
      s_sub_u32 s60, s58, s60                 ; mb
      v_mul_u32_u24 v28, {8*1280}, v{vKG}
      v_lshl_add_u32 v28, v{vN}, 3, v28
      s_mul_i32 s58, s59, {64*1280}
      s_lshl_b32 s41, s60, 8
      s_add_u32 s58, s58, s41""")
srd(SR, P_W2, 2211840)
if OPT["forder"] >= 2:
    land_flush()
    if OPT["forder"] == 2: lds_wait(F_ISS, 2, 40, sleep=2)
    if OPT["forder"] == 3: lds_wait(F_STG, 8, 40, sleep=2)
    if OPT["forder"] == 4: pc_wait(0xff, 8, 40, 41, off=F_LT, sleep=2)
stamp(4)
for ch in range(2):
    for blk in range(2):
        g(f"s_add_u32 s41, s58, {blk*32*1280 + ch*128}")
        load_block(48 + 16 * (2 * ch + blk), 28, SR, 41, 42, 1280, OPT['fthr2'])
land_flush()
get_tag(6)
for b in range(4):
    g(f"s_waitcnt vmcnt({8*(3-b)})")
    perm_block(48 + 16 * b, 32 + 16 * b)
g(f"""v_lshrrev_b32 v28, 2, v{vN}
      v_lshlrev_b32 v28, 9, v28
      v_lshl_add_u32 v28, v{vKG}, 5, v28
      v_bfe_u32 v29, v{vN}, 1, 1
      v_lshl_add_u32 v28, v29, 4, v28
      v_and_b32 v29, 1, v{vN}
      v_lshl_add_u32 v28, v29, 8, v28
      s_lshl_b32 s40, s59, 11
      s_add_u32 s40, s40, {HM}""")
poll_loads("h6", f"""buffer_load_dwordx4 v[8:11], v28, {sr(WS,4)}, s40 offen sc1
      buffer_load_dwordx4 v[12:15], v28, {sr(WS,4)}, s40 offen offset:128 sc1""", [9, 11, 13, 15], 43, sleep=6)
for mod in ("row_ror:4", "row_ror:8"):
    for r in (8, 10, 12, 14): g(f"v_add_f32_dpp v{r}, v{r}, v{r} {mod} {DPPM}")
for r in (8, 10, 12, 14): g(f"v_max_f32 v{r}, 0, v{r}")
g("v_cvt_pk_bf16_f32 v8, v8, v10\nv_cvt_pk_bf16_f32 v12, v12, v14\ns_nop 1")
for blk in range(2):
    for p in range(4):
        g(f"v_mov_b32_dpp v{16+4*blk+p}, v{8+4*blk} quad_perm:[{p},{p},{p},{p}] {DPPM}")
g("s_nop 1")
D = 96
for ch in range(2):
    for blk in range(2):
        for t in range(4): mfma(D + 16 * ch + 4 * t, 16 + 4 * blk, 32 + 16 * (2 * ch + blk) + 4 * t, blk == 0)
g(f"""v_lshrrev_b32 v28, 3, v{vN}
      v_lshlrev_b32 v28, 12, v28
      v_and_b32 v29, 7, v{vN}
      v_lshl_add_u32 v28, v29, 4, v28
      v_mov_b32 v29, 0xff
      s_lshl_b32 s40, s60, 14
      s_lshl_b32 s41, s59, 7
      s_add_u32 s40, s40, s41
      s_add_u32 s40, s40, {YM}
      s_add_u32 s41, s40, {2*4096}""")
tagbytes()
for ch in range(2):
    for t in range(4): g(f"v_bfi_b32 v{8+4*ch+t}, v29, s{sTB+t}, v{D+16*ch+4*t}")
g(f"""s_mov_b64 exec, 0xffff
      buffer_store_dwordx4 v[8:11], v28, {sr(WS,4)}, s40 offen sc1
      buffer_store_dwordx4 v[12:15], v28, {sr(WS,4)}, s41 offen sc1
      s_mov_b64 exec, -1""")
g.label("L_FFNe")
stamp(5)
if OPT["w8x3"]: g("s_branch L_G_end")
wo_setup(); h4_setup()
g("s_add_u32 s49, s48, 512")
if OPT["uvgate"] == 3: land_wait(4, 40, 24, sleep=1)
else: lds_wait(F_ISS, 2, 40, sleep=2)
b1_gate()
wo_gate()
load_block(128, 6, 44, 49, 42, 1280, TH)
g("s_waitcnt vmcnt(0)")
perm_block(128, 32, KORD)
h4_warm(8, [4])
lds_wait(F_LT, 8, 40, sleep=2)
rl_wait()
lds_wait(F_IB, 8, 40, sleep=1)
g("s_setprio 2")
h4_wait(8)
stamp(6)
wo_compute(8, [32], [4], 48)
stamp(7)
g.label("L_G_end")
if OPT["pad"]:
    g(f"""v_readfirstlane_b32 s40, v{VTS}
          s_cmp_lt_u32 s{sWG}, 8
          s_cbranch_scc0 L_END
          s_add_u32 s40, s40, {OPT["pad"]}""")
    if OPT["padmin"]:
        g(f"""s_load_dwordx2 s[44:45], s[0:1], 80
          s_mov_b32 s46, 256
          s_mov_b32 s47, 0x20000
          v_not_b32 v8, v{VTS}
          s_mov_b64 exec, 1
          s_waitcnt lgkmcnt(0)
          buffer_atomic_umax v8, v{VZ}, s[44:47], 0 offen
          s_waitcnt vmcnt(0)
          s_sleep 100
          buffer_load_dword v8, v{VZ}, s[44:47], 0 offen sc1
          s_waitcnt vmcnt(0)
          v_not_b32 v8, v8
          s_nop 1
          v_readfirstlane_b32 s40, v8
          s_nop 3
          s_add_u32 s40, s40, {OPT["pad"]}""")
    g(f"""L_padl:
          s_memrealtime s[42:43]
          s_waitcnt lgkmcnt(0)
          s_sub_u32 s41, s42, s40
          s_cmp_lt_i32 s41, 0
          s_cbranch_scc1 L_padl""")
ts_flush("G")
g.label("L_END")
g("s_endpgm")
g.l.append(".p2align 12")
g.label("L_CODE_END")

s = file_head([f"; @launch grid=(256,1,1) block=(768,1,1) lds={LDS_BYTES}"])
s += """// ---------------------------------------------------------------------------------------------
// group maximum inside +-64 (log2 units); otherwise the workgroup redoes it with the true maximum and
// ---------------------------------------------------------------------------------------------
"""
s += f""".text
.globl {K}
.p2align 12
.type {K},@function
{K}:
"""
s += g.text()
s += kernel_desc(K, 168, 102)
open(OUT, "w").write(s)
print(OUT, "lines", len(g.l), "ws_end", hex(WS_END))
```

```python
import sys, math, struct
from asmlib import *

OPT = dict(ts=0, stop=99, inflight=16, gate=12, ksmap=1, gthr=32, wogate=0, b1gate=0, pol=1, h2iss=2, amax=0, bk2=4, bk3=2, dbg=0, bk4=0, bk5=3, d3=0, d3b=0, d1=8, d5=8, fast4=1, warm=1, pad=0, padmin=0, padat=-1, padw=0, tlb=0, remap=1, l2q=8, bk1=1, bk1b=6, qcl=2, hlate=3, dec=1, hk=4, hrep=1, mg1=1, mg2=1, mg3=0, mg4=0, nrep=4, qs=14, kvt=0, uk6=1, vt=0, pr0=1, hp=1, inf2=0, split=2, w8x3=0, pkv=-1, pwq=-1, puk=-1, puv=-1, pwo=-1, pw1=-1, pw2=-1, d2=0, fgate=2, fthr=32, ukgate=0, h2land=3, forder=0, fast1=0, dh=8, ldw=0, d3a=12, hl=0, rng=64, dl=8, uvgate=0, bkh=4, st1=2, osc=1, d4=0, recl=1, rot=5, fthr2=32)
for a in sys.argv[2:]:
    k, v = a.split("=")
    assert k in OPT and k != "fast1", k
    OPT[k] = int(v)
if OPT["l2q"]: OPT["remap"] = 0; OPT["nrep"] = OPT["l2q"]; assert OPT["l2q"] in (4, 8)
OUT = sys.argv[1] if len(sys.argv) > 1 else "k.s"
POLS = {0: "", 1: "nt", 2: "sc1", 3: "sc1 nt", 4: "sc0 sc1", 5: "sc0 sc1 nt", 6: "sc0", 7: "sc0 nt"}
def pol(name): return POLS[OPT[name] if OPT[name] >= 0 else OPT["pol"]]
CUR = {"p": "pwq"}

def f32(x): return struct.unpack("<I", struct.pack("<f", x))[0]

EPOCH = 0
QM   = 0x1000
QS = OPT["qs"]
if QS == 14:
    HD, HS, LOFF = QM + 0x80000, 10, 0x8000
    QAM = HD + 0x8000 * (1 + OPT['hrep'])
else:
    HD, HS, LOFF = QM + 0x4000, QS, 0x400
    QAM = QM + (32 << QS)
CXM  = QAM + 0x10000
HM   = CXM + 0x20000
YM   = HM + 0x10000
SM   = YM + 20 * 4096
IB   = SM + 20 * 16384
WS_END = IB + 256 * 8 * 2048
TSOFF = 0x1000000
WS_REC = 0x2000000 if (OPT["ts"] and not OPT["dbg"]) else WS_END

(F_Q, F_QA, F_LAND, F_ISS, F_H2I, F_STG, F_MAX, F_P, F_IB, F_UK, F_TAG, F_TAGV, F_QP, F_QI, F_SD, F_FIN) = [4 * i for i in range(16)]
RMAX = 0x40
RL   = 0x80
F_H3, F_ML, F_QAP, F_XN, F_L, F_RLV, RLINV, F_LT, F_LA, F_LB, F_WQ, F_PC = 0xC0, 0xC4, 0xC8, 0xCC, 0xD0, 0xD4, 0xD8, 0xDC, 0xE0, 0xE4, 0xE8, 0xEC
REDQ = 0x100
REDQA = 0x600
PL   = 0x1000
RIB  = 0x2000
RFIN = PL
MLT  = 0x2A00
LT   = 0x2C00
RMX  = 0x2E00
RLP  = REDQ
XNL  = 0x3000
QL   = 0x3800
KV   = 0x7800
LDS_BYTES = KV + 0x20000

SCALE = (128 ** -0.5) * math.log2(math.e)
LIM_LDS = 1 << 16
LIM_MEM = 1 << 13

class G:
    def __init__(s): s.l = []; s.n = 0
    def __call__(s, x):
        for ln in x.strip("\n").split("\n"):
            if ln.strip(): s.l.append("  " + ln.strip())
    def label(s, x): s.l.append(x + ":")
    def nl(s, p): s.n += 1; return f"L_{p}_{s.n}"
    def text(s): return "\n".join(s.l) + "\n"
g = G()

def vr(a, n): return f"v[{a}:{a+n-1}]"
def sr(a, n): return f"s[{a}:{a+n-1}]"

LANE, VZ, VONE, VT, vN, vKG = 0, 1, 2, 3, 4, 5
VTS = 167
VL16 = 166
sWG, sWV = 2, 3
WS = 4
SR = 8
sXCD, sSLOT, sHF, sJ = 12, 13, 14, 15
P_X, P_KV, P_WQ, P_WUK, P_WUV, P_WO, P_BX, P_W1, P_W2, P_OUT, P_DBG, P_WS = [16 + 2 * i for i in range(12)]
sHA, sCA = (sSLOT, sXCD) if OPT['remap'] else (sHF, sJ)
sTAG, sCNT = 28, 29
sPLO, sPHI = 100, 101
DPPM = "row_mask:0xf bank_mask:0xf"

def srd(base, ptr, nbytes):
    g(f"""s_mov_b32 s{base}, s{ptr}
          s_mov_b32 s{base+1}, s{ptr+1}
          s_mov_b32 s{base+2}, {nbytes}
          s_mov_b32 s{base+3}, 0x20000""")

def stamp(k):
    if OPT["padat"] == k:
        g(f"s_memrealtime vcc\ns_waitcnt lgkmcnt(0)\nv_writelane_b32 v{VTS}, vcc_lo, 0")
    if not OPT["ts"]: return
    g(f"""s_memrealtime vcc
          s_waitcnt lgkmcnt(0)
          v_writelane_b32 v{VTS}, vcc_lo, {k}""")

def cnt(k, sreg):
    if OPT["ts"]: g(f"v_writelane_b32 v{VTS}, s{sreg}, {k}")

def ts_flush(role="A"):
    if OPT["padat"] >= 0:
        Lp, Le = g.nl("pad"), g.nl("pade")
        g(f"s_nop 4\nv_readlane_b32 s40, v{VTS}, 0")
        g("s_nop 4")
        if OPT["padw"] >= 8: g(f"s_cmp_eq_u32 s{sWV}, {OPT['padw'] % 100}")
        else: g(f"s_cmp_lt_u32 s{sWV}, 8")
        g(f"""s_cbranch_scc0 {Le}
              s_cmp_eq_u32 s40, 0
              s_cbranch_scc1 {Le}
              s_add_u32 s40, s40, 3000
              {Lp}:
              s_sleep 8
              s_memrealtime s[42:43]
              s_waitcnt lgkmcnt(0)
              s_sub_u32 s41, s42, s40
              s_cmp_lt_i32 s41, -40
              s_cbranch_scc1 {Lp}
              {Lp}b:
              s_memrealtime s[42:43]
              s_waitcnt lgkmcnt(0)
              s_sub_u32 s41, s42, s40
              s_cmp_lt_i32 s41, 0
              s_cbranch_scc1 {Lp}b
              {Le}:""")
    if not OPT["ts"]: return
    if OPT["dbg"]:
        sel = {"A": {1: 0, 2: 16, 6: 6, 7: 8, 8: 10, 9: 22, 10: 11, 11: 13, 14: 20, 15: 21}, "G": {3: 1, 4: 2, 5: 3, 12: 7, 13: 9}}[role]
        Ls = g.nl("dbg")
        g(f"""s_cmp_eq_u32 s{sWV}, {0 if role == "A" else 9}
              s_cbranch_scc0 {Ls}
              s_load_dwordx2 s[40:41], s[0:1], 80
              s_mov_b64 exec, -1
              v_mov_b32 v8, 0
              s_mov_b32 s42, 256
              s_mov_b32 s43, 0x20000""")
        for dst, src in sel.items():
            g(f"v_readlane_b32 s44, v{VTS}, {src}\ns_nop 3\nv_writelane_b32 v8, s44, {dst}")
        if role == "A":
            g(f"v_readlane_b32 s44, v{VTS}, 0\ns_nop 3\ns_not_b32 s44, s44\nv_writelane_b32 v8, s44, 0")
        g(f"""v_lshlrev_b32 v{VT}, 2, v{LANE}
              s_mov_b64 exec, 0xffff
              s_waitcnt lgkmcnt(0)
              buffer_atomic_umax v8, v{VT}, s[40:43], 0 offen""")
        g.label(Ls)
        return
    g(f"""s_mul_i32 s{sCNT}, s{sWG}, 12
          s_add_u32 s{sCNT}, s{sCNT}, s{sWV}
          s_lshl_b32 s{sCNT}, s{sCNT}, 7
          s_add_u32 s{sCNT}, s{sCNT}, {TSOFF}
          s_mov_b64 exec, -1
          s_mov_b32 exec_hi, 0
          v_lshlrev_b32 v{VT}, 2, v{LANE}
          buffer_store_dword v{VTS}, v{VT}, {sr(WS,4)}, s{sCNT} offen""")

def watch_hook(watch):
    if watch:
        Lw = g.nl("wd")
        g(f"s_cmp_lg_u32 s{sCNT}, {LIM_LDS - watch[0]}\ns_cbranch_scc1 {Lw}\n{watch[1]}\n{Lw}:")

def lds_wait(off, target, st, extra="", sleep=0, watch=None):
    L, Lo = g.nl("w"), g.nl("wo")
    g(f"s_mov_b32 s{sCNT}, {LIM_LDS}")
    if sleep:
        Lf = g.nl("wf")
        g(f"s_branch {Lf}")
    g.label(L)
    watch_hook(watch)
    if sleep:
        g(f"s_sleep {sleep}")
        g.label(Lf)
    g(f"ds_read_b32 v{VT}, v{VZ} offset:{off}")
    if extra: g(extra)
    g(f"""s_waitcnt lgkmcnt(0)
          v_readfirstlane_b32 s{st}, v{VT}
          s_sub_u32 s{sCNT}, s{sCNT}, 1
          s_cbranch_scc1 {Lo}
          s_cmp_ge_u32 s{st}, {target}
          s_cbranch_scc0 {L}""")
    g.label(Lo)

def pc_wait(mask, val, st, st2, extra="", sleep=0, off=None, watch=None):
    L, Lo = g.nl("pw"), g.nl("pwo")
    g(f"s_mov_b32 s{sCNT}, {LIM_LDS}")
    g.label(L)
    watch_hook(watch)
    if sleep: g(f"s_sleep {sleep}")
    g(f"ds_read_b32 v{VT}, v{VZ} offset:{F_PC if off is None else off}")
    if extra: g(extra)
    g(f"""s_waitcnt lgkmcnt(0)
          v_readfirstlane_b32 s{st}, v{VT}
          s_sub_u32 s{sCNT}, s{sCNT}, 1
          s_cbranch_scc1 {Lo}
          s_and_b32 s{st2}, s{st}, {hex(mask)}
          s_cmp_eq_u32 s{st2}, {hex(val)}
          s_cbranch_scc0 {L}""")
    g.label(Lo)

def land_wait(target, st, vt2, sleep=0):
    L, Lo = g.nl("lw"), g.nl("lwo")
    g(f"s_mov_b32 s{sCNT}, {LIM_LDS}")
    g.label(L)
    g(f"""ds_read_b64 {vr(vt2,2)}, v{VZ} offset:{F_LA}
          s_waitcnt lgkmcnt(0)
          v_min_u32 v{vt2}, v{vt2}, v{vt2+1}
          s_sub_u32 s{sCNT}, s{sCNT}, 1
          v_readfirstlane_b32 s{st}, v{vt2}
          s_cbranch_scc1 {Lo}
          s_cmp_ge_u32 s{st}, {target}
          s_cbranch_scc1 {Lo}""")
    if sleep: g(f"s_sleep {sleep}")
    g(f"s_branch {L}")
    g.label(Lo)

def lds_inc(off):
    g(f"""s_mov_b64 exec, 1
          ds_add_u32 v{VZ}, v{VONE} offset:{off}
          s_mov_b64 exec, -1""")

def get_tag(vtmp):
    lds_wait(F_TAGV, 1, sTAG, extra=f"ds_read_b32 v{vtmp}, v{VZ} offset:{F_TAG}")
    g(f"v_readfirstlane_b32 s{sTAG}, v{vtmp}")

def wave_sum(v, sdst):
    for mod in ("quad_perm:[1,0,3,2]", "quad_perm:[2,3,0,1]", "row_half_mirror", "row_mirror"):
        g(f"s_nop 1\nv_add_f32_dpp v{v}, v{v}, v{v} {mod} {DPPM}")
    g(f"s_nop 1\nv_add_f32_dpp v{v}, v{v}, v{v} row_bcast:15 row_mask:0xa bank_mask:0xf")
    g(f"s_nop 1\nv_add_f32_dpp v{v}, v{v}, v{v} row_bcast:31 row_mask:0xc bank_mask:0xf")
    g(f"s_nop 1\nv_readlane_b32 s{sdst}, v{v}, 63")

def rne(v):
    g(f"v_cvt_pk_bf16_f32 v{v}, v{v}, v{v}\nv_and_b32 v{v}, 0xffff0000, v{v}")

def ln_stats(x5, tmp, sA, sB, vM, vR):
    u = tmp
    for k in range(5):
        g(f"v_lshlrev_b32 v{u+2*k}, 16, v{x5+k}\nv_and_b32 v{u+2*k+1}, 0xffff0000, v{x5+k}")
    a = u + 10
    g(f"v_add_f32 v{a}, v{u}, v{u+1}")
    for k in range(2, 10): g(f"v_add_f32 v{a}, v{a}, v{u+k}")
    wave_sum(a, sA)
    g(f"s_nop 1\nv_mov_b32 v{vM}, s{sA}\nv_mul_f32 v{vM}, {hex(f32(1.0/640))}, v{vM}")
    for k in range(10): g(f"v_sub_f32 v{u+k}, v{u+k}, v{vM}")
    g(f"v_mul_f32 v{a}, v{u}, v{u}")
    for k in range(1, 10): g(f"v_fmac_f32 v{a}, v{u+k}, v{u+k}")
    wave_sum(a, sB)
    g(f"s_nop 1\nv_mov_b32 v{vR}, s{sB}\nv_mul_f32 v{vR}, {hex(f32(1.0/640))}, v{vR}")
    rne(vR)
    g(f"v_add_f32 v{vR}, {hex(f32(1e-5))}, v{vR}")
    rne(vR)
    g(f"v_sqrt_f32 v{vR}, v{vR}\ns_nop 0")
    rne(vR)
    g(f"v_rcp_f32 v{vR}, v{vR}")
    rne(vM)

def ln_frag(src, dst, t0, vM, vR):
    for k in range(4):
        g(f"""v_lshlrev_b32 v{t0}, 16, v{src+k}
              v_and_b32 v{t0+1}, 0xffff0000, v{src+k}
              v_sub_f32 v{t0}, v{t0}, v{vM}
              v_sub_f32 v{t0+1}, v{t0+1}, v{vM}
              v_cvt_pk_bf16_f32 v{t0+1}, v{t0}, v{t0+1}
              v_lshlrev_b32 v{t0}, 16, v{t0+1}
              v_and_b32 v{t0+1}, 0xffff0000, v{t0+1}
              v_mul_f32 v{t0}, v{t0}, v{vR}
              v_mul_f32 v{t0+1}, v{t0+1}, v{vR}
              v_cvt_pk_bf16_f32 v{dst+k}, v{t0}, v{t0+1}""")

def perm_block(raw, out, order=(0, 1, 2, 3)):
    for p in range(4):
        e = 2 * order[p]
        for d in range(2):
            g(f"v_perm_b32 v{out+4*(2*d)+p}, v{raw+2*(e+1)+d}, v{raw+2*e+d}, s{sPLO}")
            g(f"v_perm_b32 v{out+4*(2*d+1)+p}, v{raw+2*(e+1)+d}, v{raw+2*e+d}, s{sPHI}")

class Landing:
    pending = False
    n = 0
LD = Landing()

def load_block(raw, voff, srdb, sbase, stmp, rowbytes, thr=0, rows=None):
    CUR["p"] = {3456: "pw1", 8192: ("puv" if rows else "pwq"), 1280: ("pw2" if srdb == SR else "pwo")}[rowbytes]
    per = 4095 // rowbytes + 1
    cur = None
    for e in range(8):
        grp, rem = divmod(e, per)
        if grp != cur:
            if grp == 0: so = sbase
            else:
                g(f"s_add_u32 s{stmp}, s{sbase}, {(rows[e] if rows else grp*per)*rowbytes}"); so = stmp
            cur = grp
        if thr:
            g(f"s_waitcnt vmcnt({thr-1})")
            if LD.pending and LD.n >= thr - 1:
                land_now()
        off = f" offset:{rem*rowbytes}" if rem else ""
        g(f"buffer_load_dwordx2 {vr(raw+2*e,2)}, v{voff}, {sr(srdb,4)}, s{so} offen{off} {pol(CUR['p'])}")
        LD.n += 1

def land_now():
    g(f"ds_write_b32 v{VZ}, v{VONE} offset:{F_UK}")
    stamp(2)
    LD.pending = False

def land_flush():
    if LD.pending:
        g(f"s_waitcnt vmcnt({LD.n})")
        land_now()

def tagcheck(regs, acc):
    g(f"v_xor_b32 v{acc}, s{sTAG}, v{regs[0]}")
    for r in regs[1:]:
        g(f"v_bitop3_b32 v{acc}, v{r}, s{sTAG}, v{acc} bitop3:0xbe")
    g(f"v_cmp_ne_u32 vcc, 0, v{acc}")

def poll_loads(nm, loads, tags, scnt, acc=VT, sleep=0, mask=True, b8=False, onfail=""):
    L, Lo = g.nl(nm), g.nl(nm + "o")
    g(f"s_mov_b32 s{scnt}, {LIM_MEM}")
    g.label(L)
    g(loads)
    g("s_waitcnt vmcnt(0)")
    (tagcheck8 if b8 else tagcheck)(tags, acc)
    g(f"s_cbranch_vccz {Lo}")
    if onfail: g(onfail)
    if mask: g("s_mov_b64 exec, vcc")
    if sleep: g(f"s_sleep {sleep}")
    g(f"""s_sub_u32 s{scnt}, s{scnt}, 1
          s_cbranch_scc0 {L}""")
    g.label(Lo)
    if mask: g("s_mov_b64 exec, -1")

def flag16_wait(nm, ap):
    L, Lo = g.nl(nm), g.nl(nm + "o")
    g(f"s_mov_b32 s{sCNT}, {LIM_MEM}\ns_lshl_b32 s18, s{sTAG}, 4")
    g.label(L)
    g(f"""s_load_dwordx16 s[48:63], s[{ap}:{ap+1}], 0 glc
          s_sub_u32 s{sCNT}, s{sCNT}, 1
          s_cbranch_scc1 {Lo}
          s_waitcnt lgkmcnt(0)
          s_add_u32 s19, s48, s49""")
    for k in range(2, 16): g(f"s_add_u32 s19, s19, s{48+k}")
    g(f"s_cmp_eq_u32 s19, s18\ns_cbranch_scc0 {L}")
    g.label(Lo)
    g("s_waitcnt lgkmcnt(0)")

sTB = 66
def tagbytes():
    g(f"""s_and_b32 s{sTB}, s{sTAG}, 1
          s_mul_i32 s{sTB}, s{sTB}, 0x01010101
          s_and_b32 s{sTB+1}, s{sTAG}, 0xfefefefe
          s_or_b32 s{sTB}, s{sTB}, s{sTB+1}
          s_bfe_u32 s{sTB+1}, s{sTB}, 0x80008
          s_bfe_u32 s{sTB+2}, s{sTB}, 0x80010
          s_lshr_b32 s{sTB+3}, s{sTB}, 24
          s_and_b32 s{sTB}, s{sTB}, 0xff""")
def tagput(regs, vmask):
    for d, r in enumerate(regs): g(f"v_bfi_b32 v{r}, v{vmask}, s{sTB+d}, v{r}")
def tagcheck8(bases, acc):
    rs = [b + d for b in bases for d in range(4)]
    for b in bases:
        for d in range(4): g(f"v_xor_b32 v{b+d}, s{sTB+d}, v{b+d}")
    g(f"v_or_b32 v{acc}, v{rs[0]}, v{rs[1]}")
    for k in range(2, len(rs), 2): g(f"v_or3_b32 v{acc}, v{acc}, v{rs[k]}, v{rs[k+1]}")
    g(f"v_and_b32 v{acc}, 0xff, v{acc}\nv_cmp_ne_u32 vcc, 0, v{acc}")

def fswz(dst, i, t):
    g(f"""v_lshrrev_b32 v{t}, 1, v{i}
          v_xor_b32 v{dst}, v{t}, v{i}
          v_and_b32 v{dst}, 4, v{dst}
          v_and_or_b32 v{dst}, v{i}, 2, v{dst}
          v_bfe_u32 v{t}, v{i}, 3, 1
          v_or_b32 v{dst}, v{dst}, v{t}""")

def sum_groups(base, n):
    step = 1
    while step < n:
        for a in range(0, n - step, 2 * step):
            g(f"v_pk_add_f32 {vr(base+4*a,2)}, {vr(base+4*a,2)}, {vr(base+4*(a+step),2)}")
            g(f"v_pk_add_f32 {vr(base+4*a+2,2)}, {vr(base+4*a+2,2)}, {vr(base+4*(a+step)+2,2)}")
        step *= 2

def red16(regs, full=True):
    for mod in ("row_ror:4", "row_ror:8"):
        g("s_nop 1")
        for r in regs: g(f"v_add_f32_dpp v{r}, v{r}, v{r} {mod} {DPPM}")
    for sw in (("v_permlane16_swap_b32", "v_permlane32_swap_b32") if full else ("v_permlane16_swap_b32",)):
        for r in regs: g(f"v_mov_b32 v{r+1}, v{r}")
        g("s_nop 1")
        for r in regs: g(f"{sw} v{r}, v{r+1}")
        for r in regs: g(f"v_add_f32 v{r}, v{r}, v{r+1}")

def global_max(dst, t0):
    g(f"""v_max_f32 v{dst}, v{t0}, v{t0+1}""")
    for mod in ("quad_perm:[1,0,3,2]", "quad_perm:[2,3,0,1]", "row_half_mirror", "row_mirror"):
        g(f"s_nop 1\nv_max_f32_dpp v{dst}, v{dst}, v{dst} {mod} {DPPM}")
    for sw in ("v_permlane16_swap_b32", "v_permlane32_swap_b32"):
        g(f"v_mov_b32 v{dst+1}, v{dst}\ns_nop 1\n{sw} v{dst}, v{dst+1}\nv_max_f32 v{dst}, v{dst}, v{dst+1}")

def mfma(d, a, b, first):
    g(f"v_mfma_f32_16x16x32_bf16 {vr(d,4)}, {vr(a,4)}, {vr(b,4)}, {'0' if first else vr(d,4)}")

K = NAME + "_kernel"
g(f"""s_load_dwordx16 s[16:31], s[0:1], 0
      s_load_dwordx8 s[32:39], s[0:1], 64
      s_cmp_ge_u32 s{sWG}, 256
      s_cbranch_scc1 L_END
      v_lshrrev_b32 v{VT}, 6, v0
      v_and_b32 v{LANE}, 63, v0
      v_readfirstlane_b32 s{sWV}, v{VT}
      v_mov_b32 v{VZ}, 0
      v_lshrrev_b32 v{vKG}, 4, v{LANE}
      s_cmp_eq_u32 s{sWV}, 7
      s_cbranch_scc0 L_nopf
      s_getpc_b64 s[44:45]
      L_pc:
      s_sub_u32 s44, s44, L_pc-{K}
      s_subb_u32 s45, s45, 0
      s_and_b32 s41, s{sWG}, 0xf8
      v_add_u32 v10, s41, v{LANE}
      v_lshlrev_b32 v10, 7, v10
      v_cmp_gt_u32 vcc, L_CODE_END-{K}, v10
      s_and_b64 exec, vcc, 0xff
      s_cbranch_execz L_nopf2
      global_load_dword v159, v10, s[44:45]
      L_nopf2:
      s_mov_b64 exec, -1
      L_nopf:
      v_mov_b32 v{VONE}, 1
      v_and_b32 v{vN}, 15, v{LANE}
      s_and_b32 s{sXCD}, s{sWG}, 7
      s_lshr_b32 s{sSLOT}, s{sWG}, 3
      s_lshr_b32 s{sHF}, s{sSLOT}, 3
      s_lshl_b32 s{sJ}, s{sXCD}, 2
      s_add_u32 s{sHF}, s{sHF}, s{sJ}
      s_and_b32 s{sJ}, s{sSLOT}, 7
      s_mov_b32 s{sPLO}, 0x05040100
      s_mov_b32 s{sPHI}, 0x07060302""")
if OPT["ts"] or OPT["padat"] >= 0:
    g(f"v_mov_b32 v{VTS}, 0")
    stamp(0)
if OPT["pad"]:
    g(f"s_memrealtime vcc\ns_waitcnt lgkmcnt(0)\nv_mov_b32 v{VTS}, vcc_lo")
g(f"""s_cmp_ge_u32 s{sWV}, 6
      s_cbranch_scc1 L_OTH
      s_setprio 2
      v_lshlrev_b32 v24, 16, v{vKG}
      v_lshl_add_u32 v24, v{vN}, 3, v24       ; + n*8
      v_mul_u32_u24 v6, 20, v{LANE}
      s_lshr_b32 s40, s{sXCD if OPT["remap"] else sJ}, 1   ; mq
      s_mul_i32 s40, s40, 160
      s_lshl_b32 s41, s{sWV}, 5
      s_add_u32 s40, s40, s41
      s_lshl_b32 s41, s40, 13                 ; row0*8192
      {f"s_lshl_b32 s42, s{sSLOT}, 7" if OPT["remap"] else f"s_lshl_b32 s42, s{sHF}, 8"}
      s_add_u32 s41, s41, s42
      s_and_b32 s42, s{sXCD if OPT["remap"] else sJ}, 1
      s_lshl_b32 s42, s42, {12 if OPT["remap"] else 7}
      s_add_u32 s41, s41, s42                 ; w_q soffset
      s_mov_b32 s46, 5242880
      s_mov_b32 s47, 0x20000
      s_mov_b32 s{SR+2}, 1280
      s_mov_b32 s{SR+3}, 0x20000
      s_cmp_eq_u32 s{sWV}, 5
      s_cbranch_scc0 L_A
      s_setprio 3
      s_waitcnt lgkmcnt(0)
      s_mov_b32 s{SR}, s{P_X}
      s_mov_b32 s{SR+1}, s{P_X+1}
      buffer_load_dwordx4 v[8:11], v6, {sr(SR,4)}, 0 offen
      buffer_load_dword v12, v6, {sr(SR,4)}, 0 offen offset:16
      s_barrier
      s_branch L_LN""")
g.label("L_A")
g(f"""s_waitcnt lgkmcnt(0)
      s_mov_b32 s44, s{P_WQ}
      s_mov_b32 s45, s{P_WQ+1}
      s_nop 1""")
load_block(32, 24, 44, 41, 42, 8192)
g("s_barrier")
lds_inc(F_QI)
srd(WS, P_WS, WS_REC)
g(f"""s_lshl_b32 s40, s40, 1
      v_lshlrev_b32 v112, 4, v{vKG}
      v_add_u32 v112, s40, v112
      v_lshlrev_b32 v113, 4, v{vN}
      s_lshl_b32 s40, s{sWV}, 8
      v_add_u32 v113, s40, v113
      s_branch L_A_q""")
g.label("L_LN")
srd(WS, P_WS, WS_REC)
g(f"v_add_u32 v6, {XNL}, v6\ns_waitcnt vmcnt(0)")
stamp(16)
U, E, Dd = 32, 44, 56
for k in range(5):
    g(f"v_lshlrev_b32 v{U+2*k}, 16, v{8+k}\nv_and_b32 v{U+2*k+1}, 0xffff0000, v{8+k}")
g(f"""v_pk_add_f32 v[14:15], {vr(U,2)}, {vr(U+2,2)}
      v_pk_add_f32 v[16:17], {vr(U+4,2)}, {vr(U+6,2)}
      v_pk_add_f32 v[14:15], v[14:15], {vr(U+8,2)}
      v_pk_add_f32 v[14:15], v[14:15], v[16:17]
      v_add_f32 v14, v14, v15""")
wave_sum(14, 40)
g(f"""s_nop 1
      v_mov_b32 v18, {hex(f32(-1.0/640))}
      v_mul_f32 v18, s40, v18                 ; -mean
      v_mov_b32 v19, v18""")
for k in range(5): g(f"v_pk_add_f32 {vr(E+2*k,2)}, {vr(U+2*k,2)}, v[18:19]")
g(f"v_pk_mul_f32 v[14:15], {vr(E,2)}, {vr(E,2)}")
for k in range(1, 5): g(f"v_pk_fma_f32 v[14:15], {vr(E+2*k,2)}, {vr(E+2*k,2)}, v[14:15]")
g(f"""v_cvt_pk_bf16_f32 v20, v18, v18
      v_add_f32 v14, v14, v15
      v_and_b32 v20, 0xffff0000, v20
      v_mov_b32 v21, v20""")
fill = [f"v_pk_add_f32 {vr(E+2*k,2)}, {vr(U+2*k,2)}, v[20:21]" for k in range(5)]
fill += [f"v_cvt_pk_bf16_f32 v{8+k}, v{E+2*k}, v{E+2*k+1}" for k in range(5)]
fill += [x for k in range(5) for x in (f"v_lshlrev_b32 v{Dd+2*k}, 16, v{8+k}", f"v_and_b32 v{Dd+2*k+1}, 0xffff0000, v{8+k}")]
steps = [f"v_add_f32_dpp v14, v14, v14 {m} {DPPM}" for m in ("quad_perm:[1,0,3,2]", "quad_perm:[2,3,0,1]", "row_half_mirror", "row_mirror")]
steps += ["v_add_f32_dpp v14, v14, v14 row_bcast:15 row_mask:0xa bank_mask:0xf", "v_add_f32_dpp v14, v14, v14 row_bcast:31 row_mask:0xc bank_mask:0xf", "v_readlane_b32 s42, v14, 63"]
for st_ in steps:
    g(st_); g(fill.pop(0)); g(fill.pop(0))
g(f"""v_mov_b32 v22, {hex(f32(1.0/640))}
      v_mul_f32 v22, s42, v22""")
rne(22)
g(f"v_add_f32 v22, {hex(f32(1e-5))}, v22")
rne(22)
g("v_sqrt_f32 v22, v22"); g(fill.pop(0))
rne(22)
g("v_rcp_f32 v22, v22")
while fill: g(fill.pop(0))
g("v_mov_b32 v23, v22")
for k in range(5): g(f"v_pk_mul_f32 {vr(Dd+2*k,2)}, {vr(Dd+2*k,2)}, v[22:23]")
for k in range(5): g(f"v_cvt_pk_bf16_f32 v{8+k}, v{Dd+2*k}, v{Dd+2*k+1}")
g(f"""ds_write2_b32 v6, v8, v9 offset0:0 offset1:1
      ds_write2_b32 v6, v10, v11 offset0:2 offset1:3
      ds_write_b32 v6, v12 offset:16
      ds_write_b32 v{VZ}, v{VONE} offset:{F_XN}""")
stamp(17)
g("s_branch L_A_q")
g.label("L_OTH")
if OPT["l2q"]: g(f"v_lshlrev_b32 v152, 4, v{vN}\nv_lshl_add_u32 v152, v{vKG}, 11, v152")
g(f"""s_cmp_eq_u32 s{sWV}, 6
      s_cbranch_scc0 L_noinit
      v_lshlrev_b32 v8, 2, v{LANE}
      ds_write_b32 v8, v{VZ}
      s_waitcnt lgkmcnt(0)
      L_noinit:
      s_cmp_eq_u32 s{sWV}, 9
      s_cbranch_scc1 L_G9
      s_barrier
      {f"s_cmp_eq_u32 s{sWV}, 6" if OPT["uk6"] else ""}
      {"s_cbranch_scc1 L_FFN" if OPT["uk6"] else ""}
      s_cmp_lt_u32 s{sWV}, 8
      s_cbranch_scc0 L_OTH2
      s_waitcnt lgkmcnt(0)""")
srd(WS, P_WS, WS_REC)
if OPT["tlb"]:
    g(f"""s_cmp_eq_u32 s{sWV}, 7
          s_cbranch_scc0 L_A_q
          s_and_b32 s40, s{sSLOT}, 7
          s_lshl_b32 s40, s40, 6
          s_lshr_b32 s41, s{sSLOT}, 3             ; 0..3
          s_lshl_b32 s42, s41, 20
          s_add_u32 s42, s42, s40
          s_and_b32 s43, s41, 1
          s_lshl_b32 s43, s43, 20
          s_add_u32 s43, s43, s40
          s_lshl_b32 s44, s{sXCD}, 21
          s_add_u32 s44, s44, s43
          s_add_u32 s45, s40, 0x400000
          s_add_u32 s46, s40, 0x200000
          s_add_u32 s47, s43, 0x400000""")
    if OPT["tlb"] == 2: lds_wait(F_XN, 1, 41, sleep=1)
    if OPT["tlb"] in (1, 3):
        g(f"""s_load_dword s52, s[{P_KV}:{P_KV+1}], s44
          s_load_dword s53, s[{P_WUK}:{P_WUK+1}], s42
          s_load_dword s54, s[{P_W1}:{P_W1+1}], s43
          s_load_dword s55, s[{P_W2}:{P_W2+1}], s43
          s_load_dword s60, s[{P_W1}:{P_W1+1}], s46
          s_load_dword s61, s[{P_W2}:{P_W2+1}], s46""")
    if OPT["tlb"] == 3: lds_wait(F_XN, 1, 41, sleep=1)
    g(f"""s_load_dword s56, s[{P_WS}:{P_WS+1}], s42
          s_load_dword s57, s[{P_WUV}:{P_WUV+1}], s42
          s_load_dword s58, s[{P_WO}:{P_WO+1}], s42
          s_load_dword s59, s[{P_WO}:{P_WO+1}], s45
          s_load_dword s62, s[{P_WS}:{P_WS+1}], s47
          s_load_dword s63, s[{P_OUT}:{P_OUT+1}], 0
          s_waitcnt lgkmcnt(0)""")
g("s_branch L_A_q")
g.label("L_OTH2")
g(f"""      s_cmp_eq_u32 s{sWV}, 9
      s_cbranch_scc1 L_G9
      s_cmp_eq_u32 s{sWV}, 11
      s_cbranch_scc1 L_FFN""")
g(f"v_lshrrev_b32 v32, 3, v{LANE}")
fswz(33, 32, 34)
g(f"""v_and_b32 v34, 7, v{LANE}
      v_xor_b32 v33, v33, v34
      v_lshlrev_b32 v33, 4, v33
      v_lshl_add_u32 v36, v32, 10, v33
      s_bfe_u32 s43, s{sWV}, 0x10001
      s_and_b32 s40, s43, 1
      s_mul_i32 s40, s40, 80
      v_xor_b32 v36, s40, v36
      s_lshr_b32 s41, s{sSLOT}, 1""")
if OPT["ksmap"] == 0:
    g(f"s_lshl_b32 s41, s41, 3\ns_add_u32 s41, s41, s{sXCD}             ; ks")
else:
    g(f"s_lshl_b32 s42, s{sXCD}, 4\ns_add_u32 s41, s41, s42             ; ks")
g(f"""s_mul_i32 s51, s41, {OPT["rot"]}
      s_add_u32 s51, s51, s43
      s_lshl_b32 s51, s51, 13
      s_and_b32 s51, s51, 0x1ffff
      s_lshl_b32 s52, s41, 17                 ; ks*128KB
      s_add_u32 s41, s52, s51
      s_lshl_b32 s42, s43, 10
      s_add_u32 s42, s42, {KV}
      s_waitcnt lgkmcnt(0)""")
srd(44, P_KV, 16777216)
srd(WS, P_WS, WS_REC)
if OPT["kvt"]:
    n = OPT["kvt"]; step = 131072 // n
    g(f"s_lshl_b32 s49, s43, 16\ns_add_u32 s49, s49, s52")
    for k in range(n // 2):
        g(f"s_add_u32 s50, s49, {k*step}\ns_load_dword s{56+(k&7)}, s[{P_KV}:{P_KV+1}], s50")
if OPT["vt"]:
    lds_wait(F_QI, 5, 40)
    g(f"""s_mov_b64 exec, 1
          buffer_load_dword v40, v{VZ}, {sr(44,4)}, s41 offen {pol('pkv')}
          s_mov_b64 exec, -1""")
if OPT["gate"] >= 20: lds_wait(F_QP, 1, 40)
elif OPT["gate"]:
    lds_wait(F_WQ if OPT["gate"] < 10 else F_Q, OPT["gate"] % 10, 40, sleep=1)
stamp(8)
NI = OPT["inflight"]
assert 1 <= NI <= 32
g(f"""s_lshl_b32 s48, s43, 2
      v_mov_b32 v37, s48
      s_mov_b32 s43, 0""")
def ld_loop(lab, NI, end):
    g.label(lab)
    for k in range(16):
        cb, hi = k & 7, k >> 3
        g(f"s_add_u32 m0, s42, {cb*(16384-128) + hi*2048}")
        if k == 8: g(f"s_add_u32 s51, s51, {2*8192}\ns_and_b32 s51, s51, 0x1ffff\ns_add_u32 s41, s52, s51")
        g(f"s_waitcnt vmcnt({NI-1})")
        if k == (NI - 1) % 16:
            g(f"""s_sub_u32 s48, s43, {(NI - 1) // 16}
                  s_max_i32 s48, s48, 0
                  v_mov_b32 v38, s48
                  ds_write_b32 v37, v38 offset:{F_LA}""")
        g(f"buffer_load_dwordx4 v36, {sr(44,4)}, s41 offen offset:{cb*128} {pol('pkv')} lds")
    g(f"""s_add_u32 s51, s51, {2*8192}
          s_and_b32 s51, s51, 0x1ffff
          s_add_u32 s41, s52, s51
          s_add_u32 s42, s42, {4*1024}
          s_add_u32 s43, s43, 1""")
    if OPT["ts"] == 2:
        g(f"""s_memrealtime vcc
              s_add_u32 s49, s43, 11
              s_mov_b32 m0, s49
              s_waitcnt lgkmcnt(0)
              v_writelane_b32 v{VTS}, vcc_lo, m0""")
    g(f"""s_cmp_lt_u32 s43, {end}
          s_cbranch_scc1 {lab}""")
if OPT["inf2"]:
    ld_loop("L_ld", NI, OPT["split"])
    ld_loop("L_ld2", OPT["inf2"], 4)
else:
    ld_loop("L_ld", NI, 4)
lds_inc(F_ISS)
stamp(1)
g(f"""v_mov_b32 v38, 3
      v_mov_b32 v39, 4
      s_waitcnt vmcnt(16)
      ds_write_b32 v37, v38 offset:{F_LA}
      s_waitcnt vmcnt(0)
      ds_write_b32 v37, v39 offset:{F_LA}""")
stamp(2)
g("s_branch L_G")
g.label("L_FFN")
XF = 8
g("s_waitcnt lgkmcnt(0)")
srd(WS, P_WS, WS_REC)
if OPT["uk6"]: g(f"s_cmp_eq_u32 s{sWV}, 11\ns_cbranch_scc1 L_FFNa")
srd(SR, P_WUK, 4194304)
g(f"""v_xor_b32 v8, v{vN}, v{vKG}
      v_lshlrev_b32 v8, 4, v8
      v_lshl_add_u32 v8, v{vKG}, 13, v8
      v_xor_b32 v9, 64, v8
      v_xor_b32 v10, 128, v8
      v_xor_b32 v11, 192, v8
      s_lshl_b32 s48, s{sCA}, 19
      s_lshl_b32 s49, s{sHA}, 8
      s_add_u32 s48, s48, s49""")
if OPT["ukgate"]: lds_wait(F_WQ, OPT["ukgate"], 40)
else: lds_wait(F_QI, 5, 40)
for u in range(16):
    g(f"s_mov_b32 m0, {QL + u*1024}")
    g(f"s_add_u32 s49, s48, {u*4*8192}")
    g(f"buffer_load_dwordx4 v{8+(u&3)}, {sr(SR,4)}, s49 offen {pol('puk')} lds")
if OPT["uk6"]:
    g("s_branch L_A_q")
    g.label("L_FFNa")
    if OPT["fgate"] == 0: lds_wait(F_QI, 5, 40)
if OPT["fgate"] == 9:
    g("s_waitcnt vmcnt(0)"); land_now()
elif OPT["fgate"] == 8:
    lds_wait(F_QP, 1, 40, sleep=1)
elif OPT["fgate"]:
    lds_wait(F_Q, OPT["fgate"], 40, sleep=1)
if OPT["forder"] == 1: lds_wait(F_ISS, 2, 40, sleep=2)
if OPT["forder"] == 5: lds_wait(F_H3, 8, 40, sleep=2)
if OPT["forder"] == 6: lds_wait(F_STG, 8, 40, sleep=2)
g("s_branch L_FFNb")
FFN_EARLY_END = True
g.label("L_G9")
g(f"""s_setprio 3
      s_waitcnt lgkmcnt(0)
      s_load_dword s40, s[{P_WS}:{P_WS+1}], {EPOCH}
      s_barrier""")
srd(WS, P_WS, WS_REC)
g(f"""v_lshlrev_b32 v8, 4, v{vN}              ; n*16
      s_lshl_b32 s41, s{sHA}, 3
      s_add_u32 s41, s41, s{sCA}
      s_lshl_b32 s41, s41, 8
      s_add_u32 s43, s41, {QAM}""")
if OPT["remap"]:
    g(f"""s_and_b32 s42, s{sXCD}, 1
          s_lshl_b32 s42, s42, 4
          s_lshr_b32 s41, s{sSLOT}, 1
          s_add_u32 s42, s42, s41                 ; hQ
          s_lshl_b32 s42, s42, {QS}
          s_and_b32 s41, s{sXCD}, 6
          s_and_b32 s45, s{sSLOT}, 1
          s_add_u32 s41, s41, s45
          s_lshl_b32 s41, s41, 8""")
else:
    g(f"s_lshl_b32 s42, s{sHF}, {QS}\ns_lshl_b32 s41, s{sJ}, 8")
g(f"""
      s_add_u32 s42, s42, s41
      s_add_u32 s42, s42, {QM}
      s_add_u32 s45, s42, 8192
      v_lshl_add_u32 v7, v{vKG}, 11, v8

      v_mov_b32 v11, 1
      s_waitcnt lgkmcnt(0)
      s_mul_i32 s{sTAG}, s40, 1664525
      s_add_u32 s{sTAG}, s{sTAG}, 1013904223
      v_mov_b32 v10, s{sTAG}
      v_mov_b32 v13, s{sTAG}
      v_mov_b32 v15, s{sTAG}
      ds_write_b64 v{VZ}, v[10:11] offset:{F_TAG}""")
stamp(1)
if OPT["warm"]:
    g(f"""s_and_b32 s46, s{sSLOT}, 1
          s_lshl_b32 s46, s46, {HS-3}
          s_add_u32 s46, s46, s{sXCD}
          s_lshl_b32 s46, s46, 7
          s_add_u32 s46, s46, {HD}
          v_lshlrev_b32 v9, {HS}, v{vN}
          v_and_b32 v16, {min(OPT["hrep"],4)-1}, v{vKG}
          v_lshl_add_u32 v9, v16, 15, v9
          s_add_u32 s46, s46, {LOFF}""")
    lds_wait(F_QI, 5, 40)
    if OPT["fast1"]:
        g(f"""buffer_load_dwordx4 v[16:19], v6, {sr(WS,4)}, s47 offen sc1
              buffer_load_dwordx4 v[16:19], v6, {sr(WS,4)}, s47 offen offset:1024 sc1""")
    NR = OPT["nrep"]
    EXM = {1: "s_mov_b64 exec, 0xffff", 2: "s_mov_b32 exec_hi, 0", 4: "", 8: ""}[NR]
    g(f"""{EXM}
          buffer_load_dwordx4 v[16:19], v7, {sr(WS,4)}, s42 offen sc1
          s_mov_b64 exec, -1
          {f"buffer_load_dwordx4 v[16:19], v7, {sr(WS,4)}, s45 offen sc1" if NR == 8 else ""}
          buffer_load_dwordx4 v[16:19], v8, {sr(WS,4)}, s43 offen sc1
          buffer_load_dword v16, v9, {sr(WS,4)}, s46 offen sc1""")
    if OPT["hrep"] == 8: g(f"s_add_u32 s46, s46, 0x20000\nbuffer_load_dword v16, v9, {sr(WS,4)}, s46 offen sc1")
rr = "\n".join(f"ds_read_b128 {vr(32+4*b,4)}, v8 offset:{REDQ+256*b}" for b in range(5))
if OPT["mg2"]: lds_wait(F_Q, 5, 40, extra=rr)
else:
    lds_wait(F_Q, 5, 40); g(rr); g("s_waitcnt lgkmcnt(0)")
sum_groups(32, 5)
g(f"""v_cvt_pk_bf16_f32 v12, v32, v33
      v_cvt_pk_bf16_f32 v14, v34, v35""")
if OPT["fast1"]:
    g(f"""buffer_store_dwordx4 v[12:15], v6, {sr(WS,4)}, s47 offen
          ds_write_b32 v{VZ}, v{VONE} offset:{F_QP}
          buffer_store_dwordx4 v[12:15], v6, {sr(WS,4)}, s47 offen offset:1024""")
NR = OPT["nrep"]
EXM = {1: "s_mov_b64 exec, 0xffff", 2: "s_mov_b32 exec_hi, 0", 4: "", 8: ""}[NR]
g(f"""{EXM}
      buffer_store_dwordx4 v[12:15], v7, {sr(WS,4)}, s42 offen {"" if OPT["l2q"] else "sc1"}
      ds_write_b32 v{VZ}, v{VONE} offset:{F_QP}
      {f"buffer_store_dwordx4 v[12:15], v7, {sr(WS,4)}, s45 offen {'' if OPT['l2q'] else 'sc1'}" if NR == 8 else ""}""")
QFB = f"buffer_store_dwordx4 v[148:151], v152, {sr(WS,4)}, s70 offen sc1"
if OPT["l2q"]:
    g("""v_mov_b32 v148, v12
         v_mov_b32 v149, v13
         v_mov_b32 v150, v14
         v_mov_b32 v151, v15
         s_mov_b32 s70, s42
         s_mov_b32 s71, s45""")
W1 = (64, QFB) if OPT["l2q"] else None
g("s_mov_b64 exec, 0xffff")
stamp(2)
rr = "\n".join(f"ds_read_b128 {vr(32+4*b,4)}, v8 offset:{REDQA+256*b}" for b in range(8))
if OPT["mg2"]:
    lds_wait(F_QA, 6, 40, watch=W1); lds_wait(F_QA, 8, 40, extra=rr, watch=W1)
else:
    lds_wait(F_QA, 8, 40); g(rr); g("s_waitcnt lgkmcnt(0)")
sum_groups(32, 8)
for r in range(4): g(f"v_mul_f32 v{32+r}, {hex(f32(SCALE))}, v{32+r}")
g(f"""v_cvt_pk_bf16_f32 v12, v32, v33
      v_cvt_pk_bf16_f32 v14, v34, v35
      buffer_store_dwordx4 v[12:15], v8, {sr(WS,4)}, s43 offen sc1
      ds_write_b32 v{VZ}, v{VONE} offset:{F_QAP}
      s_mov_b64 exec, -1
      s_setprio 0""")
stamp(3)
if OPT["uvgate"] < 2: lds_wait(F_H2I if OPT["uvgate"] else F_ISS, 8 if OPT["uvgate"] else 2, 40, sleep=1)
elif OPT["uvgate"] == 3: land_wait(4, 40, 24, sleep=1)
else: g("s_sleep 16")
if OPT["fast1"] and OPT["recl"]:
    g(f"""buffer_store_dwordx4 v[20:23], v6, {sr(WS,4)}, s47 offen sc1
          buffer_store_dwordx4 v[20:23], v6, {sr(WS,4)}, s47 offen offset:1024 sc1""")
g("s_branch L_G_uv9")

g.label("L_A_q")
g("s_setprio 2")
g(f"""s_and_b32 s40, s{sSLOT}, 1              ; g
      s_lshl_b32 s41, s40, 4
      s_lshl_b32 s42, s{sWV}, 1
      s_add_u32 s41, s41, s42                 ; 16g+2w
      s_lshl_b32 s41, s41, 11
      s_add_u32 s20, s41, {QAM}
      s_lshr_b32 s21, s{sSLOT}, 1             ; mi 0..15
      s_lshl_b32 s42, s40, 7                  ; 16g*8
      s_add_u32 s42, s42, s{sWV}
      s_lshl_b32 s42, s42, 3
      s_add_u32 s42, s42, s{sXCD}
      s_lshl_b32 s42, s42, 4
      s_add_u32 s42, s42, s21
      s_lshl_b32 s42, s42, 7
      s_add_u32 s26, s42, {IB}
      s_add_u32 s22, s26, {2*8*8*2048}
      s_lshl_b32 s42, s40, {HS-3}
      s_add_u32 s42, s42, s{sXCD}
      s_lshl_b32 s42, s42, 4
      s_add_u32 s42, s42, s21
      s_lshl_b32 s42, s42, 3
      s_add_u32 s27, s42, {HD}
      s_add_u32 s23, s27, {LOFF}
      s_lshl_b32 s42, s{sHF}, {HS-7}
      s_add_u32 s42, s42, s{sWV}
      s_lshl_b32 s42, s42, 7
      s_add_u32 s31, s42, {HD}
      s_lshl_b32 s42, s{sHF}, 3
      s_add_u32 s42, s42, s{sJ}
      s_lshl_b32 s42, s42, 3
      s_add_u32 s42, s42, s{sWV}              ; (h*8+j)*8+w
      s_lshl_b32 s30, s42, 11
      s_add_u32 s30, s30, {IB}
      s_lshl_b32 s42, s{sHA}, {QS-11}
      s_and_b32 s43, s{sCA}, {0 if OPT["l2q"] else OPT["nrep"]-1}
      s_add_u32 s42, s42, s43
      s_lshl_b32 s42, s42, 3
      s_add_u32 s42, s42, s{sWV}
      s_lshl_b32 s42, s42, 8
      s_add_u32 s42, s42, {QM}
      s_add_u32 s32, s{WS}, s42
      s_addc_u32 s33, s{WS+1}, 0
      s_mov_b32 s25, s42
      s_and_b32 s40, s{sWV}, 1
      s_lshl_b32 s40, s40, 3                  ; 8*dhalf'
      v_xor_b32 v6, s40, v{vN}
      v_lshlrev_b32 v6, 4, v6
      v_lshl_add_u32 v6, v{LANE}, 8, v6       ; row*256 + ...
      v_lshlrev_b32 v10, 2, v{LANE}
      s_lshl_b32 s40, s{sWV}, 8
      v_add_u32 v10, s40, v10
      v_mov_b32 v8, 0
      v_mov_b32 v9, 0""")
W = 80
QKA, PVA = 32, 96
fswz(24, vN, 25)
g(f"""v_xor_b32 v24, v24, v{vKG}
      v_lshlrev_b32 v24, 4, v24
      v_and_b32 v25, 7, v{vN}
      v_lshl_add_u32 v24, v25, 7, v24         ; + (i&7)*128
      v_lshrrev_b32 v25, 3, v{vN}
      v_lshl_add_u32 v24, v25, 10, v24        ; + (i>>3)*1024
      s_lshl_b32 s42, s{sWV}, 11
      s_add_u32 s42, s42, {KV}
      v_add_u32 v160, s42, v24
      v_xor_b32 v161, 64, v160
      v_add_u32 v162, 0x10000, v160
      v_add_u32 v163, 0x10000, v161
      v_lshrrev_b32 v26, 2, v{LANE}           ; i16""")
fswz(24, 26, 25)
g(f"""s_and_b32 s42, s{sWV}, 3
      s_lshl_b32 s42, s42, 1
      v_bfe_u32 v25, v{LANE}, 1, 1
      v_or_b32 v25, s42, v25                  ; xi = 2(w&3) + (c'>>1)
      v_xor_b32 v24, v24, v25
      v_lshlrev_b32 v24, 4, v24
      v_and_b32 v25, 1, v{LANE}
      v_lshl_add_u32 v24, v25, 3, v24
      v_and_b32 v25, 7, v26
      v_lshl_add_u32 v24, v25, 7, v24
      v_lshrrev_b32 v25, 3, v26
      v_lshl_add_u32 v24, v25, 10, v24
      s_lshr_b32 s42, s{sWV}, 2
      s_lshl_b32 s42, s42, 14
      s_add_u32 s42, s42, {KV}
      v_add_u32 v164, s42, v24
      v_add_u32 v165, 0x10000, v164
      v_lshrrev_b32 v24, 1, v{vN}             ; xi
      v_and_b32 v25, 4, v24
      v_lshl_or_b32 v25, v25, 1, v24          ; sigma
      s_lshl_b32 s42, s{sWV}, 1
      v_xor_b32 v25, s42, v25
      v_lshlrev_b32 v25, 4, v25
      v_lshl_add_u32 v25, v24, 8, v25         ; + xi*256
      v_lshl_add_u32 v25, v{vKG}, 11, v25     ; + (l>>4)*2048
      v_and_b32 v24, 1, v{LANE}
      v_lshl_add_u32 v28, v24, 3, v25
      v_xor_b32 v29, 16, v28
      v_xor_b32 v30, v{vN}, v{vKG}
      v_lshlrev_b32 v30, 4, v30
      v_lshl_add_u32 v30, v{vKG}, 8, v30
      v_xor_b32 v31, {12*16}, v30             ; odd s
      v_lshlrev_b32 v166, 4, v{LANE}          ; lane*16""")
g(f"s_cmp_ge_u32 s{sWV}, 5\ns_cbranch_scc1 L_A_q2")
for p in range(4):
    g(f"s_waitcnt vmcnt({6-2*p})")
    if p == 0 and (OPT['ukgate'] or 0 < OPT['gate'] < 10): lds_inc(F_WQ)
    e = 2 * p
    for d in range(2):
        g(f"v_perm_b32 v{48+8*d+p}, v{32+2*(e+1)+d}, v{32+2*e+d}, s{sPLO}")
        g(f"v_perm_b32 v{48+8*d+4+p}, v{32+2*(e+1)+d}, v{32+2*e+d}, s{sPHI}")
stamp(18)
lds_wait(F_XN, 1, 19, extra=f"ds_read_b128 v[116:119], v112 offset:{XNL}")
for t in range(4): mfma(64 + 4 * t, 116, 48 + 4 * t, True)
g(f"""s_nop 6
      v_mov_b32 v65, v68
      v_mov_b32 v66, v72
      v_mov_b32 v67, v76
      s_mov_b64 exec, 0xffff
      ds_write_b128 v113, v[64:67] offset:{REDQ}
      s_mov_b64 exec, 1
      ds_add_u32 v{VZ}, v{VONE} offset:{F_Q}
      s_mov_b64 exec, -1""")
g.label("L_A_q2")
stamp(2)
get_tag(7)
g(f"s_lshl_b32 s18, s{sTAG}, 5              ; 32*TAG")
if OPT["uk6"]:
    g(f"""s_cmp_eq_u32 s{sWV}, 6
          s_cbranch_scc0 L_nouk
          s_waitcnt vmcnt(0)
          ds_write_b32 v{VZ}, v{VONE} offset:{F_UK}""")
    stamp(17)
    g.label("L_nouk")
def wreads():
    for e in range(8):
        if e: g(f"v_xor_b32 v7, {e*16}, v6")
        g(f"ds_read_b128 {vr(W+4*e,4)}, v{6 if e == 0 else 7} offset:{QL}")
lds_wait(F_QP, 1, 19, sleep=1)
if OPT["d1"]: g(f"s_sleep {OPT['d1']}")
g(f"""ds_read_b32 v{VT}, v{VZ} offset:{F_UK}
      s_waitcnt lgkmcnt(0)
      v_readfirstlane_b32 s24, v{VT}
      s_nop 0
      s_cmp_eq_u32 s24, 0
      s_cbranch_scc1 L_now""")
wreads()
g.label("L_now")
stamp(3)
L, Lo = g.nl("h1"), g.nl("h1o")
if OPT["l2q"]:
    Lf, Lv = g.nl("h1f"), g.nl("h1v")
    g(f"s_mov_b32 s{sCNT}, {LIM_MEM}\ns_branch {Lf}")
    g.label(L)
    g(f"s_cmp_le_u32 s{sCNT}, {LIM_MEM-OPT['l2q']}\ns_cbranch_scc1 {Lv}\ns_sleep {OPT['bk1']}")
    if OPT["bk1b"]:
        Lb = g.nl("h1b")
        g(f"s_cmp_gt_u32 s{sCNT}, {LIM_MEM-4}\ns_cbranch_scc1 {Lb}\ns_sleep {OPT['bk1b']}\n{Lb}:")
    g.label(Lf)
    for k in range(4):
        g(f"s_load_dwordx16 {sr(36+16*k,16)}, s[32:33], {64*k}")
    g(f"""s_add_u32 s32, s32, 2048
          s_addc_u32 s33, s33, 0
          s_sub_u32 s{sCNT}, s{sCNT}, 1""")
else:
    g(f"s_mov_b32 s{sCNT}, {LIM_MEM}")
    g.label(L)
    for k in range(4):
        g(f"s_load_dwordx16 {sr(36+16*k,16)}, s[32:33], {64*k} glc")
    g(f"""s_sub_u32 s{sCNT}, s{sCNT}, 1
          s_cbranch_scc1 {Lo}""")
g(f"""s_waitcnt lgkmcnt(0)
      s_cmp_eq_u32 s99, s{sTAG}
      s_cbranch_scc0 {L}
      s_add_u32 s19, s37, s39""")
for k in range(2, 32):
    g(f"s_add_u32 s19, s19, s{37+2*k}")
g(f"s_cmp_eq_u32 s19, s18\ns_cbranch_scc0 {L}")
g.label(Lo)
H1V, H1O = (Lv, Lo) if OPT["l2q"] else (None, None)
cnt(23, sCNT)
stamp(1)
g(f"""s_cmp_eq_u32 s24, 0
      s_cbranch_scc0 L_havew""")
lds_wait(F_UK, 1, 19)
wreads()
g.label("L_havew")
for k in range(32):
    if k % 4 == 0: g(f"s_waitcnt lgkmcnt({7 - k//4})")
    g(f"v_dot2c_f32_bf16 v{8+(k&1)}, s{36+2*k}, v{W+k}")
g(f"""s_nop 2
      v_add_f32 v8, v8, v9
      ds_write_b32 v10, v8 offset:{REDQA}""")
lds_inc(F_QA)
stamp(4)
def qka_reads():
    for s in range(16):
        cb = s >> 1
        a = 160 + (s & 1) + (2 if cb >= 4 else 0)
        g(f"ds_read_b128 {vr(QKA+4*s,4)}, v{a} offset:{(cb&3)*16384}")
def pva_reads(u):
    for i in range(4):
        for hh in range(2):
            T = 2 * u + hh
            g(f"ds_read_b64_tr_b16 {vr(PVA+16*i+4*u+2*hh,2)}, v{164+(i>>1)} offset:{(i&1)*32768+T*2048}")
h2_loads = "\n".join(f"buffer_load_dwordx4 {vr(8+4*n,4)}, v{VL16}, {sr(WS,4)}, s20 offen offset:{1024*n} sc1" for n in range(4))
g(f"""s_lshr_b32 s42, s{sWV}, 1
      s_lshl_b32 s48, s42, 2
      s_lshl_b32 s48, 1, s48
      s_add_u32 s49, s48, 0x10000
      s_mov_b32 s50, {hex(f32(OPT["rng"]))}
      s_lshl_b32 s42, s42, 10
      s_and_b32 s43, s{sWV}, 1
      s_lshl_b32 s43, s43, 3
      s_add_u32 s42, s42, s43
      v_add_u32 v7, s42, v{VL16}
      v_add_u32 v28, {QL}, v28
      v_add_u32 v29, {QL}, v29
      v_add_u32 v26, 8192, v28
      v_add_u32 v27, 8192, v29
      s_and_b32 s45, s{sTAG}, 1
      s_mul_i32 s45, s45, 0x55555555
      s_and_b32 s44, s{sTAG}, 0xaaaaaaaa
      s_or_b32 s45, s45, s44
      s_mov_b32 s44, 0x00010001""")
lds_wait(F_QAP, 1, 42)
if OPT["d2"]: g(f"s_sleep {OPT['d2']}")
def h2_issue(lv):
    if OPT["h2land"] == lv:
        g(h2_loads)
        if OPT['uvgate'] == 1: lds_inc(F_H2I)
        stamp(5)
h2_issue(0)
land_wait(2, 42, 24, sleep=1)
h2_issue(2)
pva_reads(0); pva_reads(1)
land_wait(3, 42, 24, sleep=1)
h2_issue(3)
pva_reads(2)
g(f"s_cmp_lt_u32 s{sWV}, 6\ns_cbranch_scc1 L_qka")
land_wait(4, 42, 24)
g.label("L_qka")
qka_reads()
stamp(6)
L, Lo = g.nl("h2c"), g.nl("h2co")
g(f"s_mov_b32 s43, {LIM_MEM}")
g.label(L)
g("s_waitcnt vmcnt(0)")
tagcheck([9, 11, 13, 15, 17, 19, 21, 23], 24)
g(f"""s_cbranch_vccz {Lo}
      s_sub_u32 s43, s43, 1
      s_cbranch_scc1 {Lo}
      s_sleep {OPT["bk2"]}
      s_mov_b64 exec, vcc""")
g(h2_loads)
g(f"s_mov_b64 exec, -1\ns_branch {L}")
g.label(Lo)
cnt(24, 43)
stamp(7)
for n in range(4):
    g(f"ds_write2_b32 v{[28, 26, 29, 27][n]}, v{8+4*n}, v{10+4*n} offset0:0 offset1:1")
lds_inc(F_STG)
def bread(s): return f"ds_read_b128 {vr(8+4*(s&3),4)}, v{30+(s&1)} offset:{QL+s*1024}"
if OPT["mg4"]: lds_wait(F_STG, 8, 42, extra="\n".join(bread(s) for s in range(4)))
else: lds_wait(F_STG, 8, 42)
stamp(8)
if not OPT["mg4"]: g("\n".join(bread(s) for s in range(4)))
SA = 24
for s in range(16):
    g(f"s_waitcnt lgkmcnt({min(3, 15-s)})")
    mfma(SA, QKA + 4 * s, 8 + 4 * (s & 3), s == 0)
    if s + 4 < 16: g(bread(s + 4))
VM = 10
PF, OA = 32, 48
def pread(u): return f"ds_read_b128 {vr(PF+4*u,4)}, v{VL16} offset:{PL+1024*u}"
g("s_nop 7")
for r in range(4): g(f"v_exp_f32 v{12+r}, v{SA+r}")
g(f"""v_max3_f32 v9, v{SA}, v{SA+1}, v{SA+2}
      v_cvt_pk_bf16_f32 v16, v12, v13
      v_cvt_pk_bf16_f32 v17, v14, v15
      v_max_f32 v9, v9, v{SA+3}
      ds_write_b64 v7, v[16:17] offset:{PL}
      v_cmp_nle_f32 vcc, abs(v9), s50
      s_cmp_lg_u64 vcc, 0
      s_cselect_b32 s48, s49, s48
      s_mov_b64 exec, 1
      v_mov_b32 v8, s48
      ds_add_u32 v{VZ}, v8 offset:{F_PC}
      s_mov_b64 exec, -1""")
pva_reads(3)
stamp(15)
TP, IBV = 80, 84
fill = [f"v_lshrrev_b32 v12, 3, v{vN}",
        f"v_lshl_add_u32 v12, v{vKG}, 2, v12      ; head = 4q + (j>>3)",
        f"v_lshlrev_b32 v{IBV}, 17, v12",
        f"v_and_b32 v12, 7, v{vN}",
        f"v_lshl_add_u32 v{IBV}, v12, 4, v{IBV}",
        f"v_and_b32 v12, 3, v{LANE}",
        f"v_lshlrev_b32 v12, 3, v12",
        f"v_lshrrev_b32 v12, v12, s45",
        f"v_and_b32 v13, 0xff, v12", f"v_lshlrev_b32 v12, 15, v13", f"v_or_b32 v12, v12, v13"]
for d in range(4): fill += [f"v_lshrrev_b32 v13, {2*d}, v12", f"v_and_b32 v{TP+d}, s44, v13"]
S1 = 2
for _ in range(3): g(fill.pop(0))
if OPT["mg3"]: pc_wait(0xff, 0x22, 42, 48, extra="\n".join(pread(u) for u in range(S1)))
else:
    pc_wait(0xff, 0x22, 42, 48)
    g("\n".join(pread(u) for u in range(S1)))
for u in range(S1):
    g(f"s_waitcnt lgkmcnt({S1-1-u})")
    for i in range(4):
        mfma(OA + 4 * i, PF + 4 * u, PVA + 16 * i + 4 * u, u == 0)
        for _ in range(2): g(fill.pop(0))
assert not fill
if OPT["mg3"]: pc_wait(0xffff, 0x2222, 42, 48, extra="\n".join(pread(u) for u in range(S1, 4)))
else:
    pc_wait(0xffff, 0x2222, 42, 48)
    g("\n".join(pread(u) for u in range(S1, 4)))
g(f"s_cmp_lg_u32 s42, 0x2222\ns_cbranch_scc1 L_slow")
stamp(9)
for u in range(S1, 4):
    g(f"s_waitcnt lgkmcnt({3-u})")
    for i in range(4): mfma(OA + 4 * i, PF + 4 * u, PVA + 16 * i + 4 * u, u == 0)
g.label("L_pv2")
GR = 64
g("s_nop 6")
for a in range(2):
    A0, B0, T0 = GR + 4 * a, GR + 4 * a + 2, 72
    for d in range(2):
        g(f"v_perm_b32 v{A0+d}, v{OA+8*d+4+2*a}, v{OA+8*d+2*a}, s{sPHI}")
        g(f"v_perm_b32 v{B0+d}, v{OA+8*d+4+2*a+1}, v{OA+8*d+2*a+1}, s{sPHI}")
    g("s_nop 0")
    for d in range(2): g(f"v_mov_b32_dpp v{T0+d}, v{A0+d} row_ror:8 {DPPM}")
    for d in range(2): g(f"v_mov_b32_dpp v{A0+d}, v{B0+d} row_ror:8 row_mask:0xf bank_mask:0xc")
    for d in range(2): g(f"v_mov_b32_dpp v{B0+d}, v{T0+d} quad_perm:[0,1,2,3] row_mask:0xf bank_mask:0x3")
    for d in range(4): g(f"v_add_u32 v{A0+d}, s44, v{A0+d}")
    for d in range(4): g(f"v_bfi_b32 v{A0+d}, s44, v{TP+d}, v{A0+d}")
    g(f"buffer_store_dwordx4 {vr(A0,4)}, v{IBV}, {sr(WS,4)}, s{26 if a == 0 else 22} offen sc1")
if OPT["wogate"] == 1 or OPT["forder"] == 5 or OPT["hk"]: lds_inc(F_H3)
stamp(10)
if OPT["pr0"]: g("s_setprio 0")
MK = 76
g(f"""v_and_b32 v12, 1, v{LANE}
      v_lshlrev_b32 v12, 4, v12
      v_mov_b32 v13, 0xffff
      v_lshlrev_b32 v13, v12, v13
      v_bfe_u32 v12, v{LANE}, 1, 2""")
for p in range(4):
    g(f"v_cmp_eq_u32 vcc, {p}, v12\ns_nop 1\nv_cndmask_b32 v{MK+p}, v{VZ}, v13, vcc")
g(f"""v_lshlrev_b32 v16, 2, v{vN}
      s_lshl_b32 s42, s{sWV}, 6
      v_add_u32 v16, s42, v16
      v_lshrrev_b32 v17, 3, v{LANE}
      v_lshlrev_b32 v17, 2, v17
      v_add_u32 v17, s42, v17
      v_lshrrev_b32 v18, 3, v{vN}             ; a = j>>3
      s_lshl_b32 s42, s{sWV}, 1
      v_add_u32 v19, s42, v18
      v_mul_u32_u24 v19, 144, v19
      v_and_b32 v20, 7, v{vN}
      v_lshl_add_u32 v19, v20, 4, v19
      v_and_b32 v20, 1, v{vKG}
      v_lshl_add_u32 v19, v20, 3, v19
      v_lshrrev_b32 v20, 1, v{vKG}
      v_cmp_eq_u32 s[46:47], v18, v20
      v_lshlrev_b32 v14, 3, v{LANE}           ; lane*8""")
if OPT["d3"]: g(f"s_sleep {OPT['d3']}")
stamp(22)
IR = 104
ib_loads = f"""buffer_load_dwordx4 {vr(IR,4)}, v{VL16}, {sr(WS,4)}, s30 offen sc1
      buffer_load_dwordx4 {vr(IR+4,4)}, v{VL16}, {sr(WS,4)}, s30 offen offset:1024 sc1"""
def hdr_poll(nm, off, dstoff, flag, after="", mark=False, ap=24):
    L, Lo = g.nl(nm), g.nl(nm + "o")
    g(f"s_mov_b32 s43, {LIM_MEM}")
    if OPT["bkh"]:
        Lf = g.nl(nm + "f")
        g(f"s_branch {Lf}")
    g.label(L)
    if OPT["bkh"]:
        g(f"s_sleep {OPT['bkh']}")
        g.label(Lf)
    g(f"""s_load_dwordx16 s[52:67], s[{ap}:{ap+1}], {off} glc
          s_load_dwordx16 s[68:83], s[{ap}:{ap+1}], {off+64} glc
          s_sub_u32 s43, s43, 1
          s_cbranch_scc1 {Lo}
          s_waitcnt lgkmcnt(0)
          s_add_u32 s19, s53, s55""")
    for k in range(2, 16): g(f"s_add_u32 s19, s19, s{53+2*k}")
    g(f"s_cmp_eq_u32 s19, s18\ns_cbranch_scc0 {L}")
    g.label(Lo)
    g("s_waitcnt lgkmcnt(0)")
    if after: g(after)
    for k in range(16): g(f"v_writelane_b32 v24, s{52+2*k}, {k}")
    g("s_mov_b64 exec, 0xffff")
    if mark:
        g(f"""v_cmp_gt_i32 vcc, 0, v24
              s_cmp_lg_u64 vcc, 0
              s_cselect_b32 s42, 0x101, 1
              v_mov_b32 v25, s42""")
    g(f"""ds_write_b32 v16, v24 offset:{dstoff}
          s_mov_b64 exec, 1
          ds_add_u32 v{VZ}, v{25 if mark else VONE} offset:{flag}
          s_mov_b64 exec, -1""")
g(f"""s_add_u32 s24, s{WS}, s31
      s_addc_u32 s25, s{WS+1}, 0
      s_and_b32 s20, s{sJ}, {OPT["hrep"]-1}
      s_lshl_b32 s20, s20, 15
      s_add_u32 s20, s20, s24
      s_addc_u32 s21, s25, 0
      s_lshl_b32 s18, s{sTAG}, 4""")
for n in range(2):
    for p in range(4): g(f"v_and_b32 v{88+4*n+p}, 0x3f803f80, v{MK+p}")
if OPT["d3a"]: g(f"s_sleep {OPT['d3a']}")
if OPT["pr0"]: g("s_setprio 2")
hdr_poll("h3l", LOFF, LT, F_LT, after=(f"s_sleep {OPT['d3b']}\n" if OPT["d3b"] else "") + ib_loads, mark=True, ap=20)
cnt(25, 43)
stamp(11)
pc_wait(0xff, 8, 42, 43, off=F_LT)
g("s_cmp_lg_u32 s42, 8\ns_cbranch_scc1 L_genw")
g.label("L_genw_ret")
L, Lo = g.nl("h3d"), g.nl("h3do")
g(f"s_mov_b32 s43, {LIM_MEM}")
g.label(L)
g("s_waitcnt vmcnt(0)")
for k in range(8): g(f"v_xor_b32 v{IR+k}, v{IR+k}, v{TP+(k&3)}")
g(f"""v_or3_b32 v{VT}, v{IR}, v{IR+1}, v{IR+2}
      v_or3_b32 v12, v{IR+3}, v{IR+4}, v{IR+5}
      v_or3_b32 v{VT}, v{VT}, v{IR+6}, v{IR+7}
      v_bitop3_b32 v{VT}, v{VT}, v12, s44 bitop3:0xa8
      v_cmp_ne_u32 vcc, 0, v{VT}
      s_cbranch_vccz {Lo}
      s_sub_u32 s43, s43, 1
      s_cbranch_scc1 {Lo}
      s_lshr_b64 s[48:49], vcc, 4
      s_or_b64 vcc, vcc, s[48:49]
      s_lshr_b64 s[48:49], vcc, 2
      s_or_b64 vcc, vcc, s[48:49]
      s_lshr_b64 s[48:49], vcc, 1
      s_or_b64 vcc, vcc, s[48:49]
      s_and_b32 s48, vcc_lo, 0x01010101
      s_and_b32 s49, vcc_hi, 0x01010101
      s_mul_i32 exec_lo, s48, 0xff
      s_mul_i32 exec_hi, s49, 0xff
      s_sleep {OPT["bk3"]}
      {ib_loads}
      s_branch {L}""")
g.label(Lo)
g("s_mov_b64 exec, -1")
cnt(26, 43)
stamp(12)
mfma(96, 88, IR, True)
mfma(96, 92, IR + 4, False)
g(f"""s_nop 7
      v_cvt_pk_bf16_f32 v100, v96, v97
      v_cvt_pk_bf16_f32 v101, v98, v99
      s_mov_b64 exec, s[46:47]
      ds_write_b64 v19, v[100:101] offset:{RIB}
      s_mov_b64 exec, 1
      ds_add_u32 v{VZ}, v{VONE} offset:{F_IB}
      s_mov_b64 exec, -1""")
stamp(13)
g(f"""s_cmp_lt_u32 s{sWG}, 20
      s_cbranch_scc0 L_A_end
      s_lshl_b32 s41, s{sWG}, 14
      s_lshl_b32 s42, s{sWV}, 11
      s_add_u32 s41, s41, s42
      s_add_u32 s41, s41, {SM}
      v_and_b32 v7, 7, v{LANE}
      v_lshlrev_b32 v7, 2, v7
      v_lshrrev_b32 v6, 5, v{LANE}
      v_lshl_add_u32 v7, v6, 1, v7
      v_and_b32 v6, 1, v{vKG}
      v_add_u32 v7, v7, v6
      v_lshlrev_b32 v18, 5, v7
      s_lshl_b32 s42, s{sWV}, 2
      v_add_u32 v6, s42, v18
      v_lshlrev_b32 v7, 1, v7
      s_lshl_b32 s55, s{sWG}, 6""")
tagbytes()
def red8(b):
    g(f"""s_nop 1
          v_permlane32_swap_b32 v{b}, v{b+2}
          v_permlane32_swap_b32 v{b+1}, v{b+3}
          v_pk_add_f32 {vr(b,2)}, {vr(b,2)}, {vr(b+2,2)}
          s_nop 1
          v_permlane16_swap_b32 v{b}, v{b+1}
          v_add_f32 v{b}, v{b}, v{b+1}
          s_nop 1
          v_add_f32_dpp v{b}, v{b}, v{b} row_ror:8 {DPPM}""")
g(f"""s_cmp_eq_u32 s{sWV}, 0
      s_cbranch_scc0 L_fin_s""")
srd(SR, P_X, 1280)
g(f"""buffer_load_ushort v16, v7, {sr(SR,4)}, s55 offen
      s_lshl_b32 s40, s{sWG}, 12
      s_add_u32 s40, s40, {YM}""")
poll_loads("h7", f"""v_mov_b32 v60, s{sTB}
      v_mov_b32 v61, s{sTB+1}
      v_mov_b32 v62, s{sTB+2}
      v_mov_b32 v63, s{sTB+3}
      buffer_load_dwordx4 v[48:51], v{VL16}, {sr(WS,4)}, s40 offen sc1
      buffer_load_dwordx4 v[52:55], v{VL16}, {sr(WS,4)}, s40 offen offset:1024 sc1
      buffer_load_dwordx4 v[56:59], v{VL16}, {sr(WS,4)}, s40 offen offset:2048 sc1
      s_mov_b64 exec, 0xffffff
      buffer_load_dwordx4 v[60:63], v{VL16}, {sr(WS,4)}, s40 offen offset:3072 sc1
      s_mov_b64 exec, -1""", [48, 52, 56, 60], 43, sleep=4, mask=False, b8=True)
sum_groups(48, 4)
red8(48)
rne(48)
g(f"""v_mul_f32 v49, {hex(f32(-math.log2(math.e)))}, v48
      v_exp_f32 v49, v49
      s_nop 0
      v_add_f32 v49, 1.0, v49
      v_rcp_f32 v49, v49
      s_nop 0
      v_mul_f32 v48, v48, v49""")
rne(48)
g("v_lshlrev_b32 v20, 16, v16")
stamp(19)
g.label("L_fin_s")
lds_wait(F_SD, 4 - OPT["w8x3"], 42, sleep=1)
if OPT["d5"]: g(f"s_sleep {OPT['d5']}")
poll_loads("h5", f"""buffer_load_dwordx4 v[32:35], v{VL16}, {sr(WS,4)}, s41 offen sc1
      buffer_load_dwordx4 v[36:39], v{VL16}, {sr(WS,4)}, s41 offen offset:1024 sc1""", [32, 36], 43, sleep=OPT["bk5"], b8=True)
cnt(27, 43)
stamp(20)
sum_groups(32, 2)
red8(32)
g(f"""ds_write_b32 v6, v32 offset:{RFIN}
      s_mov_b64 exec, 1
      ds_add_u32 v{VZ}, v{VONE} offset:{F_FIN}
      s_mov_b64 exec, -1
      s_cmp_eq_u32 s{sWV}, 0
      s_cbranch_scc0 L_A_end""")
srd(44, P_OUT, 1280)
lds_wait(F_FIN, 8, 42, extra=f"ds_read_b128 v[32:35], v18 offset:{RFIN}\nds_read_b128 v[36:39], v18 offset:{RFIN+16}")
sum_groups(32, 2)
g("v_pk_add_f32 v[32:33], v[32:33], v[34:35]\nv_add_f32 v32, v32, v33")
rne(32)
g("v_mul_f32 v32, v32, v48")
rne(32)
g(f"""v_add_f32 v32, v32, v20
      v_cvt_pk_bf16_f32 v32, v32, v32
      buffer_store_short v32, v7, {sr(44,4)}, s55 offen {'sc1' if OPT['osc'] else ''}
      s_cmp_eq_u32 s{sWG}, 0
      s_cbranch_scc0 L_noep
      s_mov_b64 exec, 1
      v_mov_b32 v13, s{sTAG}
      buffer_store_dword v13, v{VZ}, {sr(WS,4)}, 0 offen offset:{EPOCH} sc1""")
g.label("L_noep")
stamp(21)
g.label("L_A_end")
ts_flush()
g("s_endpgm")
if OPT["l2q"]:
    g.label(H1V)
    g(f"""v_and_b32 v11, 31, v{LANE}
          v_lshlrev_b32 v11, 3, v11""")
    poll_loads("h1p", f"buffer_load_dwordx2 v[12:13], v11, {sr(WS,4)}, s25 offen sc1", [13], 19, sleep=2)
    for k in range(32): g(f"v_readlane_b32 s{36+2*k}, v12, {k}")
    g(f"s_nop 1\ns_branch {H1O}")
g.label("L_genw")
hdr_poll("h3m", 0, MLT, F_ML)
lds_wait(F_ML, 8, 42)
g(f"""ds_read_b64 v[24:25], v14 offset:{MLT}
      ds_read_b32 v8, v17 offset:{MLT}
      ds_read_b32 v9, v17 offset:{MLT+32}
      s_waitcnt lgkmcnt(0)""")
global_max(22, 24)
g(f"""v_sub_f32 v8, v8, v22
      v_sub_f32 v9, v9, v22
      v_exp_f32 v8, v8
      v_exp_f32 v9, v9
      s_nop 0
      v_cvt_pk_bf16_f32 v8, v8, v8
      v_cvt_pk_bf16_f32 v9, v9, v9""")
for n in range(2):
    for p in range(4): g(f"v_and_b32 v{88+4*n+p}, v{8+n}, v{MK+p}")
g("s_branch L_genw_ret")
g.label("L_slow")
g(f"""v_mov_b32 v8, v9
      v_lshlrev_b32 v6, 5, v{vN}
      s_lshl_b32 s42, s{sWV}, 2
      v_add_u32 v29, s42, v6
      s_mov_b32 s43, 0x3f803f80
      v_permlane16_swap_b32 v9, v8
      v_max_f32 v9, v9, v8
      v_mov_b32 v8, v9
      s_nop 1
      v_permlane32_swap_b32 v9, v8
      v_max_f32 v9, v9, v8
      s_mov_b64 exec, 0xffff
      ds_write_b32 v29, v9 offset:{RMX}
      s_mov_b64 exec, 1
      ds_add_u32 v{VZ}, v{VONE} offset:{F_MAX}
      s_mov_b64 exec, -1""")
lds_wait(F_MAX, 8, 42, extra=f"ds_read_b128 v[12:15], v6 offset:{RMX}\nds_read_b128 v[16:19], v6 offset:{RMX+16}")
g(f"""v_max3_f32 v{VM}, v12, v13, v14
      v_max3_f32 v16, v15, v16, v17
      v_max3_f32 v{VM}, v{VM}, v18, v19
      v_max_f32 v{VM}, v{VM}, v16""")
for r in range(4): g(f"v_sub_f32 v{SA+r}, v{SA+r}, v{VM}")
for r in range(4): g(f"v_exp_f32 v{SA+r}, v{SA+r}")
g(f"""v_lshlrev_b32 v15, {HS}, v{vN}
      v_cvt_pk_bf16_f32 v12, v{SA}, v{SA+1}
      v_cvt_pk_bf16_f32 v13, v{SA+2}, v{SA+3}
      ds_write_b64 v7, v[12:13] offset:{PL}""")
lds_inc(F_P)
lds_wait(F_P, 8, 42)
g("\n".join(pread(u) for u in range(4)))
g("v_mov_b32 v12, 0\nv_mov_b32 v14, 0\ns_waitcnt lgkmcnt(0)")
for u in range(4):
    for i in range(4):
        mfma(OA + 4 * i, PF + 4 * u, PVA + 16 * i + 4 * u, u == 0)
        g(f"v_dot2c_f32_bf16 v{12+2*(i&1)}, s43, v{PF+4*u+i}")
def l_store(so, va):
    n = OPT["hrep"]
    g({1: "s_mov_b64 exec, 0xffff", 2: "s_mov_b32 exec_hi, 0", 4: "", 8: ""}[n])
    g(f"buffer_store_dwordx2 v[12:13], v{va}, {sr(WS,4)}, s{so} offen sc1")
    if n == 8: g(f"s_add_u32 s{so}, s{so}, 0x20000\nbuffer_store_dwordx2 v[12:13], v{va}, {sr(WS,4)}, s{so} offen sc1")
    g("s_mov_b64 exec, -1")
def lsum():
    g(f"""v_mov_b32 v13, s{sTAG}
          v_mov_b32 v11, s{sTAG}
          s_nop 0
          v_add_f32 v12, v12, v14
          v_mov_b32 v14, v12
          s_nop 1
          v_permlane16_swap_b32 v12, v14
          v_add_f32 v12, v12, v14
          v_mov_b32 v14, v12
          s_nop 1
          v_permlane32_swap_b32 v12, v14
          v_add_f32 v12, v12, v14""")
lsum()
g(f"""v_or_b32 v12, 0x80000000, v12
      s_cmp_eq_u32 s{sWV}, 0
      s_cbranch_scc0 L_pv2
      s_mov_b64 exec, 0xffff
      buffer_store_dwordx2 v[10:11], v15, {sr(WS,4)}, s27 offen sc1
      s_mov_b64 exec, -1
      v_lshl_add_u32 v14, v{vKG}, 15, v15""")
l_store(23, 14)
g("s_branch L_pv2")

KORD = (0, 2, 1, 3)
TH = OPT["gthr"]
def wo_setup():
    g(f"""v_mul_u32_u24 v6, {8*1280}, v{vKG}
          v_lshl_add_u32 v6, v{vN}, 3, v6
          s_lshl_b32 s40, s{sHF}, 7
          s_lshr_b32 s41, s{sJ}, 1
          s_lshl_b32 s41, s41, 5
          s_add_u32 s40, s40, s41
          s_mul_i32 s40, s40, 1280
          s_and_b32 s41, s{sJ}, 1
          s_mul_i32 s41, s41, 640
          s_add_u32 s48, s40, s41""")
    srd(44, P_WO, 5242880)

def wo_gate():
    if OPT["wogate"] == 1: lds_wait(F_H3, 8, 40, sleep=1)
    elif OPT["wogate"] == 2: lds_wait(F_IB, 1, 40, sleep=2)

def h4_setup():
    g(f"""v_and_b32 v31, 7, v{vN}
          v_lshlrev_b32 v29, 7, v31
          v_lshl_add_u32 v29, v{vKG}, 5, v29
          s_lshl_b32 s50, s{sHF}, 2
          s_lshr_b32 s51, s{sJ}, 1
          s_add_u32 s50, s50, s51                 ; p = h*4+dq
          s_lshl_b32 s61, s50, 10
          s_add_u32 s61, s61, {CXM}
          v_lshrrev_b32 v30, 3, v{vN}
          v_lshlrev_b32 v30, 14, v30
          v_lshl_add_u32 v30, v31, 4, v30         ; (n>>3)*16K + (n&7)*16
          v_mov_b32 v31, 0xff
          s_and_b32 s41, s{sJ}, 1
          s_mul_i32 s41, s41, {10*16384}
          s_lshl_b32 s50, s50, 7
          s_add_u32 s50, s50, s41
          s_add_u32 s50, s50, {SM}""")
    tagbytes()

def h4_warm(A, cbks):
    g(f"buffer_load_dwordx4 {vr(A,4)}, v29, {sr(WS,4)}, s61 offen sc1")
    for cbk in cbks:
        g(f"""s_add_u32 s51, s50, {cbk*2*16384}
              buffer_load_dwordx4 {vr(A+4,4)}, v30, {sr(WS,4)}, s51 offen sc1""")

def h4_wait(A, late=""):
    Ls = g.nl("h4s")
    onfail = f"""s_cmp_lg_u32 s43, {LIM_MEM-32}
          s_cbranch_scc1 {Ls}
          {late}
          {Ls}:""" if (OPT["fast4"] and late) else ""
    poll_loads("h4", f"""buffer_load_dwordx4 {vr(A,4)}, v29, {sr(WS,4)}, s61 offen sc1
          buffer_load_dwordx4 {vr(A+4,4)}, v29, {sr(WS,4)}, s61 offen offset:16 sc1""", [A+1, A+3, A+5, A+7], 43, sleep=OPT["bk4"], onfail=onfail)
    g(f"v_mov_b32 v{A+1}, v{A+4}\nv_mov_b32 v{A+3}, v{A+6}\ns_nop 1")

def rl_wait():
    lds_wait(F_RLV, 1, 40, extra=f"ds_read_b32 v28, v{VZ} offset:{RLINV}")

def wo_compute(A, frags, cbks, D):
    for bi, fr in enumerate(frags):
        for t in range(4): mfma(D + 16 * bi + 4 * t, A, fr + 4 * t, True)
    g("s_nop 4" if len(frags) == 1 else "s_nop 0")
    for bi, cbk in enumerate(cbks):
        d = D + 16 * bi
        for t in range(4): g(f"v_pk_add_f32 {vr(d+4*t,2)}, {vr(d+4*t,2)}, {vr(d+4*t+2,2)}")
        for t in range(4): g(f"v_add_f32 v{16+t}, v{d+4*t}, v{d+4*t+1}")
        for t in range(4): g(f"v_mov_b32 v{20+t}, v{16+t}")
        g(f"s_add_u32 s51, s50, {cbk*2*16384}")
        for t in range(4): g(f"v_permlane16_swap_b32 v{16+t}, v{20+t}")
        g("v_pk_add_f32 v[16:17], v[16:17], v[20:21]\nv_pk_add_f32 v[18:19], v[18:19], v[22:23]")
        for t in range(4): g(f"v_mul_f32 v{d+t}, v{16+t}, v28")
        tagput([d, d+1, d+2, d+3], 31)
        g(f"""s_mov_b64 exec, 0xffff
              buffer_store_dwordx4 {vr(d,4)}, v30, {sr(WS,4)}, s51 offen sc1
              s_mov_b64 exec, -1""")
    lds_inc(F_SD)

def b1_gate():
    if OPT["b1gate"]:
        land_flush()
        if OPT['b1gate'] == 9: pc_wait(0xffff, 0x2222, 40, 41, sleep=1)
        else: lds_wait(F_STG, OPT['b1gate'], 40, sleep=2)

g.label("L_G")
if OPT["ldw"]: g(f"s_sleep {OPT['ldw']}")
get_tag(6)
g(f"""s_cmp_eq_u32 s{sWV}, 10
      s_cbranch_scc1 L_G_uv10""")
LD.pending = False
wo_setup(); h4_setup()
if OPT["dec"]: h4_warm(8, [0, 1] + [4] * OPT["w8x3"])
b1_gate()
if OPT["wogate"]: land_flush()
wo_gate()
stamp(4)
load_block(32, 6, 44, 48, 42, 1280, TH)
g("s_add_u32 s49, s48, 128")
load_block(48, 6, 44, 49, 42, 1280, TH)
X3 = OPT["w8x3"]
if X3:
    g("s_add_u32 s49, s48, 512")
    load_block(144, 6, 44, 49, 42, 1280, TH)
land_flush()
def w8_perms():
    g(f"s_waitcnt vmcnt({8+8*X3})")
    perm_block(32, 64, KORD)
    g(f"s_waitcnt vmcnt({8*X3})")
    perm_block(48, 80, KORD)
    if X3:
        g("s_waitcnt vmcnt(0)")
        perm_block(144, 32, KORD)
if not OPT['dec']:
    w8_perms()
    h4_warm(8, [0, 1] + [4] * X3)
stamp(5)
g(f"""v_lshlrev_b32 v16, 3, v{LANE}
""")
g("v_mov_b32 v20, 1.0\nv_mov_b32 v21, 1.0")
lds_wait(F_LT, 1, 40, sleep=1)
g("s_setprio 2")
pc_wait(0xff, 8, 40, 41, off=F_LT, extra=f"ds_read_b64 v[24:25], v16 offset:{LT}")
g("s_cmp_eq_u32 s40, 8\ns_cbranch_scc1 L_unitw")
lds_wait(F_ML, 8, 40)
g(f"ds_read_b64 v[20:21], v16 offset:{MLT}\ns_waitcnt lgkmcnt(0)")
global_max(22, 20)
g(f"""v_sub_f32 v20, v20, v22
      v_sub_f32 v21, v21, v22
      v_exp_f32 v20, v20
      v_exp_f32 v21, v21
      s_nop 0""")
rne(20); rne(21)
g.label("L_unitw")
g("v_mul_f32 v24, abs(v24), v20\nv_fma_f32 v24, abs(v25), v21, v24")
wave_sum(24, 40)
g(f"""s_nop 1
      v_rcp_f32 v24, s40
      s_nop 0
      ds_write_b32 v{VZ}, v24 offset:{RLINV}
      ds_write_b32 v{VZ}, v{VONE} offset:{F_RLV}
      v_mov_b32 v28, v24""")
if OPT["dec"]: w8_perms()
lds_wait(F_IB, 8, 40, sleep=1)
h4_wait(8)
stamp(6)
wo_compute(8, [64, 80] + [32] * X3, [0, 1] + [4] * X3, 96)
stamp(7)
g("s_branch L_G_end")

def uv_loads():
    g(f"""v_lshlrev_b32 v7, 13, v{vKG}
          v_lshl_add_u32 v7, v{vN}, 3, v7
          s_lshl_b32 s56, s{sJ}, 17               ; 16j rows
          s_lshl_b32 s41, s{sHF}, 8
          s_add_u32 s56, s56, s41
          s_sub_u32 s52, s{sWV}, 9                ; colhalf
          s_lshl_b32 s41, s52, 7
          s_add_u32 s56, s56, s41
          s_add_u32 s57, s56, {4*8192}""")
    srd(SR, P_WUV, 4194304)
    b1_gate()
    stamp(4)
    rows = [128 * (e & 3) + 8 * (e >> 2) for e in range(8)]
    load_block(32, 7, SR, 56, 42, 8192, TH, rows)
    load_block(48, 7, SR, 57, 42, 8192, TH, rows)
g.label("L_G_uv10")
g.label("L_G_uv9")
LD.pending = False
uv_loads()
g.label("L_G_uv")
wo_setup(); h4_setup()
g(f"""s_add_u32 s49, s52, 2
      s_mul_i32 s53, s49, {2*16384}
      s_add_u32 s50, s50, s53
      s_lshl_b32 s49, s49, 7
      s_add_u32 s49, s49, s48
      v_and_b32 v7, 7, v{vN}
      v_mul_u32_u24 v8, 144, v{vN}
      v_lshl_add_u32 v8, v{vKG}, 4, v8
      v_lshlrev_b32 v9, 4, v{LANE}
      v_lshrrev_b32 v11, 3, v{vN}
      v_lshlrev_b32 v11, 10, v11
      v_lshl_add_u32 v11, v7, 4, v11          ; (n>>3)*1024 + (n&7)*16
      s_lshl_b32 s40, s{sHF}, 2
      s_lshl_b32 s41, s52, 1
      s_add_u32 s40, s40, s41
      s_lshl_b32 s40, s40, 3
      s_add_u32 s40, s40, s{sJ}
      s_lshl_b32 s40, s40, 7
      s_add_u32 s54, s40, {CXM}""")
if not OPT["wogate"]:
    load_block(64, 6, 44, 49, 42, 1280, TH)
    h4_warm(16, [0])
g(f"""s_cmp_eq_u32 s{sWV}, 9
      s_cbranch_scc0 L_nohd
      s_and_b32 s56, s{sSLOT}, 1
      s_lshl_b32 s56, s56, {HS-3}
      s_add_u32 s56, s56, s{sXCD}
      s_lshl_b32 s56, s56, 4
      s_lshr_b32 s57, s{sSLOT}, 1
      s_add_u32 s56, s56, s57
      s_lshl_b32 s56, s56, 3
      s_add_u32 s56, s56, {HD}
      s_add_u32 s57, s56, {LOFF}
      v_lshlrev_b32 v15, {HS}, v{vN}
      v_lshl_add_u32 v27, v{vKG}, 15, v15
      v_mov_b32 v24, 0
      v_mov_b32 v25, s{sTAG}
      v_mov_b32 v12, 0
      v_mov_b32 v14, 0
      v_mov_b32 v26, v11
      s_mov_b32 s58, 0x3f803f80""")
pc_wait(0xfff, 0x222, 40, 41, sleep=1, watch=W1)
g(f"s_setprio {OPT['hp']}")
pc_wait(0xffff, 0x2222, 40, 41)
g(f"""s_cmp_lg_u32 s40, 0x2222
      s_cbranch_scc1 L_nohd2""")
g("\n".join(f"ds_read_b128 {vr(128+4*u,4)}, v9 offset:{PL+1024*u}" for u in range(4)))
for u in range(4):
    g(f"s_waitcnt lgkmcnt({3-u})")
    for i in range(4): g(f"v_dot2c_f32_bf16 v{12+2*(i&1)}, s58, v{128+4*u+i}")
lsum()
if OPT["hk"]: lds_wait(F_H3, OPT["hk"], 40)
elif OPT["dl"]: g(f"s_sleep {OPT['dl']}")
l_store(57, 27)
g(f"""s_mov_b64 exec, 0xffff
      buffer_store_dwordx2 v[24:25], v15, {sr(WS,4)}, s56 offen sc1
      s_mov_b64 exec, -1""")
stamp(10)
g.label("L_nohd2")
g(f"""v_mov_b32 v11, v26
      s_setprio 0
      {"s_waitcnt vmcnt(2)" if not OPT["wogate"] else ""}""")
def qfb9(both):
    Lq = g.nl("qf")
    t = f"s_cmp_eq_u32 s{sWV}, 9\ns_cbranch_scc0 {Lq}\n{QFB}\n"
    if both and OPT["l2q"] == 8: t += QFB.replace("s70", "s71") + "\n"
    return t + f"{Lq}:"
if OPT["l2q"] and OPT["qcl"] == 2: g(qfb9(True))
g.label("L_nohd")
if OPT["wogate"]:
    wo_gate()
    load_block(64, 6, 44, 49, 42, 1280, TH)
    h4_warm(144, [0])
g("s_waitcnt vmcnt(18)")
perm_block(32, 80)
g("s_waitcnt vmcnt(10)")
perm_block(48, 96)
g(f"v_mov_b32 v61, s{sTAG}\nv_mov_b32 v63, s{sTAG}")
if not OPT["wogate"]:
    g("s_waitcnt vmcnt(0)")
    perm_block(64, 112, KORD)
stamp(5)
pc_wait(0xff, 8, 40, 41, off=F_LT, sleep=2, watch=(48, qfb9(False)) if OPT["l2q"] else None)
if not OPT["dec"]: rl_wait()
g("s_setprio 3")
rr = f"ds_read_b128 v[32:35], v8 offset:{RIB}\nds_read_b128 v[36:39], v8 offset:{RIB+64}"
if OPT["mg1"]: lds_wait(F_IB, 8, 40, extra=rr)
else:
    lds_wait(F_IB, 8, 40); g(rr)
stamp(6)
D = 128
for blk in range(2):
    g(f"s_waitcnt lgkmcnt({1-blk})")
    for t in range(4): mfma(D + 4 * t, 32 + 4 * blk, 80 + 16 * blk + 4 * t, blk == 0)
g("s_nop 4")
for t in range(4): g(f"v_pk_add_f32 {vr(D+4*t,2)}, {vr(D+4*t,2)}, {vr(D+4*t+2,2)}")
for t in range(4): g(f"v_add_f32 v{16+t}, v{D+4*t}, v{D+4*t+1}")
g(f"""s_nop 0
      v_permlane32_swap_b32 v16, v18
      v_permlane32_swap_b32 v17, v19
      v_pk_add_f32 v[16:17], v[16:17], v[18:19]
      v_mov_b32 v18, v16
      v_mov_b32 v19, v17
      s_nop 0
      v_permlane16_swap_b32 v16, v18
      v_permlane16_swap_b32 v17, v19
      v_pk_add_f32 v[16:17], v[16:17], v[18:19]
      v_cvt_pk_bf16_f32 v60, v16, v17
      v_mov_b32 v62, v60
      s_nop 1
      v_permlane32_swap_b32 v60, v62""")
g(f"""s_mov_b64 exec, 0xffff
      buffer_store_dwordx4 v[60:63], v11, {sr(WS,4)}, {"s54 offen" if OPT["fast4"] else "s54 offen sc1"}
      s_mov_b64 exec, -1""")
stamp(7)
if OPT["wogate"]:
    g("s_waitcnt vmcnt(1)")
    perm_block(64, 112, KORD)
if OPT["dec"]: rl_wait()
late = f"s_mov_b64 exec, 0xffff\nbuffer_store_dwordx4 v[60:63], v11, {sr(WS,4)}, s54 offen sc1"
h4_wait(32, late)
stamp(8)
wo_compute(32, [112], [0], 128)
if OPT["fast4"]: g((f"s_sleep {OPT['d4']}\n" if OPT['d4'] else "") + late + "\ns_mov_b64 exec, -1")
if OPT["l2q"] and OPT["qcl"] == 1: g(qfb9(True))
stamp(9)
g("s_branch L_G_end")

g.label("L_FFNb")
PEND = OPT["fgate"] != 9 and not OPT["uk6"]
if OPT["remap"]:
    g(f"""s_and_b32 s40, s{sXCD}, 1
          s_lshl_b32 s62, s{sSLOT}, 1
          s_add_u32 s62, s62, s40                 ; u in 0..63
          s_lshr_b32 s63, s{sXCD}, 1              ; mq""")
else:
    g(f"""s_lshr_b32 s40, s{sSLOT}, 3             ; hq
      s_lshl_b32 s40, s40, 1
      s_and_b32 s41, s{sJ}, 1
      s_add_u32 s40, s40, s41
      s_lshl_b32 s40, s40, 3
      s_add_u32 s62, s40, s{sXCD}             ; u in 0..63
      s_lshr_b32 s63, s{sJ}, 1                ; mq""")
g(f"""v_and_b32 v31, 1, v{vKG}
      v_cmp_eq_u32 s[56:57], 1, v31
      s_cmp_lt_u32 s62, 27
      s_cbranch_scc0 L_FFN2""")
LD.pending = PEND; LD.n = 0
g(f"""v_mul_u32_u24 v28, {8*3456}, v{vKG}
      v_lshl_add_u32 v28, v{vN}, 3, v28
      v_lshlrev_b32 v7, 4, v{vKG}
      s_mul_i32 s58, s63, 320
      v_add_u32 v7, s58, v7
      s_mul_i32 s58, s63, {160*3456}
      s_lshl_b32 s41, s62, 7
      s_add_u32 s58, s58, s41""")
srd(SR, P_W1, 2211840)
stamp(4)
for b in range(5):
    if b: g(f"s_add_u32 s58, s58, {32*3456}")
    load_block(48 + 16 * b, 28, SR, 58, 42, 3456, OPT['fthr'])
land_flush()
D = 144
get_tag(6)
lds_wait(F_XN, 1, 40)
for b in range(5): g(f"ds_read_b128 {vr(XF+4*b,4)}, v7 offset:{XNL+64*b}")
g("s_waitcnt lgkmcnt(0)")
for b in range(5):
    g(f"s_waitcnt vmcnt({8*(4-b)})")
    perm_block(48 + 16 * b, 32 + 16 * b)
    g("s_nop 1")
    for t in range(4): mfma(D + 4 * t, XF + 4 * b, 32 + 16 * b + 4 * t, b == 0)
if OPT["hlate"] == 1: land_wait(4, 40, 24, sleep=2)
if OPT["hlate"] == 2: lds_wait(F_STG, 8, 40, sleep=2)
if OPT["hlate"] == 3: land_wait(3, 40, 24, sleep=2)
g(f"""v_lshlrev_b32 v28, 4, v{LANE}
      s_nop 0
      s_lshl_b32 s40, s62, 2
      s_add_u32 s40, s40, s63
      s_lshl_b32 s40, s40, 9
      s_add_u32 s40, s40, {HM}
      v_mov_b32 v9, s{sTAG}
      v_mov_b32 v11, s{sTAG}
      s_nop 1
      v_cndmask_b32 v8, v{D}, v{D+8}, s[56:57]
      v_cndmask_b32 v10, v{D+4}, v{D+12}, s[56:57]
      s_mov_b32 exec_hi, 0
      buffer_store_dwordx4 v[8:11], v28, {sr(WS,4)}, s40 offen sc1
      s_mov_b64 exec, -1
      s_branch L_FFNe""")
g.label("L_FFN2")
g(f"""s_mul_i32 s40, s63, 37
      s_add_u32 s40, s40, s62
      s_sub_u32 s58, s40, 27
      s_cmp_lt_u32 s58, 135
      s_cbranch_scc1 L_FFN2a""")
LD.pending = PEND; LD.n = 0
land_flush()
get_tag(6)
g("s_branch L_FFNe")
g.label("L_FFN2a")
LD.pending = PEND; LD.n = 0
g(f"""s_mul_i32 s59, s58, 205
      s_lshr_b32 s59, s59, 10                 ; fb = v/5
      s_mul_i32 s60, s59, 5
      s_sub_u32 s60, s58, s60                 ; mb
      v_mul_u32_u24 v28, {8*1280}, v{vKG}
      v_lshl_add_u32 v28, v{vN}, 3, v28
      s_mul_i32 s58, s59, {64*1280}
      s_lshl_b32 s41, s60, 8
      s_add_u32 s58, s58, s41""")
srd(SR, P_W2, 2211840)
if OPT["forder"] >= 2:
    land_flush()
    if OPT["forder"] == 2: lds_wait(F_ISS, 2, 40, sleep=2)
    if OPT["forder"] == 3: lds_wait(F_STG, 8, 40, sleep=2)
    if OPT["forder"] == 4: pc_wait(0xff, 8, 40, 41, off=F_LT, sleep=2)
stamp(4)
for ch in range(2):
    for blk in range(2):
        g(f"s_add_u32 s41, s58, {blk*32*1280 + ch*128}")
        load_block(48 + 16 * (2 * ch + blk), 28, SR, 41, 42, 1280, OPT['fthr2'])
land_flush()
get_tag(6)
for b in range(4):
    g(f"s_waitcnt vmcnt({8*(3-b)})")
    perm_block(48 + 16 * b, 32 + 16 * b)
g(f"""v_lshrrev_b32 v28, 2, v{vN}
      v_lshlrev_b32 v28, 9, v28
      v_lshl_add_u32 v28, v{vKG}, 5, v28
      v_bfe_u32 v29, v{vN}, 1, 1
      v_lshl_add_u32 v28, v29, 4, v28
      v_and_b32 v29, 1, v{vN}
      v_lshl_add_u32 v28, v29, 8, v28
      s_lshl_b32 s40, s59, 11
      s_add_u32 s40, s40, {HM}""")
if OPT["hlate"] in (1, 3): lds_wait(F_STG, 8, 41, sleep=2)
if OPT["hlate"] == 2: lds_wait(F_H3, 8, 41, sleep=2)
poll_loads("h6", f"""buffer_load_dwordx4 v[8:11], v28, {sr(WS,4)}, s40 offen sc1
      buffer_load_dwordx4 v[12:15], v28, {sr(WS,4)}, s40 offen offset:128 sc1""", [9, 11, 13, 15], 43, sleep=6)
for mod in ("row_ror:4", "row_ror:8"):
    for r in (8, 10, 12, 14): g(f"v_add_f32_dpp v{r}, v{r}, v{r} {mod} {DPPM}")
for r in (8, 10, 12, 14): g(f"v_max_f32 v{r}, 0, v{r}")
g("v_cvt_pk_bf16_f32 v8, v8, v10\nv_cvt_pk_bf16_f32 v12, v12, v14\ns_nop 1")
for blk in range(2):
    for p in range(4):
        g(f"v_mov_b32_dpp v{16+4*blk+p}, v{8+4*blk} quad_perm:[{p},{p},{p},{p}] {DPPM}")
g("s_nop 1")
D = 96
for ch in range(2):
    for blk in range(2):
        for t in range(4): mfma(D + 16 * ch + 4 * t, 16 + 4 * blk, 32 + 16 * (2 * ch + blk) + 4 * t, blk == 0)
g(f"""v_lshrrev_b32 v28, 3, v{vN}
      v_lshlrev_b32 v28, 12, v28
      v_and_b32 v29, 7, v{vN}
      v_lshl_add_u32 v28, v29, 4, v28
      v_mov_b32 v29, 0xff
      s_lshl_b32 s40, s60, 14
      s_lshl_b32 s41, s59, 7
      s_add_u32 s40, s40, s41
      s_add_u32 s40, s40, {YM}
      s_add_u32 s41, s40, {2*4096}""")
tagbytes()
for ch in range(2):
    for t in range(4): g(f"v_bfi_b32 v{8+4*ch+t}, v29, s{sTB+t}, v{D+16*ch+4*t}")
g(f"""s_mov_b64 exec, 0xffff
      buffer_store_dwordx4 v[8:11], v28, {sr(WS,4)}, s40 offen sc1
      buffer_store_dwordx4 v[12:15], v28, {sr(WS,4)}, s41 offen sc1
      s_mov_b64 exec, -1""")
g.label("L_FFNe")
stamp(5)
if OPT["w8x3"]: g("s_branch L_G_end")
wo_setup(); h4_setup()
g("s_add_u32 s49, s48, 512")
if OPT["uvgate"] == 3: land_wait(4, 40, 24, sleep=1)
else: lds_wait(F_ISS, 2, 40, sleep=2)
b1_gate()
wo_gate()
load_block(128, 6, 44, 49, 42, 1280, TH)
g("s_waitcnt vmcnt(0)")
perm_block(128, 32, KORD)
h4_warm(8, [4])
lds_wait(F_LT, 8, 40, sleep=2)
rl_wait()
lds_wait(F_IB, 8, 40, sleep=1)
g("s_setprio 2")
h4_wait(8)
stamp(6)
wo_compute(8, [32], [4], 48)
stamp(7)
g.label("L_G_end")
if OPT["pad"]:
    g(f"""v_readfirstlane_b32 s40, v{VTS}
          s_cmp_lt_u32 s{sWG}, 8
          s_cbranch_scc0 L_END
          s_add_u32 s40, s40, {OPT["pad"]}""")
    if OPT["padmin"]:
        g(f"""s_load_dwordx2 s[44:45], s[0:1], 80
          s_mov_b32 s46, 256
          s_mov_b32 s47, 0x20000
          v_not_b32 v8, v{VTS}
          s_mov_b64 exec, 1
          s_waitcnt lgkmcnt(0)
          buffer_atomic_umax v8, v{VZ}, s[44:47], 0 offen
          s_waitcnt vmcnt(0)
          s_sleep 100
          buffer_load_dword v8, v{VZ}, s[44:47], 0 offen sc1
          s_waitcnt vmcnt(0)
          v_not_b32 v8, v8
          s_nop 1
          v_readfirstlane_b32 s40, v8
          s_nop 3
          s_add_u32 s40, s40, {OPT["pad"]}""")
    g(f"""L_padl:
          s_memrealtime s[42:43]
          s_waitcnt lgkmcnt(0)
          s_sub_u32 s41, s42, s40
          s_cmp_lt_i32 s41, 0
          s_cbranch_scc1 L_padl""")
ts_flush("G")
g.label("L_END")
g("s_endpgm")
g.l.append(".p2align 12")
g.label("L_CODE_END")

s = file_head([f"; @launch grid=(256,1,1) block=(768,1,1) lds={LDS_BYTES}"])
s += """// ---------------------------------------------------------------------------------------------
// group maximum inside +-64 (log2 units); otherwise the workgroup redoes it with the true maximum and
// ---------------------------------------------------------------------------------------------
"""
s += f""".text
.globl {K}
.p2align 12
.type {K},@function
{K}:
"""
s += g.text()
s += kernel_desc(K, 168, 102)
open(OUT, "w").write(s)
print(OUT, "lines", len(g.l), "ws_end", hex(WS_END))
```

```python
import sys, math, struct
from asmlib import *

OPT = dict(ts=0, stop=99, inflight=16, gate=12, ksmap=1, gthr=32, wogate=0, b1gate=0, pol=1, h2iss=2, amax=0, bk2=4, bk3=2, dbg=0, bk4=0, bk5=3, d3=0, d3b=0, d1=8, d5=8, fast4=1, warm=1, pad=0, padmin=0, padat=-1, padw=0, tlb=0, remap=1, w11e=0, l2q=8, bk1=1, bk1b=6, qcl=2, hlate=3, dec=1, hk=4, hrep=1, mg1=1, mg2=1, mg3=0, mg4=0, nrep=4, qs=14, kvt=0, uk6=1, vt=0, pr0=1, hp=1, inf2=0, split=2, w8x3=0, pkv=-1, pwq=-1, puk=-1, puv=-1, pwo=-1, pw1=-1, pw2=-1, d2=0, fgate=2, fthr=32, ukgate=0, h2land=3, forder=0, fast1=0, dh=8, ldw=0, d3a=12, hl=0, rng=64, dl=8, uvgate=0, bkh=4, st1=2, osc=1, d4=0, recl=1, rot=5, fthr2=32)
for a in sys.argv[2:]:
    k, v = a.split("=")
    assert k in OPT and k != "fast1", k
    OPT[k] = int(v)
if OPT["l2q"]: OPT["remap"] = 0; OPT["nrep"] = OPT["l2q"]; assert OPT["l2q"] in (4, 8)
OUT = sys.argv[1] if len(sys.argv) > 1 else "k.s"
POLS = {0: "", 1: "nt", 2: "sc1", 3: "sc1 nt", 4: "sc0 sc1", 5: "sc0 sc1 nt", 6: "sc0", 7: "sc0 nt"}
def pol(name): return POLS[OPT[name] if OPT[name] >= 0 else OPT["pol"]]
CUR = {"p": "pwq"}

def f32(x): return struct.unpack("<I", struct.pack("<f", x))[0]

EPOCH = 0
QM   = 0x1000
QS = OPT["qs"]
if QS == 14:
    HD, HS, LOFF = QM + 0x80000, 10, 0x8000
    QAM = HD + 0x8000 * (1 + OPT['hrep'])
else:
    HD, HS, LOFF = QM + 0x4000, QS, 0x400
    QAM = QM + (32 << QS)
CXM  = QAM + 0x10000
HM   = CXM + 0x20000
YM   = HM + 0x10000
SM   = YM + 20 * 4096
IB   = SM + 20 * 16384
WS_END = IB + 256 * 8 * 2048
TSOFF = 0x1000000
WS_REC = 0x2000000 if (OPT["ts"] and not OPT["dbg"]) else WS_END

(F_Q, F_QA, F_LAND, F_ISS, F_H2I, F_STG, F_MAX, F_P, F_IB, F_UK, F_TAG, F_TAGV, F_QP, F_QI, F_SD, F_FIN) = [4 * i for i in range(16)]
RMAX = 0x40
RL   = 0x80
F_H3, F_ML, F_QAP, F_XN, F_L, F_RLV, RLINV, F_LT, F_LA, F_LB, F_WQ, F_PC = 0xC0, 0xC4, 0xC8, 0xCC, 0xD0, 0xD4, 0xD8, 0xDC, 0xE0, 0xE4, 0xE8, 0xEC
REDQ = 0x100
REDQA = 0x600
PL   = 0x1000
RIB  = 0x2000
RFIN = PL
MLT  = 0x2A00
LT   = 0x2C00
RMX  = 0x2E00
RLP  = REDQ
XNL  = 0x3000
QL   = 0x3800
KV   = 0x7800
LDS_BYTES = KV + 0x20000

SCALE = (128 ** -0.5) * math.log2(math.e)
LIM_LDS = 1 << 16
LIM_MEM = 1 << 13

class G:
    def __init__(s): s.l = []; s.n = 0
    def __call__(s, x):
        for ln in x.strip("\n").split("\n"):
            if ln.strip(): s.l.append("  " + ln.strip())
    def label(s, x): s.l.append(x + ":")
    def nl(s, p): s.n += 1; return f"L_{p}_{s.n}"
    def text(s): return "\n".join(s.l) + "\n"
g = G()

def vr(a, n): return f"v[{a}:{a+n-1}]"
def sr(a, n): return f"s[{a}:{a+n-1}]"

LANE, VZ, VONE, VT, vN, vKG = 0, 1, 2, 3, 4, 5
VTS = 167
VL16 = 166
sWG, sWV = 2, 3
WS = 4
SR = 8
sXCD, sSLOT, sHF, sJ = 12, 13, 14, 15
P_X, P_KV, P_WQ, P_WUK, P_WUV, P_WO, P_BX, P_W1, P_W2, P_OUT, P_DBG, P_WS = [16 + 2 * i for i in range(12)]
sHA, sCA = (sSLOT, sXCD) if OPT['remap'] else (sHF, sJ)
sTAG, sCNT = 28, 29
sPLO, sPHI = 100, 101
DPPM = "row_mask:0xf bank_mask:0xf"

def srd(base, ptr, nbytes):
    g(f"""s_mov_b32 s{base}, s{ptr}
          s_mov_b32 s{base+1}, s{ptr+1}
          s_mov_b32 s{base+2}, {nbytes}
          s_mov_b32 s{base+3}, 0x20000""")

def stamp(k):
    if OPT["padat"] == k:
        g(f"s_memrealtime vcc\ns_waitcnt lgkmcnt(0)\nv_writelane_b32 v{VTS}, vcc_lo, 0")
    if not OPT["ts"]: return
    g(f"""s_memrealtime vcc
          s_waitcnt lgkmcnt(0)
          v_writelane_b32 v{VTS}, vcc_lo, {k}""")

def cnt(k, sreg):
    if OPT["ts"]: g(f"v_writelane_b32 v{VTS}, s{sreg}, {k}")

def ts_flush(role="A"):
    if OPT["padat"] >= 0:
        Lp, Le = g.nl("pad"), g.nl("pade")
        g(f"s_nop 4\nv_readlane_b32 s40, v{VTS}, 0")
        g("s_nop 4")
        if OPT["padw"] >= 8: g(f"s_cmp_eq_u32 s{sWV}, {OPT['padw'] % 100}")
        else: g(f"s_cmp_lt_u32 s{sWV}, 8")
        g(f"""s_cbranch_scc0 {Le}
              s_cmp_eq_u32 s40, 0
              s_cbranch_scc1 {Le}
              s_add_u32 s40, s40, 3000
              {Lp}:
              s_sleep 8
              s_memrealtime s[42:43]
              s_waitcnt lgkmcnt(0)
              s_sub_u32 s41, s42, s40
              s_cmp_lt_i32 s41, -40
              s_cbranch_scc1 {Lp}
              {Lp}b:
              s_memrealtime s[42:43]
              s_waitcnt lgkmcnt(0)
              s_sub_u32 s41, s42, s40
              s_cmp_lt_i32 s41, 0
              s_cbranch_scc1 {Lp}b
              {Le}:""")
    if not OPT["ts"]: return
    if OPT["dbg"]:
        sel = {"A": {1: 0, 2: 16, 6: 6, 7: 8, 8: 10, 9: 22, 10: 11, 11: 13, 14: 20, 15: 21}, "G": {3: 1, 4: 2, 5: 3, 12: 7, 13: 9}}[role]
        Ls = g.nl("dbg")
        g(f"""s_cmp_eq_u32 s{sWV}, {0 if role == "A" else 9}
              s_cbranch_scc0 {Ls}
              s_load_dwordx2 s[40:41], s[0:1], 80
              s_mov_b64 exec, -1
              v_mov_b32 v8, 0
              s_mov_b32 s42, 256
              s_mov_b32 s43, 0x20000""")
        for dst, src in sel.items():
            g(f"v_readlane_b32 s44, v{VTS}, {src}\ns_nop 3\nv_writelane_b32 v8, s44, {dst}")
        if role == "A":
            g(f"v_readlane_b32 s44, v{VTS}, 0\ns_nop 3\ns_not_b32 s44, s44\nv_writelane_b32 v8, s44, 0")
        g(f"""v_lshlrev_b32 v{VT}, 2, v{LANE}
              s_mov_b64 exec, 0xffff
              s_waitcnt lgkmcnt(0)
              buffer_atomic_umax v8, v{VT}, s[40:43], 0 offen""")
        g.label(Ls)
        return
    g(f"""s_mul_i32 s{sCNT}, s{sWG}, 12
          s_add_u32 s{sCNT}, s{sCNT}, s{sWV}
          s_lshl_b32 s{sCNT}, s{sCNT}, 7
          s_add_u32 s{sCNT}, s{sCNT}, {TSOFF}
          s_mov_b64 exec, -1
          s_mov_b32 exec_hi, 0
          v_lshlrev_b32 v{VT}, 2, v{LANE}
          buffer_store_dword v{VTS}, v{VT}, {sr(WS,4)}, s{sCNT} offen""")

def watch_hook(watch):
    if watch:
        Lw = g.nl("wd")
        g(f"s_cmp_lg_u32 s{sCNT}, {LIM_LDS - watch[0]}\ns_cbranch_scc1 {Lw}\n{watch[1]}\n{Lw}:")

def lds_wait(off, target, st, extra="", sleep=0, watch=None):
    L, Lo = g.nl("w"), g.nl("wo")
    g(f"s_mov_b32 s{sCNT}, {LIM_LDS}")
    if sleep:
        Lf = g.nl("wf")
        g(f"s_branch {Lf}")
    g.label(L)
    watch_hook(watch)
    if sleep:
        g(f"s_sleep {sleep}")
        g.label(Lf)
    g(f"ds_read_b32 v{VT}, v{VZ} offset:{off}")
    if extra: g(extra)
    g(f"""s_waitcnt lgkmcnt(0)
          v_readfirstlane_b32 s{st}, v{VT}
          s_sub_u32 s{sCNT}, s{sCNT}, 1
          s_cbranch_scc1 {Lo}
          s_cmp_ge_u32 s{st}, {target}
          s_cbranch_scc0 {L}""")
    g.label(Lo)

def pc_wait(mask, val, st, st2, extra="", sleep=0, off=None, watch=None):
    L, Lo = g.nl("pw"), g.nl("pwo")
    g(f"s_mov_b32 s{sCNT}, {LIM_LDS}")
    g.label(L)
    watch_hook(watch)
    if sleep: g(f"s_sleep {sleep}")
    g(f"ds_read_b32 v{VT}, v{VZ} offset:{F_PC if off is None else off}")
    if extra: g(extra)
    g(f"""s_waitcnt lgkmcnt(0)
          v_readfirstlane_b32 s{st}, v{VT}
          s_sub_u32 s{sCNT}, s{sCNT}, 1
          s_cbranch_scc1 {Lo}
          s_and_b32 s{st2}, s{st}, {hex(mask)}
          s_cmp_eq_u32 s{st2}, {hex(val)}
          s_cbranch_scc0 {L}""")
    g.label(Lo)

def land_wait(target, st, vt2, sleep=0):
    L, Lo = g.nl("lw"), g.nl("lwo")
    g(f"s_mov_b32 s{sCNT}, {LIM_LDS}")
    g.label(L)
    g(f"""ds_read_b64 {vr(vt2,2)}, v{VZ} offset:{F_LA}
          s_waitcnt lgkmcnt(0)
          v_min_u32 v{vt2}, v{vt2}, v{vt2+1}
          s_sub_u32 s{sCNT}, s{sCNT}, 1
          v_readfirstlane_b32 s{st}, v{vt2}
          s_cbranch_scc1 {Lo}
          s_cmp_ge_u32 s{st}, {target}
          s_cbranch_scc1 {Lo}""")
    if sleep: g(f"s_sleep {sleep}")
    g(f"s_branch {L}")
    g.label(Lo)

def lds_inc(off):
    g(f"""s_mov_b64 exec, 1
          ds_add_u32 v{VZ}, v{VONE} offset:{off}
          s_mov_b64 exec, -1""")

def get_tag(vtmp):
    lds_wait(F_TAGV, 1, sTAG, extra=f"ds_read_b32 v{vtmp}, v{VZ} offset:{F_TAG}")
    g(f"v_readfirstlane_b32 s{sTAG}, v{vtmp}")

def wave_sum(v, sdst):
    for mod in ("quad_perm:[1,0,3,2]", "quad_perm:[2,3,0,1]", "row_half_mirror", "row_mirror"):
        g(f"s_nop 1\nv_add_f32_dpp v{v}, v{v}, v{v} {mod} {DPPM}")
    g(f"s_nop 1\nv_add_f32_dpp v{v}, v{v}, v{v} row_bcast:15 row_mask:0xa bank_mask:0xf")
    g(f"s_nop 1\nv_add_f32_dpp v{v}, v{v}, v{v} row_bcast:31 row_mask:0xc bank_mask:0xf")
    g(f"s_nop 1\nv_readlane_b32 s{sdst}, v{v}, 63")

def rne(v):
    g(f"v_cvt_pk_bf16_f32 v{v}, v{v}, v{v}\nv_and_b32 v{v}, 0xffff0000, v{v}")

def ln_stats(x5, tmp, sA, sB, vM, vR):
    u = tmp
    for k in range(5):
        g(f"v_lshlrev_b32 v{u+2*k}, 16, v{x5+k}\nv_and_b32 v{u+2*k+1}, 0xffff0000, v{x5+k}")
    a = u + 10
    g(f"v_add_f32 v{a}, v{u}, v{u+1}")
    for k in range(2, 10): g(f"v_add_f32 v{a}, v{a}, v{u+k}")
    wave_sum(a, sA)
    g(f"s_nop 1\nv_mov_b32 v{vM}, s{sA}\nv_mul_f32 v{vM}, {hex(f32(1.0/640))}, v{vM}")
    for k in range(10): g(f"v_sub_f32 v{u+k}, v{u+k}, v{vM}")
    g(f"v_mul_f32 v{a}, v{u}, v{u}")
    for k in range(1, 10): g(f"v_fmac_f32 v{a}, v{u+k}, v{u+k}")
    wave_sum(a, sB)
    g(f"s_nop 1\nv_mov_b32 v{vR}, s{sB}\nv_mul_f32 v{vR}, {hex(f32(1.0/640))}, v{vR}")
    rne(vR)
    g(f"v_add_f32 v{vR}, {hex(f32(1e-5))}, v{vR}")
    rne(vR)
    g(f"v_sqrt_f32 v{vR}, v{vR}\ns_nop 0")
    rne(vR)
    g(f"v_rcp_f32 v{vR}, v{vR}")
    rne(vM)

def ln_frag(src, dst, t0, vM, vR):
    for k in range(4):
        g(f"""v_lshlrev_b32 v{t0}, 16, v{src+k}
              v_and_b32 v{t0+1}, 0xffff0000, v{src+k}
              v_sub_f32 v{t0}, v{t0}, v{vM}
              v_sub_f32 v{t0+1}, v{t0+1}, v{vM}
              v_cvt_pk_bf16_f32 v{t0+1}, v{t0}, v{t0+1}
              v_lshlrev_b32 v{t0}, 16, v{t0+1}
              v_and_b32 v{t0+1}, 0xffff0000, v{t0+1}
              v_mul_f32 v{t0}, v{t0}, v{vR}
              v_mul_f32 v{t0+1}, v{t0+1}, v{vR}
              v_cvt_pk_bf16_f32 v{dst+k}, v{t0}, v{t0+1}""")

def perm_block(raw, out, order=(0, 1, 2, 3)):
    for p in range(4):
        e = 2 * order[p]
        for d in range(2):
            g(f"v_perm_b32 v{out+4*(2*d)+p}, v{raw+2*(e+1)+d}, v{raw+2*e+d}, s{sPLO}")
            g(f"v_perm_b32 v{out+4*(2*d+1)+p}, v{raw+2*(e+1)+d}, v{raw+2*e+d}, s{sPHI}")

class Landing:
    pending = False
    n = 0
LD = Landing()

def load_block(raw, voff, srdb, sbase, stmp, rowbytes, thr=0, rows=None):
    CUR["p"] = {3456: "pw1", 8192: ("puv" if rows else "pwq"), 1280: ("pw2" if srdb == SR else "pwo")}[rowbytes]
    per = 4095 // rowbytes + 1
    cur = None
    for e in range(8):
        grp, rem = divmod(e, per)
        if grp != cur:
            if grp == 0: so = sbase
            else:
                g(f"s_add_u32 s{stmp}, s{sbase}, {(rows[e] if rows else grp*per)*rowbytes}"); so = stmp
            cur = grp
        if thr:
            g(f"s_waitcnt vmcnt({thr-1})")
            if LD.pending and LD.n >= thr - 1:
                land_now()
        off = f" offset:{rem*rowbytes}" if rem else ""
        g(f"buffer_load_dwordx2 {vr(raw+2*e,2)}, v{voff}, {sr(srdb,4)}, s{so} offen{off} {pol(CUR['p'])}")
        LD.n += 1

def land_now():
    g(f"ds_write_b32 v{VZ}, v{VONE} offset:{F_UK}")
    stamp(2)
    LD.pending = False

def land_flush():
    if LD.pending:
        g(f"s_waitcnt vmcnt({LD.n})")
        land_now()

def tagcheck(regs, acc):
    g(f"v_xor_b32 v{acc}, s{sTAG}, v{regs[0]}")
    for r in regs[1:]:
        g(f"v_bitop3_b32 v{acc}, v{r}, s{sTAG}, v{acc} bitop3:0xbe")
    g(f"v_cmp_ne_u32 vcc, 0, v{acc}")

def poll_loads(nm, loads, tags, scnt, acc=VT, sleep=0, mask=True, b8=False, onfail=""):
    L, Lo = g.nl(nm), g.nl(nm + "o")
    g(f"s_mov_b32 s{scnt}, {LIM_MEM}")
    g.label(L)
    g(loads)
    g("s_waitcnt vmcnt(0)")
    (tagcheck8 if b8 else tagcheck)(tags, acc)
    g(f"s_cbranch_vccz {Lo}")
    if onfail: g(onfail)
    if mask: g("s_mov_b64 exec, vcc")
    if sleep: g(f"s_sleep {sleep}")
    g(f"""s_sub_u32 s{scnt}, s{scnt}, 1
          s_cbranch_scc0 {L}""")
    g.label(Lo)
    if mask: g("s_mov_b64 exec, -1")

def flag16_wait(nm, ap):
    L, Lo = g.nl(nm), g.nl(nm + "o")
    g(f"s_mov_b32 s{sCNT}, {LIM_MEM}\ns_lshl_b32 s18, s{sTAG}, 4")
    g.label(L)
    g(f"""s_load_dwordx16 s[48:63], s[{ap}:{ap+1}], 0 glc
          s_sub_u32 s{sCNT}, s{sCNT}, 1
          s_cbranch_scc1 {Lo}
          s_waitcnt lgkmcnt(0)
          s_add_u32 s19, s48, s49""")
    for k in range(2, 16): g(f"s_add_u32 s19, s19, s{48+k}")
    g(f"s_cmp_eq_u32 s19, s18\ns_cbranch_scc0 {L}")
    g.label(Lo)
    g("s_waitcnt lgkmcnt(0)")

sTB = 66
def tagbytes():
    g(f"""s_and_b32 s{sTB}, s{sTAG}, 1
          s_mul_i32 s{sTB}, s{sTB}, 0x01010101
          s_and_b32 s{sTB+1}, s{sTAG}, 0xfefefefe
          s_or_b32 s{sTB}, s{sTB}, s{sTB+1}
          s_bfe_u32 s{sTB+1}, s{sTB}, 0x80008
          s_bfe_u32 s{sTB+2}, s{sTB}, 0x80010
          s_lshr_b32 s{sTB+3}, s{sTB}, 24
          s_and_b32 s{sTB}, s{sTB}, 0xff""")
def tagput(regs, vmask):
    for d, r in enumerate(regs): g(f"v_bfi_b32 v{r}, v{vmask}, s{sTB+d}, v{r}")
def tagcheck8(bases, acc):
    rs = [b + d for b in bases for d in range(4)]
    for b in bases:
        for d in range(4): g(f"v_xor_b32 v{b+d}, s{sTB+d}, v{b+d}")
    g(f"v_or_b32 v{acc}, v{rs[0]}, v{rs[1]}")
    for k in range(2, len(rs), 2): g(f"v_or3_b32 v{acc}, v{acc}, v{rs[k]}, v{rs[k+1]}")
    g(f"v_and_b32 v{acc}, 0xff, v{acc}\nv_cmp_ne_u32 vcc, 0, v{acc}")

def fswz(dst, i, t):
    g(f"""v_lshrrev_b32 v{t}, 1, v{i}
          v_xor_b32 v{dst}, v{t}, v{i}
          v_and_b32 v{dst}, 4, v{dst}
          v_and_or_b32 v{dst}, v{i}, 2, v{dst}
          v_bfe_u32 v{t}, v{i}, 3, 1
          v_or_b32 v{dst}, v{dst}, v{t}""")

def sum_groups(base, n):
    step = 1
    while step < n:
        for a in range(0, n - step, 2 * step):
            g(f"v_pk_add_f32 {vr(base+4*a,2)}, {vr(base+4*a,2)}, {vr(base+4*(a+step),2)}")
            g(f"v_pk_add_f32 {vr(base+4*a+2,2)}, {vr(base+4*a+2,2)}, {vr(base+4*(a+step)+2,2)}")
        step *= 2

def red16(regs, full=True):
    for mod in ("row_ror:4", "row_ror:8"):
        g("s_nop 1")
        for r in regs: g(f"v_add_f32_dpp v{r}, v{r}, v{r} {mod} {DPPM}")
    for sw in (("v_permlane16_swap_b32", "v_permlane32_swap_b32") if full else ("v_permlane16_swap_b32",)):
        for r in regs: g(f"v_mov_b32 v{r+1}, v{r}")
        g("s_nop 1")
        for r in regs: g(f"{sw} v{r}, v{r+1}")
        for r in regs: g(f"v_add_f32 v{r}, v{r}, v{r+1}")

def global_max(dst, t0):
    g(f"""v_max_f32 v{dst}, v{t0}, v{t0+1}""")
    for mod in ("quad_perm:[1,0,3,2]", "quad_perm:[2,3,0,1]", "row_half_mirror", "row_mirror"):
        g(f"s_nop 1\nv_max_f32_dpp v{dst}, v{dst}, v{dst} {mod} {DPPM}")
    for sw in ("v_permlane16_swap_b32", "v_permlane32_swap_b32"):
        g(f"v_mov_b32 v{dst+1}, v{dst}\ns_nop 1\n{sw} v{dst}, v{dst+1}\nv_max_f32 v{dst}, v{dst}, v{dst+1}")

def mfma(d, a, b, first):
    g(f"v_mfma_f32_16x16x32_bf16 {vr(d,4)}, {vr(a,4)}, {vr(b,4)}, {'0' if first else vr(d,4)}")

K = NAME + "_kernel"
g(f"""s_load_dwordx16 s[16:31], s[0:1], 0
      s_load_dwordx8 s[32:39], s[0:1], 64
      s_cmp_ge_u32 s{sWG}, 256
      s_cbranch_scc1 L_END
      v_lshrrev_b32 v{VT}, 6, v0
      v_and_b32 v{LANE}, 63, v0
      v_readfirstlane_b32 s{sWV}, v{VT}
      v_mov_b32 v{VZ}, 0
      v_lshrrev_b32 v{vKG}, 4, v{LANE}
      s_cmp_eq_u32 s{sWV}, 7
      s_cbranch_scc0 L_nopf
      s_getpc_b64 s[44:45]
      L_pc:
      s_sub_u32 s44, s44, L_pc-{K}
      s_subb_u32 s45, s45, 0
      s_and_b32 s41, s{sWG}, 0xf8
      v_add_u32 v10, s41, v{LANE}
      v_lshlrev_b32 v10, 7, v10
      v_cmp_gt_u32 vcc, L_CODE_END-{K}, v10
      s_and_b64 exec, vcc, 0xff
      s_cbranch_execz L_nopf2
      global_load_dword v159, v10, s[44:45]
      L_nopf2:
      s_mov_b64 exec, -1
      L_nopf:
      v_mov_b32 v{VONE}, 1
      v_and_b32 v{vN}, 15, v{LANE}
      s_and_b32 s{sXCD}, s{sWG}, 7
      s_lshr_b32 s{sSLOT}, s{sWG}, 3
      s_lshr_b32 s{sHF}, s{sSLOT}, 3
      s_lshl_b32 s{sJ}, s{sXCD}, 2
      s_add_u32 s{sHF}, s{sHF}, s{sJ}
      s_and_b32 s{sJ}, s{sSLOT}, 7
      s_mov_b32 s{sPLO}, 0x05040100
      s_mov_b32 s{sPHI}, 0x07060302""")
if OPT["ts"] or OPT["padat"] >= 0:
    g(f"v_mov_b32 v{VTS}, 0")
    stamp(0)
if OPT["pad"]:
    g(f"s_memrealtime vcc\ns_waitcnt lgkmcnt(0)\nv_mov_b32 v{VTS}, vcc_lo")
g(f"""s_cmp_ge_u32 s{sWV}, 6
      s_cbranch_scc1 L_OTH
      s_setprio 2
      v_lshlrev_b32 v24, 16, v{vKG}
      v_lshl_add_u32 v24, v{vN}, 3, v24       ; + n*8
      v_mul_u32_u24 v6, 20, v{LANE}
      s_lshr_b32 s40, s{sXCD if OPT["remap"] else sJ}, 1   ; mq
      s_mul_i32 s40, s40, 160
      s_lshl_b32 s41, s{sWV}, 5
      s_add_u32 s40, s40, s41
      s_lshl_b32 s41, s40, 13                 ; row0*8192
      {f"s_lshl_b32 s42, s{sSLOT}, 7" if OPT["remap"] else f"s_lshl_b32 s42, s{sHF}, 8"}
      s_add_u32 s41, s41, s42
      s_and_b32 s42, s{sXCD if OPT["remap"] else sJ}, 1
      s_lshl_b32 s42, s42, {12 if OPT["remap"] else 7}
      s_add_u32 s41, s41, s42                 ; w_q soffset
      s_mov_b32 s46, 5242880
      s_mov_b32 s47, 0x20000
      s_mov_b32 s{SR+2}, 1280
      s_mov_b32 s{SR+3}, 0x20000
      s_cmp_eq_u32 s{sWV}, 5
      s_cbranch_scc0 L_A
      s_setprio 3
      s_waitcnt lgkmcnt(0)
      s_mov_b32 s{SR}, s{P_X}
      s_mov_b32 s{SR+1}, s{P_X+1}
      buffer_load_dwordx4 v[8:11], v6, {sr(SR,4)}, 0 offen
      buffer_load_dword v12, v6, {sr(SR,4)}, 0 offen offset:16
      s_barrier
      s_branch L_LN""")
g.label("L_A")
g(f"""s_waitcnt lgkmcnt(0)
      s_mov_b32 s44, s{P_WQ}
      s_mov_b32 s45, s{P_WQ+1}
      s_nop 1""")
load_block(32, 24, 44, 41, 42, 8192)
g("s_barrier")
lds_inc(F_QI)
srd(WS, P_WS, WS_REC)
g(f"""s_lshl_b32 s40, s40, 1
      v_lshlrev_b32 v112, 4, v{vKG}
      v_add_u32 v112, s40, v112
      v_lshlrev_b32 v113, 4, v{vN}
      s_lshl_b32 s40, s{sWV}, 8
      v_add_u32 v113, s40, v113
      s_branch L_A_q""")
g.label("L_LN")
srd(WS, P_WS, WS_REC)
g(f"v_add_u32 v6, {XNL}, v6\ns_waitcnt vmcnt(0)")
stamp(16)
U, E, Dd = 32, 44, 56
for k in range(5):
    g(f"v_lshlrev_b32 v{U+2*k}, 16, v{8+k}\nv_and_b32 v{U+2*k+1}, 0xffff0000, v{8+k}")
g(f"""v_pk_add_f32 v[14:15], {vr(U,2)}, {vr(U+2,2)}
      v_pk_add_f32 v[16:17], {vr(U+4,2)}, {vr(U+6,2)}
      v_pk_add_f32 v[14:15], v[14:15], {vr(U+8,2)}
      v_pk_add_f32 v[14:15], v[14:15], v[16:17]
      v_add_f32 v14, v14, v15""")
wave_sum(14, 40)
g(f"""s_nop 1
      v_mov_b32 v18, {hex(f32(-1.0/640))}
      v_mul_f32 v18, s40, v18                 ; -mean
      v_mov_b32 v19, v18""")
for k in range(5): g(f"v_pk_add_f32 {vr(E+2*k,2)}, {vr(U+2*k,2)}, v[18:19]")
g(f"v_pk_mul_f32 v[14:15], {vr(E,2)}, {vr(E,2)}")
for k in range(1, 5): g(f"v_pk_fma_f32 v[14:15], {vr(E+2*k,2)}, {vr(E+2*k,2)}, v[14:15]")
g(f"""v_cvt_pk_bf16_f32 v20, v18, v18
      v_add_f32 v14, v14, v15
      v_and_b32 v20, 0xffff0000, v20
      v_mov_b32 v21, v20""")
fill = [f"v_pk_add_f32 {vr(E+2*k,2)}, {vr(U+2*k,2)}, v[20:21]" for k in range(5)]
fill += [f"v_cvt_pk_bf16_f32 v{8+k}, v{E+2*k}, v{E+2*k+1}" for k in range(5)]
fill += [x for k in range(5) for x in (f"v_lshlrev_b32 v{Dd+2*k}, 16, v{8+k}", f"v_and_b32 v{Dd+2*k+1}, 0xffff0000, v{8+k}")]
steps = [f"v_add_f32_dpp v14, v14, v14 {m} {DPPM}" for m in ("quad_perm:[1,0,3,2]", "quad_perm:[2,3,0,1]", "row_half_mirror", "row_mirror")]
steps += ["v_add_f32_dpp v14, v14, v14 row_bcast:15 row_mask:0xa bank_mask:0xf", "v_add_f32_dpp v14, v14, v14 row_bcast:31 row_mask:0xc bank_mask:0xf", "v_readlane_b32 s42, v14, 63"]
for st_ in steps:
    g(st_); g(fill.pop(0)); g(fill.pop(0))
g(f"""v_mov_b32 v22, {hex(f32(1.0/640))}
      v_mul_f32 v22, s42, v22""")
rne(22)
g(f"v_add_f32 v22, {hex(f32(1e-5))}, v22")
rne(22)
g("v_sqrt_f32 v22, v22"); g(fill.pop(0))
rne(22)
g("v_rcp_f32 v22, v22")
while fill: g(fill.pop(0))
g("v_mov_b32 v23, v22")
for k in range(5): g(f"v_pk_mul_f32 {vr(Dd+2*k,2)}, {vr(Dd+2*k,2)}, v[22:23]")
for k in range(5): g(f"v_cvt_pk_bf16_f32 v{8+k}, v{Dd+2*k}, v{Dd+2*k+1}")
g(f"""ds_write2_b32 v6, v8, v9 offset0:0 offset1:1
      ds_write2_b32 v6, v10, v11 offset0:2 offset1:3
      ds_write_b32 v6, v12 offset:16
      ds_write_b32 v{VZ}, v{VONE} offset:{F_XN}""")
stamp(17)
g("s_branch L_A_q")
g.label("L_OTH")
if OPT["l2q"]: g(f"v_lshlrev_b32 v152, 4, v{vN}\nv_lshl_add_u32 v152, v{vKG}, 11, v152")
g(f"""s_cmp_eq_u32 s{sWV}, 6
      s_cbranch_scc0 L_noinit
      v_lshlrev_b32 v8, 2, v{LANE}
      ds_write_b32 v8, v{VZ}
      s_waitcnt lgkmcnt(0)
      L_noinit:
      s_cmp_eq_u32 s{sWV}, 9
      s_cbranch_scc1 L_G9
      s_barrier
      {f"s_cmp_eq_u32 s{sWV}, 6" if OPT["uk6"] else ""}
      {"s_cbranch_scc1 L_FFN" if OPT["uk6"] else ""}
      s_cmp_lt_u32 s{sWV}, 8
      s_cbranch_scc0 L_OTH2
      s_waitcnt lgkmcnt(0)""")
srd(WS, P_WS, WS_REC)
if OPT["tlb"]:
    g(f"""s_cmp_eq_u32 s{sWV}, 7
          s_cbranch_scc0 L_A_q
          s_and_b32 s40, s{sSLOT}, 7
          s_lshl_b32 s40, s40, 6
          s_lshr_b32 s41, s{sSLOT}, 3             ; 0..3
          s_lshl_b32 s42, s41, 20
          s_add_u32 s42, s42, s40
          s_and_b32 s43, s41, 1
          s_lshl_b32 s43, s43, 20
          s_add_u32 s43, s43, s40
          s_lshl_b32 s44, s{sXCD}, 21
          s_add_u32 s44, s44, s43
          s_add_u32 s45, s40, 0x400000
          s_add_u32 s46, s40, 0x200000
          s_add_u32 s47, s43, 0x400000""")
    if OPT["tlb"] == 2: lds_wait(F_XN, 1, 41, sleep=1)
    if OPT["tlb"] in (1, 3):
        g(f"""s_load_dword s52, s[{P_KV}:{P_KV+1}], s44
          s_load_dword s53, s[{P_WUK}:{P_WUK+1}], s42
          s_load_dword s54, s[{P_W1}:{P_W1+1}], s43
          s_load_dword s55, s[{P_W2}:{P_W2+1}], s43
          s_load_dword s60, s[{P_W1}:{P_W1+1}], s46
          s_load_dword s61, s[{P_W2}:{P_W2+1}], s46""")
    if OPT["tlb"] == 3: lds_wait(F_XN, 1, 41, sleep=1)
    g(f"""s_load_dword s56, s[{P_WS}:{P_WS+1}], s42
          s_load_dword s57, s[{P_WUV}:{P_WUV+1}], s42
          s_load_dword s58, s[{P_WO}:{P_WO+1}], s42
          s_load_dword s59, s[{P_WO}:{P_WO+1}], s45
          s_load_dword s62, s[{P_WS}:{P_WS+1}], s47
          s_load_dword s63, s[{P_OUT}:{P_OUT+1}], 0
          s_waitcnt lgkmcnt(0)""")
g("s_branch L_A_q")
g.label("L_OTH2")
g(f"""      s_cmp_eq_u32 s{sWV}, 9
      s_cbranch_scc1 L_G9
      s_cmp_eq_u32 s{sWV}, 11
      s_cbranch_scc1 L_FFN""")
g(f"v_lshrrev_b32 v32, 3, v{LANE}")
fswz(33, 32, 34)
g(f"""v_and_b32 v34, 7, v{LANE}
      v_xor_b32 v33, v33, v34
      v_lshlrev_b32 v33, 4, v33
      v_lshl_add_u32 v36, v32, 10, v33
      s_bfe_u32 s43, s{sWV}, 0x10001
      s_and_b32 s40, s43, 1
      s_mul_i32 s40, s40, 80
      v_xor_b32 v36, s40, v36
      s_lshr_b32 s41, s{sSLOT}, 1""")
if OPT["ksmap"] == 0:
    g(f"s_lshl_b32 s41, s41, 3\ns_add_u32 s41, s41, s{sXCD}             ; ks")
else:
    g(f"s_lshl_b32 s42, s{sXCD}, 4\ns_add_u32 s41, s41, s42             ; ks")
g(f"""s_mul_i32 s51, s41, {OPT["rot"]}
      s_add_u32 s51, s51, s43
      s_lshl_b32 s51, s51, 13
      s_and_b32 s51, s51, 0x1ffff
      s_lshl_b32 s52, s41, 17                 ; ks*128KB
      s_add_u32 s41, s52, s51
      s_lshl_b32 s42, s43, 10
      s_add_u32 s42, s42, {KV}
      s_waitcnt lgkmcnt(0)""")
srd(44, P_KV, 16777216)
srd(WS, P_WS, WS_REC)
if OPT["kvt"]:
    n = OPT["kvt"]; step = 131072 // n
    g(f"s_lshl_b32 s49, s43, 16\ns_add_u32 s49, s49, s52")
    for k in range(n // 2):
        g(f"s_add_u32 s50, s49, {k*step}\ns_load_dword s{56+(k&7)}, s[{P_KV}:{P_KV+1}], s50")
if OPT["vt"]:
    lds_wait(F_QI, 5, 40)
    g(f"""s_mov_b64 exec, 1
          buffer_load_dword v40, v{VZ}, {sr(44,4)}, s41 offen {pol('pkv')}
          s_mov_b64 exec, -1""")
if OPT["gate"] >= 20: lds_wait(F_QP, 1, 40)
elif OPT["gate"]:
    lds_wait(F_WQ if OPT["gate"] < 10 else F_Q, OPT["gate"] % 10, 40, sleep=1)
stamp(8)
NI = OPT["inflight"]
assert 1 <= NI <= 32
g(f"""s_lshl_b32 s48, s43, 2
      v_mov_b32 v37, s48
      s_mov_b32 s43, 0""")
def ld_loop(lab, NI, end):
    g.label(lab)
    for k in range(16):
        cb, hi = k & 7, k >> 3
        g(f"s_add_u32 m0, s42, {cb*(16384-128) + hi*2048}")
        if k == 8: g(f"s_add_u32 s51, s51, {2*8192}\ns_and_b32 s51, s51, 0x1ffff\ns_add_u32 s41, s52, s51")
        g(f"s_waitcnt vmcnt({NI-1})")
        if k == (NI - 1) % 16:
            g(f"""s_sub_u32 s48, s43, {(NI - 1) // 16}
                  s_max_i32 s48, s48, 0
                  v_mov_b32 v38, s48
                  ds_write_b32 v37, v38 offset:{F_LA}""")
        g(f"buffer_load_dwordx4 v36, {sr(44,4)}, s41 offen offset:{cb*128} {pol('pkv')} lds")
    g(f"""s_add_u32 s51, s51, {2*8192}
          s_and_b32 s51, s51, 0x1ffff
          s_add_u32 s41, s52, s51
          s_add_u32 s42, s42, {4*1024}
          s_add_u32 s43, s43, 1""")
    if OPT["ts"] == 2:
        g(f"""s_memrealtime vcc
              s_add_u32 s49, s43, 11
              s_mov_b32 m0, s49
              s_waitcnt lgkmcnt(0)
              v_writelane_b32 v{VTS}, vcc_lo, m0""")
    g(f"""s_cmp_lt_u32 s43, {end}
          s_cbranch_scc1 {lab}""")
if OPT["inf2"]:
    ld_loop("L_ld", NI, OPT["split"])
    ld_loop("L_ld2", OPT["inf2"], 4)
else:
    ld_loop("L_ld", NI, 4)
lds_inc(F_ISS)
stamp(1)
g(f"""v_mov_b32 v38, 3
      v_mov_b32 v39, 4
      s_waitcnt vmcnt(16)
      ds_write_b32 v37, v38 offset:{F_LA}
      s_waitcnt vmcnt(0)
      ds_write_b32 v37, v39 offset:{F_LA}""")
stamp(2)
g("s_branch L_G")
g.label("L_FFN")
XF = 8
g("s_waitcnt lgkmcnt(0)")
srd(WS, P_WS, WS_REC)
if OPT["uk6"]: g(f"s_cmp_eq_u32 s{sWV}, 11\ns_cbranch_scc1 L_FFNa")
srd(SR, P_WUK, 4194304)
g(f"""v_xor_b32 v8, v{vN}, v{vKG}
      v_lshlrev_b32 v8, 4, v8
      v_lshl_add_u32 v8, v{vKG}, 13, v8
      v_xor_b32 v9, 64, v8
      v_xor_b32 v10, 128, v8
      v_xor_b32 v11, 192, v8
      s_lshl_b32 s48, s{sCA}, 19
      s_lshl_b32 s49, s{sHA}, 8
      s_add_u32 s48, s48, s49""")
if OPT["ukgate"]: lds_wait(F_WQ, OPT["ukgate"], 40)
else: lds_wait(F_QI, 5, 40)
for u in range(16):
    g(f"s_mov_b32 m0, {QL + u*1024}")
    g(f"s_add_u32 s49, s48, {u*4*8192}")
    g(f"buffer_load_dwordx4 v{8+(u&3)}, {sr(SR,4)}, s49 offen {pol('puk')} lds")
if OPT["uk6"]:
    g("s_branch L_A_q")
    g.label("L_FFNa")
    if OPT["fgate"] == 0: lds_wait(F_QI, 5, 40)
if OPT["fgate"] == 9:
    g("s_waitcnt vmcnt(0)"); land_now()
elif OPT["fgate"] == 8:
    lds_wait(F_QP, 1, 40, sleep=1)
elif OPT["fgate"]:
    lds_wait(F_Q, OPT["fgate"], 40, sleep=1)
if OPT["forder"] == 1: lds_wait(F_ISS, 2, 40, sleep=2)
if OPT["forder"] == 5: lds_wait(F_H3, 8, 40, sleep=2)
if OPT["forder"] == 6: lds_wait(F_STG, 8, 40, sleep=2)
g("s_branch L_FFNb")
FFN_EARLY_END = True
g.label("L_G9")
g(f"""s_setprio 3
      s_waitcnt lgkmcnt(0)
      s_load_dword s40, s[{P_WS}:{P_WS+1}], {EPOCH}
      s_barrier""")
srd(WS, P_WS, WS_REC)
g(f"""v_lshlrev_b32 v8, 4, v{vN}              ; n*16
      s_lshl_b32 s41, s{sHA}, 3
      s_add_u32 s41, s41, s{sCA}
      s_lshl_b32 s41, s41, 8
      s_add_u32 s43, s41, {QAM}""")
if OPT["remap"]:
    g(f"""s_and_b32 s42, s{sXCD}, 1
          s_lshl_b32 s42, s42, 4
          s_lshr_b32 s41, s{sSLOT}, 1
          s_add_u32 s42, s42, s41                 ; hQ
          s_lshl_b32 s42, s42, {QS}
          s_and_b32 s41, s{sXCD}, 6
          s_and_b32 s45, s{sSLOT}, 1
          s_add_u32 s41, s41, s45
          s_lshl_b32 s41, s41, 8""")
else:
    g(f"s_lshl_b32 s42, s{sHF}, {QS}\ns_lshl_b32 s41, s{sJ}, 8")
g(f"""
      s_add_u32 s42, s42, s41
      s_add_u32 s42, s42, {QM}
      s_add_u32 s45, s42, 8192
      v_lshl_add_u32 v7, v{vKG}, 11, v8

      v_mov_b32 v11, 1
      s_waitcnt lgkmcnt(0)
      s_mul_i32 s{sTAG}, s40, 1664525
      s_add_u32 s{sTAG}, s{sTAG}, 1013904223
      v_mov_b32 v10, s{sTAG}
      v_mov_b32 v13, s{sTAG}
      v_mov_b32 v15, s{sTAG}
      ds_write_b64 v{VZ}, v[10:11] offset:{F_TAG}""")
stamp(1)
if OPT["warm"]:
    g(f"""s_and_b32 s46, s{sSLOT}, 1
          s_lshl_b32 s46, s46, {HS-3}
          s_add_u32 s46, s46, s{sXCD}
          s_lshl_b32 s46, s46, 7
          s_add_u32 s46, s46, {HD}
          v_lshlrev_b32 v9, {HS}, v{vN}
          v_and_b32 v16, {min(OPT["hrep"],4)-1}, v{vKG}
          v_lshl_add_u32 v9, v16, 15, v9
          s_add_u32 s46, s46, {LOFF}""")
    lds_wait(F_QI, 5, 40)
    if OPT["fast1"]:
        g(f"""buffer_load_dwordx4 v[16:19], v6, {sr(WS,4)}, s47 offen sc1
              buffer_load_dwordx4 v[16:19], v6, {sr(WS,4)}, s47 offen offset:1024 sc1""")
    NR = OPT["nrep"]
    EXM = {1: "s_mov_b64 exec, 0xffff", 2: "s_mov_b32 exec_hi, 0", 4: "", 8: ""}[NR]
    g(f"""{EXM}
          buffer_load_dwordx4 v[16:19], v7, {sr(WS,4)}, s42 offen sc1
          s_mov_b64 exec, -1
          {f"buffer_load_dwordx4 v[16:19], v7, {sr(WS,4)}, s45 offen sc1" if NR == 8 else ""}
          buffer_load_dwordx4 v[16:19], v8, {sr(WS,4)}, s43 offen sc1
          buffer_load_dword v16, v9, {sr(WS,4)}, s46 offen sc1""")
    if OPT["hrep"] == 8: g(f"s_add_u32 s46, s46, 0x20000\nbuffer_load_dword v16, v9, {sr(WS,4)}, s46 offen sc1")
rr = "\n".join(f"ds_read_b128 {vr(32+4*b,4)}, v8 offset:{REDQ+256*b}" for b in range(5))
if OPT["mg2"]: lds_wait(F_Q, 5, 40, extra=rr)
else:
    lds_wait(F_Q, 5, 40); g(rr); g("s_waitcnt lgkmcnt(0)")
sum_groups(32, 5)
g(f"""v_cvt_pk_bf16_f32 v12, v32, v33
      v_cvt_pk_bf16_f32 v14, v34, v35""")
if OPT["fast1"]:
    g(f"""buffer_store_dwordx4 v[12:15], v6, {sr(WS,4)}, s47 offen
          ds_write_b32 v{VZ}, v{VONE} offset:{F_QP}
          buffer_store_dwordx4 v[12:15], v6, {sr(WS,4)}, s47 offen offset:1024""")
NR = OPT["nrep"]
EXM = {1: "s_mov_b64 exec, 0xffff", 2: "s_mov_b32 exec_hi, 0", 4: "", 8: ""}[NR]
g(f"""{EXM}
      buffer_store_dwordx4 v[12:15], v7, {sr(WS,4)}, s42 offen {"" if OPT["l2q"] else "sc1"}
      ds_write_b32 v{VZ}, v{VONE} offset:{F_QP}
      {f"buffer_store_dwordx4 v[12:15], v7, {sr(WS,4)}, s45 offen {'' if OPT['l2q'] else 'sc1'}" if NR == 8 else ""}""")
QFB = f"buffer_store_dwordx4 v[148:151], v152, {sr(WS,4)}, s70 offen sc1"
if OPT["l2q"]:
    g("""v_mov_b32 v148, v12
         v_mov_b32 v149, v13
         v_mov_b32 v150, v14
         v_mov_b32 v151, v15
         s_mov_b32 s70, s42
         s_mov_b32 s71, s45""")
W1 = (64, QFB) if OPT["l2q"] else None
g("s_mov_b64 exec, 0xffff")
stamp(2)
rr = "\n".join(f"ds_read_b128 {vr(32+4*b,4)}, v8 offset:{REDQA+256*b}" for b in range(8))
if OPT["mg2"]:
    lds_wait(F_QA, 6, 40, watch=W1); lds_wait(F_QA, 8, 40, extra=rr, watch=W1)
else:
    lds_wait(F_QA, 8, 40); g(rr); g("s_waitcnt lgkmcnt(0)")
sum_groups(32, 8)
for r in range(4): g(f"v_mul_f32 v{32+r}, {hex(f32(SCALE))}, v{32+r}")
g(f"""v_cvt_pk_bf16_f32 v12, v32, v33
      v_cvt_pk_bf16_f32 v14, v34, v35
      buffer_store_dwordx4 v[12:15], v8, {sr(WS,4)}, s43 offen sc1
      ds_write_b32 v{VZ}, v{VONE} offset:{F_QAP}
      s_mov_b64 exec, -1
      s_setprio 0""")
stamp(3)
if OPT["uvgate"] < 2: lds_wait(F_H2I if OPT["uvgate"] else F_ISS, 8 if OPT["uvgate"] else 2, 40, sleep=1)
elif OPT["uvgate"] == 3: land_wait(4, 40, 24, sleep=1)
else: g("s_sleep 16")
if OPT["fast1"] and OPT["recl"]:
    g(f"""buffer_store_dwordx4 v[20:23], v6, {sr(WS,4)}, s47 offen sc1
          buffer_store_dwordx4 v[20:23], v6, {sr(WS,4)}, s47 offen offset:1024 sc1""")
g("s_branch L_G_uv9")

g.label("L_A_q")
g("s_setprio 2")
g(f"""s_and_b32 s40, s{sSLOT}, 1              ; g
      s_lshl_b32 s41, s40, 4
      s_lshl_b32 s42, s{sWV}, 1
      s_add_u32 s41, s41, s42                 ; 16g+2w
      s_lshl_b32 s41, s41, 11
      s_add_u32 s20, s41, {QAM}
      s_lshr_b32 s21, s{sSLOT}, 1             ; mi 0..15
      s_lshl_b32 s42, s40, 7                  ; 16g*8
      s_add_u32 s42, s42, s{sWV}
      s_lshl_b32 s42, s42, 3
      s_add_u32 s42, s42, s{sXCD}
      s_lshl_b32 s42, s42, 4
      s_add_u32 s42, s42, s21
      s_lshl_b32 s42, s42, 7
      s_add_u32 s26, s42, {IB}
      s_add_u32 s22, s26, {2*8*8*2048}
      s_lshl_b32 s42, s40, {HS-3}
      s_add_u32 s42, s42, s{sXCD}
      s_lshl_b32 s42, s42, 4
      s_add_u32 s42, s42, s21
      s_lshl_b32 s42, s42, 3
      s_add_u32 s27, s42, {HD}
      s_add_u32 s23, s27, {LOFF}
      s_lshl_b32 s42, s{sHF}, {HS-7}
      s_add_u32 s42, s42, s{sWV}
      s_lshl_b32 s42, s42, 7
      s_add_u32 s31, s42, {HD}
      s_lshl_b32 s42, s{sHF}, 3
      s_add_u32 s42, s42, s{sJ}
      s_lshl_b32 s42, s42, 3
      s_add_u32 s42, s42, s{sWV}              ; (h*8+j)*8+w
      s_lshl_b32 s30, s42, 11
      s_add_u32 s30, s30, {IB}
      s_lshl_b32 s42, s{sHA}, {QS-11}
      s_and_b32 s43, s{sCA}, {0 if OPT["l2q"] else OPT["nrep"]-1}
      s_add_u32 s42, s42, s43
      s_lshl_b32 s42, s42, 3
      s_add_u32 s42, s42, s{sWV}
      s_lshl_b32 s42, s42, 8
      s_add_u32 s42, s42, {QM}
      s_add_u32 s32, s{WS}, s42
      s_addc_u32 s33, s{WS+1}, 0
      s_mov_b32 s25, s42
      s_and_b32 s40, s{sWV}, 1
      s_lshl_b32 s40, s40, 3                  ; 8*dhalf'
      v_xor_b32 v6, s40, v{vN}
      v_lshlrev_b32 v6, 4, v6
      v_lshl_add_u32 v6, v{LANE}, 8, v6       ; row*256 + ...
      v_lshlrev_b32 v10, 2, v{LANE}
      s_lshl_b32 s40, s{sWV}, 8
      v_add_u32 v10, s40, v10
      v_mov_b32 v8, 0
      v_mov_b32 v9, 0""")
W = 80
QKA, PVA = 32, 96
fswz(24, vN, 25)
g(f"""v_xor_b32 v24, v24, v{vKG}
      v_lshlrev_b32 v24, 4, v24
      v_and_b32 v25, 7, v{vN}
      v_lshl_add_u32 v24, v25, 7, v24         ; + (i&7)*128
      v_lshrrev_b32 v25, 3, v{vN}
      v_lshl_add_u32 v24, v25, 10, v24        ; + (i>>3)*1024
      s_lshl_b32 s42, s{sWV}, 11
      s_add_u32 s42, s42, {KV}
      v_add_u32 v160, s42, v24
      v_xor_b32 v161, 64, v160
      v_add_u32 v162, 0x10000, v160
      v_add_u32 v163, 0x10000, v161
      v_lshrrev_b32 v26, 2, v{LANE}           ; i16""")
fswz(24, 26, 25)
g(f"""s_and_b32 s42, s{sWV}, 3
      s_lshl_b32 s42, s42, 1
      v_bfe_u32 v25, v{LANE}, 1, 1
      v_or_b32 v25, s42, v25                  ; xi = 2(w&3) + (c'>>1)
      v_xor_b32 v24, v24, v25
      v_lshlrev_b32 v24, 4, v24
      v_and_b32 v25, 1, v{LANE}
      v_lshl_add_u32 v24, v25, 3, v24
      v_and_b32 v25, 7, v26
      v_lshl_add_u32 v24, v25, 7, v24
      v_lshrrev_b32 v25, 3, v26
      v_lshl_add_u32 v24, v25, 10, v24
      s_lshr_b32 s42, s{sWV}, 2
      s_lshl_b32 s42, s42, 14
      s_add_u32 s42, s42, {KV}
      v_add_u32 v164, s42, v24
      v_add_u32 v165, 0x10000, v164
      v_lshrrev_b32 v24, 1, v{vN}             ; xi
      v_and_b32 v25, 4, v24
      v_lshl_or_b32 v25, v25, 1, v24          ; sigma
      s_lshl_b32 s42, s{sWV}, 1
      v_xor_b32 v25, s42, v25
      v_lshlrev_b32 v25, 4, v25
      v_lshl_add_u32 v25, v24, 8, v25         ; + xi*256
      v_lshl_add_u32 v25, v{vKG}, 11, v25     ; + (l>>4)*2048
      v_and_b32 v24, 1, v{LANE}
      v_lshl_add_u32 v28, v24, 3, v25
      v_xor_b32 v29, 16, v28
      v_xor_b32 v30, v{vN}, v{vKG}
      v_lshlrev_b32 v30, 4, v30
      v_lshl_add_u32 v30, v{vKG}, 8, v30
      v_xor_b32 v31, {12*16}, v30             ; odd s
      v_lshlrev_b32 v166, 4, v{LANE}          ; lane*16""")
g(f"s_cmp_ge_u32 s{sWV}, 5\ns_cbranch_scc1 L_A_q2")
for p in range(4):
    g(f"s_waitcnt vmcnt({6-2*p})")
    if p == 0 and (OPT['ukgate'] or 0 < OPT['gate'] < 10): lds_inc(F_WQ)
    e = 2 * p
    for d in range(2):
        g(f"v_perm_b32 v{48+8*d+p}, v{32+2*(e+1)+d}, v{32+2*e+d}, s{sPLO}")
        g(f"v_perm_b32 v{48+8*d+4+p}, v{32+2*(e+1)+d}, v{32+2*e+d}, s{sPHI}")
stamp(18)
lds_wait(F_XN, 1, 19, extra=f"ds_read_b128 v[116:119], v112 offset:{XNL}")
for t in range(4): mfma(64 + 4 * t, 116, 48 + 4 * t, True)
g(f"""s_nop 6
      v_mov_b32 v65, v68
      v_mov_b32 v66, v72
      v_mov_b32 v67, v76
      s_mov_b64 exec, 0xffff
      ds_write_b128 v113, v[64:67] offset:{REDQ}
      s_mov_b64 exec, 1
      ds_add_u32 v{VZ}, v{VONE} offset:{F_Q}
      s_mov_b64 exec, -1""")
g.label("L_A_q2")
stamp(2)
get_tag(7)
g(f"s_lshl_b32 s18, s{sTAG}, 5              ; 32*TAG")
if OPT["uk6"]:
    g(f"""s_cmp_eq_u32 s{sWV}, 6
          s_cbranch_scc0 L_nouk
          s_waitcnt vmcnt(0)
          ds_write_b32 v{VZ}, v{VONE} offset:{F_UK}""")
    stamp(17)
    g.label("L_nouk")
def wreads():
    for e in range(8):
        if e: g(f"v_xor_b32 v7, {e*16}, v6")
        g(f"ds_read_b128 {vr(W+4*e,4)}, v{6 if e == 0 else 7} offset:{QL}")
lds_wait(F_QP, 1, 19, sleep=1)
if OPT["d1"]: g(f"s_sleep {OPT['d1']}")
g(f"""ds_read_b32 v{VT}, v{VZ} offset:{F_UK}
      s_waitcnt lgkmcnt(0)
      v_readfirstlane_b32 s24, v{VT}
      s_nop 0
      s_cmp_eq_u32 s24, 0
      s_cbranch_scc1 L_now""")
wreads()
g.label("L_now")
stamp(3)
L, Lo = g.nl("h1"), g.nl("h1o")
if OPT["l2q"]:
    Lf, Lv = g.nl("h1f"), g.nl("h1v")
    g(f"s_mov_b32 s{sCNT}, {LIM_MEM}\ns_branch {Lf}")
    g.label(L)
    g(f"s_cmp_le_u32 s{sCNT}, {LIM_MEM-OPT['l2q']}\ns_cbranch_scc1 {Lv}\ns_sleep {OPT['bk1']}")
    if OPT["bk1b"]:
        Lb = g.nl("h1b")
        g(f"s_cmp_gt_u32 s{sCNT}, {LIM_MEM-4}\ns_cbranch_scc1 {Lb}\ns_sleep {OPT['bk1b']}\n{Lb}:")
    g.label(Lf)
    for k in range(4):
        g(f"s_load_dwordx16 {sr(36+16*k,16)}, s[32:33], {64*k}")
    g(f"""s_add_u32 s32, s32, 2048
          s_addc_u32 s33, s33, 0
          s_sub_u32 s{sCNT}, s{sCNT}, 1""")
else:
    g(f"s_mov_b32 s{sCNT}, {LIM_MEM}")
    g.label(L)
    for k in range(4):
        g(f"s_load_dwordx16 {sr(36+16*k,16)}, s[32:33], {64*k} glc")
    g(f"""s_sub_u32 s{sCNT}, s{sCNT}, 1
          s_cbranch_scc1 {Lo}""")
g(f"""s_waitcnt lgkmcnt(0)
      s_cmp_eq_u32 s99, s{sTAG}
      s_cbranch_scc0 {L}
      s_add_u32 s19, s37, s39""")
for k in range(2, 32):
    g(f"s_add_u32 s19, s19, s{37+2*k}")
g(f"s_cmp_eq_u32 s19, s18\ns_cbranch_scc0 {L}")
g.label(Lo)
H1V, H1O = (Lv, Lo) if OPT["l2q"] else (None, None)
cnt(23, sCNT)
stamp(1)
g(f"""s_cmp_eq_u32 s24, 0
      s_cbranch_scc0 L_havew""")
lds_wait(F_UK, 1, 19)
wreads()
g.label("L_havew")
for k in range(32):
    if k % 4 == 0: g(f"s_waitcnt lgkmcnt({7 - k//4})")
    g(f"v_dot2c_f32_bf16 v{8+(k&1)}, s{36+2*k}, v{W+k}")
g(f"""s_nop 2
      v_add_f32 v8, v8, v9
      ds_write_b32 v10, v8 offset:{REDQA}""")
lds_inc(F_QA)
stamp(4)
def qka_reads():
    for s in range(16):
        cb = s >> 1
        a = 160 + (s & 1) + (2 if cb >= 4 else 0)
        g(f"ds_read_b128 {vr(QKA+4*s,4)}, v{a} offset:{(cb&3)*16384}")
def pva_reads(u):
    for i in range(4):
        for hh in range(2):
            T = 2 * u + hh
            g(f"ds_read_b64_tr_b16 {vr(PVA+16*i+4*u+2*hh,2)}, v{164+(i>>1)} offset:{(i&1)*32768+T*2048}")
h2_loads = "\n".join(f"buffer_load_dwordx4 {vr(8+4*n,4)}, v{VL16}, {sr(WS,4)}, s20 offen offset:{1024*n} sc1" for n in range(4))
g(f"""s_lshr_b32 s42, s{sWV}, 1
      s_lshl_b32 s48, s42, 2
      s_lshl_b32 s48, 1, s48
      s_add_u32 s49, s48, 0x10000
      s_mov_b32 s50, {hex(f32(OPT["rng"]))}
      s_lshl_b32 s42, s42, 10
      s_and_b32 s43, s{sWV}, 1
      s_lshl_b32 s43, s43, 3
      s_add_u32 s42, s42, s43
      v_add_u32 v7, s42, v{VL16}
      v_add_u32 v28, {QL}, v28
      v_add_u32 v29, {QL}, v29
      v_add_u32 v26, 8192, v28
      v_add_u32 v27, 8192, v29
      s_and_b32 s45, s{sTAG}, 1
      s_mul_i32 s45, s45, 0x55555555
      s_and_b32 s44, s{sTAG}, 0xaaaaaaaa
      s_or_b32 s45, s45, s44
      s_mov_b32 s44, 0x00010001""")
lds_wait(F_QAP, 1, 42)
if OPT["d2"]: g(f"s_sleep {OPT['d2']}")
def h2_issue(lv):
    if OPT["h2land"] == lv:
        g(h2_loads)
        if OPT['uvgate'] == 1: lds_inc(F_H2I)
        stamp(5)
h2_issue(0)
land_wait(2, 42, 24, sleep=1)
h2_issue(2)
pva_reads(0); pva_reads(1)
land_wait(3, 42, 24, sleep=1)
h2_issue(3)
pva_reads(2)
g(f"s_cmp_lt_u32 s{sWV}, 6\ns_cbranch_scc1 L_qka")
land_wait(4, 42, 24)
g.label("L_qka")
qka_reads()
stamp(6)
L, Lo = g.nl("h2c"), g.nl("h2co")
g(f"s_mov_b32 s43, {LIM_MEM}")
g.label(L)
g("s_waitcnt vmcnt(0)")
tagcheck([9, 11, 13, 15, 17, 19, 21, 23], 24)
g(f"""s_cbranch_vccz {Lo}
      s_sub_u32 s43, s43, 1
      s_cbranch_scc1 {Lo}
      s_sleep {OPT["bk2"]}
      s_mov_b64 exec, vcc""")
g(h2_loads)
g(f"s_mov_b64 exec, -1\ns_branch {L}")
g.label(Lo)
cnt(24, 43)
stamp(7)
for n in range(4):
    g(f"ds_write2_b32 v{[28, 26, 29, 27][n]}, v{8+4*n}, v{10+4*n} offset0:0 offset1:1")
lds_inc(F_STG)
def bread(s): return f"ds_read_b128 {vr(8+4*(s&3),4)}, v{30+(s&1)} offset:{QL+s*1024}"
if OPT["mg4"]: lds_wait(F_STG, 8, 42, extra="\n".join(bread(s) for s in range(4)))
else: lds_wait(F_STG, 8, 42)
stamp(8)
if not OPT["mg4"]: g("\n".join(bread(s) for s in range(4)))
SA = 24
for s in range(16):
    g(f"s_waitcnt lgkmcnt({min(3, 15-s)})")
    mfma(SA, QKA + 4 * s, 8 + 4 * (s & 3), s == 0)
    if s + 4 < 16: g(bread(s + 4))
VM = 10
PF, OA = 32, 48
def pread(u): return f"ds_read_b128 {vr(PF+4*u,4)}, v{VL16} offset:{PL+1024*u}"
g("s_nop 7")
for r in range(4): g(f"v_exp_f32 v{12+r}, v{SA+r}")
g(f"""v_max3_f32 v9, v{SA}, v{SA+1}, v{SA+2}
      v_cvt_pk_bf16_f32 v16, v12, v13
      v_cvt_pk_bf16_f32 v17, v14, v15
      v_max_f32 v9, v9, v{SA+3}
      ds_write_b64 v7, v[16:17] offset:{PL}
      v_cmp_nle_f32 vcc, abs(v9), s50
      s_cmp_lg_u64 vcc, 0
      s_cselect_b32 s48, s49, s48
      s_mov_b64 exec, 1
      v_mov_b32 v8, s48
      ds_add_u32 v{VZ}, v8 offset:{F_PC}
      s_mov_b64 exec, -1""")
pva_reads(3)
stamp(15)
TP, IBV = 80, 84
fill = [f"v_lshrrev_b32 v12, 3, v{vN}",
        f"v_lshl_add_u32 v12, v{vKG}, 2, v12      ; head = 4q + (j>>3)",
        f"v_lshlrev_b32 v{IBV}, 17, v12",
        f"v_and_b32 v12, 7, v{vN}",
        f"v_lshl_add_u32 v{IBV}, v12, 4, v{IBV}",
        f"v_and_b32 v12, 3, v{LANE}",
        f"v_lshlrev_b32 v12, 3, v12",
        f"v_lshrrev_b32 v12, v12, s45",
        f"v_and_b32 v13, 0xff, v12", f"v_lshlrev_b32 v12, 15, v13", f"v_or_b32 v12, v12, v13"]
for d in range(4): fill += [f"v_lshrrev_b32 v13, {2*d}, v12", f"v_and_b32 v{TP+d}, s44, v13"]
S1 = 2
for _ in range(3): g(fill.pop(0))
if OPT["mg3"]: pc_wait(0xff, 0x22, 42, 48, extra="\n".join(pread(u) for u in range(S1)))
else:
    pc_wait(0xff, 0x22, 42, 48)
    g("\n".join(pread(u) for u in range(S1)))
for u in range(S1):
    g(f"s_waitcnt lgkmcnt({S1-1-u})")
    for i in range(4):
        mfma(OA + 4 * i, PF + 4 * u, PVA + 16 * i + 4 * u, u == 0)
        for _ in range(2): g(fill.pop(0))
assert not fill
if OPT["mg3"]: pc_wait(0xffff, 0x2222, 42, 48, extra="\n".join(pread(u) for u in range(S1, 4)))
else:
    pc_wait(0xffff, 0x2222, 42, 48)
    g("\n".join(pread(u) for u in range(S1, 4)))
g(f"s_cmp_lg_u32 s42, 0x2222\ns_cbranch_scc1 L_slow")
stamp(9)
for u in range(S1, 4):
    g(f"s_waitcnt lgkmcnt({3-u})")
    for i in range(4): mfma(OA + 4 * i, PF + 4 * u, PVA + 16 * i + 4 * u, u == 0)
g.label("L_pv2")
GR = 64
g("s_nop 6")
for a in range(2):
    A0, B0, T0 = GR + 4 * a, GR + 4 * a + 2, 72
    for d in range(2):
        g(f"v_perm_b32 v{A0+d}, v{OA+8*d+4+2*a}, v{OA+8*d+2*a}, s{sPHI}")
        g(f"v_perm_b32 v{B0+d}, v{OA+8*d+4+2*a+1}, v{OA+8*d+2*a+1}, s{sPHI}")
    g("s_nop 0")
    for d in range(2): g(f"v_mov_b32_dpp v{T0+d}, v{A0+d} row_ror:8 {DPPM}")
    for d in range(2): g(f"v_mov_b32_dpp v{A0+d}, v{B0+d} row_ror:8 row_mask:0xf bank_mask:0xc")
    for d in range(2): g(f"v_mov_b32_dpp v{B0+d}, v{T0+d} quad_perm:[0,1,2,3] row_mask:0xf bank_mask:0x3")
    for d in range(4): g(f"v_add_u32 v{A0+d}, s44, v{A0+d}")
    for d in range(4): g(f"v_bfi_b32 v{A0+d}, s44, v{TP+d}, v{A0+d}")
    g(f"buffer_store_dwordx4 {vr(A0,4)}, v{IBV}, {sr(WS,4)}, s{26 if a == 0 else 22} offen sc1")
if OPT["wogate"] == 1 or OPT["forder"] == 5 or OPT["hk"]: lds_inc(F_H3)
stamp(10)
if OPT["pr0"]: g("s_setprio 0")
MK = 76
g(f"""v_and_b32 v12, 1, v{LANE}
      v_lshlrev_b32 v12, 4, v12
      v_mov_b32 v13, 0xffff
      v_lshlrev_b32 v13, v12, v13
      v_bfe_u32 v12, v{LANE}, 1, 2""")
for p in range(4):
    g(f"v_cmp_eq_u32 vcc, {p}, v12\ns_nop 1\nv_cndmask_b32 v{MK+p}, v{VZ}, v13, vcc")
g(f"""v_lshlrev_b32 v16, 2, v{vN}
      s_lshl_b32 s42, s{sWV}, 6
      v_add_u32 v16, s42, v16
      v_lshrrev_b32 v17, 3, v{LANE}
      v_lshlrev_b32 v17, 2, v17
      v_add_u32 v17, s42, v17
      v_lshrrev_b32 v18, 3, v{vN}             ; a = j>>3
      s_lshl_b32 s42, s{sWV}, 1
      v_add_u32 v19, s42, v18
      v_mul_u32_u24 v19, 144, v19
      v_and_b32 v20, 7, v{vN}
      v_lshl_add_u32 v19, v20, 4, v19
      v_and_b32 v20, 1, v{vKG}
      v_lshl_add_u32 v19, v20, 3, v19
      v_lshrrev_b32 v20, 1, v{vKG}
      v_cmp_eq_u32 s[46:47], v18, v20
      v_lshlrev_b32 v14, 3, v{LANE}           ; lane*8""")
if OPT["d3"]: g(f"s_sleep {OPT['d3']}")
stamp(22)
IR = 104
ib_loads = f"""buffer_load_dwordx4 {vr(IR,4)}, v{VL16}, {sr(WS,4)}, s30 offen sc1
      buffer_load_dwordx4 {vr(IR+4,4)}, v{VL16}, {sr(WS,4)}, s30 offen offset:1024 sc1"""
def hdr_poll(nm, off, dstoff, flag, after="", mark=False, ap=24):
    L, Lo = g.nl(nm), g.nl(nm + "o")
    g(f"s_mov_b32 s43, {LIM_MEM}")
    if OPT["bkh"]:
        Lf = g.nl(nm + "f")
        g(f"s_branch {Lf}")
    g.label(L)
    if OPT["bkh"]:
        g(f"s_sleep {OPT['bkh']}")
        g.label(Lf)
    g(f"""s_load_dwordx16 s[52:67], s[{ap}:{ap+1}], {off} glc
          s_load_dwordx16 s[68:83], s[{ap}:{ap+1}], {off+64} glc
          s_sub_u32 s43, s43, 1
          s_cbranch_scc1 {Lo}
          s_waitcnt lgkmcnt(0)
          s_add_u32 s19, s53, s55""")
    for k in range(2, 16): g(f"s_add_u32 s19, s19, s{53+2*k}")
    g(f"s_cmp_eq_u32 s19, s18\ns_cbranch_scc0 {L}")
    g.label(Lo)
    g("s_waitcnt lgkmcnt(0)")
    if after: g(after)
    for k in range(16): g(f"v_writelane_b32 v24, s{52+2*k}, {k}")
    g("s_mov_b64 exec, 0xffff")
    if mark:
        g(f"""v_cmp_gt_i32 vcc, 0, v24
              s_cmp_lg_u64 vcc, 0
              s_cselect_b32 s42, 0x101, 1
              v_mov_b32 v25, s42""")
    g(f"""ds_write_b32 v16, v24 offset:{dstoff}
          s_mov_b64 exec, 1
          ds_add_u32 v{VZ}, v{25 if mark else VONE} offset:{flag}
          s_mov_b64 exec, -1""")
g(f"""s_add_u32 s24, s{WS}, s31
      s_addc_u32 s25, s{WS+1}, 0
      s_and_b32 s20, s{sJ}, {OPT["hrep"]-1}
      s_lshl_b32 s20, s20, 15
      s_add_u32 s20, s20, s24
      s_addc_u32 s21, s25, 0
      s_lshl_b32 s18, s{sTAG}, 4""")
for n in range(2):
    for p in range(4): g(f"v_and_b32 v{88+4*n+p}, 0x3f803f80, v{MK+p}")
if OPT["d3a"]: g(f"s_sleep {OPT['d3a']}")
if OPT["pr0"]: g("s_setprio 2")
hdr_poll("h3l", LOFF, LT, F_LT, after=(f"s_sleep {OPT['d3b']}\n" if OPT["d3b"] else "") + ib_loads, mark=True, ap=20)
cnt(25, 43)
stamp(11)
pc_wait(0xff, 8, 42, 43, off=F_LT)
g("s_cmp_lg_u32 s42, 8\ns_cbranch_scc1 L_genw")
g.label("L_genw_ret")
L, Lo = g.nl("h3d"), g.nl("h3do")
g(f"s_mov_b32 s43, {LIM_MEM}")
g.label(L)
g("s_waitcnt vmcnt(0)")
for k in range(8): g(f"v_xor_b32 v{IR+k}, v{IR+k}, v{TP+(k&3)}")
g(f"""v_or3_b32 v{VT}, v{IR}, v{IR+1}, v{IR+2}
      v_or3_b32 v12, v{IR+3}, v{IR+4}, v{IR+5}
      v_or3_b32 v{VT}, v{VT}, v{IR+6}, v{IR+7}
      v_bitop3_b32 v{VT}, v{VT}, v12, s44 bitop3:0xa8
      v_cmp_ne_u32 vcc, 0, v{VT}
      s_cbranch_vccz {Lo}
      s_sub_u32 s43, s43, 1
      s_cbranch_scc1 {Lo}
      s_lshr_b64 s[48:49], vcc, 4
      s_or_b64 vcc, vcc, s[48:49]
      s_lshr_b64 s[48:49], vcc, 2
      s_or_b64 vcc, vcc, s[48:49]
      s_lshr_b64 s[48:49], vcc, 1
      s_or_b64 vcc, vcc, s[48:49]
      s_and_b32 s48, vcc_lo, 0x01010101
      s_and_b32 s49, vcc_hi, 0x01010101
      s_mul_i32 exec_lo, s48, 0xff
      s_mul_i32 exec_hi, s49, 0xff
      s_sleep {OPT["bk3"]}
      {ib_loads}
      s_branch {L}""")
g.label(Lo)
g("s_mov_b64 exec, -1")
cnt(26, 43)
stamp(12)
mfma(96, 88, IR, True)
mfma(96, 92, IR + 4, False)
g(f"""s_nop 7
      v_cvt_pk_bf16_f32 v100, v96, v97
      v_cvt_pk_bf16_f32 v101, v98, v99
      s_mov_b64 exec, s[46:47]
      ds_write_b64 v19, v[100:101] offset:{RIB}
      s_mov_b64 exec, 1
      ds_add_u32 v{VZ}, v{VONE} offset:{F_IB}
      s_mov_b64 exec, -1""")
stamp(13)
g(f"""s_cmp_lt_u32 s{sWG}, 20
      s_cbranch_scc0 L_A_end
      s_lshl_b32 s41, s{sWG}, 14
      s_lshl_b32 s42, s{sWV}, 11
      s_add_u32 s41, s41, s42
      s_add_u32 s41, s41, {SM}
      v_and_b32 v7, 7, v{LANE}
      v_lshlrev_b32 v7, 2, v7
      v_lshrrev_b32 v6, 5, v{LANE}
      v_lshl_add_u32 v7, v6, 1, v7
      v_and_b32 v6, 1, v{vKG}
      v_add_u32 v7, v7, v6
      v_lshlrev_b32 v18, 5, v7
      s_lshl_b32 s42, s{sWV}, 2
      v_add_u32 v6, s42, v18
      v_lshlrev_b32 v7, 1, v7
      s_lshl_b32 s55, s{sWG}, 6""")
tagbytes()
def red8(b):
    g(f"""s_nop 1
          v_permlane32_swap_b32 v{b}, v{b+2}
          v_permlane32_swap_b32 v{b+1}, v{b+3}
          v_pk_add_f32 {vr(b,2)}, {vr(b,2)}, {vr(b+2,2)}
          s_nop 1
          v_permlane16_swap_b32 v{b}, v{b+1}
          v_add_f32 v{b}, v{b}, v{b+1}
          s_nop 1
          v_add_f32_dpp v{b}, v{b}, v{b} row_ror:8 {DPPM}""")
g(f"""s_cmp_eq_u32 s{sWV}, 0
      s_cbranch_scc0 L_fin_s""")
srd(SR, P_X, 1280)
g(f"""buffer_load_ushort v16, v7, {sr(SR,4)}, s55 offen
      s_lshl_b32 s40, s{sWG}, 12
      s_add_u32 s40, s40, {YM}""")
poll_loads("h7", f"""v_mov_b32 v60, s{sTB}
      v_mov_b32 v61, s{sTB+1}
      v_mov_b32 v62, s{sTB+2}
      v_mov_b32 v63, s{sTB+3}
      buffer_load_dwordx4 v[48:51], v{VL16}, {sr(WS,4)}, s40 offen sc1
      buffer_load_dwordx4 v[52:55], v{VL16}, {sr(WS,4)}, s40 offen offset:1024 sc1
      buffer_load_dwordx4 v[56:59], v{VL16}, {sr(WS,4)}, s40 offen offset:2048 sc1
      s_mov_b64 exec, 0xffffff
      buffer_load_dwordx4 v[60:63], v{VL16}, {sr(WS,4)}, s40 offen offset:3072 sc1
      s_mov_b64 exec, -1""", [48, 52, 56, 60], 43, sleep=4, mask=False, b8=True)
sum_groups(48, 4)
red8(48)
rne(48)
g(f"""v_mul_f32 v49, {hex(f32(-math.log2(math.e)))}, v48
      v_exp_f32 v49, v49
      s_nop 0
      v_add_f32 v49, 1.0, v49
      v_rcp_f32 v49, v49
      s_nop 0
      v_mul_f32 v48, v48, v49""")
rne(48)
g("v_lshlrev_b32 v20, 16, v16")
stamp(19)
g.label("L_fin_s")
lds_wait(F_SD, 4 - OPT["w8x3"], 42, sleep=1)
if OPT["d5"]: g(f"s_sleep {OPT['d5']}")
poll_loads("h5", f"""buffer_load_dwordx4 v[32:35], v{VL16}, {sr(WS,4)}, s41 offen sc1
      buffer_load_dwordx4 v[36:39], v{VL16}, {sr(WS,4)}, s41 offen offset:1024 sc1""", [32, 36], 43, sleep=OPT["bk5"], b8=True)
cnt(27, 43)
stamp(20)
sum_groups(32, 2)
red8(32)
g(f"""ds_write_b32 v6, v32 offset:{RFIN}
      s_mov_b64 exec, 1
      ds_add_u32 v{VZ}, v{VONE} offset:{F_FIN}
      s_mov_b64 exec, -1
      s_cmp_eq_u32 s{sWV}, 0
      s_cbranch_scc0 L_A_end""")
srd(44, P_OUT, 1280)
lds_wait(F_FIN, 8, 42, extra=f"ds_read_b128 v[32:35], v18 offset:{RFIN}\nds_read_b128 v[36:39], v18 offset:{RFIN+16}")
sum_groups(32, 2)
g("v_pk_add_f32 v[32:33], v[32:33], v[34:35]\nv_add_f32 v32, v32, v33")
rne(32)
g("v_mul_f32 v32, v32, v48")
rne(32)
g(f"""v_add_f32 v32, v32, v20
      v_cvt_pk_bf16_f32 v32, v32, v32
      buffer_store_short v32, v7, {sr(44,4)}, s55 offen {'sc1' if OPT['osc'] else ''}
      s_cmp_eq_u32 s{sWG}, 0
      s_cbranch_scc0 L_noep
      s_mov_b64 exec, 1
      v_mov_b32 v13, s{sTAG}
      buffer_store_dword v13, v{VZ}, {sr(WS,4)}, 0 offen offset:{EPOCH} sc1""")
g.label("L_noep")
stamp(21)
g.label("L_A_end")
ts_flush()
g("s_endpgm")
if OPT["l2q"]:
    g.label(H1V)
    g(f"""v_and_b32 v11, 31, v{LANE}
          v_lshlrev_b32 v11, 3, v11""")
    poll_loads("h1p", f"buffer_load_dwordx2 v[12:13], v11, {sr(WS,4)}, s25 offen sc1", [13], 19, sleep=2)
    for k in range(32): g(f"v_readlane_b32 s{36+2*k}, v12, {k}")
    g(f"s_nop 1\ns_branch {H1O}")
g.label("L_genw")
hdr_poll("h3m", 0, MLT, F_ML)
lds_wait(F_ML, 8, 42)
g(f"""ds_read_b64 v[24:25], v14 offset:{MLT}
      ds_read_b32 v8, v17 offset:{MLT}
      ds_read_b32 v9, v17 offset:{MLT+32}
      s_waitcnt lgkmcnt(0)""")
global_max(22, 24)
g(f"""v_sub_f32 v8, v8, v22
      v_sub_f32 v9, v9, v22
      v_exp_f32 v8, v8
      v_exp_f32 v9, v9
      s_nop 0
      v_cvt_pk_bf16_f32 v8, v8, v8
      v_cvt_pk_bf16_f32 v9, v9, v9""")
for n in range(2):
    for p in range(4): g(f"v_and_b32 v{88+4*n+p}, v{8+n}, v{MK+p}")
g("s_branch L_genw_ret")
g.label("L_slow")
g(f"""v_mov_b32 v8, v9
      v_lshlrev_b32 v6, 5, v{vN}
      s_lshl_b32 s42, s{sWV}, 2
      v_add_u32 v29, s42, v6
      s_mov_b32 s43, 0x3f803f80
      v_permlane16_swap_b32 v9, v8
      v_max_f32 v9, v9, v8
      v_mov_b32 v8, v9
      s_nop 1
      v_permlane32_swap_b32 v9, v8
      v_max_f32 v9, v9, v8
      s_mov_b64 exec, 0xffff
      ds_write_b32 v29, v9 offset:{RMX}
      s_mov_b64 exec, 1
      ds_add_u32 v{VZ}, v{VONE} offset:{F_MAX}
      s_mov_b64 exec, -1""")
lds_wait(F_MAX, 8, 42, extra=f"ds_read_b128 v[12:15], v6 offset:{RMX}\nds_read_b128 v[16:19], v6 offset:{RMX+16}")
g(f"""v_max3_f32 v{VM}, v12, v13, v14
      v_max3_f32 v16, v15, v16, v17
      v_max3_f32 v{VM}, v{VM}, v18, v19
      v_max_f32 v{VM}, v{VM}, v16""")
for r in range(4): g(f"v_sub_f32 v{SA+r}, v{SA+r}, v{VM}")
for r in range(4): g(f"v_exp_f32 v{SA+r}, v{SA+r}")
g(f"""v_lshlrev_b32 v15, {HS}, v{vN}
      v_cvt_pk_bf16_f32 v12, v{SA}, v{SA+1}
      v_cvt_pk_bf16_f32 v13, v{SA+2}, v{SA+3}
      ds_write_b64 v7, v[12:13] offset:{PL}""")
lds_inc(F_P)
lds_wait(F_P, 8, 42)
g("\n".join(pread(u) for u in range(4)))
g("v_mov_b32 v12, 0\nv_mov_b32 v14, 0\ns_waitcnt lgkmcnt(0)")
for u in range(4):
    for i in range(4):
        mfma(OA + 4 * i, PF + 4 * u, PVA + 16 * i + 4 * u, u == 0)
        g(f"v_dot2c_f32_bf16 v{12+2*(i&1)}, s43, v{PF+4*u+i}")
def l_store(so, va):
    n = OPT["hrep"]
    g({1: "s_mov_b64 exec, 0xffff", 2: "s_mov_b32 exec_hi, 0", 4: "", 8: ""}[n])
    g(f"buffer_store_dwordx2 v[12:13], v{va}, {sr(WS,4)}, s{so} offen sc1")
    if n == 8: g(f"s_add_u32 s{so}, s{so}, 0x20000\nbuffer_store_dwordx2 v[12:13], v{va}, {sr(WS,4)}, s{so} offen sc1")
    g("s_mov_b64 exec, -1")
def lsum():
    g(f"""v_mov_b32 v13, s{sTAG}
          v_mov_b32 v11, s{sTAG}
          s_nop 0
          v_add_f32 v12, v12, v14
          v_mov_b32 v14, v12
          s_nop 1
          v_permlane16_swap_b32 v12, v14
          v_add_f32 v12, v12, v14
          v_mov_b32 v14, v12
          s_nop 1
          v_permlane32_swap_b32 v12, v14
          v_add_f32 v12, v12, v14""")
lsum()
g(f"""v_or_b32 v12, 0x80000000, v12
      s_cmp_eq_u32 s{sWV}, 0
      s_cbranch_scc0 L_pv2
      s_mov_b64 exec, 0xffff
      buffer_store_dwordx2 v[10:11], v15, {sr(WS,4)}, s27 offen sc1
      s_mov_b64 exec, -1
      v_lshl_add_u32 v14, v{vKG}, 15, v15""")
l_store(23, 14)
g("s_branch L_pv2")

KORD = (0, 2, 1, 3)
TH = OPT["gthr"]
def wo_setup():
    g(f"""v_mul_u32_u24 v6, {8*1280}, v{vKG}
          v_lshl_add_u32 v6, v{vN}, 3, v6
          s_lshl_b32 s40, s{sHF}, 7
          s_lshr_b32 s41, s{sJ}, 1
          s_lshl_b32 s41, s41, 5
          s_add_u32 s40, s40, s41
          s_mul_i32 s40, s40, 1280
          s_and_b32 s41, s{sJ}, 1
          s_mul_i32 s41, s41, 640
          s_add_u32 s48, s40, s41""")
    srd(44, P_WO, 5242880)

def wo_gate():
    if OPT["wogate"] == 1: lds_wait(F_H3, 8, 40, sleep=1)
    elif OPT["wogate"] == 2: lds_wait(F_IB, 1, 40, sleep=2)

def h4_setup():
    g(f"""v_and_b32 v31, 7, v{vN}
          v_lshlrev_b32 v29, 7, v31
          v_lshl_add_u32 v29, v{vKG}, 5, v29
          s_lshl_b32 s50, s{sHF}, 2
          s_lshr_b32 s51, s{sJ}, 1
          s_add_u32 s50, s50, s51                 ; p = h*4+dq
          s_lshl_b32 s61, s50, 10
          s_add_u32 s61, s61, {CXM}
          v_lshrrev_b32 v30, 3, v{vN}
          v_lshlrev_b32 v30, 14, v30
          v_lshl_add_u32 v30, v31, 4, v30         ; (n>>3)*16K + (n&7)*16
          v_mov_b32 v31, 0xff
          s_and_b32 s41, s{sJ}, 1
          s_mul_i32 s41, s41, {10*16384}
          s_lshl_b32 s50, s50, 7
          s_add_u32 s50, s50, s41
          s_add_u32 s50, s50, {SM}""")
    tagbytes()

def h4_warm(A, cbks):
    g(f"buffer_load_dwordx4 {vr(A,4)}, v29, {sr(WS,4)}, s61 offen sc1")
    for cbk in cbks:
        g(f"""s_add_u32 s51, s50, {cbk*2*16384}
              buffer_load_dwordx4 {vr(A+4,4)}, v30, {sr(WS,4)}, s51 offen sc1""")

def h4_wait(A, late=""):
    Ls = g.nl("h4s")
    onfail = f"""s_cmp_lg_u32 s43, {LIM_MEM-32}
          s_cbranch_scc1 {Ls}
          {late}
          {Ls}:""" if (OPT["fast4"] and late) else ""
    poll_loads("h4", f"""buffer_load_dwordx4 {vr(A,4)}, v29, {sr(WS,4)}, s61 offen sc1
          buffer_load_dwordx4 {vr(A+4,4)}, v29, {sr(WS,4)}, s61 offen offset:16 sc1""", [A+1, A+3, A+5, A+7], 43, sleep=OPT["bk4"], onfail=onfail)
    g(f"v_mov_b32 v{A+1}, v{A+4}\nv_mov_b32 v{A+3}, v{A+6}\ns_nop 1")

def rl_wait():
    lds_wait(F_RLV, 1, 40, extra=f"ds_read_b32 v28, v{VZ} offset:{RLINV}")

def wo_compute(A, frags, cbks, D):
    for bi, fr in enumerate(frags):
        for t in range(4): mfma(D + 16 * bi + 4 * t, A, fr + 4 * t, True)
    g("s_nop 4" if len(frags) == 1 else "s_nop 0")
    for bi, cbk in enumerate(cbks):
        d = D + 16 * bi
        for t in range(4): g(f"v_pk_add_f32 {vr(d+4*t,2)}, {vr(d+4*t,2)}, {vr(d+4*t+2,2)}")
        for t in range(4): g(f"v_add_f32 v{16+t}, v{d+4*t}, v{d+4*t+1}")
        for t in range(4): g(f"v_mov_b32 v{20+t}, v{16+t}")
        g(f"s_add_u32 s51, s50, {cbk*2*16384}")
        for t in range(4): g(f"v_permlane16_swap_b32 v{16+t}, v{20+t}")
        g("v_pk_add_f32 v[16:17], v[16:17], v[20:21]\nv_pk_add_f32 v[18:19], v[18:19], v[22:23]")
        for t in range(4): g(f"v_mul_f32 v{d+t}, v{16+t}, v28")
        tagput([d, d+1, d+2, d+3], 31)
        g(f"""s_mov_b64 exec, 0xffff
              buffer_store_dwordx4 {vr(d,4)}, v30, {sr(WS,4)}, s51 offen sc1
              s_mov_b64 exec, -1""")
    lds_inc(F_SD)

def b1_gate():
    if OPT["b1gate"]:
        land_flush()
        if OPT['b1gate'] == 9: pc_wait(0xffff, 0x2222, 40, 41, sleep=1)
        else: lds_wait(F_STG, OPT['b1gate'], 40, sleep=2)

g.label("L_G")
if OPT["ldw"]: g(f"s_sleep {OPT['ldw']}")
get_tag(6)
g(f"""s_cmp_eq_u32 s{sWV}, 10
      s_cbranch_scc1 L_G_uv10""")
LD.pending = False
wo_setup(); h4_setup()
if OPT["dec"]: h4_warm(8, [0, 1] + [4] * OPT["w8x3"])
b1_gate()
if OPT["wogate"]: land_flush()
wo_gate()
stamp(4)
load_block(32, 6, 44, 48, 42, 1280, TH)
g("s_add_u32 s49, s48, 128")
load_block(48, 6, 44, 49, 42, 1280, TH)
X3 = OPT["w8x3"]
if X3:
    g("s_add_u32 s49, s48, 512")
    load_block(144, 6, 44, 49, 42, 1280, TH)
land_flush()
def w8_perms():
    g(f"s_waitcnt vmcnt({8+8*X3})")
    perm_block(32, 64, KORD)
    g(f"s_waitcnt vmcnt({8*X3})")
    perm_block(48, 80, KORD)
    if X3:
        g("s_waitcnt vmcnt(0)")
        perm_block(144, 32, KORD)
if not OPT['dec']:
    w8_perms()
    h4_warm(8, [0, 1] + [4] * X3)
stamp(5)
g(f"""v_lshlrev_b32 v16, 3, v{LANE}
""")
g("v_mov_b32 v20, 1.0\nv_mov_b32 v21, 1.0")
lds_wait(F_LT, 1, 40, sleep=1)
g("s_setprio 2")
pc_wait(0xff, 8, 40, 41, off=F_LT, extra=f"ds_read_b64 v[24:25], v16 offset:{LT}")
g("s_cmp_eq_u32 s40, 8\ns_cbranch_scc1 L_unitw")
lds_wait(F_ML, 8, 40)
g(f"ds_read_b64 v[20:21], v16 offset:{MLT}\ns_waitcnt lgkmcnt(0)")
global_max(22, 20)
g(f"""v_sub_f32 v20, v20, v22
      v_sub_f32 v21, v21, v22
      v_exp_f32 v20, v20
      v_exp_f32 v21, v21
      s_nop 0""")
rne(20); rne(21)
g.label("L_unitw")
g("v_mul_f32 v24, abs(v24), v20\nv_fma_f32 v24, abs(v25), v21, v24")
wave_sum(24, 40)
g(f"""s_nop 1
      v_rcp_f32 v24, s40
      s_nop 0
      ds_write_b32 v{VZ}, v24 offset:{RLINV}
      ds_write_b32 v{VZ}, v{VONE} offset:{F_RLV}
      v_mov_b32 v28, v24""")
if OPT["dec"]: w8_perms()
lds_wait(F_IB, 8, 40, sleep=1)
h4_wait(8)
stamp(6)
wo_compute(8, [64, 80] + [32] * X3, [0, 1] + [4] * X3, 96)
stamp(7)
g("s_branch L_G_end")

def uv_loads():
    g(f"""v_lshlrev_b32 v7, 13, v{vKG}
          v_lshl_add_u32 v7, v{vN}, 3, v7
          s_lshl_b32 s56, s{sJ}, 17               ; 16j rows
          s_lshl_b32 s41, s{sHF}, 8
          s_add_u32 s56, s56, s41
          s_sub_u32 s52, s{sWV}, 9                ; colhalf
          s_lshl_b32 s41, s52, 7
          s_add_u32 s56, s56, s41
          s_add_u32 s57, s56, {4*8192}""")
    srd(SR, P_WUV, 4194304)
    b1_gate()
    stamp(4)
    rows = [128 * (e & 3) + 8 * (e >> 2) for e in range(8)]
    load_block(32, 7, SR, 56, 42, 8192, TH, rows)
    load_block(48, 7, SR, 57, 42, 8192, TH, rows)
g.label("L_G_uv10")
g.label("L_G_uv9")
LD.pending = False
uv_loads()
g.label("L_G_uv")
wo_setup(); h4_setup()
g(f"""s_add_u32 s49, s52, 2
      s_mul_i32 s53, s49, {2*16384}
      s_add_u32 s50, s50, s53
      s_lshl_b32 s49, s49, 7
      s_add_u32 s49, s49, s48
      v_and_b32 v7, 7, v{vN}
      v_mul_u32_u24 v8, 144, v{vN}
      v_lshl_add_u32 v8, v{vKG}, 4, v8
      v_lshlrev_b32 v9, 4, v{LANE}
      v_lshrrev_b32 v11, 3, v{vN}
      v_lshlrev_b32 v11, 10, v11
      v_lshl_add_u32 v11, v7, 4, v11          ; (n>>3)*1024 + (n&7)*16
      s_lshl_b32 s40, s{sHF}, 2
      s_lshl_b32 s41, s52, 1
      s_add_u32 s40, s40, s41
      s_lshl_b32 s40, s40, 3
      s_add_u32 s40, s40, s{sJ}
      s_lshl_b32 s40, s40, 7
      s_add_u32 s54, s40, {CXM}""")
if not OPT["wogate"]:
    load_block(64, 6, 44, 49, 42, 1280, TH)
    h4_warm(16, [0])
g(f"""s_cmp_eq_u32 s{sWV}, 9
      s_cbranch_scc0 L_nohd
      s_and_b32 s56, s{sSLOT}, 1
      s_lshl_b32 s56, s56, {HS-3}
      s_add_u32 s56, s56, s{sXCD}
      s_lshl_b32 s56, s56, 4
      s_lshr_b32 s57, s{sSLOT}, 1
      s_add_u32 s56, s56, s57
      s_lshl_b32 s56, s56, 3
      s_add_u32 s56, s56, {HD}
      s_add_u32 s57, s56, {LOFF}
      v_lshlrev_b32 v15, {HS}, v{vN}
      v_lshl_add_u32 v27, v{vKG}, 15, v15
      v_mov_b32 v24, 0
      v_mov_b32 v25, s{sTAG}
      v_mov_b32 v12, 0
      v_mov_b32 v14, 0
      v_mov_b32 v26, v11
      s_mov_b32 s58, 0x3f803f80""")
pc_wait(0xfff, 0x222, 40, 41, sleep=1, watch=W1)
g(f"s_setprio {OPT['hp']}")
pc_wait(0xffff, 0x2222, 40, 41)
g(f"""s_cmp_lg_u32 s40, 0x2222
      s_cbranch_scc1 L_nohd2""")
g("\n".join(f"ds_read_b128 {vr(128+4*u,4)}, v9 offset:{PL+1024*u}" for u in range(4)))
for u in range(4):
    g(f"s_waitcnt lgkmcnt({3-u})")
    for i in range(4): g(f"v_dot2c_f32_bf16 v{12+2*(i&1)}, s58, v{128+4*u+i}")
lsum()
if OPT["hk"]: lds_wait(F_H3, OPT["hk"], 40)
elif OPT["dl"]: g(f"s_sleep {OPT['dl']}")
l_store(57, 27)
g(f"""s_mov_b64 exec, 0xffff
      buffer_store_dwordx2 v[24:25], v15, {sr(WS,4)}, s56 offen sc1
      s_mov_b64 exec, -1""")
stamp(10)
g.label("L_nohd2")
g(f"""v_mov_b32 v11, v26
      s_setprio 0
      {"s_waitcnt vmcnt(2)" if not OPT["wogate"] else ""}""")
def qfb9(both):
    Lq = g.nl("qf")
    t = f"s_cmp_eq_u32 s{sWV}, 9\ns_cbranch_scc0 {Lq}\n{QFB}\n"
    if both and OPT["l2q"] == 8: t += QFB.replace("s70", "s71") + "\n"
    return t + f"{Lq}:"
if OPT["l2q"] and OPT["qcl"] == 2: g(qfb9(True))
g.label("L_nohd")
if OPT["wogate"]:
    wo_gate()
    load_block(64, 6, 44, 49, 42, 1280, TH)
    h4_warm(144, [0])
g("s_waitcnt vmcnt(18)")
perm_block(32, 80)
g("s_waitcnt vmcnt(10)")
perm_block(48, 96)
g(f"v_mov_b32 v61, s{sTAG}\nv_mov_b32 v63, s{sTAG}")
if not OPT["wogate"]:
    g("s_waitcnt vmcnt(0)")
    perm_block(64, 112, KORD)
stamp(5)
pc_wait(0xff, 8, 40, 41, off=F_LT, sleep=2, watch=(48, qfb9(False)) if OPT["l2q"] else None)
if not OPT["dec"]: rl_wait()
g("s_setprio 3")
rr = f"ds_read_b128 v[32:35], v8 offset:{RIB}\nds_read_b128 v[36:39], v8 offset:{RIB+64}"
if OPT["mg1"]: lds_wait(F_IB, 8, 40, extra=rr)
else:
    lds_wait(F_IB, 8, 40); g(rr)
stamp(6)
D = 128
for blk in range(2):
    g(f"s_waitcnt lgkmcnt({1-blk})")
    for t in range(4): mfma(D + 4 * t, 32 + 4 * blk, 80 + 16 * blk + 4 * t, blk == 0)
g("s_nop 4")
for t in range(4): g(f"v_pk_add_f32 {vr(D+4*t,2)}, {vr(D+4*t,2)}, {vr(D+4*t+2,2)}")
for t in range(4): g(f"v_add_f32 v{16+t}, v{D+4*t}, v{D+4*t+1}")
g(f"""s_nop 0
      v_permlane32_swap_b32 v16, v18
      v_permlane32_swap_b32 v17, v19
      v_pk_add_f32 v[16:17], v[16:17], v[18:19]
      v_mov_b32 v18, v16
      v_mov_b32 v19, v17
      s_nop 0
      v_permlane16_swap_b32 v16, v18
      v_permlane16_swap_b32 v17, v19
      v_pk_add_f32 v[16:17], v[16:17], v[18:19]
      v_cvt_pk_bf16_f32 v60, v16, v17
      v_mov_b32 v62, v60
      s_nop 1
      v_permlane32_swap_b32 v60, v62""")
g(f"""s_mov_b64 exec, 0xffff
      buffer_store_dwordx4 v[60:63], v11, {sr(WS,4)}, {"s54 offen" if OPT["fast4"] else "s54 offen sc1"}
      s_mov_b64 exec, -1""")
stamp(7)
if OPT["wogate"]:
    g("s_waitcnt vmcnt(1)")
    perm_block(64, 112, KORD)
if OPT["dec"]: rl_wait()
late = f"s_mov_b64 exec, 0xffff\nbuffer_store_dwordx4 v[60:63], v11, {sr(WS,4)}, s54 offen sc1"
h4_wait(32, late)
stamp(8)
wo_compute(32, [112], [0], 128)
if OPT["fast4"]: g((f"s_sleep {OPT['d4']}\n" if OPT['d4'] else "") + late + "\ns_mov_b64 exec, -1")
if OPT["l2q"] and OPT["qcl"] == 1: g(qfb9(True))
stamp(9)
g("s_branch L_G_end")

def w11_loads():
    wo_setup()
    g("s_add_u32 s49, s48, 512")
    lds_wait(F_ISS, 2, 40, sleep=2)
    load_block(128, 6, 44, 49, 42, 1280, TH)
g.label("L_FFNb")
PEND = OPT["fgate"] != 9 and not OPT["uk6"]
if OPT["remap"]:
    g(f"""s_and_b32 s40, s{sXCD}, 1
          s_lshl_b32 s62, s{sSLOT}, 1
          s_add_u32 s62, s62, s40                 ; u in 0..63
          s_lshr_b32 s63, s{sXCD}, 1              ; mq""")
else:
    g(f"""s_lshr_b32 s40, s{sSLOT}, 3             ; hq
      s_lshl_b32 s40, s40, 1
      s_and_b32 s41, s{sJ}, 1
      s_add_u32 s40, s40, s41
      s_lshl_b32 s40, s40, 3
      s_add_u32 s62, s40, s{sXCD}             ; u in 0..63
      s_lshr_b32 s63, s{sJ}, 1                ; mq""")
g(f"""v_and_b32 v31, 1, v{vKG}
      v_cmp_eq_u32 s[56:57], 1, v31
      s_cmp_lt_u32 s62, 27
      s_cbranch_scc0 L_FFN2""")
LD.pending = PEND; LD.n = 0
g(f"""v_mul_u32_u24 v28, {8*3456}, v{vKG}
      v_lshl_add_u32 v28, v{vN}, 3, v28
      v_lshlrev_b32 v7, 4, v{vKG}
      s_mul_i32 s58, s63, 320
      v_add_u32 v7, s58, v7
      s_mul_i32 s58, s63, {160*3456}
      s_lshl_b32 s41, s62, 7
      s_add_u32 s58, s58, s41""")
srd(SR, P_W1, 2211840)
stamp(4)
for b in range(5):
    if b: g(f"s_add_u32 s58, s58, {32*3456}")
    load_block(48 + 16 * b, 28, SR, 58, 42, 3456, OPT['fthr'])
land_flush()
D = 144
get_tag(6)
lds_wait(F_XN, 1, 40)
for b in range(5): g(f"ds_read_b128 {vr(XF+4*b,4)}, v7 offset:{XNL+64*b}")
g("s_waitcnt lgkmcnt(0)")
for b in range(5):
    g(f"s_waitcnt vmcnt({8*(4-b)})")
    perm_block(48 + 16 * b, 32 + 16 * b)
    g("s_nop 1")
    for t in range(4): mfma(D + 4 * t, XF + 4 * b, 32 + 16 * b + 4 * t, b == 0)
if OPT["w11e"]: w11_loads()
if OPT["hlate"] == 1: land_wait(4, 40, 24, sleep=2)
if OPT["hlate"] == 2: lds_wait(F_STG, 8, 40, sleep=2)
if OPT["hlate"] == 3: land_wait(3, 40, 24, sleep=2)
g(f"""v_lshlrev_b32 v28, 4, v{LANE}
      s_nop 0
      s_lshl_b32 s40, s62, 2
      s_add_u32 s40, s40, s63
      s_lshl_b32 s40, s40, 9
      s_add_u32 s40, s40, {HM}
      v_mov_b32 v9, s{sTAG}
      v_mov_b32 v11, s{sTAG}
      s_nop 1
      v_cndmask_b32 v8, v{D}, v{D+8}, s[56:57]
      v_cndmask_b32 v10, v{D+4}, v{D+12}, s[56:57]
      s_mov_b32 exec_hi, 0
      buffer_store_dwordx4 v[8:11], v28, {sr(WS,4)}, s40 offen sc1
      s_mov_b64 exec, -1
      s_branch L_FFNe""")
g.label("L_FFN2")
g(f"""s_mul_i32 s40, s63, 37
      s_add_u32 s40, s40, s62
      s_sub_u32 s58, s40, 27
      s_cmp_lt_u32 s58, 135
      s_cbranch_scc1 L_FFN2a""")
LD.pending = PEND; LD.n = 0
land_flush()
get_tag(6)
if OPT["w11e"]: w11_loads()
g("s_branch L_FFNe")
g.label("L_FFN2a")
LD.pending = PEND; LD.n = 0
g(f"""s_mul_i32 s59, s58, 205
      s_lshr_b32 s59, s59, 10                 ; fb = v/5
      s_mul_i32 s60, s59, 5
      s_sub_u32 s60, s58, s60                 ; mb
      v_mul_u32_u24 v28, {8*1280}, v{vKG}
      v_lshl_add_u32 v28, v{vN}, 3, v28
      s_mul_i32 s58, s59, {64*1280}
      s_lshl_b32 s41, s60, 8
      s_add_u32 s58, s58, s41""")
srd(SR, P_W2, 2211840)
if OPT["forder"] >= 2:
    land_flush()
    if OPT["forder"] == 2: lds_wait(F_ISS, 2, 40, sleep=2)
    if OPT["forder"] == 3: lds_wait(F_STG, 8, 40, sleep=2)
    if OPT["forder"] == 4: pc_wait(0xff, 8, 40, 41, off=F_LT, sleep=2)
stamp(4)
for ch in range(2):
    for blk in range(2):
        g(f"s_add_u32 s41, s58, {blk*32*1280 + ch*128}")
        load_block(48 + 16 * (2 * ch + blk), 28, SR, 41, 42, 1280, OPT['fthr2'])
land_flush()
get_tag(6)
for b in range(4):
    g(f"s_waitcnt vmcnt({8*(3-b)})")
    perm_block(48 + 16 * b, 32 + 16 * b)
if OPT["w11e"]: w11_loads()
g(f"""v_lshrrev_b32 v28, 2, v{vN}
      v_lshlrev_b32 v28, 9, v28
      v_lshl_add_u32 v28, v{vKG}, 5, v28
      v_bfe_u32 v29, v{vN}, 1, 1
      v_lshl_add_u32 v28, v29, 4, v28
      v_and_b32 v29, 1, v{vN}
      v_lshl_add_u32 v28, v29, 8, v28
      s_lshl_b32 s40, s59, 11
      s_add_u32 s40, s40, {HM}""")
if OPT["hlate"] in (1, 3): lds_wait(F_STG, 8, 41, sleep=2)
if OPT["hlate"] == 2: lds_wait(F_H3, 8, 41, sleep=2)
poll_loads("h6", f"""buffer_load_dwordx4 v[8:11], v28, {sr(WS,4)}, s40 offen sc1
      buffer_load_dwordx4 v[12:15], v28, {sr(WS,4)}, s40 offen offset:128 sc1""", [9, 11, 13, 15], 43, sleep=6)
for mod in ("row_ror:4", "row_ror:8"):
    for r in (8, 10, 12, 14): g(f"v_add_f32_dpp v{r}, v{r}, v{r} {mod} {DPPM}")
for r in (8, 10, 12, 14): g(f"v_max_f32 v{r}, 0, v{r}")
g("v_cvt_pk_bf16_f32 v8, v8, v10\nv_cvt_pk_bf16_f32 v12, v12, v14\ns_nop 1")
for blk in range(2):
    for p in range(4):
        g(f"v_mov_b32_dpp v{16+4*blk+p}, v{8+4*blk} quad_perm:[{p},{p},{p},{p}] {DPPM}")
g("s_nop 1")
D = 96
for ch in range(2):
    for blk in range(2):
        for t in range(4): mfma(D + 16 * ch + 4 * t, 16 + 4 * blk, 32 + 16 * (2 * ch + blk) + 4 * t, blk == 0)
g(f"""v_lshrrev_b32 v28, 3, v{vN}
      v_lshlrev_b32 v28, 12, v28
      v_and_b32 v29, 7, v{vN}
      v_lshl_add_u32 v28, v29, 4, v28
      v_mov_b32 v29, 0xff
      s_lshl_b32 s40, s60, 14
      s_lshl_b32 s41, s59, 7
      s_add_u32 s40, s40, s41
      s_add_u32 s40, s40, {YM}
      s_add_u32 s41, s40, {2*4096}""")
tagbytes()
for ch in range(2):
    for t in range(4): g(f"v_bfi_b32 v{8+4*ch+t}, v29, s{sTB+t}, v{D+16*ch+4*t}")
g(f"""s_mov_b64 exec, 0xffff
      buffer_store_dwordx4 v[8:11], v28, {sr(WS,4)}, s40 offen sc1
      buffer_store_dwordx4 v[12:15], v28, {sr(WS,4)}, s41 offen sc1
      s_mov_b64 exec, -1""")
g.label("L_FFNe")
stamp(5)
if OPT["w8x3"]: g("s_branch L_G_end")
if OPT["w11e"]: h4_setup()
else:
    wo_setup(); h4_setup()
    g("s_add_u32 s49, s48, 512")
    if OPT["uvgate"] == 3: land_wait(4, 40, 24, sleep=1)
    else: lds_wait(F_ISS, 2, 40, sleep=2)
    b1_gate()
    wo_gate()
    load_block(128, 6, 44, 49, 42, 1280, TH)
g("s_waitcnt vmcnt(0)")
perm_block(128, 32, KORD)
h4_warm(8, [4])
lds_wait(F_LT, 8, 40, sleep=2)
rl_wait()
lds_wait(F_IB, 8, 40, sleep=1)
g("s_setprio 2")
h4_wait(8)
stamp(6)
wo_compute(8, [32], [4], 48)
stamp(7)
g.label("L_G_end")
if OPT["pad"]:
    g(f"""v_readfirstlane_b32 s40, v{VTS}
          s_cmp_lt_u32 s{sWG}, 8
          s_cbranch_scc0 L_END
          s_add_u32 s40, s40, {OPT["pad"]}""")
    if OPT["padmin"]:
        g(f"""s_load_dwordx2 s[44:45], s[0:1], 80
          s_mov_b32 s46, 256
          s_mov_b32 s47, 0x20000
          v_not_b32 v8, v{VTS}
          s_mov_b64 exec, 1
          s_waitcnt lgkmcnt(0)
          buffer_atomic_umax v8, v{VZ}, s[44:47], 0 offen
          s_waitcnt vmcnt(0)
          s_sleep 100
          buffer_load_dword v8, v{VZ}, s[44:47], 0 offen sc1
          s_waitcnt vmcnt(0)
          v_not_b32 v8, v8
          s_nop 1
          v_readfirstlane_b32 s40, v8
          s_nop 3
          s_add_u32 s40, s40, {OPT["pad"]}""")
    g(f"""L_padl:
          s_memrealtime s[42:43]
          s_waitcnt lgkmcnt(0)
          s_sub_u32 s41, s42, s40
          s_cmp_lt_i32 s41, 0
          s_cbranch_scc1 L_padl""")
ts_flush("G")
g.label("L_END")
g("s_endpgm")
g.l.append(".p2align 12")
g.label("L_CODE_END")

s = file_head([f"; @launch grid=(256,1,1) block=(768,1,1) lds={LDS_BYTES}"])
s += """// ---------------------------------------------------------------------------------------------
// group maximum inside +-64 (log2 units); otherwise the workgroup redoes it with the true maximum and
// ---------------------------------------------------------------------------------------------
"""
s += f""".text
.globl {K}
.p2align 12
.type {K},@function
{K}:
"""
s += g.text()
s += kernel_desc(K, 168, 102)
open(OUT, "w").write(s)
print(OUT, "lines", len(g.l), "ws_end", hex(WS_END))
```

```python
import sys, math, struct
from asmlib import *

OPT = dict(ts=0, stop=99, inflight=16, gate=12, ksmap=1, gthr=32, wogate=0, b1gate=0, pol=1, h2iss=2, amax=0, bk2=4, bk3=2, dbg=0, bk4=0, bk5=3, d3=0, d3b=0, d1=8, d5=8, fast4=1, warm=1, pad=0, padmin=0, padat=-1, padw=0, tlb=0, remap=1, nom=0, w11e=0, l2q=8, bk1=1, bk1b=6, qcl=2, hlate=3, dec=1, hk=4, hrep=1, mg1=1, mg2=1, mg3=0, mg4=0, nrep=4, qs=14, kvt=0, uk6=1, vt=0, pr0=1, hp=1, inf2=0, split=2, w8x3=0, pkv=-1, pwq=-1, puk=-1, puv=-1, pwo=-1, pw1=-1, pw2=-1, d2=0, fgate=2, fthr=32, ukgate=0, h2land=3, forder=0, fast1=0, dh=8, ldw=0, d3a=12, hl=0, rng=64, dl=8, uvgate=0, bkh=4, st1=2, osc=1, d4=0, recl=1, rot=5, fthr2=32)
for a in sys.argv[2:]:
    k, v = a.split("=")
    assert k in OPT and k != "fast1", k
    OPT[k] = int(v)
if OPT["l2q"]: OPT["remap"] = 0; OPT["nrep"] = OPT["l2q"]; assert OPT["l2q"] in (4, 8)
OUT = sys.argv[1] if len(sys.argv) > 1 else "k.s"
POLS = {0: "", 1: "nt", 2: "sc1", 3: "sc1 nt", 4: "sc0 sc1", 5: "sc0 sc1 nt", 6: "sc0", 7: "sc0 nt"}
def pol(name): return POLS[OPT[name] if OPT[name] >= 0 else OPT["pol"]]
CUR = {"p": "pwq"}

def f32(x): return struct.unpack("<I", struct.pack("<f", x))[0]

EPOCH = 0
QM   = 0x1000
QS = OPT["qs"]
if QS == 14:
    HD, HS, LOFF = QM + 0x80000, 10, 0x8000
    QAM = HD + 0x8000 * (1 + OPT['hrep'])
else:
    HD, HS, LOFF = QM + 0x4000, QS, 0x400
    QAM = QM + (32 << QS)
CXM  = QAM + 0x10000
HM   = CXM + 0x20000
YM   = HM + 0x10000
SM   = YM + 20 * 4096
IB   = SM + 20 * 16384
WS_END = IB + 256 * 8 * 2048
TSOFF = 0x1000000
WS_REC = 0x2000000 if (OPT["ts"] and not OPT["dbg"]) else WS_END

(F_Q, F_QA, F_LAND, F_ISS, F_H2I, F_STG, F_MAX, F_P, F_IB, F_UK, F_TAG, F_TAGV, F_QP, F_QI, F_SD, F_FIN) = [4 * i for i in range(16)]
RMAX = 0x40
RL   = 0x80
F_H3, F_ML, F_QAP, F_XN, F_L, F_RLV, RLINV, F_LT, F_LA, F_LB, F_WQ, F_PC = 0xC0, 0xC4, 0xC8, 0xCC, 0xD0, 0xD4, 0xD8, 0xDC, 0xE0, 0xE4, 0xE8, 0xEC
REDQ = 0x100
REDQA = 0x600
PL   = 0x1000
RIB  = 0x2000
RFIN = PL
MLT  = 0x2A00
LT   = 0x2C00
RMX  = 0x2E00
RLP  = REDQ
XNL  = 0x3000
QL   = 0x3800
KV   = 0x7800
LDS_BYTES = KV + 0x20000

SCALE = (128 ** -0.5) * math.log2(math.e)
LIM_LDS = 1 << 16
LIM_MEM = 1 << 13

class G:
    def __init__(s): s.l = []; s.n = 0
    def __call__(s, x):
        for ln in x.strip("\n").split("\n"):
            if ln.strip(): s.l.append("  " + ln.strip())
    def label(s, x): s.l.append(x + ":")
    def nl(s, p): s.n += 1; return f"L_{p}_{s.n}"
    def text(s): return "\n".join(s.l) + "\n"
g = G()

def vr(a, n): return f"v[{a}:{a+n-1}]"
def sr(a, n): return f"s[{a}:{a+n-1}]"

LANE, VZ, VONE, VT, vN, vKG = 0, 1, 2, 3, 4, 5
VTS = 167
VL16 = 166
sWG, sWV = 2, 3
WS = 4
SR = 8
sXCD, sSLOT, sHF, sJ = 12, 13, 14, 15
P_X, P_KV, P_WQ, P_WUK, P_WUV, P_WO, P_BX, P_W1, P_W2, P_OUT, P_DBG, P_WS = [16 + 2 * i for i in range(12)]
sHA, sCA = (sSLOT, sXCD) if OPT['remap'] else (sHF, sJ)
sTAG, sCNT = 28, 29
sPLO, sPHI = 100, 101
DPPM = "row_mask:0xf bank_mask:0xf"

def srd(base, ptr, nbytes):
    g(f"""s_mov_b32 s{base}, s{ptr}
          s_mov_b32 s{base+1}, s{ptr+1}
          s_mov_b32 s{base+2}, {nbytes}
          s_mov_b32 s{base+3}, 0x20000""")

def stamp(k):
    if OPT["padat"] == k:
        g(f"s_memrealtime vcc\ns_waitcnt lgkmcnt(0)\nv_writelane_b32 v{VTS}, vcc_lo, 0")
    if not OPT["ts"]: return
    g(f"""s_memrealtime vcc
          s_waitcnt lgkmcnt(0)
          v_writelane_b32 v{VTS}, vcc_lo, {k}""")

def cnt(k, sreg):
    if OPT["ts"]: g(f"v_writelane_b32 v{VTS}, s{sreg}, {k}")

def ts_flush(role="A"):
    if OPT["padat"] >= 0:
        Lp, Le = g.nl("pad"), g.nl("pade")
        g(f"s_nop 4\nv_readlane_b32 s40, v{VTS}, 0")
        g("s_nop 4")
        if OPT["padw"] >= 8: g(f"s_cmp_eq_u32 s{sWV}, {OPT['padw'] % 100}")
        else: g(f"s_cmp_lt_u32 s{sWV}, 8")
        g(f"""s_cbranch_scc0 {Le}
              s_cmp_eq_u32 s40, 0
              s_cbranch_scc1 {Le}
              s_add_u32 s40, s40, 3000
              {Lp}:
              s_sleep 8
              s_memrealtime s[42:43]
              s_waitcnt lgkmcnt(0)
              s_sub_u32 s41, s42, s40
              s_cmp_lt_i32 s41, -40
              s_cbranch_scc1 {Lp}
              {Lp}b:
              s_memrealtime s[42:43]
              s_waitcnt lgkmcnt(0)
              s_sub_u32 s41, s42, s40
              s_cmp_lt_i32 s41, 0
              s_cbranch_scc1 {Lp}b
              {Le}:""")
    if not OPT["ts"]: return
    if OPT["dbg"]:
        sel = {"A": {1: 0, 2: 16, 6: 6, 7: 8, 8: 10, 9: 22, 10: 11, 11: 13, 14: 20, 15: 21}, "G": {3: 1, 4: 2, 5: 3, 12: 7, 13: 9}}[role]
        Ls = g.nl("dbg")
        g(f"""s_cmp_eq_u32 s{sWV}, {0 if role == "A" else 9}
              s_cbranch_scc0 {Ls}
              s_load_dwordx2 s[40:41], s[0:1], 80
              s_mov_b64 exec, -1
              v_mov_b32 v8, 0
              s_mov_b32 s42, 256
              s_mov_b32 s43, 0x20000""")
        for dst, src in sel.items():
            g(f"v_readlane_b32 s44, v{VTS}, {src}\ns_nop 3\nv_writelane_b32 v8, s44, {dst}")
        if role == "A":
            g(f"v_readlane_b32 s44, v{VTS}, 0\ns_nop 3\ns_not_b32 s44, s44\nv_writelane_b32 v8, s44, 0")
        g(f"""v_lshlrev_b32 v{VT}, 2, v{LANE}
              s_mov_b64 exec, 0xffff
              s_waitcnt lgkmcnt(0)
              buffer_atomic_umax v8, v{VT}, s[40:43], 0 offen""")
        g.label(Ls)
        return
    g(f"""s_mul_i32 s{sCNT}, s{sWG}, 12
          s_add_u32 s{sCNT}, s{sCNT}, s{sWV}
          s_lshl_b32 s{sCNT}, s{sCNT}, 7
          s_add_u32 s{sCNT}, s{sCNT}, {TSOFF}
          s_mov_b64 exec, -1
          s_mov_b32 exec_hi, 0
          v_lshlrev_b32 v{VT}, 2, v{LANE}
          buffer_store_dword v{VTS}, v{VT}, {sr(WS,4)}, s{sCNT} offen""")

def watch_hook(watch):
    if watch:
        Lw = g.nl("wd")
        g(f"s_cmp_lg_u32 s{sCNT}, {LIM_LDS - watch[0]}\ns_cbranch_scc1 {Lw}\n{watch[1]}\n{Lw}:")

def lds_wait(off, target, st, extra="", sleep=0, watch=None):
    L, Lo = g.nl("w"), g.nl("wo")
    g(f"s_mov_b32 s{sCNT}, {LIM_LDS}")
    if sleep:
        Lf = g.nl("wf")
        g(f"s_branch {Lf}")
    g.label(L)
    watch_hook(watch)
    if sleep:
        g(f"s_sleep {sleep}")
        g.label(Lf)
    g(f"ds_read_b32 v{VT}, v{VZ} offset:{off}")
    if extra: g(extra)
    g(f"""s_waitcnt lgkmcnt(0)
          v_readfirstlane_b32 s{st}, v{VT}
          s_sub_u32 s{sCNT}, s{sCNT}, 1
          s_cbranch_scc1 {Lo}
          s_cmp_ge_u32 s{st}, {target}
          s_cbranch_scc0 {L}""")
    g.label(Lo)

def pc_wait(mask, val, st, st2, extra="", sleep=0, off=None, watch=None):
    L, Lo = g.nl("pw"), g.nl("pwo")
    g(f"s_mov_b32 s{sCNT}, {LIM_LDS}")
    g.label(L)
    watch_hook(watch)
    if sleep: g(f"s_sleep {sleep}")
    g(f"ds_read_b32 v{VT}, v{VZ} offset:{F_PC if off is None else off}")
    if extra: g(extra)
    g(f"""s_waitcnt lgkmcnt(0)
          v_readfirstlane_b32 s{st}, v{VT}
          s_sub_u32 s{sCNT}, s{sCNT}, 1
          s_cbranch_scc1 {Lo}
          s_and_b32 s{st2}, s{st}, {hex(mask)}
          s_cmp_eq_u32 s{st2}, {hex(val)}
          s_cbranch_scc0 {L}""")
    g.label(Lo)

def land_wait(target, st, vt2, sleep=0):
    L, Lo = g.nl("lw"), g.nl("lwo")
    g(f"s_mov_b32 s{sCNT}, {LIM_LDS}")
    g.label(L)
    g(f"""ds_read_b64 {vr(vt2,2)}, v{VZ} offset:{F_LA}
          s_waitcnt lgkmcnt(0)
          v_min_u32 v{vt2}, v{vt2}, v{vt2+1}
          s_sub_u32 s{sCNT}, s{sCNT}, 1
          v_readfirstlane_b32 s{st}, v{vt2}
          s_cbranch_scc1 {Lo}
          s_cmp_ge_u32 s{st}, {target}
          s_cbranch_scc1 {Lo}""")
    if sleep: g(f"s_sleep {sleep}")
    g(f"s_branch {L}")
    g.label(Lo)

def lds_inc(off):
    g(f"""s_mov_b64 exec, 1
          ds_add_u32 v{VZ}, v{VONE} offset:{off}
          s_mov_b64 exec, -1""")

def get_tag(vtmp):
    lds_wait(F_TAGV, 1, sTAG, extra=f"ds_read_b32 v{vtmp}, v{VZ} offset:{F_TAG}")
    g(f"v_readfirstlane_b32 s{sTAG}, v{vtmp}")

def wave_sum(v, sdst):
    for mod in ("quad_perm:[1,0,3,2]", "quad_perm:[2,3,0,1]", "row_half_mirror", "row_mirror"):
        g(f"s_nop 1\nv_add_f32_dpp v{v}, v{v}, v{v} {mod} {DPPM}")
    g(f"s_nop 1\nv_add_f32_dpp v{v}, v{v}, v{v} row_bcast:15 row_mask:0xa bank_mask:0xf")
    g(f"s_nop 1\nv_add_f32_dpp v{v}, v{v}, v{v} row_bcast:31 row_mask:0xc bank_mask:0xf")
    g(f"s_nop 1\nv_readlane_b32 s{sdst}, v{v}, 63")

def rne(v):
    g(f"v_cvt_pk_bf16_f32 v{v}, v{v}, v{v}\nv_and_b32 v{v}, 0xffff0000, v{v}")

def ln_stats(x5, tmp, sA, sB, vM, vR):
    u = tmp
    for k in range(5):
        g(f"v_lshlrev_b32 v{u+2*k}, 16, v{x5+k}\nv_and_b32 v{u+2*k+1}, 0xffff0000, v{x5+k}")
    a = u + 10
    g(f"v_add_f32 v{a}, v{u}, v{u+1}")
    for k in range(2, 10): g(f"v_add_f32 v{a}, v{a}, v{u+k}")
    wave_sum(a, sA)
    g(f"s_nop 1\nv_mov_b32 v{vM}, s{sA}\nv_mul_f32 v{vM}, {hex(f32(1.0/640))}, v{vM}")
    for k in range(10): g(f"v_sub_f32 v{u+k}, v{u+k}, v{vM}")
    g(f"v_mul_f32 v{a}, v{u}, v{u}")
    for k in range(1, 10): g(f"v_fmac_f32 v{a}, v{u+k}, v{u+k}")
    wave_sum(a, sB)
    g(f"s_nop 1\nv_mov_b32 v{vR}, s{sB}\nv_mul_f32 v{vR}, {hex(f32(1.0/640))}, v{vR}")
    rne(vR)
    g(f"v_add_f32 v{vR}, {hex(f32(1e-5))}, v{vR}")
    rne(vR)
    g(f"v_sqrt_f32 v{vR}, v{vR}\ns_nop 0")
    rne(vR)
    g(f"v_rcp_f32 v{vR}, v{vR}")
    rne(vM)

def ln_frag(src, dst, t0, vM, vR):
    for k in range(4):
        g(f"""v_lshlrev_b32 v{t0}, 16, v{src+k}
              v_and_b32 v{t0+1}, 0xffff0000, v{src+k}
              v_sub_f32 v{t0}, v{t0}, v{vM}
              v_sub_f32 v{t0+1}, v{t0+1}, v{vM}
              v_cvt_pk_bf16_f32 v{t0+1}, v{t0}, v{t0+1}
              v_lshlrev_b32 v{t0}, 16, v{t0+1}
              v_and_b32 v{t0+1}, 0xffff0000, v{t0+1}
              v_mul_f32 v{t0}, v{t0}, v{vR}
              v_mul_f32 v{t0+1}, v{t0+1}, v{vR}
              v_cvt_pk_bf16_f32 v{dst+k}, v{t0}, v{t0+1}""")

def perm_block(raw, out, order=(0, 1, 2, 3)):
    for p in range(4):
        e = 2 * order[p]
        for d in range(2):
            g(f"v_perm_b32 v{out+4*(2*d)+p}, v{raw+2*(e+1)+d}, v{raw+2*e+d}, s{sPLO}")
            g(f"v_perm_b32 v{out+4*(2*d+1)+p}, v{raw+2*(e+1)+d}, v{raw+2*e+d}, s{sPHI}")

class Landing:
    pending = False
    n = 0
LD = Landing()

def load_block(raw, voff, srdb, sbase, stmp, rowbytes, thr=0, rows=None):
    CUR["p"] = {3456: "pw1", 8192: ("puv" if rows else "pwq"), 1280: ("pw2" if srdb == SR else "pwo")}[rowbytes]
    per = 4095 // rowbytes + 1
    cur = None
    for e in range(8):
        grp, rem = divmod(e, per)
        if grp != cur:
            if grp == 0: so = sbase
            else:
                g(f"s_add_u32 s{stmp}, s{sbase}, {(rows[e] if rows else grp*per)*rowbytes}"); so = stmp
            cur = grp
        if thr:
            g(f"s_waitcnt vmcnt({thr-1})")
            if LD.pending and LD.n >= thr - 1:
                land_now()
        off = f" offset:{rem*rowbytes}" if rem else ""
        g(f"buffer_load_dwordx2 {vr(raw+2*e,2)}, v{voff}, {sr(srdb,4)}, s{so} offen{off} {pol(CUR['p'])}")
        LD.n += 1

def land_now():
    g(f"ds_write_b32 v{VZ}, v{VONE} offset:{F_UK}")
    stamp(2)
    LD.pending = False

def land_flush():
    if LD.pending:
        g(f"s_waitcnt vmcnt({LD.n})")
        land_now()

def tagcheck(regs, acc):
    g(f"v_xor_b32 v{acc}, s{sTAG}, v{regs[0]}")
    for r in regs[1:]:
        g(f"v_bitop3_b32 v{acc}, v{r}, s{sTAG}, v{acc} bitop3:0xbe")
    g(f"v_cmp_ne_u32 vcc, 0, v{acc}")

def poll_loads(nm, loads, tags, scnt, acc=VT, sleep=0, mask=True, b8=False, onfail=""):
    L, Lo = g.nl(nm), g.nl(nm + "o")
    g(f"s_mov_b32 s{scnt}, {LIM_MEM}")
    g.label(L)
    g(loads)
    g("s_waitcnt vmcnt(0)")
    (tagcheck8 if b8 else tagcheck)(tags, acc)
    g(f"s_cbranch_vccz {Lo}")
    if onfail: g(onfail)
    if mask: g("s_mov_b64 exec, vcc")
    if sleep: g(f"s_sleep {sleep}")
    g(f"""s_sub_u32 s{scnt}, s{scnt}, 1
          s_cbranch_scc0 {L}""")
    g.label(Lo)
    if mask: g("s_mov_b64 exec, -1")

def flag16_wait(nm, ap):
    L, Lo = g.nl(nm), g.nl(nm + "o")
    g(f"s_mov_b32 s{sCNT}, {LIM_MEM}\ns_lshl_b32 s18, s{sTAG}, 4")
    g.label(L)
    g(f"""s_load_dwordx16 s[48:63], s[{ap}:{ap+1}], 0 glc
          s_sub_u32 s{sCNT}, s{sCNT}, 1
          s_cbranch_scc1 {Lo}
          s_waitcnt lgkmcnt(0)
          s_add_u32 s19, s48, s49""")
    for k in range(2, 16): g(f"s_add_u32 s19, s19, s{48+k}")
    g(f"s_cmp_eq_u32 s19, s18\ns_cbranch_scc0 {L}")
    g.label(Lo)
    g("s_waitcnt lgkmcnt(0)")

sTB = 66
def tagbytes():
    g(f"""s_and_b32 s{sTB}, s{sTAG}, 1
          s_mul_i32 s{sTB}, s{sTB}, 0x01010101
          s_and_b32 s{sTB+1}, s{sTAG}, 0xfefefefe
          s_or_b32 s{sTB}, s{sTB}, s{sTB+1}
          s_bfe_u32 s{sTB+1}, s{sTB}, 0x80008
          s_bfe_u32 s{sTB+2}, s{sTB}, 0x80010
          s_lshr_b32 s{sTB+3}, s{sTB}, 24
          s_and_b32 s{sTB}, s{sTB}, 0xff""")
def tagput(regs, vmask):
    for d, r in enumerate(regs): g(f"v_bfi_b32 v{r}, v{vmask}, s{sTB+d}, v{r}")
def tagcheck8(bases, acc):
    rs = [b + d for b in bases for d in range(4)]
    for b in bases:
        for d in range(4): g(f"v_xor_b32 v{b+d}, s{sTB+d}, v{b+d}")
    g(f"v_or_b32 v{acc}, v{rs[0]}, v{rs[1]}")
    for k in range(2, len(rs), 2): g(f"v_or3_b32 v{acc}, v{acc}, v{rs[k]}, v{rs[k+1]}")
    g(f"v_and_b32 v{acc}, 0xff, v{acc}\nv_cmp_ne_u32 vcc, 0, v{acc}")

def fswz(dst, i, t):
    g(f"""v_lshrrev_b32 v{t}, 1, v{i}
          v_xor_b32 v{dst}, v{t}, v{i}
          v_and_b32 v{dst}, 4, v{dst}
          v_and_or_b32 v{dst}, v{i}, 2, v{dst}
          v_bfe_u32 v{t}, v{i}, 3, 1
          v_or_b32 v{dst}, v{dst}, v{t}""")

def sum_groups(base, n):
    step = 1
    while step < n:
        for a in range(0, n - step, 2 * step):
            g(f"v_pk_add_f32 {vr(base+4*a,2)}, {vr(base+4*a,2)}, {vr(base+4*(a+step),2)}")
            g(f"v_pk_add_f32 {vr(base+4*a+2,2)}, {vr(base+4*a+2,2)}, {vr(base+4*(a+step)+2,2)}")
        step *= 2

def red16(regs, full=True):
    for mod in ("row_ror:4", "row_ror:8"):
        g("s_nop 1")
        for r in regs: g(f"v_add_f32_dpp v{r}, v{r}, v{r} {mod} {DPPM}")
    for sw in (("v_permlane16_swap_b32", "v_permlane32_swap_b32") if full else ("v_permlane16_swap_b32",)):
        for r in regs: g(f"v_mov_b32 v{r+1}, v{r}")
        g("s_nop 1")
        for r in regs: g(f"{sw} v{r}, v{r+1}")
        for r in regs: g(f"v_add_f32 v{r}, v{r}, v{r+1}")

def global_max(dst, t0):
    g(f"""v_max_f32 v{dst}, v{t0}, v{t0+1}""")
    for mod in ("quad_perm:[1,0,3,2]", "quad_perm:[2,3,0,1]", "row_half_mirror", "row_mirror"):
        g(f"s_nop 1\nv_max_f32_dpp v{dst}, v{dst}, v{dst} {mod} {DPPM}")
    for sw in ("v_permlane16_swap_b32", "v_permlane32_swap_b32"):
        g(f"v_mov_b32 v{dst+1}, v{dst}\ns_nop 1\n{sw} v{dst}, v{dst+1}\nv_max_f32 v{dst}, v{dst}, v{dst+1}")

def mfma(d, a, b, first):
    g(f"v_mfma_f32_16x16x32_bf16 {vr(d,4)}, {vr(a,4)}, {vr(b,4)}, {'0' if first else vr(d,4)}")

K = NAME + "_kernel"
g(f"""s_load_dwordx16 s[16:31], s[0:1], 0
      s_load_dwordx8 s[32:39], s[0:1], 64
      s_cmp_ge_u32 s{sWG}, 256
      s_cbranch_scc1 L_END
      v_lshrrev_b32 v{VT}, 6, v0
      v_and_b32 v{LANE}, 63, v0
      v_readfirstlane_b32 s{sWV}, v{VT}
      v_mov_b32 v{VZ}, 0
      v_lshrrev_b32 v{vKG}, 4, v{LANE}
      s_cmp_eq_u32 s{sWV}, 7
      s_cbranch_scc0 L_nopf
      s_getpc_b64 s[44:45]
      L_pc:
      s_sub_u32 s44, s44, L_pc-{K}
      s_subb_u32 s45, s45, 0
      s_and_b32 s41, s{sWG}, 0xf8
      v_add_u32 v10, s41, v{LANE}
      v_lshlrev_b32 v10, 7, v10
      v_cmp_gt_u32 vcc, L_CODE_END-{K}, v10
      s_and_b64 exec, vcc, 0xff
      s_cbranch_execz L_nopf2
      global_load_dword v159, v10, s[44:45]
      L_nopf2:
      s_mov_b64 exec, -1
      L_nopf:
      v_mov_b32 v{VONE}, 1
      v_and_b32 v{vN}, 15, v{LANE}
      s_and_b32 s{sXCD}, s{sWG}, 7
      s_lshr_b32 s{sSLOT}, s{sWG}, 3
      s_lshr_b32 s{sHF}, s{sSLOT}, 3
      s_lshl_b32 s{sJ}, s{sXCD}, 2
      s_add_u32 s{sHF}, s{sHF}, s{sJ}
      s_and_b32 s{sJ}, s{sSLOT}, 7
      s_mov_b32 s{sPLO}, 0x05040100
      s_mov_b32 s{sPHI}, 0x07060302""")
if OPT["ts"] or OPT["padat"] >= 0:
    g(f"v_mov_b32 v{VTS}, 0")
    stamp(0)
if OPT["pad"]:
    g(f"s_memrealtime vcc\ns_waitcnt lgkmcnt(0)\nv_mov_b32 v{VTS}, vcc_lo")
g(f"""s_cmp_ge_u32 s{sWV}, 6
      s_cbranch_scc1 L_OTH
      s_setprio 2
      v_lshlrev_b32 v24, 16, v{vKG}
      v_lshl_add_u32 v24, v{vN}, 3, v24       ; + n*8
      v_mul_u32_u24 v6, 20, v{LANE}
      s_lshr_b32 s40, s{sXCD if OPT["remap"] else sJ}, 1   ; mq
      s_mul_i32 s40, s40, 160
      s_lshl_b32 s41, s{sWV}, 5
      s_add_u32 s40, s40, s41
      s_lshl_b32 s41, s40, 13                 ; row0*8192
      {f"s_lshl_b32 s42, s{sSLOT}, 7" if OPT["remap"] else f"s_lshl_b32 s42, s{sHF}, 8"}
      s_add_u32 s41, s41, s42
      s_and_b32 s42, s{sXCD if OPT["remap"] else sJ}, 1
      s_lshl_b32 s42, s42, {12 if OPT["remap"] else 7}
      s_add_u32 s41, s41, s42                 ; w_q soffset
      s_mov_b32 s46, 5242880
      s_mov_b32 s47, 0x20000
      s_mov_b32 s{SR+2}, 1280
      s_mov_b32 s{SR+3}, 0x20000
      s_cmp_eq_u32 s{sWV}, 5
      s_cbranch_scc0 L_A
      s_setprio 3
      s_waitcnt lgkmcnt(0)
      s_mov_b32 s{SR}, s{P_X}
      s_mov_b32 s{SR+1}, s{P_X+1}
      buffer_load_dwordx4 v[8:11], v6, {sr(SR,4)}, 0 offen
      buffer_load_dword v12, v6, {sr(SR,4)}, 0 offen offset:16
      s_barrier
      s_branch L_LN""")
g.label("L_A")
g(f"""s_waitcnt lgkmcnt(0)
      s_mov_b32 s44, s{P_WQ}
      s_mov_b32 s45, s{P_WQ+1}
      s_nop 1""")
load_block(32, 24, 44, 41, 42, 8192)
g("s_barrier")
lds_inc(F_QI)
srd(WS, P_WS, WS_REC)
g(f"""s_lshl_b32 s40, s40, 1
      v_lshlrev_b32 v112, 4, v{vKG}
      v_add_u32 v112, s40, v112
      v_lshlrev_b32 v113, 4, v{vN}
      s_lshl_b32 s40, s{sWV}, 8
      v_add_u32 v113, s40, v113
      s_branch L_A_q""")
g.label("L_LN")
srd(WS, P_WS, WS_REC)
g(f"v_add_u32 v6, {XNL}, v6\ns_waitcnt vmcnt(0)")
stamp(16)
U, E, Dd = 32, 44, 56
for k in range(5):
    g(f"v_lshlrev_b32 v{U+2*k}, 16, v{8+k}\nv_and_b32 v{U+2*k+1}, 0xffff0000, v{8+k}")
g(f"""v_pk_add_f32 v[14:15], {vr(U,2)}, {vr(U+2,2)}
      v_pk_add_f32 v[16:17], {vr(U+4,2)}, {vr(U+6,2)}
      v_pk_add_f32 v[14:15], v[14:15], {vr(U+8,2)}
      v_pk_add_f32 v[14:15], v[14:15], v[16:17]
      v_add_f32 v14, v14, v15""")
wave_sum(14, 40)
g(f"""s_nop 1
      v_mov_b32 v18, {hex(f32(-1.0/640))}
      v_mul_f32 v18, s40, v18                 ; -mean
      v_mov_b32 v19, v18""")
for k in range(5): g(f"v_pk_add_f32 {vr(E+2*k,2)}, {vr(U+2*k,2)}, v[18:19]")
g(f"v_pk_mul_f32 v[14:15], {vr(E,2)}, {vr(E,2)}")
for k in range(1, 5): g(f"v_pk_fma_f32 v[14:15], {vr(E+2*k,2)}, {vr(E+2*k,2)}, v[14:15]")
g(f"""v_cvt_pk_bf16_f32 v20, v18, v18
      v_add_f32 v14, v14, v15
      v_and_b32 v20, 0xffff0000, v20
      v_mov_b32 v21, v20""")
fill = [f"v_pk_add_f32 {vr(E+2*k,2)}, {vr(U+2*k,2)}, v[20:21]" for k in range(5)]
fill += [f"v_cvt_pk_bf16_f32 v{8+k}, v{E+2*k}, v{E+2*k+1}" for k in range(5)]
fill += [x for k in range(5) for x in (f"v_lshlrev_b32 v{Dd+2*k}, 16, v{8+k}", f"v_and_b32 v{Dd+2*k+1}, 0xffff0000, v{8+k}")]
steps = [f"v_add_f32_dpp v14, v14, v14 {m} {DPPM}" for m in ("quad_perm:[1,0,3,2]", "quad_perm:[2,3,0,1]", "row_half_mirror", "row_mirror")]
steps += ["v_add_f32_dpp v14, v14, v14 row_bcast:15 row_mask:0xa bank_mask:0xf", "v_add_f32_dpp v14, v14, v14 row_bcast:31 row_mask:0xc bank_mask:0xf", "v_readlane_b32 s42, v14, 63"]
for st_ in steps:
    g(st_); g(fill.pop(0)); g(fill.pop(0))
g(f"""v_mov_b32 v22, {hex(f32(1.0/640))}
      v_mul_f32 v22, s42, v22""")
rne(22)
g(f"v_add_f32 v22, {hex(f32(1e-5))}, v22")
rne(22)
g("v_sqrt_f32 v22, v22"); g(fill.pop(0))
rne(22)
g("v_rcp_f32 v22, v22")
while fill: g(fill.pop(0))
g("v_mov_b32 v23, v22")
for k in range(5): g(f"v_pk_mul_f32 {vr(Dd+2*k,2)}, {vr(Dd+2*k,2)}, v[22:23]")
for k in range(5): g(f"v_cvt_pk_bf16_f32 v{8+k}, v{Dd+2*k}, v{Dd+2*k+1}")
g(f"""ds_write2_b32 v6, v8, v9 offset0:0 offset1:1
      ds_write2_b32 v6, v10, v11 offset0:2 offset1:3
      ds_write_b32 v6, v12 offset:16
      ds_write_b32 v{VZ}, v{VONE} offset:{F_XN}""")
stamp(17)
g("s_branch L_A_q")
g.label("L_OTH")
if OPT["l2q"]: g(f"v_lshlrev_b32 v152, 4, v{vN}\nv_lshl_add_u32 v152, v{vKG}, 11, v152")
g(f"""s_cmp_eq_u32 s{sWV}, 6
      s_cbranch_scc0 L_noinit
      v_lshlrev_b32 v8, 2, v{LANE}
      ds_write_b32 v8, v{VZ}
      s_waitcnt lgkmcnt(0)
      L_noinit:
      s_cmp_eq_u32 s{sWV}, 9
      s_cbranch_scc1 L_G9
      s_barrier
      {f"s_cmp_eq_u32 s{sWV}, 6" if OPT["uk6"] else ""}
      {"s_cbranch_scc1 L_FFN" if OPT["uk6"] else ""}
      s_cmp_lt_u32 s{sWV}, 8
      s_cbranch_scc0 L_OTH2
      s_waitcnt lgkmcnt(0)""")
srd(WS, P_WS, WS_REC)
if OPT["tlb"]:
    g(f"""s_cmp_eq_u32 s{sWV}, 7
          s_cbranch_scc0 L_A_q
          s_and_b32 s40, s{sSLOT}, 7
          s_lshl_b32 s40, s40, 6
          s_lshr_b32 s41, s{sSLOT}, 3             ; 0..3
          s_lshl_b32 s42, s41, 20
          s_add_u32 s42, s42, s40
          s_and_b32 s43, s41, 1
          s_lshl_b32 s43, s43, 20
          s_add_u32 s43, s43, s40
          s_lshl_b32 s44, s{sXCD}, 21
          s_add_u32 s44, s44, s43
          s_add_u32 s45, s40, 0x400000
          s_add_u32 s46, s40, 0x200000
          s_add_u32 s47, s43, 0x400000""")
    if OPT["tlb"] == 2: lds_wait(F_XN, 1, 41, sleep=1)
    if OPT["tlb"] in (1, 3):
        g(f"""s_load_dword s52, s[{P_KV}:{P_KV+1}], s44
          s_load_dword s53, s[{P_WUK}:{P_WUK+1}], s42
          s_load_dword s54, s[{P_W1}:{P_W1+1}], s43
          s_load_dword s55, s[{P_W2}:{P_W2+1}], s43
          s_load_dword s60, s[{P_W1}:{P_W1+1}], s46
          s_load_dword s61, s[{P_W2}:{P_W2+1}], s46""")
    if OPT["tlb"] == 3: lds_wait(F_XN, 1, 41, sleep=1)
    g(f"""s_load_dword s56, s[{P_WS}:{P_WS+1}], s42
          s_load_dword s57, s[{P_WUV}:{P_WUV+1}], s42
          s_load_dword s58, s[{P_WO}:{P_WO+1}], s42
          s_load_dword s59, s[{P_WO}:{P_WO+1}], s45
          s_load_dword s62, s[{P_WS}:{P_WS+1}], s47
          s_load_dword s63, s[{P_OUT}:{P_OUT+1}], 0
          s_waitcnt lgkmcnt(0)""")
g("s_branch L_A_q")
g.label("L_OTH2")
g(f"""      s_cmp_eq_u32 s{sWV}, 9
      s_cbranch_scc1 L_G9
      s_cmp_eq_u32 s{sWV}, 11
      s_cbranch_scc1 L_FFN""")
g(f"v_lshrrev_b32 v32, 3, v{LANE}")
fswz(33, 32, 34)
g(f"""v_and_b32 v34, 7, v{LANE}
      v_xor_b32 v33, v33, v34
      v_lshlrev_b32 v33, 4, v33
      v_lshl_add_u32 v36, v32, 10, v33
      s_bfe_u32 s43, s{sWV}, 0x10001
      s_and_b32 s40, s43, 1
      s_mul_i32 s40, s40, 80
      v_xor_b32 v36, s40, v36
      s_lshr_b32 s41, s{sSLOT}, 1""")
if OPT["ksmap"] == 0:
    g(f"s_lshl_b32 s41, s41, 3\ns_add_u32 s41, s41, s{sXCD}             ; ks")
else:
    g(f"s_lshl_b32 s42, s{sXCD}, 4\ns_add_u32 s41, s41, s42             ; ks")
g(f"""s_mul_i32 s51, s41, {OPT["rot"]}
      s_add_u32 s51, s51, s43
      s_lshl_b32 s51, s51, 13
      s_and_b32 s51, s51, 0x1ffff
      s_lshl_b32 s52, s41, 17                 ; ks*128KB
      s_add_u32 s41, s52, s51
      s_lshl_b32 s42, s43, 10
      s_add_u32 s42, s42, {KV}
      s_waitcnt lgkmcnt(0)""")
srd(44, P_KV, 16777216)
srd(WS, P_WS, WS_REC)
if OPT["kvt"]:
    n = OPT["kvt"]; step = 131072 // n
    g(f"s_lshl_b32 s49, s43, 16\ns_add_u32 s49, s49, s52")
    for k in range(n // 2):
        g(f"s_add_u32 s50, s49, {k*step}\ns_load_dword s{56+(k&7)}, s[{P_KV}:{P_KV+1}], s50")
if OPT["vt"]:
    lds_wait(F_QI, 5, 40)
    g(f"""s_mov_b64 exec, 1
          buffer_load_dword v40, v{VZ}, {sr(44,4)}, s41 offen {pol('pkv')}
          s_mov_b64 exec, -1""")
if OPT["gate"] >= 20: lds_wait(F_QP, 1, 40)
elif OPT["gate"]:
    lds_wait(F_WQ if OPT["gate"] < 10 else F_Q, OPT["gate"] % 10, 40, sleep=1)
stamp(8)
NI = OPT["inflight"]
assert 1 <= NI <= 32
g(f"""s_lshl_b32 s48, s43, 2
      v_mov_b32 v37, s48
      s_mov_b32 s43, 0""")
def ld_loop(lab, NI, end):
    g.label(lab)
    for k in range(16):
        cb, hi = k & 7, k >> 3
        g(f"s_add_u32 m0, s42, {cb*(16384-128) + hi*2048}")
        if k == 8: g(f"s_add_u32 s51, s51, {2*8192}\ns_and_b32 s51, s51, 0x1ffff\ns_add_u32 s41, s52, s51")
        g(f"s_waitcnt vmcnt({NI-1})")
        if k == (NI - 1) % 16:
            g(f"""s_sub_u32 s48, s43, {(NI - 1) // 16}
                  s_max_i32 s48, s48, 0
                  v_mov_b32 v38, s48
                  ds_write_b32 v37, v38 offset:{F_LA}""")
        g(f"buffer_load_dwordx4 v36, {sr(44,4)}, s41 offen offset:{cb*128} {pol('pkv')} lds")
    g(f"""s_add_u32 s51, s51, {2*8192}
          s_and_b32 s51, s51, 0x1ffff
          s_add_u32 s41, s52, s51
          s_add_u32 s42, s42, {4*1024}
          s_add_u32 s43, s43, 1""")
    if OPT["ts"] == 2:
        g(f"""s_memrealtime vcc
              s_add_u32 s49, s43, 11
              s_mov_b32 m0, s49
              s_waitcnt lgkmcnt(0)
              v_writelane_b32 v{VTS}, vcc_lo, m0""")
    g(f"""s_cmp_lt_u32 s43, {end}
          s_cbranch_scc1 {lab}""")
if OPT["inf2"]:
    ld_loop("L_ld", NI, OPT["split"])
    ld_loop("L_ld2", OPT["inf2"], 4)
else:
    ld_loop("L_ld", NI, 4)
lds_inc(F_ISS)
stamp(1)
g(f"""v_mov_b32 v38, 3
      v_mov_b32 v39, 4
      s_waitcnt vmcnt(16)
      ds_write_b32 v37, v38 offset:{F_LA}
      s_waitcnt vmcnt(0)
      ds_write_b32 v37, v39 offset:{F_LA}""")
stamp(2)
g("s_branch L_G")
g.label("L_FFN")
XF = 8
g("s_waitcnt lgkmcnt(0)")
srd(WS, P_WS, WS_REC)
if OPT["uk6"]: g(f"s_cmp_eq_u32 s{sWV}, 11\ns_cbranch_scc1 L_FFNa")
srd(SR, P_WUK, 4194304)
g(f"""v_xor_b32 v8, v{vN}, v{vKG}
      v_lshlrev_b32 v8, 4, v8
      v_lshl_add_u32 v8, v{vKG}, 13, v8
      v_xor_b32 v9, 64, v8
      v_xor_b32 v10, 128, v8
      v_xor_b32 v11, 192, v8
      s_lshl_b32 s48, s{sCA}, 19
      s_lshl_b32 s49, s{sHA}, 8
      s_add_u32 s48, s48, s49""")
if OPT["ukgate"]: lds_wait(F_WQ, OPT["ukgate"], 40)
else: lds_wait(F_QI, 5, 40)
for u in range(16):
    g(f"s_mov_b32 m0, {QL + u*1024}")
    g(f"s_add_u32 s49, s48, {u*4*8192}")
    g(f"buffer_load_dwordx4 v{8+(u&3)}, {sr(SR,4)}, s49 offen {pol('puk')} lds")
if OPT["uk6"]:
    g("s_branch L_A_q")
    g.label("L_FFNa")
    if OPT["fgate"] == 0: lds_wait(F_QI, 5, 40)
if OPT["fgate"] == 9:
    g("s_waitcnt vmcnt(0)"); land_now()
elif OPT["fgate"] == 8:
    lds_wait(F_QP, 1, 40, sleep=1)
elif OPT["fgate"]:
    lds_wait(F_Q, OPT["fgate"], 40, sleep=1)
if OPT["forder"] == 1: lds_wait(F_ISS, 2, 40, sleep=2)
if OPT["forder"] == 5: lds_wait(F_H3, 8, 40, sleep=2)
if OPT["forder"] == 6: lds_wait(F_STG, 8, 40, sleep=2)
g("s_branch L_FFNb")
FFN_EARLY_END = True
g.label("L_G9")
g(f"""s_setprio 3
      s_waitcnt lgkmcnt(0)
      s_load_dword s40, s[{P_WS}:{P_WS+1}], {EPOCH}
      s_barrier""")
srd(WS, P_WS, WS_REC)
g(f"""v_lshlrev_b32 v8, 4, v{vN}              ; n*16
      s_lshl_b32 s41, s{sHA}, 3
      s_add_u32 s41, s41, s{sCA}
      s_lshl_b32 s41, s41, 8
      s_add_u32 s43, s41, {QAM}""")
if OPT["remap"]:
    g(f"""s_and_b32 s42, s{sXCD}, 1
          s_lshl_b32 s42, s42, 4
          s_lshr_b32 s41, s{sSLOT}, 1
          s_add_u32 s42, s42, s41                 ; hQ
          s_lshl_b32 s42, s42, {QS}
          s_and_b32 s41, s{sXCD}, 6
          s_and_b32 s45, s{sSLOT}, 1
          s_add_u32 s41, s41, s45
          s_lshl_b32 s41, s41, 8""")
else:
    g(f"s_lshl_b32 s42, s{sHF}, {QS}\ns_lshl_b32 s41, s{sJ}, 8")
g(f"""
      s_add_u32 s42, s42, s41
      s_add_u32 s42, s42, {QM}
      s_add_u32 s45, s42, 8192
      v_lshl_add_u32 v7, v{vKG}, 11, v8

      v_mov_b32 v11, 1
      s_waitcnt lgkmcnt(0)
      s_mul_i32 s{sTAG}, s40, 1664525
      s_add_u32 s{sTAG}, s{sTAG}, 1013904223
      v_mov_b32 v10, s{sTAG}
      v_mov_b32 v13, s{sTAG}
      v_mov_b32 v15, s{sTAG}
      ds_write_b64 v{VZ}, v[10:11] offset:{F_TAG}""")
stamp(1)
if OPT["warm"]:
    g(f"""s_and_b32 s46, s{sSLOT}, 1
          s_lshl_b32 s46, s46, {HS-3}
          s_add_u32 s46, s46, s{sXCD}
          s_lshl_b32 s46, s46, 7
          s_add_u32 s46, s46, {HD}
          v_lshlrev_b32 v9, {HS}, v{vN}
          v_and_b32 v16, {min(OPT["hrep"],4)-1}, v{vKG}
          v_lshl_add_u32 v9, v16, 15, v9
          s_add_u32 s46, s46, {LOFF}""")
    lds_wait(F_QI, 5, 40)
    if OPT["fast1"]:
        g(f"""buffer_load_dwordx4 v[16:19], v6, {sr(WS,4)}, s47 offen sc1
              buffer_load_dwordx4 v[16:19], v6, {sr(WS,4)}, s47 offen offset:1024 sc1""")
    NR = OPT["nrep"]
    EXM = {1: "s_mov_b64 exec, 0xffff", 2: "s_mov_b32 exec_hi, 0", 4: "", 8: ""}[NR]
    g(f"""{EXM}
          buffer_load_dwordx4 v[16:19], v7, {sr(WS,4)}, s42 offen sc1
          s_mov_b64 exec, -1
          {f"buffer_load_dwordx4 v[16:19], v7, {sr(WS,4)}, s45 offen sc1" if NR == 8 else ""}
          buffer_load_dwordx4 v[16:19], v8, {sr(WS,4)}, s43 offen sc1
          buffer_load_dword v16, v9, {sr(WS,4)}, s46 offen sc1""")
    if OPT["hrep"] == 8: g(f"s_add_u32 s46, s46, 0x20000\nbuffer_load_dword v16, v9, {sr(WS,4)}, s46 offen sc1")
rr = "\n".join(f"ds_read_b128 {vr(32+4*b,4)}, v8 offset:{REDQ+256*b}" for b in range(5))
if OPT["mg2"]: lds_wait(F_Q, 5, 40, extra=rr)
else:
    lds_wait(F_Q, 5, 40); g(rr); g("s_waitcnt lgkmcnt(0)")
sum_groups(32, 5)
g(f"""v_cvt_pk_bf16_f32 v12, v32, v33
      v_cvt_pk_bf16_f32 v14, v34, v35""")
if OPT["fast1"]:
    g(f"""buffer_store_dwordx4 v[12:15], v6, {sr(WS,4)}, s47 offen
          ds_write_b32 v{VZ}, v{VONE} offset:{F_QP}
          buffer_store_dwordx4 v[12:15], v6, {sr(WS,4)}, s47 offen offset:1024""")
NR = OPT["nrep"]
EXM = {1: "s_mov_b64 exec, 0xffff", 2: "s_mov_b32 exec_hi, 0", 4: "", 8: ""}[NR]
g(f"""{EXM}
      buffer_store_dwordx4 v[12:15], v7, {sr(WS,4)}, s42 offen {"" if OPT["l2q"] else "sc1"}
      ds_write_b32 v{VZ}, v{VONE} offset:{F_QP}
      {f"buffer_store_dwordx4 v[12:15], v7, {sr(WS,4)}, s45 offen {'' if OPT['l2q'] else 'sc1'}" if NR == 8 else ""}""")
QFB = f"buffer_store_dwordx4 v[148:151], v152, {sr(WS,4)}, s70 offen sc1"
if OPT["l2q"]:
    g("""v_mov_b32 v148, v12
         v_mov_b32 v149, v13
         v_mov_b32 v150, v14
         v_mov_b32 v151, v15
         s_mov_b32 s70, s42
         s_mov_b32 s71, s45""")
W1 = (64, QFB) if OPT["l2q"] else None
g("s_mov_b64 exec, 0xffff")
stamp(2)
rr = "\n".join(f"ds_read_b128 {vr(32+4*b,4)}, v8 offset:{REDQA+256*b}" for b in range(8))
if OPT["mg2"]:
    lds_wait(F_QA, 6, 40, watch=W1); lds_wait(F_QA, 8, 40, extra=rr, watch=W1)
else:
    lds_wait(F_QA, 8, 40); g(rr); g("s_waitcnt lgkmcnt(0)")
sum_groups(32, 8)
for r in range(4): g(f"v_mul_f32 v{32+r}, {hex(f32(SCALE))}, v{32+r}")
g(f"""v_cvt_pk_bf16_f32 v12, v32, v33
      v_cvt_pk_bf16_f32 v14, v34, v35
      buffer_store_dwordx4 v[12:15], v8, {sr(WS,4)}, s43 offen sc1
      ds_write_b32 v{VZ}, v{VONE} offset:{F_QAP}
      s_mov_b64 exec, -1
      s_setprio 0""")
stamp(3)
if OPT["uvgate"] < 2: lds_wait(F_H2I if OPT["uvgate"] else F_ISS, 8 if OPT["uvgate"] else 2, 40, sleep=1)
elif OPT["uvgate"] == 3: land_wait(4, 40, 24, sleep=1)
else: g("s_sleep 16")
if OPT["fast1"] and OPT["recl"]:
    g(f"""buffer_store_dwordx4 v[20:23], v6, {sr(WS,4)}, s47 offen sc1
          buffer_store_dwordx4 v[20:23], v6, {sr(WS,4)}, s47 offen offset:1024 sc1""")
g("s_branch L_G_uv9")

g.label("L_A_q")
g("s_setprio 2")
g(f"""s_and_b32 s40, s{sSLOT}, 1              ; g
      s_lshl_b32 s41, s40, 4
      s_lshl_b32 s42, s{sWV}, 1
      s_add_u32 s41, s41, s42                 ; 16g+2w
      s_lshl_b32 s41, s41, 11
      s_add_u32 s20, s41, {QAM}
      s_lshr_b32 s21, s{sSLOT}, 1             ; mi 0..15
      s_lshl_b32 s42, s40, 7                  ; 16g*8
      s_add_u32 s42, s42, s{sWV}
      s_lshl_b32 s42, s42, 3
      s_add_u32 s42, s42, s{sXCD}
      s_lshl_b32 s42, s42, 4
      s_add_u32 s42, s42, s21
      s_lshl_b32 s42, s42, 7
      s_add_u32 s26, s42, {IB}
      s_add_u32 s22, s26, {2*8*8*2048}
      s_lshl_b32 s42, s40, {HS-3}
      s_add_u32 s42, s42, s{sXCD}
      s_lshl_b32 s42, s42, 4
      s_add_u32 s42, s42, s21
      s_lshl_b32 s42, s42, 3
      s_add_u32 s27, s42, {HD}
      s_add_u32 s23, s27, {LOFF}
      s_lshl_b32 s42, s{sHF}, {HS-7}
      s_add_u32 s42, s42, s{sWV}
      s_lshl_b32 s42, s42, 7
      s_add_u32 s31, s42, {HD}
      s_lshl_b32 s42, s{sHF}, 3
      s_add_u32 s42, s42, s{sJ}
      s_lshl_b32 s42, s42, 3
      s_add_u32 s42, s42, s{sWV}              ; (h*8+j)*8+w
      s_lshl_b32 s30, s42, 11
      s_add_u32 s30, s30, {IB}
      s_lshl_b32 s42, s{sHA}, {QS-11}
      s_and_b32 s43, s{sCA}, {0 if OPT["l2q"] else OPT["nrep"]-1}
      s_add_u32 s42, s42, s43
      s_lshl_b32 s42, s42, 3
      s_add_u32 s42, s42, s{sWV}
      s_lshl_b32 s42, s42, 8
      s_add_u32 s42, s42, {QM}
      s_add_u32 s32, s{WS}, s42
      s_addc_u32 s33, s{WS+1}, 0
      s_mov_b32 s25, s42
      s_and_b32 s40, s{sWV}, 1
      s_lshl_b32 s40, s40, 3                  ; 8*dhalf'
      v_xor_b32 v6, s40, v{vN}
      v_lshlrev_b32 v6, 4, v6
      v_lshl_add_u32 v6, v{LANE}, 8, v6       ; row*256 + ...
      v_lshlrev_b32 v10, 2, v{LANE}
      s_lshl_b32 s40, s{sWV}, 8
      v_add_u32 v10, s40, v10
      v_mov_b32 v8, 0
      v_mov_b32 v9, 0""")
W = 80
QKA, PVA = 32, 96
fswz(24, vN, 25)
g(f"""v_xor_b32 v24, v24, v{vKG}
      v_lshlrev_b32 v24, 4, v24
      v_and_b32 v25, 7, v{vN}
      v_lshl_add_u32 v24, v25, 7, v24         ; + (i&7)*128
      v_lshrrev_b32 v25, 3, v{vN}
      v_lshl_add_u32 v24, v25, 10, v24        ; + (i>>3)*1024
      s_lshl_b32 s42, s{sWV}, 11
      s_add_u32 s42, s42, {KV}
      v_add_u32 v160, s42, v24
      v_xor_b32 v161, 64, v160
      v_add_u32 v162, 0x10000, v160
      v_add_u32 v163, 0x10000, v161
      v_lshrrev_b32 v26, 2, v{LANE}           ; i16""")
fswz(24, 26, 25)
g(f"""s_and_b32 s42, s{sWV}, 3
      s_lshl_b32 s42, s42, 1
      v_bfe_u32 v25, v{LANE}, 1, 1
      v_or_b32 v25, s42, v25                  ; xi = 2(w&3) + (c'>>1)
      v_xor_b32 v24, v24, v25
      v_lshlrev_b32 v24, 4, v24
      v_and_b32 v25, 1, v{LANE}
      v_lshl_add_u32 v24, v25, 3, v24
      v_and_b32 v25, 7, v26
      v_lshl_add_u32 v24, v25, 7, v24
      v_lshrrev_b32 v25, 3, v26
      v_lshl_add_u32 v24, v25, 10, v24
      s_lshr_b32 s42, s{sWV}, 2
      s_lshl_b32 s42, s42, 14
      s_add_u32 s42, s42, {KV}
      v_add_u32 v164, s42, v24
      v_add_u32 v165, 0x10000, v164
      v_lshrrev_b32 v24, 1, v{vN}             ; xi
      v_and_b32 v25, 4, v24
      v_lshl_or_b32 v25, v25, 1, v24          ; sigma
      s_lshl_b32 s42, s{sWV}, 1
      v_xor_b32 v25, s42, v25
      v_lshlrev_b32 v25, 4, v25
      v_lshl_add_u32 v25, v24, 8, v25         ; + xi*256
      v_lshl_add_u32 v25, v{vKG}, 11, v25     ; + (l>>4)*2048
      v_and_b32 v24, 1, v{LANE}
      v_lshl_add_u32 v28, v24, 3, v25
      v_xor_b32 v29, 16, v28
      v_xor_b32 v30, v{vN}, v{vKG}
      v_lshlrev_b32 v30, 4, v30
      v_lshl_add_u32 v30, v{vKG}, 8, v30
      v_xor_b32 v31, {12*16}, v30             ; odd s
      v_lshlrev_b32 v166, 4, v{LANE}          ; lane*16""")
g(f"s_cmp_ge_u32 s{sWV}, 5\ns_cbranch_scc1 L_A_q2")
for p in range(4):
    g(f"s_waitcnt vmcnt({6-2*p})")
    if p == 0 and (OPT['ukgate'] or 0 < OPT['gate'] < 10): lds_inc(F_WQ)
    e = 2 * p
    for d in range(2):
        g(f"v_perm_b32 v{48+8*d+p}, v{32+2*(e+1)+d}, v{32+2*e+d}, s{sPLO}")
        g(f"v_perm_b32 v{48+8*d+4+p}, v{32+2*(e+1)+d}, v{32+2*e+d}, s{sPHI}")
stamp(18)
lds_wait(F_XN, 1, 19, extra=f"ds_read_b128 v[116:119], v112 offset:{XNL}")
for t in range(4): mfma(64 + 4 * t, 116, 48 + 4 * t, True)
g(f"""s_nop 6
      v_mov_b32 v65, v68
      v_mov_b32 v66, v72
      v_mov_b32 v67, v76
      s_mov_b64 exec, 0xffff
      ds_write_b128 v113, v[64:67] offset:{REDQ}
      s_mov_b64 exec, 1
      ds_add_u32 v{VZ}, v{VONE} offset:{F_Q}
      s_mov_b64 exec, -1""")
g.label("L_A_q2")
stamp(2)
get_tag(7)
g(f"s_lshl_b32 s18, s{sTAG}, 5              ; 32*TAG")
if OPT["uk6"]:
    g(f"""s_cmp_eq_u32 s{sWV}, 6
          s_cbranch_scc0 L_nouk
          s_waitcnt vmcnt(0)
          ds_write_b32 v{VZ}, v{VONE} offset:{F_UK}""")
    stamp(17)
    g.label("L_nouk")
def wreads():
    for e in range(8):
        if e: g(f"v_xor_b32 v7, {e*16}, v6")
        g(f"ds_read_b128 {vr(W+4*e,4)}, v{6 if e == 0 else 7} offset:{QL}")
lds_wait(F_QP, 1, 19, sleep=1)
if OPT["d1"]: g(f"s_sleep {OPT['d1']}")
g(f"""ds_read_b32 v{VT}, v{VZ} offset:{F_UK}
      s_waitcnt lgkmcnt(0)
      v_readfirstlane_b32 s24, v{VT}
      s_nop 0
      s_cmp_eq_u32 s24, 0
      s_cbranch_scc1 L_now""")
wreads()
g.label("L_now")
stamp(3)
L, Lo = g.nl("h1"), g.nl("h1o")
if OPT["l2q"]:
    Lf, Lv = g.nl("h1f"), g.nl("h1v")
    g(f"s_mov_b32 s{sCNT}, {LIM_MEM}\ns_branch {Lf}")
    g.label(L)
    g(f"s_cmp_le_u32 s{sCNT}, {LIM_MEM-OPT['l2q']}\ns_cbranch_scc1 {Lv}\ns_sleep {OPT['bk1']}")
    if OPT["bk1b"]:
        Lb = g.nl("h1b")
        g(f"s_cmp_gt_u32 s{sCNT}, {LIM_MEM-4}\ns_cbranch_scc1 {Lb}\ns_sleep {OPT['bk1b']}\n{Lb}:")
    g.label(Lf)
    for k in range(4):
        g(f"s_load_dwordx16 {sr(36+16*k,16)}, s[32:33], {64*k}")
    g(f"""s_add_u32 s32, s32, 2048
          s_addc_u32 s33, s33, 0
          s_sub_u32 s{sCNT}, s{sCNT}, 1""")
else:
    g(f"s_mov_b32 s{sCNT}, {LIM_MEM}")
    g.label(L)
    for k in range(4):
        g(f"s_load_dwordx16 {sr(36+16*k,16)}, s[32:33], {64*k} glc")
    g(f"""s_sub_u32 s{sCNT}, s{sCNT}, 1
          s_cbranch_scc1 {Lo}""")
g(f"""s_waitcnt lgkmcnt(0)
      s_cmp_eq_u32 s99, s{sTAG}
      s_cbranch_scc0 {L}
      s_add_u32 s19, s37, s39""")
for k in range(2, 32):
    g(f"s_add_u32 s19, s19, s{37+2*k}")
g(f"s_cmp_eq_u32 s19, s18\ns_cbranch_scc0 {L}")
g.label(Lo)
H1V, H1O = (Lv, Lo) if OPT["l2q"] else (None, None)
cnt(23, sCNT)
stamp(1)
g(f"""s_cmp_eq_u32 s24, 0
      s_cbranch_scc0 L_havew""")
lds_wait(F_UK, 1, 19)
wreads()
g.label("L_havew")
for k in range(32):
    if k % 4 == 0: g(f"s_waitcnt lgkmcnt({7 - k//4})")
    g(f"v_dot2c_f32_bf16 v{8+(k&1)}, s{36+2*k}, v{W+k}")
g(f"""s_nop 2
      v_add_f32 v8, v8, v9
      ds_write_b32 v10, v8 offset:{REDQA}""")
lds_inc(F_QA)
stamp(4)
def qka_reads():
    for s in range(16):
        cb = s >> 1
        a = 160 + (s & 1) + (2 if cb >= 4 else 0)
        g(f"ds_read_b128 {vr(QKA+4*s,4)}, v{a} offset:{(cb&3)*16384}")
def pva_reads(u):
    for i in range(4):
        for hh in range(2):
            T = 2 * u + hh
            g(f"ds_read_b64_tr_b16 {vr(PVA+16*i+4*u+2*hh,2)}, v{164+(i>>1)} offset:{(i&1)*32768+T*2048}")
h2_loads = "\n".join(f"buffer_load_dwordx4 {vr(8+4*n,4)}, v{VL16}, {sr(WS,4)}, s20 offen offset:{1024*n} sc1" for n in range(4))
g(f"""s_lshr_b32 s42, s{sWV}, 1
      s_lshl_b32 s48, s42, 2
      s_lshl_b32 s48, 1, s48
      s_add_u32 s49, s48, 0x10000
      s_mov_b32 s50, {hex(f32(OPT["rng"]))}
      s_lshl_b32 s42, s42, 10
      s_and_b32 s43, s{sWV}, 1
      s_lshl_b32 s43, s43, 3
      s_add_u32 s42, s42, s43
      v_add_u32 v7, s42, v{VL16}
      v_add_u32 v28, {QL}, v28
      v_add_u32 v29, {QL}, v29
      v_add_u32 v26, 8192, v28
      v_add_u32 v27, 8192, v29
      s_and_b32 s45, s{sTAG}, 1
      s_mul_i32 s45, s45, 0x55555555
      s_and_b32 s44, s{sTAG}, 0xaaaaaaaa
      s_or_b32 s45, s45, s44
      s_mov_b32 s44, 0x00010001""")
lds_wait(F_QAP, 1, 42)
if OPT["d2"]: g(f"s_sleep {OPT['d2']}")
def h2_issue(lv):
    if OPT["h2land"] == lv:
        g(h2_loads)
        if OPT['uvgate'] == 1: lds_inc(F_H2I)
        stamp(5)
h2_issue(0)
land_wait(2, 42, 24, sleep=1)
h2_issue(2)
pva_reads(0); pva_reads(1)
land_wait(3, 42, 24, sleep=1)
h2_issue(3)
pva_reads(2)
g(f"s_cmp_lt_u32 s{sWV}, 6\ns_cbranch_scc1 L_qka")
land_wait(4, 42, 24)
g.label("L_qka")
qka_reads()
stamp(6)
L, Lo = g.nl("h2c"), g.nl("h2co")
g(f"s_mov_b32 s43, {LIM_MEM}")
g.label(L)
g("s_waitcnt vmcnt(0)")
tagcheck([9, 11, 13, 15, 17, 19, 21, 23], 24)
g(f"""s_cbranch_vccz {Lo}
      s_sub_u32 s43, s43, 1
      s_cbranch_scc1 {Lo}
      s_sleep {OPT["bk2"]}
      s_mov_b64 exec, vcc""")
g(h2_loads)
g(f"s_mov_b64 exec, -1\ns_branch {L}")
g.label(Lo)
cnt(24, 43)
stamp(7)
for n in range(4):
    g(f"ds_write2_b32 v{[28, 26, 29, 27][n]}, v{8+4*n}, v{10+4*n} offset0:0 offset1:1")
lds_inc(F_STG)
def bread(s): return f"ds_read_b128 {vr(8+4*(s&3),4)}, v{30+(s&1)} offset:{QL+s*1024}"
if OPT["mg4"]: lds_wait(F_STG, 8, 42, extra="\n".join(bread(s) for s in range(4)))
else: lds_wait(F_STG, 8, 42)
stamp(8)
if not OPT["mg4"]: g("\n".join(bread(s) for s in range(4)))
SA = 24
for s in range(16):
    g(f"s_waitcnt lgkmcnt({min(3, 15-s)})")
    mfma(SA, QKA + 4 * s, 8 + 4 * (s & 3), s == 0)
    if s + 4 < 16: g(bread(s + 4))
VM = 10
PF, OA = 32, 48
def pread(u): return f"ds_read_b128 {vr(PF+4*u,4)}, v{VL16} offset:{PL+1024*u}"
g("s_nop 7")
for r in range(4): g(f"v_exp_f32 v{12+r}, v{SA+r}")
g(f"""v_max3_f32 v9, v{SA}, v{SA+1}, v{SA+2}
      v_cvt_pk_bf16_f32 v16, v12, v13
      v_cvt_pk_bf16_f32 v17, v14, v15
      v_max_f32 v9, v9, v{SA+3}
      ds_write_b64 v7, v[16:17] offset:{PL}
      v_cmp_nle_f32 vcc, abs(v9), s50
      s_cmp_lg_u64 vcc, 0
      s_cselect_b32 s48, s49, s48
      s_mov_b64 exec, 1
      v_mov_b32 v8, s48
      ds_add_u32 v{VZ}, v8 offset:{F_PC}
      s_mov_b64 exec, -1""")
pva_reads(3)
stamp(15)
TP, IBV = 80, 84
fill = [f"v_lshrrev_b32 v12, 3, v{vN}",
        f"v_lshl_add_u32 v12, v{vKG}, 2, v12      ; head = 4q + (j>>3)",
        f"v_lshlrev_b32 v{IBV}, 17, v12",
        f"v_and_b32 v12, 7, v{vN}",
        f"v_lshl_add_u32 v{IBV}, v12, 4, v{IBV}",
        f"v_and_b32 v12, 3, v{LANE}",
        f"v_lshlrev_b32 v12, 3, v12",
        f"v_lshrrev_b32 v12, v12, s45",
        f"v_and_b32 v13, 0xff, v12", f"v_lshlrev_b32 v12, 15, v13", f"v_or_b32 v12, v12, v13"]
for d in range(4): fill += [f"v_lshrrev_b32 v13, {2*d}, v12", f"v_and_b32 v{TP+d}, s44, v13"]
S1 = 2
for _ in range(3): g(fill.pop(0))
if OPT["mg3"]: pc_wait(0xff, 0x22, 42, 48, extra="\n".join(pread(u) for u in range(S1)))
else:
    pc_wait(0xff, 0x22, 42, 48)
    g("\n".join(pread(u) for u in range(S1)))
for u in range(S1):
    g(f"s_waitcnt lgkmcnt({S1-1-u})")
    for i in range(4):
        mfma(OA + 4 * i, PF + 4 * u, PVA + 16 * i + 4 * u, u == 0)
        for _ in range(2): g(fill.pop(0))
assert not fill
if OPT["mg3"]: pc_wait(0xffff, 0x2222, 42, 48, extra="\n".join(pread(u) for u in range(S1, 4)))
else:
    pc_wait(0xffff, 0x2222, 42, 48)
    g("\n".join(pread(u) for u in range(S1, 4)))
g(f"s_cmp_lg_u32 s42, 0x2222\ns_cbranch_scc1 L_slow")
stamp(9)
for u in range(S1, 4):
    g(f"s_waitcnt lgkmcnt({3-u})")
    for i in range(4): mfma(OA + 4 * i, PF + 4 * u, PVA + 16 * i + 4 * u, u == 0)
g.label("L_pv2")
GR = 64
g("s_nop 6")
for a in range(2):
    A0, B0, T0 = GR + 4 * a, GR + 4 * a + 2, 72
    for d in range(2):
        g(f"v_perm_b32 v{A0+d}, v{OA+8*d+4+2*a}, v{OA+8*d+2*a}, s{sPHI}")
        g(f"v_perm_b32 v{B0+d}, v{OA+8*d+4+2*a+1}, v{OA+8*d+2*a+1}, s{sPHI}")
    g("s_nop 0")
    for d in range(2): g(f"v_mov_b32_dpp v{T0+d}, v{A0+d} row_ror:8 {DPPM}")
    for d in range(2): g(f"v_mov_b32_dpp v{A0+d}, v{B0+d} row_ror:8 row_mask:0xf bank_mask:0xc")
    for d in range(2): g(f"v_mov_b32_dpp v{B0+d}, v{T0+d} quad_perm:[0,1,2,3] row_mask:0xf bank_mask:0x3")
    for d in range(4): g(f"v_add_u32 v{A0+d}, s44, v{A0+d}")
    for d in range(4): g(f"v_bfi_b32 v{A0+d}, s44, v{TP+d}, v{A0+d}")
    g(f"buffer_store_dwordx4 {vr(A0,4)}, v{IBV}, {sr(WS,4)}, s{26 if a == 0 else 22} offen sc1")
if OPT["wogate"] == 1 or OPT["forder"] == 5 or OPT["hk"]: lds_inc(F_H3)
stamp(10)
if OPT["pr0"]: g("s_setprio 0")
MK = 76
g(f"""v_and_b32 v12, 1, v{LANE}
      v_lshlrev_b32 v12, 4, v12
      v_mov_b32 v13, 0xffff
      v_lshlrev_b32 v13, v12, v13
      v_bfe_u32 v12, v{LANE}, 1, 2""")
for p in range(4):
    g(f"v_cmp_eq_u32 vcc, {p}, v12\ns_nop 1\nv_cndmask_b32 v{MK+p}, v{VZ}, v13, vcc")
g(f"""v_lshlrev_b32 v16, 2, v{vN}
      s_lshl_b32 s42, s{sWV}, 6
      v_add_u32 v16, s42, v16
      v_lshrrev_b32 v17, 3, v{LANE}
      v_lshlrev_b32 v17, 2, v17
      v_add_u32 v17, s42, v17
      v_lshrrev_b32 v18, 3, v{vN}             ; a = j>>3
      s_lshl_b32 s42, s{sWV}, 1
      v_add_u32 v19, s42, v18
      v_mul_u32_u24 v19, 144, v19
      v_and_b32 v20, 7, v{vN}
      v_lshl_add_u32 v19, v20, 4, v19
      v_and_b32 v20, 1, v{vKG}
      v_lshl_add_u32 v19, v20, 3, v19
      v_lshrrev_b32 v20, 1, v{vKG}
      v_cmp_eq_u32 s[46:47], v18, v20
      v_lshlrev_b32 v14, 3, v{LANE}           ; lane*8""")
if OPT["d3"]: g(f"s_sleep {OPT['d3']}")
stamp(22)
IR = 104
ib_loads = f"""buffer_load_dwordx4 {vr(IR,4)}, v{VL16}, {sr(WS,4)}, s30 offen sc1
      buffer_load_dwordx4 {vr(IR+4,4)}, v{VL16}, {sr(WS,4)}, s30 offen offset:1024 sc1"""
def hdr_poll(nm, off, dstoff, flag, after="", mark=False, ap=24):
    L, Lo = g.nl(nm), g.nl(nm + "o")
    g(f"s_mov_b32 s43, {LIM_MEM}")
    if OPT["bkh"]:
        Lf = g.nl(nm + "f")
        g(f"s_branch {Lf}")
    g.label(L)
    if OPT["bkh"]:
        g(f"s_sleep {OPT['bkh']}")
        g.label(Lf)
    g(f"""s_load_dwordx16 s[52:67], s[{ap}:{ap+1}], {off} glc
          s_load_dwordx16 s[68:83], s[{ap}:{ap+1}], {off+64} glc
          s_sub_u32 s43, s43, 1
          s_cbranch_scc1 {Lo}
          s_waitcnt lgkmcnt(0)
          s_add_u32 s19, s53, s55""")
    for k in range(2, 16): g(f"s_add_u32 s19, s19, s{53+2*k}")
    g(f"s_cmp_eq_u32 s19, s18\ns_cbranch_scc0 {L}")
    g.label(Lo)
    g("s_waitcnt lgkmcnt(0)")
    if after: g(after)
    for k in range(16): g(f"v_writelane_b32 v24, s{52+2*k}, {k}")
    g("s_mov_b64 exec, 0xffff")
    if mark:
        g(f"""v_cmp_gt_i32 vcc, 0, v24
              s_cmp_lg_u64 vcc, 0
              s_cselect_b32 s42, 0x101, 1
              v_mov_b32 v25, s42""")
    g(f"""ds_write_b32 v16, v24 offset:{dstoff}
          s_mov_b64 exec, 1
          ds_add_u32 v{VZ}, v{25 if mark else VONE} offset:{flag}
          s_mov_b64 exec, -1""")
g(f"""s_add_u32 s24, s{WS}, s31
      s_addc_u32 s25, s{WS+1}, 0
      s_and_b32 s20, s{sJ}, {OPT["hrep"]-1}
      s_lshl_b32 s20, s20, 15
      s_add_u32 s20, s20, s24
      s_addc_u32 s21, s25, 0
      s_lshl_b32 s18, s{sTAG}, 4""")
for n in range(2):
    for p in range(4): g(f"v_and_b32 v{88+4*n+p}, 0x3f803f80, v{MK+p}")
if OPT["d3a"]: g(f"s_sleep {OPT['d3a']}")
if OPT["pr0"]: g("s_setprio 2")
hdr_poll("h3l", LOFF, LT, F_LT, after=(f"s_sleep {OPT['d3b']}\n" if OPT["d3b"] else "") + ib_loads, mark=True, ap=20)
cnt(25, 43)
stamp(11)
pc_wait(0xff, 8, 42, 43, off=F_LT)
g("s_cmp_lg_u32 s42, 8\ns_cbranch_scc1 L_genw")
g.label("L_genw_ret")
L, Lo = g.nl("h3d"), g.nl("h3do")
g(f"s_mov_b32 s43, {LIM_MEM}")
g.label(L)
g("s_waitcnt vmcnt(0)")
for k in range(8): g(f"v_xor_b32 v{IR+k}, v{IR+k}, v{TP+(k&3)}")
g(f"""v_or3_b32 v{VT}, v{IR}, v{IR+1}, v{IR+2}
      v_or3_b32 v12, v{IR+3}, v{IR+4}, v{IR+5}
      v_or3_b32 v{VT}, v{VT}, v{IR+6}, v{IR+7}
      v_bitop3_b32 v{VT}, v{VT}, v12, s44 bitop3:0xa8
      v_cmp_ne_u32 vcc, 0, v{VT}
      s_cbranch_vccz {Lo}
      s_sub_u32 s43, s43, 1
      s_cbranch_scc1 {Lo}
      s_lshr_b64 s[48:49], vcc, 4
      s_or_b64 vcc, vcc, s[48:49]
      s_lshr_b64 s[48:49], vcc, 2
      s_or_b64 vcc, vcc, s[48:49]
      s_lshr_b64 s[48:49], vcc, 1
      s_or_b64 vcc, vcc, s[48:49]
      s_and_b32 s48, vcc_lo, 0x01010101
      s_and_b32 s49, vcc_hi, 0x01010101
      s_mul_i32 exec_lo, s48, 0xff
      s_mul_i32 exec_hi, s49, 0xff
      s_sleep {OPT["bk3"]}
      {ib_loads}
      s_branch {L}""")
g.label(Lo)
g("s_mov_b64 exec, -1")
cnt(26, 43)
stamp(12)
mfma(96, 88, IR, True)
mfma(96, 92, IR + 4, False)
g(f"""s_nop 7
      v_cvt_pk_bf16_f32 v100, v96, v97
      v_cvt_pk_bf16_f32 v101, v98, v99
      s_mov_b64 exec, s[46:47]
      ds_write_b64 v19, v[100:101] offset:{RIB}
      s_mov_b64 exec, 1
      ds_add_u32 v{VZ}, v{VONE} offset:{F_IB}
      s_mov_b64 exec, -1""")
stamp(13)
g(f"""s_cmp_lt_u32 s{sWG}, 20
      s_cbranch_scc0 L_A_end
      s_lshl_b32 s41, s{sWG}, 14
      s_lshl_b32 s42, s{sWV}, 11
      s_add_u32 s41, s41, s42
      s_add_u32 s41, s41, {SM}
      v_and_b32 v7, 7, v{LANE}
      v_lshlrev_b32 v7, 2, v7
      v_lshrrev_b32 v6, 5, v{LANE}
      v_lshl_add_u32 v7, v6, 1, v7
      v_and_b32 v6, 1, v{vKG}
      v_add_u32 v7, v7, v6
      v_lshlrev_b32 v18, 5, v7
      s_lshl_b32 s42, s{sWV}, 2
      v_add_u32 v6, s42, v18
      v_lshlrev_b32 v7, 1, v7
      s_lshl_b32 s55, s{sWG}, 6""")
tagbytes()
def red8(b):
    g(f"""s_nop 1
          v_permlane32_swap_b32 v{b}, v{b+2}
          v_permlane32_swap_b32 v{b+1}, v{b+3}
          v_pk_add_f32 {vr(b,2)}, {vr(b,2)}, {vr(b+2,2)}
          s_nop 1
          v_permlane16_swap_b32 v{b}, v{b+1}
          v_add_f32 v{b}, v{b}, v{b+1}
          s_nop 1
          v_add_f32_dpp v{b}, v{b}, v{b} row_ror:8 {DPPM}""")
g(f"""s_cmp_eq_u32 s{sWV}, 0
      s_cbranch_scc0 L_fin_s""")
srd(SR, P_X, 1280)
g(f"""buffer_load_ushort v16, v7, {sr(SR,4)}, s55 offen
      s_lshl_b32 s40, s{sWG}, 12
      s_add_u32 s40, s40, {YM}""")
poll_loads("h7", f"""v_mov_b32 v60, s{sTB}
      v_mov_b32 v61, s{sTB+1}
      v_mov_b32 v62, s{sTB+2}
      v_mov_b32 v63, s{sTB+3}
      buffer_load_dwordx4 v[48:51], v{VL16}, {sr(WS,4)}, s40 offen sc1
      buffer_load_dwordx4 v[52:55], v{VL16}, {sr(WS,4)}, s40 offen offset:1024 sc1
      buffer_load_dwordx4 v[56:59], v{VL16}, {sr(WS,4)}, s40 offen offset:2048 sc1
      s_mov_b64 exec, 0xffffff
      buffer_load_dwordx4 v[60:63], v{VL16}, {sr(WS,4)}, s40 offen offset:3072 sc1
      s_mov_b64 exec, -1""", [48, 52, 56, 60], 43, sleep=4, mask=False, b8=True)
sum_groups(48, 4)
red8(48)
rne(48)
g(f"""v_mul_f32 v49, {hex(f32(-math.log2(math.e)))}, v48
      v_exp_f32 v49, v49
      s_nop 0
      v_add_f32 v49, 1.0, v49
      v_rcp_f32 v49, v49
      s_nop 0
      v_mul_f32 v48, v48, v49""")
rne(48)
g("v_lshlrev_b32 v20, 16, v16")
stamp(19)
g.label("L_fin_s")
lds_wait(F_SD, 4 - OPT["w8x3"], 42, sleep=1)
if OPT["d5"]: g(f"s_sleep {OPT['d5']}")
poll_loads("h5", f"""buffer_load_dwordx4 v[32:35], v{VL16}, {sr(WS,4)}, s41 offen sc1
      buffer_load_dwordx4 v[36:39], v{VL16}, {sr(WS,4)}, s41 offen offset:1024 sc1""", [32, 36], 43, sleep=OPT["bk5"], b8=True)
cnt(27, 43)
stamp(20)
sum_groups(32, 2)
red8(32)
g(f"""ds_write_b32 v6, v32 offset:{RFIN}
      s_mov_b64 exec, 1
      ds_add_u32 v{VZ}, v{VONE} offset:{F_FIN}
      s_mov_b64 exec, -1
      s_cmp_eq_u32 s{sWV}, 0
      s_cbranch_scc0 L_A_end""")
srd(44, P_OUT, 1280)
lds_wait(F_FIN, 8, 42, extra=f"ds_read_b128 v[32:35], v18 offset:{RFIN}\nds_read_b128 v[36:39], v18 offset:{RFIN+16}")
sum_groups(32, 2)
g("v_pk_add_f32 v[32:33], v[32:33], v[34:35]\nv_add_f32 v32, v32, v33")
rne(32)
g("v_mul_f32 v32, v32, v48")
rne(32)
g(f"""v_add_f32 v32, v32, v20
      v_cvt_pk_bf16_f32 v32, v32, v32
      buffer_store_short v32, v7, {sr(44,4)}, s55 offen {'sc1' if OPT['osc'] else ''}
      s_cmp_eq_u32 s{sWG}, 0
      s_cbranch_scc0 L_noep
      s_mov_b64 exec, 1
      v_mov_b32 v13, s{sTAG}
      buffer_store_dword v13, v{VZ}, {sr(WS,4)}, 0 offen offset:{EPOCH} sc1""")
g.label("L_noep")
stamp(21)
g.label("L_A_end")
ts_flush()
g("s_endpgm")
if OPT["l2q"]:
    g.label(H1V)
    g(f"""v_and_b32 v11, 31, v{LANE}
          v_lshlrev_b32 v11, 3, v11""")
    poll_loads("h1p", f"buffer_load_dwordx2 v[12:13], v11, {sr(WS,4)}, s25 offen sc1", [13], 19, sleep=2)
    for k in range(32): g(f"v_readlane_b32 s{36+2*k}, v12, {k}")
    g(f"s_nop 1\ns_branch {H1O}")
g.label("L_genw")
if OPT["nom"]:
    Lz = g.nl("gz")
    g(f"""v_mov_b32 v26, 0
          s_mov_b64 exec, 0xffff
          v_cmp_gt_i32 vcc, 0, v24
          s_and_b64 exec, vcc, 0xffff
          s_cbranch_execz {Lz}""")
    poll_loads("h3m", f"buffer_load_dwordx2 v[26:27], v14, {sr(WS,4)}, s31 offen sc1", [27], 43, sleep=2)
    g.label(Lz)
    g(f"""s_mov_b64 exec, 0xffff
          ds_write_b32 v16, v26 offset:{MLT}
          s_mov_b64 exec, 1
          ds_add_u32 v{VZ}, v{VONE} offset:{F_ML}
          s_mov_b64 exec, -1""")
else:
    hdr_poll("h3m", 0, MLT, F_ML)
lds_wait(F_ML, 8, 42)
g(f"""ds_read_b64 v[24:25], v14 offset:{MLT}
      ds_read_b32 v8, v17 offset:{MLT}
      ds_read_b32 v9, v17 offset:{MLT+32}
      s_waitcnt lgkmcnt(0)""")
global_max(22, 24)
g(f"""v_sub_f32 v8, v8, v22
      v_sub_f32 v9, v9, v22
      v_exp_f32 v8, v8
      v_exp_f32 v9, v9
      s_nop 0
      v_cvt_pk_bf16_f32 v8, v8, v8
      v_cvt_pk_bf16_f32 v9, v9, v9""")
for n in range(2):
    for p in range(4): g(f"v_and_b32 v{88+4*n+p}, v{8+n}, v{MK+p}")
g("s_branch L_genw_ret")
g.label("L_slow")
g(f"""v_mov_b32 v8, v9
      v_lshlrev_b32 v6, 5, v{vN}
      s_lshl_b32 s42, s{sWV}, 2
      v_add_u32 v29, s42, v6
      s_mov_b32 s43, 0x3f803f80
      v_permlane16_swap_b32 v9, v8
      v_max_f32 v9, v9, v8
      v_mov_b32 v8, v9
      s_nop 1
      v_permlane32_swap_b32 v9, v8
      v_max_f32 v9, v9, v8
      s_mov_b64 exec, 0xffff
      ds_write_b32 v29, v9 offset:{RMX}
      s_mov_b64 exec, 1
      ds_add_u32 v{VZ}, v{VONE} offset:{F_MAX}
      s_mov_b64 exec, -1""")
lds_wait(F_MAX, 8, 42, extra=f"ds_read_b128 v[12:15], v6 offset:{RMX}\nds_read_b128 v[16:19], v6 offset:{RMX+16}")
g(f"""v_max3_f32 v{VM}, v12, v13, v14
      v_max3_f32 v16, v15, v16, v17
      v_max3_f32 v{VM}, v{VM}, v18, v19
      v_max_f32 v{VM}, v{VM}, v16""")
for r in range(4): g(f"v_sub_f32 v{SA+r}, v{SA+r}, v{VM}")
for r in range(4): g(f"v_exp_f32 v{SA+r}, v{SA+r}")
g(f"""v_lshlrev_b32 v15, {HS}, v{vN}
      v_cvt_pk_bf16_f32 v12, v{SA}, v{SA+1}
      v_cvt_pk_bf16_f32 v13, v{SA+2}, v{SA+3}
      ds_write_b64 v7, v[12:13] offset:{PL}""")
lds_inc(F_P)
lds_wait(F_P, 8, 42)
g("\n".join(pread(u) for u in range(4)))
g("v_mov_b32 v12, 0\nv_mov_b32 v14, 0\ns_waitcnt lgkmcnt(0)")
for u in range(4):
    for i in range(4):
        mfma(OA + 4 * i, PF + 4 * u, PVA + 16 * i + 4 * u, u == 0)
        g(f"v_dot2c_f32_bf16 v{12+2*(i&1)}, s43, v{PF+4*u+i}")
def l_store(so, va):
    n = OPT["hrep"]
    g({1: "s_mov_b64 exec, 0xffff", 2: "s_mov_b32 exec_hi, 0", 4: "", 8: ""}[n])
    g(f"buffer_store_dwordx2 v[12:13], v{va}, {sr(WS,4)}, s{so} offen sc1")
    if n == 8: g(f"s_add_u32 s{so}, s{so}, 0x20000\nbuffer_store_dwordx2 v[12:13], v{va}, {sr(WS,4)}, s{so} offen sc1")
    g("s_mov_b64 exec, -1")
def lsum():
    g(f"""v_mov_b32 v13, s{sTAG}
          v_mov_b32 v11, s{sTAG}
          s_nop 0
          v_add_f32 v12, v12, v14
          v_mov_b32 v14, v12
          s_nop 1
          v_permlane16_swap_b32 v12, v14
          v_add_f32 v12, v12, v14
          v_mov_b32 v14, v12
          s_nop 1
          v_permlane32_swap_b32 v12, v14
          v_add_f32 v12, v12, v14""")
lsum()
g(f"""v_or_b32 v12, 0x80000000, v12
      s_cmp_eq_u32 s{sWV}, 0
      s_cbranch_scc0 L_pv2
      s_mov_b64 exec, 0xffff
      buffer_store_dwordx2 v[10:11], v15, {sr(WS,4)}, s27 offen sc1
      s_mov_b64 exec, -1
      v_lshl_add_u32 v14, v{vKG}, 15, v15""")
l_store(23, 14)
g("s_branch L_pv2")

KORD = (0, 2, 1, 3)
TH = OPT["gthr"]
def wo_setup():
    g(f"""v_mul_u32_u24 v6, {8*1280}, v{vKG}
          v_lshl_add_u32 v6, v{vN}, 3, v6
          s_lshl_b32 s40, s{sHF}, 7
          s_lshr_b32 s41, s{sJ}, 1
          s_lshl_b32 s41, s41, 5
          s_add_u32 s40, s40, s41
          s_mul_i32 s40, s40, 1280
          s_and_b32 s41, s{sJ}, 1
          s_mul_i32 s41, s41, 640
          s_add_u32 s48, s40, s41""")
    srd(44, P_WO, 5242880)

def wo_gate():
    if OPT["wogate"] == 1: lds_wait(F_H3, 8, 40, sleep=1)
    elif OPT["wogate"] == 2: lds_wait(F_IB, 1, 40, sleep=2)

def h4_setup():
    g(f"""v_and_b32 v31, 7, v{vN}
          v_lshlrev_b32 v29, 7, v31
          v_lshl_add_u32 v29, v{vKG}, 5, v29
          s_lshl_b32 s50, s{sHF}, 2
          s_lshr_b32 s51, s{sJ}, 1
          s_add_u32 s50, s50, s51                 ; p = h*4+dq
          s_lshl_b32 s61, s50, 10
          s_add_u32 s61, s61, {CXM}
          v_lshrrev_b32 v30, 3, v{vN}
          v_lshlrev_b32 v30, 14, v30
          v_lshl_add_u32 v30, v31, 4, v30         ; (n>>3)*16K + (n&7)*16
          v_mov_b32 v31, 0xff
          s_and_b32 s41, s{sJ}, 1
          s_mul_i32 s41, s41, {10*16384}
          s_lshl_b32 s50, s50, 7
          s_add_u32 s50, s50, s41
          s_add_u32 s50, s50, {SM}""")
    tagbytes()

def h4_warm(A, cbks):
    g(f"buffer_load_dwordx4 {vr(A,4)}, v29, {sr(WS,4)}, s61 offen sc1")
    for cbk in cbks:
        g(f"""s_add_u32 s51, s50, {cbk*2*16384}
              buffer_load_dwordx4 {vr(A+4,4)}, v30, {sr(WS,4)}, s51 offen sc1""")

def h4_wait(A, late=""):
    Ls = g.nl("h4s")
    onfail = f"""s_cmp_lg_u32 s43, {LIM_MEM-32}
          s_cbranch_scc1 {Ls}
          {late}
          {Ls}:""" if (OPT["fast4"] and late) else ""
    poll_loads("h4", f"""buffer_load_dwordx4 {vr(A,4)}, v29, {sr(WS,4)}, s61 offen sc1
          buffer_load_dwordx4 {vr(A+4,4)}, v29, {sr(WS,4)}, s61 offen offset:16 sc1""", [A+1, A+3, A+5, A+7], 43, sleep=OPT["bk4"], onfail=onfail)
    g(f"v_mov_b32 v{A+1}, v{A+4}\nv_mov_b32 v{A+3}, v{A+6}\ns_nop 1")

def rl_wait():
    lds_wait(F_RLV, 1, 40, extra=f"ds_read_b32 v28, v{VZ} offset:{RLINV}")

def wo_compute(A, frags, cbks, D):
    for bi, fr in enumerate(frags):
        for t in range(4): mfma(D + 16 * bi + 4 * t, A, fr + 4 * t, True)
    g("s_nop 4" if len(frags) == 1 else "s_nop 0")
    for bi, cbk in enumerate(cbks):
        d = D + 16 * bi
        for t in range(4): g(f"v_pk_add_f32 {vr(d+4*t,2)}, {vr(d+4*t,2)}, {vr(d+4*t+2,2)}")
        for t in range(4): g(f"v_add_f32 v{16+t}, v{d+4*t}, v{d+4*t+1}")
        for t in range(4): g(f"v_mov_b32 v{20+t}, v{16+t}")
        g(f"s_add_u32 s51, s50, {cbk*2*16384}")
        for t in range(4): g(f"v_permlane16_swap_b32 v{16+t}, v{20+t}")
        g("v_pk_add_f32 v[16:17], v[16:17], v[20:21]\nv_pk_add_f32 v[18:19], v[18:19], v[22:23]")
        for t in range(4): g(f"v_mul_f32 v{d+t}, v{16+t}, v28")
        tagput([d, d+1, d+2, d+3], 31)
        g(f"""s_mov_b64 exec, 0xffff
              buffer_store_dwordx4 {vr(d,4)}, v30, {sr(WS,4)}, s51 offen sc1
              s_mov_b64 exec, -1""")
    lds_inc(F_SD)

def b1_gate():
    if OPT["b1gate"]:
        land_flush()
        if OPT['b1gate'] == 9: pc_wait(0xffff, 0x2222, 40, 41, sleep=1)
        else: lds_wait(F_STG, OPT['b1gate'], 40, sleep=2)

g.label("L_G")
if OPT["ldw"]: g(f"s_sleep {OPT['ldw']}")
get_tag(6)
g(f"""s_cmp_eq_u32 s{sWV}, 10
      s_cbranch_scc1 L_G_uv10""")
LD.pending = False
wo_setup(); h4_setup()
if OPT["dec"]: h4_warm(8, [0, 1] + [4] * OPT["w8x3"])
b1_gate()
if OPT["wogate"]: land_flush()
wo_gate()
stamp(4)
load_block(32, 6, 44, 48, 42, 1280, TH)
g("s_add_u32 s49, s48, 128")
load_block(48, 6, 44, 49, 42, 1280, TH)
X3 = OPT["w8x3"]
if X3:
    g("s_add_u32 s49, s48, 512")
    load_block(144, 6, 44, 49, 42, 1280, TH)
land_flush()
def w8_perms():
    g(f"s_waitcnt vmcnt({8+8*X3})")
    perm_block(32, 64, KORD)
    g(f"s_waitcnt vmcnt({8*X3})")
    perm_block(48, 80, KORD)
    if X3:
        g("s_waitcnt vmcnt(0)")
        perm_block(144, 32, KORD)
if not OPT['dec']:
    w8_perms()
    h4_warm(8, [0, 1] + [4] * X3)
stamp(5)
g(f"""v_lshlrev_b32 v16, 3, v{LANE}
""")
g("v_mov_b32 v20, 1.0\nv_mov_b32 v21, 1.0")
lds_wait(F_LT, 1, 40, sleep=1)
g("s_setprio 2")
pc_wait(0xff, 8, 40, 41, off=F_LT, extra=f"ds_read_b64 v[24:25], v16 offset:{LT}")
g("s_cmp_eq_u32 s40, 8\ns_cbranch_scc1 L_unitw")
lds_wait(F_ML, 8, 40)
g(f"ds_read_b64 v[20:21], v16 offset:{MLT}\ns_waitcnt lgkmcnt(0)")
global_max(22, 20)
g(f"""v_sub_f32 v20, v20, v22
      v_sub_f32 v21, v21, v22
      v_exp_f32 v20, v20
      v_exp_f32 v21, v21
      s_nop 0""")
rne(20); rne(21)
g.label("L_unitw")
g("v_mul_f32 v24, abs(v24), v20\nv_fma_f32 v24, abs(v25), v21, v24")
wave_sum(24, 40)
g(f"""s_nop 1
      v_rcp_f32 v24, s40
      s_nop 0
      ds_write_b32 v{VZ}, v24 offset:{RLINV}
      ds_write_b32 v{VZ}, v{VONE} offset:{F_RLV}
      v_mov_b32 v28, v24""")
if OPT["dec"]: w8_perms()
lds_wait(F_IB, 8, 40, sleep=1)
h4_wait(8)
stamp(6)
wo_compute(8, [64, 80] + [32] * X3, [0, 1] + [4] * X3, 96)
stamp(7)
g("s_branch L_G_end")

def uv_loads():
    g(f"""v_lshlrev_b32 v7, 13, v{vKG}
          v_lshl_add_u32 v7, v{vN}, 3, v7
          s_lshl_b32 s56, s{sJ}, 17               ; 16j rows
          s_lshl_b32 s41, s{sHF}, 8
          s_add_u32 s56, s56, s41
          s_sub_u32 s52, s{sWV}, 9                ; colhalf
          s_lshl_b32 s41, s52, 7
          s_add_u32 s56, s56, s41
          s_add_u32 s57, s56, {4*8192}""")
    srd(SR, P_WUV, 4194304)
    b1_gate()
    stamp(4)
    rows = [128 * (e & 3) + 8 * (e >> 2) for e in range(8)]
    load_block(32, 7, SR, 56, 42, 8192, TH, rows)
    load_block(48, 7, SR, 57, 42, 8192, TH, rows)
g.label("L_G_uv10")
g.label("L_G_uv9")
LD.pending = False
uv_loads()
g.label("L_G_uv")
wo_setup(); h4_setup()
g(f"""s_add_u32 s49, s52, 2
      s_mul_i32 s53, s49, {2*16384}
      s_add_u32 s50, s50, s53
      s_lshl_b32 s49, s49, 7
      s_add_u32 s49, s49, s48
      v_and_b32 v7, 7, v{vN}
      v_mul_u32_u24 v8, 144, v{vN}
      v_lshl_add_u32 v8, v{vKG}, 4, v8
      v_lshlrev_b32 v9, 4, v{LANE}
      v_lshrrev_b32 v11, 3, v{vN}
      v_lshlrev_b32 v11, 10, v11
      v_lshl_add_u32 v11, v7, 4, v11          ; (n>>3)*1024 + (n&7)*16
      s_lshl_b32 s40, s{sHF}, 2
      s_lshl_b32 s41, s52, 1
      s_add_u32 s40, s40, s41
      s_lshl_b32 s40, s40, 3
      s_add_u32 s40, s40, s{sJ}
      s_lshl_b32 s40, s40, 7
      s_add_u32 s54, s40, {CXM}""")
if not OPT["wogate"]:
    load_block(64, 6, 44, 49, 42, 1280, TH)
    h4_warm(16, [0])
g(f"""s_cmp_eq_u32 s{sWV}, 9
      s_cbranch_scc0 L_nohd
      s_and_b32 s56, s{sSLOT}, 1
      s_lshl_b32 s56, s56, {HS-3}
      s_add_u32 s56, s56, s{sXCD}
      s_lshl_b32 s56, s56, 4
      s_lshr_b32 s57, s{sSLOT}, 1
      s_add_u32 s56, s56, s57
      s_lshl_b32 s56, s56, 3
      s_add_u32 s56, s56, {HD}
      s_add_u32 s57, s56, {LOFF}
      v_lshlrev_b32 v15, {HS}, v{vN}
      v_lshl_add_u32 v27, v{vKG}, 15, v15
      v_mov_b32 v24, 0
      v_mov_b32 v25, s{sTAG}
      v_mov_b32 v12, 0
      v_mov_b32 v14, 0
      v_mov_b32 v26, v11
      s_mov_b32 s58, 0x3f803f80""")
pc_wait(0xfff, 0x222, 40, 41, sleep=1, watch=W1)
g(f"s_setprio {OPT['hp']}")
pc_wait(0xffff, 0x2222, 40, 41)
g(f"""s_cmp_lg_u32 s40, 0x2222
      s_cbranch_scc1 L_nohd2""")
g("\n".join(f"ds_read_b128 {vr(128+4*u,4)}, v9 offset:{PL+1024*u}" for u in range(4)))
for u in range(4):
    g(f"s_waitcnt lgkmcnt({3-u})")
    for i in range(4): g(f"v_dot2c_f32_bf16 v{12+2*(i&1)}, s58, v{128+4*u+i}")
lsum()
if OPT["hk"]: lds_wait(F_H3, OPT["hk"], 40)
elif OPT["dl"]: g(f"s_sleep {OPT['dl']}")
l_store(57, 27)
if not OPT["nom"]:
    g(f"""s_mov_b64 exec, 0xffff
          buffer_store_dwordx2 v[24:25], v15, {sr(WS,4)}, s56 offen sc1
          s_mov_b64 exec, -1""")
stamp(10)
g.label("L_nohd2")
g(f"""v_mov_b32 v11, v26
      s_setprio 0
      {("s_waitcnt vmcnt(1)" if OPT["nom"] else "s_waitcnt vmcnt(2)") if not OPT["wogate"] else ""}""")
def qfb9(both):
    Lq = g.nl("qf")
    t = f"s_cmp_eq_u32 s{sWV}, 9\ns_cbranch_scc0 {Lq}\n{QFB}\n"
    if both and OPT["l2q"] == 8: t += QFB.replace("s70", "s71") + "\n"
    return t + f"{Lq}:"
if OPT["l2q"] and OPT["qcl"] == 2: g(qfb9(True))
g.label("L_nohd")
if OPT["wogate"]:
    wo_gate()
    load_block(64, 6, 44, 49, 42, 1280, TH)
    h4_warm(144, [0])
g("s_waitcnt vmcnt(18)")
perm_block(32, 80)
g("s_waitcnt vmcnt(10)")
perm_block(48, 96)
g(f"v_mov_b32 v61, s{sTAG}\nv_mov_b32 v63, s{sTAG}")
if not OPT["wogate"]:
    g("s_waitcnt vmcnt(0)")
    perm_block(64, 112, KORD)
stamp(5)
pc_wait(0xff, 8, 40, 41, off=F_LT, sleep=2, watch=(48, qfb9(False)) if OPT["l2q"] else None)
if not OPT["dec"]: rl_wait()
g("s_setprio 3")
rr = f"ds_read_b128 v[32:35], v8 offset:{RIB}\nds_read_b128 v[36:39], v8 offset:{RIB+64}"
if OPT["mg1"]: lds_wait(F_IB, 8, 40, extra=rr)
else:
    lds_wait(F_IB, 8, 40); g(rr)
stamp(6)
D = 128
for blk in range(2):
    g(f"s_waitcnt lgkmcnt({1-blk})")
    for t in range(4): mfma(D + 4 * t, 32 + 4 * blk, 80 + 16 * blk + 4 * t, blk == 0)
g("s_nop 4")
for t in range(4): g(f"v_pk_add_f32 {vr(D+4*t,2)}, {vr(D+4*t,2)}, {vr(D+4*t+2,2)}")
for t in range(4): g(f"v_add_f32 v{16+t}, v{D+4*t}, v{D+4*t+1}")
g(f"""s_nop 0
      v_permlane32_swap_b32 v16, v18
      v_permlane32_swap_b32 v17, v19
      v_pk_add_f32 v[16:17], v[16:17], v[18:19]
      v_mov_b32 v18, v16
      v_mov_b32 v19, v17
      s_nop 0
      v_permlane16_swap_b32 v16, v18
      v_permlane16_swap_b32 v17, v19
      v_pk_add_f32 v[16:17], v[16:17], v[18:19]
      v_cvt_pk_bf16_f32 v60, v16, v17
      v_mov_b32 v62, v60
      s_nop 1
      v_permlane32_swap_b32 v60, v62""")
g(f"""s_mov_b64 exec, 0xffff
      buffer_store_dwordx4 v[60:63], v11, {sr(WS,4)}, {"s54 offen" if OPT["fast4"] else "s54 offen sc1"}
      s_mov_b64 exec, -1""")
stamp(7)
if OPT["wogate"]:
    g("s_waitcnt vmcnt(1)")
    perm_block(64, 112, KORD)
if OPT["dec"]: rl_wait()
late = f"s_mov_b64 exec, 0xffff\nbuffer_store_dwordx4 v[60:63], v11, {sr(WS,4)}, s54 offen sc1"
h4_wait(32, late)
stamp(8)
wo_compute(32, [112], [0], 128)
if OPT["fast4"]: g((f"s_sleep {OPT['d4']}\n" if OPT['d4'] else "") + late + "\ns_mov_b64 exec, -1")
if OPT["l2q"] and OPT["qcl"] == 1: g(qfb9(True))
stamp(9)
g("s_branch L_G_end")

def w11_loads():
    wo_setup()
    g("s_add_u32 s49, s48, 512")
    lds_wait(F_ISS, 2, 40, sleep=2)
    load_block(128, 6, 44, 49, 42, 1280, TH)
g.label("L_FFNb")
PEND = OPT["fgate"] != 9 and not OPT["uk6"]
if OPT["remap"]:
    g(f"""s_and_b32 s40, s{sXCD}, 1
          s_lshl_b32 s62, s{sSLOT}, 1
          s_add_u32 s62, s62, s40                 ; u in 0..63
          s_lshr_b32 s63, s{sXCD}, 1              ; mq""")
else:
    g(f"""s_lshr_b32 s40, s{sSLOT}, 3             ; hq
      s_lshl_b32 s40, s40, 1
      s_and_b32 s41, s{sJ}, 1
      s_add_u32 s40, s40, s41
      s_lshl_b32 s40, s40, 3
      s_add_u32 s62, s40, s{sXCD}             ; u in 0..63
      s_lshr_b32 s63, s{sJ}, 1                ; mq""")
g(f"""v_and_b32 v31, 1, v{vKG}
      v_cmp_eq_u32 s[56:57], 1, v31
      s_cmp_lt_u32 s62, 27
      s_cbranch_scc0 L_FFN2""")
LD.pending = PEND; LD.n = 0
g(f"""v_mul_u32_u24 v28, {8*3456}, v{vKG}
      v_lshl_add_u32 v28, v{vN}, 3, v28
      v_lshlrev_b32 v7, 4, v{vKG}
      s_mul_i32 s58, s63, 320
      v_add_u32 v7, s58, v7
      s_mul_i32 s58, s63, {160*3456}
      s_lshl_b32 s41, s62, 7
      s_add_u32 s58, s58, s41""")
srd(SR, P_W1, 2211840)
stamp(4)
for b in range(5):
    if b: g(f"s_add_u32 s58, s58, {32*3456}")
    load_block(48 + 16 * b, 28, SR, 58, 42, 3456, OPT['fthr'])
land_flush()
D = 144
get_tag(6)
lds_wait(F_XN, 1, 40)
for b in range(5): g(f"ds_read_b128 {vr(XF+4*b,4)}, v7 offset:{XNL+64*b}")
g("s_waitcnt lgkmcnt(0)")
for b in range(5):
    g(f"s_waitcnt vmcnt({8*(4-b)})")
    perm_block(48 + 16 * b, 32 + 16 * b)
    g("s_nop 1")
    for t in range(4): mfma(D + 4 * t, XF + 4 * b, 32 + 16 * b + 4 * t, b == 0)
if OPT["w11e"]: w11_loads()
if OPT["hlate"] == 1: land_wait(4, 40, 24, sleep=2)
if OPT["hlate"] == 2: lds_wait(F_STG, 8, 40, sleep=2)
if OPT["hlate"] == 3: land_wait(3, 40, 24, sleep=2)
g(f"""v_lshlrev_b32 v28, 4, v{LANE}
      s_nop 0
      s_lshl_b32 s40, s62, 2
      s_add_u32 s40, s40, s63
      s_lshl_b32 s40, s40, 9
      s_add_u32 s40, s40, {HM}
      v_mov_b32 v9, s{sTAG}
      v_mov_b32 v11, s{sTAG}
      s_nop 1
      v_cndmask_b32 v8, v{D}, v{D+8}, s[56:57]
      v_cndmask_b32 v10, v{D+4}, v{D+12}, s[56:57]
      s_mov_b32 exec_hi, 0
      buffer_store_dwordx4 v[8:11], v28, {sr(WS,4)}, s40 offen sc1
      s_mov_b64 exec, -1
      s_branch L_FFNe""")
g.label("L_FFN2")
g(f"""s_mul_i32 s40, s63, 37
      s_add_u32 s40, s40, s62
      s_sub_u32 s58, s40, 27
      s_cmp_lt_u32 s58, 135
      s_cbranch_scc1 L_FFN2a""")
LD.pending = PEND; LD.n = 0
land_flush()
get_tag(6)
if OPT["w11e"]: w11_loads()
g("s_branch L_FFNe")
g.label("L_FFN2a")
LD.pending = PEND; LD.n = 0
g(f"""s_mul_i32 s59, s58, 205
      s_lshr_b32 s59, s59, 10                 ; fb = v/5
      s_mul_i32 s60, s59, 5
      s_sub_u32 s60, s58, s60                 ; mb
      v_mul_u32_u24 v28, {8*1280}, v{vKG}
      v_lshl_add_u32 v28, v{vN}, 3, v28
      s_mul_i32 s58, s59, {64*1280}
      s_lshl_b32 s41, s60, 8
      s_add_u32 s58, s58, s41""")
srd(SR, P_W2, 2211840)
if OPT["forder"] >= 2:
    land_flush()
    if OPT["forder"] == 2: lds_wait(F_ISS, 2, 40, sleep=2)
    if OPT["forder"] == 3: lds_wait(F_STG, 8, 40, sleep=2)
    if OPT["forder"] == 4: pc_wait(0xff, 8, 40, 41, off=F_LT, sleep=2)
stamp(4)
for ch in range(2):
    for blk in range(2):
        g(f"s_add_u32 s41, s58, {blk*32*1280 + ch*128}")
        load_block(48 + 16 * (2 * ch + blk), 28, SR, 41, 42, 1280, OPT['fthr2'])
land_flush()
get_tag(6)
for b in range(4):
    g(f"s_waitcnt vmcnt({8*(3-b)})")
    perm_block(48 + 16 * b, 32 + 16 * b)
if OPT["w11e"]: w11_loads()
g(f"""v_lshrrev_b32 v28, 2, v{vN}
      v_lshlrev_b32 v28, 9, v28
      v_lshl_add_u32 v28, v{vKG}, 5, v28
      v_bfe_u32 v29, v{vN}, 1, 1
      v_lshl_add_u32 v28, v29, 4, v28
      v_and_b32 v29, 1, v{vN}
      v_lshl_add_u32 v28, v29, 8, v28
      s_lshl_b32 s40, s59, 11
      s_add_u32 s40, s40, {HM}""")
if OPT["hlate"] in (1, 3): lds_wait(F_STG, 8, 41, sleep=2)
if OPT["hlate"] == 2: lds_wait(F_H3, 8, 41, sleep=2)
poll_loads("h6", f"""buffer_load_dwordx4 v[8:11], v28, {sr(WS,4)}, s40 offen sc1
      buffer_load_dwordx4 v[12:15], v28, {sr(WS,4)}, s40 offen offset:128 sc1""", [9, 11, 13, 15], 43, sleep=6)
for mod in ("row_ror:4", "row_ror:8"):
    for r in (8, 10, 12, 14): g(f"v_add_f32_dpp v{r}, v{r}, v{r} {mod} {DPPM}")
for r in (8, 10, 12, 14): g(f"v_max_f32 v{r}, 0, v{r}")
g("v_cvt_pk_bf16_f32 v8, v8, v10\nv_cvt_pk_bf16_f32 v12, v12, v14\ns_nop 1")
for blk in range(2):
    for p in range(4):
        g(f"v_mov_b32_dpp v{16+4*blk+p}, v{8+4*blk} quad_perm:[{p},{p},{p},{p}] {DPPM}")
g("s_nop 1")
D = 96
for ch in range(2):
    for blk in range(2):
        for t in range(4): mfma(D + 16 * ch + 4 * t, 16 + 4 * blk, 32 + 16 * (2 * ch + blk) + 4 * t, blk == 0)
g(f"""v_lshrrev_b32 v28, 3, v{vN}
      v_lshlrev_b32 v28, 12, v28
      v_and_b32 v29, 7, v{vN}
      v_lshl_add_u32 v28, v29, 4, v28
      v_mov_b32 v29, 0xff
      s_lshl_b32 s40, s60, 14
      s_lshl_b32 s41, s59, 7
      s_add_u32 s40, s40, s41
      s_add_u32 s40, s40, {YM}
      s_add_u32 s41, s40, {2*4096}""")
tagbytes()
for ch in range(2):
    for t in range(4): g(f"v_bfi_b32 v{8+4*ch+t}, v29, s{sTB+t}, v{D+16*ch+4*t}")
g(f"""s_mov_b64 exec, 0xffff
      buffer_store_dwordx4 v[8:11], v28, {sr(WS,4)}, s40 offen sc1
      buffer_store_dwordx4 v[12:15], v28, {sr(WS,4)}, s41 offen sc1
      s_mov_b64 exec, -1""")
g.label("L_FFNe")
stamp(5)
if OPT["w8x3"]: g("s_branch L_G_end")
if OPT["w11e"]: h4_setup()
else:
    wo_setup(); h4_setup()
    g("s_add_u32 s49, s48, 512")
    if OPT["uvgate"] == 3: land_wait(4, 40, 24, sleep=1)
    else: lds_wait(F_ISS, 2, 40, sleep=2)
    b1_gate()
    wo_gate()
    load_block(128, 6, 44, 49, 42, 1280, TH)
g("s_waitcnt vmcnt(0)")
perm_block(128, 32, KORD)
h4_warm(8, [4])
lds_wait(F_LT, 8, 40, sleep=2)
rl_wait()
lds_wait(F_IB, 8, 40, sleep=1)
g("s_setprio 2")
h4_wait(8)
stamp(6)
wo_compute(8, [32], [4], 48)
stamp(7)
g.label("L_G_end")
if OPT["pad"]:
    g(f"""v_readfirstlane_b32 s40, v{VTS}
          s_cmp_lt_u32 s{sWG}, 8
          s_cbranch_scc0 L_END
          s_add_u32 s40, s40, {OPT["pad"]}""")
    if OPT["padmin"]:
        g(f"""s_load_dwordx2 s[44:45], s[0:1], 80
          s_mov_b32 s46, 256
          s_mov_b32 s47, 0x20000
          v_not_b32 v8, v{VTS}
          s_mov_b64 exec, 1
          s_waitcnt lgkmcnt(0)
          buffer_atomic_umax v8, v{VZ}, s[44:47], 0 offen
          s_waitcnt vmcnt(0)
          s_sleep 100
          buffer_load_dword v8, v{VZ}, s[44:47], 0 offen sc1
          s_waitcnt vmcnt(0)
          v_not_b32 v8, v8
          s_nop 1
          v_readfirstlane_b32 s40, v8
          s_nop 3
          s_add_u32 s40, s40, {OPT["pad"]}""")
    g(f"""L_padl:
          s_memrealtime s[42:43]
          s_waitcnt lgkmcnt(0)
          s_sub_u32 s41, s42, s40
          s_cmp_lt_i32 s41, 0
          s_cbranch_scc1 L_padl""")
ts_flush("G")
g.label("L_END")
g("s_endpgm")
g.l.append(".p2align 12")
g.label("L_CODE_END")

s = file_head([f"; @launch grid=(256,1,1) block=(768,1,1) lds={LDS_BYTES}"])
s += """// ---------------------------------------------------------------------------------------------
// Tag bits never reach the arithmetic.  Two small hand-offs (q, ctx) are first stored write-back, which is
// group maximum inside +-64 (log2 units); otherwise the workgroup redoes it with the true maximum and
// ---------------------------------------------------------------------------------------------
"""
s += f""".text
.globl {K}
.p2align 12
.type {K},@function
{K}:
"""
s += g.text()
s += kernel_desc(K, 168, 102)
open(OUT, "w").write(s)
print(OUT, "lines", len(g.l), "ws_end", hex(WS_END))
```
